```python
import torch

def _softmax(x, axis=-1):
    return torch.softmax(x, dim=axis)
def _gelu(x):
    return torch.nn.functional.gelu(x, approximate="tanh")
def _silu(x):
    return torch.nn.functional.silu(x)
def _sigmoid(x):
    return torch.sigmoid(x)
def _layernorm(x, axis=-1, eps=1e-5):
    m = x.mean(dim=axis, keepdim=True)
    v = x.var(dim=axis, keepdim=True, unbiased=False)
    return (x - m) / torch.sqrt(v + eps)
def _scatter_add(tgt, idx, src, axis=0):
    return tgt.clone().index_add_(axis, idx, src)
def _segment_sum(src, seg, n):
    out = torch.zeros((n,) + src.shape[1:], dtype=src.dtype)
    return out.index_add_(0, seg, src)
def _pad(x, pw):
    flat = tuple(v for pair in reversed(pw) for v in pair)
    return torch.nn.functional.pad(x, flat)

kernel_name = 'standalone__gqa_softmax__near_ridge'

def setup_inputs():

    _w = (lambda a: (lambda t: t.to(torch.bfloat16) if t.is_floating_point() else t)(torch.as_tensor(a)))
    B, Hq, Hkv, Sq, Sk, D = 8, 16, 8, 368, 512, 256
    return {
        "q": _w((lambda *s: torch.randn(*s, dtype=torch.bfloat16) * 0.8)(B, Hq, Sq, D)),
        "k": _w((lambda *s: torch.randn(*s, dtype=torch.bfloat16) * 0.8)(B, Hkv, Sk, D)),
        "v": _w((lambda *s: torch.randn(*s, dtype=torch.bfloat16) * 0.05)(B, Hkv, Sk, D)),
    }

def reference(q, k, v):
    B, Hq, Sq, D = q.shape
    Hkv = k.shape[1]
    rep = Hq // Hkv
    k = (lambda x, n, axis: torch.repeat_interleave(x, n, dim=axis))(k, rep, axis=1)
    v = (lambda x, n, axis: torch.repeat_interleave(x, n, dim=axis))(v, rep, axis=1)
    scale = D ** -0.5
    scores = torch.einsum("bhqd,bhkd->bhqk", q, k) * scale
    p = _softmax(scores, axis=-1)
    return torch.einsum("bhqk,bhkd->bhqd", p, v)
```

```python
class Op:
    __slots__ = ("text", "kind", "reads", "writes", "deps", "earliest", "deadline", "tag",
                 "pos", "gap", "pre", "meta", "nbytes")

    def __init__(self, text, kind, reads=(), writes=(), tag="", meta=None):
        self.text = text
        self.kind = kind
        self.reads = frozenset(reads)
        self.writes = frozenset(writes)
        self.deps = []
        self.earliest = -1
        self.deadline = 1 << 30
        self.tag = tag
        self.pos = None
        self.gap = None
        self.pre = []
        self.meta = meta or {}

    def __repr__(self):
        return f"<{self.kind} {self.text}>"


def R(prefix, lo, n=1):
    return [f"{prefix}{lo + i}" for i in range(n)]


def rng(prefix, lo, n):
    if n == 1:
        return f"{prefix}{lo}"
    return f"{prefix}[{lo}:{lo + n - 1}]"


class Reg:
    def __init__(self, f, lo, n):
        self.f, self.lo, self.n = f, lo, n

    def __getitem__(self, i):
        if isinstance(i, slice):
            a = i.start or 0
            b = i.stop if i.stop is not None else self.n
            assert 0 <= a < b <= self.n
            return Reg(self.f, self.lo + a, b - a)
        assert 0 <= i < self.n
        return Reg(self.f, self.lo + i, 1)

    def __str__(self):
        return rng(self.f, self.lo, self.n)

    @property
    def names(self):
        return R(self.f, self.lo, self.n)


VM_KINDS = ("dma", "vload", "vstore")
VALU_KINDS = ("valu", "trans")


def insert_waits(prog, verbose=False):
    out = []
    lg = []
    vm = []
    lg_done = 0
    vm_done = 0
    pend = {}
    nwaits = 0

    def last_mfma_pos():
        for k in range(len(out) - 1, -1, -1):
            if out[k].kind == "mfma":
                return k
            if out[k].kind in ("barrier", "label", "branch"):
                return None
        return None

    for op in prog:
        need_lg = lg_done
        need_vm = vm_done
        for r in (op.reads | op.writes):
            if r in pend:
                c, idx = pend[r]
                if c == "lg":
                    need_lg = max(need_lg, idx + 1)
                else:
                    need_vm = max(need_vm, idx + 1)
        for d in op.meta.get("need_vm", ()):
            need_vm = max(need_vm, d.meta["vm_idx"] + 1)
        for d in op.meta.get("need_lgkm", ()):
            need_lg = max(need_lg, d.meta["lg_idx"] + 1)
        if need_lg > lg_done or need_vm > vm_done:
            at = len(out)
            nlg, nvm = len(lg), len(vm)
            if op.kind == "mfma" or op.meta.get("hoist_wait"):
                k = last_mfma_pos()
                if k is not None:
                    lg_after = sum(1 for x in out[k + 1:] if x.kind == "ds")
                    vm_after = sum(1 for x in out[k + 1:] if x.kind in VM_KINDS)
                    if need_lg <= len(lg) - lg_after and need_vm <= len(vm) - vm_after:
                        at = k + 1
                        nlg -= lg_after
                        nvm -= vm_after
            parts = []
            if need_vm > vm_done:
                cnt = nvm - need_vm
                assert cnt <= 63
                parts.append(f"vmcnt({cnt})")
                vm_done = need_vm
            if need_lg > lg_done:
                cnt = min(nlg - need_lg, 15)
                parts.append(f"lgkmcnt({cnt})")
                lg_done = nlg - cnt
            w = Op("s_waitcnt " + " ".join(parts), "wait")
            if at < len(out) and out[at].kind == "wait" and not out[at].meta.get("fixed"):
                old = out[at].text.split()[1:]
                d = {}
                for p in old + parts:
                    name, val = p[:-1].split("(")
                    d[name] = min(int(val), d.get(name, 99))
                out[at] = Op("s_waitcnt " + " ".join(f"{n}({v})" for n, v in sorted(d.items(), reverse=True)), "wait")
            else:
                out.insert(at, w)
                nwaits += 1
            for r in list(pend):
                c, idx = pend[r]
                if (c == "lg" and idx < lg_done) or (c == "vm" and idx < vm_done):
                    del pend[r]
        if op.kind == "wait" and op.meta.get("all"):
            lg_done = len(lg)
            vm_done = len(vm)
            pend.clear()
        if op.kind == "wait" and op.meta.get("lg_all"):
            lg_done = len(lg)
            for r in list(pend):
                if pend[r][0] == "lg":
                    del pend[r]
        out.append(op)
        if op.kind == "ds":
            op.meta["lg_idx"] = len(lg)
            for r in op.writes:
                pend[r] = ("lg", len(lg))
            lg.append(op)
        elif op.kind in VM_KINDS:
            op.meta["vm_idx"] = len(vm)
            if op.kind == "vload":
                for r in op.writes:
                    pend[r] = ("vm", len(vm))
            vm.append(op)
        if op.kind == "barrier":
            op.meta["lg_done_at"] = lg_done
            op.meta["vm_done_at"] = vm_done
    if verbose:
        print("waits inserted:", nwaits)
    return out


def states_of(op):
    if op.text.startswith("s_nop"):
        return int(op.text.split()[1]) + 1
    if op.kind == "label":
        return 0
    return 1


def fix_hazards(prog, verbose=False):
    out = []
    added = 0

    def dist_back(pred, maxd):
        d = 0
        for k in range(len(out) - 1, -1, -1):
            x = out[k]
            if pred(x):
                return d
            d += states_of(x)
            if d >= maxd:
                return None
        return None

    for op in prog:
        need = 0

        def req(pred, n):
            nonlocal need
            d = dist_back(pred, n)
            if d is not None:
                need = max(need, n - d)

        rw = op.reads | op.writes
        if op.kind in VALU_KINDS or op.kind in ("ds", "dma", "vload", "vstore"):
            req(lambda x: x.kind == "mfma" and (x.writes & rw), 8)
        if op.kind in VALU_KINDS:
            req(lambda x: x.kind == "mfma" and (x.meta.get("srcc", frozenset()) & op.writes), 3)
            if op.kind != "trans":
                req(lambda x: x.kind == "trans" and (x.writes & op.reads), 1)
            req(lambda x: x.kind == "vstore" and (x.meta.get("data", frozenset()) & op.writes), 2)
            req(lambda x: x.kind in VALU_KINDS and any(r[0] == "s" and r in op.reads for r in x.writes), 2)
            if "permlane" in op.text:
                req(lambda x: x.kind in VALU_KINDS and (x.writes & op.reads), 2)
            if "readfirstlane" in op.text or "readlane" in op.text:
                req(lambda x: x.kind in VALU_KINDS and (x.writes & op.reads), 1)
            if "dpp" in op.text:
                req(lambda x: x.kind in VALU_KINDS and (x.writes & op.reads), 2)
        if op.kind in ("ds", "vload"):
            req(lambda x: x.kind == "vstore" and (x.meta.get("data", frozenset()) & op.writes), 1)
        if op.kind == "mfma":
            req(lambda x: x.kind in VALU_KINDS and (x.writes & op.reads), 2)
            ab = op.meta["srcab"]
            c = op.meta.get("srcc", frozenset())
            req(lambda x: x.kind == "mfma" and (x.writes & ab), 8)
            req(lambda x: x.kind == "mfma" and (x.writes & c) and x.writes != c, 6)
            req(lambda x: x.kind == "mfma" and (x.writes & op.writes) and x.writes != c, 8)
        if op.kind in VM_KINDS:
            req(lambda x: x.kind in VALU_KINDS and any(r[0] == "s" and r in op.reads for r in x.writes), 5)
        if op.kind == "dma":
            req(lambda x: x.kind == "salu" and "m0" in x.writes, 1)
        if op.kind in ("salu", "branch"):
            req(lambda x: x.kind in VALU_KINDS and any(r[0] == "s" and r in op.reads for r in x.writes), 4)
        if need:
            n = need
            while n > 0:
                k = min(n, 16)
                out.append(Op(f"s_nop {k - 1}", "salu"))
                n -= k
            added += need
            if verbose:
                print(f"  hazard pad {need} before {op.text}")
        out.append(op)
    return out, added


def estimate_cycles(prog):
    t = 0
    vec_free = 0
    mfma_free = 0
    last_valu = -100
    last_ds = -100
    for op in prog:
        k = op.kind
        if k == "label":
            continue
        if k == "mfma":
            t = max(t, mfma_free, vec_free, last_ds + 8)
            mfma_free = t + 16
            vec_free = t + 8
            t += 4
        elif k in ("salu", "wait", "barrier", "branch"):
            t += 4 * states_of(op)
        elif k == "trans":
            t = max(t, vec_free)
            last_valu = t
            t += 8
        elif k == "valu":
            t = max(t, vec_free)
            last_valu = t
            t += 4
        else:
            t = max(t, vec_free, last_valu + 8)
            last_ds = t
            t += 4
    return t
```

```python
import sys, math, argparse
sys.path.insert(0, __file__.rsplit("/", 1)[0])
from ir import *

KNAME = "standalone__gqa_softmax__near_ridge_kernel"
C_SCALE = math.log2(math.e) / 16.0


def f2u(x):
    import struct
    return struct.unpack("<I", struct.pack("<f", x))[0]


class Cfg:
    ldq = "nt"
    ldkv = "nt"
    st = "sc1"
    lat = 6
    age = 5
    sready = 4
    stamps = False
    codepf = True
    force_fallback = False
    dma_phase = 0.0
    preflush = True


sQ, sK, sV, sO = 12, 16, 20, 24
sW1K = 28
sC = 29
sKoff = 30
sVoff = 31
sT0, sT1, sT2, sT3 = 32, 33, 34, 35
sW = 36
sThr = 37
sW8K = 38
sDBG = 40
vKR = [Reg("v", 1, 1), Reg("v", 2, 1), Reg("v", 3, 1)]
vVR = [[Reg("v", 4 + 3 * h + w, 1) for w in range(3)] for h in range(2)]
vDK = [Reg("v", 10, 1), Reg("v", 11, 1)]
vDV = [Reg("v", 12 + a, 1) for a in range(4)]
vST = [Reg("v", 16 + r, 1) for r in range(3)]
vNM = [Reg("v", 19 + r, 1) for r in range(3)]
vL = [Reg("v", 22 + r, 1) for r in range(3)]
vRL = [Reg("v", 25 + r, 1) for r in range(3)]
vT = Reg("v", 28, 12)
vS = [Reg("v", 40 + 4 * i, 4) for i in range(8)]
vP = [[[Reg("v", 72 + 24 * b + 8 * r + 4 * kc, 4) for kc in range(2)] for r in range(3)] for b in range(2)]
vX = Reg("v", 120, 8)
O = [[Reg("v", 128 + 4 * t, 4) for t in range(16)],
     [Reg("v", 192 + 4 * t, 4) for t in range(16)],
     [Reg("a", 4 * t, 4) for t in range(16)]]
preK = [[Reg("v", 128 + 32 * a + 4 * c, 4) for c in range(8)] for a in range(4)]
Q = [[Reg("a", 64 + 32 * r + 4 * c, 4) for c in range(8)] for r in range(3)]
KF = [Reg("a", 160 + 4 * c, 4) for c in range(8)]
NVB = 4
VF = [[Reg("a", 192 + 8 * b + 4 * kc, 4) for kc in range(2)] for b in range(NVB)]

SLOT = 16384
LDS_BYTES = 163840


def sn(i, n=1):
    return R("s", i, n)


def valu(text, reads=(), writes=(), tag=""):
    return Op(text, "valu", reads, writes, tag)


def salu(text, reads=(), writes=()):
    return Op(text, "salu", reads, writes)


def names(*regs):
    out = []
    for r in regs:
        out += r.names if isinstance(r, Reg) else [r]
    return out


def mfma(D, A, B, C=None):
    c = str(C) if C is not None else "0"
    op = Op(f"v_mfma_f32_16x16x32_bf16 {D}, {A}, {B}, {c}", "mfma",
            names(A, B) + (C.names if C is not None else []), D.names)
    op.meta["srcab"] = frozenset(names(A, B))
    op.meta["srcc"] = frozenset(C.names) if C is not None else frozenset()
    return op


def ds_k(dst, addr):
    w, off = divmod(addr, 65536)
    return Op(f"ds_read_b128 {dst}, {vKR[w]} offset:{off}", "ds", vKR[w].names, dst.names)


def ds_v(dst, h, addr):
    w, off = divmod(addr, 65536)
    return Op(f"ds_read_b64_tr_b16 {dst}, {vVR[h][w]} offset:{off}", "ds", vVR[h][w].names, dst.names)


def dma(vaddr, srd, soff, imm, pol):
    so = f"s{soff}" if soff is not None else "0"
    t = f"buffer_load_dwordx4 {vaddr}, s[{srd}:{srd + 3}], {so} offen"
    if imm:
        t += f" offset:{imm}"
    if pol:
        t += " " + pol
    t += " lds"
    return Op(t, "dma", vaddr.names + sn(srd, 4) + (sn(soff) if soff is not None else []) + ["m0"], [])


def set_m0(const):
    return salu(f"s_add_u32 m0, s{sW1K}, {const}", sn(sW1K), ["m0", "scc"])


class Unit:
    def __init__(self, kind, n):
        self.kind, self.n = kind, n
        self.slot = None
        self.dmas = []
        self.reads = []

    def make_dmas(self, cfg):
        ops = []
        base = self.slot * SLOT
        if self.kind == "K":
            so = salu(f"s_mov_b32 s{sKoff}, {self.n * 16384}", [], sn(sKoff))
            for a in range(2):
                for half in range(2):
                    d = dma(vDK[a], sK, sKoff, half * 256, cfg.ldkv)
                    d.pre = [set_m0(base + a * 8192 + half * 4096 - half * 256)]
                    ops.append(d)
        else:
            j, h = divmod(self.n, 2)
            so = salu(f"s_mov_b32 s{sVoff}, {j * 32768 + h * 256}", [], sn(sVoff))
            for a in range(4):
                d = dma(vDV[a], sV, sVoff, 0, cfg.ldkv)
                d.pre = [set_m0(base + a * 4096)]
                ops.append(d)
        ops[0].pre.insert(0, so)
        for d in ops:
            d.meta["unit"] = self
        self.dmas = ops
        return ops


def flat_dmas(ops):
    out = []
    for d in ops:
        out += d.pre
        out.append(salu("s_nop 0"))
        out.append(d)
        d.pre = []
    return out


def xlane(op, x, tmp):
    o = []
    o.append(valu(f"v_mov_b32 {tmp}, {x}", x.names, tmp.names))
    o.append(valu(f"v_permlane32_swap_b32 {x}, {tmp}", names(x, tmp), names(x, tmp)))
    o.append(valu(f"{op} {x}, {x}, {tmp}", names(x, tmp), x.names))
    o.append(valu(f"v_mov_b32 {tmp}, {x}", x.names, tmp.names))
    o.append(valu(f"v_permlane16_swap_b32 {x}, {tmp}", names(x, tmp), names(x, tmp)))
    o.append(valu(f"{op} {x}, {x}, {tmp}", names(x, tmp), x.names))
    return o


def stamp(idx):
    return [Op("s_memrealtime s[44:45]", "raw"), Op("s_waitcnt lgkmcnt(0)", "wait", meta={"lg_all": True, "fixed": True}),
            Op(f"v_writelane_b32 v127, s44, {idx}", "raw")]


def prologue(cfg, units):
    P = []
    A = P.append
    raw = lambda t: A(Op(t, "raw"))
    raw("s_cmp_ge_u32 s2, 256")
    raw("s_cbranch_scc1 L_end")
    raw("s_load_dwordx4 s[4:7], s[0:1], 0")
    raw("s_load_dwordx4 s[8:11], s[0:1], 16")
    if cfg.stamps:
        raw("s_load_dwordx2 s[40:41], s[0:1], 40")
        raw("s_memrealtime s[46:47]")
    t = vT
    lane, wv, common, cpos, f_w = t[0], t[1], t[2], t[3], t[4]
    A(valu(f"v_lshrrev_b32 {wv}, 6, v0", ["v0"], wv.names))
    A(valu(f"v_and_b32 {lane}, 63, v0", ["v0"], lane.names))
    A(valu(f"v_readfirstlane_b32 s{sW}, {wv}", wv.names, sn(sW)))
    A(salu(f"s_and_b32 s{sT0}, s2, 7", [], sn(sT0)))
    A(salu(f"s_lshr_b32 s{sT1}, s2, 5", [], sn(sT1)))
    A(salu(f"s_lshl_b32 s{sT1}, s{sT1}, 3", [], sn(sT1)))
    A(salu(f"s_add_u32 s{sT0}, s{sT0}, s{sT1}", [], sn(sT0)))
    A(salu(f"s_bfe_u32 s{sT1}, s2, 0x20003", [], sn(sT1)))
    A(salu(f"s_mul_i32 s{sT2}, s{sT0}, {736 * 512}", [], sn(sT2)))
    A(salu(f"s_mul_i32 s{sT1}, s{sT1}, {184 * 512}", [], sn(sT1)))
    A(salu(f"s_add_u32 s{sT2}, s{sT2}, s{sT1}", [], sn(sT2)))
    A(salu(f"s_lshl_b32 s{sT0}, s{sT0}, 18", [], sn(sT0)))
    A(valu(f"v_bfe_u32 {common}, {lane}, 2, 2", lane.names, common.names))
    A(valu(f"v_lshlrev_b32 {common}, 9, {common}", common.names, common.names))
    A(valu(f"v_lshrrev_b32 {t[5]}, 4, {lane}", lane.names, t[5].names))
    A(valu(f"v_lshl_add_u32 {common}, {t[5]}, 6, {common}", names(t[5], common), common.names))
    A(valu(f"v_and_b32 {cpos}, 3, {lane}", lane.names, cpos.names))
    A(valu(f"v_lshlrev_b32 {t[6]}, 1, {wv}", wv.names, t[6].names))
    A(valu(f"v_mov_b32 {t[7]}, 0x78", [], t[7].names))
    A(valu(f"v_bfe_u32 {f_w}, {t[7]}, {t[6]}, 2", names(t[7], t[6]), f_w.names))
    A(valu(f"v_xor_b32 {f_w}, {f_w}, {cpos}", names(f_w, cpos), f_w.names))
    A(valu(f"v_lshl_add_u32 {t[8]}, {wv}, 11, {common}", names(wv, common), t[8].names))
    A(valu(f"v_lshl_add_u32 {vDK[0]}, {f_w}, 4, {t[8]}", names(f_w, t[8]), vDK[0].names))
    A(valu(f"v_add_u32 {vDK[1]}, 8192, {vDK[0]}", vDK[0].names, vDK[1].names))
    A(salu(f"s_lshl_b32 s{sW1K}, s{sW}, 10", sn(sW), sn(sW1K)))
    A(salu(f"s_lshl_b32 s{sW8K}, s{sW}, 13", sn(sW), sn(sW8K)))
    A(Op("s_waitcnt lgkmcnt(0)", "wait", meta={"fixed": True}))
    for (srd, p, off, nrec) in ((sK, 6, sT0, 262144), (sQ, 4, sT2, 184 * 512), (sV, 8, sT0, 262144), (sO, 10, sT2, 184 * 512)):
        A(salu(f"s_add_u32 s{srd}, s{p}, s{off}", [], sn(srd)))
        A(salu(f"s_addc_u32 s{srd + 1}, s{p + 1}, 0", [], sn(srd + 1)))
        A(salu(f"s_mov_b32 s{srd + 2}, {nrec}", [], sn(srd + 2)))
        A(salu(f"s_mov_b32 s{srd + 3}, 0x00020000", [], sn(srd + 3)))
        if srd == sK:
            P += flat_dmas(units["K0"].make_dmas(cfg))
    if cfg.stamps:
        raw("s_mov_b32 s42, 0x1000000")
        raw("s_mov_b32 s43, 0x00020000")
        raw("v_mov_b32 v127, 0")
        raw("v_writelane_b32 v127, s46, 0")
    vq = [[Reg("v", 72 + 4 * r + rg, 1) for rg in range(4)] for r in range(3)]
    A(valu(f"v_mul_u32_u24 {t[9]}, {48 * 512}, {wv}", wv.names, t[9].names))
    A(valu(f"v_add_u32 {t[9]}, {t[9]}, {common}", names(t[9], common), t[9].names))
    fr = (0, 2, 3, 1)
    qd = [[], [], []]

    def q_dmas(r):
        for rg in range(4):
            if r == 0:
                A(valu(f"v_xor_b32 {t[10]}, {fr[rg]}, {cpos}", cpos.names, t[10].names))
                A(valu(f"v_lshl_add_u32 {vq[0][rg]}, {t[10]}, 4, {t[9]}", names(t[10], t[9]), vq[0][rg].names))
                if rg:
                    A(valu(f"v_add_u32 {vq[0][rg]}, {rg * 2048}, {vq[0][rg]}", vq[0][rg].names, vq[0][rg].names))
            else:
                A(valu(f"v_add_u32 {vq[r][rg]}, {r * 8192}, {vq[0][rg]}", vq[0][rg].names, vq[r][rg].names))
        for half in range(2):
            for rg in range(4):
                d = dma(vq[r][rg], sQ, None, half * 256, cfg.ldq)
                A(salu(f"s_add_u32 m0, s{sW8K}, {65536 + r * 32768 + half * 4096 + rg * 1024 - half * 256}", sn(sW8K), ["m0", "scc"]))
                A(salu("s_nop 0"))
                A(d)
                qd[r].append(d)

    q_dmas(0)
    P += flat_dmas(units["K1"].make_dmas(cfg))
    if cfg.codepf:
        raw("s_getpc_b64 s[44:45]")
        A(valu(f"v_lshlrev_b32 {t[10]}, 7, v0", ["v0"], t[10].names))
        A(Op(f"global_load_dword {vX[0]}, {t[10]}, s[44:45]", "vload", t[10].names, vX[0].names))
        A(valu(f"v_add_u32 {t[10]}, 32768, {t[10]}", t[10].names, t[10].names))
        A(valu(f"v_min_u32 {t[10]}, L_mainend - L_pfbase, {t[10]}", t[10].names, t[10].names))
        A(Op(f"global_load_dword {vX[1]}, {t[10]}, s[44:45]", "vload", t[10].names, vX[1].names))
        P.insert(P.index(next(o for o in P if o.text.startswith("s_getpc"))) + 1, Op("L_pfbase:", "label"))
    q_dmas(1)
    q_dmas(2)
    P += flat_dmas(units["K2"].make_dmas(cfg))
    A(valu(f"v_and_b32 {t[10]}, 1, {wv}", wv.names, t[10].names))
    A(valu(f"v_lshlrev_b32 {t[10]}, 1, {t[10]}", t[10].names, t[10].names))
    A(valu(f"v_xor_b32 {t[10]}, {t[10]}, {cpos}", names(t[10], cpos), t[10].names))
    A(valu(f"v_lshl_add_u32 {vDV[0]}, {t[10]}, 4, {t[8]}", names(t[10], t[8]), vDV[0].names))
    for a in range(1, 4):
        A(valu(f"v_add_u32 {vDV[a]}, {8192 * a}, {vDV[0]}", vDV[0].names, vDV[a].names))
    P += flat_dmas(units["V0"].make_dmas(cfg))
    g = t[5]
    A(valu(f"v_bfe_u32 {t[6]}, {lane}, 2, 2", lane.names, t[6].names))
    A(valu(f"v_lshlrev_b32 {t[10]}, 1, {t[6]}", t[6].names, t[10].names))
    A(valu(f"v_bfe_u32 {t[10]}, {t[7]}, {t[10]}, 2", names(t[7], t[10]), t[10].names))
    A(valu(f"v_xor_b32 {t[10]}, {t[10]}, {g}", names(t[10], g), t[10].names))
    A(valu(f"v_lshlrev_b32 {t[10]}, 4, {t[10]}", t[10].names, t[10].names))
    A(valu(f"v_lshl_add_u32 {t[10]}, {t[6]}, 10, {t[10]}", names(t[6], t[10]), t[10].names))
    A(valu(f"v_lshl_add_u32 {vKR[0]}, {cpos}, 6, {t[10]}", names(cpos, t[10]), vKR[0].names))
    A(valu(f"v_add_u32 {vKR[1]}, 0x10000, {vKR[0]}", vKR[0].names, vKR[1].names))
    A(valu(f"v_add_u32 {vKR[2]}, 0x20000, {vKR[0]}", vKR[0].names, vKR[2].names))
    A(valu(f"v_lshlrev_b32 {t[10]}, 10, {g}", g.names, t[10].names))
    A(valu(f"v_lshl_add_u32 {t[10]}, {t[6]}, 6, {t[10]}", names(t[6], t[10]), t[10].names))
    A(valu(f"v_lshl_add_u32 {t[10]}, {cpos}, 3, {t[10]}", names(cpos, t[10]), t[10].names))
    A(valu(f"v_and_b32 {t[11]}, 1, {g}", g.names, t[11].names))
    A(valu(f"v_lshl_add_u32 {vVR[0][0]}, {t[11]}, 5, {t[10]}", names(t[11], t[10]), vVR[0][0].names))
    A(valu(f"v_xor_b32 {vVR[1][0]}, 32, {vVR[0][0]}", vVR[0][0].names, vVR[1][0].names))
    for h in range(2):
        for w in (1, 2):
            A(valu(f"v_add_u32 {vVR[h][w]}, {w * 65536}, {vVR[h][0]}", vVR[h][0].names, vVR[h][w].names))
    A(valu(f"v_and_b32 {t[10]}, 15, {lane}", lane.names, t[10].names))
    A(valu(f"v_mad_u32_u24 {t[10]}, {wv}, 48, {t[10]}", names(wv, t[10]), t[10].names))
    A(valu(f"v_lshlrev_b32 {t[10]}, 9, {t[10]}", t[10].names, t[10].names))
    A(valu(f"v_lshl_add_u32 {t[10]}, {t[11]}, 5, {t[10]}", names(t[11], t[10]), t[10].names))
    A(valu(f"v_lshrrev_b32 {t[11]}, 1, {g}", g.names, t[11].names))
    A(valu(f"v_lshl_add_u32 {vST[0]}, {t[11]}, 4, {t[10]}", names(t[11], t[10]), vST[0].names))
    A(valu(f"v_add_u32 {vST[1]}, 8192, {vST[0]}", vST[0].names, vST[1].names))
    A(valu(f"v_add_u32 {vST[2]}, 16384, {vST[0]}", vST[0].names, vST[2].names))
    A(valu(f"v_add_u32 {vX[2]}, s{sW8K}, {vKR[1]}", vKR[1].names + sn(sW8K), vX[2].names))
    A(valu(f"v_add_u32 {vX[3]}, s{sW8K}, {vKR[2]}", vKR[2].names + sn(sW8K), vX[3].names))
    A(salu(f"s_mov_b32 s{sC}, {f2u(C_SCALE):#x}", [], sn(sC)))
    A(salu(f"s_mov_b32 s{sThr}, {f2u(2.0 ** 64 if not cfg.force_fallback else 1.0):#x}", [], sn(sThr)))
    for r in range(3):
        A(valu(f"v_mov_b32 {vL[r]}, 0", [], vL[r].names))
    return P, qd


def q_reads(r, qd):
    ops = []
    for c in range(8):
        base = vX[2] if r < 2 else vX[3]
        off = (r if r < 2 else 0) * 32768 + (c >> 2) * 4096 + (c & 3) * 256
        o = Op(f"ds_read_b128 {Q[r][c]}, {base} offset:{off}", "ds", base.names, Q[r][c].names)
        o.meta["need_vm"] = qd[r][(c >> 2) * 4:(c >> 2) * 4 + 4]
        ops.append(o)
    return ops


def build(cfg):
    units = {}
    for n in range(16):
        units[f"K{n}"] = Unit("K", n)
        units[f"V{n}"] = Unit("V", n)
    units["K0"].slot, units["K1"].slot, units["K2"].slot, units["V0"].slot = 0, 1, 2, 3

    pro, qd = prologue(cfg, units)

    M = []
    fixed = {}
    dsq = []
    vq = []
    dmaq = []
    sbuf_last_reader = [None] * 8
    sbuf_ctr = [0]
    chain_guard = []
    pv_need = []
    Pcvt = {}
    negm_ready = {}

    def softmax_ops(tile, r, a, S, ready_gap):
        b = tile & 1
        dst = vP[b][r][a >> 1]
        fm, ex, ad, cv = [], [], [], []
        for i in range(4):
            o = valu(f"v_fma_f32 {S[i]}, {S[i]}, s{sC}, {vNM[r]}", names(S[i], vNM[r]) + sn(sC), S[i].names)
            o.earliest = ready_gap
            if r in negm_ready:
                o.deps.append((negm_ready[r], 0))
            fm.append(o)
        for i in range(4):
            o = Op(f"v_exp_f32 {S[i]}, {S[i]}", "trans", S[i].names, S[i].names)
            o.deps.append((fm[i], 0))
            ex.append(o)
        for i in range(4):
            o = valu(f"v_add_f32 {vL[r]}, {vL[r]}, {S[i]}", names(vL[r], S[i]), vL[r].names)
            o.deps.append((ex[i], 1))
            ad.append(o)
        for k in range(2):
            d = dst[2 * (a & 1) + k]
            o = valu(f"v_cvt_pk_bf16_f32 {d}, {S[2 * k]}, {S[2 * k + 1]}", names(S[2 * k], S[2 * k + 1]), d.names)
            o.deps += [(ex[2 * k], 1), (ex[2 * k + 1], 1)]
            o.earliest = pbuf_free.get(b, -1)
            cv.append(o)
        Pcvt[(tile, r, a)] = cv
        order = [fm[0], fm[1], ex[0], fm[2], ex[1], fm[3], ad[0], ex[2], ad[1], cv[0], ex[3], ad[2], ad[3], cv[1]]
        vq.extend(order)
        last_add[r] = ad[3]
        return ad + cv

    pbuf_free = {}
    last_add = {}

    def chain(tile, r, a, frags):
        si = sbuf_ctr[0] % 8
        sbuf_ctr[0] += 1
        S = vS[si]
        start = len(M)
        if sbuf_last_reader[si]:
            chain_guard.append((start, sbuf_last_reader[si]))
        for c in range(8):
            M.append(mfma(S, frags[c], Q[r][c], S if c else None))
        return si, S, len(M) - 1

    vbuf_ctr = [0]
    vbuf_free = [-1] * NVB

    def group(tile, t, first):
        b = tile & 1
        vb = vbuf_ctr[0] % NVB
        vbuf_ctr[0] += 1
        u = units[f"V{2 * tile + (t >> 3)}"]
        tt = t & 7
        start = len(M)
        for kc in range(2):
            for s in range(2):
                a = 2 * kc + s
                dst = VF[vb][kc][2 * s:2 * s + 2]
                rd = ("V", dst, tt & 1, u, a * 4096 + (tt >> 1) * 256, start + kc, vbuf_free[vb])
                dsq.append(rd)
        for r in range(3):
            for kc in range(2):
                C = O[r][t] if not (first and kc == 0) else None
                M.append(mfma(O[r][t], VF[vb][kc], vP[b][r][kc], C))
                pv_need.append((len(M) - 1, (tile, r, kc)))
        vbuf_free[vb] = len(M) - 1
        pbuf_free[b] = len(M) - 1
        return len(M) - 1

    bar = {}

    def barrier(name, need_units=(), need_lg=(), need_vm=()):
        o = Op("s_barrier", "barrier")
        o.meta["need_vm"] = [d for u in need_units for d in units[u].dmas] + list(need_vm)
        o.meta["need_lgkm"] = list(need_lg)
        o.meta["name"] = name
        o.meta["hoist_wait"] = False
        bar[name] = o
        return o

    blk = []
    blk.append(barrier("a", ["K0", "K1"], need_vm=qd[0]))
    bar["a"].gap = -1
    if cfg.stamps:
        blk += stamp(1)
    q0 = q_reads(0, qd)
    blk += q0
    prek = []
    for a in range(4):
        u = units[f"K{a >> 1}"]
        for c in range(8):
            o = ds_k(preK[a][c], u.slot * SLOT + (a & 1) * 8192 + (c >> 2) * 4096 + (c & 3) * 256)
            o.meta["unit"] = u
            o.meta["bar"] = bar["a"]
            u.reads.append(o)
            prek.append(o)
    blk += prek[:8]
    blk.append(barrier("b", need_lg=q0))
    units["K3"].slot, units["V1"].slot = 4, 5
    d3 = units["K3"].make_dmas(cfg) + units["V1"].make_dmas(cfg)
    for d in d3:
        d.meta["bar"] = bar["b"]
    blk += flat_dmas(d3)
    blk += prek[8:]
    fixed[-1] = blk

    for r in range(3):
        if r > 0:
            blk = []
            qr = q_reads(r, qd)
            blk += qr
            if r == 1:
                blk.append(barrier("c", need_lg=qr))
                units["K4"].slot, units["V2"].slot = 6, 7
                d4 = units["K4"].make_dmas(cfg) + units["V2"].make_dmas(cfg)
                for d in d4:
                    d.meta["bar"] = bar["c"]
                blk += flat_dmas(d4)
            else:
                blk.append(barrier(0, ["K2", "V0"], need_lg=qr + prek))
                bar[0].gap = len(M) - 1
            if cfg.stamps:
                blk += stamp(1 + r)
            fixed[len(M) - 1] = blk
        tiles = []
        for a in range(4):
            tiles.append(chain(0, r, a, preK[a]))
            if a == 1:
                S0, S1 = tiles[0][1], tiles[1][1]
                rdy = tiles[1][2] + cfg.sready
                m = vNM[r]
                tmp = vT[r]
                ops = [valu(f"v_max3_f32 {m}, {S0[0]}, {S0[1]}, {S0[2]}", names(S0[0], S0[1], S0[2]), m.names),
                       valu(f"v_max3_f32 {tmp}, {S0[3]}, {S1[0]}, {S1[1]}", names(S0[3], S1[0], S1[1]), tmp.names),
                       valu(f"v_max3_f32 {m}, {m}, {S1[2]}, {S1[3]}", names(m, S1[2], S1[3]), m.names),
                       valu(f"v_max_f32 {m}, {m}, {tmp}", names(m, tmp), m.names)]
                ops += xlane("v_max_f32", m, tmp)
                ops.append(valu(f"v_mul_f32 {m}, -{C_SCALE!r}, {m}".replace(f"-{C_SCALE!r}", f"{f2u(-C_SCALE):#x}"), m.names, m.names))
                prev = None
                for o in ops:
                    o.earliest = rdy
                    if prev is not None:
                        o.deps.append((prev, 1 if "permlane" in o.text else 0))
                    prev = o
                vq.extend(ops)
                negm_ready[r] = ops[-1]
                for k in range(2):
                    si, S, end = tiles[k]
                    sbuf_last_reader[si] = softmax_ops(0, r, k, S, end + cfg.sready)
            elif a > 1:
                si, S, end = tiles[a]
                sbuf_last_reader[si] = softmax_ops(0, r, a, S, end + cfg.sready)
        for o in vq:
            o.meta.setdefault("pre", len(M) - 1)
    negm_ready.clear()

    kf_free = [bar[0].gap] * 8
    start_int = {}
    ch2_first = {}
    grp_end = {}
    for j in range(8):
        for q in range(4):
            n = 2 * j + (q >> 1)
            if q % 2 == 0:
                start_int[n] = len(M)
            if j < 7:
                order = "cGcGcGG"
                if (j == 0 and q == 0) or (j == 6 and q == 3):
                    order = "cccGGGG"
                u = units[f"K{n + 2}"]
                r = 0
                gi = 0
                for ch in order:
                    if ch == "c":
                        st = len(M)
                        if r == 0:
                            for c in range(8):
                                dsq.append(("K", KF[c], None, u, (q & 1) * 8192 + (c >> 2) * 4096 + (c & 3) * 256, st + c, kf_free[c]))
                        si, S, end = chain(j + 1, r, q, KF)
                        if r == 2:
                            ch2_first[(j, q)] = st
                            for c in range(8):
                                kf_free[c] = st + c
                        sbuf_last_reader[si] = softmax_ops(j + 1, r, q, S, end + cfg.sready)
                        r += 1
                    else:
                        grp_end[(j, 4 * q + gi)] = group(j, 4 * q + gi, j == 0)
                        gi += 1
            else:
                for gi in range(4):
                    grp_end[(j, 4 * q + gi)] = group(j, 4 * q + gi, False)
    NM = len(M)

    for n in range(1, 15):
        j, q = divmod(2 * n - 1, 4)
        g = ch2_first[(j, q)] - 1
        if n == 14:
            g = start_int[14] - cfg.lat - 10
        o = Op("s_barrier", "barrier")
        o.gap = g
        o.meta["name"] = n
        bar[n] = o

    def vis_bar(u):
        if u.kind == "K":
            return bar[u.n - 2]
        return bar[min(u.n, 14)]

    free_at = {}
    free_at[8] = 0
    free_at[9] = 0
    free_at[0] = 0
    free_at[1] = 0
    release = {}
    for n in range(2, 16):
        release[f"K{n}"] = n - 1
    for n in range(16):
        release[f"V{n}"] = n + 2
    for name in ("K2", "V0", "K3", "V1", "K4", "V2"):
        free_at[units[name].slot] = release[name]
    pending = []
    for n in range(3, 16):
        if n + 2 < 16:
            pending.append(f"K{n + 2}")
        pending.append(f"V{n}")
    issue_win = {}
    win_load = {}
    for name in pending:
        u = units[name]
        slot = min(free_at, key=lambda s: (free_at[s], s))
        w = free_at[slot]
        prevw = max(issue_win.values()) if issue_win else 0
        w = max(w, prevw)
        cap = lambda x: 4 if x == 0 else 2
        while win_load.get(w, 0) >= cap(w):
            w += 1
        u.slot = slot
        issue_win[name] = w
        win_load[w] = win_load.get(w, 0) + 1
        free_at[slot] = release[name]
        assert w < vis_bar(u).meta["name"], (name, w)
        for d in u.make_dmas(cfg):
            d.meta["bar"] = bar[w]
            d.meta["win"] = w
            dmaq.append(d)
    for n in range(1, 15):
        need = [f"V{n}"] + ([f"K{n + 2}"] if n + 2 < 16 else []) + (["V15"] if n == 14 else [])
        bar[n].meta["need_vm"] = [d for x in need for d in units[x].dmas]
        bar[n].meta["hoist_wait"] = True

    reads = []
    for (kind, dst, h, u, off, cons, bfree) in dsq:
        addr = u.slot * SLOT + off
        o = ds_k(dst, addr) if kind == "K" else ds_v(dst, h, addr)
        vb = vis_bar(u)
        o.earliest = max(bfree, vb.gap + 1)
        o.deadline = cons - cfg.lat
        o.meta.update(unit=u, bar=vb, cons=cons)
        u.reads.append(o)
        reads.append(o)
    reads.sort(key=lambda o: o.meta["cons"])
    nxt = 1 << 30
    for o in reversed(reads):
        g = min(o.deadline, nxt - 2)
        if g < o.earliest:
            g = min(o.deadline, nxt - 1)
        if g < o.earliest:
            g = o.earliest
        o.gap = g
        nxt = g
    prev = -10
    late = 0
    for o in reads:
        g = max(o.gap, o.earliest, prev + 1)
        g = min(g, o.meta["cons"] - 2)
        assert g >= o.earliest and g >= prev, (o, g, o.earliest, prev)
        if g > o.deadline:
            late += 1
        o.gap = g
        prev = g
    gap_ds = {}
    for o in reads:
        gap_ds.setdefault(o.gap, []).append(o)

    fin = []
    chk_prev = None
    for r in range(3):
        ops = xlane("v_add_f32", vL[r], vT[r])
        prev = last_add[r]
        for o in ops:
            o.deps.append((prev, 1 if "permlane" in o.text else 0))
            prev = o
        rc = Op(f"v_rcp_f32 {vRL[r]}, {vL[r]}", "trans", vL[r].names, vRL[r].names)
        rc.deps.append((prev, 0))
        fin.append((ops, rc))
    for k in range(6):
        for r in range(3):
            vq.append(fin[r][0][k])
    mx = valu(f"v_max3_f32 {vT[3]}, {vL[0]}, {vL[1]}, {vL[2]}", names(*vL), vT[3].names)
    mx.deps += [(fin[r][0][-1], 0) for r in range(3)]
    cmp_ = valu(f"v_cmp_lt_f32 vcc, s{sThr}, {vT[3]}", vT[3].names + sn(sThr), ["svcc"])
    cmp_.deps.append((mx, 0))
    vq += [mx, cmp_] + [fin[r][1] for r in range(3)]
    br = Op("s_cbranch_vccnz L_fallback", "branch", ["svcc"], [])
    br.deps.append((cmp_, 2))
    tq = 0
    tmp8 = [Reg("v", 72, 8), Reg("v", 80, 8), Reg("v", 88, 8)]
    stores = []
    for T in range(8):
        rdy = grp_end[(7, 2 * T + 1)] + cfg.sready
        for r in range(3):
            X, Y = O[r][2 * T], O[r][2 * T + 1]
            src = [X[i] for i in range(4)] + [Y[i] for i in range(4)]
            ops = []
            if X.f == "a":
                tb = tmp8[T % 3]
                rd = []
                for i in range(8):
                    o = valu(f"v_accvgpr_read_b32 {tb[i]}, {src[i]}", src[i].names, tb[i].names)
                    o.earliest = max(rdy, pbuf_free[0])
                    if T >= 3:
                        o.deps += [(x, 0) for x in tmp8_users[T - 3]]
                    rd.append(o)
                ops += rd
                src = [tb[i] for i in range(8)]
            mu = []
            for i in range(8):
                o = valu(f"v_mul_f32 {src[i]}, {src[i]}, {vRL[r]}", names(src[i], vRL[r]), src[i].names)
                o.earliest = rdy
                o.deps.append((fin[r][1], 1))
                if X.f == "a":
                    o.deps.append((rd[i], 0))
                mu.append(o)
            D = vS[tq % 8]
            cv = []
            for k in range(4):
                o = valu(f"v_cvt_pk_bf16_f32 {D[k]}, {src[2 * k]}, {src[2 * k + 1]}", names(src[2 * k], src[2 * k + 1]), D[k].names)
                o.deps += [(mu[2 * k], 0), (mu[2 * k + 1], 0)]
                o.deps += [(x, 0) for x in sbuf_last_reader[tq % 8]]
                cv.append(o)
            if X.f == "a":
                if T == 0:
                    tmp8_users = {}
                tmp8_users[T] = cv
            sw = []
            for k in range(2):
                o = valu(f"v_permlane16_swap_b32 {D[k]}, {D[k + 2]}", names(D[k], D[k + 2]), names(D[k], D[k + 2]))
                o.deps += [(cv[k], 0), (cv[k + 2], 0), (cv[3], 0)]
                sw.append(o)
            stt = f"buffer_store_dwordx4 {D}, {vST[r]}, s[{sO}:{sO + 3}], 0 offen offset:{64 * T}"
            if cfg.st:
                stt += " " + cfg.st
            so = Op(stt, "vstore", D.names + vST[r].names + sn(sO, 4), [])
            so.meta["data"] = frozenset(D.names)
            so.deps += [(sw[0], 0), (sw[1], 0), (br, 0)]
            sbuf_last_reader[tq % 8] = [so]
            tq += 1
            ops += mu + cv + sw + [so]
            stores.append(so)
            vq += ops

    gap_dma = {}
    bywin = {}
    for d in dmaq:
        bywin.setdefault(d.meta["win"], []).append(d)
    for w, ds_ in bywin.items():
        g0 = bar[w].gap + 3
        g1 = bar[w + 1].gap - 2
        cand = [g for g in range(g0, g1) if g not in gap_ds]
        step = len(cand) / len(ds_)
        last = -10
        for i, d in enumerate(ds_):
            k = int(i * step + (cfg.dma_phase * step))
            g = cand[min(k, len(cand) - 1)]
            while g <= last + 2 or g in gap_ds:
                g += 1
            gap_dma[g] = d
            d.gap = g
            last = g

    placed = set()
    gaps = {g: {"s": [], "v": []} for g in range(-1, NM)}
    for n in range(1, 15):
        gaps[bar[n].gap]["s"].append(bar[n])
    for g, d in gap_dma.items():
        pre = d.pre
        d.pre = []
        gaps[g - 1]["s"].append(pre[-1])
        if len(pre) > 1:
            gaps[g - 2]["s"].append(pre[0])

    def ready(o, g):
        if o.earliest > g:
            return False
        for (d, k) in o.deps:
            if d.gap is None or d.gap + k > g:
                return False
        return True

    queue = list(vq)
    guard_at = {}
    for (idx, ops) in chain_guard:
        guard_at.setdefault(idx - 1, []).extend(ops)
    for (idx, key) in pv_need:
        tile, r, kc = key
        guard_at.setdefault(idx - 2, []).extend(Pcvt[(tile, r, 2 * kc)] + Pcvt[(tile, r, 2 * kc + 1)])
    overflow = 0
    br_placed = False

    def place(o, g):
        o.gap = g
        gaps[g]["v"].append(o)
        queue.remove(o)

    def force(o, g):
        nonlocal overflow
        if o.gap is not None:
            return
        for (d, k) in o.deps:
            if d.gap is None:
                force(d, g)
        assert o.earliest <= g, (o, g)
        overflow += 1
        place(o, g)

    for g in range(0, NM):
        cap = 2
        if g in gap_ds:
            for o in gap_ds[g]:
                gaps[g]["v"].append(o)
            cap = 1 if len(gap_ds[g]) == 1 else 0
            mem = True
        elif g in gap_dma:
            gaps[g]["v"].append(gap_dma[g])
            cap = 0
            mem = True
        else:
            mem = False
        if not br_placed and ready(br, g):
            br.gap = g
            gaps[g]["s"].append(br)
            br_placed = True
        window = queue[:80]
        if not mem:
            st_ = next((o for o in window if o.kind == "vstore" and all(d.gap is not None and d.gap < g for d, k in o.deps)), None)
            ex = next((o for o in window if o.kind == "trans" and ready(o, g)), None)
            if st_ is not None:
                place(st_, g)
                cap = 0
            elif ex is not None:
                place(ex, g)
                cap = 0
        while cap > 0:
            o = next((o for o in queue[:80] if o.kind == "valu" and ready(o, g)), None)
            if o is None:
                break
            place(o, g)
            cap -= 1
        for o in guard_at.get(g, []):
            force(o, g)
        if g in fixed and cfg.preflush:
            for o in list(queue):
                if o.meta.get("pre") is not None and o.meta["pre"] <= g:
                    place(o, g)
    tail = []
    if not br_placed:
        raise SystemExit("branch not placed")
    rest = list(queue)
    for o in rest:
        o.gap = NM
        tail.append(o)

    prog = list(pro)
    for o in fixed[-1]:
        o.gap = -1
    prog += fixed[-1]
    for g in range(NM):
        M[g].gap = g
        prog.append(M[g])
        prog += gaps[g]["s"]
        prog += gaps[g]["v"]
        if g in fixed:
            for o in fixed[g]:
                o.gap = g
            prog += fixed[g]
        if cfg.stamps and g + 1 in start_int.values():
            n = [k for k, v in start_int.items() if v == g + 1][0]
            prog += stamp(4 + n)
    if cfg.stamps:
        prog += stamp(20)
    prog += tail
    if cfg.stamps:
        prog += stamp(21)
        prog.append(Op("s_waitcnt vmcnt(0)", "wait", meta={"fixed": True}))
        prog += stamp(22)
        prog.append(Op("s_lshl_b32 s44, s2, 8", "raw"))
        prog.append(Op("v_add_u32 v126, s44, v0", "raw"))
        prog.append(Op("v_lshlrev_b32 v126, 2, v126", "raw"))
        prog.append(Op("buffer_store_dword v127, v126, s[40:43], 0 offen", "raw"))

    for o in prog:
        if o.kind == "mfma":
            older = [x for x in reads if x.gap <= o.gap - 1 - cfg.age and x.gap > o.gap - 40]
            o.meta["cover"] = older
    prog = insert_waits_cover(prog)
    prog, pads = fix_hazards(prog, verbose=cfg.verbose)
    verify_lds(prog, units)
    est = estimate_cycles([o for o in prog if o.gap is not None and o.gap >= 0 or o.kind in ("wait", "salu")])
    info = dict(NM=NM, late=late, overflow=overflow, pads=pads, est=est, n=len(prog), tail=len(tail),
                waits=sum(1 for o in prog if o.kind == "wait"))
    return prog, info


def insert_waits_cover(prog):
    pend = set()
    for o in prog:
        if o.kind == "ds":
            pend |= set(o.writes)
        if o.kind == "mfma" and (o.reads & pend):
            cov = o.meta.get("cover", [])
            o.meta["need_lgkm"] = cov
            for x in cov:
                pend -= set(x.writes)
            pend -= set(o.reads)
    return insert_waits(prog)


def verify_lds(prog, units):
    pos = {id(o): i for i, o in enumerate(prog)}
    bars = [o for o in prog if o.kind == "barrier"]
    occ = {}
    for u in units.values():
        occ.setdefault(u.slot, []).append(u)
        for rd in u.reads:
            b = rd.meta["bar"]
            assert pos[id(b)] < pos[id(rd)], ("read before barrier", u.kind, u.n)
            for d in u.dmas:
                assert d.meta["vm_idx"] < b.meta["vm_done_at"], ("dma not waited", u.kind, u.n)
    for s, us in occ.items():
        us.sort(key=lambda u: pos[id(u.dmas[0])])
        for a, b in zip(us, us[1:]):
            first = min(pos[id(d)] for d in b.dmas)
            ok = False
            for br in bars:
                if pos[id(br)] < first and all(rd.meta["lg_idx"] < br.meta["lg_done_at"] for rd in a.reads):
                    ok = True
            assert ok, ("slot WAR", s, a.kind, a.n, b.kind, b.n)


def fallback(cfg):
    L = []
    A = L.append
    t = vT
    A("L_fallback:")
    A("s_waitcnt vmcnt(0) lgkmcnt(0)")
    A("s_barrier")
    A(f"s_mul_i32 s{sT3}, s{sW}, 40960")
    A(f"v_and_b32 {t[0]}, 63, v0")
    A(f"v_bfe_u32 {t[2]}, {t[0]}, 2, 2")
    A(f"v_lshlrev_b32 {t[2]}, 9, {t[2]}")
    A(f"v_lshrrev_b32 {t[5]}, 4, {t[0]}")
    A(f"v_lshl_add_u32 {t[2]}, {t[5]}, 6, {t[2]}")
    A(f"v_and_b32 {t[3]}, 3, {t[0]}")
    fk = [Reg("v", 96 + i, 1) for i in range(4)]
    fv = [Reg("v", 100 + i, 1) for i in range(4)]
    fr = (0, 2, 3, 1)
    for rg in range(4):
        A(f"v_xor_b32 {t[4]}, {fr[rg]}, {t[3]}")
        A(f"v_lshl_add_u32 {fk[rg]}, {t[4]}, 4, {t[2]}")
        A(f"v_add_u32 {fk[rg]}, {rg * 2048}, {fk[rg]}")
        A(f"v_xor_b32 {t[4]}, {2 * (rg & 1)}, {t[3]}")
        A(f"v_lshl_add_u32 {fv[rg]}, {t[4]}, 4, {t[2]}")
        A(f"v_add_u32 {fv[rg]}, {rg * 2048}, {fv[rg]}")
    rk, rv0, rv1 = Reg("v", 104, 1), Reg("v", 105, 1), Reg("v", 106, 1)
    A(f"v_add_u32 {rk}, s{sT3}, {vKR[0]}")
    A(f"v_add_u32 {rv0}, s{sT3}, {vVR[0][0]}")
    A(f"v_add_u32 {rv1}, s{sT3}, {vVR[1][0]}")
    Pf = [vP[0][r][0] for r in range(3)]

    def load_k():
        for a in range(2):
            A(f"s_add_u32 s{sT1}, s{sT0}, {a * 8192}")
            for half in range(2):
                for rg in range(4):
                    A(f"s_add_u32 m0, s{sT3}, {a * 8192 + half * 4096 + rg * 1024 - half * 256 + 256}")
                    A(f"s_sub_u32 m0, m0, 256")
                    A("s_nop 0")
                    A(f"buffer_load_dwordx4 {fk[rg]}, s[{sK}:{sK + 3}], s{sT1} offen offset:{half * 256} lds")

    def load_v():
        for dh in range(2):
            for a in range(2):
                A(f"s_add_u32 s{sT1}, s{sT0}, {a * 8192 + dh * 256}")
                for rg in range(4):
                    A(f"s_add_u32 m0, s{sT3}, {16384 + dh * 8192 + a * 4096 + rg * 1024}")
                    A("s_nop 0")
                    A(f"buffer_load_dwordx4 {fv[rg]}, s[{sV}:{sV + 3}], s{sT1} offen lds")

    def qk(a):
        for c in range(8):
            A(f"ds_read_b128 {KF[c]}, {rk} offset:{a * 8192 + (c >> 2) * 4096 + (c & 3) * 256}")
        A("s_waitcnt lgkmcnt(0)")
        for r in range(3):
            for c in range(8):
                A(f"v_mfma_f32_16x16x32_bf16 {vS[r]}, {KF[c]}, {Q[r][c]}, {vS[r] if c else 0}")
        A("s_nop 15")

    def xl(op, x, tmp):
        for o in xlane(op, x, tmp):
            A("s_nop 1")
            A(o.text)

    for r in range(3):
        A(f"v_mov_b32 {vNM[r]}, 0xff800000")
    A(f"s_mov_b32 s{sT0}, 0")
    A("L_fb1:")
    load_k()
    A("s_waitcnt vmcnt(0)")
    for a in range(2):
        qk(a)
        for r in range(3):
            A(f"v_max3_f32 {vNM[r]}, {vNM[r]}, {vS[r][0]}, {vS[r][1]}")
            A(f"v_max3_f32 {vNM[r]}, {vNM[r]}, {vS[r][2]}, {vS[r][3]}")
    A(f"s_add_u32 s{sT0}, s{sT0}, 16384")
    A(f"s_cmp_lt_u32 s{sT0}, 262144")
    A("s_cbranch_scc1 L_fb1")
    for r in range(3):
        xl("v_max_f32", vNM[r], t[4])
        A(f"v_mul_f32 {vNM[r]}, {f2u(-C_SCALE):#x}, {vNM[r]}")
        A(f"v_mov_b32 {vL[r]}, 0")
    for r in range(3):
        for tt in range(16):
            for i in range(4):
                x = O[r][tt][i]
                A(f"v_mov_b32 {x}, 0" if x.f == "v" else f"v_accvgpr_write_b32 {x}, 0")
    A(f"s_mov_b32 s{sT0}, 0")
    A("L_fb2:")
    load_k()
    load_v()
    A("s_waitcnt vmcnt(0)")
    for a in range(2):
        qk(a)
        for r in range(3):
            S = vS[r]
            for i in range(4):
                A(f"v_fma_f32 {S[i]}, {S[i]}, s{sC}, {vNM[r]}")
            for i in range(4):
                A(f"v_exp_f32 {S[i]}, {S[i]}")
            A("s_nop 1")
            for i in range(4):
                A(f"v_add_f32 {vL[r]}, {vL[r]}, {S[i]}")
            for k in range(2):
                A(f"v_cvt_pk_bf16_f32 {Pf[r][2 * a + k]}, {S[2 * k]}, {S[2 * k + 1]}")
    A("s_nop 3")
    for tt in range(16):
        for s in range(2):
            base = rv0 if (tt & 1) == 0 else rv1
            off = 16384 + (tt >> 3) * 8192 + s * 4096 + ((tt & 7) >> 1) * 256
            A(f"ds_read_b64_tr_b16 {VF[tt & 1][0][2 * s:2 * s + 2]}, {base} offset:{off}")
        A("s_waitcnt lgkmcnt(0)")
        for r in range(3):
            A(f"v_mfma_f32_16x16x32_bf16 {O[r][tt]}, {VF[tt & 1][0]}, {Pf[r]}, {O[r][tt]}")
    A("s_nop 15")
    A(f"s_add_u32 s{sT0}, s{sT0}, 16384")
    A(f"s_cmp_lt_u32 s{sT0}, 262144")
    A("s_cbranch_scc1 L_fb2")
    for r in range(3):
        xl("v_add_f32", vL[r], t[4])
        A(f"v_rcp_f32 {vRL[r]}, {vL[r]}")
    A("s_nop 3")
    for T in range(8):
        for r in range(3):
            X, Y = O[r][2 * T], O[r][2 * T + 1]
            src = [X[i] for i in range(4)] + [Y[i] for i in range(4)]
            if X.f == "a":
                for i in range(8):
                    A(f"v_accvgpr_read_b32 {vX[i]}, {src[i]}")
                src = [vX[i] for i in range(8)]
            for i in range(8):
                A(f"v_mul_f32 {src[i]}, {src[i]}, {vRL[r]}")
            D = vS[(3 * T + r) % 8]
            for k in range(4):
                A(f"v_cvt_pk_bf16_f32 {D[k]}, {src[2 * k]}, {src[2 * k + 1]}")
            A("s_nop 1")
            A(f"v_permlane16_swap_b32 {D[0]}, {D[2]}")
            A(f"v_permlane16_swap_b32 {D[1]}, {D[3]}")
            A(f"buffer_store_dwordx4 {D}, {vST[r]}, s[{sO}:{sO + 3}], 0 offen offset:{64 * T}")
    A("s_waitcnt vmcnt(0)")
    return L


HEADER = """; GQA attention forward, B=8 Hq=16 Hkv=8 Sq=368 Sk=512 D=256, bf16 (generated by my gen/gen.py)
; whose sum exceeds 2^64 recomputes its rows with the true row maximum (L_fallback).
; @launch grid=(256,1,1) block=(256,1,1) lds=163840
.amdgcn_target "amdgcn-amd-amdhsa--gfx950"
.text
.globl {k}
.p2align 8
.type {k},@function
{k}:
"""

FOOTER = """L_end:
    s_endpgm
.section .rodata,"a"
.p2align 6
.amdhsa_kernel {k}
  .amdhsa_next_free_vgpr 512
  .amdhsa_next_free_sgpr 64
  .amdhsa_accum_offset 256
  .amdhsa_group_segment_fixed_size 0
  .amdhsa_kernarg_size 48
  .amdhsa_user_sgpr_count 2
  .amdhsa_user_sgpr_kernarg_segment_ptr 1
  .amdhsa_system_sgpr_workgroup_id_x 1
.end_amdhsa_kernel
"""


def emit(cfg):
    prog, info = build(cfg)
    s = HEADER.format(k=KNAME)
    for o in prog:
        s += (o.text if o.kind == "label" else "    " + o.text) + "\n"
    s += "    s_endpgm\nL_mainend:\n"
    for l in fallback(cfg):
        s += (l if l.endswith(":") else "    " + l) + "\n"
    s += FOOTER.format(k=KNAME)
    return s, info


if __name__ == "__main__":
    ap = argparse.ArgumentParser()
    ap.add_argument("-o", default="standalone__gqa_softmax__near_ridge.s")
    ap.add_argument("-v", action="store_true")
    ap.add_argument("opts", nargs="*")
    a = ap.parse_args()
    cfg = Cfg()
    cfg.verbose = a.v
    for kv in a.opts:
        k, v = kv.split("=", 1)
        old = getattr(cfg, k)
        if isinstance(old, bool):
            v = v in ("1", "true", "True")
        elif isinstance(old, int):
            v = int(v)
        elif isinstance(old, float):
            v = float(v)
        setattr(cfg, k, v.replace("+", " ") if isinstance(v, str) else v)
    s, info = emit(cfg)
    open(a.o, "w").write(s)
    print(info, len(s))
```

```python
import sys, math, argparse
sys.path.insert(0, __file__.rsplit("/", 1)[0])
from ir import *

KNAME = "standalone__gqa_softmax__near_ridge_kernel"
C_SCALE = math.log2(math.e) / 16.0


def f2u(x):
    import struct
    return struct.unpack("<I", struct.pack("<f", x))[0]


class Cfg:
    ldq = "nt"
    ldkv = "nt"
    st = "sc1"
    lat = 6
    age = 5
    sready = 4
    stamps = False
    dbg = False
    codepf = True
    force_fallback = False
    dma_phase = 0.0
    preflush = True


sQ, sK, sV, sO = 12, 16, 20, 24
sW1K = 28
sC = 29
sKoff = 30
sVoff = 31
sT0, sT1, sT2, sT3 = 32, 33, 34, 35
sW = 36
sThr = 37
sW8K = 38
sDBG = 40
vKR = [Reg("v", 1, 1), Reg("v", 2, 1), Reg("v", 3, 1)]
vVR = [[Reg("v", 4 + 3 * h + w, 1) for w in range(3)] for h in range(2)]
vDK = [Reg("v", 10, 1), Reg("v", 11, 1)]
vDV = [Reg("v", 12 + a, 1) for a in range(4)]
vST = [Reg("v", 16 + r, 1) for r in range(3)]
vNM = [Reg("v", 19 + r, 1) for r in range(3)]
vL = [Reg("v", 22 + r, 1) for r in range(3)]
vRL = [Reg("v", 25 + r, 1) for r in range(3)]
vT = Reg("v", 28, 12)
vS = [Reg("v", 40 + 4 * i, 4) for i in range(8)]
vP = [[[Reg("v", 72 + 24 * b + 8 * r + 4 * kc, 4) for kc in range(2)] for r in range(3)] for b in range(2)]
vX = Reg("v", 120, 8)
O = [[Reg("v", 128 + 4 * t, 4) for t in range(16)],
     [Reg("v", 192 + 4 * t, 4) for t in range(16)],
     [Reg("a", 4 * t, 4) for t in range(16)]]
preK = [[Reg("v", 128 + 32 * a + 4 * c, 4) for c in range(8)] for a in range(4)]
Q = [[Reg("a", 64 + 32 * r + 4 * c, 4) for c in range(8)] for r in range(3)]
KF = [Reg("a", 160 + 4 * c, 4) for c in range(8)]
NVB = 4
VF = [[Reg("a", 192 + 8 * b + 4 * kc, 4) for kc in range(2)] for b in range(NVB)]

SLOT = 16384
LDS_BYTES = 163840


def sn(i, n=1):
    return R("s", i, n)


def valu(text, reads=(), writes=(), tag=""):
    return Op(text, "valu", reads, writes, tag)


def salu(text, reads=(), writes=()):
    return Op(text, "salu", reads, writes)


def names(*regs):
    out = []
    for r in regs:
        out += r.names if isinstance(r, Reg) else [r]
    return out


def mfma(D, A, B, C=None):
    c = str(C) if C is not None else "0"
    op = Op(f"v_mfma_f32_16x16x32_bf16 {D}, {A}, {B}, {c}", "mfma",
            names(A, B) + (C.names if C is not None else []), D.names)
    op.meta["srcab"] = frozenset(names(A, B))
    op.meta["srcc"] = frozenset(C.names) if C is not None else frozenset()
    return op


def ds_k(dst, addr):
    w, off = divmod(addr, 65536)
    return Op(f"ds_read_b128 {dst}, {vKR[w]} offset:{off}", "ds", vKR[w].names, dst.names)


def ds_v(dst, h, addr):
    w, off = divmod(addr, 65536)
    return Op(f"ds_read_b64_tr_b16 {dst}, {vVR[h][w]} offset:{off}", "ds", vVR[h][w].names, dst.names)


def dma(vaddr, srd, soff, imm, pol):
    so = f"s{soff}" if soff is not None else "0"
    t = f"buffer_load_dwordx4 {vaddr}, s[{srd}:{srd + 3}], {so} offen"
    if imm:
        t += f" offset:{imm}"
    if pol:
        t += " " + pol
    t += " lds"
    return Op(t, "dma", vaddr.names + sn(srd, 4) + (sn(soff) if soff is not None else []) + ["m0"], [])


def set_m0(const):
    return salu(f"s_add_u32 m0, s{sW1K}, {const}", sn(sW1K), ["m0", "scc"])


class Unit:
    def __init__(self, kind, n):
        self.kind, self.n = kind, n
        self.slot = None
        self.dmas = []
        self.reads = []

    def make_dmas(self, cfg):
        ops = []
        base = self.slot * SLOT
        if self.kind == "K":
            so = salu(f"s_mov_b32 s{sKoff}, {self.n * 16384}", [], sn(sKoff))
            for a in range(2):
                for half in range(2):
                    d = dma(vDK[a], sK, sKoff, half * 256, cfg.ldkv)
                    d.pre = [set_m0(base + a * 8192 + half * 4096 - half * 256)]
                    ops.append(d)
        else:
            j, h = divmod(self.n, 2)
            so = salu(f"s_mov_b32 s{sVoff}, {j * 32768 + h * 256}", [], sn(sVoff))
            for a in range(4):
                d = dma(vDV[a], sV, sVoff, 0, cfg.ldkv)
                d.pre = [set_m0(base + a * 4096)]
                ops.append(d)
        ops[0].pre.insert(0, so)
        for d in ops:
            d.meta["unit"] = self
        self.dmas = ops
        return ops


def flat_dmas(ops):
    out = []
    for d in ops:
        out += d.pre
        out.append(salu("s_nop 0"))
        out.append(d)
        d.pre = []
    return out


def xlane(op, x, tmp):
    o = []
    o.append(valu(f"v_mov_b32 {tmp}, {x}", x.names, tmp.names))
    o.append(valu(f"v_permlane32_swap_b32 {x}, {tmp}", names(x, tmp), names(x, tmp)))
    o.append(valu(f"{op} {x}, {x}, {tmp}", names(x, tmp), x.names))
    o.append(valu(f"v_mov_b32 {tmp}, {x}", x.names, tmp.names))
    o.append(valu(f"v_permlane16_swap_b32 {x}, {tmp}", names(x, tmp), names(x, tmp)))
    o.append(valu(f"{op} {x}, {x}, {tmp}", names(x, tmp), x.names))
    return o


DBGMAP = {1: (2, 12), 2: (3, None), 3: (4, None), 4: (5, None), 8: (6, None), 12: (7, None), 16: (8, None),
          20: (9, 13), 21: (10, None), 22: (11, 14)}
DBG = [False]


def stamp(idx):
    if DBG[0]:
        if idx not in DBGMAP:
            return []
        a, b = DBGMAP[idx]
        o = [Op("s_memrealtime s[44:45]", "raw")]
        if idx in (4, 20):
            o.append(Op(f"s_memtime s[{48 if idx == 4 else 50}:{49 if idx == 4 else 51}]", "raw"))
        o += [Op("s_waitcnt lgkmcnt(0)", "wait", meta={"lg_all": True, "fixed": True}),
              Op(f"v_writelane_b32 v127, s44, {a}", "raw")]
        if b is not None:
            o += [Op("s_not_b32 s44, s44", "raw"), Op(f"v_writelane_b32 v127, s44, {b}", "raw")]
        if idx == 20:
            o += [Op("s_sub_u32 s44, s50, s48", "raw"), Op(f"v_writelane_b32 v127, s44, 15", "raw")]
        return o
    return [Op("s_memrealtime s[44:45]", "raw"), Op("s_waitcnt lgkmcnt(0)", "wait", meta={"lg_all": True, "fixed": True}),
            Op(f"v_writelane_b32 v127, s44, {idx}", "raw")]


def prologue(cfg, units):
    P = []
    A = P.append
    raw = lambda t: A(Op(t, "raw"))
    raw("s_cmp_ge_u32 s2, 256")
    raw("s_cbranch_scc1 L_end")
    raw("s_load_dwordx4 s[4:7], s[0:1], 0")
    raw("s_load_dwordx4 s[8:11], s[0:1], 16")
    if cfg.stamps:
        raw(f"s_load_dwordx2 s[40:41], s[0:1], {32 if cfg.dbg else 40}")
        raw("s_memrealtime s[46:47]")
    t = vT
    lane, wv, common, cpos, f_w = t[0], t[1], t[2], t[3], t[4]
    A(valu(f"v_lshrrev_b32 {wv}, 6, v0", ["v0"], wv.names))
    A(valu(f"v_and_b32 {lane}, 63, v0", ["v0"], lane.names))
    A(valu(f"v_readfirstlane_b32 s{sW}, {wv}", wv.names, sn(sW)))
    A(salu(f"s_and_b32 s{sT0}, s2, 7", [], sn(sT0)))
    A(salu(f"s_lshr_b32 s{sT1}, s2, 5", [], sn(sT1)))
    A(salu(f"s_lshl_b32 s{sT1}, s{sT1}, 3", [], sn(sT1)))
    A(salu(f"s_add_u32 s{sT0}, s{sT0}, s{sT1}", [], sn(sT0)))
    A(salu(f"s_bfe_u32 s{sT1}, s2, 0x20003", [], sn(sT1)))
    A(salu(f"s_mul_i32 s{sT2}, s{sT0}, {736 * 512}", [], sn(sT2)))
    A(salu(f"s_mul_i32 s{sT1}, s{sT1}, {184 * 512}", [], sn(sT1)))
    A(salu(f"s_add_u32 s{sT2}, s{sT2}, s{sT1}", [], sn(sT2)))
    A(salu(f"s_lshl_b32 s{sT0}, s{sT0}, 18", [], sn(sT0)))
    A(valu(f"v_bfe_u32 {common}, {lane}, 2, 2", lane.names, common.names))
    A(valu(f"v_lshlrev_b32 {common}, 9, {common}", common.names, common.names))
    A(valu(f"v_lshrrev_b32 {t[5]}, 4, {lane}", lane.names, t[5].names))
    A(valu(f"v_lshl_add_u32 {common}, {t[5]}, 6, {common}", names(t[5], common), common.names))
    A(valu(f"v_and_b32 {cpos}, 3, {lane}", lane.names, cpos.names))
    A(valu(f"v_lshlrev_b32 {t[6]}, 1, {wv}", wv.names, t[6].names))
    A(valu(f"v_mov_b32 {t[7]}, 0x78", [], t[7].names))
    A(valu(f"v_bfe_u32 {f_w}, {t[7]}, {t[6]}, 2", names(t[7], t[6]), f_w.names))
    A(valu(f"v_xor_b32 {f_w}, {f_w}, {cpos}", names(f_w, cpos), f_w.names))
    A(valu(f"v_lshl_add_u32 {t[8]}, {wv}, 11, {common}", names(wv, common), t[8].names))
    A(valu(f"v_lshl_add_u32 {vDK[0]}, {f_w}, 4, {t[8]}", names(f_w, t[8]), vDK[0].names))
    A(valu(f"v_add_u32 {vDK[1]}, 8192, {vDK[0]}", vDK[0].names, vDK[1].names))
    A(salu(f"s_lshl_b32 s{sW1K}, s{sW}, 10", sn(sW), sn(sW1K)))
    A(salu(f"s_lshl_b32 s{sW8K}, s{sW}, 13", sn(sW), sn(sW8K)))
    A(Op("s_waitcnt lgkmcnt(0)", "wait", meta={"fixed": True}))
    for (srd, p, off, nrec) in ((sK, 6, sT0, 262144), (sQ, 4, sT2, 184 * 512), (sV, 8, sT0, 262144), (sO, 10, sT2, 184 * 512)):
        A(salu(f"s_add_u32 s{srd}, s{p}, s{off}", [], sn(srd)))
        A(salu(f"s_addc_u32 s{srd + 1}, s{p + 1}, 0", [], sn(srd + 1)))
        A(salu(f"s_mov_b32 s{srd + 2}, {nrec}", [], sn(srd + 2)))
        A(salu(f"s_mov_b32 s{srd + 3}, 0x00020000", [], sn(srd + 3)))
        if srd == sK:
            P += flat_dmas(units["K0"].make_dmas(cfg))
    if cfg.stamps:
        raw(f"s_mov_b32 s42, {64 if cfg.dbg else 0x1000000}")
        raw("s_mov_b32 s43, 0x00020000")
        raw("v_mov_b32 v127, 0")
        if cfg.dbg:
            raw("v_writelane_b32 v127, s46, 1")
            raw("s_not_b32 s46, s46")
        raw("v_writelane_b32 v127, s46, 0")
    vq = [[Reg("v", 72 + 4 * r + rg, 1) for rg in range(4)] for r in range(3)]
    A(valu(f"v_mul_u32_u24 {t[9]}, {48 * 512}, {wv}", wv.names, t[9].names))
    A(valu(f"v_add_u32 {t[9]}, {t[9]}, {common}", names(t[9], common), t[9].names))
    fr = (0, 2, 3, 1)
    qd = [[], [], []]

    def q_dmas(r):
        for rg in range(4):
            if r == 0:
                A(valu(f"v_xor_b32 {t[10]}, {fr[rg]}, {cpos}", cpos.names, t[10].names))
                A(valu(f"v_lshl_add_u32 {vq[0][rg]}, {t[10]}, 4, {t[9]}", names(t[10], t[9]), vq[0][rg].names))
                if rg:
                    A(valu(f"v_add_u32 {vq[0][rg]}, {rg * 2048}, {vq[0][rg]}", vq[0][rg].names, vq[0][rg].names))
            else:
                A(valu(f"v_add_u32 {vq[r][rg]}, {r * 8192}, {vq[0][rg]}", vq[0][rg].names, vq[r][rg].names))
        for half in range(2):
            for rg in range(4):
                d = dma(vq[r][rg], sQ, None, half * 256, cfg.ldq)
                A(salu(f"s_add_u32 m0, s{sW8K}, {65536 + r * 32768 + half * 4096 + rg * 1024 - half * 256}", sn(sW8K), ["m0", "scc"]))
                A(salu("s_nop 0"))
                A(d)
                qd[r].append(d)

    q_dmas(0)
    P += flat_dmas(units["K1"].make_dmas(cfg))
    if cfg.codepf:
        raw("s_getpc_b64 s[44:45]")
        A(valu(f"v_lshlrev_b32 {t[10]}, 7, v0", ["v0"], t[10].names))
        A(Op(f"global_load_dword {vX[0]}, {t[10]}, s[44:45]", "vload", t[10].names, vX[0].names))
        A(valu(f"v_add_u32 {t[10]}, 32768, {t[10]}", t[10].names, t[10].names))
        A(valu(f"v_min_u32 {t[10]}, L_mainend - L_pfbase, {t[10]}", t[10].names, t[10].names))
        A(Op(f"global_load_dword {vX[1]}, {t[10]}, s[44:45]", "vload", t[10].names, vX[1].names))
        P.insert(P.index(next(o for o in P if o.text.startswith("s_getpc"))) + 1, Op("L_pfbase:", "label"))
    q_dmas(1)
    q_dmas(2)
    P += flat_dmas(units["K2"].make_dmas(cfg))
    A(valu(f"v_and_b32 {t[10]}, 1, {wv}", wv.names, t[10].names))
    A(valu(f"v_lshlrev_b32 {t[10]}, 1, {t[10]}", t[10].names, t[10].names))
    A(valu(f"v_xor_b32 {t[10]}, {t[10]}, {cpos}", names(t[10], cpos), t[10].names))
    A(valu(f"v_lshl_add_u32 {vDV[0]}, {t[10]}, 4, {t[8]}", names(t[10], t[8]), vDV[0].names))
    for a in range(1, 4):
        A(valu(f"v_add_u32 {vDV[a]}, {8192 * a}, {vDV[0]}", vDV[0].names, vDV[a].names))
    P += flat_dmas(units["V0"].make_dmas(cfg))
    g = t[5]
    A(valu(f"v_bfe_u32 {t[6]}, {lane}, 2, 2", lane.names, t[6].names))
    A(valu(f"v_lshlrev_b32 {t[10]}, 1, {t[6]}", t[6].names, t[10].names))
    A(valu(f"v_bfe_u32 {t[10]}, {t[7]}, {t[10]}, 2", names(t[7], t[10]), t[10].names))
    A(valu(f"v_xor_b32 {t[10]}, {t[10]}, {g}", names(t[10], g), t[10].names))
    A(valu(f"v_lshlrev_b32 {t[10]}, 4, {t[10]}", t[10].names, t[10].names))
    A(valu(f"v_lshl_add_u32 {t[10]}, {t[6]}, 10, {t[10]}", names(t[6], t[10]), t[10].names))
    A(valu(f"v_lshl_add_u32 {vKR[0]}, {cpos}, 6, {t[10]}", names(cpos, t[10]), vKR[0].names))
    A(valu(f"v_add_u32 {vKR[1]}, 0x10000, {vKR[0]}", vKR[0].names, vKR[1].names))
    A(valu(f"v_add_u32 {vKR[2]}, 0x20000, {vKR[0]}", vKR[0].names, vKR[2].names))
    A(valu(f"v_lshlrev_b32 {t[10]}, 10, {g}", g.names, t[10].names))
    A(valu(f"v_lshl_add_u32 {t[10]}, {t[6]}, 6, {t[10]}", names(t[6], t[10]), t[10].names))
    A(valu(f"v_lshl_add_u32 {t[10]}, {cpos}, 3, {t[10]}", names(cpos, t[10]), t[10].names))
    A(valu(f"v_and_b32 {t[11]}, 1, {g}", g.names, t[11].names))
    A(valu(f"v_lshl_add_u32 {vVR[0][0]}, {t[11]}, 5, {t[10]}", names(t[11], t[10]), vVR[0][0].names))
    A(valu(f"v_xor_b32 {vVR[1][0]}, 32, {vVR[0][0]}", vVR[0][0].names, vVR[1][0].names))
    for h in range(2):
        for w in (1, 2):
            A(valu(f"v_add_u32 {vVR[h][w]}, {w * 65536}, {vVR[h][0]}", vVR[h][0].names, vVR[h][w].names))
    A(valu(f"v_and_b32 {t[10]}, 15, {lane}", lane.names, t[10].names))
    A(valu(f"v_mad_u32_u24 {t[10]}, {wv}, 48, {t[10]}", names(wv, t[10]), t[10].names))
    A(valu(f"v_lshlrev_b32 {t[10]}, 9, {t[10]}", t[10].names, t[10].names))
    A(valu(f"v_lshl_add_u32 {t[10]}, {t[11]}, 5, {t[10]}", names(t[11], t[10]), t[10].names))
    A(valu(f"v_lshrrev_b32 {t[11]}, 1, {g}", g.names, t[11].names))
    A(valu(f"v_lshl_add_u32 {vST[0]}, {t[11]}, 4, {t[10]}", names(t[11], t[10]), vST[0].names))
    A(valu(f"v_add_u32 {vST[1]}, 8192, {vST[0]}", vST[0].names, vST[1].names))
    A(valu(f"v_add_u32 {vST[2]}, 16384, {vST[0]}", vST[0].names, vST[2].names))
    A(valu(f"v_add_u32 {vX[2]}, s{sW8K}, {vKR[1]}", vKR[1].names + sn(sW8K), vX[2].names))
    A(valu(f"v_add_u32 {vX[3]}, s{sW8K}, {vKR[2]}", vKR[2].names + sn(sW8K), vX[3].names))
    A(salu(f"s_mov_b32 s{sC}, {f2u(C_SCALE):#x}", [], sn(sC)))
    A(salu(f"s_mov_b32 s{sThr}, {f2u(2.0 ** 64 if not cfg.force_fallback else 1.0):#x}", [], sn(sThr)))
    for r in range(3):
        A(valu(f"v_mov_b32 {vL[r]}, 0", [], vL[r].names))
    return P, qd


def q_reads(r, qd):
    ops = []
    for c in range(8):
        base = vX[2] if r < 2 else vX[3]
        off = (r if r < 2 else 0) * 32768 + (c >> 2) * 4096 + (c & 3) * 256
        o = Op(f"ds_read_b128 {Q[r][c]}, {base} offset:{off}", "ds", base.names, Q[r][c].names)
        o.meta["need_vm"] = qd[r][(c >> 2) * 4:(c >> 2) * 4 + 4]
        ops.append(o)
    return ops


def build(cfg):
    units = {}
    for n in range(16):
        units[f"K{n}"] = Unit("K", n)
        units[f"V{n}"] = Unit("V", n)
    units["K0"].slot, units["K1"].slot, units["K2"].slot, units["V0"].slot = 0, 1, 2, 3

    pro, qd = prologue(cfg, units)

    M = []
    fixed = {}
    dsq = []
    vq = []
    dmaq = []
    sbuf_last_reader = [None] * 8
    sbuf_ctr = [0]
    chain_guard = []
    pv_need = []
    Pcvt = {}
    negm_ready = {}

    def softmax_ops(tile, r, a, S, ready_gap):
        b = tile & 1
        dst = vP[b][r][a >> 1]
        fm, ex, ad, cv = [], [], [], []
        for i in range(4):
            o = valu(f"v_fma_f32 {S[i]}, {S[i]}, s{sC}, {vNM[r]}", names(S[i], vNM[r]) + sn(sC), S[i].names)
            o.earliest = ready_gap
            if r in negm_ready:
                o.deps.append((negm_ready[r], 0))
            fm.append(o)
        for i in range(4):
            o = Op(f"v_exp_f32 {S[i]}, {S[i]}", "trans", S[i].names, S[i].names)
            o.deps.append((fm[i], 0))
            ex.append(o)
        for i in range(4):
            o = valu(f"v_add_f32 {vL[r]}, {vL[r]}, {S[i]}", names(vL[r], S[i]), vL[r].names)
            o.deps.append((ex[i], 1))
            ad.append(o)
        for k in range(2):
            d = dst[2 * (a & 1) + k]
            o = valu(f"v_cvt_pk_bf16_f32 {d}, {S[2 * k]}, {S[2 * k + 1]}", names(S[2 * k], S[2 * k + 1]), d.names)
            o.deps += [(ex[2 * k], 1), (ex[2 * k + 1], 1)]
            o.earliest = pbuf_free.get(b, -1)
            cv.append(o)
        Pcvt[(tile, r, a)] = cv
        order = [fm[0], fm[1], ex[0], fm[2], ex[1], fm[3], ad[0], ex[2], ad[1], cv[0], ex[3], ad[2], ad[3], cv[1]]
        vq.extend(order)
        last_add[r] = ad[3]
        return ad + cv

    pbuf_free = {}
    last_add = {}

    def chain(tile, r, a, frags):
        si = sbuf_ctr[0] % 8
        sbuf_ctr[0] += 1
        S = vS[si]
        start = len(M)
        if sbuf_last_reader[si]:
            chain_guard.append((start, sbuf_last_reader[si]))
        for c in range(8):
            M.append(mfma(S, frags[c], Q[r][c], S if c else None))
        return si, S, len(M) - 1

    vbuf_ctr = [0]
    vbuf_free = [-1] * NVB

    def group(tile, t, first):
        b = tile & 1
        vb = vbuf_ctr[0] % NVB
        vbuf_ctr[0] += 1
        u = units[f"V{2 * tile + (t >> 3)}"]
        tt = t & 7
        start = len(M)
        for kc in range(2):
            for s in range(2):
                a = 2 * kc + s
                dst = VF[vb][kc][2 * s:2 * s + 2]
                rd = ("V", dst, tt & 1, u, a * 4096 + (tt >> 1) * 256, start + kc, vbuf_free[vb])
                dsq.append(rd)
        for r in range(3):
            for kc in range(2):
                C = O[r][t] if not (first and kc == 0) else None
                M.append(mfma(O[r][t], VF[vb][kc], vP[b][r][kc], C))
                pv_need.append((len(M) - 1, (tile, r, kc)))
        vbuf_free[vb] = len(M) - 1
        pbuf_free[b] = len(M) - 1
        return len(M) - 1

    bar = {}

    def barrier(name, need_units=(), need_lg=(), need_vm=()):
        o = Op("s_barrier", "barrier")
        o.meta["need_vm"] = [d for u in need_units for d in units[u].dmas] + list(need_vm)
        o.meta["need_lgkm"] = list(need_lg)
        o.meta["name"] = name
        o.meta["hoist_wait"] = False
        bar[name] = o
        return o

    blk = []
    blk.append(barrier("a", ["K0", "K1"], need_vm=qd[0]))
    bar["a"].gap = -1
    if cfg.stamps:
        blk += stamp(1)
    q0 = q_reads(0, qd)
    blk += q0
    prek = []
    for a in range(4):
        u = units[f"K{a >> 1}"]
        for c in range(8):
            o = ds_k(preK[a][c], u.slot * SLOT + (a & 1) * 8192 + (c >> 2) * 4096 + (c & 3) * 256)
            o.meta["unit"] = u
            o.meta["bar"] = bar["a"]
            u.reads.append(o)
            prek.append(o)
    blk += prek[:8]
    blk.append(barrier("b", need_lg=q0))
    units["K3"].slot, units["V1"].slot = 4, 5
    d3 = units["K3"].make_dmas(cfg) + units["V1"].make_dmas(cfg)
    for d in d3:
        d.meta["bar"] = bar["b"]
    blk += flat_dmas(d3)
    blk += prek[8:]
    fixed[-1] = blk

    for r in range(3):
        if r > 0:
            blk = []
            qr = q_reads(r, qd)
            blk += qr
            if r == 1:
                blk.append(barrier("c", need_lg=qr))
                units["K4"].slot, units["V2"].slot = 6, 7
                d4 = units["K4"].make_dmas(cfg) + units["V2"].make_dmas(cfg)
                for d in d4:
                    d.meta["bar"] = bar["c"]
                blk += flat_dmas(d4)
            else:
                blk.append(barrier(0, ["K2", "V0"], need_lg=qr + prek))
                bar[0].gap = len(M) - 1
            if cfg.stamps:
                blk += stamp(1 + r)
            fixed[len(M) - 1] = blk
        tiles = []
        for a in range(4):
            tiles.append(chain(0, r, a, preK[a]))
            if a == 1:
                S0, S1 = tiles[0][1], tiles[1][1]
                rdy = tiles[1][2] + cfg.sready
                m = vNM[r]
                tmp = vT[r]
                ops = [valu(f"v_max3_f32 {m}, {S0[0]}, {S0[1]}, {S0[2]}", names(S0[0], S0[1], S0[2]), m.names),
                       valu(f"v_max3_f32 {tmp}, {S0[3]}, {S1[0]}, {S1[1]}", names(S0[3], S1[0], S1[1]), tmp.names),
                       valu(f"v_max3_f32 {m}, {m}, {S1[2]}, {S1[3]}", names(m, S1[2], S1[3]), m.names),
                       valu(f"v_max_f32 {m}, {m}, {tmp}", names(m, tmp), m.names)]
                ops += xlane("v_max_f32", m, tmp)
                ops.append(valu(f"v_mul_f32 {m}, -{C_SCALE!r}, {m}".replace(f"-{C_SCALE!r}", f"{f2u(-C_SCALE):#x}"), m.names, m.names))
                prev = None
                for o in ops:
                    o.earliest = rdy
                    if prev is not None:
                        o.deps.append((prev, 1 if "permlane" in o.text else 0))
                    prev = o
                vq.extend(ops)
                negm_ready[r] = ops[-1]
                for k in range(2):
                    si, S, end = tiles[k]
                    sbuf_last_reader[si] = softmax_ops(0, r, k, S, end + cfg.sready)
            elif a > 1:
                si, S, end = tiles[a]
                sbuf_last_reader[si] = softmax_ops(0, r, a, S, end + cfg.sready)
        for o in vq:
            o.meta.setdefault("pre", len(M) - 1)
    negm_ready.clear()

    kf_free = [bar[0].gap] * 8
    start_int = {}
    ch2_first = {}
    grp_end = {}
    for j in range(8):
        for q in range(4):
            n = 2 * j + (q >> 1)
            if q % 2 == 0:
                start_int[n] = len(M)
            if j < 7:
                order = "cGcGcGG"
                if (j == 0 and q == 0) or (j == 6 and q == 3):
                    order = "cccGGGG"
                u = units[f"K{n + 2}"]
                r = 0
                gi = 0
                for ch in order:
                    if ch == "c":
                        st = len(M)
                        if r == 0:
                            for c in range(8):
                                dsq.append(("K", KF[c], None, u, (q & 1) * 8192 + (c >> 2) * 4096 + (c & 3) * 256, st + c, kf_free[c]))
                        si, S, end = chain(j + 1, r, q, KF)
                        if r == 2:
                            ch2_first[(j, q)] = st
                            for c in range(8):
                                kf_free[c] = st + c
                        sbuf_last_reader[si] = softmax_ops(j + 1, r, q, S, end + cfg.sready)
                        r += 1
                    else:
                        grp_end[(j, 4 * q + gi)] = group(j, 4 * q + gi, j == 0)
                        gi += 1
            else:
                for gi in range(4):
                    grp_end[(j, 4 * q + gi)] = group(j, 4 * q + gi, False)
    NM = len(M)

    for n in range(1, 15):
        j, q = divmod(2 * n - 1, 4)
        g = ch2_first[(j, q)] - 1
        if n == 14:
            g = start_int[14] - cfg.lat - 10
        o = Op("s_barrier", "barrier")
        o.gap = g
        o.meta["name"] = n
        bar[n] = o

    def vis_bar(u):
        if u.kind == "K":
            return bar[u.n - 2]
        return bar[min(u.n, 14)]

    free_at = {}
    free_at[8] = 0
    free_at[9] = 0
    free_at[0] = 0
    free_at[1] = 0
    release = {}
    for n in range(2, 16):
        release[f"K{n}"] = n - 1
    for n in range(16):
        release[f"V{n}"] = n + 2
    for name in ("K2", "V0", "K3", "V1", "K4", "V2"):
        free_at[units[name].slot] = release[name]
    pending = []
    for n in range(3, 16):
        if n + 2 < 16:
            pending.append(f"K{n + 2}")
        pending.append(f"V{n}")
    issue_win = {}
    win_load = {}
    for name in pending:
        u = units[name]
        slot = min(free_at, key=lambda s: (free_at[s], s))
        w = free_at[slot]
        prevw = max(issue_win.values()) if issue_win else 0
        w = max(w, prevw)
        cap = lambda x: 4 if x == 0 else 2
        while win_load.get(w, 0) >= cap(w):
            w += 1
        u.slot = slot
        issue_win[name] = w
        win_load[w] = win_load.get(w, 0) + 1
        free_at[slot] = release[name]
        assert w < vis_bar(u).meta["name"], (name, w)
        for d in u.make_dmas(cfg):
            d.meta["bar"] = bar[w]
            d.meta["win"] = w
            dmaq.append(d)
    for n in range(1, 15):
        need = [f"V{n}"] + ([f"K{n + 2}"] if n + 2 < 16 else []) + (["V15"] if n == 14 else [])
        bar[n].meta["need_vm"] = [d for x in need for d in units[x].dmas]
        bar[n].meta["hoist_wait"] = True

    reads = []
    for (kind, dst, h, u, off, cons, bfree) in dsq:
        addr = u.slot * SLOT + off
        o = ds_k(dst, addr) if kind == "K" else ds_v(dst, h, addr)
        vb = vis_bar(u)
        o.earliest = max(bfree, vb.gap + 1)
        o.deadline = cons - cfg.lat
        o.meta.update(unit=u, bar=vb, cons=cons)
        u.reads.append(o)
        reads.append(o)
    reads.sort(key=lambda o: o.meta["cons"])
    nxt = 1 << 30
    for o in reversed(reads):
        g = min(o.deadline, nxt - 2)
        if g < o.earliest:
            g = min(o.deadline, nxt - 1)
        if g < o.earliest:
            g = o.earliest
        o.gap = g
        nxt = g
    prev = -10
    late = 0
    for o in reads:
        g = max(o.gap, o.earliest, prev + 1)
        g = min(g, o.meta["cons"] - 2)
        assert g >= o.earliest and g >= prev, (o, g, o.earliest, prev)
        if g > o.deadline:
            late += 1
        o.gap = g
        prev = g
    gap_ds = {}
    for o in reads:
        gap_ds.setdefault(o.gap, []).append(o)

    fin = []
    chk_prev = None
    for r in range(3):
        ops = xlane("v_add_f32", vL[r], vT[r])
        prev = last_add[r]
        for o in ops:
            o.deps.append((prev, 1 if "permlane" in o.text else 0))
            prev = o
        rc = Op(f"v_rcp_f32 {vRL[r]}, {vL[r]}", "trans", vL[r].names, vRL[r].names)
        rc.deps.append((prev, 0))
        fin.append((ops, rc))
    for k in range(6):
        for r in range(3):
            vq.append(fin[r][0][k])
    mx = valu(f"v_max3_f32 {vT[3]}, {vL[0]}, {vL[1]}, {vL[2]}", names(*vL), vT[3].names)
    mx.deps += [(fin[r][0][-1], 0) for r in range(3)]
    cmp_ = valu(f"v_cmp_lt_f32 vcc, s{sThr}, {vT[3]}", vT[3].names + sn(sThr), ["svcc"])
    cmp_.deps.append((mx, 0))
    vq += [mx, cmp_] + [fin[r][1] for r in range(3)]
    br = Op("s_cbranch_vccnz L_fallback", "branch", ["svcc"], [])
    br.deps.append((cmp_, 2))
    tq = 0
    tmp8 = [Reg("v", 72, 8), Reg("v", 80, 8), Reg("v", 88, 8)]
    stores = []
    for T in range(8):
        rdy = grp_end[(7, 2 * T + 1)] + cfg.sready
        for r in range(3):
            X, Y = O[r][2 * T], O[r][2 * T + 1]
            src = [X[i] for i in range(4)] + [Y[i] for i in range(4)]
            ops = []
            if X.f == "a":
                tb = tmp8[T % 3]
                rd = []
                for i in range(8):
                    o = valu(f"v_accvgpr_read_b32 {tb[i]}, {src[i]}", src[i].names, tb[i].names)
                    o.earliest = max(rdy, pbuf_free[0])
                    if T >= 3:
                        o.deps += [(x, 0) for x in tmp8_users[T - 3]]
                    rd.append(o)
                ops += rd
                src = [tb[i] for i in range(8)]
            mu = []
            for i in range(8):
                o = valu(f"v_mul_f32 {src[i]}, {src[i]}, {vRL[r]}", names(src[i], vRL[r]), src[i].names)
                o.earliest = rdy
                o.deps.append((fin[r][1], 1))
                if X.f == "a":
                    o.deps.append((rd[i], 0))
                mu.append(o)
            D = vS[tq % 8]
            cv = []
            for k in range(4):
                o = valu(f"v_cvt_pk_bf16_f32 {D[k]}, {src[2 * k]}, {src[2 * k + 1]}", names(src[2 * k], src[2 * k + 1]), D[k].names)
                o.deps += [(mu[2 * k], 0), (mu[2 * k + 1], 0)]
                o.deps += [(x, 0) for x in sbuf_last_reader[tq % 8]]
                cv.append(o)
            if X.f == "a":
                if T == 0:
                    tmp8_users = {}
                tmp8_users[T] = cv
            sw = []
            for k in range(2):
                o = valu(f"v_permlane16_swap_b32 {D[k]}, {D[k + 2]}", names(D[k], D[k + 2]), names(D[k], D[k + 2]))
                o.deps += [(cv[k], 0), (cv[k + 2], 0), (cv[3], 0)]
                sw.append(o)
            stt = f"buffer_store_dwordx4 {D}, {vST[r]}, s[{sO}:{sO + 3}], 0 offen offset:{64 * T}"
            if cfg.st:
                stt += " " + cfg.st
            so = Op(stt, "vstore", D.names + vST[r].names + sn(sO, 4), [])
            so.meta["data"] = frozenset(D.names)
            so.deps += [(sw[0], 0), (sw[1], 0), (br, 0)]
            sbuf_last_reader[tq % 8] = [so]
            tq += 1
            ops += mu + cv + sw + [so]
            stores.append(so)
            vq += ops

    gap_dma = {}
    bywin = {}
    for d in dmaq:
        bywin.setdefault(d.meta["win"], []).append(d)
    for w, ds_ in bywin.items():
        g0 = bar[w].gap + 3
        g1 = bar[w + 1].gap - 2
        cand = [g for g in range(g0, g1) if g not in gap_ds]
        step = len(cand) / len(ds_)
        last = -10
        for i, d in enumerate(ds_):
            k = int(i * step + (cfg.dma_phase * step))
            g = cand[min(k, len(cand) - 1)]
            while g <= last + 2 or g in gap_ds:
                g += 1
            gap_dma[g] = d
            d.gap = g
            last = g

    placed = set()
    gaps = {g: {"s": [], "v": []} for g in range(-1, NM)}
    for n in range(1, 15):
        gaps[bar[n].gap]["s"].append(bar[n])
    for g, d in gap_dma.items():
        pre = d.pre
        d.pre = []
        gaps[g - 1]["s"].append(pre[-1])
        if len(pre) > 1:
            gaps[g - 2]["s"].append(pre[0])

    def ready(o, g):
        if o.earliest > g:
            return False
        for (d, k) in o.deps:
            if d.gap is None or d.gap + k > g:
                return False
        return True

    queue = list(vq)
    guard_at = {}
    for (idx, ops) in chain_guard:
        guard_at.setdefault(idx - 1, []).extend(ops)
    for (idx, key) in pv_need:
        tile, r, kc = key
        guard_at.setdefault(idx - 2, []).extend(Pcvt[(tile, r, 2 * kc)] + Pcvt[(tile, r, 2 * kc + 1)])
    overflow = 0
    br_placed = False

    def place(o, g):
        o.gap = g
        gaps[g]["v"].append(o)
        queue.remove(o)

    def force(o, g):
        nonlocal overflow
        if o.gap is not None:
            return
        for (d, k) in o.deps:
            if d.gap is None:
                force(d, g)
        assert o.earliest <= g, (o, g)
        overflow += 1
        place(o, g)

    for g in range(0, NM):
        cap = 2
        if g in gap_ds:
            for o in gap_ds[g]:
                gaps[g]["v"].append(o)
            cap = 1 if len(gap_ds[g]) == 1 else 0
            mem = True
        elif g in gap_dma:
            gaps[g]["v"].append(gap_dma[g])
            cap = 0
            mem = True
        else:
            mem = False
        if not br_placed and ready(br, g):
            br.gap = g
            gaps[g]["s"].append(br)
            br_placed = True
        window = queue[:80]
        if not mem:
            st_ = next((o for o in window if o.kind == "vstore" and all(d.gap is not None and d.gap < g for d, k in o.deps)), None)
            ex = next((o for o in window if o.kind == "trans" and ready(o, g)), None)
            if st_ is not None:
                place(st_, g)
                cap = 0
            elif ex is not None:
                place(ex, g)
                cap = 0
        while cap > 0:
            o = next((o for o in queue[:80] if o.kind == "valu" and ready(o, g)), None)
            if o is None:
                break
            place(o, g)
            cap -= 1
        for o in guard_at.get(g, []):
            force(o, g)
        if g in fixed and cfg.preflush:
            for o in list(queue):
                if o.meta.get("pre") is not None and o.meta["pre"] <= g:
                    place(o, g)
    tail = []
    if not br_placed:
        raise SystemExit("branch not placed")
    rest = list(queue)
    for o in rest:
        o.gap = NM
        tail.append(o)

    prog = list(pro)
    for o in fixed[-1]:
        o.gap = -1
    prog += fixed[-1]
    for g in range(NM):
        M[g].gap = g
        prog.append(M[g])
        prog += gaps[g]["s"]
        prog += gaps[g]["v"]
        if g in fixed:
            for o in fixed[g]:
                o.gap = g
            prog += fixed[g]
        if cfg.stamps and g + 1 in start_int.values():
            n = [k for k, v in start_int.items() if v == g + 1][0]
            prog += stamp(4 + n)
    if cfg.stamps:
        prog += stamp(20)
    prog += tail
    if cfg.stamps:
        prog += stamp(21)
        prog.append(Op("s_waitcnt vmcnt(0)", "wait", meta={"fixed": True}))
        prog += stamp(22)
        prog.append(Op("s_lshl_b32 s44, s2, 8", "raw"))
        prog.append(Op("v_add_u32 v126, s44, v0", "raw"))
        prog.append(Op("v_lshlrev_b32 v126, 2, v126", "raw"))
        if cfg.dbg:
            prog.append(Op("v_lshlrev_b32 v126, 2, v0", "raw"))
            prog.append(Op("buffer_atomic_umax v127, v126, s[40:43], 0 offen", "raw"))
        else:
            prog.append(Op("buffer_store_dword v127, v126, s[40:43], 0 offen", "raw"))

    for o in prog:
        if o.kind == "mfma":
            older = [x for x in reads if x.gap <= o.gap - 1 - cfg.age and x.gap > o.gap - 40]
            o.meta["cover"] = older
    prog = insert_waits_cover(prog)
    prog, pads = fix_hazards(prog, verbose=cfg.verbose)
    verify_lds(prog, units)
    est = estimate_cycles([o for o in prog if o.gap is not None and o.gap >= 0 or o.kind in ("wait", "salu")])
    info = dict(NM=NM, late=late, overflow=overflow, pads=pads, est=est, n=len(prog), tail=len(tail),
                waits=sum(1 for o in prog if o.kind == "wait"))
    return prog, info


def insert_waits_cover(prog):
    pend = set()
    for o in prog:
        if o.kind == "ds":
            pend |= set(o.writes)
        if o.kind == "mfma" and (o.reads & pend):
            cov = o.meta.get("cover", [])
            o.meta["need_lgkm"] = cov
            for x in cov:
                pend -= set(x.writes)
            pend -= set(o.reads)
    return insert_waits(prog)


def verify_lds(prog, units):
    pos = {id(o): i for i, o in enumerate(prog)}
    bars = [o for o in prog if o.kind == "barrier"]
    occ = {}
    for u in units.values():
        occ.setdefault(u.slot, []).append(u)
        for rd in u.reads:
            b = rd.meta["bar"]
            assert pos[id(b)] < pos[id(rd)], ("read before barrier", u.kind, u.n)
            for d in u.dmas:
                assert d.meta["vm_idx"] < b.meta["vm_done_at"], ("dma not waited", u.kind, u.n)
    for s, us in occ.items():
        us.sort(key=lambda u: pos[id(u.dmas[0])])
        for a, b in zip(us, us[1:]):
            first = min(pos[id(d)] for d in b.dmas)
            ok = False
            for br in bars:
                if pos[id(br)] < first and all(rd.meta["lg_idx"] < br.meta["lg_done_at"] for rd in a.reads):
                    ok = True
            assert ok, ("slot WAR", s, a.kind, a.n, b.kind, b.n)


def fallback(cfg):
    L = []
    A = L.append
    t = vT
    A("L_fallback:")
    A("s_waitcnt vmcnt(0) lgkmcnt(0)")
    A("s_barrier")
    A(f"s_mul_i32 s{sT3}, s{sW}, 40960")
    A(f"v_and_b32 {t[0]}, 63, v0")
    A(f"v_bfe_u32 {t[2]}, {t[0]}, 2, 2")
    A(f"v_lshlrev_b32 {t[2]}, 9, {t[2]}")
    A(f"v_lshrrev_b32 {t[5]}, 4, {t[0]}")
    A(f"v_lshl_add_u32 {t[2]}, {t[5]}, 6, {t[2]}")
    A(f"v_and_b32 {t[3]}, 3, {t[0]}")
    fk = [Reg("v", 96 + i, 1) for i in range(4)]
    fv = [Reg("v", 100 + i, 1) for i in range(4)]
    fr = (0, 2, 3, 1)
    for rg in range(4):
        A(f"v_xor_b32 {t[4]}, {fr[rg]}, {t[3]}")
        A(f"v_lshl_add_u32 {fk[rg]}, {t[4]}, 4, {t[2]}")
        A(f"v_add_u32 {fk[rg]}, {rg * 2048}, {fk[rg]}")
        A(f"v_xor_b32 {t[4]}, {2 * (rg & 1)}, {t[3]}")
        A(f"v_lshl_add_u32 {fv[rg]}, {t[4]}, 4, {t[2]}")
        A(f"v_add_u32 {fv[rg]}, {rg * 2048}, {fv[rg]}")
    rk, rv0, rv1 = Reg("v", 104, 1), Reg("v", 105, 1), Reg("v", 106, 1)
    A(f"v_add_u32 {rk}, s{sT3}, {vKR[0]}")
    A(f"v_add_u32 {rv0}, s{sT3}, {vVR[0][0]}")
    A(f"v_add_u32 {rv1}, s{sT3}, {vVR[1][0]}")
    Pf = [vP[0][r][0] for r in range(3)]

    def load_k():
        for a in range(2):
            A(f"s_add_u32 s{sT1}, s{sT0}, {a * 8192}")
            for half in range(2):
                for rg in range(4):
                    A(f"s_add_u32 m0, s{sT3}, {a * 8192 + half * 4096 + rg * 1024 - half * 256 + 256}")
                    A(f"s_sub_u32 m0, m0, 256")
                    A("s_nop 0")
                    A(f"buffer_load_dwordx4 {fk[rg]}, s[{sK}:{sK + 3}], s{sT1} offen offset:{half * 256} lds")

    def load_v():
        for dh in range(2):
            for a in range(2):
                A(f"s_add_u32 s{sT1}, s{sT0}, {a * 8192 + dh * 256}")
                for rg in range(4):
                    A(f"s_add_u32 m0, s{sT3}, {16384 + dh * 8192 + a * 4096 + rg * 1024}")
                    A("s_nop 0")
                    A(f"buffer_load_dwordx4 {fv[rg]}, s[{sV}:{sV + 3}], s{sT1} offen lds")

    def qk(a):
        for c in range(8):
            A(f"ds_read_b128 {KF[c]}, {rk} offset:{a * 8192 + (c >> 2) * 4096 + (c & 3) * 256}")
        A("s_waitcnt lgkmcnt(0)")
        for r in range(3):
            for c in range(8):
                A(f"v_mfma_f32_16x16x32_bf16 {vS[r]}, {KF[c]}, {Q[r][c]}, {vS[r] if c else 0}")
        A("s_nop 15")

    def xl(op, x, tmp):
        for o in xlane(op, x, tmp):
            A("s_nop 1")
            A(o.text)

    for r in range(3):
        A(f"v_mov_b32 {vNM[r]}, 0xff800000")
    A(f"s_mov_b32 s{sT0}, 0")
    A("L_fb1:")
    load_k()
    A("s_waitcnt vmcnt(0)")
    for a in range(2):
        qk(a)
        for r in range(3):
            A(f"v_max3_f32 {vNM[r]}, {vNM[r]}, {vS[r][0]}, {vS[r][1]}")
            A(f"v_max3_f32 {vNM[r]}, {vNM[r]}, {vS[r][2]}, {vS[r][3]}")
    A(f"s_add_u32 s{sT0}, s{sT0}, 16384")
    A(f"s_cmp_lt_u32 s{sT0}, 262144")
    A("s_cbranch_scc1 L_fb1")
    for r in range(3):
        xl("v_max_f32", vNM[r], t[4])
        A(f"v_mul_f32 {vNM[r]}, {f2u(-C_SCALE):#x}, {vNM[r]}")
        A(f"v_mov_b32 {vL[r]}, 0")
    for r in range(3):
        for tt in range(16):
            for i in range(4):
                x = O[r][tt][i]
                A(f"v_mov_b32 {x}, 0" if x.f == "v" else f"v_accvgpr_write_b32 {x}, 0")
    A(f"s_mov_b32 s{sT0}, 0")
    A("L_fb2:")
    load_k()
    load_v()
    A("s_waitcnt vmcnt(0)")
    for a in range(2):
        qk(a)
        for r in range(3):
            S = vS[r]
            for i in range(4):
                A(f"v_fma_f32 {S[i]}, {S[i]}, s{sC}, {vNM[r]}")
            for i in range(4):
                A(f"v_exp_f32 {S[i]}, {S[i]}")
            A("s_nop 1")
            for i in range(4):
                A(f"v_add_f32 {vL[r]}, {vL[r]}, {S[i]}")
            for k in range(2):
                A(f"v_cvt_pk_bf16_f32 {Pf[r][2 * a + k]}, {S[2 * k]}, {S[2 * k + 1]}")
    A("s_nop 3")
    for tt in range(16):
        for s in range(2):
            base = rv0 if (tt & 1) == 0 else rv1
            off = 16384 + (tt >> 3) * 8192 + s * 4096 + ((tt & 7) >> 1) * 256
            A(f"ds_read_b64_tr_b16 {VF[tt & 1][0][2 * s:2 * s + 2]}, {base} offset:{off}")
        A("s_waitcnt lgkmcnt(0)")
        for r in range(3):
            A(f"v_mfma_f32_16x16x32_bf16 {O[r][tt]}, {VF[tt & 1][0]}, {Pf[r]}, {O[r][tt]}")
    A("s_nop 15")
    A(f"s_add_u32 s{sT0}, s{sT0}, 16384")
    A(f"s_cmp_lt_u32 s{sT0}, 262144")
    A("s_cbranch_scc1 L_fb2")
    for r in range(3):
        xl("v_add_f32", vL[r], t[4])
        A(f"v_rcp_f32 {vRL[r]}, {vL[r]}")
    A("s_nop 3")
    for T in range(8):
        for r in range(3):
            X, Y = O[r][2 * T], O[r][2 * T + 1]
            src = [X[i] for i in range(4)] + [Y[i] for i in range(4)]
            if X.f == "a":
                for i in range(8):
                    A(f"v_accvgpr_read_b32 {vX[i]}, {src[i]}")
                src = [vX[i] for i in range(8)]
            for i in range(8):
                A(f"v_mul_f32 {src[i]}, {src[i]}, {vRL[r]}")
            D = vS[(3 * T + r) % 8]
            for k in range(4):
                A(f"v_cvt_pk_bf16_f32 {D[k]}, {src[2 * k]}, {src[2 * k + 1]}")
            A("s_nop 1")
            A(f"v_permlane16_swap_b32 {D[0]}, {D[2]}")
            A(f"v_permlane16_swap_b32 {D[1]}, {D[3]}")
            A(f"buffer_store_dwordx4 {D}, {vST[r]}, s[{sO}:{sO + 3}], 0 offen offset:{64 * T}")
    A("s_waitcnt vmcnt(0)")
    return L


HEADER = """; GQA attention forward, B=8 Hq=16 Hkv=8 Sq=368 Sk=512 D=256, bf16 (generated by my gen/gen.py)
; whose sum exceeds 2^64 recomputes its rows with the true row maximum (L_fallback).
; @launch grid=(256,1,1) block=(256,1,1) lds=163840
.amdgcn_target "amdgcn-amd-amdhsa--gfx950"
.text
.globl {k}
.p2align 8
.type {k},@function
{k}:
"""

FOOTER = """L_end:
    s_endpgm
.section .rodata,"a"
.p2align 6
.amdhsa_kernel {k}
  .amdhsa_next_free_vgpr 512
  .amdhsa_next_free_sgpr 64
  .amdhsa_accum_offset 256
  .amdhsa_group_segment_fixed_size 0
  .amdhsa_kernarg_size 48
  .amdhsa_user_sgpr_count 2
  .amdhsa_user_sgpr_kernarg_segment_ptr 1
  .amdhsa_system_sgpr_workgroup_id_x 1
.end_amdhsa_kernel
"""


def emit(cfg):
    DBG[0] = cfg.dbg
    prog, info = build(cfg)
    s = HEADER.format(k=KNAME)
    for o in prog:
        s += (o.text if o.kind == "label" else "    " + o.text) + "\n"
    s += "    s_endpgm\nL_mainend:\n"
    for l in fallback(cfg):
        s += (l if l.endswith(":") else "    " + l) + "\n"
    s += FOOTER.format(k=KNAME)
    return s, info


if __name__ == "__main__":
    ap = argparse.ArgumentParser()
    ap.add_argument("-o", default="standalone__gqa_softmax__near_ridge.s")
    ap.add_argument("-v", action="store_true")
    ap.add_argument("opts", nargs="*")
    a = ap.parse_args()
    cfg = Cfg()
    cfg.verbose = a.v
    for kv in a.opts:
        k, v = kv.split("=", 1)
        old = getattr(cfg, k)
        if isinstance(old, bool):
            v = v in ("1", "true", "True")
        elif isinstance(old, int):
            v = int(v)
        elif isinstance(old, float):
            v = float(v)
        setattr(cfg, k, v.replace("+", " ") if isinstance(v, str) else v)
    s, info = emit(cfg)
    open(a.o, "w").write(s)
    print(info, len(s))
```

```python
import sys, math, argparse
sys.path.insert(0, __file__.rsplit("/", 1)[0])
from ir import *

KNAME = "standalone__gqa_softmax__near_ridge_kernel"
C_SCALE = math.log2(math.e) / 16.0


def f2u(x):
    import struct
    return struct.unpack("<I", struct.pack("<f", x))[0]


class Cfg:
    ldq = "nt"
    ldkv = "nt"
    st = "sc1"
    lat = 6
    age = 5
    sready = 4
    stamps = False
    dbg = False
    spin = -1
    spinwg = -1
    codepf = True
    force_fallback = False
    dma_phase = 0.0
    preflush = True


sQ, sK, sV, sO = 12, 16, 20, 24
sW1K = 28
sC = 29
sKoff = 30
sVoff = 31
sT0, sT1, sT2, sT3 = 32, 33, 34, 35
sW = 36
sThr = 37
sW8K = 38
sDBG = 40
vKR = [Reg("v", 1, 1), Reg("v", 2, 1), Reg("v", 3, 1)]
vVR = [[Reg("v", 4 + 3 * h + w, 1) for w in range(3)] for h in range(2)]
vDK = [Reg("v", 10, 1), Reg("v", 11, 1)]
vDV = [Reg("v", 12 + a, 1) for a in range(4)]
vST = [Reg("v", 16 + r, 1) for r in range(3)]
vNM = [Reg("v", 19 + r, 1) for r in range(3)]
vL = [Reg("v", 22 + r, 1) for r in range(3)]
vRL = [Reg("v", 25 + r, 1) for r in range(3)]
vT = Reg("v", 28, 12)
vS = [Reg("v", 40 + 4 * i, 4) for i in range(8)]
vP = [[[Reg("v", 72 + 24 * b + 8 * r + 4 * kc, 4) for kc in range(2)] for r in range(3)] for b in range(2)]
vX = Reg("v", 120, 8)
O = [[Reg("v", 128 + 4 * t, 4) for t in range(16)],
     [Reg("v", 192 + 4 * t, 4) for t in range(16)],
     [Reg("a", 4 * t, 4) for t in range(16)]]
preK = [[Reg("v", 128 + 32 * a + 4 * c, 4) for c in range(8)] for a in range(4)]
Q = [[Reg("a", 64 + 32 * r + 4 * c, 4) for c in range(8)] for r in range(3)]
KF = [Reg("a", 160 + 4 * c, 4) for c in range(8)]
NVB = 4
VF = [[Reg("a", 192 + 8 * b + 4 * kc, 4) for kc in range(2)] for b in range(NVB)]

SLOT = 16384
LDS_BYTES = 163840


def sn(i, n=1):
    return R("s", i, n)


def valu(text, reads=(), writes=(), tag=""):
    return Op(text, "valu", reads, writes, tag)


def salu(text, reads=(), writes=()):
    return Op(text, "salu", reads, writes)


def names(*regs):
    out = []
    for r in regs:
        out += r.names if isinstance(r, Reg) else [r]
    return out


def mfma(D, A, B, C=None):
    c = str(C) if C is not None else "0"
    op = Op(f"v_mfma_f32_16x16x32_bf16 {D}, {A}, {B}, {c}", "mfma",
            names(A, B) + (C.names if C is not None else []), D.names)
    op.meta["srcab"] = frozenset(names(A, B))
    op.meta["srcc"] = frozenset(C.names) if C is not None else frozenset()
    return op


def ds_k(dst, addr):
    w, off = divmod(addr, 65536)
    return Op(f"ds_read_b128 {dst}, {vKR[w]} offset:{off}", "ds", vKR[w].names, dst.names)


def ds_v(dst, h, addr):
    w, off = divmod(addr, 65536)
    return Op(f"ds_read_b64_tr_b16 {dst}, {vVR[h][w]} offset:{off}", "ds", vVR[h][w].names, dst.names)


def dma(vaddr, srd, soff, imm, pol):
    so = f"s{soff}" if soff is not None else "0"
    t = f"buffer_load_dwordx4 {vaddr}, s[{srd}:{srd + 3}], {so} offen"
    if imm:
        t += f" offset:{imm}"
    if pol:
        t += " " + pol
    t += " lds"
    return Op(t, "dma", vaddr.names + sn(srd, 4) + (sn(soff) if soff is not None else []) + ["m0"], [])


def set_m0(const):
    return salu(f"s_add_u32 m0, s{sW1K}, {const}", sn(sW1K), ["m0", "scc"])


class Unit:
    def __init__(self, kind, n):
        self.kind, self.n = kind, n
        self.slot = None
        self.dmas = []
        self.reads = []

    def make_dmas(self, cfg):
        ops = []
        base = self.slot * SLOT
        if self.kind == "K":
            so = salu(f"s_mov_b32 s{sKoff}, {self.n * 16384}", [], sn(sKoff))
            for a in range(2):
                for half in range(2):
                    d = dma(vDK[a], sK, sKoff, half * 256, cfg.ldkv)
                    d.pre = [set_m0(base + a * 8192 + half * 4096 - half * 256)]
                    ops.append(d)
        else:
            j, h = divmod(self.n, 2)
            so = salu(f"s_mov_b32 s{sVoff}, {j * 32768 + h * 256}", [], sn(sVoff))
            for a in range(4):
                d = dma(vDV[a], sV, sVoff, 0, cfg.ldkv)
                d.pre = [set_m0(base + a * 4096)]
                ops.append(d)
        ops[0].pre.insert(0, so)
        for d in ops:
            d.meta["unit"] = self
        self.dmas = ops
        return ops


def flat_dmas(ops):
    out = []
    for d in ops:
        out += d.pre
        out.append(salu("s_nop 0"))
        out.append(d)
        d.pre = []
    return out


def xlane(op, x, tmp):
    o = []
    o.append(valu(f"v_mov_b32 {tmp}, {x}", x.names, tmp.names))
    o.append(valu(f"v_permlane32_swap_b32 {x}, {tmp}", names(x, tmp), names(x, tmp)))
    o.append(valu(f"{op} {x}, {x}, {tmp}", names(x, tmp), x.names))
    o.append(valu(f"v_mov_b32 {tmp}, {x}", x.names, tmp.names))
    o.append(valu(f"v_permlane16_swap_b32 {x}, {tmp}", names(x, tmp), names(x, tmp)))
    o.append(valu(f"{op} {x}, {x}, {tmp}", names(x, tmp), x.names))
    return o


DBGMAP = {1: (2, 12), 2: (3, None), 3: (4, None), 4: (5, None), 8: (6, None), 12: (7, None), 16: (8, None),
          20: (9, 13), 21: (10, None), 22: (11, 14)}
DBG = [False]
SPIN = [-1]


def stamp(idx):
    if SPIN[0] >= 0:
        if idx != SPIN[0]:
            return []
        return [Op("s_memrealtime s[46:47]", "raw"), Op("s_waitcnt lgkmcnt(0)", "wait", meta={"lg_all": True, "fixed": True})]
    if DBG[0]:
        if idx not in DBGMAP:
            return []
        a, b = DBGMAP[idx]
        o = [Op("s_memrealtime s[44:45]", "raw")]
        if idx in (4, 20):
            o.append(Op(f"s_memtime s[{48 if idx == 4 else 50}:{49 if idx == 4 else 51}]", "raw"))
        o += [Op("s_waitcnt lgkmcnt(0)", "wait", meta={"lg_all": True, "fixed": True}),
              Op(f"v_writelane_b32 v127, s44, {a}", "raw")]
        if b is not None:
            o += [Op("s_not_b32 s44, s44", "raw"), Op(f"v_writelane_b32 v127, s44, {b}", "raw")]
        if idx == 20:
            o += [Op("s_sub_u32 s44, s50, s48", "raw"), Op(f"v_writelane_b32 v127, s44, 15", "raw")]
        return o
    return [Op("s_memrealtime s[44:45]", "raw"), Op("s_waitcnt lgkmcnt(0)", "wait", meta={"lg_all": True, "fixed": True}),
            Op(f"v_writelane_b32 v127, s44, {idx}", "raw")]


def prologue(cfg, units):
    P = []
    A = P.append
    raw = lambda t: A(Op(t, "raw"))
    raw("s_cmp_ge_u32 s2, 256")
    raw("s_cbranch_scc1 L_end")
    raw("s_load_dwordx4 s[4:7], s[0:1], 0")
    raw("s_load_dwordx4 s[8:11], s[0:1], 16")
    if cfg.stamps:
        raw(f"s_load_dwordx2 s[40:41], s[0:1], {32 if cfg.dbg else 40}")
        raw("s_memrealtime s[46:47]")
    t = vT
    lane, wv, common, cpos, f_w = t[0], t[1], t[2], t[3], t[4]
    A(valu(f"v_lshrrev_b32 {wv}, 6, v0", ["v0"], wv.names))
    A(valu(f"v_and_b32 {lane}, 63, v0", ["v0"], lane.names))
    A(valu(f"v_readfirstlane_b32 s{sW}, {wv}", wv.names, sn(sW)))
    A(salu(f"s_and_b32 s{sT0}, s2, 7", [], sn(sT0)))
    A(salu(f"s_lshr_b32 s{sT1}, s2, 5", [], sn(sT1)))
    A(salu(f"s_lshl_b32 s{sT1}, s{sT1}, 3", [], sn(sT1)))
    A(salu(f"s_add_u32 s{sT0}, s{sT0}, s{sT1}", [], sn(sT0)))
    A(salu(f"s_bfe_u32 s{sT1}, s2, 0x20003", [], sn(sT1)))
    A(salu(f"s_mul_i32 s{sT2}, s{sT0}, {736 * 512}", [], sn(sT2)))
    A(salu(f"s_mul_i32 s{sT1}, s{sT1}, {184 * 512}", [], sn(sT1)))
    A(salu(f"s_add_u32 s{sT2}, s{sT2}, s{sT1}", [], sn(sT2)))
    A(salu(f"s_lshl_b32 s{sT0}, s{sT0}, 18", [], sn(sT0)))
    A(valu(f"v_bfe_u32 {common}, {lane}, 2, 2", lane.names, common.names))
    A(valu(f"v_lshlrev_b32 {common}, 9, {common}", common.names, common.names))
    A(valu(f"v_lshrrev_b32 {t[5]}, 4, {lane}", lane.names, t[5].names))
    A(valu(f"v_lshl_add_u32 {common}, {t[5]}, 6, {common}", names(t[5], common), common.names))
    A(valu(f"v_and_b32 {cpos}, 3, {lane}", lane.names, cpos.names))
    A(valu(f"v_lshlrev_b32 {t[6]}, 1, {wv}", wv.names, t[6].names))
    A(valu(f"v_mov_b32 {t[7]}, 0x78", [], t[7].names))
    A(valu(f"v_bfe_u32 {f_w}, {t[7]}, {t[6]}, 2", names(t[7], t[6]), f_w.names))
    A(valu(f"v_xor_b32 {f_w}, {f_w}, {cpos}", names(f_w, cpos), f_w.names))
    A(valu(f"v_lshl_add_u32 {t[8]}, {wv}, 11, {common}", names(wv, common), t[8].names))
    A(valu(f"v_lshl_add_u32 {vDK[0]}, {f_w}, 4, {t[8]}", names(f_w, t[8]), vDK[0].names))
    A(valu(f"v_add_u32 {vDK[1]}, 8192, {vDK[0]}", vDK[0].names, vDK[1].names))
    A(salu(f"s_lshl_b32 s{sW1K}, s{sW}, 10", sn(sW), sn(sW1K)))
    A(salu(f"s_lshl_b32 s{sW8K}, s{sW}, 13", sn(sW), sn(sW8K)))
    A(Op("s_waitcnt lgkmcnt(0)", "wait", meta={"fixed": True}))
    for (srd, p, off, nrec) in ((sK, 6, sT0, 262144), (sQ, 4, sT2, 184 * 512), (sV, 8, sT0, 262144), (sO, 10, sT2, 184 * 512)):
        A(salu(f"s_add_u32 s{srd}, s{p}, s{off}", [], sn(srd)))
        A(salu(f"s_addc_u32 s{srd + 1}, s{p + 1}, 0", [], sn(srd + 1)))
        A(salu(f"s_mov_b32 s{srd + 2}, {nrec}", [], sn(srd + 2)))
        A(salu(f"s_mov_b32 s{srd + 3}, 0x00020000", [], sn(srd + 3)))
        if srd == sK:
            P += flat_dmas(units["K0"].make_dmas(cfg))
    if cfg.stamps:
        raw(f"s_mov_b32 s42, {64 if cfg.dbg else 0x1000000}")
        raw("s_mov_b32 s43, 0x00020000")
        raw("v_mov_b32 v127, 0")
        if cfg.dbg:
            raw("v_writelane_b32 v127, s46, 1")
            raw("s_not_b32 s46, s46")
        raw("v_writelane_b32 v127, s46, 0")
    vq = [[Reg("v", 72 + 4 * r + rg, 1) for rg in range(4)] for r in range(3)]
    A(valu(f"v_mul_u32_u24 {t[9]}, {48 * 512}, {wv}", wv.names, t[9].names))
    A(valu(f"v_add_u32 {t[9]}, {t[9]}, {common}", names(t[9], common), t[9].names))
    fr = (0, 2, 3, 1)
    qd = [[], [], []]

    def q_dmas(r):
        for rg in range(4):
            if r == 0:
                A(valu(f"v_xor_b32 {t[10]}, {fr[rg]}, {cpos}", cpos.names, t[10].names))
                A(valu(f"v_lshl_add_u32 {vq[0][rg]}, {t[10]}, 4, {t[9]}", names(t[10], t[9]), vq[0][rg].names))
                if rg:
                    A(valu(f"v_add_u32 {vq[0][rg]}, {rg * 2048}, {vq[0][rg]}", vq[0][rg].names, vq[0][rg].names))
            else:
                A(valu(f"v_add_u32 {vq[r][rg]}, {r * 8192}, {vq[0][rg]}", vq[0][rg].names, vq[r][rg].names))
        for half in range(2):
            for rg in range(4):
                d = dma(vq[r][rg], sQ, None, half * 256, cfg.ldq)
                A(salu(f"s_add_u32 m0, s{sW8K}, {65536 + r * 32768 + half * 4096 + rg * 1024 - half * 256}", sn(sW8K), ["m0", "scc"]))
                A(salu("s_nop 0"))
                A(d)
                qd[r].append(d)

    q_dmas(0)
    P += flat_dmas(units["K1"].make_dmas(cfg))
    if cfg.codepf:
        raw("s_getpc_b64 s[44:45]")
        A(valu(f"v_lshlrev_b32 {t[10]}, 7, v0", ["v0"], t[10].names))
        A(Op(f"global_load_dword {vX[0]}, {t[10]}, s[44:45]", "vload", t[10].names, vX[0].names))
        A(valu(f"v_add_u32 {t[10]}, 32768, {t[10]}", t[10].names, t[10].names))
        A(valu(f"v_min_u32 {t[10]}, L_mainend - L_pfbase, {t[10]}", t[10].names, t[10].names))
        A(Op(f"global_load_dword {vX[1]}, {t[10]}, s[44:45]", "vload", t[10].names, vX[1].names))
        P.insert(P.index(next(o for o in P if o.text.startswith("s_getpc"))) + 1, Op("L_pfbase:", "label"))
    q_dmas(1)
    q_dmas(2)
    P += flat_dmas(units["K2"].make_dmas(cfg))
    A(valu(f"v_and_b32 {t[10]}, 1, {wv}", wv.names, t[10].names))
    A(valu(f"v_lshlrev_b32 {t[10]}, 1, {t[10]}", t[10].names, t[10].names))
    A(valu(f"v_xor_b32 {t[10]}, {t[10]}, {cpos}", names(t[10], cpos), t[10].names))
    A(valu(f"v_lshl_add_u32 {vDV[0]}, {t[10]}, 4, {t[8]}", names(t[10], t[8]), vDV[0].names))
    for a in range(1, 4):
        A(valu(f"v_add_u32 {vDV[a]}, {8192 * a}, {vDV[0]}", vDV[0].names, vDV[a].names))
    P += flat_dmas(units["V0"].make_dmas(cfg))
    g = t[5]
    A(valu(f"v_bfe_u32 {t[6]}, {lane}, 2, 2", lane.names, t[6].names))
    A(valu(f"v_lshlrev_b32 {t[10]}, 1, {t[6]}", t[6].names, t[10].names))
    A(valu(f"v_bfe_u32 {t[10]}, {t[7]}, {t[10]}, 2", names(t[7], t[10]), t[10].names))
    A(valu(f"v_xor_b32 {t[10]}, {t[10]}, {g}", names(t[10], g), t[10].names))
    A(valu(f"v_lshlrev_b32 {t[10]}, 4, {t[10]}", t[10].names, t[10].names))
    A(valu(f"v_lshl_add_u32 {t[10]}, {t[6]}, 10, {t[10]}", names(t[6], t[10]), t[10].names))
    A(valu(f"v_lshl_add_u32 {vKR[0]}, {cpos}, 6, {t[10]}", names(cpos, t[10]), vKR[0].names))
    A(valu(f"v_add_u32 {vKR[1]}, 0x10000, {vKR[0]}", vKR[0].names, vKR[1].names))
    A(valu(f"v_add_u32 {vKR[2]}, 0x20000, {vKR[0]}", vKR[0].names, vKR[2].names))
    A(valu(f"v_lshlrev_b32 {t[10]}, 10, {g}", g.names, t[10].names))
    A(valu(f"v_lshl_add_u32 {t[10]}, {t[6]}, 6, {t[10]}", names(t[6], t[10]), t[10].names))
    A(valu(f"v_lshl_add_u32 {t[10]}, {cpos}, 3, {t[10]}", names(cpos, t[10]), t[10].names))
    A(valu(f"v_and_b32 {t[11]}, 1, {g}", g.names, t[11].names))
    A(valu(f"v_lshl_add_u32 {vVR[0][0]}, {t[11]}, 5, {t[10]}", names(t[11], t[10]), vVR[0][0].names))
    A(valu(f"v_xor_b32 {vVR[1][0]}, 32, {vVR[0][0]}", vVR[0][0].names, vVR[1][0].names))
    for h in range(2):
        for w in (1, 2):
            A(valu(f"v_add_u32 {vVR[h][w]}, {w * 65536}, {vVR[h][0]}", vVR[h][0].names, vVR[h][w].names))
    A(valu(f"v_and_b32 {t[10]}, 15, {lane}", lane.names, t[10].names))
    A(valu(f"v_mad_u32_u24 {t[10]}, {wv}, 48, {t[10]}", names(wv, t[10]), t[10].names))
    A(valu(f"v_lshlrev_b32 {t[10]}, 9, {t[10]}", t[10].names, t[10].names))
    A(valu(f"v_lshl_add_u32 {t[10]}, {t[11]}, 5, {t[10]}", names(t[11], t[10]), t[10].names))
    A(valu(f"v_lshrrev_b32 {t[11]}, 1, {g}", g.names, t[11].names))
    A(valu(f"v_lshl_add_u32 {vST[0]}, {t[11]}, 4, {t[10]}", names(t[11], t[10]), vST[0].names))
    A(valu(f"v_add_u32 {vST[1]}, 8192, {vST[0]}", vST[0].names, vST[1].names))
    A(valu(f"v_add_u32 {vST[2]}, 16384, {vST[0]}", vST[0].names, vST[2].names))
    A(valu(f"v_add_u32 {vX[2]}, s{sW8K}, {vKR[1]}", vKR[1].names + sn(sW8K), vX[2].names))
    A(valu(f"v_add_u32 {vX[3]}, s{sW8K}, {vKR[2]}", vKR[2].names + sn(sW8K), vX[3].names))
    A(salu(f"s_mov_b32 s{sC}, {f2u(C_SCALE):#x}", [], sn(sC)))
    A(salu(f"s_mov_b32 s{sThr}, {f2u(2.0 ** 64 if not cfg.force_fallback else 1.0):#x}", [], sn(sThr)))
    for r in range(3):
        A(valu(f"v_mov_b32 {vL[r]}, 0", [], vL[r].names))
    return P, qd


def q_reads(r, qd):
    ops = []
    for c in range(8):
        base = vX[2] if r < 2 else vX[3]
        off = (r if r < 2 else 0) * 32768 + (c >> 2) * 4096 + (c & 3) * 256
        o = Op(f"ds_read_b128 {Q[r][c]}, {base} offset:{off}", "ds", base.names, Q[r][c].names)
        o.meta["need_vm"] = qd[r][(c >> 2) * 4:(c >> 2) * 4 + 4]
        ops.append(o)
    return ops


def build(cfg):
    units = {}
    for n in range(16):
        units[f"K{n}"] = Unit("K", n)
        units[f"V{n}"] = Unit("V", n)
    units["K0"].slot, units["K1"].slot, units["K2"].slot, units["V0"].slot = 0, 1, 2, 3

    pro, qd = prologue(cfg, units)

    M = []
    fixed = {}
    dsq = []
    vq = []
    dmaq = []
    sbuf_last_reader = [None] * 8
    sbuf_ctr = [0]
    chain_guard = []
    pv_need = []
    Pcvt = {}
    negm_ready = {}

    def softmax_ops(tile, r, a, S, ready_gap):
        b = tile & 1
        dst = vP[b][r][a >> 1]
        fm, ex, ad, cv = [], [], [], []
        for i in range(4):
            o = valu(f"v_fma_f32 {S[i]}, {S[i]}, s{sC}, {vNM[r]}", names(S[i], vNM[r]) + sn(sC), S[i].names)
            o.earliest = ready_gap
            if r in negm_ready:
                o.deps.append((negm_ready[r], 0))
            fm.append(o)
        for i in range(4):
            o = Op(f"v_exp_f32 {S[i]}, {S[i]}", "trans", S[i].names, S[i].names)
            o.deps.append((fm[i], 0))
            ex.append(o)
        for i in range(4):
            o = valu(f"v_add_f32 {vL[r]}, {vL[r]}, {S[i]}", names(vL[r], S[i]), vL[r].names)
            o.deps.append((ex[i], 1))
            ad.append(o)
        for k in range(2):
            d = dst[2 * (a & 1) + k]
            o = valu(f"v_cvt_pk_bf16_f32 {d}, {S[2 * k]}, {S[2 * k + 1]}", names(S[2 * k], S[2 * k + 1]), d.names)
            o.deps += [(ex[2 * k], 1), (ex[2 * k + 1], 1)]
            o.earliest = pbuf_free.get(b, -1)
            cv.append(o)
        Pcvt[(tile, r, a)] = cv
        order = [fm[0], fm[1], ex[0], fm[2], ex[1], fm[3], ad[0], ex[2], ad[1], cv[0], ex[3], ad[2], ad[3], cv[1]]
        vq.extend(order)
        last_add[r] = ad[3]
        return ad + cv

    pbuf_free = {}
    last_add = {}

    def chain(tile, r, a, frags):
        si = sbuf_ctr[0] % 8
        sbuf_ctr[0] += 1
        S = vS[si]
        start = len(M)
        if sbuf_last_reader[si]:
            chain_guard.append((start, sbuf_last_reader[si]))
        for c in range(8):
            M.append(mfma(S, frags[c], Q[r][c], S if c else None))
        return si, S, len(M) - 1

    vbuf_ctr = [0]
    vbuf_free = [-1] * NVB

    def group(tile, t, first):
        b = tile & 1
        vb = vbuf_ctr[0] % NVB
        vbuf_ctr[0] += 1
        u = units[f"V{2 * tile + (t >> 3)}"]
        tt = t & 7
        start = len(M)
        for kc in range(2):
            for s in range(2):
                a = 2 * kc + s
                dst = VF[vb][kc][2 * s:2 * s + 2]
                rd = ("V", dst, tt & 1, u, a * 4096 + (tt >> 1) * 256, start + kc, vbuf_free[vb])
                dsq.append(rd)
        for r in range(3):
            for kc in range(2):
                C = O[r][t] if not (first and kc == 0) else None
                M.append(mfma(O[r][t], VF[vb][kc], vP[b][r][kc], C))
                pv_need.append((len(M) - 1, (tile, r, kc)))
        vbuf_free[vb] = len(M) - 1
        pbuf_free[b] = len(M) - 1
        return len(M) - 1

    bar = {}

    def barrier(name, need_units=(), need_lg=(), need_vm=()):
        o = Op("s_barrier", "barrier")
        o.meta["need_vm"] = [d for u in need_units for d in units[u].dmas] + list(need_vm)
        o.meta["need_lgkm"] = list(need_lg)
        o.meta["name"] = name
        o.meta["hoist_wait"] = False
        bar[name] = o
        return o

    blk = []
    blk.append(barrier("a", ["K0", "K1"], need_vm=qd[0]))
    bar["a"].gap = -1
    if cfg.stamps:
        blk += stamp(1)
    q0 = q_reads(0, qd)
    blk += q0
    prek = []
    for a in range(4):
        u = units[f"K{a >> 1}"]
        for c in range(8):
            o = ds_k(preK[a][c], u.slot * SLOT + (a & 1) * 8192 + (c >> 2) * 4096 + (c & 3) * 256)
            o.meta["unit"] = u
            o.meta["bar"] = bar["a"]
            u.reads.append(o)
            prek.append(o)
    blk += prek[:8]
    blk.append(barrier("b", need_lg=q0))
    units["K3"].slot, units["V1"].slot = 4, 5
    d3 = units["K3"].make_dmas(cfg) + units["V1"].make_dmas(cfg)
    for d in d3:
        d.meta["bar"] = bar["b"]
    blk += flat_dmas(d3)
    blk += prek[8:]
    fixed[-1] = blk

    for r in range(3):
        if r > 0:
            blk = []
            qr = q_reads(r, qd)
            blk += qr
            if r == 1:
                blk.append(barrier("c", need_lg=qr))
                units["K4"].slot, units["V2"].slot = 6, 7
                d4 = units["K4"].make_dmas(cfg) + units["V2"].make_dmas(cfg)
                for d in d4:
                    d.meta["bar"] = bar["c"]
                blk += flat_dmas(d4)
            else:
                blk.append(barrier(0, ["K2", "V0"], need_lg=qr + prek))
                bar[0].gap = len(M) - 1
            if cfg.stamps:
                blk += stamp(1 + r)
            fixed[len(M) - 1] = blk
        tiles = []
        for a in range(4):
            tiles.append(chain(0, r, a, preK[a]))
            if a == 1:
                S0, S1 = tiles[0][1], tiles[1][1]
                rdy = tiles[1][2] + cfg.sready
                m = vNM[r]
                tmp = vT[r]
                ops = [valu(f"v_max3_f32 {m}, {S0[0]}, {S0[1]}, {S0[2]}", names(S0[0], S0[1], S0[2]), m.names),
                       valu(f"v_max3_f32 {tmp}, {S0[3]}, {S1[0]}, {S1[1]}", names(S0[3], S1[0], S1[1]), tmp.names),
                       valu(f"v_max3_f32 {m}, {m}, {S1[2]}, {S1[3]}", names(m, S1[2], S1[3]), m.names),
                       valu(f"v_max_f32 {m}, {m}, {tmp}", names(m, tmp), m.names)]
                ops += xlane("v_max_f32", m, tmp)
                ops.append(valu(f"v_mul_f32 {m}, -{C_SCALE!r}, {m}".replace(f"-{C_SCALE!r}", f"{f2u(-C_SCALE):#x}"), m.names, m.names))
                prev = None
                for o in ops:
                    o.earliest = rdy
                    if prev is not None:
                        o.deps.append((prev, 1 if "permlane" in o.text else 0))
                    prev = o
                vq.extend(ops)
                negm_ready[r] = ops[-1]
                for k in range(2):
                    si, S, end = tiles[k]
                    sbuf_last_reader[si] = softmax_ops(0, r, k, S, end + cfg.sready)
            elif a > 1:
                si, S, end = tiles[a]
                sbuf_last_reader[si] = softmax_ops(0, r, a, S, end + cfg.sready)
        for o in vq:
            o.meta.setdefault("pre", len(M) - 1)
    negm_ready.clear()

    kf_free = [bar[0].gap] * 8
    start_int = {}
    ch2_first = {}
    grp_end = {}
    for j in range(8):
        for q in range(4):
            n = 2 * j + (q >> 1)
            if q % 2 == 0:
                start_int[n] = len(M)
            if j < 7:
                order = "cGcGcGG"
                if (j == 0 and q == 0) or (j == 6 and q == 3):
                    order = "cccGGGG"
                u = units[f"K{n + 2}"]
                r = 0
                gi = 0
                for ch in order:
                    if ch == "c":
                        st = len(M)
                        if r == 0:
                            for c in range(8):
                                dsq.append(("K", KF[c], None, u, (q & 1) * 8192 + (c >> 2) * 4096 + (c & 3) * 256, st + c, kf_free[c]))
                        si, S, end = chain(j + 1, r, q, KF)
                        if r == 2:
                            ch2_first[(j, q)] = st
                            for c in range(8):
                                kf_free[c] = st + c
                        sbuf_last_reader[si] = softmax_ops(j + 1, r, q, S, end + cfg.sready)
                        r += 1
                    else:
                        grp_end[(j, 4 * q + gi)] = group(j, 4 * q + gi, j == 0)
                        gi += 1
            else:
                for gi in range(4):
                    grp_end[(j, 4 * q + gi)] = group(j, 4 * q + gi, False)
    NM = len(M)

    for n in range(1, 15):
        j, q = divmod(2 * n - 1, 4)
        g = ch2_first[(j, q)] - 1
        if n == 14:
            g = start_int[14] - cfg.lat - 10
        o = Op("s_barrier", "barrier")
        o.gap = g
        o.meta["name"] = n
        bar[n] = o

    def vis_bar(u):
        if u.kind == "K":
            return bar[u.n - 2]
        return bar[min(u.n, 14)]

    free_at = {}
    free_at[8] = 0
    free_at[9] = 0
    free_at[0] = 0
    free_at[1] = 0
    release = {}
    for n in range(2, 16):
        release[f"K{n}"] = n - 1
    for n in range(16):
        release[f"V{n}"] = n + 2
    for name in ("K2", "V0", "K3", "V1", "K4", "V2"):
        free_at[units[name].slot] = release[name]
    pending = []
    for n in range(3, 16):
        if n + 2 < 16:
            pending.append(f"K{n + 2}")
        pending.append(f"V{n}")
    issue_win = {}
    win_load = {}
    for name in pending:
        u = units[name]
        slot = min(free_at, key=lambda s: (free_at[s], s))
        w = free_at[slot]
        prevw = max(issue_win.values()) if issue_win else 0
        w = max(w, prevw)
        cap = lambda x: 4 if x == 0 else 2
        while win_load.get(w, 0) >= cap(w):
            w += 1
        u.slot = slot
        issue_win[name] = w
        win_load[w] = win_load.get(w, 0) + 1
        free_at[slot] = release[name]
        assert w < vis_bar(u).meta["name"], (name, w)
        for d in u.make_dmas(cfg):
            d.meta["bar"] = bar[w]
            d.meta["win"] = w
            dmaq.append(d)
    for n in range(1, 15):
        need = [f"V{n}"] + ([f"K{n + 2}"] if n + 2 < 16 else []) + (["V15"] if n == 14 else [])
        bar[n].meta["need_vm"] = [d for x in need for d in units[x].dmas]
        bar[n].meta["hoist_wait"] = True

    reads = []
    for (kind, dst, h, u, off, cons, bfree) in dsq:
        addr = u.slot * SLOT + off
        o = ds_k(dst, addr) if kind == "K" else ds_v(dst, h, addr)
        vb = vis_bar(u)
        o.earliest = max(bfree, vb.gap + 1)
        o.deadline = cons - cfg.lat
        o.meta.update(unit=u, bar=vb, cons=cons)
        u.reads.append(o)
        reads.append(o)
    reads.sort(key=lambda o: o.meta["cons"])
    nxt = 1 << 30
    for o in reversed(reads):
        g = min(o.deadline, nxt - 2)
        if g < o.earliest:
            g = min(o.deadline, nxt - 1)
        if g < o.earliest:
            g = o.earliest
        o.gap = g
        nxt = g
    prev = -10
    late = 0
    for o in reads:
        g = max(o.gap, o.earliest, prev + 1)
        g = min(g, o.meta["cons"] - 2)
        assert g >= o.earliest and g >= prev, (o, g, o.earliest, prev)
        if g > o.deadline:
            late += 1
        o.gap = g
        prev = g
    gap_ds = {}
    for o in reads:
        gap_ds.setdefault(o.gap, []).append(o)

    fin = []
    chk_prev = None
    for r in range(3):
        ops = xlane("v_add_f32", vL[r], vT[r])
        prev = last_add[r]
        for o in ops:
            o.deps.append((prev, 1 if "permlane" in o.text else 0))
            prev = o
        rc = Op(f"v_rcp_f32 {vRL[r]}, {vL[r]}", "trans", vL[r].names, vRL[r].names)
        rc.deps.append((prev, 0))
        fin.append((ops, rc))
    for k in range(6):
        for r in range(3):
            vq.append(fin[r][0][k])
    mx = valu(f"v_max3_f32 {vT[3]}, {vL[0]}, {vL[1]}, {vL[2]}", names(*vL), vT[3].names)
    mx.deps += [(fin[r][0][-1], 0) for r in range(3)]
    cmp_ = valu(f"v_cmp_lt_f32 vcc, s{sThr}, {vT[3]}", vT[3].names + sn(sThr), ["svcc"])
    cmp_.deps.append((mx, 0))
    vq += [mx, cmp_] + [fin[r][1] for r in range(3)]
    br = Op("s_cbranch_vccnz L_fallback", "branch", ["svcc"], [])
    br.deps.append((cmp_, 2))
    tq = 0
    tmp8 = [Reg("v", 72, 8), Reg("v", 80, 8), Reg("v", 88, 8)]
    stores = []
    for T in range(8):
        rdy = grp_end[(7, 2 * T + 1)] + cfg.sready
        for r in range(3):
            X, Y = O[r][2 * T], O[r][2 * T + 1]
            src = [X[i] for i in range(4)] + [Y[i] for i in range(4)]
            ops = []
            if X.f == "a":
                tb = tmp8[T % 3]
                rd = []
                for i in range(8):
                    o = valu(f"v_accvgpr_read_b32 {tb[i]}, {src[i]}", src[i].names, tb[i].names)
                    o.earliest = max(rdy, pbuf_free[0])
                    if T >= 3:
                        o.deps += [(x, 0) for x in tmp8_users[T - 3]]
                    rd.append(o)
                ops += rd
                src = [tb[i] for i in range(8)]
            mu = []
            for i in range(8):
                o = valu(f"v_mul_f32 {src[i]}, {src[i]}, {vRL[r]}", names(src[i], vRL[r]), src[i].names)
                o.earliest = rdy
                o.deps.append((fin[r][1], 1))
                if X.f == "a":
                    o.deps.append((rd[i], 0))
                mu.append(o)
            D = vS[tq % 8]
            cv = []
            for k in range(4):
                o = valu(f"v_cvt_pk_bf16_f32 {D[k]}, {src[2 * k]}, {src[2 * k + 1]}", names(src[2 * k], src[2 * k + 1]), D[k].names)
                o.deps += [(mu[2 * k], 0), (mu[2 * k + 1], 0)]
                o.deps += [(x, 0) for x in sbuf_last_reader[tq % 8]]
                cv.append(o)
            if X.f == "a":
                if T == 0:
                    tmp8_users = {}
                tmp8_users[T] = cv
            sw = []
            for k in range(2):
                o = valu(f"v_permlane16_swap_b32 {D[k]}, {D[k + 2]}", names(D[k], D[k + 2]), names(D[k], D[k + 2]))
                o.deps += [(cv[k], 0), (cv[k + 2], 0), (cv[3], 0)]
                sw.append(o)
            stt = f"buffer_store_dwordx4 {D}, {vST[r]}, s[{sO}:{sO + 3}], 0 offen offset:{64 * T}"
            if cfg.st:
                stt += " " + cfg.st
            so = Op(stt, "vstore", D.names + vST[r].names + sn(sO, 4), [])
            so.meta["data"] = frozenset(D.names)
            so.deps += [(sw[0], 0), (sw[1], 0), (br, 0)]
            sbuf_last_reader[tq % 8] = [so]
            tq += 1
            ops += mu + cv + sw + [so]
            stores.append(so)
            vq += ops

    gap_dma = {}
    bywin = {}
    for d in dmaq:
        bywin.setdefault(d.meta["win"], []).append(d)
    for w, ds_ in bywin.items():
        g0 = bar[w].gap + 3
        g1 = bar[w + 1].gap - 2
        cand = [g for g in range(g0, g1) if g not in gap_ds]
        step = len(cand) / len(ds_)
        last = -10
        for i, d in enumerate(ds_):
            k = int(i * step + (cfg.dma_phase * step))
            g = cand[min(k, len(cand) - 1)]
            while g <= last + 2 or g in gap_ds:
                g += 1
            gap_dma[g] = d
            d.gap = g
            last = g

    placed = set()
    gaps = {g: {"s": [], "v": []} for g in range(-1, NM)}
    for n in range(1, 15):
        gaps[bar[n].gap]["s"].append(bar[n])
    for g, d in gap_dma.items():
        pre = d.pre
        d.pre = []
        gaps[g - 1]["s"].append(pre[-1])
        if len(pre) > 1:
            gaps[g - 2]["s"].append(pre[0])

    def ready(o, g):
        if o.earliest > g:
            return False
        for (d, k) in o.deps:
            if d.gap is None or d.gap + k > g:
                return False
        return True

    queue = list(vq)
    guard_at = {}
    for (idx, ops) in chain_guard:
        guard_at.setdefault(idx - 1, []).extend(ops)
    for (idx, key) in pv_need:
        tile, r, kc = key
        guard_at.setdefault(idx - 2, []).extend(Pcvt[(tile, r, 2 * kc)] + Pcvt[(tile, r, 2 * kc + 1)])
    overflow = 0
    br_placed = False

    def place(o, g):
        o.gap = g
        gaps[g]["v"].append(o)
        queue.remove(o)

    def force(o, g):
        nonlocal overflow
        if o.gap is not None:
            return
        for (d, k) in o.deps:
            if d.gap is None:
                force(d, g)
        assert o.earliest <= g, (o, g)
        overflow += 1
        place(o, g)

    for g in range(0, NM):
        cap = 2
        if g in gap_ds:
            for o in gap_ds[g]:
                gaps[g]["v"].append(o)
            cap = 1 if len(gap_ds[g]) == 1 else 0
            mem = True
        elif g in gap_dma:
            gaps[g]["v"].append(gap_dma[g])
            cap = 0
            mem = True
        else:
            mem = False
        if not br_placed and ready(br, g):
            br.gap = g
            gaps[g]["s"].append(br)
            br_placed = True
        window = queue[:80]
        if not mem:
            st_ = next((o for o in window if o.kind == "vstore" and all(d.gap is not None and d.gap < g for d, k in o.deps)), None)
            ex = next((o for o in window if o.kind == "trans" and ready(o, g)), None)
            if st_ is not None:
                place(st_, g)
                cap = 0
            elif ex is not None:
                place(ex, g)
                cap = 0
        while cap > 0:
            o = next((o for o in queue[:80] if o.kind == "valu" and ready(o, g)), None)
            if o is None:
                break
            place(o, g)
            cap -= 1
        for o in guard_at.get(g, []):
            force(o, g)
        if g in fixed and cfg.preflush:
            for o in list(queue):
                if o.meta.get("pre") is not None and o.meta["pre"] <= g:
                    place(o, g)
    tail = []
    if not br_placed:
        raise SystemExit("branch not placed")
    rest = list(queue)
    for o in rest:
        o.gap = NM
        tail.append(o)

    prog = list(pro)
    for o in fixed[-1]:
        o.gap = -1
    prog += fixed[-1]
    for g in range(NM):
        M[g].gap = g
        prog.append(M[g])
        prog += gaps[g]["s"]
        prog += gaps[g]["v"]
        if g in fixed:
            for o in fixed[g]:
                o.gap = g
            prog += fixed[g]
        if cfg.stamps and g + 1 in start_int.values():
            n = [k for k, v in start_int.items() if v == g + 1][0]
            prog += stamp(4 + n)
    if cfg.stamps:
        prog += stamp(20)
    prog += tail
    if cfg.stamps:
        prog += stamp(21)
        prog.append(Op("s_waitcnt vmcnt(0)", "wait", meta={"fixed": True}))
        prog += stamp(22)
        prog.append(Op("s_lshl_b32 s44, s2, 8", "raw"))
        prog.append(Op("v_add_u32 v126, s44, v0", "raw"))
        prog.append(Op("v_lshlrev_b32 v126, 2, v126", "raw"))
        if cfg.spin >= 0:
            if cfg.spinwg >= 0:
                prog.append(Op(f"s_cmp_lg_u32 s2, {cfg.spinwg}", "raw"))
                prog.append(Op("s_cbranch_scc1 L_end", "raw"))
            prog.append(Op("L_spin:", "label"))
            prog.append(Op("s_memrealtime s[44:45]", "raw"))
            prog.append(Op("s_waitcnt lgkmcnt(0)", "raw"))
            prog.append(Op("s_sub_u32 s44, s44, s46", "raw"))
            prog.append(Op("s_cmp_lt_u32 s44, 5000", "raw"))
            prog.append(Op("s_cbranch_scc1 L_spin", "raw"))
        elif cfg.dbg:
            prog.append(Op("v_lshlrev_b32 v126, 2, v0", "raw"))
            prog.append(Op("buffer_atomic_umax v127, v126, s[40:43], 0 offen", "raw"))
        else:
            prog.append(Op("buffer_store_dword v127, v126, s[40:43], 0 offen", "raw"))

    for o in prog:
        if o.kind == "mfma":
            older = [x for x in reads if x.gap <= o.gap - 1 - cfg.age and x.gap > o.gap - 40]
            o.meta["cover"] = older
    prog = insert_waits_cover(prog)
    prog, pads = fix_hazards(prog, verbose=cfg.verbose)
    verify_lds(prog, units)
    est = estimate_cycles([o for o in prog if o.gap is not None and o.gap >= 0 or o.kind in ("wait", "salu")])
    info = dict(NM=NM, late=late, overflow=overflow, pads=pads, est=est, n=len(prog), tail=len(tail),
                waits=sum(1 for o in prog if o.kind == "wait"))
    return prog, info


def insert_waits_cover(prog):
    pend = set()
    for o in prog:
        if o.kind == "ds":
            pend |= set(o.writes)
        if o.kind == "mfma" and (o.reads & pend):
            cov = o.meta.get("cover", [])
            o.meta["need_lgkm"] = cov
            for x in cov:
                pend -= set(x.writes)
            pend -= set(o.reads)
    return insert_waits(prog)


def verify_lds(prog, units):
    pos = {id(o): i for i, o in enumerate(prog)}
    bars = [o for o in prog if o.kind == "barrier"]
    occ = {}
    for u in units.values():
        occ.setdefault(u.slot, []).append(u)
        for rd in u.reads:
            b = rd.meta["bar"]
            assert pos[id(b)] < pos[id(rd)], ("read before barrier", u.kind, u.n)
            for d in u.dmas:
                assert d.meta["vm_idx"] < b.meta["vm_done_at"], ("dma not waited", u.kind, u.n)
    for s, us in occ.items():
        us.sort(key=lambda u: pos[id(u.dmas[0])])
        for a, b in zip(us, us[1:]):
            first = min(pos[id(d)] for d in b.dmas)
            ok = False
            for br in bars:
                if pos[id(br)] < first and all(rd.meta["lg_idx"] < br.meta["lg_done_at"] for rd in a.reads):
                    ok = True
            assert ok, ("slot WAR", s, a.kind, a.n, b.kind, b.n)


def fallback(cfg):
    L = []
    A = L.append
    t = vT
    A("L_fallback:")
    A("s_waitcnt vmcnt(0) lgkmcnt(0)")
    A("s_barrier")
    A(f"s_mul_i32 s{sT3}, s{sW}, 40960")
    A(f"v_and_b32 {t[0]}, 63, v0")
    A(f"v_bfe_u32 {t[2]}, {t[0]}, 2, 2")
    A(f"v_lshlrev_b32 {t[2]}, 9, {t[2]}")
    A(f"v_lshrrev_b32 {t[5]}, 4, {t[0]}")
    A(f"v_lshl_add_u32 {t[2]}, {t[5]}, 6, {t[2]}")
    A(f"v_and_b32 {t[3]}, 3, {t[0]}")
    fk = [Reg("v", 96 + i, 1) for i in range(4)]
    fv = [Reg("v", 100 + i, 1) for i in range(4)]
    fr = (0, 2, 3, 1)
    for rg in range(4):
        A(f"v_xor_b32 {t[4]}, {fr[rg]}, {t[3]}")
        A(f"v_lshl_add_u32 {fk[rg]}, {t[4]}, 4, {t[2]}")
        A(f"v_add_u32 {fk[rg]}, {rg * 2048}, {fk[rg]}")
        A(f"v_xor_b32 {t[4]}, {2 * (rg & 1)}, {t[3]}")
        A(f"v_lshl_add_u32 {fv[rg]}, {t[4]}, 4, {t[2]}")
        A(f"v_add_u32 {fv[rg]}, {rg * 2048}, {fv[rg]}")
    rk, rv0, rv1 = Reg("v", 104, 1), Reg("v", 105, 1), Reg("v", 106, 1)
    A(f"v_add_u32 {rk}, s{sT3}, {vKR[0]}")
    A(f"v_add_u32 {rv0}, s{sT3}, {vVR[0][0]}")
    A(f"v_add_u32 {rv1}, s{sT3}, {vVR[1][0]}")
    Pf = [vP[0][r][0] for r in range(3)]

    def load_k():
        for a in range(2):
            A(f"s_add_u32 s{sT1}, s{sT0}, {a * 8192}")
            for half in range(2):
                for rg in range(4):
                    A(f"s_add_u32 m0, s{sT3}, {a * 8192 + half * 4096 + rg * 1024 - half * 256 + 256}")
                    A(f"s_sub_u32 m0, m0, 256")
                    A("s_nop 0")
                    A(f"buffer_load_dwordx4 {fk[rg]}, s[{sK}:{sK + 3}], s{sT1} offen offset:{half * 256} lds")

    def load_v():
        for dh in range(2):
            for a in range(2):
                A(f"s_add_u32 s{sT1}, s{sT0}, {a * 8192 + dh * 256}")
                for rg in range(4):
                    A(f"s_add_u32 m0, s{sT3}, {16384 + dh * 8192 + a * 4096 + rg * 1024}")
                    A("s_nop 0")
                    A(f"buffer_load_dwordx4 {fv[rg]}, s[{sV}:{sV + 3}], s{sT1} offen lds")

    def qk(a):
        for c in range(8):
            A(f"ds_read_b128 {KF[c]}, {rk} offset:{a * 8192 + (c >> 2) * 4096 + (c & 3) * 256}")
        A("s_waitcnt lgkmcnt(0)")
        for r in range(3):
            for c in range(8):
                A(f"v_mfma_f32_16x16x32_bf16 {vS[r]}, {KF[c]}, {Q[r][c]}, {vS[r] if c else 0}")
        A("s_nop 15")

    def xl(op, x, tmp):
        for o in xlane(op, x, tmp):
            A("s_nop 1")
            A(o.text)

    for r in range(3):
        A(f"v_mov_b32 {vNM[r]}, 0xff800000")
    A(f"s_mov_b32 s{sT0}, 0")
    A("L_fb1:")
    load_k()
    A("s_waitcnt vmcnt(0)")
    for a in range(2):
        qk(a)
        for r in range(3):
            A(f"v_max3_f32 {vNM[r]}, {vNM[r]}, {vS[r][0]}, {vS[r][1]}")
            A(f"v_max3_f32 {vNM[r]}, {vNM[r]}, {vS[r][2]}, {vS[r][3]}")
    A(f"s_add_u32 s{sT0}, s{sT0}, 16384")
    A(f"s_cmp_lt_u32 s{sT0}, 262144")
    A("s_cbranch_scc1 L_fb1")
    for r in range(3):
        xl("v_max_f32", vNM[r], t[4])
        A(f"v_mul_f32 {vNM[r]}, {f2u(-C_SCALE):#x}, {vNM[r]}")
        A(f"v_mov_b32 {vL[r]}, 0")
    for r in range(3):
        for tt in range(16):
            for i in range(4):
                x = O[r][tt][i]
                A(f"v_mov_b32 {x}, 0" if x.f == "v" else f"v_accvgpr_write_b32 {x}, 0")
    A(f"s_mov_b32 s{sT0}, 0")
    A("L_fb2:")
    load_k()
    load_v()
    A("s_waitcnt vmcnt(0)")
    for a in range(2):
        qk(a)
        for r in range(3):
            S = vS[r]
            for i in range(4):
                A(f"v_fma_f32 {S[i]}, {S[i]}, s{sC}, {vNM[r]}")
            for i in range(4):
                A(f"v_exp_f32 {S[i]}, {S[i]}")
            A("s_nop 1")
            for i in range(4):
                A(f"v_add_f32 {vL[r]}, {vL[r]}, {S[i]}")
            for k in range(2):
                A(f"v_cvt_pk_bf16_f32 {Pf[r][2 * a + k]}, {S[2 * k]}, {S[2 * k + 1]}")
    A("s_nop 3")
    for tt in range(16):
        for s in range(2):
            base = rv0 if (tt & 1) == 0 else rv1
            off = 16384 + (tt >> 3) * 8192 + s * 4096 + ((tt & 7) >> 1) * 256
            A(f"ds_read_b64_tr_b16 {VF[tt & 1][0][2 * s:2 * s + 2]}, {base} offset:{off}")
        A("s_waitcnt lgkmcnt(0)")
        for r in range(3):
            A(f"v_mfma_f32_16x16x32_bf16 {O[r][tt]}, {VF[tt & 1][0]}, {Pf[r]}, {O[r][tt]}")
    A("s_nop 15")
    A(f"s_add_u32 s{sT0}, s{sT0}, 16384")
    A(f"s_cmp_lt_u32 s{sT0}, 262144")
    A("s_cbranch_scc1 L_fb2")
    for r in range(3):
        xl("v_add_f32", vL[r], t[4])
        A(f"v_rcp_f32 {vRL[r]}, {vL[r]}")
    A("s_nop 3")
    for T in range(8):
        for r in range(3):
            X, Y = O[r][2 * T], O[r][2 * T + 1]
            src = [X[i] for i in range(4)] + [Y[i] for i in range(4)]
            if X.f == "a":
                for i in range(8):
                    A(f"v_accvgpr_read_b32 {vX[i]}, {src[i]}")
                src = [vX[i] for i in range(8)]
            for i in range(8):
                A(f"v_mul_f32 {src[i]}, {src[i]}, {vRL[r]}")
            D = vS[(3 * T + r) % 8]
            for k in range(4):
                A(f"v_cvt_pk_bf16_f32 {D[k]}, {src[2 * k]}, {src[2 * k + 1]}")
            A("s_nop 1")
            A(f"v_permlane16_swap_b32 {D[0]}, {D[2]}")
            A(f"v_permlane16_swap_b32 {D[1]}, {D[3]}")
            A(f"buffer_store_dwordx4 {D}, {vST[r]}, s[{sO}:{sO + 3}], 0 offen offset:{64 * T}")
    A("s_waitcnt vmcnt(0)")
    return L


HEADER = """; GQA attention forward, B=8 Hq=16 Hkv=8 Sq=368 Sk=512 D=256, bf16 (generated by my gen/gen.py)
; whose sum exceeds 2^64 recomputes its rows with the true row maximum (L_fallback).
; @launch grid=(256,1,1) block=(256,1,1) lds=163840
.amdgcn_target "amdgcn-amd-amdhsa--gfx950"
.text
.globl {k}
.p2align 8
.type {k},@function
{k}:
"""

FOOTER = """L_end:
    s_endpgm
.section .rodata,"a"
.p2align 6
.amdhsa_kernel {k}
  .amdhsa_next_free_vgpr 512
  .amdhsa_next_free_sgpr 64
  .amdhsa_accum_offset 256
  .amdhsa_group_segment_fixed_size 0
  .amdhsa_kernarg_size 48
  .amdhsa_user_sgpr_count 2
  .amdhsa_user_sgpr_kernarg_segment_ptr 1
  .amdhsa_system_sgpr_workgroup_id_x 1
.end_amdhsa_kernel
"""


def emit(cfg):
    DBG[0] = cfg.dbg
    SPIN[0] = cfg.spin
    prog, info = build(cfg)
    s = HEADER.format(k=KNAME)
    for o in prog:
        s += (o.text if o.kind == "label" else "    " + o.text) + "\n"
    s += "    s_endpgm\nL_mainend:\n"
    for l in fallback(cfg):
        s += (l if l.endswith(":") else "    " + l) + "\n"
    s += FOOTER.format(k=KNAME)
    return s, info


if __name__ == "__main__":
    ap = argparse.ArgumentParser()
    ap.add_argument("-o", default="standalone__gqa_softmax__near_ridge.s")
    ap.add_argument("-v", action="store_true")
    ap.add_argument("opts", nargs="*")
    a = ap.parse_args()
    cfg = Cfg()
    cfg.verbose = a.v
    for kv in a.opts:
        k, v = kv.split("=", 1)
        old = getattr(cfg, k)
        if isinstance(old, bool):
            v = v in ("1", "true", "True")
        elif isinstance(old, int):
            v = int(v)
        elif isinstance(old, float):
            v = float(v)
        setattr(cfg, k, v.replace("+", " ") if isinstance(v, str) else v)
    s, info = emit(cfg)
    open(a.o, "w").write(s)
    print(info, len(s))
```

```python
import sys, math, argparse
sys.path.insert(0, __file__.rsplit("/", 1)[0])
from ir import *

KNAME = "standalone__gqa_softmax__near_ridge_kernel"
C_SCALE = math.log2(math.e) / 16.0


def f2u(x):
    import struct
    return struct.unpack("<I", struct.pack("<f", x))[0]


class Cfg:
    ldq = "nt"
    ldkv = "nt"
    st = "sc1"
    lat = 6
    age = 5
    sready = 4
    stamps = False
    dbg = False
    spin = -1
    spinwg = -1
    codepf = True
    force_fallback = False
    dma_phase = 0.0
    preflush = True


sQ, sK, sV, sO = 12, 16, 20, 24
sW1K = 28
sC = 29
sKoff = 30
sVoff = 31
sT0, sT1, sT2, sT3 = 32, 33, 34, 35
sW = 36
sThr = 37
sW8K = 38
sDBG = 40
vKR = [Reg("v", 1, 1), Reg("v", 2, 1), Reg("v", 3, 1)]
vVR = [[Reg("v", 4 + 3 * h + w, 1) for w in range(3)] for h in range(2)]
vDK = [Reg("v", 10, 1), Reg("v", 11, 1)]
vDV = [Reg("v", 12 + a, 1) for a in range(4)]
vST = [Reg("v", 16 + r, 1) for r in range(3)]
vNM = [Reg("v", 19 + r, 1) for r in range(3)]
vL = [Reg("v", 22 + r, 1) for r in range(3)]
vRL = [Reg("v", 25 + r, 1) for r in range(3)]
vT = Reg("v", 28, 12)
vS = [Reg("v", 40 + 4 * i, 4) for i in range(8)]
vP = [[[Reg("v", 72 + 24 * b + 8 * r + 4 * kc, 4) for kc in range(2)] for r in range(3)] for b in range(2)]
vX = Reg("v", 120, 8)
O = [[Reg("v", 128 + 4 * t, 4) for t in range(16)],
     [Reg("v", 192 + 4 * t, 4) for t in range(16)],
     [Reg("a", 4 * t, 4) for t in range(16)]]
preK = [[Reg("v", 128 + 32 * a + 4 * c, 4) for c in range(8)] for a in range(4)]
Q = [[Reg("a", 64 + 32 * r + 4 * c, 4) for c in range(8)] for r in range(3)]
KF = [Reg("a", 160 + 4 * c, 4) for c in range(8)]
NVB = 4
VF = [[Reg("a", 192 + 8 * b + 4 * kc, 4) for kc in range(2)] for b in range(NVB)]

SLOT = 16384
LDS_BYTES = 163840


def sn(i, n=1):
    return R("s", i, n)


def valu(text, reads=(), writes=(), tag=""):
    return Op(text, "valu", reads, writes, tag)


def salu(text, reads=(), writes=()):
    return Op(text, "salu", reads, writes)


def names(*regs):
    out = []
    for r in regs:
        out += r.names if isinstance(r, Reg) else [r]
    return out


def mfma(D, A, B, C=None):
    c = str(C) if C is not None else "0"
    op = Op(f"v_mfma_f32_16x16x32_bf16 {D}, {A}, {B}, {c}", "mfma",
            names(A, B) + (C.names if C is not None else []), D.names)
    op.meta["srcab"] = frozenset(names(A, B))
    op.meta["srcc"] = frozenset(C.names) if C is not None else frozenset()
    return op


def ds_k(dst, addr):
    w, off = divmod(addr, 65536)
    return Op(f"ds_read_b128 {dst}, {vKR[w]} offset:{off}", "ds", vKR[w].names, dst.names)


def ds_v(dst, h, addr):
    w, off = divmod(addr, 65536)
    return Op(f"ds_read_b64_tr_b16 {dst}, {vVR[h][w]} offset:{off}", "ds", vVR[h][w].names, dst.names)


def dma(vaddr, srd, soff, imm, pol):
    so = f"s{soff}" if soff is not None else "0"
    t = f"buffer_load_dwordx4 {vaddr}, s[{srd}:{srd + 3}], {so} offen"
    if imm:
        t += f" offset:{imm}"
    if pol:
        t += " " + pol
    t += " lds"
    return Op(t, "dma", vaddr.names + sn(srd, 4) + (sn(soff) if soff is not None else []) + ["m0"], [])


def set_m0(const):
    return salu(f"s_add_u32 m0, s{sW1K}, {const}", sn(sW1K), ["m0", "scc"])


class Unit:
    def __init__(self, kind, n):
        self.kind, self.n = kind, n
        self.slot = None
        self.dmas = []
        self.reads = []

    def make_dmas(self, cfg):
        ops = []
        base = self.slot * SLOT
        if self.kind == "K":
            so = salu(f"s_mov_b32 s{sKoff}, {self.n * 16384}", [], sn(sKoff))
            for a in range(2):
                for half in range(2):
                    d = dma(vDK[a], sK, sKoff, half * 256, cfg.ldkv)
                    d.pre = [set_m0(base + a * 8192 + half * 4096 - half * 256)]
                    ops.append(d)
        else:
            j, h = divmod(self.n, 2)
            so = salu(f"s_mov_b32 s{sVoff}, {j * 32768 + h * 256}", [], sn(sVoff))
            for a in range(4):
                d = dma(vDV[a], sV, sVoff, 0, cfg.ldkv)
                d.pre = [set_m0(base + a * 4096)]
                ops.append(d)
        ops[0].pre.insert(0, so)
        for d in ops:
            d.meta["unit"] = self
        self.dmas = ops
        return ops


def flat_dmas(ops):
    out = []
    for d in ops:
        out += d.pre
        out.append(salu("s_nop 0"))
        out.append(d)
        d.pre = []
    return out


def xlane(op, x, tmp):
    o = []
    o.append(valu(f"v_mov_b32 {tmp}, {x}", x.names, tmp.names))
    o.append(valu(f"v_permlane32_swap_b32 {x}, {tmp}", names(x, tmp), names(x, tmp)))
    o.append(valu(f"{op} {x}, {x}, {tmp}", names(x, tmp), x.names))
    o.append(valu(f"v_mov_b32 {tmp}, {x}", x.names, tmp.names))
    o.append(valu(f"v_permlane16_swap_b32 {x}, {tmp}", names(x, tmp), names(x, tmp)))
    o.append(valu(f"{op} {x}, {x}, {tmp}", names(x, tmp), x.names))
    return o


DBGMAP = {1: (2, 12), 2: (3, None), 3: (4, None), 4: (5, None), 8: (6, None), 12: (7, None), 16: (8, None),
          20: (9, 13), 21: (10, None), 22: (11, 14)}
DBG = [False]
SPIN = [-1]


def stamp(idx):
    if SPIN[0] >= 0:
        if idx != SPIN[0]:
            return []
        return [Op("s_memrealtime s[46:47]", "raw"), Op("s_waitcnt lgkmcnt(0)", "wait", meta={"lg_all": True, "fixed": True})]
    if DBG[0]:
        if idx not in DBGMAP:
            return []
        a, b = DBGMAP[idx]
        o = [Op("s_memrealtime s[44:45]", "raw")]
        if idx in (4, 20):
            o.append(Op(f"s_memtime s[{48 if idx == 4 else 50}:{49 if idx == 4 else 51}]", "raw"))
        o += [Op("s_waitcnt lgkmcnt(0)", "wait", meta={"lg_all": True, "fixed": True}),
              Op(f"v_writelane_b32 v127, s44, {a}", "raw")]
        if b is not None:
            o += [Op("s_not_b32 s44, s44", "raw"), Op(f"v_writelane_b32 v127, s44, {b}", "raw")]
        if idx == 20:
            o += [Op("s_sub_u32 s44, s50, s48", "raw"), Op(f"v_writelane_b32 v127, s44, 15", "raw")]
        return o
    return [Op("s_memrealtime s[44:45]", "raw"), Op("s_waitcnt lgkmcnt(0)", "wait", meta={"lg_all": True, "fixed": True}),
            Op(f"v_writelane_b32 v127, s44, {idx}", "raw")]


def prologue(cfg, units):
    P = []
    A = P.append
    raw = lambda t: A(Op(t, "raw"))
    raw("s_cmp_ge_u32 s2, 256")
    raw("s_cbranch_scc1 L_end")
    raw("s_load_dwordx4 s[4:7], s[0:1], 0")
    raw("s_load_dwordx4 s[8:11], s[0:1], 16")
    if cfg.stamps:
        raw(f"s_load_dwordx2 s[40:41], s[0:1], {32 if cfg.dbg else 40}")
        raw("s_memrealtime s[46:47]")
        raw("v_mov_b32 v127, 0")
    t = vT
    lane, wv, common, cpos, f_w = t[0], t[1], t[2], t[3], t[4]
    A(valu(f"v_lshrrev_b32 {wv}, 6, v0", ["v0"], wv.names))
    A(valu(f"v_and_b32 {lane}, 63, v0", ["v0"], lane.names))
    A(valu(f"v_readfirstlane_b32 s{sW}, {wv}", wv.names, sn(sW)))
    A(salu(f"s_and_b32 s{sT0}, s2, 7", [], sn(sT0)))
    A(salu(f"s_lshr_b32 s{sT1}, s2, 5", [], sn(sT1)))
    A(salu(f"s_lshl_b32 s{sT1}, s{sT1}, 3", [], sn(sT1)))
    A(salu(f"s_add_u32 s{sT0}, s{sT0}, s{sT1}", [], sn(sT0)))
    A(salu(f"s_bfe_u32 s{sT1}, s2, 0x20003", [], sn(sT1)))
    A(salu(f"s_mul_i32 s{sT2}, s{sT0}, {736 * 512}", [], sn(sT2)))
    A(salu(f"s_mul_i32 s{sT1}, s{sT1}, {184 * 512}", [], sn(sT1)))
    A(salu(f"s_add_u32 s{sT2}, s{sT2}, s{sT1}", [], sn(sT2)))
    A(salu(f"s_lshl_b32 s{sT0}, s{sT0}, 18", [], sn(sT0)))
    A(valu(f"v_bfe_u32 {common}, {lane}, 2, 2", lane.names, common.names))
    A(valu(f"v_lshlrev_b32 {common}, 9, {common}", common.names, common.names))
    A(valu(f"v_lshrrev_b32 {t[5]}, 4, {lane}", lane.names, t[5].names))
    A(valu(f"v_lshl_add_u32 {common}, {t[5]}, 6, {common}", names(t[5], common), common.names))
    A(valu(f"v_and_b32 {cpos}, 3, {lane}", lane.names, cpos.names))
    A(valu(f"v_lshlrev_b32 {t[6]}, 1, {wv}", wv.names, t[6].names))
    A(valu(f"v_mov_b32 {t[7]}, 0x78", [], t[7].names))
    A(valu(f"v_bfe_u32 {f_w}, {t[7]}, {t[6]}, 2", names(t[7], t[6]), f_w.names))
    A(valu(f"v_xor_b32 {f_w}, {f_w}, {cpos}", names(f_w, cpos), f_w.names))
    A(valu(f"v_lshl_add_u32 {t[8]}, {wv}, 11, {common}", names(wv, common), t[8].names))
    A(valu(f"v_lshl_add_u32 {vDK[0]}, {f_w}, 4, {t[8]}", names(f_w, t[8]), vDK[0].names))
    A(valu(f"v_add_u32 {vDK[1]}, 8192, {vDK[0]}", vDK[0].names, vDK[1].names))
    A(salu(f"s_lshl_b32 s{sW1K}, s{sW}, 10", sn(sW), sn(sW1K)))
    A(salu(f"s_lshl_b32 s{sW8K}, s{sW}, 13", sn(sW), sn(sW8K)))
    A(Op("s_waitcnt lgkmcnt(0)", "wait", meta={"fixed": True}))
    if cfg.stamps:
        P += stamp(23)
    for (srd, p, off, nrec) in ((sK, 6, sT0, 262144), (sQ, 4, sT2, 184 * 512), (sV, 8, sT0, 262144), (sO, 10, sT2, 184 * 512)):
        A(salu(f"s_add_u32 s{srd}, s{p}, s{off}", [], sn(srd)))
        A(salu(f"s_addc_u32 s{srd + 1}, s{p + 1}, 0", [], sn(srd + 1)))
        A(salu(f"s_mov_b32 s{srd + 2}, {nrec}", [], sn(srd + 2)))
        A(salu(f"s_mov_b32 s{srd + 3}, 0x00020000", [], sn(srd + 3)))
        if srd == sK:
            P += flat_dmas(units["K0"].make_dmas(cfg))
    if cfg.stamps:
        raw(f"s_mov_b32 s42, {64 if cfg.dbg else 0x1000000}")
        raw("s_mov_b32 s43, 0x00020000")
        if cfg.dbg:
            raw("v_writelane_b32 v127, s46, 1")
            raw("s_not_b32 s46, s46")
        raw("v_writelane_b32 v127, s46, 0")
    vq = [[Reg("v", 72 + 4 * r + rg, 1) for rg in range(4)] for r in range(3)]
    A(valu(f"v_mul_u32_u24 {t[9]}, {48 * 512}, {wv}", wv.names, t[9].names))
    A(valu(f"v_add_u32 {t[9]}, {t[9]}, {common}", names(t[9], common), t[9].names))
    fr = (0, 2, 3, 1)
    qd = [[], [], []]

    def q_dmas(r):
        for rg in range(4):
            if r == 0:
                A(valu(f"v_xor_b32 {t[10]}, {fr[rg]}, {cpos}", cpos.names, t[10].names))
                A(valu(f"v_lshl_add_u32 {vq[0][rg]}, {t[10]}, 4, {t[9]}", names(t[10], t[9]), vq[0][rg].names))
                if rg:
                    A(valu(f"v_add_u32 {vq[0][rg]}, {rg * 2048}, {vq[0][rg]}", vq[0][rg].names, vq[0][rg].names))
            else:
                A(valu(f"v_add_u32 {vq[r][rg]}, {r * 8192}, {vq[0][rg]}", vq[0][rg].names, vq[r][rg].names))
        for half in range(2):
            for rg in range(4):
                d = dma(vq[r][rg], sQ, None, half * 256, cfg.ldq)
                A(salu(f"s_add_u32 m0, s{sW8K}, {65536 + r * 32768 + half * 4096 + rg * 1024 - half * 256}", sn(sW8K), ["m0", "scc"]))
                A(salu("s_nop 0"))
                A(d)
                qd[r].append(d)

    q_dmas(0)
    P += flat_dmas(units["K1"].make_dmas(cfg))
    if cfg.codepf:
        raw("s_getpc_b64 s[44:45]")
        A(valu(f"v_lshlrev_b32 {t[10]}, 7, v0", ["v0"], t[10].names))
        A(Op(f"global_load_dword {vX[0]}, {t[10]}, s[44:45]", "vload", t[10].names, vX[0].names))
        A(valu(f"v_add_u32 {t[10]}, 32768, {t[10]}", t[10].names, t[10].names))
        A(valu(f"v_min_u32 {t[10]}, L_mainend - L_pfbase, {t[10]}", t[10].names, t[10].names))
        A(Op(f"global_load_dword {vX[1]}, {t[10]}, s[44:45]", "vload", t[10].names, vX[1].names))
        P.insert(P.index(next(o for o in P if o.text.startswith("s_getpc"))) + 1, Op("L_pfbase:", "label"))
    q_dmas(1)
    q_dmas(2)
    P += flat_dmas(units["K2"].make_dmas(cfg))
    A(valu(f"v_and_b32 {t[10]}, 1, {wv}", wv.names, t[10].names))
    A(valu(f"v_lshlrev_b32 {t[10]}, 1, {t[10]}", t[10].names, t[10].names))
    A(valu(f"v_xor_b32 {t[10]}, {t[10]}, {cpos}", names(t[10], cpos), t[10].names))
    A(valu(f"v_lshl_add_u32 {vDV[0]}, {t[10]}, 4, {t[8]}", names(t[10], t[8]), vDV[0].names))
    for a in range(1, 4):
        A(valu(f"v_add_u32 {vDV[a]}, {8192 * a}, {vDV[0]}", vDV[0].names, vDV[a].names))
    P += flat_dmas(units["V0"].make_dmas(cfg))
    if cfg.stamps:
        P += stamp(24)
    g = t[5]
    A(valu(f"v_bfe_u32 {t[6]}, {lane}, 2, 2", lane.names, t[6].names))
    A(valu(f"v_lshlrev_b32 {t[10]}, 1, {t[6]}", t[6].names, t[10].names))
    A(valu(f"v_bfe_u32 {t[10]}, {t[7]}, {t[10]}, 2", names(t[7], t[10]), t[10].names))
    A(valu(f"v_xor_b32 {t[10]}, {t[10]}, {g}", names(t[10], g), t[10].names))
    A(valu(f"v_lshlrev_b32 {t[10]}, 4, {t[10]}", t[10].names, t[10].names))
    A(valu(f"v_lshl_add_u32 {t[10]}, {t[6]}, 10, {t[10]}", names(t[6], t[10]), t[10].names))
    A(valu(f"v_lshl_add_u32 {vKR[0]}, {cpos}, 6, {t[10]}", names(cpos, t[10]), vKR[0].names))
    A(valu(f"v_add_u32 {vKR[1]}, 0x10000, {vKR[0]}", vKR[0].names, vKR[1].names))
    A(valu(f"v_add_u32 {vKR[2]}, 0x20000, {vKR[0]}", vKR[0].names, vKR[2].names))
    A(valu(f"v_lshlrev_b32 {t[10]}, 10, {g}", g.names, t[10].names))
    A(valu(f"v_lshl_add_u32 {t[10]}, {t[6]}, 6, {t[10]}", names(t[6], t[10]), t[10].names))
    A(valu(f"v_lshl_add_u32 {t[10]}, {cpos}, 3, {t[10]}", names(cpos, t[10]), t[10].names))
    A(valu(f"v_and_b32 {t[11]}, 1, {g}", g.names, t[11].names))
    A(valu(f"v_lshl_add_u32 {vVR[0][0]}, {t[11]}, 5, {t[10]}", names(t[11], t[10]), vVR[0][0].names))
    A(valu(f"v_xor_b32 {vVR[1][0]}, 32, {vVR[0][0]}", vVR[0][0].names, vVR[1][0].names))
    for h in range(2):
        for w in (1, 2):
            A(valu(f"v_add_u32 {vVR[h][w]}, {w * 65536}, {vVR[h][0]}", vVR[h][0].names, vVR[h][w].names))
    A(valu(f"v_and_b32 {t[10]}, 15, {lane}", lane.names, t[10].names))
    A(valu(f"v_mad_u32_u24 {t[10]}, {wv}, 48, {t[10]}", names(wv, t[10]), t[10].names))
    A(valu(f"v_lshlrev_b32 {t[10]}, 9, {t[10]}", t[10].names, t[10].names))
    A(valu(f"v_lshl_add_u32 {t[10]}, {t[11]}, 5, {t[10]}", names(t[11], t[10]), t[10].names))
    A(valu(f"v_lshrrev_b32 {t[11]}, 1, {g}", g.names, t[11].names))
    A(valu(f"v_lshl_add_u32 {vST[0]}, {t[11]}, 4, {t[10]}", names(t[11], t[10]), vST[0].names))
    A(valu(f"v_add_u32 {vST[1]}, 8192, {vST[0]}", vST[0].names, vST[1].names))
    A(valu(f"v_add_u32 {vST[2]}, 16384, {vST[0]}", vST[0].names, vST[2].names))
    A(valu(f"v_add_u32 {vX[2]}, s{sW8K}, {vKR[1]}", vKR[1].names + sn(sW8K), vX[2].names))
    A(valu(f"v_add_u32 {vX[3]}, s{sW8K}, {vKR[2]}", vKR[2].names + sn(sW8K), vX[3].names))
    A(salu(f"s_mov_b32 s{sC}, {f2u(C_SCALE):#x}", [], sn(sC)))
    A(salu(f"s_mov_b32 s{sThr}, {f2u(2.0 ** 64 if not cfg.force_fallback else 1.0):#x}", [], sn(sThr)))
    for r in range(3):
        A(valu(f"v_mov_b32 {vL[r]}, 0", [], vL[r].names))
    return P, qd


def q_reads(r, qd):
    ops = []
    for c in range(8):
        base = vX[2] if r < 2 else vX[3]
        off = (r if r < 2 else 0) * 32768 + (c >> 2) * 4096 + (c & 3) * 256
        o = Op(f"ds_read_b128 {Q[r][c]}, {base} offset:{off}", "ds", base.names, Q[r][c].names)
        o.meta["need_vm"] = qd[r][(c >> 2) * 4:(c >> 2) * 4 + 4]
        ops.append(o)
    return ops


def build(cfg):
    units = {}
    for n in range(16):
        units[f"K{n}"] = Unit("K", n)
        units[f"V{n}"] = Unit("V", n)
    units["K0"].slot, units["K1"].slot, units["K2"].slot, units["V0"].slot = 0, 1, 2, 3

    pro, qd = prologue(cfg, units)

    M = []
    fixed = {}
    dsq = []
    vq = []
    dmaq = []
    sbuf_last_reader = [None] * 8
    sbuf_ctr = [0]
    chain_guard = []
    pv_need = []
    Pcvt = {}
    negm_ready = {}

    def softmax_ops(tile, r, a, S, ready_gap):
        b = tile & 1
        dst = vP[b][r][a >> 1]
        fm, ex, ad, cv = [], [], [], []
        for i in range(4):
            o = valu(f"v_fma_f32 {S[i]}, {S[i]}, s{sC}, {vNM[r]}", names(S[i], vNM[r]) + sn(sC), S[i].names)
            o.earliest = ready_gap
            if r in negm_ready:
                o.deps.append((negm_ready[r], 0))
            fm.append(o)
        for i in range(4):
            o = Op(f"v_exp_f32 {S[i]}, {S[i]}", "trans", S[i].names, S[i].names)
            o.deps.append((fm[i], 0))
            ex.append(o)
        for i in range(4):
            o = valu(f"v_add_f32 {vL[r]}, {vL[r]}, {S[i]}", names(vL[r], S[i]), vL[r].names)
            o.deps.append((ex[i], 1))
            ad.append(o)
        for k in range(2):
            d = dst[2 * (a & 1) + k]
            o = valu(f"v_cvt_pk_bf16_f32 {d}, {S[2 * k]}, {S[2 * k + 1]}", names(S[2 * k], S[2 * k + 1]), d.names)
            o.deps += [(ex[2 * k], 1), (ex[2 * k + 1], 1)]
            o.earliest = pbuf_free.get(b, -1)
            cv.append(o)
        Pcvt[(tile, r, a)] = cv
        order = [fm[0], fm[1], ex[0], fm[2], ex[1], fm[3], ad[0], ex[2], ad[1], cv[0], ex[3], ad[2], ad[3], cv[1]]
        vq.extend(order)
        last_add[r] = ad[3]
        return ad + cv

    pbuf_free = {}
    last_add = {}

    def chain(tile, r, a, frags):
        si = sbuf_ctr[0] % 8
        sbuf_ctr[0] += 1
        S = vS[si]
        start = len(M)
        if sbuf_last_reader[si]:
            chain_guard.append((start, sbuf_last_reader[si]))
        for c in range(8):
            M.append(mfma(S, frags[c], Q[r][c], S if c else None))
        return si, S, len(M) - 1

    vbuf_ctr = [0]
    vbuf_free = [-1] * NVB

    def group(tile, t, first):
        b = tile & 1
        vb = vbuf_ctr[0] % NVB
        vbuf_ctr[0] += 1
        u = units[f"V{2 * tile + (t >> 3)}"]
        tt = t & 7
        start = len(M)
        for kc in range(2):
            for s in range(2):
                a = 2 * kc + s
                dst = VF[vb][kc][2 * s:2 * s + 2]
                rd = ("V", dst, tt & 1, u, a * 4096 + (tt >> 1) * 256, start + kc, vbuf_free[vb])
                dsq.append(rd)
        for r in range(3):
            for kc in range(2):
                C = O[r][t] if not (first and kc == 0) else None
                M.append(mfma(O[r][t], VF[vb][kc], vP[b][r][kc], C))
                pv_need.append((len(M) - 1, (tile, r, kc)))
        vbuf_free[vb] = len(M) - 1
        pbuf_free[b] = len(M) - 1
        return len(M) - 1

    bar = {}

    def barrier(name, need_units=(), need_lg=(), need_vm=()):
        o = Op("s_barrier", "barrier")
        o.meta["need_vm"] = [d for u in need_units for d in units[u].dmas] + list(need_vm)
        o.meta["need_lgkm"] = list(need_lg)
        o.meta["name"] = name
        o.meta["hoist_wait"] = False
        bar[name] = o
        return o

    blk = []
    blk.append(barrier("a", ["K0", "K1"], need_vm=qd[0]))
    bar["a"].gap = -1
    if cfg.stamps:
        blk += stamp(1)
    q0 = q_reads(0, qd)
    blk += q0
    prek = []
    for a in range(4):
        u = units[f"K{a >> 1}"]
        for c in range(8):
            o = ds_k(preK[a][c], u.slot * SLOT + (a & 1) * 8192 + (c >> 2) * 4096 + (c & 3) * 256)
            o.meta["unit"] = u
            o.meta["bar"] = bar["a"]
            u.reads.append(o)
            prek.append(o)
    blk += prek[:8]
    blk.append(barrier("b", need_lg=q0))
    units["K3"].slot, units["V1"].slot = 4, 5
    d3 = units["K3"].make_dmas(cfg) + units["V1"].make_dmas(cfg)
    for d in d3:
        d.meta["bar"] = bar["b"]
    blk += flat_dmas(d3)
    blk += prek[8:]
    fixed[-1] = blk

    for r in range(3):
        if r > 0:
            blk = []
            qr = q_reads(r, qd)
            blk += qr
            if r == 1:
                blk.append(barrier("c", need_lg=qr))
                units["K4"].slot, units["V2"].slot = 6, 7
                d4 = units["K4"].make_dmas(cfg) + units["V2"].make_dmas(cfg)
                for d in d4:
                    d.meta["bar"] = bar["c"]
                blk += flat_dmas(d4)
            else:
                blk.append(barrier(0, ["K2", "V0"], need_lg=qr + prek))
                bar[0].gap = len(M) - 1
            if cfg.stamps:
                blk += stamp(1 + r)
            fixed[len(M) - 1] = blk
        tiles = []
        for a in range(4):
            tiles.append(chain(0, r, a, preK[a]))
            if a == 1:
                S0, S1 = tiles[0][1], tiles[1][1]
                rdy = tiles[1][2] + cfg.sready
                m = vNM[r]
                tmp = vT[r]
                ops = [valu(f"v_max3_f32 {m}, {S0[0]}, {S0[1]}, {S0[2]}", names(S0[0], S0[1], S0[2]), m.names),
                       valu(f"v_max3_f32 {tmp}, {S0[3]}, {S1[0]}, {S1[1]}", names(S0[3], S1[0], S1[1]), tmp.names),
                       valu(f"v_max3_f32 {m}, {m}, {S1[2]}, {S1[3]}", names(m, S1[2], S1[3]), m.names),
                       valu(f"v_max_f32 {m}, {m}, {tmp}", names(m, tmp), m.names)]
                ops += xlane("v_max_f32", m, tmp)
                ops.append(valu(f"v_mul_f32 {m}, -{C_SCALE!r}, {m}".replace(f"-{C_SCALE!r}", f"{f2u(-C_SCALE):#x}"), m.names, m.names))
                prev = None
                for o in ops:
                    o.earliest = rdy
                    if prev is not None:
                        o.deps.append((prev, 1 if "permlane" in o.text else 0))
                    prev = o
                vq.extend(ops)
                negm_ready[r] = ops[-1]
                for k in range(2):
                    si, S, end = tiles[k]
                    sbuf_last_reader[si] = softmax_ops(0, r, k, S, end + cfg.sready)
            elif a > 1:
                si, S, end = tiles[a]
                sbuf_last_reader[si] = softmax_ops(0, r, a, S, end + cfg.sready)
        for o in vq:
            o.meta.setdefault("pre", len(M) - 1)
    negm_ready.clear()

    kf_free = [bar[0].gap] * 8
    start_int = {}
    ch2_first = {}
    grp_end = {}
    for j in range(8):
        for q in range(4):
            n = 2 * j + (q >> 1)
            if q % 2 == 0:
                start_int[n] = len(M)
            if j < 7:
                order = "cGcGcGG"
                if (j == 0 and q == 0) or (j == 6 and q == 3):
                    order = "cccGGGG"
                u = units[f"K{n + 2}"]
                r = 0
                gi = 0
                for ch in order:
                    if ch == "c":
                        st = len(M)
                        if r == 0:
                            for c in range(8):
                                dsq.append(("K", KF[c], None, u, (q & 1) * 8192 + (c >> 2) * 4096 + (c & 3) * 256, st + c, kf_free[c]))
                        si, S, end = chain(j + 1, r, q, KF)
                        if r == 2:
                            ch2_first[(j, q)] = st
                            for c in range(8):
                                kf_free[c] = st + c
                        sbuf_last_reader[si] = softmax_ops(j + 1, r, q, S, end + cfg.sready)
                        r += 1
                    else:
                        grp_end[(j, 4 * q + gi)] = group(j, 4 * q + gi, j == 0)
                        gi += 1
            else:
                for gi in range(4):
                    grp_end[(j, 4 * q + gi)] = group(j, 4 * q + gi, False)
    NM = len(M)

    for n in range(1, 15):
        j, q = divmod(2 * n - 1, 4)
        g = ch2_first[(j, q)] - 1
        if n == 14:
            g = start_int[14] - cfg.lat - 10
        o = Op("s_barrier", "barrier")
        o.gap = g
        o.meta["name"] = n
        bar[n] = o

    def vis_bar(u):
        if u.kind == "K":
            return bar[u.n - 2]
        return bar[min(u.n, 14)]

    free_at = {}
    free_at[8] = 0
    free_at[9] = 0
    free_at[0] = 0
    free_at[1] = 0
    release = {}
    for n in range(2, 16):
        release[f"K{n}"] = n - 1
    for n in range(16):
        release[f"V{n}"] = n + 2
    for name in ("K2", "V0", "K3", "V1", "K4", "V2"):
        free_at[units[name].slot] = release[name]
    pending = []
    for n in range(3, 16):
        if n + 2 < 16:
            pending.append(f"K{n + 2}")
        pending.append(f"V{n}")
    issue_win = {}
    win_load = {}
    for name in pending:
        u = units[name]
        slot = min(free_at, key=lambda s: (free_at[s], s))
        w = free_at[slot]
        prevw = max(issue_win.values()) if issue_win else 0
        w = max(w, prevw)
        cap = lambda x: 4 if x == 0 else 2
        while win_load.get(w, 0) >= cap(w):
            w += 1
        u.slot = slot
        issue_win[name] = w
        win_load[w] = win_load.get(w, 0) + 1
        free_at[slot] = release[name]
        assert w < vis_bar(u).meta["name"], (name, w)
        for d in u.make_dmas(cfg):
            d.meta["bar"] = bar[w]
            d.meta["win"] = w
            dmaq.append(d)
    for n in range(1, 15):
        need = [f"V{n}"] + ([f"K{n + 2}"] if n + 2 < 16 else []) + (["V15"] if n == 14 else [])
        bar[n].meta["need_vm"] = [d for x in need for d in units[x].dmas]
        bar[n].meta["hoist_wait"] = True

    reads = []
    for (kind, dst, h, u, off, cons, bfree) in dsq:
        addr = u.slot * SLOT + off
        o = ds_k(dst, addr) if kind == "K" else ds_v(dst, h, addr)
        vb = vis_bar(u)
        o.earliest = max(bfree, vb.gap + 1)
        o.deadline = cons - cfg.lat
        o.meta.update(unit=u, bar=vb, cons=cons)
        u.reads.append(o)
        reads.append(o)
    reads.sort(key=lambda o: o.meta["cons"])
    nxt = 1 << 30
    for o in reversed(reads):
        g = min(o.deadline, nxt - 2)
        if g < o.earliest:
            g = min(o.deadline, nxt - 1)
        if g < o.earliest:
            g = o.earliest
        o.gap = g
        nxt = g
    prev = -10
    late = 0
    for o in reads:
        g = max(o.gap, o.earliest, prev + 1)
        g = min(g, o.meta["cons"] - 2)
        assert g >= o.earliest and g >= prev, (o, g, o.earliest, prev)
        if g > o.deadline:
            late += 1
        o.gap = g
        prev = g
    gap_ds = {}
    for o in reads:
        gap_ds.setdefault(o.gap, []).append(o)

    fin = []
    chk_prev = None
    for r in range(3):
        ops = xlane("v_add_f32", vL[r], vT[r])
        prev = last_add[r]
        for o in ops:
            o.deps.append((prev, 1 if "permlane" in o.text else 0))
            prev = o
        rc = Op(f"v_rcp_f32 {vRL[r]}, {vL[r]}", "trans", vL[r].names, vRL[r].names)
        rc.deps.append((prev, 0))
        fin.append((ops, rc))
    for k in range(6):
        for r in range(3):
            vq.append(fin[r][0][k])
    mx = valu(f"v_max3_f32 {vT[3]}, {vL[0]}, {vL[1]}, {vL[2]}", names(*vL), vT[3].names)
    mx.deps += [(fin[r][0][-1], 0) for r in range(3)]
    cmp_ = valu(f"v_cmp_lt_f32 vcc, s{sThr}, {vT[3]}", vT[3].names + sn(sThr), ["svcc"])
    cmp_.deps.append((mx, 0))
    vq += [mx, cmp_] + [fin[r][1] for r in range(3)]
    br = Op("s_cbranch_vccnz L_fallback", "branch", ["svcc"], [])
    br.deps.append((cmp_, 2))
    tq = 0
    tmp8 = [Reg("v", 72, 8), Reg("v", 80, 8), Reg("v", 88, 8)]
    stores = []
    for T in range(8):
        rdy = grp_end[(7, 2 * T + 1)] + cfg.sready
        for r in range(3):
            X, Y = O[r][2 * T], O[r][2 * T + 1]
            src = [X[i] for i in range(4)] + [Y[i] for i in range(4)]
            ops = []
            if X.f == "a":
                tb = tmp8[T % 3]
                rd = []
                for i in range(8):
                    o = valu(f"v_accvgpr_read_b32 {tb[i]}, {src[i]}", src[i].names, tb[i].names)
                    o.earliest = max(rdy, pbuf_free[0])
                    if T >= 3:
                        o.deps += [(x, 0) for x in tmp8_users[T - 3]]
                    rd.append(o)
                ops += rd
                src = [tb[i] for i in range(8)]
            mu = []
            for i in range(8):
                o = valu(f"v_mul_f32 {src[i]}, {src[i]}, {vRL[r]}", names(src[i], vRL[r]), src[i].names)
                o.earliest = rdy
                o.deps.append((fin[r][1], 1))
                if X.f == "a":
                    o.deps.append((rd[i], 0))
                mu.append(o)
            D = vS[tq % 8]
            cv = []
            for k in range(4):
                o = valu(f"v_cvt_pk_bf16_f32 {D[k]}, {src[2 * k]}, {src[2 * k + 1]}", names(src[2 * k], src[2 * k + 1]), D[k].names)
                o.deps += [(mu[2 * k], 0), (mu[2 * k + 1], 0)]
                o.deps += [(x, 0) for x in sbuf_last_reader[tq % 8]]
                cv.append(o)
            if X.f == "a":
                if T == 0:
                    tmp8_users = {}
                tmp8_users[T] = cv
            sw = []
            for k in range(2):
                o = valu(f"v_permlane16_swap_b32 {D[k]}, {D[k + 2]}", names(D[k], D[k + 2]), names(D[k], D[k + 2]))
                o.deps += [(cv[k], 0), (cv[k + 2], 0), (cv[3], 0)]
                sw.append(o)
            stt = f"buffer_store_dwordx4 {D}, {vST[r]}, s[{sO}:{sO + 3}], 0 offen offset:{64 * T}"
            if cfg.st:
                stt += " " + cfg.st
            so = Op(stt, "vstore", D.names + vST[r].names + sn(sO, 4), [])
            so.meta["data"] = frozenset(D.names)
            so.deps += [(sw[0], 0), (sw[1], 0), (br, 0)]
            sbuf_last_reader[tq % 8] = [so]
            tq += 1
            ops += mu + cv + sw + [so]
            stores.append(so)
            vq += ops

    gap_dma = {}
    bywin = {}
    for d in dmaq:
        bywin.setdefault(d.meta["win"], []).append(d)
    for w, ds_ in bywin.items():
        g0 = bar[w].gap + 3
        g1 = bar[w + 1].gap - 2
        cand = [g for g in range(g0, g1) if g not in gap_ds]
        step = len(cand) / len(ds_)
        last = -10
        for i, d in enumerate(ds_):
            k = int(i * step + (cfg.dma_phase * step))
            g = cand[min(k, len(cand) - 1)]
            while g <= last + 2 or g in gap_ds:
                g += 1
            gap_dma[g] = d
            d.gap = g
            last = g

    placed = set()
    gaps = {g: {"s": [], "v": []} for g in range(-1, NM)}
    for n in range(1, 15):
        gaps[bar[n].gap]["s"].append(bar[n])
    for g, d in gap_dma.items():
        pre = d.pre
        d.pre = []
        gaps[g - 1]["s"].append(pre[-1])
        if len(pre) > 1:
            gaps[g - 2]["s"].append(pre[0])

    def ready(o, g):
        if o.earliest > g:
            return False
        for (d, k) in o.deps:
            if d.gap is None or d.gap + k > g:
                return False
        return True

    queue = list(vq)
    guard_at = {}
    for (idx, ops) in chain_guard:
        guard_at.setdefault(idx - 1, []).extend(ops)
    for (idx, key) in pv_need:
        tile, r, kc = key
        guard_at.setdefault(idx - 2, []).extend(Pcvt[(tile, r, 2 * kc)] + Pcvt[(tile, r, 2 * kc + 1)])
    overflow = 0
    br_placed = False

    def place(o, g):
        o.gap = g
        gaps[g]["v"].append(o)
        queue.remove(o)

    def force(o, g):
        nonlocal overflow
        if o.gap is not None:
            return
        for (d, k) in o.deps:
            if d.gap is None:
                force(d, g)
        assert o.earliest <= g, (o, g)
        overflow += 1
        place(o, g)

    for g in range(0, NM):
        cap = 2
        if g in gap_ds:
            for o in gap_ds[g]:
                gaps[g]["v"].append(o)
            cap = 1 if len(gap_ds[g]) == 1 else 0
            mem = True
        elif g in gap_dma:
            gaps[g]["v"].append(gap_dma[g])
            cap = 0
            mem = True
        else:
            mem = False
        if not br_placed and ready(br, g):
            br.gap = g
            gaps[g]["s"].append(br)
            br_placed = True
        window = queue[:80]
        if not mem:
            st_ = next((o for o in window if o.kind == "vstore" and all(d.gap is not None and d.gap < g for d, k in o.deps)), None)
            ex = next((o for o in window if o.kind == "trans" and ready(o, g)), None)
            if st_ is not None:
                place(st_, g)
                cap = 0
            elif ex is not None:
                place(ex, g)
                cap = 0
        while cap > 0:
            o = next((o for o in queue[:80] if o.kind == "valu" and ready(o, g)), None)
            if o is None:
                break
            place(o, g)
            cap -= 1
        for o in guard_at.get(g, []):
            force(o, g)
        if g in fixed and cfg.preflush:
            for o in list(queue):
                if o.meta.get("pre") is not None and o.meta["pre"] <= g:
                    place(o, g)
    tail = []
    if not br_placed:
        raise SystemExit("branch not placed")
    rest = list(queue)
    for o in rest:
        o.gap = NM
        tail.append(o)

    prog = list(pro)
    for o in fixed[-1]:
        o.gap = -1
    prog += fixed[-1]
    for g in range(NM):
        M[g].gap = g
        prog.append(M[g])
        prog += gaps[g]["s"]
        prog += gaps[g]["v"]
        if g in fixed:
            for o in fixed[g]:
                o.gap = g
            prog += fixed[g]
        if cfg.stamps and g + 1 in start_int.values():
            n = [k for k, v in start_int.items() if v == g + 1][0]
            prog += stamp(4 + n)
    if cfg.stamps:
        prog += stamp(20)
    prog += tail
    if cfg.stamps:
        prog += stamp(21)
        prog.append(Op("s_waitcnt vmcnt(0)", "wait", meta={"fixed": True}))
        prog += stamp(22)
        prog.append(Op("s_lshl_b32 s44, s2, 8", "raw"))
        prog.append(Op("v_add_u32 v126, s44, v0", "raw"))
        prog.append(Op("v_lshlrev_b32 v126, 2, v126", "raw"))
        if cfg.spin >= 0:
            if cfg.spinwg >= 0:
                prog.append(Op(f"s_cmp_lg_u32 s2, {cfg.spinwg}", "raw"))
                prog.append(Op("s_cbranch_scc1 L_end", "raw"))
            prog.append(Op("L_spin:", "label"))
            prog.append(Op("s_memrealtime s[44:45]", "raw"))
            prog.append(Op("s_waitcnt lgkmcnt(0)", "raw"))
            prog.append(Op("s_sub_u32 s44, s44, s46", "raw"))
            prog.append(Op("s_cmp_lt_u32 s44, 5000", "raw"))
            prog.append(Op("s_cbranch_scc1 L_spin", "raw"))
        elif cfg.dbg:
            prog.append(Op("v_lshlrev_b32 v126, 2, v0", "raw"))
            prog.append(Op("buffer_atomic_umax v127, v126, s[40:43], 0 offen", "raw"))
        else:
            prog.append(Op("buffer_store_dword v127, v126, s[40:43], 0 offen", "raw"))

    for o in prog:
        if o.kind == "mfma":
            older = [x for x in reads if x.gap <= o.gap - 1 - cfg.age and x.gap > o.gap - 40]
            o.meta["cover"] = older
    prog = insert_waits_cover(prog)
    prog, pads = fix_hazards(prog, verbose=cfg.verbose)
    verify_lds(prog, units)
    est = estimate_cycles([o for o in prog if o.gap is not None and o.gap >= 0 or o.kind in ("wait", "salu")])
    info = dict(NM=NM, late=late, overflow=overflow, pads=pads, est=est, n=len(prog), tail=len(tail),
                waits=sum(1 for o in prog if o.kind == "wait"))
    return prog, info


def insert_waits_cover(prog):
    pend = set()
    for o in prog:
        if o.kind == "ds":
            pend |= set(o.writes)
        if o.kind == "mfma" and (o.reads & pend):
            cov = o.meta.get("cover", [])
            o.meta["need_lgkm"] = cov
            for x in cov:
                pend -= set(x.writes)
            pend -= set(o.reads)
    return insert_waits(prog)


def verify_lds(prog, units):
    pos = {id(o): i for i, o in enumerate(prog)}
    bars = [o for o in prog if o.kind == "barrier"]
    occ = {}
    for u in units.values():
        occ.setdefault(u.slot, []).append(u)
        for rd in u.reads:
            b = rd.meta["bar"]
            assert pos[id(b)] < pos[id(rd)], ("read before barrier", u.kind, u.n)
            for d in u.dmas:
                assert d.meta["vm_idx"] < b.meta["vm_done_at"], ("dma not waited", u.kind, u.n)
    for s, us in occ.items():
        us.sort(key=lambda u: pos[id(u.dmas[0])])
        for a, b in zip(us, us[1:]):
            first = min(pos[id(d)] for d in b.dmas)
            ok = False
            for br in bars:
                if pos[id(br)] < first and all(rd.meta["lg_idx"] < br.meta["lg_done_at"] for rd in a.reads):
                    ok = True
            assert ok, ("slot WAR", s, a.kind, a.n, b.kind, b.n)


def fallback(cfg):
    L = []
    A = L.append
    t = vT
    A("L_fallback:")
    A("s_waitcnt vmcnt(0) lgkmcnt(0)")
    A("s_barrier")
    A(f"s_mul_i32 s{sT3}, s{sW}, 40960")
    A(f"v_and_b32 {t[0]}, 63, v0")
    A(f"v_bfe_u32 {t[2]}, {t[0]}, 2, 2")
    A(f"v_lshlrev_b32 {t[2]}, 9, {t[2]}")
    A(f"v_lshrrev_b32 {t[5]}, 4, {t[0]}")
    A(f"v_lshl_add_u32 {t[2]}, {t[5]}, 6, {t[2]}")
    A(f"v_and_b32 {t[3]}, 3, {t[0]}")
    fk = [Reg("v", 96 + i, 1) for i in range(4)]
    fv = [Reg("v", 100 + i, 1) for i in range(4)]
    fr = (0, 2, 3, 1)
    for rg in range(4):
        A(f"v_xor_b32 {t[4]}, {fr[rg]}, {t[3]}")
        A(f"v_lshl_add_u32 {fk[rg]}, {t[4]}, 4, {t[2]}")
        A(f"v_add_u32 {fk[rg]}, {rg * 2048}, {fk[rg]}")
        A(f"v_xor_b32 {t[4]}, {2 * (rg & 1)}, {t[3]}")
        A(f"v_lshl_add_u32 {fv[rg]}, {t[4]}, 4, {t[2]}")
        A(f"v_add_u32 {fv[rg]}, {rg * 2048}, {fv[rg]}")
    rk, rv0, rv1 = Reg("v", 104, 1), Reg("v", 105, 1), Reg("v", 106, 1)
    A(f"v_add_u32 {rk}, s{sT3}, {vKR[0]}")
    A(f"v_add_u32 {rv0}, s{sT3}, {vVR[0][0]}")
    A(f"v_add_u32 {rv1}, s{sT3}, {vVR[1][0]}")
    Pf = [vP[0][r][0] for r in range(3)]

    def load_k():
        for a in range(2):
            A(f"s_add_u32 s{sT1}, s{sT0}, {a * 8192}")
            for half in range(2):
                for rg in range(4):
                    A(f"s_add_u32 m0, s{sT3}, {a * 8192 + half * 4096 + rg * 1024 - half * 256 + 256}")
                    A(f"s_sub_u32 m0, m0, 256")
                    A("s_nop 0")
                    A(f"buffer_load_dwordx4 {fk[rg]}, s[{sK}:{sK + 3}], s{sT1} offen offset:{half * 256} lds")

    def load_v():
        for dh in range(2):
            for a in range(2):
                A(f"s_add_u32 s{sT1}, s{sT0}, {a * 8192 + dh * 256}")
                for rg in range(4):
                    A(f"s_add_u32 m0, s{sT3}, {16384 + dh * 8192 + a * 4096 + rg * 1024}")
                    A("s_nop 0")
                    A(f"buffer_load_dwordx4 {fv[rg]}, s[{sV}:{sV + 3}], s{sT1} offen lds")

    def qk(a):
        for c in range(8):
            A(f"ds_read_b128 {KF[c]}, {rk} offset:{a * 8192 + (c >> 2) * 4096 + (c & 3) * 256}")
        A("s_waitcnt lgkmcnt(0)")
        for r in range(3):
            for c in range(8):
                A(f"v_mfma_f32_16x16x32_bf16 {vS[r]}, {KF[c]}, {Q[r][c]}, {vS[r] if c else 0}")
        A("s_nop 15")

    def xl(op, x, tmp):
        for o in xlane(op, x, tmp):
            A("s_nop 1")
            A(o.text)

    for r in range(3):
        A(f"v_mov_b32 {vNM[r]}, 0xff800000")
    A(f"s_mov_b32 s{sT0}, 0")
    A("L_fb1:")
    load_k()
    A("s_waitcnt vmcnt(0)")
    for a in range(2):
        qk(a)
        for r in range(3):
            A(f"v_max3_f32 {vNM[r]}, {vNM[r]}, {vS[r][0]}, {vS[r][1]}")
            A(f"v_max3_f32 {vNM[r]}, {vNM[r]}, {vS[r][2]}, {vS[r][3]}")
    A(f"s_add_u32 s{sT0}, s{sT0}, 16384")
    A(f"s_cmp_lt_u32 s{sT0}, 262144")
    A("s_cbranch_scc1 L_fb1")
    for r in range(3):
        xl("v_max_f32", vNM[r], t[4])
        A(f"v_mul_f32 {vNM[r]}, {f2u(-C_SCALE):#x}, {vNM[r]}")
        A(f"v_mov_b32 {vL[r]}, 0")
    for r in range(3):
        for tt in range(16):
            for i in range(4):
                x = O[r][tt][i]
                A(f"v_mov_b32 {x}, 0" if x.f == "v" else f"v_accvgpr_write_b32 {x}, 0")
    A(f"s_mov_b32 s{sT0}, 0")
    A("L_fb2:")
    load_k()
    load_v()
    A("s_waitcnt vmcnt(0)")
    for a in range(2):
        qk(a)
        for r in range(3):
            S = vS[r]
            for i in range(4):
                A(f"v_fma_f32 {S[i]}, {S[i]}, s{sC}, {vNM[r]}")
            for i in range(4):
                A(f"v_exp_f32 {S[i]}, {S[i]}")
            A("s_nop 1")
            for i in range(4):
                A(f"v_add_f32 {vL[r]}, {vL[r]}, {S[i]}")
            for k in range(2):
                A(f"v_cvt_pk_bf16_f32 {Pf[r][2 * a + k]}, {S[2 * k]}, {S[2 * k + 1]}")
    A("s_nop 3")
    for tt in range(16):
        for s in range(2):
            base = rv0 if (tt & 1) == 0 else rv1
            off = 16384 + (tt >> 3) * 8192 + s * 4096 + ((tt & 7) >> 1) * 256
            A(f"ds_read_b64_tr_b16 {VF[tt & 1][0][2 * s:2 * s + 2]}, {base} offset:{off}")
        A("s_waitcnt lgkmcnt(0)")
        for r in range(3):
            A(f"v_mfma_f32_16x16x32_bf16 {O[r][tt]}, {VF[tt & 1][0]}, {Pf[r]}, {O[r][tt]}")
    A("s_nop 15")
    A(f"s_add_u32 s{sT0}, s{sT0}, 16384")
    A(f"s_cmp_lt_u32 s{sT0}, 262144")
    A("s_cbranch_scc1 L_fb2")
    for r in range(3):
        xl("v_add_f32", vL[r], t[4])
        A(f"v_rcp_f32 {vRL[r]}, {vL[r]}")
    A("s_nop 3")
    for T in range(8):
        for r in range(3):
            X, Y = O[r][2 * T], O[r][2 * T + 1]
            src = [X[i] for i in range(4)] + [Y[i] for i in range(4)]
            if X.f == "a":
                for i in range(8):
                    A(f"v_accvgpr_read_b32 {vX[i]}, {src[i]}")
                src = [vX[i] for i in range(8)]
            for i in range(8):
                A(f"v_mul_f32 {src[i]}, {src[i]}, {vRL[r]}")
            D = vS[(3 * T + r) % 8]
            for k in range(4):
                A(f"v_cvt_pk_bf16_f32 {D[k]}, {src[2 * k]}, {src[2 * k + 1]}")
            A("s_nop 1")
            A(f"v_permlane16_swap_b32 {D[0]}, {D[2]}")
            A(f"v_permlane16_swap_b32 {D[1]}, {D[3]}")
            A(f"buffer_store_dwordx4 {D}, {vST[r]}, s[{sO}:{sO + 3}], 0 offen offset:{64 * T}")
    A("s_waitcnt vmcnt(0)")
    return L


HEADER = """; GQA attention forward, B=8 Hq=16 Hkv=8 Sq=368 Sk=512 D=256, bf16 (generated by my gen/gen.py)
; whose sum exceeds 2^64 recomputes its rows with the true row maximum (L_fallback).
; @launch grid=(256,1,1) block=(256,1,1) lds=163840
.amdgcn_target "amdgcn-amd-amdhsa--gfx950"
.text
.globl {k}
.p2align 8
.type {k},@function
{k}:
"""

FOOTER = """L_end:
    s_endpgm
.section .rodata,"a"
.p2align 6
.amdhsa_kernel {k}
  .amdhsa_next_free_vgpr 512
  .amdhsa_next_free_sgpr 64
  .amdhsa_accum_offset 256
  .amdhsa_group_segment_fixed_size 0
  .amdhsa_kernarg_size 48
  .amdhsa_user_sgpr_count 2
  .amdhsa_user_sgpr_kernarg_segment_ptr 1
  .amdhsa_system_sgpr_workgroup_id_x 1
.end_amdhsa_kernel
"""


def emit(cfg):
    DBG[0] = cfg.dbg
    SPIN[0] = cfg.spin
    prog, info = build(cfg)
    s = HEADER.format(k=KNAME)
    for o in prog:
        s += (o.text if o.kind == "label" else "    " + o.text) + "\n"
    s += "    s_endpgm\nL_mainend:\n"
    for l in fallback(cfg):
        s += (l if l.endswith(":") else "    " + l) + "\n"
    s += FOOTER.format(k=KNAME)
    return s, info


if __name__ == "__main__":
    ap = argparse.ArgumentParser()
    ap.add_argument("-o", default="standalone__gqa_softmax__near_ridge.s")
    ap.add_argument("-v", action="store_true")
    ap.add_argument("opts", nargs="*")
    a = ap.parse_args()
    cfg = Cfg()
    cfg.verbose = a.v
    for kv in a.opts:
        k, v = kv.split("=", 1)
        old = getattr(cfg, k)
        if isinstance(old, bool):
            v = v in ("1", "true", "True")
        elif isinstance(old, int):
            v = int(v)
        elif isinstance(old, float):
            v = float(v)
        setattr(cfg, k, v.replace("+", " ") if isinstance(v, str) else v)
    s, info = emit(cfg)
    open(a.o, "w").write(s)
    print(info, len(s))
```

```python
import sys, math, argparse, struct
sys.path.insert(0, __file__.rsplit("/", 1)[0])
from ir import *

KNAME = "standalone__gqa_softmax__near_ridge_kernel"
C_SCALE = math.log2(math.e) / 16.0


def f2u(x):
    return struct.unpack("<I", struct.pack("<f", x))[0]


class Cfg:
    ldq = "nt"
    ldkv = "nt"
    ldkv0 = ""
    st = "sc1"
    lat = 6
    age = 5
    sready = 4
    stamps = False
    dbg = False
    spin = -1
    spinwg = -1
    codepf = True
    force_fallback = False
    dma_sp = 6
    preflush = True
    y = 0
    pk = True
    verbose = False


sQ, sK, sV, sO = 12, 16, 20, 24
sW1K = 28
sC = 29
sKoff = 30
sVoff = 31
sT0, sT1, sT2, sT3 = 32, 33, 34, 35
sW = 36
sThr = 37
sW8K = 38
sCls = 39
sFlag = 40
sDBG = 44
vKR = [Reg("v", 1, 1), Reg("v", 2, 1), Reg("v", 3, 1)]
vVR = [[Reg("v", 4 + 3 * h + w, 1) for w in range(3)] for h in range(2)]
vDK = [Reg("v", 10, 1), Reg("v", 11, 1)]
vDV = [Reg("v", 12 + a, 1) for a in range(4)]
vNM = [Reg("v", 16 + r, 1) for r in range(3)]
vL = [Reg("v", 19 + r, 1) for r in range(3)]
vRL = [Reg("v", 22 + 2 * r, 1) for r in range(3)]
vSW = Reg("v", 23, 1)
vSR = Reg("v", 25, 1)
vQR = Reg("v", 27, 1)
vT = Reg("v", 28, 12)
vS = [Reg("v", 40 + 4 * i, 4) for i in range(8)]
vP = [[[Reg("v", 72 + 24 * b + 8 * r + 4 * kc, 4) for kc in range(2)] for r in range(3)] for b in range(2)]
vST = [[Reg("v", 120 + 2 * r + k, 1) for k in range(2)] for r in range(3)]
vX = Reg("v", 126, 2)
vQD = [Reg("v", 36 + rg, 1) for rg in range(4)]
O = [[Reg("v", 128 + 4 * t, 4) for t in range(16)],
     [Reg("v", 192 + 4 * t, 4) for t in range(16)],
     [Reg("a", 4 * t, 4) for t in range(16)]]
preK = [[Reg("v", 128 + 32 * a + 4 * c, 4) for c in range(8)] for a in range(4)]
Q = [[Reg("a", 64 + 32 * r + 4 * c, 4) for c in range(8)] for r in range(3)]
KF = [[Reg("a", 160 + 4 * c, 4) for c in range(8)], [Reg("a", 224 + 4 * c, 4) for c in range(8)]]
VFB = [192 + 8 * b for b in range(4)]

SLOT = 16384
STG = 528
FR = (0, 2, 3, 1)


def sn(i, n=1):
    return R("s", i, n)


def valu(text, reads=(), writes=(), tag=""):
    return Op(text, "valu", reads, writes, tag)


def salu(text, reads=(), writes=()):
    return Op(text, "salu", reads, writes)


def names(*regs):
    out = []
    for r in regs:
        out += r.names if isinstance(r, Reg) else [r]
    return out


def mfma(D, A, B, C=None):
    c = str(C) if C is not None else "0"
    op = Op(f"v_mfma_f32_16x16x32_bf16 {D}, {A}, {B}, {c}", "mfma",
            names(A, B) + (C.names if C is not None else []), D.names)
    op.meta["srcab"] = frozenset(names(A, B))
    op.meta["srcc"] = frozenset(C.names) if C is not None else frozenset()
    return op


def dma(vaddr, srd, soff, imm, pol):
    so = f"s{soff}" if soff is not None else "0"
    t = f"buffer_load_dwordx4 {vaddr}, s[{srd}:{srd + 3}], {so} offen"
    if imm:
        t += f" offset:{imm}"
    if pol:
        t += " " + pol
    t += " lds"
    return Op(t, "dma", vaddr.names + sn(srd, 4) + (sn(soff) if soff is not None else []) + ["m0"], [])


def set_m0(const, base=sW1K):
    return salu(f"s_add_u32 m0, s{base}, {const}", sn(base), ["m0", "scc"])


class Unit:
    def __init__(self, kind, n, cfg):
        self.kind, self.n, self.cfg = kind, n, cfg
        self.slot = None
        self.nslots = 2 if kind == "Q" else 1
        self.dmas = []
        self.reads = []
        self.vis = None
        self.name = f"{kind}{n}"

    def make_dmas(self, vq=None):
        cfg = self.cfg
        ops = []
        base = self.slot * SLOT
        src = self.n % 16
        pol = cfg.ldkv0 if (self.n < 2 * cfg.y) else cfg.ldkv
        if self.kind == "K":
            so = salu(f"s_mov_b32 s{sKoff}, {src * 16384}", [], sn(sKoff))
            for a in range(2):
                for half in range(2):
                    d = dma(vDK[a], sK, sKoff, half * 256, pol)
                    d.pre = [set_m0(base + a * 8192 + half * 4096 - half * 256)]
                    ops.append(d)
            ops[0].pre.insert(0, so)
        elif self.kind == "V":
            j, h = divmod(src, 2)
            so = salu(f"s_mov_b32 s{sVoff}, {j * 32768 + h * 256}", [], sn(sVoff))
            for a in range(4):
                d = dma(vDV[a], sV, sVoff, 0, pol)
                d.pre = [set_m0(base + a * 4096)]
                ops.append(d)
            ops[0].pre.insert(0, so)
        else:
            for half in range(2):
                for rg in range(4):
                    d = dma(vq[rg], sQ, None, half * 256, cfg.ldq)
                    d.pre = [set_m0(base + half * 4096 + rg * 1024 - half * 256, sW8K)]
                    ops.append(d)
        for d in ops:
            d.meta["unit"] = self
        self.dmas = ops
        return ops


def flat_dmas(ops):
    out = []
    for d in ops:
        out += d.pre
        out.append(salu("s_nop 0"))
        out.append(d)
        d.pre = []
    return out


def xlane(op, x, tmp):
    o = []
    o.append(valu(f"v_mov_b32 {tmp}, {x}", x.names, tmp.names))
    o.append(valu(f"v_permlane32_swap_b32 {x}, {tmp}", names(x, tmp), names(x, tmp)))
    o.append(valu(f"{op} {x}, {x}, {tmp}", names(x, tmp), x.names))
    o.append(valu(f"v_mov_b32 {tmp}, {x}", x.names, tmp.names))
    o.append(valu(f"v_permlane16_swap_b32 {x}, {tmp}", names(x, tmp), names(x, tmp)))
    o.append(valu(f"{op} {x}, {x}, {tmp}", names(x, tmp), x.names))
    return o


class Stamps:
    def __init__(self, cfg):
        self.cfg = cfg
        self.list = []

    def __call__(self, name, real=False):
        cfg = self.cfg
        if not cfg.stamps:
            return []
        if cfg.spin != -1:
            if name != cfg.spin_name:
                return []
            return [Op("s_memrealtime s[48:49]", "salu")]
        k = len(self.list)
        assert 48 + 2 * k + 1 <= 101, "too many stamps"
        self.list.append((name, real))
        return [Op(f"{'s_memrealtime' if real else 's_memtime'} s[{48 + 2 * k}:{49 + 2 * k}]", "salu")]

    def finish(self):
        cfg = self.cfg
        o = []
        raw = lambda t: o.append(Op(t, "raw"))
        if not cfg.stamps:
            return o
        raw("s_waitcnt lgkmcnt(0)")
        if cfg.spin != -1:
            if cfg.spinwg >= 0:
                raw(f"s_cmp_lg_u32 s2, {cfg.spinwg}")
                raw("s_cbranch_scc1 L_end")
            o.append(Op("L_spin:", "label"))
            raw("s_memrealtime s[50:51]")
            raw("s_waitcnt lgkmcnt(0)")
            raw("s_sub_u32 s50, s50, s48")
            raw("s_cmp_lt_u32 s50, 5000")
            raw("s_cbranch_scc1 L_spin")
            return o
        raw("v_mov_b32 v40, 0")
        for k in range(len(self.list)):
            raw(f"v_writelane_b32 v40, s{48 + 2 * k}, {k}")
        raw(f"s_load_dwordx2 s[{sDBG}:{sDBG + 1}], s[0:1], 40")
        raw(f"s_mov_b32 s{sDBG + 2}, 0x1000000")
        raw(f"s_mov_b32 s{sDBG + 3}, 0x00020000")
        raw("s_lshl_b32 s48, s2, 8")
        raw("v_add_u32 v41, s48, v0")
        raw("v_lshlrev_b32 v41, 2, v41")
        raw("s_waitcnt lgkmcnt(0)")
        raw(f"buffer_store_dword v40, v41, s[{sDBG}:{sDBG + 3}], 0 offen")
        return o


def prologue(cfg, U, stamp):
    P = []
    A = P.append
    raw = lambda t: A(Op(t, "raw"))
    raw("s_cmp_ge_u32 s2, 256")
    raw("s_cbranch_scc1 L_end")
    raw("s_load_dwordx4 s[4:7], s[0:1], 0")
    raw("s_load_dwordx4 s[8:11], s[0:1], 16")
    P += stamp("start", True)
    t = vT
    lane, wv, common, cpos, f_w = t[0], t[1], t[2], t[3], t[4]
    if cfg.codepf:
        raw("s_getpc_b64 s[42:43]")
        A(Op("L_pfbase:", "label"))
        A(valu(f"v_lshlrev_b32 {t[10]}, 7, v0", ["v0"], t[10].names))
        A(Op(f"global_load_dword {vX[0]}, {t[10]}, s[42:43]", "vload", t[10].names, vX[0].names))
    A(valu(f"v_lshrrev_b32 {wv}, 6, v0", ["v0"], wv.names))
    A(valu(f"v_and_b32 {lane}, 63, v0", ["v0"], lane.names))
    A(valu(f"v_readfirstlane_b32 s{sW}, {wv}", wv.names, sn(sW)))
    A(salu(f"s_and_b32 s{sT0}, s2, 7", [], sn(sT0)))
    A(salu(f"s_lshr_b32 s{sT1}, s2, 5", [], sn(sT1)))
    A(salu(f"s_lshl3_add_u32 s{sT0}, s{sT1}, s{sT0}", [], sn(sT0)))
    A(salu(f"s_bfe_u32 s{sT1}, s2, 0x20003", [], sn(sT1)))
    A(salu(f"s_lshl2_add_u32 s{sT2}, s{sT0}, s{sT1}", [], sn(sT2)))
    A(salu(f"s_mul_i32 s{sT2}, s{sT2}, {184 * 512}", [], sn(sT2)))
    A(salu(f"s_lshl_b32 s{sT0}, s{sT0}, 18", [], sn(sT0)))
    A(valu(f"v_bfe_u32 {t[6]}, {lane}, 2, 2", lane.names, t[6].names))
    A(valu(f"v_lshrrev_b32 {t[5]}, 4, {lane}", lane.names, t[5].names))
    A(valu(f"v_lshlrev_b32 {common}, 9, {t[6]}", t[6].names, common.names))
    A(valu(f"v_lshl_add_u32 {common}, {t[5]}, 6, {common}", names(t[5], common), common.names))
    A(valu(f"v_and_b32 {cpos}, 3, {lane}", lane.names, cpos.names))
    A(salu(f"s_lshl_b32 s{sT1}, s{sW}, 1", sn(sW), sn(sT1)))
    A(salu(f"s_lshr_b32 s{sT1}, 0x78, s{sT1}", [], sn(sT1)))
    A(salu(f"s_and_b32 s{sT1}, s{sT1}, 3", [], sn(sT1)))
    A(salu(f"s_lshl_b32 s{sW1K}, s{sW}, 10", sn(sW), sn(sW1K)))
    A(salu(f"s_lshl_b32 s{sW8K}, s{sW}, 13", sn(sW), sn(sW8K)))
    A(valu(f"v_xor_b32 {f_w}, s{sT1}, {cpos}", cpos.names, f_w.names))
    A(valu(f"v_lshl_add_u32 {t[7]}, {wv}, 11, {common}", names(wv, common), t[7].names))
    A(valu(f"v_lshl_add_u32 {vDK[0]}, {f_w}, 4, {t[7]}", names(f_w, t[7]), vDK[0].names))
    A(valu(f"v_add_u32 {vDK[1]}, 8192, {vDK[0]}", vDK[0].names, vDK[1].names))
    vq = [[Reg("v", 72 + 4 * r + rg, 1) for rg in range(4)] for r in range(3)]
    if cfg.y:
        vq[2] = vQD
    qb = Reg("v", 84, 1)
    A(valu(f"v_mad_u32_u24 {qb}, {wv}, s{sT3}, {common}", names(wv, common), qb.names))
    P.insert(len(P) - 1, salu(f"s_mov_b32 s{sT3}, {48 * 512}", [], sn(sT3)))
    for rg in range(4):
        x = Reg("v", 85, 1)
        A(valu(f"v_xor_b32 {x}, {FR[rg]}, {cpos}", cpos.names, x.names))
        A(valu(f"v_lshl_add_u32 {vq[0][rg]}, {x}, 4, {qb}", names(x, qb), vq[0][rg].names))
        if rg:
            A(valu(f"v_add_u32 {vq[0][rg]}, {rg * 2048}, {vq[0][rg]}", vq[0][rg].names, vq[0][rg].names))
    A(Op("s_waitcnt lgkmcnt(0)", "wait", meta={"fixed": True}))
    P += stamp("karg", True)

    def srd(srd, p, off, nrec):
        A(salu(f"s_add_u32 s{srd}, s{p}, s{off}", [], sn(srd)))
        A(salu(f"s_addc_u32 s{srd + 1}, s{p + 1}, 0", [], sn(srd + 1)))
        A(salu(f"s_mov_b32 s{srd + 2}, {nrec}", [], sn(srd + 2)))
        A(salu(f"s_mov_b32 s{srd + 3}, 0x00020000", [], sn(srd + 3)))

    def vaddr():
        A(valu(f"v_and_b32 {t[9]}, 1, {wv}", wv.names, t[9].names))
        A(valu(f"v_lshlrev_b32 {t[9]}, 1, {t[9]}", t[9].names, t[9].names))
        A(valu(f"v_xor_b32 {t[9]}, {t[9]}, {cpos}", names(t[9], cpos), t[9].names))
        A(valu(f"v_lshl_add_u32 {vDV[0]}, {t[9]}, 4, {t[7]}", names(t[9], t[7]), vDV[0].names))
        for a in range(1, 4):
            A(valu(f"v_add_u32 {vDV[a]}, {8192 * a}, {vDV[0]}", vDV[0].names, vDV[a].names))

    def codepf2():
        if cfg.codepf:
            A(valu(f"v_add_u32 {t[10]}, 32768, {t[10]}", t[10].names, t[10].names))
            A(valu(f"v_min_u32 {t[10]}, L_mainend - L_pfbase, {t[10]}", t[10].names, t[10].names))
            A(Op(f"global_load_dword {vX[1]}, {t[10]}, s[42:43]", "vload", t[10].names, vX[1].names))

    def cwait(k):
        raw(f"s_cmp_lt_u32 s{sCls}, {k}")
        raw(f"s_cbranch_scc1 L_nw{k}")
        raw("s_waitcnt vmcnt(0)")
        A(Op(f"L_nw{k}:", "label"))

    srd(sK, 6, sT0, 262144)
    if cfg.stagger:
        P += flat_dmas(U["K0"].make_dmas())
        A(salu(f"s_lshr_b32 s{sCls}, s2, {cfg.cls_shift}", [], sn(sCls)))
        if cfg.cls_mask:
            A(salu(f"s_and_b32 s{sCls}, s{sCls}, {cfg.cls_mask}", [], sn(sCls)))
        srd(sQ, 4, sT2, 184 * 512)
        srd(sV, 8, sT0, 262144)
        vaddr()
        seq = cfg.stagger.split(",")
        for x in seq:
            if x[0] == "w":
                cwait(int(x[1:]))
            elif x == "pf":
                codepf2()
            elif x[0] == "Q":
                r = int(x[1])
                if r:
                    for rg in range(4):
                        A(valu(f"v_add_u32 {vq[r][rg]}, {8192 * r}, {vq[0][rg]}", vq[0][rg].names, vq[r][rg].names))
                P += flat_dmas(U[x].make_dmas(vq[r]))
            else:
                P += flat_dmas(U[x].make_dmas())
        srd(sO, 10, sT2, 184 * 512)
    else:
        srd(sQ, 4, sT2, 184 * 512)
        P += flat_dmas(U["K0"].make_dmas())
        P += flat_dmas(U["Q0"].make_dmas(vq[0]))
        P += flat_dmas(U["K1"].make_dmas())
        codepf2()
        for rg in range(4):
            A(valu(f"v_add_u32 {vq[1][rg]}, 8192, {vq[0][rg]}", vq[0][rg].names, vq[1][rg].names))
        P += flat_dmas(U["Q1"].make_dmas(vq[1]))
        srd(sV, 8, sT0, 262144)
        srd(sO, 10, sT2, 184 * 512)
        vaddr()
    g = t[5]
    A(valu(f"v_lshlrev_b32 {t[10]}, 1, {t[6]}", t[6].names, t[10].names))
    A(valu(f"v_lshrrev_b32 {t[10]}, {t[10]}, 0x78".replace("0x78", str(t[11])), names(t[10], t[11]), t[10].names))
    P.insert(len(P) - 1, valu(f"v_mov_b32 {t[11]}, 0x78", [], t[11].names))
    A(valu(f"v_and_b32 {t[10]}, 3, {t[10]}", t[10].names, t[10].names))
    A(valu(f"v_xor_b32 {t[10]}, {t[10]}, {g}", names(t[10], g), t[10].names))
    A(valu(f"v_lshlrev_b32 {t[10]}, 4, {t[10]}", t[10].names, t[10].names))
    A(valu(f"v_lshl_add_u32 {t[10]}, {t[6]}, 10, {t[10]}", names(t[6], t[10]), t[10].names))
    A(valu(f"v_lshl_add_u32 {vKR[0]}, {cpos}, 6, {t[10]}", names(cpos, t[10]), vKR[0].names))
    A(valu(f"v_add_u32 {vKR[1]}, 0x10000, {vKR[0]}", vKR[0].names, vKR[1].names))
    A(valu(f"v_add_u32 {vKR[2]}, 0x20000, {vKR[0]}", vKR[0].names, vKR[2].names))
    A(valu(f"v_lshlrev_b32 {t[10]}, 10, {g}", g.names, t[10].names))
    A(valu(f"v_lshl_add_u32 {t[10]}, {t[6]}, 6, {t[10]}", names(t[6], t[10]), t[10].names))
    A(valu(f"v_lshl_add_u32 {t[10]}, {cpos}, 3, {t[10]}", names(cpos, t[10]), t[10].names))
    A(valu(f"v_and_b32 {t[11]}, 1, {g}", g.names, t[11].names))
    A(valu(f"v_lshl_add_u32 {vVR[0][0]}, {t[11]}, 5, {t[10]}", names(t[11], t[10]), vVR[0][0].names))
    A(valu(f"v_xor_b32 {vVR[1][0]}, 32, {vVR[0][0]}", vVR[0][0].names, vVR[1][0].names))
    for h in range(2):
        for w in (1, 2):
            A(valu(f"v_add_u32 {vVR[h][w]}, {w * 65536}, {vVR[h][0]}", vVR[h][0].names, vVR[h][w].names))
    n15 = t[11]
    A(valu(f"v_and_b32 {n15}, 15, {lane}", lane.names, n15.names))
    A(valu(f"v_mad_u32_u24 {t[10]}, {wv}, 48, {g}", names(wv, g), t[10].names))
    A(valu(f"v_lshlrev_b32 {t[10]}, 9, {t[10]}", t[10].names, t[10].names))
    A(valu(f"v_lshl_add_u32 {vST[0][0]}, {n15}, 4, {t[10]}", names(n15, t[10]), vST[0][0].names))
    for r in range(3):
        for k in range(2):
            if r or k:
                A(valu(f"v_add_u32 {vST[r][k]}, {r * 8192 + k * 4096}, {vST[0][0]}", vST[0][0].names, vST[r][k].names))
    A(salu(f"s_mul_i32 s{sT3}, s{sW}, {cfg.stg_wave}", sn(sW), sn(sT3)))
    A(salu(f"s_add_u32 s{sT3}, s{sT3}, {cfg.stg_base}", [], sn(sT3)))
    A(valu(f"v_mul_u32_u24 {t[10]}, {STG}, {n15}", n15.names, t[10].names))
    A(valu(f"v_lshl_add_u32 {t[10]}, {g}, 3, {t[10]}", names(g, t[10]), t[10].names))
    A(valu(f"v_add_u32 {vSW}, s{sT3}, {t[10]}", t[10].names, vSW.names))
    A(valu(f"v_mul_u32_u24 {t[10]}, {STG}, {g}", g.names, t[10].names))
    A(valu(f"v_lshl_add_u32 {t[10]}, {n15}, 4, {t[10]}", names(n15, t[10]), t[10].names))
    A(valu(f"v_add_u32 {vSR}, s{sT3}, {t[10]}", t[10].names, vSR.names))
    A(valu(f"v_add_u32 {vQR}, s{sW8K}, {vKR[1]}", vKR[1].names + sn(sW8K), vQR.names))
    A(salu(f"s_mov_b32 s{sC}, {f2u(C_SCALE):#x}", [], sn(sC)))
    A(salu(f"s_mov_b32 s{sThr}, {f2u(2.0 ** 64 if not cfg.force_fallback else 1.0):#x}", [], sn(sThr)))
    A(salu(f"s_mov_b64 s[{sFlag}:{sFlag + 1}], 0", [], sn(sFlag, 2)))
    for r in range(3):
        A(valu(f"v_mov_b32 {vL[r]}, 0", [], vL[r].names))
    if not U["Q2"].dmas:
        for rg in range(4):
            A(valu(f"v_add_u32 {vq[2][rg]}, 16384, {vq[0][rg]}", vq[0][rg].names, vq[2][rg].names))
        if not cfg.y:
            P += flat_dmas(U["Q2"].make_dmas(vq[2]))
    P += stamp("issued", True)
    return P, vq


def q_reads(u):
    ops = []
    r = u.n
    base = u.slot * SLOT - 65536
    pre = []
    addr = vQR
    if base >= 65536:
        addr = vT[0]
        pre.append(valu(f"v_add_u32 {addr}, 0x10000, {vQR}", vQR.names, addr.names))
        base -= 65536
    for c in range(8):
        off = base + (c >> 2) * 4096 + (c & 3) * 256
        o = Op(f"ds_read_b128 {Q[r][c]}, {addr} offset:{off}", "ds", addr.names, Q[r][c].names)
        o.meta["qhalf"] = c >> 2
        o.meta["unit"] = u
        u.reads.append(o)
        ops.append(o)
    return pre, ops


def build(cfg):
    y = cfg.y
    NS = 8 + y
    act = lambda s: (0, 1) if s < y else ((0, 1, 2) if s < 8 else (2,))
    stamp = Stamps(cfg)
    U = {}
    for n in range(2 * NS):
        U[f"K{n}"] = Unit("K", n, cfg)
        U[f"V{n}"] = Unit("V", n, cfg)
    for r in range(3):
        U[f"Q{r}"] = Unit("Q", r, cfg)
    U["K0"].slot, U["K1"].slot, U["K2"].slot, U["V0"].slot = 0, 1, 2, 3
    U["Q0"].slot, U["Q1"].slot = 4, 6
    if y == 0:
        U["Q2"].slot = 8
        cfg.stg_base, cfg.stg_wave = 0, 32768
    else:
        U["Q2"].slot = 4
        cfg.stg_base, cfg.stg_wave = 0, 16 * STG

    pro, vqd = prologue(cfg, U, stamp)

    M = []
    fixed = {}
    dsq = []
    vq = []
    sbuf_last = [None] * 8
    sbuf_ctr = [0]
    guards = []
    Pcvt = {}
    negm_ready = {}
    pbuf_free = {}
    last_add = {}
    bars = []

    def softmax_ops(s, r, a, S, ready_gap):
        b = s & 1
        dst = vP[b][r][a >> 1]
        fm, ex, ad, cv = [], [], [], []
        for i in range(4):
            o = valu(f"v_fma_f32 {S[i]}, {S[i]}, s{sC}, {vNM[r]}", names(S[i], vNM[r]) + sn(sC), S[i].names)
            o.earliest = ready_gap
            o.deps.append((negm_ready[r], 0))
            fm.append(o)
        for i in range(4):
            o = Op(f"v_exp_f32 {S[i]}, {S[i]}", "trans", S[i].names, S[i].names)
            o.deps.append((fm[i], 0))
            ex.append(o)
        for i in range(4):
            o = valu(f"v_add_f32 {vL[r]}, {vL[r]}, {S[i]}", names(vL[r], S[i]), vL[r].names)
            o.deps.append((ex[i], 1))
            ad.append(o)
        for k in range(2):
            d = dst[2 * (a & 1) + k]
            o = valu(f"v_cvt_pk_bf16_f32 {d}, {S[2 * k]}, {S[2 * k + 1]}", names(S[2 * k], S[2 * k + 1]), d.names)
            o.deps += [(ex[2 * k], 1), (ex[2 * k + 1], 1)]
            o.earliest = pbuf_free.get((b, r), -1)
            cv.append(o)
        Pcvt[(s, r, a)] = cv
        vq.extend([fm[0], fm[1], ex[0], fm[2], ex[1], fm[3], ad[0], ex[2], ad[1], cv[0], ex[3], ad[2], ad[3], cv[1]])
        last_add[r] = ad[3]
        return ad + cv

    held = {}

    def chain(s, r, a, frags):
        si = sbuf_ctr[0] % 8
        sbuf_ctr[0] += 1
        S = vS[si]
        start = len(M)
        if sbuf_last[si]:
            guards.append((start - 1, sbuf_last[si]))
        for c in range(8):
            M.append(mfma(S, frags[c], Q[r][c], S if c else None))
        end = len(M) - 1
        if r not in negm_ready:
            held.setdefault(r, []).append((si, S, end, a))
            if len(held[r]) == 2:
                S0, S1 = held[r][0][1], held[r][1][1]
                m, tmp = vNM[r], vT[1 + r]
                ops = [valu(f"v_max3_f32 {m}, {S0[0]}, {S0[1]}, {S0[2]}", names(S0[0], S0[1], S0[2]), m.names),
                       valu(f"v_max3_f32 {tmp}, {S0[3]}, {S1[0]}, {S1[1]}", names(S0[3], S1[0], S1[1]), tmp.names),
                       valu(f"v_max3_f32 {m}, {m}, {S1[2]}, {S1[3]}", names(m, S1[2], S1[3]), m.names),
                       valu(f"v_max_f32 {m}, {m}, {tmp}", names(m, tmp), m.names)]
                ops += xlane("v_max_f32", m, tmp)
                ops.append(valu(f"v_mul_f32 {m}, {f2u(-C_SCALE):#x}, {m}", m.names, m.names))
                prev = None
                for o in ops:
                    o.earliest = end + cfg.sready
                    if prev is not None:
                        o.deps.append((prev, 1 if "permlane" in o.text else 0))
                    prev = o
                vq.extend(ops)
                negm_ready[r] = ops[-1]
                for (si2, S2, end2, a2) in held[r]:
                    sbuf_last[si2] = softmax_ops(s, r, a2, S2, end2 + cfg.sready)
        else:
            sbuf_last[si] = softmax_ops(s, r, a, S, end + cfg.sready)
        return start

    vpool = {"bufs": list(VFB), "ctr": 0}
    vfree = {}
    touched = set()

    def group(s, t):
        b = s & 1
        base = vpool["bufs"][vpool["ctr"] % len(vpool["bufs"])]
        vpool["ctr"] += 1
        VF = [Reg("a", base + 4 * kc, 4) for kc in range(2)]
        u = U[f"V{2 * s + (t >> 3)}"]
        tt = t & 7
        start = len(M)
        for kc in range(2):
            for k in range(2):
                a = 2 * kc + k
                dsq.append(dict(kind="V", dst=VF[kc][2 * k:2 * k + 2], h=tt & 1, u=u, off=a * 4096 + (tt >> 1) * 256,
                                cons=start + kc, free=vfree.get(base, -1)))
        for r in act(s):
            for kc in range(2):
                C = O[r][t] if (r, t) in touched else None
                touched.add((r, t))
                M.append(mfma(O[r][t], VF[kc], vP[b][r][kc], C))
                guards.append((len(M) - 3, Pcvt[(s, r, 2 * kc)] + Pcvt[(s, r, 2 * kc + 1)]))
            pbuf_free[(b, r)] = len(M) - 1
        vfree[base] = len(M) - 1
        return len(M) - 1

    def barrier(name, gap, hoist):
        o = Op("s_barrier", "barrier")
        o.meta.update(need_vm=[], need_lgkm=[], name=name, hoist_wait=hoist, units=[])
        o.gap = gap
        bars.append(o)
        return o

    pre_tiles = act(0)
    blk = []
    ba = barrier("a", -1, False)
    ba.meta["units"] = [U["K0"], U["K1"], U["Q0"]]
    U["K0"].vis = U["K1"].vis = U["Q0"].vis = ba
    blk.append(ba)
    blk += stamp("K0Q0", True)
    pre_, q0 = q_reads(U["Q0"])
    blk += pre_ + q0
    prek = []
    for a in range(4):
        u = U[f"K{a >> 1}"]
        for c in range(8):
            off = u.slot * SLOT + (a & 1) * 8192 + (c >> 2) * 4096 + (c & 3) * 256
            o = Op(f"ds_read_b128 {preK[a][c]}, {vKR[0]} offset:{off}", "ds", vKR[0].names, preK[a][c].names)
            u.reads.append(o)
            prek.append(o)
    blk += prek
    fixed[-1] = blk
    headwin = []
    for r in pre_tiles:
        if r > 0:
            u = U[f"Q{r}"]
            pre_, qr = q_reads(u)
            for o in qr:
                o.meta["need_vm_unit"] = (u, o.meta["qhalf"])
            blk = pre_ + qr
            last = r == pre_tiles[-1]
            bb = barrier(0 if last else "c", len(M) - 1, False)
            bb.meta["need_lgkm"] = qr + prek + q0
            blk.append(bb)
            blk += stamp(f"Q{r}", True)
            fixed[len(M) - 1] = blk
        st = len(M)
        for a in range(4):
            chain(0, r, a, preK[a])
        headwin.append((st, len(M) - 1))
        for o in vq:
            o.meta.setdefault("pre", len(M) - 1)
    b0 = bars[-1]
    b0.meta["units"] = [U["K2"], U["V0"]]
    U["K2"].vis = U["V0"].vis = b0

    kfree = {}
    kctr = [0]
    start_int = {}
    grp_end = {}
    q2_first = None
    for p in range(NS):
        qk = act(p + 1) if p + 1 < NS else ()
        if y and p == 7:
            vpool["bufs"] = list(VFB) + [64 + 8 * b for b in range(4)]
            for b in vpool["bufs"][4:]:
                vfree[b] = len(M) - 1
        for q in range(4):
            n = 2 * p + (q >> 1)
            if q % 2 == 0:
                start_int[n] = len(M)
            nc = len(qk)
            order = {3: "cGcGcGG", 2: "cGGcGG", 1: "cGGGG", 0: "GGGG"}[nc]
            if (p == 0 and q == 0) or (nc and q == 3 and (p + 2 >= NS or len(act(p + 2)) < 2)):
                order = "c" * nc + "GGGG"
            u = U[f"K{n + 2}"] if nc else None
            kb = kctr[0] % 2 if nc == 1 else 0
            if nc:
                kctr[0] += 1
            ci = gi = 0
            for ch in order:
                if ch == "c":
                    st = len(M)
                    if ci == 0:
                        for c in range(8):
                            dsq.append(dict(kind="K", dst=KF[kb][c], u=u, off=(q & 1) * 8192 + (c >> 2) * 4096 + (c & 3) * 256,
                                            cons=st + c, free=kfree.get((kb, c), b0.gap)))
                    r = qk[ci]
                    if r == 2 and y and q2_first is None:
                        q2_first = st
                    chain(p + 1, r, q, KF[kb])
                    if ci == nc - 1:
                        for c in range(8):
                            kfree[(kb, c)] = st + c
                    ci += 1
                else:
                    grp_end[(p, 4 * q + gi)] = group(p, 4 * q + gi)
                    gi += 1
    NM = len(M)
    if y:
        for c in range(8):
            dsq.append(dict(kind="Q", dst=Q[2][c], u=U["Q2"], c=c, cons=q2_first + c, free=b0.gap))

    dsq.sort(key=lambda d: d["cons"])
    nxt = 1 << 30
    for d in reversed(dsq):
        dl = d["cons"] - cfg.lat
        e = max(d["free"], b0.gap + 1)
        g = min(dl, nxt - 2)
        if g < e:
            g = min(dl, nxt - 1)
        if g < e:
            g = e
        d["gap"], d["e"], d["dl"] = g, e, dl
        nxt = g
    prev = -10
    late = 0
    cnt = 0
    for d in dsq:
        g = max(d["gap"], d["e"], prev)
        if g == prev:
            cnt += 1
            if cnt >= 2 or g + 1 <= d["dl"]:
                g += 1
                cnt = 0
        else:
            cnt = 0
        g = min(g, d["cons"] - 2)
        assert g >= d["e"] and g >= prev, (d, g, prev)
        late += g > d["dl"]
        d["gap"] = g
        prev = g

    NI = 2 * NS
    lastq = NI - 2
    prevg = b0.gap
    for n in range(1, NI):
        us = [U[f"V{n}"]] + ([U[f"K{n + 2}"]] if n + 2 < NI else [])
        first = min(d["gap"] for d in dsq if d["u"] in us)
        g = max(first - 1, prevg + 1)
        assert g < first
        b = barrier(n, g, True)
        b.meta["units"] = us
        for u in us:
            u.vis = b
        prevg = g
    lastcons = {}
    for d in dsq:
        lastcons[d["u"].name] = max(lastcons.get(d["u"].name, -1), d["cons"])
    stg_bar = None
    if y == 0:
        g = start_int[lastq] + 1
        stg_bar = barrier("stg", g, True)
        bars.sort(key=lambda b: b.gap)

    def release(u):
        if u.name in ("K0", "K1", "Q1", "Q2") and u.name not in lastcons:
            return bars.index(b0)
        if u.name == "Q0":
            return min(i for i, b in enumerate(bars) if b.gap >= 0)
        c = [i for i, b in enumerate(bars) if b.gap >= lastcons[u.name]]
        return min(c) if c else len(bars)

    free_at = {s: -1 for s in range(10)}
    for u in U.values():
        if u.slot is not None and not (y and u.name == "Q2"):
            for k in range(u.nslots):
                free_at[u.slot + k] = release(u)
    order = ["K2", "V0"]
    for n in range(1, NI):
        if n + 2 < NI:
            order.append(f"K{n + 2}")
        order.append(f"V{n}")
    if y:
        order.insert(order.index("K4"), "Q2")
    dmaq = []
    cur_gap = -1
    ib0 = bars.index(b0)
    for name in order:
        u = U[name]
        if u.dmas:
            continue
        if name in ("K2", "V0"):
            w = -1
        elif name == "Q2":
            w = max(free_at[4], free_at[5])
            free_at[4] = free_at[5] = release(u)
        else:
            cand = list(free_at)
            if y == 0 and name in ("V14", "V15"):
                cand = [8, 9]
            elif y == 0 and name in ("K14", "K15", "V12", "V13"):
                cand = range(8)
            elif y:
                lim = bars.index(U["V14"].vis)
                if release(u) > lim:
                    cand = range(3, 10)
            slot = min(cand, key=lambda s: (free_at[s], s))
            w = free_at[slot]
            u.slot = slot
            free_at[slot] = release(u)
        e = bars[w].gap + 2 if w >= 0 else 1
        ops = u.make_dmas(vqd[2]) if name == "Q2" else u.make_dmas()
        for d in ops:
            d.earliest = e
            d.meta["bar"] = bars[w] if w >= 0 else None
            dmaq.append(d)
    gap_ds = {}
    for d in dsq:
        gap_ds.setdefault(d["gap"], []).append(d)
    gap_dma = {}
    last = -10
    for d in dmaq:
        u = d.meta["unit"]
        sp = cfg.dma_sp if last > b0.gap else 3
        g = max(d.earliest, last + sp)
        while g in gap_ds or g in fixed:
            g += 1
        if u.vis is not None and g >= u.vis.gap - 1:
            raise SystemExit(f"DMA of {u.name} too late: {g} vs {u.vis.gap}")
        gap_dma[g] = d
        d.gap = g
        last = g
    flight = {u.name: u.vis.gap - u.dmas[-1].gap for u in U.values() if u.vis is not None and u.dmas[-1].gap is not None}
    for b in bars:
        b.meta["need_vm"] = [d for u in b.meta["units"] for d in u.dmas]

    reads = []
    for d in dsq:
        u = d["u"]
        if d["kind"] == "Q":
            c = d["c"]
            off = u.slot * SLOT - 65536 + (c >> 2) * 4096 + (c & 3) * 256
            o = Op(f"ds_read_b128 {d['dst']}, {vQR} offset:{off}", "ds", vQR.names, d["dst"].names)
            o.meta["need_vm"] = u.dmas[(c >> 2) * 4:(c >> 2) * 4 + 4]
            o.meta["hoist_wait"] = True
        else:
            w, off = divmod(u.slot * SLOT + d["off"], 65536)
            if d["kind"] == "K":
                o = Op(f"ds_read_b128 {d['dst']}, {vKR[w]} offset:{off}", "ds", vKR[w].names, d["dst"].names)
            else:
                a = vVR[d["h"]][w]
                o = Op(f"ds_read_b64_tr_b16 {d['dst']}, {a} offset:{off}", "ds", a.names, d["dst"].names)
        o.gap = d["gap"]
        u.reads.append(o)
        d["op"] = o
        reads.append(o)
    for blk in fixed.values():
        for o in blk:
            if "need_vm_unit" in o.meta:
                u, h = o.meta["need_vm_unit"]
                o.meta["need_vm"] = u.dmas[4 * h:4 * h + 4]

    def finish_rows(rows):
        fin = {}
        for r in rows:
            ops = xlane("v_add_f32", vL[r], vT[1 + r])
            prev = last_add_at[r]
            for o in ops:
                o.deps.append((prev, 1 if "permlane" in o.text else 0))
                prev = o
            rc = Op(f"v_rcp_f32 {vRL[r]}, {vL[r]}", "trans", vL[r].names, vRL[r].names)
            rc.deps.append((prev, 0))
            cm = valu(f"v_cmp_lt_f32 vcc, s{sThr}, {vL[r]}", vL[r].names + sn(sThr), ["svcc"])
            cm.deps.append((prev, 0))
            fl = salu(f"s_or_b64 s[{sFlag}:{sFlag + 1}], s[{sFlag}:{sFlag + 1}], vcc", ["svcc"] + sn(sFlag, 2), sn(sFlag, 2) + ["scc"])
            fl.deps.append((cm, 2))
            fin[r] = (ops, rc, cm, fl)
        out = []
        for k in range(6):
            for r in rows:
                out.append(fin[r][0][k])
        prevfl = None
        for r in rows:
            if prevfl is not None:
                fin[r][2].deps.append((prevfl, 0))
            out += [fin[r][1], fin[r][2], fin[r][3]]
            prevfl = fin[r][3]
        return out, {r: fin[r][1] for r in rows}

    last_add_at = dict(last_add)
    ep = []
    tq = [0]
    rq = [0]
    rb_last = {}
    tmp_last = {}
    stg_last_read = {}

    wr_all = {}

    def epilogue_tile(r, s, rcp, stg_off, rbq, tmps, after, packed_from, Ts):
        wr = wr_all.setdefault(r, {})
        per_T = {}
        for T in Ts:
            rdy = grp_end[(s, 2 * T + 1)] + cfg.sready
            X, Y = O[r][2 * T], O[r][2 * T + 1]
            src = [X[i] for i in range(4)] + [Y[i] for i in range(4)]
            ops = []
            rd = None
            if X.f == "a":
                ti = T % len(tmps)
                tb = tmps[ti]
                rd = []
                for i in range(8):
                    o = valu(f"v_accvgpr_read_b32 {tb[i]}, {src[i]}", src[i].names, tb[i].names)
                    o.earliest = rdy
                    o.deps += [(x, 0) for x in tmp_last.get(tb.lo, [])]
                    rd.append(o)
                ops += rd
                src = [tb[i] for i in range(8)]
            mu = []
            if T >= packed_from:
                for k in range(4):
                    pr = Reg("v", src[2 * k].lo, 2)
                    rl2 = Reg("v", vRL[r].lo, 2)
                    o = valu(f"v_pk_mul_f32 {pr}, {pr}, {rl2} op_sel_hi:[1,0]", names(pr, vRL[r]), pr.names)
                    o.earliest = NM
                    o.deps.append((rcp, 1))
                    if rd:
                        o.deps += [(rd[2 * k], 0), (rd[2 * k + 1], 0)]
                    mu += [o, o]
                ops += mu[::2]
            else:
                for i in range(8):
                    o = valu(f"v_mul_f32 {src[i]}, {src[i]}, {vRL[r]}", names(src[i], vRL[r]), src[i].names)
                    o.earliest = rdy
                    o.deps.append((rcp, 1))
                    if rd:
                        o.deps.append((rd[i], 0))
                    mu.append(o)
                ops += mu
            si = tq[0] % 8
            tq[0] += 1
            D = vS[si] if y == 0 else X if X.f == "v" else vP[(s + 1) & 1][T % 2][0]
            cv = []
            for k in range(4):
                o = valu(f"v_cvt_pk_bf16_f32 {D[k]}, {src[2 * k]}, {src[2 * k + 1]}", names(src[2 * k], src[2 * k + 1]), D[k].names)
                o.deps += [(mu[2 * k], 0), (mu[2 * k + 1], 0)]
                if D is X and k:
                    o.deps.append((cv[k - 1], 0))
                if y == 0:
                    o.deps += [(x, 0) for x in sbuf_last[si]]
                elif D is not X:
                    o.deps += [(x, 0) for x in tmp_last.get(D.lo, [])]
                cv.append(o)
            if rd:
                tmp_last[tb.lo] = cv
            w = Op(f"ds_write2_b64 {vSW}, {D[0:2]}, {D[2:4]} offset0:{8 * T} offset1:{8 * T + 4}", "ds", D.names + vSW.names, [])
            if stg_off:
                w = [Op(f"ds_write_b64 {vSW}, {D[0:2]} offset:{stg_off + 64 * T}", "ds", D[0:2].names + vSW.names, []),
                     Op(f"ds_write_b64 {vSW}, {D[2:4]} offset:{stg_off + 64 * T + 32}", "ds", D[2:4].names + vSW.names, [])]
            else:
                w = [w]
            for x in w:
                x.deps += [(c, 0) for c in cv]
                x.earliest = after
                x.deps += [(z, 0) for z in stg_last_read.get((stg_off, T >> 2), [])]
                x.meta["ep"] = True
            if y == 0:
                sbuf_last[si] = w
            elif D is not X:
                tmp_last[D.lo] = w
            wr[T] = w
            ops += cv + w
            if T % 4 == 3:
                H = T >> 2
                rds = []
                sts = []
                for k in range(4):
                    qd = rbq[rq[0] % len(rbq)]
                    rq[0] += 1
                    o = Op(f"ds_read_b128 {qd}, {vSR} offset:{stg_off + 4 * k * STG + 256 * H}", "ds", vSR.names, qd.names)
                    o.deps += [(x, 0) for tt in range(4 * H, 4 * H + 4) for x in wr[tt]]
                    o.deps += [(x, 0) for x in rb_last.get(qd.lo, [])]
                    o.meta["ep"] = True
                    stt = f"buffer_store_dwordx4 {qd}, {vST[r][k >> 1]}, s[{sO}:{sO + 3}], 0 offen offset:{(k & 1) * 2048 + 256 * H}"
                    if cfg.st:
                        stt += " " + cfg.st
                    so = Op(stt, "vstore", qd.names + vST[r][k >> 1].names + sn(sO, 4), [])
                    so.meta["data"] = frozenset(qd.names)
                    so.meta["hoist_wait"] = True
                    so.deps.append((o, cfg.lat))
                    rb_last[qd.lo] = [so]
                    rds.append(o)
                    sts.append(so)
                stg_last_read[(stg_off, H)] = rds
                ops += rds + sts
            per_T[T] = ops
        return per_T

    if y == 0:
        fo, rcp = finish_rows((0, 1, 2))
        vq += fo
        tmps = [Reg("v", 72, 8), Reg("v", 80, 8), Reg("v", 88, 8)]
        for tb in tmps:
            tmp_last[tb.lo] = []
        pf = cfg.pkfrom if cfg.pk else 99
        for T in range(8):
            for r in range(3):
                vq += epilogue_tile(r, 7, rcp[r], r * 16 * STG, KF[0] + KF[1], tmps, stg_bar.gap + 1, pf, [T])[T]
        lim0 = max(pbuf_free[(0, r)] for r in range(3))
        for o in vq:
            if "accvgpr_read" in o.text:
                o.earliest = max(o.earliest, lim0)
    else:
        raise SystemExit("skewed epilogue: see gen3")

    gaps = {g: {"s": [], "v": []} for g in range(-1, NM + 1)}
    for b in bars:
        if b.meta["hoist_wait"]:
            gaps[b.gap]["s"].append(b)
    for g, d in gap_dma.items():
        pre = d.pre
        d.pre = []
        gaps[g - 1]["s"].append(pre[-1])
        if len(pre) > 1:
            gaps[max(g - 2, 0)]["s"].insert(0, pre[0])

    def ready(o, g, strict=False):
        if o.earliest > g:
            return False
        for (d, k) in o.deps:
            if d.gap is None or d.gap + k > g or (strict and d.gap >= g):
                return False
        return True

    queue = list(vq)
    guard_at = {}
    for (g, ops) in guards:
        guard_at.setdefault(g, []).extend(ops)
    overflow = 0

    def place(o, g, where="v"):
        o.gap = g
        gaps[g][where].append(o)
        queue.remove(o)

    def force(o, g):
        nonlocal overflow
        if o.gap is not None:
            return
        for (d, k) in o.deps:
            if d.gap is None:
                force(d, g)
        assert o.earliest <= g, (o, g)
        overflow += 1
        place(o, g)

    W = 120
    for g in range(0, NM):
        cap = 2
        mem = False
        if g in gap_ds:
            for d in gap_ds[g]:
                gaps[g]["v"].append(d["op"])
            cap = 1 if len(gap_ds[g]) == 1 else 0
            mem = True
        elif g in gap_dma:
            gaps[g]["v"].append(gap_dma[g])
            cap = 0
            mem = True
        o = next((o for o in queue[:W] if o.kind == "salu" and ready(o, g)), None)
        if o is not None:
            place(o, g, "s")
        if not mem:
            mo = next((o for o in queue[:W] if o.kind in ("vstore", "ds") and ready(o, g, True)), None)
            ex = next((o for o in queue[:W] if o.kind == "trans" and ready(o, g)), None)
            if ex is not None:
                place(ex, g)
                cap = 0
            elif mo is not None:
                place(mo, g)
                cap = 1 if mo.kind == "ds" else 0
        while cap > 0:
            o = next((o for o in queue[:W] if o.kind == "valu" and ready(o, g)), None)
            if o is None:
                break
            place(o, g)
            cap -= 1
        for o in guard_at.get(g, []):
            force(o, g)
        if g in fixed and cfg.preflush:
            for o in list(queue):
                if o.meta.get("pre") is not None and o.meta["pre"] <= g:
                    place(o, g)
    tail = []
    clock = NM
    k = 0
    while queue:
        o = next((o for o in queue if o.kind in ("vstore",) and ready(o, clock, True)), None)
        if o is None:
            o = next((o for o in queue if o.kind == "ds" and ready(o, clock)), None)
        if o is None:
            o = next((o for o in queue if o.kind not in ("ds", "vstore") and ready(o, clock)), None)
        if o is None:
            clock += 1
            continue
        o.gap = clock
        queue.remove(o)
        tail.append(o)
        k += 1
        if k % 3 == 0:
            clock += 1

    prog = list(pro)
    for o in fixed[-1]:
        o.gap = -1
    prog += fixed[-1]
    inv_start = {v: k for k, v in start_int.items()}
    for g in range(NM):
        M[g].gap = g
        prog.append(M[g])
        if g + 1 in inv_start and inv_start[g + 1] % cfg.stamp_every == 0:
            prog += stamp(f"i{inv_start[g + 1]}", inv_start[g + 1] == 0 and False)
        prog += gaps[g]["s"]
        prog += gaps[g]["v"]
        if g in fixed:
            for o in fixed[g]:
                o.gap = g
            prog += fixed[g]
    prog += stamp("mfmaend")
    prog += stamp("mfmaendR", True)
    prog += tail
    prog += stamp("stissued", True)
    if cfg.stamps:
        prog.append(Op("s_waitcnt vmcnt(0)", "wait", meta={"fixed": True}))
        prog += stamp("drained", True)
    prog += stamp.finish()
    prog.append(Op(f"s_cmp_lg_u64 s[{sFlag}:{sFlag + 1}], 0", "raw"))
    prog.append(Op("s_cbranch_scc1 L_fallback", "raw"))

    for o in prog:
        if o.kind == "mfma":
            o.meta["cover"] = [x for x in reads if x.gap <= o.gap - 1 - cfg.age and x.gap > o.gap - 40]
    prog = insert_waits_cover(prog)
    prog, pads = fix_hazards(prog, verbose=cfg.verbose)
    verify_lds(prog, U, stg_bar, cfg)
    i0 = next(i for i, o in enumerate(prog) if o is M[start_int[0]])
    i1 = next(i for i, o in enumerate(prog) if o is M[-1])
    info = dict(NM=NM, late=late, overflow=overflow, pads=pads, est_main=estimate_cycles(prog[i0:i1 + 1]),
                ideal=16 * (NM - start_int[0]), est_tail=estimate_cycles(prog[i1 + 1:]), n=len(prog), tail=len(tail),
                waits=sum(1 for o in prog if o.kind == "wait"), minflight=min(flight.items(), key=lambda x: x[1]))
    if cfg.verbose:
        print("flight", flight)
        print("slots", {u.name: u.slot for u in U.values()})
        print("bars", [(b.meta["name"], b.gap) for b in bars])
        print("stamps", [n for n, r in stamp.list])
    cfg.stamp_names = stamp.list
    return prog, info


def insert_waits_cover(prog):
    pend = set()
    for o in prog:
        if o.kind == "ds":
            pend |= set(o.writes)
        if o.kind == "mfma" and (o.reads & pend):
            cov = o.meta.get("cover", [])
            o.meta["need_lgkm"] = cov
            for x in cov:
                pend -= set(x.writes)
            pend -= set(o.reads)
    return insert_waits(prog)


def verify_lds(prog, U, stg_bar, cfg):
    pos = {id(o): i for i, o in enumerate(prog)}
    bars = [o for o in prog if o.kind == "barrier"]
    occ = {}
    for u in U.values():
        for k in range(u.nslots):
            occ.setdefault(u.slot + k, []).append(u)
        if u.kind != "Q":
            for rd in u.reads:
                b = u.vis
                assert pos[id(b)] < pos[id(rd)], ("read before barrier", u.name)
                for d in u.dmas:
                    assert d.meta["vm_idx"] < b.meta["vm_done_at"], ("dma not waited", u.name)
    for s, us in occ.items():
        us.sort(key=lambda u: pos[id(u.dmas[0])])
        for a, b in zip(us, us[1:]):
            first = min(pos[id(d)] for d in b.dmas)
            ok = any(pos[id(br)] < first and all(rd.meta["lg_idx"] < br.meta["lg_done_at"] for rd in a.reads) for br in bars)
            assert ok, ("slot WAR", s, a.name, b.name)
    writes = [o for o in prog if o.kind == "ds" and o.text.startswith("ds_write")]
    firstw = min(pos[id(o)] for o in writes)
    lo, hi = cfg.stg_base, cfg.stg_base + 4 * cfg.stg_wave
    for s, us in occ.items():
        if s * SLOT < hi and (s + 1) * SLOT > lo:
            for u in us:
                ok = any(pos[id(br)] < firstw and all(rd.meta["lg_idx"] < br.meta["lg_done_at"] for rd in u.reads) for br in bars)
                assert ok, ("staging WAR", s, u.name)


def fallback(cfg):
    L = []
    A = L.append
    t = vT
    KFf = KF[0]
    VFf = [Reg("a", 192, 4), Reg("a", 200, 4)]
    A("L_fallback:")
    A("s_waitcnt vmcnt(0) lgkmcnt(0)")
    A("s_barrier")
    A(f"s_mul_i32 s{sT3}, s{sW}, 40960")
    A(f"v_and_b32 {t[0]}, 63, v0")
    A(f"v_bfe_u32 {t[2]}, {t[0]}, 2, 2")
    A(f"v_lshlrev_b32 {t[2]}, 9, {t[2]}")
    A(f"v_lshrrev_b32 {t[5]}, 4, {t[0]}")
    A(f"v_lshl_add_u32 {t[2]}, {t[5]}, 6, {t[2]}")
    A(f"v_and_b32 {t[3]}, 3, {t[0]}")
    fk = [Reg("v", 96 + i, 1) for i in range(4)]
    fv = [Reg("v", 100 + i, 1) for i in range(4)]
    for rg in range(4):
        A(f"v_xor_b32 {t[4]}, {FR[rg]}, {t[3]}")
        A(f"v_lshl_add_u32 {fk[rg]}, {t[4]}, 4, {t[2]}")
        A(f"v_add_u32 {fk[rg]}, {rg * 2048}, {fk[rg]}")
        A(f"v_xor_b32 {t[4]}, {2 * (rg & 1)}, {t[3]}")
        A(f"v_lshl_add_u32 {fv[rg]}, {t[4]}, 4, {t[2]}")
        A(f"v_add_u32 {fv[rg]}, {rg * 2048}, {fv[rg]}")
    rk, rv0, rv1 = Reg("v", 104, 1), Reg("v", 105, 1), Reg("v", 106, 1)
    so = [Reg("v", 107 + r, 1) for r in range(3)]
    tmp8 = Reg("v", 112, 8)
    A(f"v_add_u32 {rk}, s{sT3}, {vKR[0]}")
    A(f"v_add_u32 {rv0}, s{sT3}, {vVR[0][0]}")
    A(f"v_add_u32 {rv1}, s{sT3}, {vVR[1][0]}")
    A(f"v_and_b32 {t[6]}, 15, {t[0]}")
    A(f"s_mul_i32 s{sT1}, s{sW}, 48")
    A(f"v_add_u32 {t[6]}, s{sT1}, {t[6]}")
    A(f"v_lshlrev_b32 {t[6]}, 9, {t[6]}")
    A(f"v_and_b32 {t[7]}, 1, {t[5]}")
    A(f"v_lshl_add_u32 {t[6]}, {t[7]}, 5, {t[6]}")
    A(f"v_lshrrev_b32 {t[7]}, 1, {t[5]}")
    A(f"v_lshl_add_u32 {so[0]}, {t[7]}, 4, {t[6]}")
    A(f"v_add_u32 {so[1]}, 8192, {so[0]}")
    A(f"v_add_u32 {so[2]}, 16384, {so[0]}")
    A(f"s_mul_i32 s{sT2}, s{sW}, {48 * 512}")
    for r in range(3):
        for rg in range(4):
            A(f"v_add_u32 {t[8]}, s{sT2}, {fk[rg]}")
            A(f"v_add_u32 {t[8]}, {r * 8192}, {t[8]}")
            for half in range(2):
                A(f"s_add_u32 m0, s{sT3}, {half * 4096 + rg * 1024 - half * 256}")
                A("s_nop 0")
                A(f"buffer_load_dwordx4 {t[8]}, s[{sQ}:{sQ + 3}], 0 offen offset:{half * 256} lds")
        A("s_waitcnt vmcnt(0)")
        for c in range(8):
            A(f"ds_read_b128 {Q[r][c]}, {rk} offset:{(c >> 2) * 4096 + (c & 3) * 256}")
        A("s_waitcnt lgkmcnt(0)")
    Pf = [vP[0][r][0] for r in range(3)]

    def load_k():
        for a in range(2):
            A(f"s_add_u32 s{sT1}, s{sT0}, {a * 8192}")
            for half in range(2):
                for rg in range(4):
                    A(f"s_add_u32 m0, s{sT3}, {a * 8192 + half * 4096 + rg * 1024 - half * 256}")
                    A("s_nop 0")
                    A(f"buffer_load_dwordx4 {fk[rg]}, s[{sK}:{sK + 3}], s{sT1} offen offset:{half * 256} lds")

    def load_v():
        for dh in range(2):
            for a in range(2):
                A(f"s_add_u32 s{sT1}, s{sT0}, {a * 8192 + dh * 256}")
                for rg in range(4):
                    A(f"s_add_u32 m0, s{sT3}, {16384 + dh * 8192 + a * 4096 + rg * 1024}")
                    A("s_nop 0")
                    A(f"buffer_load_dwordx4 {fv[rg]}, s[{sV}:{sV + 3}], s{sT1} offen lds")

    def qk(a):
        for c in range(8):
            A(f"ds_read_b128 {KFf[c]}, {rk} offset:{a * 8192 + (c >> 2) * 4096 + (c & 3) * 256}")
        A("s_waitcnt lgkmcnt(0)")
        for r in range(3):
            for c in range(8):
                A(f"v_mfma_f32_16x16x32_bf16 {vS[r]}, {KFf[c]}, {Q[r][c]}, {vS[r] if c else 0}")
        A("s_nop 15")

    def xl(op, x, tmp):
        for o in xlane(op, x, tmp):
            A("s_nop 1")
            A(o.text)

    for r in range(3):
        A(f"v_mov_b32 {vNM[r]}, 0xff800000")
    A(f"s_mov_b32 s{sT0}, 0")
    A("L_fb1:")
    load_k()
    A("s_waitcnt vmcnt(0)")
    for a in range(2):
        qk(a)
        for r in range(3):
            A(f"v_max3_f32 {vNM[r]}, {vNM[r]}, {vS[r][0]}, {vS[r][1]}")
            A(f"v_max3_f32 {vNM[r]}, {vNM[r]}, {vS[r][2]}, {vS[r][3]}")
    A(f"s_add_u32 s{sT0}, s{sT0}, 16384")
    A(f"s_cmp_lt_u32 s{sT0}, 262144")
    A("s_cbranch_scc1 L_fb1")
    for r in range(3):
        xl("v_max_f32", vNM[r], t[4])
        A(f"v_mul_f32 {vNM[r]}, {f2u(-C_SCALE):#x}, {vNM[r]}")
        A(f"v_mov_b32 {vL[r]}, 0")
    for r in range(3):
        for tt in range(16):
            for i in range(4):
                x = O[r][tt][i]
                A(f"v_mov_b32 {x}, 0" if x.f == "v" else f"v_accvgpr_write_b32 {x}, 0")
    A(f"s_mov_b32 s{sT0}, 0")
    A("L_fb2:")
    load_k()
    load_v()
    A("s_waitcnt vmcnt(0)")
    for a in range(2):
        qk(a)
        for r in range(3):
            S = vS[r]
            for i in range(4):
                A(f"v_fma_f32 {S[i]}, {S[i]}, s{sC}, {vNM[r]}")
            for i in range(4):
                A(f"v_exp_f32 {S[i]}, {S[i]}")
            A("s_nop 1")
            for i in range(4):
                A(f"v_add_f32 {vL[r]}, {vL[r]}, {S[i]}")
            for k in range(2):
                A(f"v_cvt_pk_bf16_f32 {Pf[r][2 * a + k]}, {S[2 * k]}, {S[2 * k + 1]}")
    A("s_nop 3")
    for tt in range(16):
        for s in range(2):
            base = rv0 if (tt & 1) == 0 else rv1
            off = 16384 + (tt >> 3) * 8192 + s * 4096 + ((tt & 7) >> 1) * 256
            A(f"ds_read_b64_tr_b16 {VFf[tt & 1][2 * s:2 * s + 2]}, {base} offset:{off}")
        A("s_waitcnt lgkmcnt(0)")
        for r in range(3):
            A(f"v_mfma_f32_16x16x32_bf16 {O[r][tt]}, {VFf[tt & 1]}, {Pf[r]}, {O[r][tt]}")
    A("s_nop 15")
    A(f"s_add_u32 s{sT0}, s{sT0}, 16384")
    A(f"s_cmp_lt_u32 s{sT0}, 262144")
    A("s_cbranch_scc1 L_fb2")
    for r in range(3):
        xl("v_add_f32", vL[r], t[4])
        A(f"v_rcp_f32 {vRL[r]}, {vL[r]}")
    A("s_nop 3")
    for T in range(8):
        for r in range(3):
            X, Y = O[r][2 * T], O[r][2 * T + 1]
            src = [X[i] for i in range(4)] + [Y[i] for i in range(4)]
            if X.f == "a":
                for i in range(8):
                    A(f"v_accvgpr_read_b32 {tmp8[i]}, {src[i]}")
                src = [tmp8[i] for i in range(8)]
            for i in range(8):
                A(f"v_mul_f32 {src[i]}, {src[i]}, {vRL[r]}")
            D = vS[(3 * T + r) % 8]
            for k in range(4):
                A(f"v_cvt_pk_bf16_f32 {D[k]}, {src[2 * k]}, {src[2 * k + 1]}")
            A("s_nop 1")
            A(f"v_permlane16_swap_b32 {D[0]}, {D[2]}")
            A(f"v_permlane16_swap_b32 {D[1]}, {D[3]}")
            A(f"buffer_store_dwordx4 {D}, {so[r]}, s[{sO}:{sO + 3}], 0 offen offset:{64 * T}")
    A("s_waitcnt vmcnt(0)")
    return L


HEADER = """; GQA attention forward, B=8 Hq=16 Hkv=8 Sq=368 Sk=512 D=256, bf16 (emitted by my own generator script)
; and a wave with a sum above 2^64 recomputes its rows with the true row maximum (L_fallback).
; @launch grid=(256,1,1) block=(256,1,1) lds=163840
.amdgcn_target "amdgcn-amd-amdhsa--gfx950"
.text
.globl {k}
.p2align 8
.type {k},@function
{k}:
"""

FOOTER = """L_end:
    s_endpgm
.section .rodata,"a"
.p2align 6
.amdhsa_kernel {k}
  .amdhsa_next_free_vgpr 512
  .amdhsa_next_free_sgpr 102
  .amdhsa_accum_offset 256
  .amdhsa_group_segment_fixed_size 0
  .amdhsa_kernarg_size 48
  .amdhsa_user_sgpr_count 2
  .amdhsa_user_sgpr_kernarg_segment_ptr 1
  .amdhsa_system_sgpr_workgroup_id_x 1
.end_amdhsa_kernel
"""


def emit(cfg):
    prog, info = build(cfg)
    s = HEADER.format(k=KNAME)
    if cfg.stamps and cfg.spin == -1:
        s = "; stamps: " + " ".join(n + ("*" if r else "") for n, r in cfg.stamp_names) + "\n" + s
    for o in prog:
        s += (o.text if o.kind == "label" else "    " + o.text) + "\n"
    s += "    s_endpgm\nL_mainend:\n"
    for l in fallback(cfg):
        s += (l if l.endswith(":") else "    " + l) + "\n"
    s += FOOTER.format(k=KNAME)
    return s, info


Cfg.spin_name = ""
Cfg.stamp_every = 1
Cfg.pkfrom = 3
Cfg.stagger = ""
Cfg.cls_shift = 6
Cfg.cls_mask = 0

if __name__ == "__main__":
    ap = argparse.ArgumentParser()
    ap.add_argument("-o", default="standalone__gqa_softmax__near_ridge.s")
    ap.add_argument("-v", action="store_true")
    ap.add_argument("opts", nargs="*")
    a = ap.parse_args()
    cfg = Cfg()
    cfg.verbose = a.v
    for kv in a.opts:
        k, v = kv.split("=", 1)
        if k == "spin":
            cfg.spin, cfg.spin_name, cfg.stamps = 1, v, True
            continue
        old = getattr(cfg, k)
        if isinstance(old, bool):
            v = v in ("1", "true", "True")
        elif isinstance(old, int):
            v = int(v)
        elif isinstance(old, float):
            v = float(v)
        setattr(cfg, k, v.replace("+", " ") if isinstance(v, str) else v)
    s, info = emit(cfg)
    open(a.o, "w").write(s)
    print(info, len(s))
```

```python
import sys, math, argparse, struct
sys.path.insert(0, __file__.rsplit("/", 1)[0])
from ir import *

KNAME = "standalone__gqa_softmax__near_ridge_kernel"
C_SCALE = math.log2(math.e) / 16.0


def f2u(x):
    return struct.unpack("<I", struct.pack("<f", x))[0]


class Cfg:
    ldq = "nt"
    ldkv = "nt"
    ldkv0 = ""
    st = "sc1"
    lat = 6
    age = 5
    sready = 4
    stamps = False
    dbg = False
    spin = -1
    spinwg = -1
    codepf = True
    force_fallback = False
    dma_sp = 6
    preflush = True
    y = 0
    pk = True
    verbose = False


sQ, sK, sV, sO = 12, 16, 20, 24
sW1K = 28
sC = 29
sKoff = 30
sVoff = 31
sT0, sT1, sT2, sT3 = 32, 33, 34, 35
sW = 36
sThr = 37
sW8K = 38
sCls = 39
sFlag = 40
sDBG = 44
vKR = [Reg("v", 1, 1), Reg("v", 2, 1), Reg("v", 3, 1)]
vVR = [[Reg("v", 4 + 3 * h + w, 1) for w in range(3)] for h in range(2)]
vDK = [Reg("v", 10, 1), Reg("v", 11, 1)]
vDV = [Reg("v", 12 + a, 1) for a in range(4)]
vNM = [Reg("v", 16 + r, 1) for r in range(3)]
vL = [Reg("v", 19 + r, 1) for r in range(3)]
vRL = [Reg("v", 22 + 2 * r, 1) for r in range(3)]
vSW = Reg("v", 23, 1)
vSR = Reg("v", 25, 1)
vQR = Reg("v", 27, 1)
vT = Reg("v", 28, 12)
vS = [Reg("v", 40 + 4 * i, 4) for i in range(8)]
vP = [[[Reg("v", 72 + 24 * b + 8 * r + 4 * kc, 4) for kc in range(2)] for r in range(3)] for b in range(2)]
vST = [[Reg("v", 120 + 2 * r + k, 1) for k in range(2)] for r in range(3)]
vX = Reg("v", 126, 2)
vQD = [Reg("v", 36 + rg, 1) for rg in range(4)]
O = [[Reg("v", 128 + 4 * t, 4) for t in range(16)],
     [Reg("v", 192 + 4 * t, 4) for t in range(16)],
     [Reg("a", 4 * t, 4) for t in range(16)]]
preK = [[Reg("v", 128 + 32 * a + 4 * c, 4) for c in range(8)] for a in range(4)]
Q = [[Reg("a", 64 + 32 * r + 4 * c, 4) for c in range(8)] for r in range(3)]
KF = [[Reg("a", 160 + 4 * c, 4) for c in range(8)], [Reg("a", 224 + 4 * c, 4) for c in range(8)]]
VFB = [192 + 8 * b for b in range(4)]

SLOT = 16384
STG = 528
FR = (0, 2, 3, 1)


def sn(i, n=1):
    return R("s", i, n)


def valu(text, reads=(), writes=(), tag=""):
    return Op(text, "valu", reads, writes, tag)


def salu(text, reads=(), writes=()):
    return Op(text, "salu", reads, writes)


def names(*regs):
    out = []
    for r in regs:
        out += r.names if isinstance(r, Reg) else [r]
    return out


def mfma(D, A, B, C=None):
    c = str(C) if C is not None else "0"
    op = Op(f"v_mfma_f32_16x16x32_bf16 {D}, {A}, {B}, {c}", "mfma",
            names(A, B) + (C.names if C is not None else []), D.names)
    op.meta["srcab"] = frozenset(names(A, B))
    op.meta["srcc"] = frozenset(C.names) if C is not None else frozenset()
    return op


def dma(vaddr, srd, soff, imm, pol):
    so = f"s{soff}" if soff is not None else "0"
    t = f"buffer_load_dwordx4 {vaddr}, s[{srd}:{srd + 3}], {so} offen"
    if imm:
        t += f" offset:{imm}"
    if pol:
        t += " " + pol
    t += " lds"
    return Op(t, "dma", vaddr.names + sn(srd, 4) + (sn(soff) if soff is not None else []) + ["m0"], [])


def set_m0(const, base=sW1K):
    return salu(f"s_add_u32 m0, s{base}, {const}", sn(base), ["m0", "scc"])


class Unit:
    def __init__(self, kind, n, cfg):
        self.kind, self.n, self.cfg = kind, n, cfg
        self.slot = None
        self.nslots = 2 if kind == "Q" else 1
        self.dmas = []
        self.reads = []
        self.vis = None
        self.name = f"{kind}{n}"

    def make_dmas(self, vq=None):
        cfg = self.cfg
        ops = []
        base = self.slot * SLOT
        src = self.n % 16
        pol = cfg.ldkv0 if (self.n < 2 * cfg.y) else cfg.ldkv
        if self.kind == "K":
            so = salu(f"s_mov_b32 s{sKoff}, {src * 16384}", [], sn(sKoff))
            for a in range(2):
                for half in range(2):
                    d = dma(vDK[a], sK, sKoff, half * 256, pol)
                    d.pre = [set_m0(base + a * 8192 + half * 4096 - half * 256)]
                    ops.append(d)
            ops[0].pre.insert(0, so)
        elif self.kind == "V":
            j, h = divmod(src, 2)
            so = salu(f"s_mov_b32 s{sVoff}, {j * 32768 + h * 256}", [], sn(sVoff))
            for a in range(4):
                d = dma(vDV[a], sV, sVoff, 0, pol)
                d.pre = [set_m0(base + a * 4096)]
                ops.append(d)
            ops[0].pre.insert(0, so)
        else:
            for half in range(2):
                for rg in range(4):
                    d = dma(vq[rg], sQ, None, half * 256, cfg.ldq)
                    d.pre = [set_m0(base + half * 4096 + rg * 1024 - half * 256, sW8K)]
                    ops.append(d)
        for d in ops:
            d.meta["unit"] = self
        self.dmas = ops
        return ops


def flat_dmas(ops):
    out = []
    for d in ops:
        out += d.pre
        out.append(salu("s_nop 0"))
        out.append(d)
        d.pre = []
    return out


def xlane(op, x, tmp):
    o = []
    o.append(valu(f"v_mov_b32 {tmp}, {x}", x.names, tmp.names))
    o.append(valu(f"v_permlane32_swap_b32 {x}, {tmp}", names(x, tmp), names(x, tmp)))
    o.append(valu(f"{op} {x}, {x}, {tmp}", names(x, tmp), x.names))
    o.append(valu(f"v_mov_b32 {tmp}, {x}", x.names, tmp.names))
    o.append(valu(f"v_permlane16_swap_b32 {x}, {tmp}", names(x, tmp), names(x, tmp)))
    o.append(valu(f"{op} {x}, {x}, {tmp}", names(x, tmp), x.names))
    return o


class Stamps:
    def __init__(self, cfg):
        self.cfg = cfg
        self.list = []

    def __call__(self, name, real=False):
        cfg = self.cfg
        if not cfg.stamps:
            return []
        if cfg.spin != -1:
            if name != cfg.spin_name:
                return []
            return [Op("s_memrealtime s[48:49]", "salu")]
        k = len(self.list)
        assert 48 + 2 * k + 1 <= 101, "too many stamps"
        self.list.append((name, real))
        return [Op(f"{'s_memrealtime' if real else 's_memtime'} s[{48 + 2 * k}:{49 + 2 * k}]", "salu")]

    def finish(self):
        cfg = self.cfg
        o = []
        raw = lambda t: o.append(Op(t, "raw"))
        if not cfg.stamps:
            return o
        raw("s_waitcnt lgkmcnt(0)")
        if cfg.spin != -1:
            if cfg.spinwg >= 0:
                raw(f"s_cmp_lg_u32 s2, {cfg.spinwg}")
                raw("s_cbranch_scc1 L_end")
            o.append(Op("L_spin:", "label"))
            raw("s_memrealtime s[50:51]")
            raw("s_waitcnt lgkmcnt(0)")
            raw("s_sub_u32 s50, s50, s48")
            raw("s_cmp_lt_u32 s50, 5000")
            raw("s_cbranch_scc1 L_spin")
            return o
        raw("v_mov_b32 v40, 0")
        for k in range(len(self.list)):
            raw(f"v_writelane_b32 v40, s{48 + 2 * k}, {k}")
        raw(f"s_load_dwordx2 s[{sDBG}:{sDBG + 1}], s[0:1], 40")
        raw(f"s_mov_b32 s{sDBG + 2}, 0x1000000")
        raw(f"s_mov_b32 s{sDBG + 3}, 0x00020000")
        raw("s_lshl_b32 s48, s2, 8")
        raw("v_add_u32 v41, s48, v0")
        raw("v_lshlrev_b32 v41, 2, v41")
        raw("s_waitcnt lgkmcnt(0)")
        raw(f"buffer_store_dword v40, v41, s[{sDBG}:{sDBG + 3}], 0 offen")
        return o


def prologue(cfg, U, stamp):
    P = []
    A = P.append
    raw = lambda t: A(Op(t, "raw"))
    raw("s_cmp_ge_u32 s2, 256")
    raw("s_cbranch_scc1 L_end")
    raw("s_load_dwordx4 s[4:7], s[0:1], 0")
    raw("s_load_dwordx4 s[8:11], s[0:1], 16")
    P += stamp("start", True)
    t = vT
    lane, wv, common, cpos, f_w = t[0], t[1], t[2], t[3], t[4]
    if cfg.codepf:
        raw("s_getpc_b64 s[42:43]")
        A(Op("L_pfbase:", "label"))
        A(valu(f"v_lshlrev_b32 {t[10]}, 7, v0", ["v0"], t[10].names))
        A(Op(f"global_load_dword {vX[0]}, {t[10]}, s[42:43]", "vload", t[10].names, vX[0].names))
    A(valu(f"v_lshrrev_b32 {wv}, 6, v0", ["v0"], wv.names))
    A(valu(f"v_and_b32 {lane}, 63, v0", ["v0"], lane.names))
    A(valu(f"v_readfirstlane_b32 s{sW}, {wv}", wv.names, sn(sW)))
    A(salu(f"s_and_b32 s{sT0}, s2, 7", [], sn(sT0)))
    A(salu(f"s_lshr_b32 s{sT1}, s2, 5", [], sn(sT1)))
    A(salu(f"s_lshl3_add_u32 s{sT0}, s{sT1}, s{sT0}", [], sn(sT0)))
    A(salu(f"s_bfe_u32 s{sT1}, s2, 0x20003", [], sn(sT1)))
    A(salu(f"s_lshl2_add_u32 s{sT2}, s{sT0}, s{sT1}", [], sn(sT2)))
    A(salu(f"s_mul_i32 s{sT2}, s{sT2}, {184 * 512}", [], sn(sT2)))
    A(salu(f"s_lshl_b32 s{sT0}, s{sT0}, 18", [], sn(sT0)))
    A(valu(f"v_bfe_u32 {t[6]}, {lane}, 2, 2", lane.names, t[6].names))
    A(valu(f"v_lshrrev_b32 {t[5]}, 4, {lane}", lane.names, t[5].names))
    A(valu(f"v_lshlrev_b32 {common}, 9, {t[6]}", t[6].names, common.names))
    A(valu(f"v_lshl_add_u32 {common}, {t[5]}, 6, {common}", names(t[5], common), common.names))
    A(valu(f"v_and_b32 {cpos}, 3, {lane}", lane.names, cpos.names))
    A(salu(f"s_lshl_b32 s{sT1}, s{sW}, 1", sn(sW), sn(sT1)))
    A(salu(f"s_lshr_b32 s{sT1}, 0x78, s{sT1}", [], sn(sT1)))
    A(salu(f"s_and_b32 s{sT1}, s{sT1}, 3", [], sn(sT1)))
    A(salu(f"s_lshl_b32 s{sW1K}, s{sW}, 10", sn(sW), sn(sW1K)))
    A(salu(f"s_lshl_b32 s{sW8K}, s{sW}, 13", sn(sW), sn(sW8K)))
    A(valu(f"v_xor_b32 {f_w}, s{sT1}, {cpos}", cpos.names, f_w.names))
    A(valu(f"v_lshl_add_u32 {t[7]}, {wv}, 11, {common}", names(wv, common), t[7].names))
    A(valu(f"v_lshl_add_u32 {vDK[0]}, {f_w}, 4, {t[7]}", names(f_w, t[7]), vDK[0].names))
    A(valu(f"v_add_u32 {vDK[1]}, 8192, {vDK[0]}", vDK[0].names, vDK[1].names))
    vq = [[Reg("v", 72 + 4 * r + rg, 1) for rg in range(4)] for r in range(3)]
    if cfg.y:
        vq[2] = vQD
    qb = Reg("v", 84, 1)
    A(valu(f"v_mad_u32_u24 {qb}, {wv}, s{sT3}, {common}", names(wv, common), qb.names))
    P.insert(len(P) - 1, salu(f"s_mov_b32 s{sT3}, {48 * 512}", [], sn(sT3)))
    for rg in range(4):
        x = Reg("v", 85, 1)
        A(valu(f"v_xor_b32 {x}, {FR[rg]}, {cpos}", cpos.names, x.names))
        A(valu(f"v_lshl_add_u32 {vq[0][rg]}, {x}, 4, {qb}", names(x, qb), vq[0][rg].names))
        if rg:
            A(valu(f"v_add_u32 {vq[0][rg]}, {rg * 2048}, {vq[0][rg]}", vq[0][rg].names, vq[0][rg].names))
    A(Op("s_waitcnt lgkmcnt(0)", "wait", meta={"fixed": True}))
    P += stamp("karg", True)

    def srd(srd, p, off, nrec):
        A(salu(f"s_add_u32 s{srd}, s{p}, s{off}", [], sn(srd)))
        A(salu(f"s_addc_u32 s{srd + 1}, s{p + 1}, 0", [], sn(srd + 1)))
        A(salu(f"s_mov_b32 s{srd + 2}, {nrec}", [], sn(srd + 2)))
        A(salu(f"s_mov_b32 s{srd + 3}, 0x00020000", [], sn(srd + 3)))

    def vaddr():
        A(valu(f"v_and_b32 {t[9]}, 1, {wv}", wv.names, t[9].names))
        A(valu(f"v_lshlrev_b32 {t[9]}, 1, {t[9]}", t[9].names, t[9].names))
        A(valu(f"v_xor_b32 {t[9]}, {t[9]}, {cpos}", names(t[9], cpos), t[9].names))
        A(valu(f"v_lshl_add_u32 {vDV[0]}, {t[9]}, 4, {t[7]}", names(t[9], t[7]), vDV[0].names))
        for a in range(1, 4):
            A(valu(f"v_add_u32 {vDV[a]}, {8192 * a}, {vDV[0]}", vDV[0].names, vDV[a].names))

    def codepf2():
        if cfg.codepf:
            A(valu(f"v_add_u32 {t[10]}, 32768, {t[10]}", t[10].names, t[10].names))
            A(valu(f"v_min_u32 {t[10]}, L_mainend - L_pfbase, {t[10]}", t[10].names, t[10].names))
            A(Op(f"global_load_dword {vX[1]}, {t[10]}, s[42:43]", "vload", t[10].names, vX[1].names))

    def cwait(k):
        raw(f"s_cmp_lt_u32 s{sCls}, {k}")
        raw(f"s_cbranch_scc1 L_nw{k}")
        raw("s_waitcnt vmcnt(0)")
        A(Op(f"L_nw{k}:", "label"))

    srd(sK, 6, sT0, 262144)
    if cfg.stagger:
        P += flat_dmas(U["K0"].make_dmas())
        A(salu(f"s_lshr_b32 s{sCls}, s2, {cfg.cls_shift}", [], sn(sCls)))
        if cfg.cls_mask:
            A(salu(f"s_and_b32 s{sCls}, s{sCls}, {cfg.cls_mask}", [], sn(sCls)))
        srd(sQ, 4, sT2, 184 * 512)
        srd(sV, 8, sT0, 262144)
        vaddr()
        seq = cfg.stagger.split(",")
        for x in seq:
            if x[0] == "w":
                cwait(int(x[1:]))
            elif x == "pf":
                codepf2()
            elif x[0] == "Q":
                r = int(x[1])
                if r:
                    for rg in range(4):
                        A(valu(f"v_add_u32 {vq[r][rg]}, {8192 * r}, {vq[0][rg]}", vq[0][rg].names, vq[r][rg].names))
                P += flat_dmas(U[x].make_dmas(vq[r]))
            else:
                P += flat_dmas(U[x].make_dmas())
        srd(sO, 10, sT2, 184 * 512)
    else:
        srd(sQ, 4, sT2, 184 * 512)
        if cfg.stag2:
            raw(f"s_lshr_b32 s{sCls}, s2, 5")
            raw(f"s_lshl_b32 s{sCls}, s{sCls}, 2")
            raw(f"s_lshr_b32 s{sCls}, {cfg.stag2}, s{sCls}")
            raw(f"s_and_b32 s{sCls}, s{sCls}, 15")
            raw(f"s_cbranch_scc0 L_go")
            raw(f"v_lshlrev_b32 {t[9]}, {cfg.stag_sh}, v0")
            raw(f"s_mov_b32 s{sKoff}, 0")
            A(Op("L_warm:", "label"))
            raw(f"buffer_load_dword {t[8]}, {t[9]}, s[{sK}:{sK + 3}], s{sKoff} offen {cfg.ldkv}")
            raw(f"s_add_u32 s{sKoff}, s{sKoff}, {256 << cfg.stag_sh}")
            raw(f"s_sub_u32 s{sCls}, s{sCls}, 1")
            raw("s_waitcnt vmcnt(0)")
            raw(f"s_cmp_lg_u32 s{sCls}, 0")
            raw("s_cbranch_scc1 L_warm")
            A(Op("L_go:", "label"))
        P += flat_dmas(U["K0"].make_dmas())
        P += flat_dmas(U["Q0"].make_dmas(vq[0]))
        P += flat_dmas(U["K1"].make_dmas())
        codepf2()
        for rg in range(4):
            A(valu(f"v_add_u32 {vq[1][rg]}, 8192, {vq[0][rg]}", vq[0][rg].names, vq[1][rg].names))
        P += flat_dmas(U["Q1"].make_dmas(vq[1]))
        srd(sV, 8, sT0, 262144)
        srd(sO, 10, sT2, 184 * 512)
        vaddr()
    g = t[5]
    A(valu(f"v_lshlrev_b32 {t[10]}, 1, {t[6]}", t[6].names, t[10].names))
    A(valu(f"v_lshrrev_b32 {t[10]}, {t[10]}, 0x78".replace("0x78", str(t[11])), names(t[10], t[11]), t[10].names))
    P.insert(len(P) - 1, valu(f"v_mov_b32 {t[11]}, 0x78", [], t[11].names))
    A(valu(f"v_and_b32 {t[10]}, 3, {t[10]}", t[10].names, t[10].names))
    A(valu(f"v_xor_b32 {t[10]}, {t[10]}, {g}", names(t[10], g), t[10].names))
    A(valu(f"v_lshlrev_b32 {t[10]}, 4, {t[10]}", t[10].names, t[10].names))
    A(valu(f"v_lshl_add_u32 {t[10]}, {t[6]}, 10, {t[10]}", names(t[6], t[10]), t[10].names))
    A(valu(f"v_lshl_add_u32 {vKR[0]}, {cpos}, 6, {t[10]}", names(cpos, t[10]), vKR[0].names))
    A(valu(f"v_add_u32 {vKR[1]}, 0x10000, {vKR[0]}", vKR[0].names, vKR[1].names))
    A(valu(f"v_add_u32 {vKR[2]}, 0x20000, {vKR[0]}", vKR[0].names, vKR[2].names))
    A(valu(f"v_lshlrev_b32 {t[10]}, 10, {g}", g.names, t[10].names))
    A(valu(f"v_lshl_add_u32 {t[10]}, {t[6]}, 6, {t[10]}", names(t[6], t[10]), t[10].names))
    A(valu(f"v_lshl_add_u32 {t[10]}, {cpos}, 3, {t[10]}", names(cpos, t[10]), t[10].names))
    A(valu(f"v_and_b32 {t[11]}, 1, {g}", g.names, t[11].names))
    A(valu(f"v_lshl_add_u32 {vVR[0][0]}, {t[11]}, 5, {t[10]}", names(t[11], t[10]), vVR[0][0].names))
    A(valu(f"v_xor_b32 {vVR[1][0]}, 32, {vVR[0][0]}", vVR[0][0].names, vVR[1][0].names))
    for h in range(2):
        for w in (1, 2):
            A(valu(f"v_add_u32 {vVR[h][w]}, {w * 65536}, {vVR[h][0]}", vVR[h][0].names, vVR[h][w].names))
    n15 = t[11]
    A(valu(f"v_and_b32 {n15}, 15, {lane}", lane.names, n15.names))
    A(valu(f"v_mad_u32_u24 {t[10]}, {wv}, 48, {g}", names(wv, g), t[10].names))
    A(valu(f"v_lshlrev_b32 {t[10]}, 9, {t[10]}", t[10].names, t[10].names))
    A(valu(f"v_lshl_add_u32 {vST[0][0]}, {n15}, 4, {t[10]}", names(n15, t[10]), vST[0][0].names))
    for r in range(3):
        for k in range(2):
            if r or k:
                A(valu(f"v_add_u32 {vST[r][k]}, {r * 8192 + k * 4096}, {vST[0][0]}", vST[0][0].names, vST[r][k].names))
    A(salu(f"s_mul_i32 s{sT3}, s{sW}, {cfg.stg_wave}", sn(sW), sn(sT3)))
    A(salu(f"s_add_u32 s{sT3}, s{sT3}, {cfg.stg_base}", [], sn(sT3)))
    A(valu(f"v_mul_u32_u24 {t[10]}, {STG}, {n15}", n15.names, t[10].names))
    A(valu(f"v_lshl_add_u32 {t[10]}, {g}, 3, {t[10]}", names(g, t[10]), t[10].names))
    A(valu(f"v_add_u32 {vSW}, s{sT3}, {t[10]}", t[10].names, vSW.names))
    A(valu(f"v_mul_u32_u24 {t[10]}, {STG}, {g}", g.names, t[10].names))
    A(valu(f"v_lshl_add_u32 {t[10]}, {n15}, 4, {t[10]}", names(n15, t[10]), t[10].names))
    A(valu(f"v_add_u32 {vSR}, s{sT3}, {t[10]}", t[10].names, vSR.names))
    A(valu(f"v_add_u32 {vQR}, s{sW8K}, {vKR[1]}", vKR[1].names + sn(sW8K), vQR.names))
    A(salu(f"s_mov_b32 s{sC}, {f2u(C_SCALE):#x}", [], sn(sC)))
    A(salu(f"s_mov_b32 s{sThr}, {f2u(2.0 ** 64 if not cfg.force_fallback else 1.0):#x}", [], sn(sThr)))
    A(salu(f"s_mov_b64 s[{sFlag}:{sFlag + 1}], 0", [], sn(sFlag, 2)))
    for r in range(3):
        A(valu(f"v_mov_b32 {vL[r]}, 0", [], vL[r].names))
    if not U["Q2"].dmas:
        for rg in range(4):
            A(valu(f"v_add_u32 {vq[2][rg]}, 16384, {vq[0][rg]}", vq[0][rg].names, vq[2][rg].names))
        if not cfg.y:
            P += flat_dmas(U["Q2"].make_dmas(vq[2]))
    P += stamp("issued", True)
    return P, vq


def q_reads(u):
    ops = []
    r = u.n
    base = u.slot * SLOT - 65536
    pre = []
    addr = vQR
    if base >= 65536:
        addr = vT[0]
        pre.append(valu(f"v_add_u32 {addr}, 0x10000, {vQR}", vQR.names, addr.names))
        base -= 65536
    for c in range(8):
        off = base + (c >> 2) * 4096 + (c & 3) * 256
        o = Op(f"ds_read_b128 {Q[r][c]}, {addr} offset:{off}", "ds", addr.names, Q[r][c].names)
        o.meta["qhalf"] = c >> 2
        o.meta["unit"] = u
        u.reads.append(o)
        ops.append(o)
    return pre, ops


def build(cfg):
    y = cfg.y
    NS = 8 + y
    act = lambda s: (0, 1) if s < y else ((0, 1, 2) if s < 8 else (2,))
    stamp = Stamps(cfg)
    U = {}
    for n in range(2 * NS):
        U[f"K{n}"] = Unit("K", n, cfg)
        U[f"V{n}"] = Unit("V", n, cfg)
    for r in range(3):
        U[f"Q{r}"] = Unit("Q", r, cfg)
    U["K0"].slot, U["K1"].slot, U["K2"].slot, U["V0"].slot = 0, 1, 2, 3
    U["Q0"].slot, U["Q1"].slot = 4, 6
    if y == 0:
        U["Q2"].slot = 8
        cfg.stg_base, cfg.stg_wave = 0, 32768
    else:
        U["Q2"].slot = 4
        cfg.stg_base, cfg.stg_wave = 0, 16 * STG

    pro, vqd = prologue(cfg, U, stamp)

    M = []
    fixed = {}
    dsq = []
    vq = []
    sbuf_last = [None] * 8
    sbuf_ctr = [0]
    guards = []
    Pcvt = {}
    negm_ready = {}
    pbuf_free = {}
    last_add = {}
    bars = []

    def softmax_ops(s, r, a, S, ready_gap):
        b = s & 1
        dst = vP[b][r][a >> 1]
        fm, ex, ad, cv = [], [], [], []
        for i in range(4):
            o = valu(f"v_fma_f32 {S[i]}, {S[i]}, s{sC}, {vNM[r]}", names(S[i], vNM[r]) + sn(sC), S[i].names)
            o.earliest = ready_gap
            o.deps.append((negm_ready[r], 0))
            fm.append(o)
        for i in range(4):
            o = Op(f"v_exp_f32 {S[i]}, {S[i]}", "trans", S[i].names, S[i].names)
            o.deps.append((fm[i], 0))
            ex.append(o)
        for i in range(4):
            o = valu(f"v_add_f32 {vL[r]}, {vL[r]}, {S[i]}", names(vL[r], S[i]), vL[r].names)
            o.deps.append((ex[i], 1))
            ad.append(o)
        for k in range(2):
            d = dst[2 * (a & 1) + k]
            o = valu(f"v_cvt_pk_bf16_f32 {d}, {S[2 * k]}, {S[2 * k + 1]}", names(S[2 * k], S[2 * k + 1]), d.names)
            o.deps += [(ex[2 * k], 1), (ex[2 * k + 1], 1)]
            o.earliest = pbuf_free.get((b, r), -1)
            cv.append(o)
        Pcvt[(s, r, a)] = cv
        vq.extend([fm[0], fm[1], ex[0], fm[2], ex[1], fm[3], ad[0], ex[2], ad[1], cv[0], ex[3], ad[2], ad[3], cv[1]])
        last_add[r] = ad[3]
        return ad + cv

    held = {}

    def chain(s, r, a, frags):
        si = sbuf_ctr[0] % 8
        sbuf_ctr[0] += 1
        S = vS[si]
        start = len(M)
        if sbuf_last[si]:
            guards.append((start - 1, sbuf_last[si]))
        for c in range(8):
            M.append(mfma(S, frags[c], Q[r][c], S if c else None))
        end = len(M) - 1
        if r not in negm_ready:
            held.setdefault(r, []).append((si, S, end, a))
            if len(held[r]) == 2:
                S0, S1 = held[r][0][1], held[r][1][1]
                m, tmp = vNM[r], vT[1 + r]
                ops = [valu(f"v_max3_f32 {m}, {S0[0]}, {S0[1]}, {S0[2]}", names(S0[0], S0[1], S0[2]), m.names),
                       valu(f"v_max3_f32 {tmp}, {S0[3]}, {S1[0]}, {S1[1]}", names(S0[3], S1[0], S1[1]), tmp.names),
                       valu(f"v_max3_f32 {m}, {m}, {S1[2]}, {S1[3]}", names(m, S1[2], S1[3]), m.names),
                       valu(f"v_max_f32 {m}, {m}, {tmp}", names(m, tmp), m.names)]
                ops += xlane("v_max_f32", m, tmp)
                ops.append(valu(f"v_mul_f32 {m}, {f2u(-C_SCALE):#x}, {m}", m.names, m.names))
                prev = None
                for o in ops:
                    o.earliest = end + cfg.sready
                    if prev is not None:
                        o.deps.append((prev, 1 if "permlane" in o.text else 0))
                    prev = o
                vq.extend(ops)
                negm_ready[r] = ops[-1]
                for (si2, S2, end2, a2) in held[r]:
                    sbuf_last[si2] = softmax_ops(s, r, a2, S2, end2 + cfg.sready)
        else:
            sbuf_last[si] = softmax_ops(s, r, a, S, end + cfg.sready)
        return start

    vpool = {"bufs": list(VFB), "ctr": 0}
    vfree = {}
    touched = set()

    def group(s, t):
        b = s & 1
        base = vpool["bufs"][vpool["ctr"] % len(vpool["bufs"])]
        vpool["ctr"] += 1
        VF = [Reg("a", base + 4 * kc, 4) for kc in range(2)]
        u = U[f"V{2 * s + (t >> 3)}"]
        tt = t & 7
        start = len(M)
        for kc in range(2):
            for k in range(2):
                a = 2 * kc + k
                dsq.append(dict(kind="V", dst=VF[kc][2 * k:2 * k + 2], h=tt & 1, u=u, off=a * 4096 + (tt >> 1) * 256,
                                cons=start + kc, free=vfree.get(base, -1)))
        for r in act(s):
            for kc in range(2):
                C = O[r][t] if (r, t) in touched else None
                touched.add((r, t))
                M.append(mfma(O[r][t], VF[kc], vP[b][r][kc], C))
                guards.append((len(M) - 3, Pcvt[(s, r, 2 * kc)] + Pcvt[(s, r, 2 * kc + 1)]))
            pbuf_free[(b, r)] = len(M) - 1
        vfree[base] = len(M) - 1
        return len(M) - 1

    def barrier(name, gap, hoist):
        o = Op("s_barrier", "barrier")
        o.meta.update(need_vm=[], need_lgkm=[], name=name, hoist_wait=hoist, units=[])
        o.gap = gap
        bars.append(o)
        return o

    pre_tiles = act(0)
    blk = []
    ba = barrier("a", -1, False)
    ba.meta["units"] = [U["K0"], U["K1"], U["Q0"]]
    U["K0"].vis = U["K1"].vis = U["Q0"].vis = ba
    blk.append(ba)
    blk += stamp("K0Q0", True)
    pre_, q0 = q_reads(U["Q0"])
    blk += pre_ + q0
    prek = []
    for a in range(4):
        u = U[f"K{a >> 1}"]
        for c in range(8):
            off = u.slot * SLOT + (a & 1) * 8192 + (c >> 2) * 4096 + (c & 3) * 256
            o = Op(f"ds_read_b128 {preK[a][c]}, {vKR[0]} offset:{off}", "ds", vKR[0].names, preK[a][c].names)
            u.reads.append(o)
            prek.append(o)
    blk += prek
    fixed[-1] = blk
    headwin = []
    for r in pre_tiles:
        if r > 0:
            u = U[f"Q{r}"]
            pre_, qr = q_reads(u)
            for o in qr:
                o.meta["need_vm_unit"] = (u, o.meta["qhalf"])
            blk = pre_ + qr
            last = r == pre_tiles[-1]
            bb = barrier(0 if last else "c", len(M) - 1, False)
            bb.meta["need_lgkm"] = qr + prek + q0
            blk.append(bb)
            blk += stamp(f"Q{r}", True)
            fixed[len(M) - 1] = blk
        st = len(M)
        for a in range(4):
            chain(0, r, a, preK[a])
        headwin.append((st, len(M) - 1))
        for o in vq:
            o.meta.setdefault("pre", len(M) - 1)
    b0 = bars[-1]
    b0.meta["units"] = [U["K2"], U["V0"]]
    U["K2"].vis = U["V0"].vis = b0

    kfree = {}
    kctr = [0]
    start_int = {}
    grp_end = {}
    q2_first = None
    for p in range(NS):
        qk = act(p + 1) if p + 1 < NS else ()
        if y and p == 7:
            vpool["bufs"] = list(VFB) + [64 + 8 * b for b in range(4)]
            for b in vpool["bufs"][4:]:
                vfree[b] = len(M) - 1
        for q in range(4):
            n = 2 * p + (q >> 1)
            if q % 2 == 0:
                start_int[n] = len(M)
            nc = len(qk)
            order = {3: "cGcGcGG", 2: "cGGcGG", 1: "cGGGG", 0: "GGGG"}[nc]
            if (p == 0 and q == 0) or (nc and q == 3 and (p + 2 >= NS or len(act(p + 2)) < 2)):
                order = "c" * nc + "GGGG"
            u = U[f"K{n + 2}"] if nc else None
            kb = kctr[0] % 2 if nc == 1 else 0
            if nc:
                kctr[0] += 1
            ci = gi = 0
            for ch in order:
                if ch == "c":
                    st = len(M)
                    if ci == 0:
                        for c in range(8):
                            dsq.append(dict(kind="K", dst=KF[kb][c], u=u, off=(q & 1) * 8192 + (c >> 2) * 4096 + (c & 3) * 256,
                                            cons=st + c, free=kfree.get((kb, c), b0.gap)))
                    r = qk[ci]
                    if r == 2 and y and q2_first is None:
                        q2_first = st
                    chain(p + 1, r, q, KF[kb])
                    if ci == nc - 1:
                        for c in range(8):
                            kfree[(kb, c)] = st + c
                    ci += 1
                else:
                    grp_end[(p, 4 * q + gi)] = group(p, 4 * q + gi)
                    gi += 1
    NM = len(M)
    if y:
        for c in range(8):
            dsq.append(dict(kind="Q", dst=Q[2][c], u=U["Q2"], c=c, cons=q2_first + c, free=b0.gap))

    dsq.sort(key=lambda d: d["cons"])
    nxt = 1 << 30
    for d in reversed(dsq):
        dl = d["cons"] - cfg.lat
        e = max(d["free"], b0.gap + 1)
        g = min(dl, nxt - 2)
        if g < e:
            g = min(dl, nxt - 1)
        if g < e:
            g = e
        d["gap"], d["e"], d["dl"] = g, e, dl
        nxt = g
    prev = -10
    late = 0
    cnt = 0
    for d in dsq:
        g = max(d["gap"], d["e"], prev)
        if g == prev:
            cnt += 1
            if cnt >= 2 or g + 1 <= d["dl"]:
                g += 1
                cnt = 0
        else:
            cnt = 0
        g = min(g, d["cons"] - 2)
        assert g >= d["e"] and g >= prev, (d, g, prev)
        late += g > d["dl"]
        d["gap"] = g
        prev = g

    NI = 2 * NS
    lastq = NI - 2
    prevg = b0.gap
    for n in range(1, NI):
        us = [U[f"V{n}"]] + ([U[f"K{n + 2}"]] if n + 2 < NI else [])
        first = min(d["gap"] for d in dsq if d["u"] in us)
        g = max(first - 1, prevg + 1)
        assert g < first
        b = barrier(n, g, True)
        b.meta["units"] = us
        for u in us:
            u.vis = b
        prevg = g
    lastcons = {}
    for d in dsq:
        lastcons[d["u"].name] = max(lastcons.get(d["u"].name, -1), d["cons"])
    stg_bar = None
    if y == 0:
        g = start_int[lastq] + 1
        stg_bar = barrier("stg", g, True)
        bars.sort(key=lambda b: b.gap)

    def release(u):
        if u.name in ("K0", "K1", "Q1", "Q2") and u.name not in lastcons:
            return bars.index(b0)
        if u.name == "Q0":
            return min(i for i, b in enumerate(bars) if b.gap >= 0)
        c = [i for i, b in enumerate(bars) if b.gap >= lastcons[u.name]]
        return min(c) if c else len(bars)

    free_at = {s: -1 for s in range(10)}
    for u in U.values():
        if u.slot is not None and not (y and u.name == "Q2"):
            for k in range(u.nslots):
                free_at[u.slot + k] = release(u)
    order = ["K2", "V0"]
    for n in range(1, NI):
        if n + 2 < NI:
            order.append(f"K{n + 2}")
        order.append(f"V{n}")
    if y:
        order.insert(order.index("K4"), "Q2")
    dmaq = []
    cur_gap = -1
    ib0 = bars.index(b0)
    for name in order:
        u = U[name]
        if u.dmas:
            continue
        if name in ("K2", "V0"):
            w = -1
        elif name == "Q2":
            w = max(free_at[4], free_at[5])
            free_at[4] = free_at[5] = release(u)
        else:
            cand = list(free_at)
            if y == 0 and name in ("V14", "V15"):
                cand = [8, 9]
            elif y == 0 and name in ("K14", "K15", "V12", "V13"):
                cand = range(8)
            elif y:
                lim = bars.index(U["V14"].vis)
                if release(u) > lim:
                    cand = range(3, 10)
            slot = min(cand, key=lambda s: (free_at[s], s))
            w = free_at[slot]
            u.slot = slot
            free_at[slot] = release(u)
        e = bars[w].gap + 2 if w >= 0 else 1
        ops = u.make_dmas(vqd[2]) if name == "Q2" else u.make_dmas()
        for d in ops:
            d.earliest = e
            d.meta["bar"] = bars[w] if w >= 0 else None
            dmaq.append(d)
    gap_ds = {}
    for d in dsq:
        gap_ds.setdefault(d["gap"], []).append(d)
    gap_dma = {}
    last = -10
    for d in dmaq:
        u = d.meta["unit"]
        sp = cfg.dma_sp if last > b0.gap else 3
        g = max(d.earliest, last + sp)
        while g in gap_ds or g in fixed:
            g += 1
        if u.vis is not None and g >= u.vis.gap - 1:
            raise SystemExit(f"DMA of {u.name} too late: {g} vs {u.vis.gap}")
        gap_dma[g] = d
        d.gap = g
        last = g
    flight = {u.name: u.vis.gap - u.dmas[-1].gap for u in U.values() if u.vis is not None and u.dmas[-1].gap is not None}
    for b in bars:
        b.meta["need_vm"] = [d for u in b.meta["units"] for d in u.dmas]

    reads = []
    for d in dsq:
        u = d["u"]
        if d["kind"] == "Q":
            c = d["c"]
            off = u.slot * SLOT - 65536 + (c >> 2) * 4096 + (c & 3) * 256
            o = Op(f"ds_read_b128 {d['dst']}, {vQR} offset:{off}", "ds", vQR.names, d["dst"].names)
            o.meta["need_vm"] = u.dmas[(c >> 2) * 4:(c >> 2) * 4 + 4]
            o.meta["hoist_wait"] = True
        else:
            w, off = divmod(u.slot * SLOT + d["off"], 65536)
            if d["kind"] == "K":
                o = Op(f"ds_read_b128 {d['dst']}, {vKR[w]} offset:{off}", "ds", vKR[w].names, d["dst"].names)
            else:
                a = vVR[d["h"]][w]
                o = Op(f"ds_read_b64_tr_b16 {d['dst']}, {a} offset:{off}", "ds", a.names, d["dst"].names)
        o.gap = d["gap"]
        u.reads.append(o)
        d["op"] = o
        reads.append(o)
    for blk in fixed.values():
        for o in blk:
            if "need_vm_unit" in o.meta:
                u, h = o.meta["need_vm_unit"]
                o.meta["need_vm"] = u.dmas[4 * h:4 * h + 4]

    def finish_rows(rows):
        fin = {}
        for r in rows:
            ops = xlane("v_add_f32", vL[r], vT[1 + r])
            prev = last_add_at[r]
            for o in ops:
                o.deps.append((prev, 1 if "permlane" in o.text else 0))
                prev = o
            rc = Op(f"v_rcp_f32 {vRL[r]}, {vL[r]}", "trans", vL[r].names, vRL[r].names)
            rc.deps.append((prev, 0))
            cm = valu(f"v_cmp_lt_f32 vcc, s{sThr}, {vL[r]}", vL[r].names + sn(sThr), ["svcc"])
            cm.deps.append((prev, 0))
            fl = salu(f"s_or_b64 s[{sFlag}:{sFlag + 1}], s[{sFlag}:{sFlag + 1}], vcc", ["svcc"] + sn(sFlag, 2), sn(sFlag, 2) + ["scc"])
            fl.deps.append((cm, 2))
            fin[r] = (ops, rc, cm, fl)
        out = []
        for k in range(6):
            for r in rows:
                out.append(fin[r][0][k])
        prevfl = None
        for r in rows:
            if prevfl is not None:
                fin[r][2].deps.append((prevfl, 0))
            out += [fin[r][1], fin[r][2], fin[r][3]]
            prevfl = fin[r][3]
        return out, {r: fin[r][1] for r in rows}

    last_add_at = dict(last_add)
    ep = []
    tq = [0]
    rq = [0]
    rb_last = {}
    tmp_last = {}
    stg_last_read = {}

    wr_all = {}

    def epilogue_tile(r, s, rcp, stg_off, rbq, tmps, after, packed_from, Ts):
        wr = wr_all.setdefault(r, {})
        per_T = {}
        for T in Ts:
            rdy = grp_end[(s, 2 * T + 1)] + cfg.sready
            X, Y = O[r][2 * T], O[r][2 * T + 1]
            src = [X[i] for i in range(4)] + [Y[i] for i in range(4)]
            ops = []
            rd = None
            if X.f == "a":
                ti = T % len(tmps)
                tb = tmps[ti]
                rd = []
                for i in range(8):
                    o = valu(f"v_accvgpr_read_b32 {tb[i]}, {src[i]}", src[i].names, tb[i].names)
                    o.earliest = rdy
                    o.deps += [(x, 0) for x in tmp_last.get(tb.lo, [])]
                    rd.append(o)
                ops += rd
                src = [tb[i] for i in range(8)]
            mu = []
            if T >= packed_from:
                for k in range(4):
                    pr = Reg("v", src[2 * k].lo, 2)
                    rl2 = Reg("v", vRL[r].lo, 2)
                    o = valu(f"v_pk_mul_f32 {pr}, {pr}, {rl2} op_sel_hi:[1,0]", names(pr, vRL[r]), pr.names)
                    o.earliest = NM
                    o.deps.append((rcp, 1))
                    if rd:
                        o.deps += [(rd[2 * k], 0), (rd[2 * k + 1], 0)]
                    mu += [o, o]
                ops += mu[::2]
            else:
                for i in range(8):
                    o = valu(f"v_mul_f32 {src[i]}, {src[i]}, {vRL[r]}", names(src[i], vRL[r]), src[i].names)
                    o.earliest = rdy
                    o.deps.append((rcp, 1))
                    if rd:
                        o.deps.append((rd[i], 0))
                    mu.append(o)
                ops += mu
            si = tq[0] % 8
            tq[0] += 1
            D = vS[si] if y == 0 else X if X.f == "v" else vP[(s + 1) & 1][T % 2][0]
            cv = []
            for k in range(4):
                o = valu(f"v_cvt_pk_bf16_f32 {D[k]}, {src[2 * k]}, {src[2 * k + 1]}", names(src[2 * k], src[2 * k + 1]), D[k].names)
                o.deps += [(mu[2 * k], 0), (mu[2 * k + 1], 0)]
                if D is X and k:
                    o.deps.append((cv[k - 1], 0))
                if y == 0:
                    o.deps += [(x, 0) for x in sbuf_last[si]]
                elif D is not X:
                    o.deps += [(x, 0) for x in tmp_last.get(D.lo, [])]
                cv.append(o)
            if rd:
                tmp_last[tb.lo] = cv
            w = Op(f"ds_write2_b64 {vSW}, {D[0:2]}, {D[2:4]} offset0:{8 * T} offset1:{8 * T + 4}", "ds", D.names + vSW.names, [])
            if stg_off:
                w = [Op(f"ds_write_b64 {vSW}, {D[0:2]} offset:{stg_off + 64 * T}", "ds", D[0:2].names + vSW.names, []),
                     Op(f"ds_write_b64 {vSW}, {D[2:4]} offset:{stg_off + 64 * T + 32}", "ds", D[2:4].names + vSW.names, [])]
            else:
                w = [w]
            for x in w:
                x.deps += [(c, 0) for c in cv]
                x.earliest = after
                x.deps += [(z, 0) for z in stg_last_read.get((stg_off, T >> 2), [])]
                x.meta["ep"] = True
            if y == 0:
                sbuf_last[si] = w
            elif D is not X:
                tmp_last[D.lo] = w
            wr[T] = w
            ops += cv + w
            if T % 4 == 3:
                H = T >> 2
                rds = []
                sts = []
                for k in range(4):
                    qd = rbq[rq[0] % len(rbq)]
                    rq[0] += 1
                    o = Op(f"ds_read_b128 {qd}, {vSR} offset:{stg_off + 4 * k * STG + 256 * H}", "ds", vSR.names, qd.names)
                    o.deps += [(x, 0) for tt in range(4 * H, 4 * H + 4) for x in wr[tt]]
                    o.deps += [(x, 0) for x in rb_last.get(qd.lo, [])]
                    o.meta["ep"] = True
                    stt = f"buffer_store_dwordx4 {qd}, {vST[r][k >> 1]}, s[{sO}:{sO + 3}], 0 offen offset:{(k & 1) * 2048 + 256 * H}"
                    if cfg.st:
                        stt += " " + cfg.st
                    so = Op(stt, "vstore", qd.names + vST[r][k >> 1].names + sn(sO, 4), [])
                    so.meta["data"] = frozenset(qd.names)
                    so.meta["hoist_wait"] = True
                    so.deps.append((o, cfg.lat))
                    rb_last[qd.lo] = [so]
                    rds.append(o)
                    sts.append(so)
                stg_last_read[(stg_off, H)] = rds
                ops += rds + sts
            per_T[T] = ops
        return per_T

    if y == 0:
        fo, rcp = finish_rows((0, 1, 2))
        vq += fo
        tmps = [Reg("v", 72, 8), Reg("v", 80, 8), Reg("v", 88, 8)]
        for tb in tmps:
            tmp_last[tb.lo] = []
        pf = cfg.pkfrom if cfg.pk else 99
        for T in range(8):
            for r in range(3):
                vq += epilogue_tile(r, 7, rcp[r], r * 16 * STG, KF[0] + KF[1], tmps, stg_bar.gap + 1, pf, [T])[T]
        lim0 = max(pbuf_free[(0, r)] for r in range(3))
        for o in vq:
            if "accvgpr_read" in o.text:
                o.earliest = max(o.earliest, lim0)
    else:
        raise SystemExit("skewed epilogue: see gen3")

    gaps = {g: {"s": [], "v": []} for g in range(-1, NM + 1)}
    for b in bars:
        if b.meta["hoist_wait"]:
            gaps[b.gap]["s"].append(b)
    for g, d in gap_dma.items():
        pre = d.pre
        d.pre = []
        gaps[g - 1]["s"].append(pre[-1])
        if len(pre) > 1:
            gaps[max(g - 2, 0)]["s"].insert(0, pre[0])

    def ready(o, g, strict=False):
        if o.earliest > g:
            return False
        for (d, k) in o.deps:
            if d.gap is None or d.gap + k > g or (strict and d.gap >= g):
                return False
        return True

    queue = list(vq)
    guard_at = {}
    for (g, ops) in guards:
        guard_at.setdefault(g, []).extend(ops)
    overflow = 0

    def place(o, g, where="v"):
        o.gap = g
        gaps[g][where].append(o)
        queue.remove(o)

    def force(o, g):
        nonlocal overflow
        if o.gap is not None:
            return
        for (d, k) in o.deps:
            if d.gap is None:
                force(d, g)
        assert o.earliest <= g, (o, g)
        overflow += 1
        place(o, g)

    W = 120
    for g in range(0, NM):
        cap = 2
        mem = False
        if g in gap_ds:
            for d in gap_ds[g]:
                gaps[g]["v"].append(d["op"])
            cap = 1 if len(gap_ds[g]) == 1 else 0
            mem = True
        elif g in gap_dma:
            gaps[g]["v"].append(gap_dma[g])
            cap = 0
            mem = True
        o = next((o for o in queue[:W] if o.kind == "salu" and ready(o, g)), None)
        if o is not None:
            place(o, g, "s")
        if not mem:
            mo = next((o for o in queue[:W] if o.kind in ("vstore", "ds") and ready(o, g, True)), None)
            ex = next((o for o in queue[:W] if o.kind == "trans" and ready(o, g)), None)
            if ex is not None:
                place(ex, g)
                cap = 0
            elif mo is not None:
                place(mo, g)
                cap = 1 if mo.kind == "ds" else 0
        while cap > 0:
            o = next((o for o in queue[:W] if o.kind == "valu" and ready(o, g)), None)
            if o is None:
                break
            place(o, g)
            cap -= 1
        for o in guard_at.get(g, []):
            force(o, g)
        if g in fixed and cfg.preflush:
            for o in list(queue):
                if o.meta.get("pre") is not None and o.meta["pre"] <= g:
                    place(o, g)
    tail = []
    clock = NM
    k = 0
    while queue:
        o = next((o for o in queue if o.kind in ("vstore",) and ready(o, clock, True)), None)
        if o is None:
            o = next((o for o in queue if o.kind == "ds" and ready(o, clock)), None)
        if o is None:
            o = next((o for o in queue if o.kind not in ("ds", "vstore") and ready(o, clock)), None)
        if o is None:
            clock += 1
            continue
        o.gap = clock
        queue.remove(o)
        tail.append(o)
        k += 1
        if k % 3 == 0:
            clock += 1

    prog = list(pro)
    for o in fixed[-1]:
        o.gap = -1
    prog += fixed[-1]
    inv_start = {v: k for k, v in start_int.items()}
    for g in range(NM):
        M[g].gap = g
        prog.append(M[g])
        if g + 1 in inv_start and inv_start[g + 1] % cfg.stamp_every == 0:
            prog += stamp(f"i{inv_start[g + 1]}", inv_start[g + 1] == 0 and False)
        prog += gaps[g]["s"]
        prog += gaps[g]["v"]
        if g in fixed:
            for o in fixed[g]:
                o.gap = g
            prog += fixed[g]
    prog += stamp("mfmaend")
    prog += stamp("mfmaendR", True)
    prog += tail
    prog += stamp("stissued", True)
    if cfg.stamps:
        prog.append(Op("s_waitcnt vmcnt(0)", "wait", meta={"fixed": True}))
        prog += stamp("drained", True)
    prog += stamp.finish()
    prog.append(Op(f"s_cmp_lg_u64 s[{sFlag}:{sFlag + 1}], 0", "raw"))
    prog.append(Op("s_cbranch_scc1 L_fallback", "raw"))

    for o in prog:
        if o.kind == "mfma":
            o.meta["cover"] = [x for x in reads if x.gap <= o.gap - 1 - cfg.age and x.gap > o.gap - 40]
    prog = insert_waits_cover(prog)
    prog, pads = fix_hazards(prog, verbose=cfg.verbose)
    verify_lds(prog, U, stg_bar, cfg)
    i0 = next(i for i, o in enumerate(prog) if o is M[start_int[0]])
    i1 = next(i for i, o in enumerate(prog) if o is M[-1])
    info = dict(NM=NM, late=late, overflow=overflow, pads=pads, est_main=estimate_cycles(prog[i0:i1 + 1]),
                ideal=16 * (NM - start_int[0]), est_tail=estimate_cycles(prog[i1 + 1:]), n=len(prog), tail=len(tail),
                waits=sum(1 for o in prog if o.kind == "wait"), minflight=min(flight.items(), key=lambda x: x[1]))
    if cfg.verbose:
        print("flight", flight)
        print("slots", {u.name: u.slot for u in U.values()})
        print("bars", [(b.meta["name"], b.gap) for b in bars])
        print("stamps", [n for n, r in stamp.list])
    cfg.stamp_names = stamp.list
    return prog, info


def insert_waits_cover(prog):
    pend = set()
    for o in prog:
        if o.kind == "ds":
            pend |= set(o.writes)
        if o.kind == "mfma" and (o.reads & pend):
            cov = o.meta.get("cover", [])
            o.meta["need_lgkm"] = cov
            for x in cov:
                pend -= set(x.writes)
            pend -= set(o.reads)
    return insert_waits(prog)


def verify_lds(prog, U, stg_bar, cfg):
    pos = {id(o): i for i, o in enumerate(prog)}
    bars = [o for o in prog if o.kind == "barrier"]
    occ = {}
    for u in U.values():
        for k in range(u.nslots):
            occ.setdefault(u.slot + k, []).append(u)
        if u.kind != "Q":
            for rd in u.reads:
                b = u.vis
                assert pos[id(b)] < pos[id(rd)], ("read before barrier", u.name)
                for d in u.dmas:
                    assert d.meta["vm_idx"] < b.meta["vm_done_at"], ("dma not waited", u.name)
    for s, us in occ.items():
        us.sort(key=lambda u: pos[id(u.dmas[0])])
        for a, b in zip(us, us[1:]):
            first = min(pos[id(d)] for d in b.dmas)
            ok = any(pos[id(br)] < first and all(rd.meta["lg_idx"] < br.meta["lg_done_at"] for rd in a.reads) for br in bars)
            assert ok, ("slot WAR", s, a.name, b.name)
    writes = [o for o in prog if o.kind == "ds" and o.text.startswith("ds_write")]
    firstw = min(pos[id(o)] for o in writes)
    lo, hi = cfg.stg_base, cfg.stg_base + 4 * cfg.stg_wave
    for s, us in occ.items():
        if s * SLOT < hi and (s + 1) * SLOT > lo:
            for u in us:
                ok = any(pos[id(br)] < firstw and all(rd.meta["lg_idx"] < br.meta["lg_done_at"] for rd in u.reads) for br in bars)
                assert ok, ("staging WAR", s, u.name)


def fallback(cfg):
    L = []
    A = L.append
    t = vT
    KFf = KF[0]
    VFf = [Reg("a", 192, 4), Reg("a", 200, 4)]
    A("L_fallback:")
    A("s_waitcnt vmcnt(0) lgkmcnt(0)")
    A("s_barrier")
    A(f"s_mul_i32 s{sT3}, s{sW}, 40960")
    A(f"v_and_b32 {t[0]}, 63, v0")
    A(f"v_bfe_u32 {t[2]}, {t[0]}, 2, 2")
    A(f"v_lshlrev_b32 {t[2]}, 9, {t[2]}")
    A(f"v_lshrrev_b32 {t[5]}, 4, {t[0]}")
    A(f"v_lshl_add_u32 {t[2]}, {t[5]}, 6, {t[2]}")
    A(f"v_and_b32 {t[3]}, 3, {t[0]}")
    fk = [Reg("v", 96 + i, 1) for i in range(4)]
    fv = [Reg("v", 100 + i, 1) for i in range(4)]
    for rg in range(4):
        A(f"v_xor_b32 {t[4]}, {FR[rg]}, {t[3]}")
        A(f"v_lshl_add_u32 {fk[rg]}, {t[4]}, 4, {t[2]}")
        A(f"v_add_u32 {fk[rg]}, {rg * 2048}, {fk[rg]}")
        A(f"v_xor_b32 {t[4]}, {2 * (rg & 1)}, {t[3]}")
        A(f"v_lshl_add_u32 {fv[rg]}, {t[4]}, 4, {t[2]}")
        A(f"v_add_u32 {fv[rg]}, {rg * 2048}, {fv[rg]}")
    rk, rv0, rv1 = Reg("v", 104, 1), Reg("v", 105, 1), Reg("v", 106, 1)
    so = [Reg("v", 107 + r, 1) for r in range(3)]
    tmp8 = Reg("v", 112, 8)
    A(f"v_add_u32 {rk}, s{sT3}, {vKR[0]}")
    A(f"v_add_u32 {rv0}, s{sT3}, {vVR[0][0]}")
    A(f"v_add_u32 {rv1}, s{sT3}, {vVR[1][0]}")
    A(f"v_and_b32 {t[6]}, 15, {t[0]}")
    A(f"s_mul_i32 s{sT1}, s{sW}, 48")
    A(f"v_add_u32 {t[6]}, s{sT1}, {t[6]}")
    A(f"v_lshlrev_b32 {t[6]}, 9, {t[6]}")
    A(f"v_and_b32 {t[7]}, 1, {t[5]}")
    A(f"v_lshl_add_u32 {t[6]}, {t[7]}, 5, {t[6]}")
    A(f"v_lshrrev_b32 {t[7]}, 1, {t[5]}")
    A(f"v_lshl_add_u32 {so[0]}, {t[7]}, 4, {t[6]}")
    A(f"v_add_u32 {so[1]}, 8192, {so[0]}")
    A(f"v_add_u32 {so[2]}, 16384, {so[0]}")
    A(f"s_mul_i32 s{sT2}, s{sW}, {48 * 512}")
    for r in range(3):
        for rg in range(4):
            A(f"v_add_u32 {t[8]}, s{sT2}, {fk[rg]}")
            A(f"v_add_u32 {t[8]}, {r * 8192}, {t[8]}")
            for half in range(2):
                A(f"s_add_u32 m0, s{sT3}, {half * 4096 + rg * 1024 - half * 256}")
                A("s_nop 0")
                A(f"buffer_load_dwordx4 {t[8]}, s[{sQ}:{sQ + 3}], 0 offen offset:{half * 256} lds")
        A("s_waitcnt vmcnt(0)")
        for c in range(8):
            A(f"ds_read_b128 {Q[r][c]}, {rk} offset:{(c >> 2) * 4096 + (c & 3) * 256}")
        A("s_waitcnt lgkmcnt(0)")
    Pf = [vP[0][r][0] for r in range(3)]

    def load_k():
        for a in range(2):
            A(f"s_add_u32 s{sT1}, s{sT0}, {a * 8192}")
            for half in range(2):
                for rg in range(4):
                    A(f"s_add_u32 m0, s{sT3}, {a * 8192 + half * 4096 + rg * 1024 - half * 256}")
                    A("s_nop 0")
                    A(f"buffer_load_dwordx4 {fk[rg]}, s[{sK}:{sK + 3}], s{sT1} offen offset:{half * 256} lds")

    def load_v():
        for dh in range(2):
            for a in range(2):
                A(f"s_add_u32 s{sT1}, s{sT0}, {a * 8192 + dh * 256}")
                for rg in range(4):
                    A(f"s_add_u32 m0, s{sT3}, {16384 + dh * 8192 + a * 4096 + rg * 1024}")
                    A("s_nop 0")
                    A(f"buffer_load_dwordx4 {fv[rg]}, s[{sV}:{sV + 3}], s{sT1} offen lds")

    def qk(a):
        for c in range(8):
            A(f"ds_read_b128 {KFf[c]}, {rk} offset:{a * 8192 + (c >> 2) * 4096 + (c & 3) * 256}")
        A("s_waitcnt lgkmcnt(0)")
        for r in range(3):
            for c in range(8):
                A(f"v_mfma_f32_16x16x32_bf16 {vS[r]}, {KFf[c]}, {Q[r][c]}, {vS[r] if c else 0}")
        A("s_nop 15")

    def xl(op, x, tmp):
        for o in xlane(op, x, tmp):
            A("s_nop 1")
            A(o.text)

    for r in range(3):
        A(f"v_mov_b32 {vNM[r]}, 0xff800000")
    A(f"s_mov_b32 s{sT0}, 0")
    A("L_fb1:")
    load_k()
    A("s_waitcnt vmcnt(0)")
    for a in range(2):
        qk(a)
        for r in range(3):
            A(f"v_max3_f32 {vNM[r]}, {vNM[r]}, {vS[r][0]}, {vS[r][1]}")
            A(f"v_max3_f32 {vNM[r]}, {vNM[r]}, {vS[r][2]}, {vS[r][3]}")
    A(f"s_add_u32 s{sT0}, s{sT0}, 16384")
    A(f"s_cmp_lt_u32 s{sT0}, 262144")
    A("s_cbranch_scc1 L_fb1")
    for r in range(3):
        xl("v_max_f32", vNM[r], t[4])
        A(f"v_mul_f32 {vNM[r]}, {f2u(-C_SCALE):#x}, {vNM[r]}")
        A(f"v_mov_b32 {vL[r]}, 0")
    for r in range(3):
        for tt in range(16):
            for i in range(4):
                x = O[r][tt][i]
                A(f"v_mov_b32 {x}, 0" if x.f == "v" else f"v_accvgpr_write_b32 {x}, 0")
    A(f"s_mov_b32 s{sT0}, 0")
    A("L_fb2:")
    load_k()
    load_v()
    A("s_waitcnt vmcnt(0)")
    for a in range(2):
        qk(a)
        for r in range(3):
            S = vS[r]
            for i in range(4):
                A(f"v_fma_f32 {S[i]}, {S[i]}, s{sC}, {vNM[r]}")
            for i in range(4):
                A(f"v_exp_f32 {S[i]}, {S[i]}")
            A("s_nop 1")
            for i in range(4):
                A(f"v_add_f32 {vL[r]}, {vL[r]}, {S[i]}")
            for k in range(2):
                A(f"v_cvt_pk_bf16_f32 {Pf[r][2 * a + k]}, {S[2 * k]}, {S[2 * k + 1]}")
    A("s_nop 3")
    for tt in range(16):
        for s in range(2):
            base = rv0 if (tt & 1) == 0 else rv1
            off = 16384 + (tt >> 3) * 8192 + s * 4096 + ((tt & 7) >> 1) * 256
            A(f"ds_read_b64_tr_b16 {VFf[tt & 1][2 * s:2 * s + 2]}, {base} offset:{off}")
        A("s_waitcnt lgkmcnt(0)")
        for r in range(3):
            A(f"v_mfma_f32_16x16x32_bf16 {O[r][tt]}, {VFf[tt & 1]}, {Pf[r]}, {O[r][tt]}")
    A("s_nop 15")
    A(f"s_add_u32 s{sT0}, s{sT0}, 16384")
    A(f"s_cmp_lt_u32 s{sT0}, 262144")
    A("s_cbranch_scc1 L_fb2")
    for r in range(3):
        xl("v_add_f32", vL[r], t[4])
        A(f"v_rcp_f32 {vRL[r]}, {vL[r]}")
    A("s_nop 3")
    for T in range(8):
        for r in range(3):
            X, Y = O[r][2 * T], O[r][2 * T + 1]
            src = [X[i] for i in range(4)] + [Y[i] for i in range(4)]
            if X.f == "a":
                for i in range(8):
                    A(f"v_accvgpr_read_b32 {tmp8[i]}, {src[i]}")
                src = [tmp8[i] for i in range(8)]
            for i in range(8):
                A(f"v_mul_f32 {src[i]}, {src[i]}, {vRL[r]}")
            D = vS[(3 * T + r) % 8]
            for k in range(4):
                A(f"v_cvt_pk_bf16_f32 {D[k]}, {src[2 * k]}, {src[2 * k + 1]}")
            A("s_nop 1")
            A(f"v_permlane16_swap_b32 {D[0]}, {D[2]}")
            A(f"v_permlane16_swap_b32 {D[1]}, {D[3]}")
            A(f"buffer_store_dwordx4 {D}, {so[r]}, s[{sO}:{sO + 3}], 0 offen offset:{64 * T}")
    A("s_waitcnt vmcnt(0)")
    return L


HEADER = """; GQA attention forward, B=8 Hq=16 Hkv=8 Sq=368 Sk=512 D=256, bf16 (emitted by my own generator script)
; and a wave with a sum above 2^64 recomputes its rows with the true row maximum (L_fallback).
; @launch grid=(256,1,1) block=(256,1,1) lds=163840
.amdgcn_target "amdgcn-amd-amdhsa--gfx950"
.text
.globl {k}
.p2align 8
.type {k},@function
{k}:
"""

FOOTER = """L_end:
    s_endpgm
.section .rodata,"a"
.p2align 6
.amdhsa_kernel {k}
  .amdhsa_next_free_vgpr 512
  .amdhsa_next_free_sgpr 102
  .amdhsa_accum_offset 256
  .amdhsa_group_segment_fixed_size 0
  .amdhsa_kernarg_size 48
  .amdhsa_user_sgpr_count 2
  .amdhsa_user_sgpr_kernarg_segment_ptr 1
  .amdhsa_system_sgpr_workgroup_id_x 1
.end_amdhsa_kernel
"""


def emit(cfg):
    prog, info = build(cfg)
    s = HEADER.format(k=KNAME)
    if cfg.stamps and cfg.spin == -1:
        s = "; stamps: " + " ".join(n + ("*" if r else "") for n, r in cfg.stamp_names) + "\n" + s
    for o in prog:
        s += (o.text if o.kind == "label" else "    " + o.text) + "\n"
    s += "    s_endpgm\nL_mainend:\n"
    for l in fallback(cfg):
        s += (l if l.endswith(":") else "    " + l) + "\n"
    s += FOOTER.format(k=KNAME)
    return s, info


Cfg.spin_name = ""
Cfg.stamp_every = 1
Cfg.pkfrom = 3
Cfg.stag2 = ""
Cfg.stag_sh = 6
Cfg.stagger = ""
Cfg.cls_shift = 6
Cfg.cls_mask = 0

if __name__ == "__main__":
    ap = argparse.ArgumentParser()
    ap.add_argument("-o", default="standalone__gqa_softmax__near_ridge.s")
    ap.add_argument("-v", action="store_true")
    ap.add_argument("opts", nargs="*")
    a = ap.parse_args()
    cfg = Cfg()
    cfg.verbose = a.v
    for kv in a.opts:
        k, v = kv.split("=", 1)
        if k == "spin":
            cfg.spin, cfg.spin_name, cfg.stamps = 1, v, True
            continue
        old = getattr(cfg, k)
        if isinstance(old, bool):
            v = v in ("1", "true", "True")
        elif isinstance(old, int):
            v = int(v)
        elif isinstance(old, float):
            v = float(v)
        setattr(cfg, k, v.replace("+", " ") if isinstance(v, str) else v)
    s, info = emit(cfg)
    open(a.o, "w").write(s)
    print(info, len(s))
```

```python
import sys, math, argparse, struct
sys.path.insert(0, __file__.rsplit("/", 1)[0])
from ir import *

KNAME = "standalone__gqa_softmax__near_ridge_kernel"
C_SCALE = math.log2(math.e) / 16.0


def f2u(x):
    return struct.unpack("<I", struct.pack("<f", x))[0]


class Cfg:
    ldq = "nt"
    ldkv = "nt"
    ldkv0 = ""
    st = "sc1"
    lat = 6
    age = 5
    sready = 4
    stamps = False
    dbg = False
    spin = -1
    spinwg = -1
    codepf = True
    force_fallback = False
    dma_sp = 6
    preflush = True
    y = 2
    pk = True
    verbose = False


sQ, sK, sV, sO = 12, 16, 20, 24
sW1K = 28
sC = 29
sKoff = 30
sVoff = 31
sT0, sT1, sT2, sT3 = 32, 33, 34, 35
sW = 36
sThr = 37
sW8K = 38
sCls = 39
sFlag = 40
sDBG = 44
vKR = [Reg("v", 1, 1), Reg("v", 2, 1), Reg("v", 3, 1)]
vVR = [[Reg("v", 4 + 3 * h + w, 1) for w in range(3)] for h in range(2)]
vDK = [Reg("v", 10, 1), Reg("v", 11, 1)]
vDV = [Reg("v", 12 + a, 1) for a in range(4)]
vNM = [Reg("v", 16 + r, 1) for r in range(3)]
vL = [Reg("v", 19 + r, 1) for r in range(3)]
vRL = [Reg("v", 22 + 2 * r, 1) for r in range(3)]
vSW = [Reg("v", 32 + i, 1) for i in range(4)]
vSR = [Reg("v", 23, 1), Reg("v", 25, 1)]
vQR = Reg("v", 27, 1)
vT = Reg("v", 28, 12)
vS = [Reg("v", 40 + 4 * i, 4) for i in range(8)]
vP = [[[Reg("v", 72 + 24 * b + 8 * r + 4 * kc, 4) for kc in range(2)] for r in range(3)] for b in range(2)]
vST = [[Reg("v", 120 + 2 * r + k, 1) for k in range(2)] for r in range(3)]
vX = Reg("v", 126, 2)
vQD = [Reg("v", 36 + rg, 1) for rg in range(4)]
O = [[Reg("a", 4 * t, 4) for t in range(16)],
     [Reg("v", 128 + 4 * t, 4) for t in range(16)],
     [Reg("v", 192 + 4 * t, 4) for t in range(16)]]
preK = [[Reg("v", 128 + 32 * a + 4 * c, 4) for c in range(8)] for a in range(4)]
Q = [[Reg("a", 64 + 32 * r + 4 * c, 4) for c in range(8)] for r in range(3)]
KF = [[Reg("a", 160 + 4 * c, 4) for c in range(8)], [Reg("a", 224 + 4 * c, 4) for c in range(8)]]
VFB = [192 + 8 * b for b in range(4)]

SLOT = 16384
STG = 528
FR = (0, 2, 3, 1)


def sn(i, n=1):
    return R("s", i, n)


def valu(text, reads=(), writes=(), tag=""):
    return Op(text, "valu", reads, writes, tag)


def salu(text, reads=(), writes=()):
    return Op(text, "salu", reads, writes)


def names(*regs):
    out = []
    for r in regs:
        out += r.names if isinstance(r, Reg) else [r]
    return out


def mfma(D, A, B, C=None):
    c = str(C) if C is not None else "0"
    op = Op(f"v_mfma_f32_16x16x32_bf16 {D}, {A}, {B}, {c}", "mfma",
            names(A, B) + (C.names if C is not None else []), D.names)
    op.meta["srcab"] = frozenset(names(A, B))
    op.meta["srcc"] = frozenset(C.names) if C is not None else frozenset()
    return op


def dma(vaddr, srd, soff, imm, pol):
    so = f"s{soff}" if soff is not None else "0"
    t = f"buffer_load_dwordx4 {vaddr}, s[{srd}:{srd + 3}], {so} offen"
    if imm:
        t += f" offset:{imm}"
    if pol:
        t += " " + pol
    t += " lds"
    return Op(t, "dma", vaddr.names + sn(srd, 4) + (sn(soff) if soff is not None else []) + ["m0"], [])


def set_m0(const, base=sW1K):
    return salu(f"s_add_u32 m0, s{base}, {const}", sn(base), ["m0", "scc"])


class Unit:
    def __init__(self, kind, n, cfg):
        self.kind, self.n, self.cfg = kind, n, cfg
        self.slot = None
        self.nslots = 2 if kind == "Q" else 1
        self.dmas = []
        self.reads = []
        self.vis = None
        self.name = f"{kind}{n}"

    def make_dmas(self, vq=None):
        cfg = self.cfg
        ops = []
        base = self.slot * SLOT
        src = self.n % 16
        pol = cfg.ldkv0 if (self.n < 2 * cfg.y) else cfg.ldkv
        if self.kind == "K":
            so = salu(f"s_mov_b32 s{sKoff}, {src * 16384}", [], sn(sKoff))
            for a in range(2):
                for half in range(2):
                    d = dma(vDK[a], sK, sKoff, half * 256, pol)
                    d.pre = [set_m0(base + a * 8192 + half * 4096 - half * 256)]
                    ops.append(d)
            ops[0].pre.insert(0, so)
        elif self.kind == "V":
            j, h = divmod(src, 2)
            so = salu(f"s_mov_b32 s{sVoff}, {j * 32768 + h * 256}", [], sn(sVoff))
            for a in range(4):
                d = dma(vDV[a], sV, sVoff, 0, pol)
                d.pre = [set_m0(base + a * 4096)]
                ops.append(d)
            ops[0].pre.insert(0, so)
        else:
            for half in range(2):
                for rg in range(4):
                    d = dma(vq[rg], sQ, None, half * 256, cfg.ldq)
                    d.pre = [set_m0(base + half * 4096 + rg * 1024 - half * 256, sW8K)]
                    ops.append(d)
        for d in ops:
            d.meta["unit"] = self
        self.dmas = ops
        return ops


def flat_dmas(ops):
    out = []
    for d in ops:
        out += d.pre
        out.append(salu("s_nop 0"))
        out.append(d)
        d.pre = []
    return out


def xlane(op, x, tmp):
    o = []
    o.append(valu(f"v_mov_b32 {tmp}, {x}", x.names, tmp.names))
    o.append(valu(f"v_permlane32_swap_b32 {x}, {tmp}", names(x, tmp), names(x, tmp)))
    o.append(valu(f"{op} {x}, {x}, {tmp}", names(x, tmp), x.names))
    o.append(valu(f"v_mov_b32 {tmp}, {x}", x.names, tmp.names))
    o.append(valu(f"v_permlane16_swap_b32 {x}, {tmp}", names(x, tmp), names(x, tmp)))
    o.append(valu(f"{op} {x}, {x}, {tmp}", names(x, tmp), x.names))
    return o


class Stamps:
    def __init__(self, cfg):
        self.cfg = cfg
        self.list = []

    def __call__(self, name, real=False):
        cfg = self.cfg
        if not cfg.stamps:
            return []
        if cfg.spin != -1:
            if name != cfg.spin_name:
                return []
            return [Op("s_memrealtime s[48:49]", "salu")]
        k = len(self.list)
        assert 48 + 2 * k + 1 <= 101, "too many stamps"
        self.list.append((name, real))
        return [Op(f"{'s_memrealtime' if real else 's_memtime'} s[{48 + 2 * k}:{49 + 2 * k}]", "salu")]

    def finish(self):
        cfg = self.cfg
        o = []
        raw = lambda t: o.append(Op(t, "raw"))
        if not cfg.stamps:
            return o
        raw("s_waitcnt lgkmcnt(0)")
        if cfg.spin != -1:
            if cfg.spinwg >= 0:
                raw(f"s_cmp_lg_u32 s2, {cfg.spinwg}")
                raw("s_cbranch_scc1 L_end")
            o.append(Op("L_spin:", "label"))
            raw("s_memrealtime s[50:51]")
            raw("s_waitcnt lgkmcnt(0)")
            raw("s_sub_u32 s50, s50, s48")
            raw("s_cmp_lt_u32 s50, 5000")
            raw("s_cbranch_scc1 L_spin")
            return o
        raw("v_mov_b32 v40, 0")
        for k in range(len(self.list)):
            raw(f"v_writelane_b32 v40, s{48 + 2 * k}, {k}")
        raw(f"s_load_dwordx2 s[{sDBG}:{sDBG + 1}], s[0:1], 40")
        raw(f"s_mov_b32 s{sDBG + 2}, 0x1000000")
        raw(f"s_mov_b32 s{sDBG + 3}, 0x00020000")
        raw("s_lshl_b32 s48, s2, 8")
        raw("v_add_u32 v41, s48, v0")
        raw("v_lshlrev_b32 v41, 2, v41")
        raw("s_waitcnt lgkmcnt(0)")
        raw(f"buffer_store_dword v40, v41, s[{sDBG}:{sDBG + 3}], 0 offen")
        return o


def prologue(cfg, U, stamp):
    P = []
    A = P.append
    raw = lambda t: A(Op(t, "raw"))
    raw("s_cmp_ge_u32 s2, 256")
    raw("s_cbranch_scc1 L_end")
    raw("s_load_dwordx4 s[4:7], s[0:1], 0")
    raw("s_load_dwordx4 s[8:11], s[0:1], 16")
    P += stamp("start", True)
    t = vT
    lane, wv, common, cpos, f_w = t[0], t[1], t[2], t[3], t[4]
    if cfg.codepf:
        raw("s_getpc_b64 s[42:43]")
        A(Op("L_pfbase:", "label"))
        A(valu(f"v_lshlrev_b32 {t[10]}, 7, v0", ["v0"], t[10].names))
        A(Op(f"global_load_dword {vX[0]}, {t[10]}, s[42:43]", "vload", t[10].names, vX[0].names))
    A(valu(f"v_lshrrev_b32 {wv}, 6, v0", ["v0"], wv.names))
    A(valu(f"v_and_b32 {lane}, 63, v0", ["v0"], lane.names))
    A(valu(f"v_readfirstlane_b32 s{sW}, {wv}", wv.names, sn(sW)))
    A(salu(f"s_and_b32 s{sT0}, s2, 7", [], sn(sT0)))
    A(salu(f"s_lshr_b32 s{sT1}, s2, 5", [], sn(sT1)))
    A(salu(f"s_lshl3_add_u32 s{sT0}, s{sT1}, s{sT0}", [], sn(sT0)))
    A(salu(f"s_bfe_u32 s{sT1}, s2, 0x20003", [], sn(sT1)))
    A(salu(f"s_lshl2_add_u32 s{sT2}, s{sT0}, s{sT1}", [], sn(sT2)))
    A(salu(f"s_mul_i32 s{sT2}, s{sT2}, {184 * 512}", [], sn(sT2)))
    A(salu(f"s_lshl_b32 s{sT0}, s{sT0}, 18", [], sn(sT0)))
    A(valu(f"v_bfe_u32 {t[6]}, {lane}, 2, 2", lane.names, t[6].names))
    A(valu(f"v_lshrrev_b32 {t[5]}, 4, {lane}", lane.names, t[5].names))
    A(valu(f"v_lshlrev_b32 {common}, 9, {t[6]}", t[6].names, common.names))
    A(valu(f"v_lshl_add_u32 {common}, {t[5]}, 6, {common}", names(t[5], common), common.names))
    A(valu(f"v_and_b32 {cpos}, 3, {lane}", lane.names, cpos.names))
    A(salu(f"s_lshl_b32 s{sT1}, s{sW}, 1", sn(sW), sn(sT1)))
    A(salu(f"s_lshr_b32 s{sT1}, 0x78, s{sT1}", [], sn(sT1)))
    A(salu(f"s_and_b32 s{sT1}, s{sT1}, 3", [], sn(sT1)))
    A(salu(f"s_lshl_b32 s{sW1K}, s{sW}, 10", sn(sW), sn(sW1K)))
    A(salu(f"s_lshl_b32 s{sW8K}, s{sW}, 13", sn(sW), sn(sW8K)))
    A(valu(f"v_xor_b32 {f_w}, s{sT1}, {cpos}", cpos.names, f_w.names))
    A(valu(f"v_lshl_add_u32 {t[7]}, {wv}, 11, {common}", names(wv, common), t[7].names))
    A(valu(f"v_lshl_add_u32 {vDK[0]}, {f_w}, 4, {t[7]}", names(f_w, t[7]), vDK[0].names))
    A(valu(f"v_add_u32 {vDK[1]}, 8192, {vDK[0]}", vDK[0].names, vDK[1].names))
    vq = [[Reg("v", 72 + 4 * r + rg, 1) for rg in range(4)] for r in range(3)]
    if cfg.y:
        vq[2] = vQD
    qb = Reg("v", 84, 1)
    A(valu(f"v_mad_u32_u24 {qb}, {wv}, s{sT3}, {common}", names(wv, common), qb.names))
    P.insert(len(P) - 1, salu(f"s_mov_b32 s{sT3}, {48 * 512}", [], sn(sT3)))
    for rg in range(4):
        x = Reg("v", 85, 1)
        A(valu(f"v_xor_b32 {x}, {FR[rg]}, {cpos}", cpos.names, x.names))
        A(valu(f"v_lshl_add_u32 {vq[0][rg]}, {x}, 4, {qb}", names(x, qb), vq[0][rg].names))
        if rg:
            A(valu(f"v_add_u32 {vq[0][rg]}, {rg * 2048}, {vq[0][rg]}", vq[0][rg].names, vq[0][rg].names))
    A(Op("s_waitcnt lgkmcnt(0)", "wait", meta={"fixed": True}))
    P += stamp("karg", True)

    def srd(srd, p, off, nrec):
        A(salu(f"s_add_u32 s{srd}, s{p}, s{off}", [], sn(srd)))
        A(salu(f"s_addc_u32 s{srd + 1}, s{p + 1}, 0", [], sn(srd + 1)))
        A(salu(f"s_mov_b32 s{srd + 2}, {nrec}", [], sn(srd + 2)))
        A(salu(f"s_mov_b32 s{srd + 3}, 0x00020000", [], sn(srd + 3)))

    def vaddr():
        A(valu(f"v_and_b32 {t[9]}, 1, {wv}", wv.names, t[9].names))
        A(valu(f"v_lshlrev_b32 {t[9]}, 1, {t[9]}", t[9].names, t[9].names))
        A(valu(f"v_xor_b32 {t[9]}, {t[9]}, {cpos}", names(t[9], cpos), t[9].names))
        A(valu(f"v_lshl_add_u32 {vDV[0]}, {t[9]}, 4, {t[7]}", names(t[9], t[7]), vDV[0].names))
        for a in range(1, 4):
            A(valu(f"v_add_u32 {vDV[a]}, {8192 * a}, {vDV[0]}", vDV[0].names, vDV[a].names))

    def codepf2():
        if cfg.codepf:
            A(valu(f"v_add_u32 {t[10]}, 32768, {t[10]}", t[10].names, t[10].names))
            A(valu(f"v_min_u32 {t[10]}, L_mainend - L_pfbase, {t[10]}", t[10].names, t[10].names))
            A(Op(f"global_load_dword {vX[1]}, {t[10]}, s[42:43]", "vload", t[10].names, vX[1].names))

    def cwait(k):
        raw(f"s_cmp_lt_u32 s{sCls}, {k}")
        raw(f"s_cbranch_scc1 L_nw{k}")
        raw("s_waitcnt vmcnt(0)")
        A(Op(f"L_nw{k}:", "label"))

    srd(sK, 6, sT0, 262144)
    if cfg.stagger:
        P += flat_dmas(U["K0"].make_dmas())
        A(salu(f"s_lshr_b32 s{sCls}, s2, {cfg.cls_shift}", [], sn(sCls)))
        if cfg.cls_mask:
            A(salu(f"s_and_b32 s{sCls}, s{sCls}, {cfg.cls_mask}", [], sn(sCls)))
        srd(sQ, 4, sT2, 184 * 512)
        srd(sV, 8, sT0, 262144)
        vaddr()
        seq = cfg.stagger.split(",")
        for x in seq:
            if x[0] == "w":
                cwait(int(x[1:]))
            elif x == "pf":
                codepf2()
            elif x[0] == "Q":
                r = int(x[1])
                if r:
                    for rg in range(4):
                        A(valu(f"v_add_u32 {vq[r][rg]}, {8192 * r}, {vq[0][rg]}", vq[0][rg].names, vq[r][rg].names))
                P += flat_dmas(U[x].make_dmas(vq[r]))
            else:
                P += flat_dmas(U[x].make_dmas())
        srd(sO, 10, sT2, 184 * 512)
    else:
        srd(sQ, 4, sT2, 184 * 512)
        if cfg.stag2:
            raw(f"s_lshr_b32 s{sCls}, s2, 5")
            raw(f"s_lshl_b32 s{sCls}, s{sCls}, 2")
            raw(f"s_lshr_b32 s{sCls}, {cfg.stag2}, s{sCls}")
            raw(f"s_and_b32 s{sCls}, s{sCls}, 15")
            raw(f"s_cbranch_scc0 L_go")
            raw(f"v_lshlrev_b32 {t[9]}, {cfg.stag_sh}, v0")
            raw(f"s_mov_b32 s{sKoff}, 0")
            A(Op("L_warm:", "label"))
            raw(f"buffer_load_dword {t[8]}, {t[9]}, s[{sK}:{sK + 3}], s{sKoff} offen {cfg.ldkv}")
            raw(f"s_add_u32 s{sKoff}, s{sKoff}, {256 << cfg.stag_sh}")
            raw(f"s_sub_u32 s{sCls}, s{sCls}, 1")
            raw("s_waitcnt vmcnt(0)")
            raw(f"s_cmp_lg_u32 s{sCls}, 0")
            raw("s_cbranch_scc1 L_warm")
            A(Op("L_go:", "label"))
        P += flat_dmas(U["K0"].make_dmas())
        P += flat_dmas(U["Q0"].make_dmas(vq[0]))
        P += flat_dmas(U["K1"].make_dmas())
        codepf2()
        for rg in range(4):
            A(valu(f"v_add_u32 {vq[1][rg]}, 8192, {vq[0][rg]}", vq[0][rg].names, vq[1][rg].names))
        P += flat_dmas(U["Q1"].make_dmas(vq[1]))
        srd(sV, 8, sT0, 262144)
        srd(sO, 10, sT2, 184 * 512)
        vaddr()
    g = t[5]
    A(valu(f"v_lshlrev_b32 {t[10]}, 1, {t[6]}", t[6].names, t[10].names))
    A(valu(f"v_lshrrev_b32 {t[10]}, {t[10]}, 0x78".replace("0x78", str(t[11])), names(t[10], t[11]), t[10].names))
    P.insert(len(P) - 1, valu(f"v_mov_b32 {t[11]}, 0x78", [], t[11].names))
    A(valu(f"v_and_b32 {t[10]}, 3, {t[10]}", t[10].names, t[10].names))
    A(valu(f"v_xor_b32 {t[10]}, {t[10]}, {g}", names(t[10], g), t[10].names))
    A(valu(f"v_lshlrev_b32 {t[10]}, 4, {t[10]}", t[10].names, t[10].names))
    A(valu(f"v_lshl_add_u32 {t[10]}, {t[6]}, 10, {t[10]}", names(t[6], t[10]), t[10].names))
    A(valu(f"v_lshl_add_u32 {vKR[0]}, {cpos}, 6, {t[10]}", names(cpos, t[10]), vKR[0].names))
    A(valu(f"v_add_u32 {vKR[1]}, 0x10000, {vKR[0]}", vKR[0].names, vKR[1].names))
    A(valu(f"v_add_u32 {vKR[2]}, 0x20000, {vKR[0]}", vKR[0].names, vKR[2].names))
    A(valu(f"v_lshlrev_b32 {t[10]}, 10, {g}", g.names, t[10].names))
    A(valu(f"v_lshl_add_u32 {t[10]}, {t[6]}, 6, {t[10]}", names(t[6], t[10]), t[10].names))
    A(valu(f"v_lshl_add_u32 {t[10]}, {cpos}, 3, {t[10]}", names(cpos, t[10]), t[10].names))
    A(valu(f"v_and_b32 {t[11]}, 1, {g}", g.names, t[11].names))
    A(valu(f"v_lshl_add_u32 {vVR[0][0]}, {t[11]}, 5, {t[10]}", names(t[11], t[10]), vVR[0][0].names))
    A(valu(f"v_xor_b32 {vVR[1][0]}, 32, {vVR[0][0]}", vVR[0][0].names, vVR[1][0].names))
    for h in range(2):
        for w in (1, 2):
            A(valu(f"v_add_u32 {vVR[h][w]}, {w * 65536}, {vVR[h][0]}", vVR[h][0].names, vVR[h][w].names))
    n15 = t[11]
    A(valu(f"v_and_b32 {n15}, 15, {lane}", lane.names, n15.names))
    A(valu(f"v_mad_u32_u24 {t[10]}, {wv}, 48, {g}", names(wv, g), t[10].names))
    A(valu(f"v_lshlrev_b32 {t[10]}, 9, {t[10]}", t[10].names, t[10].names))
    A(valu(f"v_lshl_add_u32 {vST[0][0]}, {n15}, 4, {t[10]}", names(n15, t[10]), vST[0][0].names))
    for r in range(3):
        for k in range(2):
            if r or k:
                A(valu(f"v_add_u32 {vST[r][k]}, {r * 8192 + k * 4096}, {vST[0][0]}", vST[0][0].names, vST[r][k].names))
    A(salu(f"s_mul_i32 s{sT3}, s{sW}, {cfg.stg_wave}", sn(sW), sn(sT3)))
    A(salu(f"s_add_u32 s{sT3}, s{sT3}, {cfg.stg_base}", [], sn(sT3)))
    x0, x1 = Reg("v", 86, 1), Reg("v", 87, 1)
    A(valu(f"v_and_b32 {x0}, 7, {lane}", lane.names, x0.names))
    A(valu(f"v_lshrrev_b32 {x1}, 1, {g}", g.names, x1.names))
    A(valu(f"v_xor_b32 {x0}, {x0}, {x1}", names(x0, x1), x0.names))
    A(valu(f"v_lshlrev_b32 {x0}, 4, {x0}", x0.names, x0.names))
    A(valu(f"v_lshl_add_u32 {x0}, {n15}, 8, {x0}", names(n15, x0), x0.names))
    A(valu(f"v_and_b32 {x1}, 1, {g}", g.names, x1.names))
    A(valu(f"v_lshl_add_u32 {x0}, {x1}, 3, {x0}", names(x1, x0), x0.names))
    A(valu(f"v_add_u32 {x0}, s{sT3}, {x0}", x0.names, x0.names))
    A(valu(f"v_xor_b32 {x1}, {n15}, {g}", names(n15, g), x1.names))
    A(valu(f"v_lshlrev_b32 {x1}, 4, {x1}", x1.names, x1.names))
    A(valu(f"v_lshl_add_u32 {x1}, {g}, 8, {x1}", names(g, x1), x1.names))
    A(valu(f"v_add_u32 {vSR[0]}, s{sT3}, {x1}", x1.names, vSR[0].names))
    A(valu(f"v_xor_b32 {vSR[1]}, 64, {vSR[0]}", vSR[0].names, vSR[1].names))
    for i in range(4):
        A(valu(f"v_xor_b32 {vSW[i]}, {32 * i}, {x0}", x0.names, vSW[i].names))
    A(valu(f"v_add_u32 {vQR}, s{sW8K}, {vKR[1]}", vKR[1].names + sn(sW8K), vQR.names))
    A(salu(f"s_mov_b32 s{sC}, {f2u(C_SCALE):#x}", [], sn(sC)))
    A(salu(f"s_mov_b32 s{sThr}, {f2u(2.0 ** 64 if not cfg.force_fallback else 1.0):#x}", [], sn(sThr)))
    A(salu(f"s_mov_b64 s[{sFlag}:{sFlag + 1}], 0", [], sn(sFlag, 2)))
    for r in range(3):
        A(valu(f"v_mov_b32 {vL[r]}, 0", [], vL[r].names))
    if not U["Q2"].dmas:
        for rg in range(4):
            A(valu(f"v_add_u32 {vq[2][rg]}, 16384, {vq[0][rg]}", vq[0][rg].names, vq[2][rg].names))
        if not cfg.y:
            P += flat_dmas(U["Q2"].make_dmas(vq[2]))
    P += stamp("issued", True)
    if cfg.walk:
        A(Op("WALK", "label"))
    return P, vq


def q_reads(u):
    ops = []
    r = u.n
    base = u.slot * SLOT - 65536
    pre = []
    addr = vQR
    if base >= 65536:
        addr = vT[0]
        pre.append(valu(f"v_add_u32 {addr}, 0x10000, {vQR}", vQR.names, addr.names))
        base -= 65536
    for c in range(8):
        off = base + (c >> 2) * 4096 + (c & 3) * 256
        o = Op(f"ds_read_b128 {Q[r][c]}, {addr} offset:{off}", "ds", addr.names, Q[r][c].names)
        o.meta["qhalf"] = c >> 2
        o.meta["unit"] = u
        u.reads.append(o)
        ops.append(o)
    return pre, ops


def build(cfg):
    y = cfg.y
    assert y == 2
    act = lambda s: (0, 1) if s < y else ((0, 1, 2) if s < 8 else (2,))
    stamp = Stamps(cfg)
    U = {}
    for n in range(20):
        U[f"K{n}"] = Unit("K", n, cfg)
        U[f"V{n}"] = Unit("V", n, cfg)
    for r in range(3):
        U[f"Q{r}"] = Unit("Q", r, cfg)
    U["K0"].slot, U["K1"].slot, U["K2"].slot, U["V0"].slot = 0, 1, 2, 3
    U["Q0"].slot, U["Q1"].slot, U["Q2"].slot = 4, 6, 4
    cfg.stg_base, cfg.stg_wave = 0, 4096 * cfg.stg_n

    pro, vqd = prologue(cfg, U, stamp)

    M = []
    fixed = {}
    dsq = []
    vq = []
    sbuf_last = [None] * 8
    spool = {"n": 8, "ctr": 0}
    guards = []
    Pcvt = {}
    negm_ready = {}
    preg_free = {}
    last_add = {}
    bars = []

    def Preg(s, r):
        if s == 9:
            return vP[0][0]
        return vP[s & 1][r]

    def softmax_ops(s, r, a, S, ready_gap):
        dst = Preg(s, r)[a >> 1]
        fm, ex, ad, cv = [], [], [], []
        for i in range(4):
            o = valu(f"v_fma_f32 {S[i]}, {S[i]}, s{sC}, {vNM[r]}", names(S[i], vNM[r]) + sn(sC), S[i].names)
            o.earliest = ready_gap
            o.deps.append((negm_ready[r], 0))
            fm.append(o)
        for i in range(4):
            o = Op(f"v_exp_f32 {S[i]}, {S[i]}", "trans", S[i].names, S[i].names)
            o.deps.append((fm[i], 0))
            ex.append(o)
        for i in range(4):
            o = valu(f"v_add_f32 {vL[r]}, {vL[r]}, {S[i]}", names(vL[r], S[i]), vL[r].names)
            o.deps.append((ex[i], 1))
            ad.append(o)
        for k in range(2):
            d = dst[2 * (a & 1) + k]
            o = valu(f"v_cvt_pk_bf16_f32 {d}, {S[2 * k]}, {S[2 * k + 1]}", names(S[2 * k], S[2 * k + 1]), d.names)
            o.deps += [(ex[2 * k], 1), (ex[2 * k + 1], 1)]
            o.earliest = preg_free.get(dst.lo, -1)
            cv.append(o)
        Pcvt[(s, r, a)] = cv
        vq.extend([fm[0], fm[1], ex[0], fm[2], ex[1], fm[3], ad[0], ex[2], ad[1], cv[0], ex[3], ad[2], ad[3], cv[1]])
        last_add[r] = ad[3]
        return ad + cv

    held = {}

    def chain(s, r, a, frags):
        si = spool["ctr"] % spool["n"]
        spool["ctr"] += 1
        S = vS[si]
        start = len(M)
        assert sbuf_last[si] != "held"
        if sbuf_last[si]:
            guards.append((start - 1, sbuf_last[si]))
        for c in range(8):
            M.append(mfma(S, frags[c], Q[r][c], S if c else None))
        end = len(M) - 1
        if r not in negm_ready:
            held.setdefault(r, []).append((si, S, end, a))
            sbuf_last[si] = "held"
            if len(held[r]) == 2:
                S0, S1 = held[r][0][1], held[r][1][1]
                m, tmp = vNM[r], vT[1 + r]
                ops = [valu(f"v_max3_f32 {m}, {S0[0]}, {S0[1]}, {S0[2]}", names(S0[0], S0[1], S0[2]), m.names),
                       valu(f"v_max3_f32 {tmp}, {S0[3]}, {S1[0]}, {S1[1]}", names(S0[3], S1[0], S1[1]), tmp.names),
                       valu(f"v_max3_f32 {m}, {m}, {S1[2]}, {S1[3]}", names(m, S1[2], S1[3]), m.names),
                       valu(f"v_max_f32 {m}, {m}, {tmp}", names(m, tmp), m.names)]
                ops += xlane("v_max_f32", m, tmp)
                ops.append(valu(f"v_mul_f32 {m}, {f2u(-C_SCALE):#x}, {m}", m.names, m.names))
                prev = None
                for o in ops:
                    o.earliest = end + cfg.sready
                    if prev is not None:
                        o.deps.append((prev, 1 if "permlane" in o.text else 0))
                    prev = o
                vq.extend(ops)
                negm_ready[r] = ops[-1]
                for (si2, S2, end2, a2) in held[r]:
                    sbuf_last[si2] = softmax_ops(s, r, a2, S2, end2 + cfg.sready)
        else:
            sbuf_last[si] = softmax_ops(s, r, a, S, end + cfg.sready)
        return start

    afree = {}
    touched = set()
    vpool = {"bufs": list(VFB), "ctr": 0}

    def group(steps, t):
        base = vpool["bufs"][vpool["ctr"] % len(vpool["bufs"])]
        vpool["ctr"] += 1
        tt = t & 7
        start = len(M)
        frs = []
        for i, s in enumerate(steps):
            u = U[f"V{2 * s + (t >> 3)}"]
            for kc in range(2):
                F = Reg("a", base + 8 * i + 4 * kc, 4)
                frs.append((s, kc, F))
                for k in range(2):
                    a = 2 * kc + k
                    dsq.append(dict(kind="V", dst=F[2 * k:2 * k + 2], h=tt & 1, u=u, off=a * 4096 + (tt >> 1) * 256,
                                    cons=start + 2 * i + kc, free=afree.get(F.lo, -1)))
        for r in act(steps[0]):
            for (s, kc, F) in frs:
                C = O[r][t] if (r, t) in touched else None
                touched.add((r, t))
                P_ = Preg(s, r)[kc]
                M.append(mfma(O[r][t], F, P_, C))
                guards.append((len(M) - 3, Pcvt[(s, r, 2 * kc)] + Pcvt[(s, r, 2 * kc + 1)]))
                preg_free[P_.lo] = len(M) - 1
                afree[F.lo] = len(M) - 1
        return len(M) - 1

    def barrier(name, gap, hoist):
        o = Op("s_barrier", "barrier")
        o.meta.update(need_vm=[], need_lgkm=[], name=name, hoist_wait=hoist, units=[])
        o.gap = gap
        bars.append(o)
        return o

    blk = []
    ba = barrier("a", -1, False)
    ba.meta["units"] = [U["K0"], U["K1"], U["Q0"]]
    U["K0"].vis = U["K1"].vis = U["Q0"].vis = ba
    blk.append(ba)
    blk += stamp("K0Q0", True)
    pre_, q0 = q_reads(U["Q0"])
    blk += pre_ + q0
    prek = []
    for a in range(4):
        u = U[f"K{a >> 1}"]
        for c in range(8):
            off = u.slot * SLOT + (a & 1) * 8192 + (c >> 2) * 4096 + (c & 3) * 256
            o = Op(f"ds_read_b128 {preK[a][c]}, {vKR[0]} offset:{off}", "ds", vKR[0].names, preK[a][c].names)
            u.reads.append(o)
            prek.append(o)
    blk += prek[:8] + flat_dmas(U["K2"].make_dmas()) + prek[8:]
    fixed[-1] = blk
    for r in (0, 1):
        if r == 1:
            u = U["Q1"]
            pre_, qr = q_reads(u)
            for o in qr:
                o.meta["need_vm_unit"] = (u, o.meta["qhalf"])
            blk = flat_dmas(U["V0"].make_dmas()) + pre_ + qr
            b0 = barrier(0, len(M) - 1, False)
            b0.meta["need_lgkm"] = qr + prek + q0
            b0.meta["units"] = [U["K2"]]
            U["K2"].vis = b0
            blk.append(b0)
            blk += stamp("Q1", True)
            fixed[len(M) - 1] = blk
        for a in range(4):
            chain(0, r, a, preK[a])
        for o in vq:
            o.meta.setdefault("pre", len(M) - 1)

    kctr = [0]
    start_int = {}
    grp_end = {}
    q2_first = [None]
    pub = []

    def kchains(s, a, tiles_order):
        kb = kctr[0] % 2
        kctr[0] += 1
        u = U[f"K{2 * s + (a >> 1)}"]
        state = {"first": True}

        def emit(r):
            st = len(M)
            if state["first"]:
                for c in range(8):
                    dsq.append(dict(kind="K", dst=KF[kb][c], u=u, off=(a & 1) * 8192 + (c >> 2) * 4096 + (c & 3) * 256,
                                    cons=st + c, free=afree.get(KF[kb][c].lo, b0.gap)))
                state["first"] = False
            if r == 2 and q2_first[0] is None:
                q2_first[0] = st
            chain(s, r, a, KF[kb])
            for c in range(8):
                afree[KF[kb][c].lo] = st + c
        return emit

    for p in range(7):
        qk = act(p + 1)
        for q in range(4):
            n = 2 * p + (q >> 1)
            if q % 2 == 0:
                start_int[n] = len(M)
                if n == 0:
                    pub.append(("v0", [U["V0"]]))
                else:
                    pub.append((n, [U[f"V{n}"], U[f"K{n + 2}"]]))
            order = {3: "cGcGcGG", 2: "cGGcGG"}[len(qk)]
            if p == 0 and q == 0:
                order = "ccGGGG"
            if p == 1 and q == 0:
                order = cfg.join_order
            em = kchains(p + 1, q, qk)
            ci = gi = 0
            for ch in order:
                if ch == "c":
                    em(qk[ci])
                    ci += 1
                else:
                    grp_end[(p, 4 * q + gi)] = group((p,), 4 * q + gi)
                    gi += 1
    l01 = dict(last_add)
    qk7_end = len(M) - 1
    spool["n"] = 4
    spool["ctr"] = 0
    for q in range(4):
        if q % 2 == 0:
            n = 14 + (q >> 1)
            start_int[n] = len(M)
            pub.append((n, [U[f"V{n}"], U[f"K{n + 2}"]]))
        gi = 0
        for ch in cfg.p7_order:
            if ch == "c":
                kchains(8, q, (2,))(2)
            else:
                grp_end[(7, 4 * q + gi)] = group((7,), 4 * q + gi)
                gi += 1
    start_int[16] = len(M)
    pub.append((16, [U["K18"], U["K19"], U["V16"], U["V18"]]))
    for q in range(4):
        kchains(9, q, (2,))(2)
    for b in range(64, 128, 4):
        afree[b] = qk7_end
    vpool["bufs"] = [96, 104, 112, 120, 192, 200, 208, 216]
    vpool["ctr"] = 0
    start_int[17] = len(M)
    for t in range(8):
        group((8,), t)
    for t in range(8):
        grp_end[(9, t)] = group((9,), t)
    vpool["bufs"] = [160, 176, 224, 240, 96, 112, 192, 208]
    vpool["ctr"] = 0
    start_int[18] = len(M)
    pub.append((18, [U["V17"], U["V19"]]))
    for t in range(8, 16):
        grp_end[(9, t)] = group((8, 9), t)
    NM = len(M)
    for c in range(8):
        dsq.append(dict(kind="Q", dst=Q[2][c], u=U["Q2"], c=c, cons=q2_first[0] + c, free=b0.gap))

    dsq.sort(key=lambda d: d["cons"])
    def spacing(c):
        if c >= start_int[17]:
            return 0.5
        if c >= start_int[16]:
            return 1.0
        if c >= start_int[14]:
            return cfg.sp7
        if c >= start_int[4]:
            return 2.0
        if c >= start_int[2]:
            return 1.5
        return cfg.sp2

    nxt = float(1 << 30)
    for d in reversed(dsq):
        dl = d["cons"] - cfg.lat
        e = max(d["free"], b0.gap + 1)
        f = min(float(dl) + 0.999, nxt - spacing(d["cons"]))
        if f < e:
            f = min(float(dl), nxt - min(1.0, spacing(d["cons"])))
        if f < e:
            f = float(e)
        d["f"], d["e"], d["dl"] = f, e, dl
        nxt = f
    prev = -10
    late = 0
    cnt = 0
    for d in dsq:
        g = max(int(d["f"]), d["e"], prev)
        if g == prev:
            cnt += 1
            if cnt >= 2 or (g + 1 <= d["dl"] and spacing(d["cons"]) >= 1):
                g += 1
                cnt = 0
        else:
            cnt = 0
        g = min(g, d["cons"] - 2)
        assert g >= d["e"] and g >= prev, (d, g, prev)
        late += g > d["dl"]
        d["gap"] = g
        prev = g

    prevg = b0.gap
    for (name, us) in pub:
        first = min(d["gap"] for d in dsq if d["u"] in us)
        g = max(first - 1, prevg + 1)
        assert g < first, (name, g, first)
        b = barrier(name, g, True)
        b.meta["units"] = us
        for u in us:
            u.vis = b
        prevg = g
    lastcons = {}
    for d in dsq:
        lastcons[d["u"].name] = max(lastcons.get(d["u"].name, -1), d["cons"])

    def release(u):
        if u.name in ("K0", "K1", "Q0", "Q1"):
            return bars.index(b0)
        c = [i for i, b in enumerate(bars) if b.gap >= lastcons[u.name]]
        return min(c) if c else len(bars)

    stg_bi = bars.index(next(b for b in bars if b.meta["name"] == cfg.stg_bar))
    free_at = {s: -1 for s in range(10)}
    for name in ("K0", "K1", "K2", "V0", "Q0", "Q1"):
        u = U[name]
        for k in range(u.nslots):
            free_at[u.slot + k] = release(u)
    order = []
    for (name, us) in pub:
        order += [u.name for u in sorted(us, key=lambda u: u.kind) if not u.dmas]
    order.insert(order.index(cfg.q2_before), "Q2")
    dmaq = []
    for name in order:
        u = U[name]
        if name == "Q2":
            w = max(free_at[4], free_at[5])
            free_at[4] = free_at[5] = release(u)
        else:
            cand = list(free_at)
            if "Q2" in order[order.index(name):]:
                cand = [s for s in cand if s not in (4, 5)]
            if release(u) > stg_bi:
                cand = [s for s in cand if s >= cfg.stg_n]
            slot = min(cand, key=lambda s: (free_at[s], s))
            w = free_at[slot]
            u.slot = slot
            free_at[slot] = release(u)
        e = max(bars[w].gap + 2 if w >= 0 else 1, b0.gap + 2)
        ops = u.make_dmas(vqd[2]) if name == "Q2" else u.make_dmas()
        for d in ops:
            d.earliest = e
            dmaq.append(d)
    gap_ds = {}
    for d in dsq:
        gap_ds.setdefault(d["gap"], []).append(d)
    gap_dma = {}
    last = -10
    for d in dmaq:
        u = d.meta["unit"]
        sp = cfg.dma_sp
        if last < start_int[3] or last >= start_int[13]:
            sp = cfg.dma_sp_fast
        g = max(d.earliest, last + sp)
        g0 = g
        while g in fixed or (g in gap_ds and g < g0 + 3):
            g += 1
        if u.vis is not None and g >= u.vis.gap - 1:
            raise SystemExit(f"DMA of {u.name} too late: {g} vs {u.vis.gap}")
        gap_dma[g] = d
        d.gap = g
        last = g
    last_dma = dmaq[-1]
    flight = {u.name: u.vis.gap - u.dmas[-1].gap for u in U.values() if u.vis is not None and u.dmas[-1].gap is not None}
    flight["Q2"] = q2_first[0] - cfg.lat - U["Q2"].dmas[-1].gap
    for b in bars:
        b.meta["need_vm"] = [d for u in b.meta["units"] for d in u.dmas]

    reads = []
    for d in dsq:
        u = d["u"]
        if d["kind"] == "Q":
            c = d["c"]
            off = u.slot * SLOT - 65536 + (c >> 2) * 4096 + (c & 3) * 256
            o = Op(f"ds_read_b128 {d['dst']}, {vQR} offset:{off}", "ds", vQR.names, d["dst"].names)
            o.meta["need_vm"] = u.dmas[(c >> 2) * 4:(c >> 2) * 4 + 4]
            o.meta["hoist_wait"] = True
        else:
            w, off = divmod(u.slot * SLOT + d["off"], 65536)
            if d["kind"] == "K":
                o = Op(f"ds_read_b128 {d['dst']}, {vKR[w]} offset:{off}", "ds", vKR[w].names, d["dst"].names)
            else:
                a = vVR[d["h"]][w]
                o = Op(f"ds_read_b64_tr_b16 {d['dst']}, {a} offset:{off}", "ds", a.names, d["dst"].names)
        o.gap = d["gap"]
        u.reads.append(o)
        d["op"] = o
        reads.append(o)
    for blk in fixed.values():
        for o in blk:
            if "need_vm_unit" in o.meta:
                u, h = o.meta["need_vm_unit"]
                o.meta["need_vm"] = u.dmas[4 * h:4 * h + 4]

    vcc_last = [None]

    def finish_rows(rows, last):
        fin = {}
        for r in rows:
            ops = xlane("v_add_f32", vL[r], vT[1 + r])
            prev = last[r]
            for o in ops:
                o.deps.append((prev, 1 if "permlane" in o.text else 0))
                prev = o
            rc = Op(f"v_rcp_f32 {vRL[r]}, {vL[r]}", "trans", vL[r].names, vRL[r].names)
            rc.deps.append((prev, 0))
            cm = valu(f"v_cmp_lt_f32 vcc, s{sThr}, {vL[r]}", vL[r].names + sn(sThr), ["svcc"])
            cm.deps.append((prev, 0))
            fl = salu(f"s_or_b64 s[{sFlag}:{sFlag + 1}], s[{sFlag}:{sFlag + 1}], vcc", ["svcc"] + sn(sFlag, 2), sn(sFlag, 2) + ["scc"])
            fl.deps.append((cm, 2))
            fin[r] = (ops, rc, cm, fl)
        out = []
        for k in range(6):
            for r in rows:
                out.append(fin[r][0][k])
        for r in rows:
            if vcc_last[0] is not None:
                fin[r][2].deps.append((vcc_last[0], 0))
            out += [fin[r][1], fin[r][2], fin[r][3]]
            vcc_last[0] = fin[r][3]
        return out, {r: fin[r][1] for r in rows}

    rbq = [Reg("a", 64 + 4 * i, 4) for i in range(8)]
    tmps = [Reg("v", vP[0][1][0].lo, 8), Reg("v", vS[4].lo, 8), Reg("v", vS[6].lo, 8)]
    tmp_last = {tmps[0].lo: [], tmps[1].lo: sbuf_last[4] + sbuf_last[5], tmps[2].lo: sbuf_last[6] + sbuf_last[7]}
    tmp_min = {tmps[0].lo: max(preg_free[vP[0][1][0].lo], preg_free[vP[0][1][1].lo]), tmps[1].lo: -1, tmps[2].lo: -1}
    ctr = {"t": 0, "r": 0}
    rb_last = {}
    stg_last_read = {}
    wr = {}
    stg_after = bars[stg_bi].gap + 1

    def piece(r, s, T, rcp, half, packed):
        rdy = grp_end[(s, 2 * T + 1)] + cfg.sready
        X, Y = O[r][2 * T], O[r][2 * T + 1]
        src = [X[i] for i in range(4)] + [Y[i] for i in range(4)]
        D = X
        ops = []
        rd = None
        if X.f == "a":
            tb = tmps[ctr["t"] % len(tmps)]
            ctr["t"] += 1
            rd = []
            for i in range(8):
                o = valu(f"v_accvgpr_read_b32 {tb[i]}, {src[i]}", src[i].names, tb[i].names)
                o.earliest = max(rdy, tmp_min[tb.lo])
                o.deps += [(x, 0) for x in tmp_last[tb.lo]]
                rd.append(o)
            ops += rd
            src = [tb[i] for i in range(8)]
            D = tb[0:4]
        mu = []
        if packed:
            for k in range(4):
                pr = Reg("v", src[2 * k].lo, 2)
                rl2 = Reg("v", vRL[r].lo, 2)
                o = valu(f"v_pk_mul_f32 {pr}, {pr}, {rl2} op_sel_hi:[1,0]", names(pr, vRL[r]), pr.names)
                o.earliest = NM
                o.deps.append((rcp, 1))
                if rd:
                    o.deps += [(rd[2 * k], 0), (rd[2 * k + 1], 0)]
                mu += [o, o]
            ops += mu[::2]
        else:
            for i in range(8):
                o = valu(f"v_mul_f32 {src[i]}, {src[i]}, {vRL[r]}", names(src[i], vRL[r]), src[i].names)
                o.earliest = rdy
                o.deps.append((rcp, 1))
                if rd:
                    o.deps.append((rd[i], 0))
                mu.append(o)
            ops += mu
        cv = []
        for k in range(4):
            o = valu(f"v_cvt_pk_bf16_f32 {D[k]}, {src[2 * k]}, {src[2 * k + 1]}", names(src[2 * k], src[2 * k + 1]), D[k].names)
            o.deps += [(mu[2 * k], 0), (mu[2 * k + 1], 0)]
            if k:
                o.deps.append((cv[k - 1], 0))
            cv.append(o)
        w = []
        for xy in range(2):
            ad = vSW[2 * (T & 1) + xy]
            x = Op(f"ds_write_b64 {ad}, {D[2 * xy:2 * xy + 2]} offset:{4096 * half + 128 * ((T >> 1) & 1)}", "ds",
                   D[2 * xy:2 * xy + 2].names + ad.names, [])
            x.deps += [(cv[2 * xy], 0), (cv[2 * xy + 1], 0)]
            x.earliest = stg_after
            x.deps += [(z, 0) for z in stg_last_read.get(half, [])]
            w.append(x)
        if rd:
            tmp_last[tb.lo] = w + [cv[3]]
        wr[(r, T)] = w
        ops += cv + w
        if T % 4 == 3:
            H = T >> 2
            rds, sts = [], []
            for k in range(4):
                qd = rbq[ctr["r"] % len(rbq)]
                ctr["r"] += 1
                o = Op(f"ds_read_b128 {qd}, {vSR[k & 1]} offset:{1024 * k + 4096 * half}", "ds", vSR[k & 1].names, qd.names)
                o.deps += [(x, 0) for tt in range(4 * H, 4 * H + 4) for x in wr[(r, tt)]]
                o.deps += [(x, 0) for x in rb_last.get(qd.lo, [])]
                o.earliest = qk7_end
                stt = f"buffer_store_dwordx4 {qd}, {vST[r][k >> 1]}, s[{sO}:{sO + 3}], 0 offen offset:{(k & 1) * 2048 + 256 * H}"
                if cfg.st:
                    stt += " " + cfg.st
                so = Op(stt, "vstore", qd.names + vST[r][k >> 1].names + sn(sO, 4), [])
                so.meta["data"] = frozenset(qd.names)
                so.meta["hoist_wait"] = True
                so.deps += [(o, cfg.lat), (last_dma, 1)]
                rb_last[qd.lo] = [so]
                rds.append(o)
                sts.append(so)
            stg_last_read[half] = rds
            ops += rds + sts
        return ops

    fo01, rcp01 = finish_rows((0, 1), l01)
    fo2, rcp2 = finish_rows((2,), last_add)
    i01 = vq.index(l01[1]) + 2
    vq[i01:i01] = fo01
    vq += fo2
    ep = []
    hb = 0
    for H in range(2):
        if cfg.stg_n >= 2:
            for T in range(4 * H, 4 * H + 4):
                for r in (1, 0):
                    ep += piece(r, 7, T, rcp01[r], r, False)
        else:
            for r in (1, 0):
                for T in range(4 * H, 4 * H + 4):
                    ep += piece(r, 7, T, rcp01[r], 0, False)
    for T in range(8):
        ep += piece(2, 9, T, rcp2[2], (T >> 2) if cfg.stg_n >= 2 else 0, cfg.pk and T >= cfg.pkfrom)

    gaps = {g: {"s": [], "v": []} for g in range(-1, NM + 1)}
    for b in bars:
        if b.meta["hoist_wait"]:
            gaps[b.gap]["s"].append(b)
    for g, d in gap_dma.items():
        pre = d.pre
        d.pre = []
        gaps[g - 1]["s"].append(pre[-1])
        if len(pre) > 1:
            gaps[max(g - 2, 0)]["s"].insert(0, pre[0])

    def ready(o, g, strict=False):
        if o.earliest > g:
            return False
        for (d, k) in o.deps:
            if d.gap is None or d.gap + k > g or (strict and d.gap >= g):
                return False
        return True

    queue = list(vq)
    equeue = list(ep)
    guard_at = {}
    for (g, ops) in guards:
        guard_at.setdefault(g, []).extend(ops)
    overflow = 0

    def place(o, g, where="v"):
        o.gap = g
        gaps[g][where].append(o)
        (queue if o in queue else equeue).remove(o)

    def force(o, g):
        nonlocal overflow
        if o.gap is not None:
            return
        for (d, k) in o.deps:
            if d.gap is None:
                force(d, g)
        assert o.earliest <= g, (o, g)
        overflow += 1
        place(o, g)

    W = 120

    def pick(kinds, g, strict=False):
        for qq in (queue, equeue):
            for o in qq[:W]:
                if o.kind in kinds and ready(o, g, strict):
                    return o
        return None

    since = {}
    for g in range(0, NM):
        cap = 2
        mem = False
        nds = len(gap_ds.get(g, []))
        if nds:
            for d in gap_ds[g]:
                gaps[g]["v"].append(d["op"])
            cap = 1 if nds == 1 else 0
            mem = True
        if g in gap_dma:
            gaps[g]["v"].append(gap_dma[g])
            cap = 0
            mem = True
        extra = cfg.x9 if g >= start_int[17] else cfg.x8 if g >= start_int[16] else cfg.x15 if g >= start_int[15] - cfg.x15_lead else 0
        o = pick(("salu",), g)
        if o is not None:
            place(o, g, "s")
        ex = pick(("trans",), g)
        if ex is not None:
            since.setdefault(id(ex), g)
        nmem = 0
        if extra or not (mem or ex):
            while nmem < (cfg.xmem if extra else 1):
                mo = pick(("vstore", "ds"), g, True)
                if mo is None:
                    break
                place(mo, g)
                nmem += 1
                cap = min(cap, 1) if mo.kind == "ds" else 0
                mem = True
        if ex is not None and (not mem or (g not in gap_dma and (extra or g - since[id(ex)] >= cfg.exp_age))):
            place(ex, g)
            cap = 0
        cap += extra
        while cap > 0:
            o = pick(("valu",), g)
            if o is None:
                break
            place(o, g)
            cap -= 1
        for o in guard_at.get(g, []):
            force(o, g)
        if g in fixed and cfg.preflush:
            for o in list(queue):
                if o.meta.get("pre") is not None and o.meta["pre"] <= g:
                    place(o, g)
    tail = []
    clock = NM
    k = 0
    rest = queue + equeue
    while rest:
        o = next((o for o in rest if o.kind == "vstore" and ready(o, clock, True)), None)
        if o is None:
            o = next((o for o in rest if o.kind == "ds" and ready(o, clock)), None)
        if o is None:
            o = next((o for o in rest if o.kind not in ("ds", "vstore") and ready(o, clock)), None)
        if o is None:
            clock += 1
            continue
        o.gap = clock
        rest.remove(o)
        tail.append(o)
        k += 1
        if k % 3 == 0:
            clock += 1

    prog = list(pro)
    for o in fixed[-1]:
        o.gap = -1
    prog += fixed[-1]
    inv_start = {v: k for k, v in start_int.items()}
    pos_int = {}
    for g in range(NM):
        M[g].gap = g
        prog.append(M[g])
        if g + 1 in inv_start and (inv_start[g + 1] % cfg.stamp_every == 0 or inv_start[g + 1] < 4 or inv_start[g + 1] > 12):
            prog += stamp(f"i{inv_start[g + 1]}")
            if inv_start[g + 1] in (0, 14):
                prog += stamp(f"t{inv_start[g + 1]}", True)
        prog += gaps[g]["s"]
        prog += gaps[g]["v"]
        if g in fixed:
            for o in fixed[g]:
                o.gap = g
            prog += fixed[g]
    prog += stamp("mfmaend")
    prog += stamp("mfmaendR", True)
    prog += tail
    prog += stamp("stissued", True)
    if cfg.stamps:
        prog.append(Op("s_waitcnt vmcnt(0)", "wait", meta={"fixed": True}))
        prog += stamp("drained", True)
    prog += stamp.finish()
    prog.append(Op(f"s_cmp_lg_u64 s[{sFlag}:{sFlag + 1}], 0", "raw"))
    prog.append(Op("s_cbranch_scc1 L_fallback", "raw"))

    for o in prog:
        if o.kind == "mfma":
            o.meta["cover"] = [x for x in reads if x.gap <= o.gap - 1 - cfg.age and x.gap > o.gap - 40]
    prog = insert_waits_cover(prog)
    prog, pads = fix_hazards(prog, verbose=cfg.verbose)
    verify_lds(prog, U, None, cfg)
    idx = {id(o): i for i, o in enumerate(prog)}
    seg = lambda a, b: estimate_cycles(prog[idx[id(M[a])]:idx[id(M[b])] + 1])
    ints = sorted(start_int.items())
    est = {n: seg(g, (ints[i + 1][1] if i + 1 < len(ints) else NM) - 1) for i, (n, g) in enumerate(ints)}
    info = dict(NM=NM, late=late, overflow=overflow, pads=pads, est_main=seg(start_int[0], NM - 1),
                ideal=16 * (NM - start_int[0]), est_tail=estimate_cycles(prog[idx[id(M[-1])] + 1:]), n=len(prog), tail=len(tail),
                waits=sum(1 for o in prog if o.kind == "wait"), est=list(est.values()))
    if cfg.verbose:
        print("flight", flight)
        print("slots", {u.name: u.slot for u in U.values()})
        print("bars", [(b.meta["name"], b.gap) for b in bars])
        print("ints", start_int, "last dma", last_dma.gap, "stores", [o.gap for o in ep if o.kind == "vstore"])
    cfg.stamp_names = stamp.list
    return prog, info


def insert_waits_cover(prog):
    pend = set()
    for o in prog:
        if o.kind == "ds":
            pend |= set(o.writes)
        if o.kind == "mfma" and (o.reads & pend):
            cov = o.meta.get("cover", [])
            o.meta["need_lgkm"] = cov
            for x in cov:
                pend -= set(x.writes)
            pend -= set(o.reads)
    return insert_waits(prog)


def verify_lds(prog, U, stg_bar, cfg):
    pos = {id(o): i for i, o in enumerate(prog)}
    bars = [o for o in prog if o.kind == "barrier"]
    occ = {}
    for u in U.values():
        for k in range(u.nslots):
            occ.setdefault(u.slot + k, []).append(u)
        if u.kind != "Q":
            for rd in u.reads:
                b = u.vis
                assert pos[id(b)] < pos[id(rd)], ("read before barrier", u.name)
                for d in u.dmas:
                    assert d.meta["vm_idx"] < b.meta["vm_done_at"], ("dma not waited", u.name)
    for s, us in occ.items():
        us.sort(key=lambda u: pos[id(u.dmas[0])])
        for a, b in zip(us, us[1:]):
            first = min(pos[id(d)] for d in b.dmas)
            ok = any(pos[id(br)] < first and all(rd.meta["lg_idx"] < br.meta["lg_done_at"] for rd in a.reads) for br in bars)
            assert ok, ("slot WAR", s, a.name, b.name)
    writes = [o for o in prog if o.kind == "ds" and o.text.startswith("ds_write")]
    firstw = min(pos[id(o)] for o in writes)
    lo, hi = cfg.stg_base, cfg.stg_base + 4 * cfg.stg_wave
    for s, us in occ.items():
        if s * SLOT < hi and (s + 1) * SLOT > lo:
            for u in us:
                ok = any(pos[id(br)] < firstw and all(rd.meta["lg_idx"] < br.meta["lg_done_at"] for rd in u.reads) for br in bars)
                assert ok, ("staging WAR", s, u.name)


def fallback(cfg):
    L = []
    A = L.append
    t = vT
    KFf = KF[0]
    VFf = [Reg("a", 192, 4), Reg("a", 200, 4)]
    A("L_fallback:")
    A("s_waitcnt vmcnt(0) lgkmcnt(0)")
    A("s_barrier")
    A(f"s_mul_i32 s{sT3}, s{sW}, 40960")
    A(f"v_and_b32 {t[0]}, 63, v0")
    A(f"v_bfe_u32 {t[2]}, {t[0]}, 2, 2")
    A(f"v_lshlrev_b32 {t[2]}, 9, {t[2]}")
    A(f"v_lshrrev_b32 {t[5]}, 4, {t[0]}")
    A(f"v_lshl_add_u32 {t[2]}, {t[5]}, 6, {t[2]}")
    A(f"v_and_b32 {t[3]}, 3, {t[0]}")
    fk = [Reg("v", 96 + i, 1) for i in range(4)]
    fv = [Reg("v", 100 + i, 1) for i in range(4)]
    for rg in range(4):
        A(f"v_xor_b32 {t[4]}, {FR[rg]}, {t[3]}")
        A(f"v_lshl_add_u32 {fk[rg]}, {t[4]}, 4, {t[2]}")
        A(f"v_add_u32 {fk[rg]}, {rg * 2048}, {fk[rg]}")
        A(f"v_xor_b32 {t[4]}, {2 * (rg & 1)}, {t[3]}")
        A(f"v_lshl_add_u32 {fv[rg]}, {t[4]}, 4, {t[2]}")
        A(f"v_add_u32 {fv[rg]}, {rg * 2048}, {fv[rg]}")
    rk, rv0, rv1 = Reg("v", 104, 1), Reg("v", 105, 1), Reg("v", 106, 1)
    so = [Reg("v", 107 + r, 1) for r in range(3)]
    tmp8 = Reg("v", 112, 8)
    A(f"v_add_u32 {rk}, s{sT3}, {vKR[0]}")
    A(f"v_add_u32 {rv0}, s{sT3}, {vVR[0][0]}")
    A(f"v_add_u32 {rv1}, s{sT3}, {vVR[1][0]}")
    A(f"v_and_b32 {t[6]}, 15, {t[0]}")
    A(f"s_mul_i32 s{sT1}, s{sW}, 48")
    A(f"v_add_u32 {t[6]}, s{sT1}, {t[6]}")
    A(f"v_lshlrev_b32 {t[6]}, 9, {t[6]}")
    A(f"v_and_b32 {t[7]}, 1, {t[5]}")
    A(f"v_lshl_add_u32 {t[6]}, {t[7]}, 5, {t[6]}")
    A(f"v_lshrrev_b32 {t[7]}, 1, {t[5]}")
    A(f"v_lshl_add_u32 {so[0]}, {t[7]}, 4, {t[6]}")
    A(f"v_add_u32 {so[1]}, 8192, {so[0]}")
    A(f"v_add_u32 {so[2]}, 16384, {so[0]}")
    A(f"s_mul_i32 s{sT2}, s{sW}, {48 * 512}")
    for r in range(3):
        for rg in range(4):
            A(f"v_add_u32 {t[8]}, s{sT2}, {fk[rg]}")
            A(f"v_add_u32 {t[8]}, {r * 8192}, {t[8]}")
            for half in range(2):
                A(f"s_add_u32 m0, s{sT3}, {half * 4096 + rg * 1024 - half * 256}")
                A("s_nop 0")
                A(f"buffer_load_dwordx4 {t[8]}, s[{sQ}:{sQ + 3}], 0 offen offset:{half * 256} lds")
        A("s_waitcnt vmcnt(0)")
        for c in range(8):
            A(f"ds_read_b128 {Q[r][c]}, {rk} offset:{(c >> 2) * 4096 + (c & 3) * 256}")
        A("s_waitcnt lgkmcnt(0)")
    Pf = [vP[0][r][0] for r in range(3)]

    def load_k():
        for a in range(2):
            A(f"s_add_u32 s{sT1}, s{sT0}, {a * 8192}")
            for half in range(2):
                for rg in range(4):
                    A(f"s_add_u32 m0, s{sT3}, {a * 8192 + half * 4096 + rg * 1024 - half * 256}")
                    A("s_nop 0")
                    A(f"buffer_load_dwordx4 {fk[rg]}, s[{sK}:{sK + 3}], s{sT1} offen offset:{half * 256} lds")

    def load_v():
        for dh in range(2):
            for a in range(2):
                A(f"s_add_u32 s{sT1}, s{sT0}, {a * 8192 + dh * 256}")
                for rg in range(4):
                    A(f"s_add_u32 m0, s{sT3}, {16384 + dh * 8192 + a * 4096 + rg * 1024}")
                    A("s_nop 0")
                    A(f"buffer_load_dwordx4 {fv[rg]}, s[{sV}:{sV + 3}], s{sT1} offen lds")

    def qk(a):
        for c in range(8):
            A(f"ds_read_b128 {KFf[c]}, {rk} offset:{a * 8192 + (c >> 2) * 4096 + (c & 3) * 256}")
        A("s_waitcnt lgkmcnt(0)")
        for r in range(3):
            for c in range(8):
                A(f"v_mfma_f32_16x16x32_bf16 {vS[r]}, {KFf[c]}, {Q[r][c]}, {vS[r] if c else 0}")
        A("s_nop 15")

    def xl(op, x, tmp):
        for o in xlane(op, x, tmp):
            A("s_nop 1")
            A(o.text)

    for r in range(3):
        A(f"v_mov_b32 {vNM[r]}, 0xff800000")
    A(f"s_mov_b32 s{sT0}, 0")
    A("L_fb1:")
    load_k()
    A("s_waitcnt vmcnt(0)")
    for a in range(2):
        qk(a)
        for r in range(3):
            A(f"v_max3_f32 {vNM[r]}, {vNM[r]}, {vS[r][0]}, {vS[r][1]}")
            A(f"v_max3_f32 {vNM[r]}, {vNM[r]}, {vS[r][2]}, {vS[r][3]}")
    A(f"s_add_u32 s{sT0}, s{sT0}, 16384")
    A(f"s_cmp_lt_u32 s{sT0}, 262144")
    A("s_cbranch_scc1 L_fb1")
    for r in range(3):
        xl("v_max_f32", vNM[r], t[4])
        A(f"v_mul_f32 {vNM[r]}, {f2u(-C_SCALE):#x}, {vNM[r]}")
        A(f"v_mov_b32 {vL[r]}, 0")
    for r in range(3):
        for tt in range(16):
            for i in range(4):
                x = O[r][tt][i]
                A(f"v_mov_b32 {x}, 0" if x.f == "v" else f"v_accvgpr_write_b32 {x}, 0")
    A(f"s_mov_b32 s{sT0}, 0")
    A("L_fb2:")
    load_k()
    load_v()
    A("s_waitcnt vmcnt(0)")
    for a in range(2):
        qk(a)
        for r in range(3):
            S = vS[r]
            for i in range(4):
                A(f"v_fma_f32 {S[i]}, {S[i]}, s{sC}, {vNM[r]}")
            for i in range(4):
                A(f"v_exp_f32 {S[i]}, {S[i]}")
            A("s_nop 1")
            for i in range(4):
                A(f"v_add_f32 {vL[r]}, {vL[r]}, {S[i]}")
            for k in range(2):
                A(f"v_cvt_pk_bf16_f32 {Pf[r][2 * a + k]}, {S[2 * k]}, {S[2 * k + 1]}")
    A("s_nop 3")
    for tt in range(16):
        for s in range(2):
            base = rv0 if (tt & 1) == 0 else rv1
            off = 16384 + (tt >> 3) * 8192 + s * 4096 + ((tt & 7) >> 1) * 256
            A(f"ds_read_b64_tr_b16 {VFf[tt & 1][2 * s:2 * s + 2]}, {base} offset:{off}")
        A("s_waitcnt lgkmcnt(0)")
        for r in range(3):
            A(f"v_mfma_f32_16x16x32_bf16 {O[r][tt]}, {VFf[tt & 1]}, {Pf[r]}, {O[r][tt]}")
    A("s_nop 15")
    A(f"s_add_u32 s{sT0}, s{sT0}, 16384")
    A(f"s_cmp_lt_u32 s{sT0}, 262144")
    A("s_cbranch_scc1 L_fb2")
    for r in range(3):
        xl("v_add_f32", vL[r], t[4])
        A(f"v_rcp_f32 {vRL[r]}, {vL[r]}")
    A("s_nop 3")
    for T in range(8):
        for r in range(3):
            X, Y = O[r][2 * T], O[r][2 * T + 1]
            src = [X[i] for i in range(4)] + [Y[i] for i in range(4)]
            if X.f == "a":
                for i in range(8):
                    A(f"v_accvgpr_read_b32 {tmp8[i]}, {src[i]}")
                src = [tmp8[i] for i in range(8)]
            for i in range(8):
                A(f"v_mul_f32 {src[i]}, {src[i]}, {vRL[r]}")
            D = vS[(3 * T + r) % 8]
            for k in range(4):
                A(f"v_cvt_pk_bf16_f32 {D[k]}, {src[2 * k]}, {src[2 * k + 1]}")
            A("s_nop 1")
            A(f"v_permlane16_swap_b32 {D[0]}, {D[2]}")
            A(f"v_permlane16_swap_b32 {D[1]}, {D[3]}")
            A(f"buffer_store_dwordx4 {D}, {so[r]}, s[{sO}:{sO + 3}], 0 offen offset:{64 * T}")
    A("s_waitcnt vmcnt(0)")
    return L


HEADER = """; GQA attention forward, B=8 Hq=16 Hkv=8 Sq=368 Sk=512 D=256, bf16 (emitted by my own generator script)
; and a wave with a sum above 2^64 recomputes its rows with the true row maximum (L_fallback).
; @launch grid=(256,1,1) block=(256,1,1) lds=163840
.amdgcn_target "amdgcn-amd-amdhsa--gfx950"
.text
.globl {k}
.p2align 8
.type {k},@function
{k}:
"""

FOOTER = """L_end:
    s_endpgm
.section .rodata,"a"
.p2align 6
.amdhsa_kernel {k}
  .amdhsa_next_free_vgpr 512
  .amdhsa_next_free_sgpr 102
  .amdhsa_accum_offset 256
  .amdhsa_group_segment_fixed_size 0
  .amdhsa_kernarg_size 48
  .amdhsa_user_sgpr_count 2
  .amdhsa_user_sgpr_kernarg_segment_ptr 1
  .amdhsa_system_sgpr_workgroup_id_x 1
.end_amdhsa_kernel
"""


def render(cfg, prog):
    s = HEADER.format(k=KNAME)
    if cfg.stamps and cfg.spin == -1:
        s = "; stamps: " + " ".join(n + ("*" if r else "") for n, r in cfg.stamp_names) + "\n" + s
    for o in prog:
        s += (o.text if o.kind == "label" else "    " + o.text) + "\n"
    s += "    s_endpgm\nL_mainend:\n"
    for l in fallback(cfg):
        s += (l if l.endswith(":") else "    " + l) + "\n"
    s += FOOTER.format(k=KNAME)
    return s


def addresses(text, n):
    import subprocess, re, tempfile, os
    d = tempfile.mkdtemp()
    open(d + "/x.s", "w").write(text)
    subprocess.run(["clang", "-x", "assembler", "-target", "amdgcn-amd-amdhsa", "-mcpu=gfx950", "-c",
                    d + "/x.s", "-o", d + "/x.o"], check=True)
    out = subprocess.run(["llvm-objdump", "-d", "--mcpu=gfx950", d + "/x.o"], capture_output=True, text=True).stdout
    return [int(m.group(1), 16) for m in re.finditer(r"// ([0-9A-F]+):", out)][:n]


def add_walk(cfg, prog):
    iw = next(i for i, o in enumerate(prog) if o.text == "WALK")
    head, body = prog[:iw], prog[iw + 1:]
    lab = lambda t: Op(t, "label")
    raw = lambda t: Op(t, "raw")
    stubs = []
    for it in range(20):
        b2 = []
        for i, o in enumerate(body):
            if i in stubs:
                k = stubs.index(i)
                b2.append(lab(f"L_pg{k}:"))
                b2.append(raw(f"s_cbranch_execz L_wr{k}"))
            b2.append(o)
        npg = len(stubs)
        walk = [raw("s_mov_b64 exec, 0")]
        for w in range(4):
            if w < npg:
                walk += [raw(f"s_cmp_eq_u32 s{sW}, {w}"), raw(f"s_cbranch_scc1 L_pg{w}")]
        walk.append(raw("s_branch L_wdone"))
        for k in range(npg):
            walk.append(lab(f"L_wr{k}:"))
            walk.append(raw(f"s_branch L_pg{k + 4}" if k + 4 < npg else "s_branch L_wdone"))
        walk += [lab("L_wdone:"), raw("s_mov_b64 exec, -1")]
        full = head + walk + b2
        ins = [o for o in full if o.kind != "label"]
        addr = addresses(render(cfg, full), len(ins))
        amap = {id(o): a + cfg.base_off for o, a in zip(ins, addr)}
        want = []
        prev = amap[id(body[0])] // 4096
        for i, o in enumerate(body):
            if o.kind == "label":
                continue
            pg = amap[id(o)] // 4096
            if pg != prev:
                j = i
                for jj in range(i, min(i + cfg.walk_win, len(body))):
                    if body[jj - 1].kind == "mfma" and amap[id(body[jj - 1])] // 4096 == pg and body[jj].kind not in ("salu", "wait", "barrier"):
                        j = jj
                        break
                want.append(j)
                prev = pg
        if want == stubs:
            return full
        stubs = want
    return full


def emit(cfg):
    prog, info = build(cfg)
    if cfg.walk:
        prog = add_walk(cfg, prog)
    return render(cfg, prog), info


Cfg.walk = True
Cfg.walk_win = 8
Cfg.base_off = 0x1e00
Cfg.spin_name = ""
Cfg.stamp_every = 1
Cfg.pkfrom = 5
Cfg.join_order = "cGcGGGc"
Cfg.p7_order = "cGGGG"
Cfg.stg_bar = 14
Cfg.stg_n = 1
Cfg.sp7 = 1.3333
Cfg.sp2 = 1.3333
Cfg.x15 = 3
Cfg.x15_lead = 16
Cfg.x8 = 6
Cfg.x9 = 2
Cfg.xmem = 2
Cfg.exp_age = 3
Cfg.q2_before = "K5"
Cfg.dma_sp_fast = 3
Cfg.tail_extra = 3
Cfg.p7_extra = 0
Cfg.stag2 = ""
Cfg.stag_sh = 6
Cfg.stagger = ""
Cfg.cls_shift = 6
Cfg.cls_mask = 0

if __name__ == "__main__":
    ap = argparse.ArgumentParser()
    ap.add_argument("-o", default="standalone__gqa_softmax__near_ridge.s")
    ap.add_argument("-v", action="store_true")
    ap.add_argument("opts", nargs="*")
    a = ap.parse_args()
    cfg = Cfg()
    cfg.verbose = a.v
    for kv in a.opts:
        k, v = kv.split("=", 1)
        if k == "spin":
            cfg.spin, cfg.spin_name, cfg.stamps = 1, v, True
            continue
        old = getattr(cfg, k)
        if isinstance(old, bool):
            v = v in ("1", "true", "True")
        elif isinstance(old, int):
            v = int(v)
        elif isinstance(old, float):
            v = float(v)
        setattr(cfg, k, v.replace("+", " ") if isinstance(v, str) else v)
    s, info = emit(cfg)
    open(a.o, "w").write(s)
    print(info, len(s))
```

```python
import sys, math, argparse, struct
sys.path.insert(0, __file__.rsplit("/", 1)[0])
from ir import *

KNAME = "standalone__gqa_softmax__near_ridge_kernel"
C_SCALE = math.log2(math.e) / 16.0


def f2u(x):
    return struct.unpack("<I", struct.pack("<f", x))[0]


class Cfg:
    ldq = "nt"
    ldkv = "nt"
    ldkv0 = ""
    st = "sc1"
    lat = 6
    age = 5
    sready = 4
    stamps = False
    dbg = False
    spin = -1
    spinwg = -1
    codepf = True
    force_fallback = False
    dma_sp = 6
    preflush = True
    y = 2
    pk = True
    verbose = False


sQ, sK, sV, sO = 12, 16, 20, 24
sW1K = 28
sC = 29
sKoff = 30
sVoff = 31
sT0, sT1, sT2, sT3 = 32, 33, 34, 35
sW = 36
sThr = 37
sW8K = 38
sCls = 39
sFlag = 40
sDBG = 44
vKR = [Reg("v", 1, 1), Reg("v", 2, 1), Reg("v", 3, 1)]
vVR = [[Reg("v", 4 + 3 * h + w, 1) for w in range(3)] for h in range(2)]
vDK = [Reg("v", 10, 1), Reg("v", 11, 1)]
vDV = [Reg("v", 12 + a, 1) for a in range(4)]
vST = [[Reg("v", 10 + 2 * r + k, 1) for k in range(2)] for r in range(3)]
vL = [Reg("v", 16 + r, 1) for r in range(3)]
vST0 = Reg("v", 19, 1)
vNM = [Reg("v", 20 + 2 * r, 1) for r in range(3)]
vRL = vNM
vSR = Reg("v", 21, 1)
vSW = [Reg("v", 23, 1), Reg("v", 25, 1), Reg("v", 26, 1), Reg("v", 27, 1)]
vXT = [Reg("v", 28 + r, 1) for r in range(3)]
vQR = Reg("v", 31, 1)
NSB = 6
vS = [Reg("v", 32 + 4 * i, 4) for i in range(NSB)]
vP = [[[Reg("v", 56 + 24 * b + 8 * r + 4 * kc, 4) for kc in range(2)] for r in range(3)] for b in range(3)]
vT = Reg("v", 32, 12)
vX = Reg("v", 44, 2)
O = [[Reg("v", 128 + 4 * t, 4) for t in range(16)],
     [Reg("v", 192 + 4 * t, 4) for t in range(16)],
     [Reg("a", 4 * t, 4) for t in range(16)]]
preK = [[Reg("v", 128 + 32 * a + 4 * c, 4) for c in range(8)] for a in range(4)] + \
       [[Reg("a", base + 4 * c, 4) for c in range(8)] for base in (0, 32, 192, 224)]
Q = [[Reg("a", 64 + 32 * r + 4 * c, 4) for c in range(8)] for r in range(3)]
KF = [[Reg("a", 160 + 4 * c, 4) for c in range(8)], [Reg("a", 224 + 4 * c, 4) for c in range(8)]]
VFB = [192 + 8 * b for b in range(4)]

SLOT = 16384
STG = 528
FR = (0, 2, 3, 1)


def sn(i, n=1):
    return R("s", i, n)


def valu(text, reads=(), writes=(), tag=""):
    return Op(text, "valu", reads, writes, tag)


def salu(text, reads=(), writes=()):
    return Op(text, "salu", reads, writes)


def names(*regs):
    out = []
    for r in regs:
        out += r.names if isinstance(r, Reg) else [r]
    return out


def mfma(D, A, B, C=None):
    c = str(C) if C is not None else "0"
    op = Op(f"v_mfma_f32_16x16x32_bf16 {D}, {A}, {B}, {c}", "mfma",
            names(A, B) + (C.names if C is not None else []), D.names)
    op.meta["srcab"] = frozenset(names(A, B))
    op.meta["srcc"] = frozenset(C.names) if C is not None else frozenset()
    return op


def dma(vaddr, srd, soff, imm, pol):
    so = f"s{soff}" if soff is not None else "0"
    t = f"buffer_load_dwordx4 {vaddr}, s[{srd}:{srd + 3}], {so} offen"
    if imm:
        t += f" offset:{imm}"
    if pol:
        t += " " + pol
    t += " lds"
    return Op(t, "dma", vaddr.names + sn(srd, 4) + (sn(soff) if soff is not None else []) + ["m0"], [])


def set_m0(const, base=sW1K):
    return salu(f"s_add_u32 m0, s{base}, {const}", sn(base), ["m0", "scc"])


class Unit:
    def __init__(self, kind, n, cfg):
        self.kind, self.n, self.cfg = kind, n, cfg
        self.slot = None
        self.nslots = 2 if kind == "Q" else 1
        self.dmas = []
        self.reads = []
        self.vis = None
        self.name = f"{kind}{n}"

    def make_dmas(self, vq=None):
        cfg = self.cfg
        ops = []
        base = self.slot * SLOT
        src = self.n % 16
        pol = cfg.ldkv
        if self.kind == "K":
            so = salu(f"s_mov_b32 s{sKoff}, {src * 16384}", [], sn(sKoff))
            for a in range(2):
                for half in range(2):
                    d = dma(vDK[a], sK, sKoff, half * 256, pol)
                    d.pre = [set_m0(base + a * 8192 + half * 4096 - half * 256)]
                    ops.append(d)
            ops[0].pre.insert(0, so)
        elif self.kind == "V":
            j, h = divmod(src, 2)
            so = salu(f"s_mov_b32 s{sVoff}, {j * 32768 + h * 256}", [], sn(sVoff))
            for a in range(4):
                d = dma(vDV[a], sV, sVoff, 0, pol)
                d.pre = [set_m0(base + a * 4096)]
                ops.append(d)
            ops[0].pre.insert(0, so)
        else:
            for half in range(2):
                for rg in range(4):
                    d = dma(vq[rg], sQ, None, half * 256, cfg.ldq)
                    d.pre = [set_m0(base + half * 4096 + rg * 1024 - half * 256, sW8K)]
                    ops.append(d)
        for d in ops:
            d.meta["unit"] = self
        self.dmas = ops
        return ops


def flat_dmas(ops):
    out = []
    for d in ops:
        out += d.pre
        out.append(salu("s_nop 0"))
        out.append(d)
        d.pre = []
    return out


def xlane(op, x, tmp):
    o = []
    o.append(valu(f"v_mov_b32 {tmp}, {x}", x.names, tmp.names))
    o.append(valu(f"v_permlane32_swap_b32 {x}, {tmp}", names(x, tmp), names(x, tmp)))
    o.append(valu(f"{op} {x}, {x}, {tmp}", names(x, tmp), x.names))
    o.append(valu(f"v_mov_b32 {tmp}, {x}", x.names, tmp.names))
    o.append(valu(f"v_permlane16_swap_b32 {x}, {tmp}", names(x, tmp), names(x, tmp)))
    o.append(valu(f"{op} {x}, {x}, {tmp}", names(x, tmp), x.names))
    return o


class Stamps:
    def __init__(self, cfg):
        self.cfg = cfg
        self.list = []

    def __call__(self, name, real=False):
        cfg = self.cfg
        if not cfg.stamps:
            return []
        if cfg.spin != -1:
            if name != cfg.spin_name:
                return []
            return [Op("s_memrealtime s[48:49]", "salu")]
        k = len(self.list)
        assert 48 + 2 * k + 1 <= 101, "too many stamps"
        self.list.append((name, real))
        return [Op(f"{'s_memrealtime' if real else 's_memtime'} s[{48 + 2 * k}:{49 + 2 * k}]", "salu")]

    def finish(self):
        cfg = self.cfg
        o = []
        raw = lambda t: o.append(Op(t, "raw"))
        if not cfg.stamps:
            return o
        raw("s_waitcnt lgkmcnt(0)")
        if cfg.spin != -1:
            if cfg.spinwg >= 0:
                raw(f"s_cmp_lg_u32 s2, {cfg.spinwg}")
                raw("s_cbranch_scc1 L_end")
            o.append(Op("L_spin:", "label"))
            raw("s_memrealtime s[50:51]")
            raw("s_waitcnt lgkmcnt(0)")
            raw("s_sub_u32 s50, s50, s48")
            raw("s_cmp_lt_u32 s50, 5000")
            raw("s_cbranch_scc1 L_spin")
            return o
        raw("v_mov_b32 v40, 0")
        for k in range(len(self.list)):
            raw(f"v_writelane_b32 v40, s{48 + 2 * k}, {k}")
        raw(f"s_load_dwordx2 s[{sDBG}:{sDBG + 1}], s[0:1], 40")
        raw(f"s_mov_b32 s{sDBG + 2}, 0x1000000")
        raw(f"s_mov_b32 s{sDBG + 3}, 0x00020000")
        raw("s_lshl_b32 s48, s2, 8")
        raw("v_add_u32 v41, s48, v0")
        raw("v_lshlrev_b32 v41, 2, v41")
        raw("s_waitcnt lgkmcnt(0)")
        raw(f"buffer_store_dword v40, v41, s[{sDBG}:{sDBG + 3}], 0 offen")
        return o


def prologue(cfg, U, stamp):
    P = []
    A = P.append
    raw = lambda t: A(Op(t, "raw"))
    raw("s_cmp_ge_u32 s2, 256")
    raw("s_cbranch_scc1 L_end")
    raw("s_load_dwordx4 s[4:7], s[0:1], 0")
    raw("s_load_dwordx4 s[8:11], s[0:1], 16")
    P += stamp("start", True)
    t = vT
    lane, wv, common, cpos, f_w = t[0], t[1], t[2], t[3], t[4]
    if cfg.codepf:
        raw("s_getpc_b64 s[42:43]")
        A(Op("L_pfbase:", "label"))
        A(valu(f"v_lshlrev_b32 {t[10]}, 7, v0", ["v0"], t[10].names))
        A(Op(f"global_load_dword {vX[0]}, {t[10]}, s[42:43]", "vload", t[10].names, vX[0].names))
    A(valu(f"v_lshrrev_b32 {wv}, 6, v0", ["v0"], wv.names))
    A(valu(f"v_and_b32 {lane}, 63, v0", ["v0"], lane.names))
    A(valu(f"v_readfirstlane_b32 s{sW}, {wv}", wv.names, sn(sW)))
    A(salu(f"s_and_b32 s{sT0}, s2, 7", [], sn(sT0)))
    A(salu(f"s_lshr_b32 s{sT1}, s2, 5", [], sn(sT1)))
    A(salu(f"s_lshl3_add_u32 s{sT0}, s{sT1}, s{sT0}", [], sn(sT0)))
    A(salu(f"s_bfe_u32 s{sT1}, s2, 0x20003", [], sn(sT1)))
    A(salu(f"s_lshl2_add_u32 s{sT2}, s{sT0}, s{sT1}", [], sn(sT2)))
    A(salu(f"s_mul_i32 s{sT2}, s{sT2}, {184 * 512}", [], sn(sT2)))
    A(salu(f"s_lshl_b32 s{sT0}, s{sT0}, 18", [], sn(sT0)))
    A(valu(f"v_bfe_u32 {t[6]}, {lane}, 2, 2", lane.names, t[6].names))
    A(valu(f"v_lshrrev_b32 {t[5]}, 4, {lane}", lane.names, t[5].names))
    A(valu(f"v_lshlrev_b32 {common}, 9, {t[6]}", t[6].names, common.names))
    A(valu(f"v_lshl_add_u32 {common}, {t[5]}, 6, {common}", names(t[5], common), common.names))
    A(valu(f"v_and_b32 {cpos}, 3, {lane}", lane.names, cpos.names))
    A(salu(f"s_lshl_b32 s{sT1}, s{sW}, 1", sn(sW), sn(sT1)))
    A(salu(f"s_lshr_b32 s{sT1}, 0x78, s{sT1}", [], sn(sT1)))
    A(salu(f"s_and_b32 s{sT1}, s{sT1}, 3", [], sn(sT1)))
    A(salu(f"s_lshl_b32 s{sW1K}, s{sW}, 10", sn(sW), sn(sW1K)))
    A(salu(f"s_lshl_b32 s{sW8K}, s{sW}, 13", sn(sW), sn(sW8K)))
    A(valu(f"v_xor_b32 {f_w}, s{sT1}, {cpos}", cpos.names, f_w.names))
    A(valu(f"v_lshl_add_u32 {t[7]}, {wv}, 11, {common}", names(wv, common), t[7].names))
    A(valu(f"v_lshl_add_u32 {vDK[0]}, {f_w}, 4, {t[7]}", names(f_w, t[7]), vDK[0].names))
    A(valu(f"v_add_u32 {vDK[1]}, 8192, {vDK[0]}", vDK[0].names, vDK[1].names))
    vq = [[Reg("v", 104 + 4 * r + rg, 1) for rg in range(4)] for r in range(3)]
    qb = Reg("v", 116, 1)
    A(salu(f"s_mov_b32 s{sT3}, {48 * 512}", [], sn(sT3)))
    A(valu(f"v_mad_u32_u24 {qb}, {wv}, s{sT3}, {common}", names(wv, common), qb.names))
    for rg in range(4):
        x = Reg("v", 117, 1)
        A(valu(f"v_xor_b32 {x}, {FR[rg]}, {cpos}", cpos.names, x.names))
        A(valu(f"v_lshl_add_u32 {vq[0][rg]}, {x}, 4, {qb}", names(x, qb), vq[0][rg].names))
        if rg:
            A(valu(f"v_add_u32 {vq[0][rg]}, {rg * 2048}, {vq[0][rg]}", vq[0][rg].names, vq[0][rg].names))
    A(Op("s_waitcnt lgkmcnt(0)", "wait", meta={"fixed": True}))
    P += stamp("karg", True)

    def srd(srd, p, off, nrec):
        A(salu(f"s_add_u32 s{srd}, s{p}, s{off}", [], sn(srd)))
        A(salu(f"s_addc_u32 s{srd + 1}, s{p + 1}, 0", [], sn(srd + 1)))
        A(salu(f"s_mov_b32 s{srd + 2}, {nrec}", [], sn(srd + 2)))
        A(salu(f"s_mov_b32 s{srd + 3}, 0x00020000", [], sn(srd + 3)))

    def vaddr():
        A(valu(f"v_and_b32 {t[9]}, 1, {wv}", wv.names, t[9].names))
        A(valu(f"v_lshlrev_b32 {t[9]}, 1, {t[9]}", t[9].names, t[9].names))
        A(valu(f"v_xor_b32 {t[9]}, {t[9]}, {cpos}", names(t[9], cpos), t[9].names))
        A(valu(f"v_lshl_add_u32 {vDV[0]}, {t[9]}, 4, {t[7]}", names(t[9], t[7]), vDV[0].names))
        for a in range(1, 4):
            A(valu(f"v_add_u32 {vDV[a]}, {8192 * a}, {vDV[0]}", vDV[0].names, vDV[a].names))

    def codepf2():
        if cfg.codepf:
            A(valu(f"v_add_u32 {t[10]}, 32768, {t[10]}", t[10].names, t[10].names))
            A(valu(f"v_min_u32 {t[10]}, L_mainend - L_pfbase, {t[10]}", t[10].names, t[10].names))
            A(Op(f"global_load_dword {vX[1]}, {t[10]}, s[42:43]", "vload", t[10].names, vX[1].names))

    def cwait(k):
        raw(f"s_cmp_lt_u32 s{sCls}, {k}")
        raw(f"s_cbranch_scc1 L_nw{k}")
        raw("s_waitcnt vmcnt(0)")
        A(Op(f"L_nw{k}:", "label"))

    srd(sK, 6, sT0, 262144)
    srd(sQ, 4, sT2, 184 * 512)
    if cfg.stag2:
        raw(f"s_lshr_b32 s{sCls}, s2, 5")
        raw(f"s_lshl_b32 s{sCls}, s{sCls}, 2")
        raw(f"s_lshr_b32 s{sCls}, {cfg.stag2}, s{sCls}")
        raw(f"s_and_b32 s{sCls}, s{sCls}, 15")
        raw(f"s_cbranch_scc0 L_go")
        raw(f"v_lshlrev_b32 {t[9]}, {cfg.stag_sh}, v0")
        raw(f"s_mov_b32 s{sKoff}, 0")
        A(Op("L_warm:", "label"))
        raw(f"buffer_load_dword {t[8]}, {t[9]}, s[{sK}:{sK + 3}], s{sKoff} offen {cfg.ldkv}")
        raw(f"s_add_u32 s{sKoff}, s{sKoff}, {256 << cfg.stag_sh}")
        raw(f"s_sub_u32 s{sCls}, s{sCls}, 1")
        raw("s_waitcnt vmcnt(0)")
        raw(f"s_cmp_lg_u32 s{sCls}, 0")
        raw("s_cbranch_scc1 L_warm")
        A(Op("L_go:", "label"))
    seq = cfg.head.split(",")

    def issue(x):
        if x == "pf":
            codepf2()
        elif x[0] == "Q":
            r = int(x[1])
            if r:
                for rg in range(4):
                    A(valu(f"v_add_u32 {vq[r][rg]}, {8192 * r}, {vq[0][rg]}", vq[0][rg].names, vq[r][rg].names))
            P.extend(flat_dmas(U[x].make_dmas(vq[r])))
        else:
            P.extend(flat_dmas(U[x].make_dmas()))

    cut = seq.index("|")
    for x in seq[:cut]:
        issue(x)
    srd(sV, 8, sT0, 262144)
    srd(sO, 10, sT2, 184 * 512)
    vaddr()
    g = t[5]
    A(valu(f"v_lshlrev_b32 {t[10]}, 1, {t[6]}", t[6].names, t[10].names))
    A(valu(f"v_lshrrev_b32 {t[10]}, {t[10]}, 0x78".replace("0x78", str(t[11])), names(t[10], t[11]), t[10].names))
    P.insert(len(P) - 1, valu(f"v_mov_b32 {t[11]}, 0x78", [], t[11].names))
    A(valu(f"v_and_b32 {t[10]}, 3, {t[10]}", t[10].names, t[10].names))
    A(valu(f"v_xor_b32 {t[10]}, {t[10]}, {g}", names(t[10], g), t[10].names))
    A(valu(f"v_lshlrev_b32 {t[10]}, 4, {t[10]}", t[10].names, t[10].names))
    A(valu(f"v_lshl_add_u32 {t[10]}, {t[6]}, 10, {t[10]}", names(t[6], t[10]), t[10].names))
    A(valu(f"v_lshl_add_u32 {vKR[0]}, {cpos}, 6, {t[10]}", names(cpos, t[10]), vKR[0].names))
    A(valu(f"v_add_u32 {vKR[1]}, 0x10000, {vKR[0]}", vKR[0].names, vKR[1].names))
    A(valu(f"v_add_u32 {vKR[2]}, 0x20000, {vKR[0]}", vKR[0].names, vKR[2].names))
    A(valu(f"v_lshlrev_b32 {t[10]}, 10, {g}", g.names, t[10].names))
    A(valu(f"v_lshl_add_u32 {t[10]}, {t[6]}, 6, {t[10]}", names(t[6], t[10]), t[10].names))
    A(valu(f"v_lshl_add_u32 {t[10]}, {cpos}, 3, {t[10]}", names(cpos, t[10]), t[10].names))
    A(valu(f"v_and_b32 {t[11]}, 1, {g}", g.names, t[11].names))
    A(valu(f"v_lshl_add_u32 {vVR[0][0]}, {t[11]}, 5, {t[10]}", names(t[11], t[10]), vVR[0][0].names))
    A(valu(f"v_xor_b32 {vVR[1][0]}, 32, {vVR[0][0]}", vVR[0][0].names, vVR[1][0].names))
    for h in range(2):
        for w in (1, 2):
            A(valu(f"v_add_u32 {vVR[h][w]}, {w * 65536}, {vVR[h][0]}", vVR[h][0].names, vVR[h][w].names))
    n15 = t[11]
    x0, x1, x2 = Reg("v", 118, 1), Reg("v", 119, 1), Reg("v", 120, 1)
    A(valu(f"v_and_b32 {n15}, 15, {lane}", lane.names, n15.names))
    A(valu(f"v_lshrrev_b32 {x1}, 3, {lane}", lane.names, x1.names))
    A(valu(f"v_and_b32 {x2}, 7, {lane}", lane.names, x2.names))
    A(valu(f"v_mad_u32_u24 {t[10]}, {wv}, 48, {x1}", names(wv, x1), t[10].names))
    A(valu(f"v_lshlrev_b32 {t[10]}, 9, {t[10]}", t[10].names, t[10].names))
    A(valu(f"v_lshl_add_u32 {vST0}, {x2}, 4, {t[10]}", names(x2, t[10]), vST0.names))
    A(salu(f"s_mul_i32 s{sT3}, s{sW}, {cfg.stg_wave}", sn(sW), sn(sT3)))
    A(salu(f"s_add_u32 s{sT3}, s{sT3}, {cfg.stg_base}", [], sn(sT3)))
    A(valu(f"v_xor_b32 {t[10]}, {x2}, {x1}", names(x2, x1), t[10].names))
    A(valu(f"v_lshlrev_b32 {t[10]}, 4, {t[10]}", t[10].names, t[10].names))
    A(valu(f"v_lshl_add_u32 {t[10]}, {x1}, 7, {t[10]}", names(x1, t[10]), t[10].names))
    A(valu(f"v_add_u32 {vSR}, s{sT3}, {t[10]}", t[10].names, vSR.names))
    A(valu(f"v_lshrrev_b32 {x1}, 1, {g}", g.names, x1.names))
    A(valu(f"v_xor_b32 {x0}, {x2}, {x1}", names(x2, x1), x0.names))
    A(valu(f"v_lshlrev_b32 {x0}, 4, {x0}", x0.names, x0.names))
    A(valu(f"v_lshl_add_u32 {x0}, {n15}, 7, {x0}", names(n15, x0), x0.names))
    A(valu(f"v_and_b32 {x1}, 1, {g}", g.names, x1.names))
    A(valu(f"v_lshl_add_u32 {x0}, {x1}, 3, {x0}", names(x1, x0), x0.names))
    A(valu(f"v_add_u32 {x0}, s{sT3}, {x0}", x0.names, x0.names))
    for i in range(4):
        A(valu(f"v_xor_b32 {vSW[i]}, {32 * i}, {x0}", x0.names, vSW[i].names))
    A(valu(f"v_add_u32 {vQR}, s{sW8K}, {vKR[1]}", vKR[1].names + sn(sW8K), vQR.names))
    A(salu(f"s_mov_b32 s{sC}, {f2u(C_SCALE):#x}", [], sn(sC)))
    A(salu(f"s_mov_b32 s{sThr}, {f2u(2.0 ** 64 if not cfg.force_fallback else 1.0):#x}", [], sn(sThr)))
    A(salu(f"s_mov_b64 s[{sFlag}:{sFlag + 1}], 0", [], sn(sFlag, 2)))
    for r in range(3):
        A(valu(f"v_mov_b32 {vL[r]}, 0", [], vL[r].names))
    for x in seq[cut + 1:]:
        issue(x)
    P += stamp("issued", True)
    if cfg.walk:
        A(Op("WALK", "label"))
    return P, vq


def q_reads(u):
    ops = []
    r = u.n
    base = u.slot * SLOT - 65536
    pre = []
    addr = vQR
    if base >= 65536:
        addr = vXT[2]
        pre.append(valu(f"v_add_u32 {addr}, 0x10000, {vQR}", vQR.names, addr.names))
        base -= 65536
    for c in range(8):
        off = base + (c >> 2) * 4096 + (c & 3) * 256
        o = Op(f"ds_read_b128 {Q[r][c]}, {addr} offset:{off}", "ds", addr.names, Q[r][c].names)
        o.meta["qhalf"] = c >> 2
        o.meta["unit"] = u
        u.reads.append(o)
        ops.append(o)
    return pre, ops


def build(cfg):
    act = lambda s: (0, 1, 2)
    stamp = Stamps(cfg)
    U = {}
    for n in range(16):
        U[f"K{n}"] = Unit("K", n, cfg)
        U[f"V{n}"] = Unit("V", n, cfg)
    for r in range(3):
        U[f"Q{r}"] = Unit("Q", r, cfg)
    U["K0"].slot, U["K1"].slot, U["K2"].slot, U["K3"].slot = 0, 1, 2, 3
    U["Q0"].slot, U["Q1"].slot, U["Q2"].slot = 4, 6, 8
    cfg.stg_base, cfg.stg_wave = 0, 4096 * cfg.stg_n

    pro, vqd = prologue(cfg, U, stamp)

    M = []
    fixed = {}
    dsq = []
    vq = []
    sbuf_last = {}
    spool = {"bufs": list(vS) + [Reg("v", vP[2][0][0].lo + 4 * i, 4) for i in range(6)], "ctr": 0}
    guards = []
    Pcvt = {}
    negm_ready = {}
    preg_free = {}
    last_add = {}
    bars = []

    def Preg(s, r):
        return vP[s % 3][r]

    def softmax_ops(s, r, a, S, ready_gap):
        dst = Preg(s, r)[a >> 1]
        fm, ex, ad, cv = [], [], [], []
        for i in range(4):
            o = valu(f"v_fma_f32 {S[i]}, {S[i]}, s{sC}, {vNM[r]}", names(S[i], vNM[r]) + sn(sC), S[i].names)
            o.earliest = ready_gap
            o.deps.append((negm_ready[r], 0))
            fm.append(o)
        for i in range(4):
            o = Op(f"v_exp_f32 {S[i]}, {S[i]}", "trans", S[i].names, S[i].names)
            o.deps.append((fm[i], 0))
            ex.append(o)
        for i in range(4):
            o = valu(f"v_add_f32 {vL[r]}, {vL[r]}, {S[i]}", names(vL[r], S[i]), vL[r].names)
            o.deps.append((ex[i], 1))
            prev_add = ad[-1] if ad else last_add.get(r)
            if prev_add is not None:
                o.deps.append((prev_add, 0))
            ad.append(o)
        for k in range(2):
            d = dst[2 * (a & 1) + k]
            o = valu(f"v_cvt_pk_bf16_f32 {d}, {S[2 * k]}, {S[2 * k + 1]}", names(S[2 * k], S[2 * k + 1]), d.names)
            o.deps += [(ex[2 * k], 1), (ex[2 * k + 1], 1)]
            o.earliest = preg_free.get(dst.lo, -1)
            if dst.lo in sbuf_last:
                o.deps += [(x, 0) for x in sbuf_last[dst.lo]]
            cv.append(o)
        Pcvt[(s, r, a)] = cv
        vq.extend([fm[0], fm[1], ex[0], fm[2], ex[1], fm[3], ad[0], ex[2], ad[1], cv[0], ex[3], ad[2], ad[3], cv[1]])
        last_add[r] = ad[3]
        return ad + cv

    held = {}
    noflush = set()

    def chain(s, r, a, frags):
        S = spool["bufs"][spool["ctr"] % len(spool["bufs"])]
        spool["ctr"] += 1
        si = S.lo
        start = len(M)
        assert sbuf_last.get(si) != "held"
        if sbuf_last.get(si):
            guards.append((start - 1, sbuf_last[si]))
        for c in range(8):
            M.append(mfma(S, frags[c], Q[r][c], S if c else None))
        end = len(M) - 1
        if r not in negm_ready:
            held.setdefault(r, []).append((si, S, end, a))
            sbuf_last[si] = "held"
            if len(held[r]) == 2:
                S0, S1 = held[r][0][1], held[r][1][1]
                m, tmp = vNM[r], vXT[r]
                ops = [valu(f"v_max3_f32 {m}, {S0[0]}, {S0[1]}, {S0[2]}", names(S0[0], S0[1], S0[2]), m.names),
                       valu(f"v_max3_f32 {tmp}, {S0[3]}, {S1[0]}, {S1[1]}", names(S0[3], S1[0], S1[1]), tmp.names),
                       valu(f"v_max3_f32 {m}, {m}, {S1[2]}, {S1[3]}", names(m, S1[2], S1[3]), m.names),
                       valu(f"v_max_f32 {m}, {m}, {tmp}", names(m, tmp), m.names)]
                ops += xlane("v_max_f32", m, tmp)
                ops.append(valu(f"v_mul_f32 {m}, {f2u(-C_SCALE):#x}, {m}", m.names, m.names))
                prev = None
                for o in ops:
                    o.earliest = end + cfg.sready
                    if prev is not None:
                        o.deps.append((prev, 1 if "permlane" in o.text else 0))
                    prev = o
                vq.extend(ops)
                negm_ready[r] = ops[-1]
                for (si2, S2, end2, a2) in held[r]:
                    sbuf_last[si2] = softmax_ops(s, r, a2, S2, end2 + cfg.sready)
        else:
            sbuf_last[si] = softmax_ops(s, r, a, S, end + cfg.sready)
        return start

    afree = {}
    touched = set()
    vpool = {"bufs": list(VFB), "ctr": 0}

    def group(steps, t, smajor=False):
        base = vpool["bufs"][vpool["ctr"] % len(vpool["bufs"])]
        vpool["ctr"] += 1
        tt = t & 7
        start = len(M)
        frs = []
        for i, s in enumerate(steps):
            u = U[f"V{2 * s + (t >> 3)}"]
            for kc in range(2):
                F = Reg("a", base + 8 * i + 4 * kc, 4)
                frs.append((s, kc, F))
                for k in range(2):
                    a = 2 * kc + k
                    dsq.append(dict(kind="V", dst=F[2 * k:2 * k + 2], h=tt & 1, u=u, off=a * 4096 + (tt >> 1) * 256,
                                    cons=start + 2 * i + kc, free=afree.get(F.lo, -1)))
        seq = [(r, x) for r in act(steps[0]) for x in frs]
        if smajor:
            seq = [(r, x) for s0 in steps for r in act(s0) for x in frs if x[0] == s0]
            for d in dsq[-4 * len(steps):]:
                i = d["cons"] - start
                d["cons"] = start + 6 * (i >> 1) + (i & 1)
        for (r, (s, kc, F)) in seq:
            if True:
                C = O[r][t] if (r, t) in touched else None
                touched.add((r, t))
                P_ = Preg(s, r)[kc]
                M.append(mfma(O[r][t], F, P_, C))
                guards.append((len(M) - 3, Pcvt[(s, r, 2 * kc)] + Pcvt[(s, r, 2 * kc + 1)]))
                preg_free[P_.lo] = len(M) - 1
                afree[F.lo] = len(M) - 1
        return len(M) - 1

    def barrier(name, gap, hoist):
        o = Op("s_barrier", "barrier")
        o.meta.update(need_vm=[], need_lgkm=[], name=name, hoist_wait=hoist, units=[])
        o.gap = gap
        bars.append(o)
        return o

    def prek_reads(lo, hi):
        ops = []
        for a in range(lo, hi):
            u = U[f"K{a >> 1}"]
            for c in range(8):
                off = u.slot * SLOT + (a & 1) * 8192 + (c >> 2) * 4096 + (c & 3) * 256
                o = Op(f"ds_read_b128 {preK[a][c]}, {vKR[0]} offset:{off}", "ds", vKR[0].names, preK[a][c].names)
                u.reads.append(o)
                ops.append(o)
        return ops

    blk = []
    ba = barrier("a", -1, False)
    ba.meta["units"] = [U["K0"], U["K1"], U["Q0"]]
    U["K0"].vis = U["K1"].vis = U["Q0"].vis = ba
    blk.append(ba)
    blk += stamp("K0Q0", True)
    pre_, q0 = q_reads(U["Q0"])
    prek = prek_reads(0, 4)
    blk += pre_ + q0 + prek
    fixed[-1] = blk
    sub_order = (0, 1, 2, 3, 6, 7, 4, 5)
    allreads = q0 + prek
    kprev = {}
    for r in range(3):
        if r:
            u = U[f"Q{r}"]
            pre_, qr = q_reads(u)
            for o in qr:
                o.meta["need_vm_unit"] = (u, o.meta["qhalf"])
            early = U["K4"] if r == 1 else U["V0"]
            early.slot = 3 + r
            blk = flat_dmas(early.make_dmas()) + pre_ + qr
            allreads += qr
            bb = barrier("c" if r == 1 else 0, len(M) - 1, False)
            bb.meta["need_lgkm"] = list(allreads)
            blk.append(bb)
            blk += stamp(f"Q{r}", True)
            fixed[len(M) - 1] = blk
        for i, a in enumerate(sub_order):
            if r == 0 and i == 4:
                b2 = barrier("a2", len(M) - 1, False)
                b2.meta["units"] = [U["K2"], U["K3"]]
                b2.meta["need_lgkm"] = list(q0)
                U["K2"].vis = U["K3"].vis = b2
                k2 = prek_reads(6, 8) + prek_reads(4, 6)
                allreads += k2
                fixed[len(M) - 1] = [b2] + k2
                noflush.add(len(M) - 1)
            st = chain(a >> 2, r, a & 3, preK[a])
            for c in range(8):
                if preK[a][c].f == "a":
                    afree[preK[a][c].lo] = st + c
        for o in vq:
            o.meta.setdefault("pre", len(M) - 1)
    b0 = bars[-1]
    b0.meta["units"] = [U["K4"]]
    U["K4"].vis = b0
    spool["bufs"] = list(vS)
    spool["ctr"] = 0

    start_int = {}
    grp_end = {}
    pub = []

    def kchains(s, a, kb):
        u = U[f"K{2 * s + (a >> 1)}"]
        state = {"first": True}

        def emit(r):
            st = len(M)
            if state["first"]:
                for c in range(8):
                    dsq.append(dict(kind="K", dst=KF[kb][c], u=u, off=(a & 1) * 8192 + (c >> 2) * 4096 + (c & 3) * 256,
                                    cons=st + c, free=afree.get(KF[kb][c].lo, b0.gap)))
                state["first"] = False
            chain(s, r, a, KF[kb])
            for c in range(8):
                afree[KF[kb][c].lo] = st + c
        return emit

    NP = 8 - cfg.defer
    for p in range(NP):
        for q in range(4):
            n = 2 * p + (q >> 1)
            if q % 2 == 0:
                start_int[n] = len(M)
                pub.append((n, [U[f"V{n}"], U[f"K{n + 4}"]]) if n else ("v0", [U["V0"]]))
            order = "cccGGGG" if (p == 0 and q == 0) else "cGcGcGG"
            em = kchains(p + 2, q, (q & 1) if cfg.kdouble else 0)
            ci = gi = 0
            for ch in order:
                if ch == "c":
                    em(ci)
                    ci += 1
                else:
                    grp_end[(p, 4 * q + gi)] = group((p,), 4 * q + gi)
                    gi += 1
    n = 2 * NP
    if cfg.defer == 3:
        for q in range(4):
            if q % 2 == 0:
                start_int[n] = len(M)
                pub.append((n, [U[f"K{14 + (q >> 1)}"]]))
                n += 1
            em = kchains(7, q, (q + 1) & 1)
            for r in range(3):
                em(r)
    qk_end = len(M) - 1
    steps = tuple(range(NP, 8))
    sz = 8 * len(steps)
    vpool["bufs"] = [192, 192 + sz, 160, 96] if sz == 24 else [192, 208, 224, 240, 160, 176]
    vpool["ctr"] = 0
    for b in range(64, 160, 4):
        afree[b] = qk_end
    fin0 = n
    for t in range(16):
        if t % 8 == 0:
            start_int[n] = len(M)
            pub.append((n, [U[f"V{2 * s + (t >> 3)}"] for s in steps]))
            n += 1
        grp_end[(7, t)] = group(steps, t, t == 0)
    NM = len(M)

    dsq.sort(key=lambda d: d["cons"])
    def spacing(c):
        if c >= start_int[fin0]:
            return cfg.spf
        return 2.0

    nxt = float(1 << 30)
    for d in reversed(dsq):
        dl = d["cons"] - cfg.lat
        e = max(d["free"], b0.gap + 1)
        f = min(float(dl) + 0.999, nxt - spacing(d["cons"]))
        if f < e:
            f = min(float(dl), nxt - min(1.0, spacing(d["cons"])))
        if f < e:
            f = float(e)
        d["f"], d["e"], d["dl"] = f, e, dl
        nxt = f
    prev = -10
    late = 0
    cnt = 0
    for d in dsq:
        g = max(int(d["f"]), d["e"], prev)
        if g == prev:
            cnt += 1
            if cnt >= 2 or (g + 1 <= d["dl"] and spacing(d["cons"]) >= 1):
                g += 1
                cnt = 0
        else:
            cnt = 0
        g = min(g, d["cons"] - 2)
        assert g >= d["e"] and g >= prev, (d, g, prev)
        late += g > d["dl"]
        d["gap"] = g
        prev = g

    prevg = b0.gap
    for (name, us) in pub:
        first = min(d["gap"] for d in dsq if d["u"] in us)
        g = max(first - 1, prevg + 1)
        assert g < first, (name, g, first)
        b = barrier(name, g, True)
        b.meta["units"] = us
        for u in us:
            u.vis = b
        prevg = g
    lastcons = {}
    for d in dsq:
        lastcons[d["u"].name] = max(lastcons.get(d["u"].name, -1), d["cons"])

    def release(u):
        if u.name in ("K0", "K1", "K2", "K3", "Q1"):
            return [b.meta["name"] for b in bars].index("c")
        if u.name == "Q2":
            return bars.index(b0)
        c = [i for i, b in enumerate(bars) if b.gap >= lastcons[u.name]]
        return min(c) if c else len(bars)

    stg_bi = bars.index(next(b for b in bars if b.meta["name"] == fin0))
    free_at = {s: -1 for s in range(10)}
    for name in ("K0", "K1", "K2", "K3", "K4", "V0", "Q1", "Q2"):
        u = U[name]
        for k in range(u.nslots):
            free_at[u.slot + k] = release(u)
    order = []
    for (name, us) in pub:
        order += [u.name for u in sorted(us, key=lambda u: u.kind) if not u.dmas]
    dmaq = []
    for name in order:
        u = U[name]
        cand = list(free_at)
        if release(u) > stg_bi:
            cand = [s for s in cand if s >= cfg.stg_n]
        slot = min(cand, key=lambda s: (free_at[s], s))
        w = free_at[slot]
        u.slot = slot
        free_at[slot] = release(u)
        e = max(bars[w].gap + 2 if w >= 0 else 1, b0.gap + 2 + cfg.dma_lead)
        ops = u.make_dmas()
        for d in ops:
            d.earliest = e
            dmaq.append(d)
    gap_ds = {}
    for d in dsq:
        gap_ds.setdefault(d["gap"], []).append(d)
    gap_dma = {}
    last = -10
    for d in dmaq:
        u = d.meta["unit"]
        sp = cfg.dma_sp
        if last < start_int[1]:
            sp = cfg.dma_sp_fast
        g = max(d.earliest, last + sp)
        g0 = g
        while g in fixed or g in gap_ds:
            g += 1
        if u.vis is not None and g >= u.vis.gap - 1:
            raise SystemExit(f"DMA of {u.name} too late: {g} vs {u.vis.gap}")
        gap_dma[g] = d
        d.gap = g
        last = g
    last_dma = dmaq[-1]
    flight = {u.name: u.vis.gap - u.dmas[-1].gap for u in U.values() if u.vis is not None and u.dmas[-1].gap is not None}
    for b in bars:
        b.meta["need_vm"] = [d for u in b.meta["units"] for d in u.dmas]

    reads = []
    for d in dsq:
        u = d["u"]
        if d["kind"] == "Q":
            c = d["c"]
            off = u.slot * SLOT - 65536 + (c >> 2) * 4096 + (c & 3) * 256
            o = Op(f"ds_read_b128 {d['dst']}, {vQR} offset:{off}", "ds", vQR.names, d["dst"].names)
            o.meta["need_vm"] = u.dmas[(c >> 2) * 4:(c >> 2) * 4 + 4]
            o.meta["hoist_wait"] = True
        else:
            w, off = divmod(u.slot * SLOT + d["off"], 65536)
            if d["kind"] == "K":
                o = Op(f"ds_read_b128 {d['dst']}, {vKR[w]} offset:{off}", "ds", vKR[w].names, d["dst"].names)
            else:
                a = vVR[d["h"]][w]
                o = Op(f"ds_read_b64_tr_b16 {d['dst']}, {a} offset:{off}", "ds", a.names, d["dst"].names)
        o.gap = d["gap"]
        u.reads.append(o)
        d["op"] = o
        reads.append(o)
    for blk in fixed.values():
        for o in blk:
            if "need_vm_unit" in o.meta:
                u, h = o.meta["need_vm_unit"]
                o.meta["need_vm"] = u.dmas[4 * h:4 * h + 4]

    vcc_last = [None]

    def finish_rows(rows, last):
        fin = {}
        for r in rows:
            ops = xlane("v_add_f32", vL[r], vXT[r])
            prev = last[r]
            for o in ops:
                o.deps.append((prev, 1 if "permlane" in o.text else 0))
                prev = o
            rc = Op(f"v_rcp_f32 {vRL[r]}, {vL[r]}", "trans", vL[r].names, vRL[r].names)
            rc.deps.append((prev, 0))
            cm = valu(f"v_cmp_lt_f32 vcc, s{sThr}, {vL[r]}", vL[r].names + sn(sThr), ["svcc"])
            cm.deps.append((prev, 0))
            fl = salu(f"s_or_b64 s[{sFlag}:{sFlag + 1}], s[{sFlag}:{sFlag + 1}], vcc", ["svcc"] + sn(sFlag, 2), sn(sFlag, 2) + ["scc"])
            fl.deps.append((cm, 2))
            fin[r] = (ops, rc, cm, fl)
        out = []
        for k in range(6):
            for r in rows:
                out.append(fin[r][0][k])
        for r in rows:
            if vcc_last[0] is not None:
                fin[r][2].deps.append((vcc_last[0], 0))
            out += [fin[r][1], fin[r][2], fin[r][3]]
            vcc_last[0] = fin[r][3]
        return out, {r: fin[r][1] for r in rows}

    rbq = [Reg("a", 64 + 4 * i, 4) for i in range(8)]
    tmps = [Reg("v", vS[2 * i].lo, 8) for i in range(3)]
    tmp_last = {tb.lo: sbuf_last[tb.lo] + sbuf_last[tb.lo + 4] for tb in tmps}
    tmp_min = {tb.lo: -1 for tb in tmps}
    ctr = {"t": 0, "r": 0}
    rb_last = {}
    stg_last_read = {}
    wr = {}
    stg_after = bars[stg_bi].gap + 1
    sta = {}
    for r in range(3):
        for k in range(2):
            d = vST[r][k]
            o = valu(f"v_add_u32 {d}, {r * 8192 + k * 4096}, {vST0}", vST0.names, d.names)
            o.deps.append((last_dma, 1))
            sta[(r, k)] = o

    def piece(r, s, T, rcp, half, packed):
        rdy = grp_end[(s, 2 * T + 1)] + cfg.sready
        X, Y = O[r][2 * T], O[r][2 * T + 1]
        src = [X[i] for i in range(4)] + [Y[i] for i in range(4)]
        D = X
        ops = []
        rd = None
        if X.f == "a":
            tb = tmps[ctr["t"] % len(tmps)]
            ctr["t"] += 1
            rd = []
            for i in range(8):
                o = valu(f"v_accvgpr_read_b32 {tb[i]}, {src[i]}", src[i].names, tb[i].names)
                o.earliest = max(rdy, tmp_min[tb.lo])
                o.deps += [(x, 0) for x in tmp_last[tb.lo]]
                rd.append(o)
            ops += rd
            src = [tb[i] for i in range(8)]
            D = tb[0:4]
        mu = []
        if packed:
            for k in range(4):
                pr = Reg("v", src[2 * k].lo, 2)
                rl2 = Reg("v", vRL[r].lo, 2)
                o = valu(f"v_pk_mul_f32 {pr}, {pr}, {rl2} op_sel_hi:[1,0]", names(pr, vRL[r]), pr.names)
                o.earliest = NM
                o.deps.append((rcp, 1))
                if rd:
                    o.deps += [(rd[2 * k], 0), (rd[2 * k + 1], 0)]
                mu += [o, o]
            ops += mu[::2]
        else:
            for i in range(8):
                o = valu(f"v_mul_f32 {src[i]}, {src[i]}, {vRL[r]}", names(src[i], vRL[r]), src[i].names)
                o.earliest = rdy
                o.deps.append((rcp, 1))
                if rd:
                    o.deps.append((rd[i], 0))
                mu.append(o)
            ops += mu
        cv = []
        for k in range(4):
            o = valu(f"v_cvt_pk_bf16_f32 {D[k]}, {src[2 * k]}, {src[2 * k + 1]}", names(src[2 * k], src[2 * k + 1]), D[k].names)
            o.deps += [(mu[2 * k], 0), (mu[2 * k + 1], 0)]
            if k:
                o.deps.append((cv[k - 1], 0))
            cv.append(o)
        w = []
        for xy in range(2):
            ad = vSW[2 * (T & 1) + xy]
            x = Op(f"ds_write_b64 {ad}, {D[2 * xy:2 * xy + 2]} offset:{2048 * half}", "ds",
                   D[2 * xy:2 * xy + 2].names + ad.names, [])
            x.deps += [(cv[2 * xy], 0), (cv[2 * xy + 1], 0)]
            x.earliest = stg_after
            x.deps += [(z, 0) for z in stg_last_read.get(half, [])]
            w.append(x)
        if rd:
            tmp_last[tb.lo] = w + [cv[3]]
        wr[(r, T)] = w
        ops += cv + w
        if T % 2 == 1:
            H = T >> 1
            rds, sts = [], []
            for k in range(2):
                qd = rbq[ctr["r"] % len(rbq)]
                ctr["r"] += 1
                o = Op(f"ds_read_b128 {qd}, {vSR} offset:{1024 * k + 2048 * half}", "ds", vSR.names, qd.names)
                o.deps += [(x, 0) for tt in (T - 1, T) for x in wr[(r, tt)]]
                o.deps += [(x, 0) for x in rb_last.get(qd.lo, [])]
                o.earliest = qk_end
                stt = f"buffer_store_dwordx4 {qd}, {vST[r][k]}, s[{sO}:{sO + 3}], 0 offen offset:{128 * H}"
                if cfg.st:
                    stt += " " + cfg.st
                so = Op(stt, "vstore", qd.names + vST[r][k].names + sn(sO, 4), [])
                so.meta["data"] = frozenset(qd.names)
                so.meta["hoist_wait"] = True
                so.deps += [(o, cfg.lat), (sta[(r, k)], 0)]
                rb_last[qd.lo] = [so]
                rds.append(o)
                sts.append(so)
            stg_last_read[half] = rds
            ops += rds + sts
        return ops

    fo, rcp = finish_rows((0, 1, 2), last_add)
    vq += fo + list(sta.values())
    ep = []
    nb = 2 * cfg.stg_n
    for T in range(8):
        for r in range(3):
            ep += piece(r, 7, T, rcp[r], (3 * (T >> 1) + r) % nb, cfg.pk and T >= cfg.pkfrom)

    gaps = {g: {"s": [], "v": []} for g in range(-1, NM + 1)}
    for b in bars:
        if b.meta["hoist_wait"]:
            gaps[b.gap]["s"].append(b)
    for g, d in gap_dma.items():
        pre = d.pre
        d.pre = []
        gaps[g - 1]["s"].append(pre[-1])
        if len(pre) > 1:
            gaps[max(g - 2, 0)]["s"].insert(0, pre[0])

    def ready(o, g, strict=False):
        if o.earliest > g:
            return False
        for (d, k) in o.deps:
            if d.gap is None or d.gap + k > g or (strict and d.gap >= g):
                return False
        return True

    queue = list(vq)
    equeue = list(ep)
    guard_at = {}
    for (g, ops) in guards:
        guard_at.setdefault(g, []).extend(ops)
    overflow = 0

    def place(o, g, where="v"):
        o.gap = g
        gaps[g][where].append(o)
        (queue if o in queue else equeue).remove(o)

    def force(o, g):
        nonlocal overflow
        if o.gap is not None:
            return
        for (d, k) in o.deps:
            if d.gap is None:
                force(d, g)
        assert o.earliest <= g, (o, g)
        overflow += 1
        place(o, g)

    W = 120

    def pick(kinds, g, strict=False):
        for qq in (queue, equeue):
            for o in qq[:W]:
                if o.kind in kinds and ready(o, g, strict):
                    return o
        return None

    since = {}
    xacc = 0.0
    for g in range(0, NM):
        cap = 2
        mem = False
        nds = len(gap_ds.get(g, []))
        if nds:
            for d in gap_ds[g]:
                gaps[g]["v"].append(d["op"])
            cap = 1 if nds == 1 else 0
            mem = True
        if g in gap_dma:
            gaps[g]["v"].append(gap_dma[g])
            cap = 0
            mem = True
        extra = 0
        if g >= start_int[fin0] - cfg.xlead:
            xacc += cfg.xf
            extra = int(xacc)
            xacc -= extra
        o = pick(("salu",), g)
        if o is not None:
            place(o, g, "s")
        ex = pick(("trans",), g)
        if ex is not None:
            since.setdefault(id(ex), g)
        nmem = 0
        if not (mem or ex):
            while nmem < 1:
                mo = pick(("vstore", "ds"), g, True)
                if mo is None:
                    break
                place(mo, g)
                nmem += 1
                cap = min(cap, 1) if mo.kind == "ds" else 0
                mem = True
        if ex is not None and (not mem or (g not in gap_dma and g - since[id(ex)] >= cfg.exp_age)):
            place(ex, g)
            cap = 0
        cap += extra
        while cap > 0:
            o = pick(("valu",), g)
            if o is None:
                break
            place(o, g)
            cap -= 1
        for o in guard_at.get(g, []):
            force(o, g)
        if g in fixed and cfg.preflush and g not in noflush:
            for o in list(queue):
                if o.meta.get("pre") is not None and o.meta["pre"] <= g:
                    place(o, g)
    tail = []
    clock = NM
    k = 0
    rest = queue + equeue
    while rest:
        o = next((o for o in rest if o.kind == "vstore" and ready(o, clock, True)), None)
        if o is None:
            o = next((o for o in rest if o.kind == "ds" and ready(o, clock)), None)
        if o is None:
            o = next((o for o in rest if o.kind not in ("ds", "vstore") and ready(o, clock)), None)
        if o is None:
            clock += 1
            continue
        o.gap = clock
        rest.remove(o)
        tail.append(o)
        k += 1
        if k % 3 == 0:
            clock += 1

    prog = list(pro)
    for o in fixed[-1]:
        o.gap = -1
    prog += fixed[-1]
    inv_start = {v: k for k, v in start_int.items()}
    pos_int = {}
    for g in range(NM):
        M[g].gap = g
        prog.append(M[g])
        if g + 1 in inv_start and (inv_start[g + 1] % cfg.stamp_every == 0 or inv_start[g + 1] < 3 or inv_start[g + 1] >= 2 * NP):
            prog += stamp(f"i{inv_start[g + 1]}")
            if inv_start[g + 1] in (0, fin0):
                prog += stamp(f"t{inv_start[g + 1]}", True)
        prog += gaps[g]["s"]
        prog += gaps[g]["v"]
        if g in fixed:
            for o in fixed[g]:
                o.gap = g
            prog += fixed[g]
    prog += stamp("mfmaend")
    prog += stamp("mfmaendR", True)
    prog += tail
    prog += stamp("stissued", True)
    if cfg.stamps:
        prog.append(Op("s_waitcnt vmcnt(0)", "wait", meta={"fixed": True}))
        prog += stamp("drained", True)
    prog += stamp.finish()
    prog.append(Op(f"s_cmp_lg_u64 s[{sFlag}:{sFlag + 1}], 0", "raw"))
    prog.append(Op("s_cbranch_scc1 L_fallback", "raw"))

    for o in prog:
        if o.kind == "mfma":
            o.meta["cover"] = [x for x in reads if x.gap <= o.gap - 1 - cfg.age and x.gap > o.gap - 40]
    prog = insert_waits_cover(prog)
    prog, pads = fix_hazards(prog, verbose=cfg.verbose)
    verify_lds(prog, U, None, cfg)
    idx = {id(o): i for i, o in enumerate(prog)}
    seg = lambda a, b: estimate_cycles(prog[idx[id(M[a])]:idx[id(M[b])] + 1])
    ints = sorted(start_int.items())
    est = {n: seg(g, (ints[i + 1][1] if i + 1 < len(ints) else NM) - 1) for i, (n, g) in enumerate(ints)}
    info = dict(NM=NM, late=late, overflow=overflow, pads=pads, est_main=seg(start_int[0], NM - 1),
                ideal=16 * (NM - start_int[0]), est_tail=estimate_cycles(prog[idx[id(M[-1])] + 1:]), n=len(prog), tail=len(tail),
                waits=sum(1 for o in prog if o.kind == "wait"), est=list(est.values()))
    if cfg.verbose:
        print("flight", flight)
        print("slots", {u.name: u.slot for u in U.values()})
        print("bars", [(b.meta["name"], b.gap) for b in bars])
        print("ints", start_int, "last dma", last_dma.gap, "stores", [o.gap for o in ep if o.kind == "vstore"])
    cfg.stamp_names = stamp.list
    return prog, info


def insert_waits_cover(prog):
    pend = set()
    for o in prog:
        if o.kind == "ds":
            pend |= set(o.writes)
        if o.kind == "mfma" and (o.reads & pend):
            cov = o.meta.get("cover", [])
            o.meta["need_lgkm"] = cov
            for x in cov:
                pend -= set(x.writes)
            pend -= set(o.reads)
    return insert_waits(prog)


def verify_lds(prog, U, stg_bar, cfg):
    pos = {id(o): i for i, o in enumerate(prog)}
    bars = [o for o in prog if o.kind == "barrier"]
    occ = {}
    for u in U.values():
        for k in range(u.nslots):
            occ.setdefault(u.slot + k, []).append(u)
        if u.kind != "Q":
            for rd in u.reads:
                b = u.vis
                assert pos[id(b)] < pos[id(rd)], ("read before barrier", u.name)
                for d in u.dmas:
                    assert d.meta["vm_idx"] < b.meta["vm_done_at"], ("dma not waited", u.name)
    for s, us in occ.items():
        us.sort(key=lambda u: pos[id(u.dmas[0])])
        for a, b in zip(us, us[1:]):
            first = min(pos[id(d)] for d in b.dmas)
            ok = any(pos[id(br)] < first and all(rd.meta["lg_idx"] < br.meta["lg_done_at"] for rd in a.reads) for br in bars)
            assert ok, ("slot WAR", s, a.name, b.name)
    writes = [o for o in prog if o.kind == "ds" and o.text.startswith("ds_write")]
    firstw = min(pos[id(o)] for o in writes)
    lo, hi = cfg.stg_base, cfg.stg_base + 4 * cfg.stg_wave
    for s, us in occ.items():
        if s * SLOT < hi and (s + 1) * SLOT > lo:
            for u in us:
                ok = any(pos[id(br)] < firstw and all(rd.meta["lg_idx"] < br.meta["lg_done_at"] for rd in u.reads) for br in bars)
                assert ok, ("staging WAR", s, u.name)


def fallback(cfg):
    L = []
    A = L.append
    t = Reg("v", 104, 12)
    KFf = KF[0]
    VFf = [Reg("a", 192, 4), Reg("a", 200, 4)]
    A("L_fallback:")
    A("s_waitcnt vmcnt(0) lgkmcnt(0)")
    A("s_barrier")
    A(f"s_mul_i32 s{sT3}, s{sW}, 40960")
    A(f"v_and_b32 {t[0]}, 63, v0")
    A(f"v_bfe_u32 {t[2]}, {t[0]}, 2, 2")
    A(f"v_lshlrev_b32 {t[2]}, 9, {t[2]}")
    A(f"v_lshrrev_b32 {t[5]}, 4, {t[0]}")
    A(f"v_lshl_add_u32 {t[2]}, {t[5]}, 6, {t[2]}")
    A(f"v_and_b32 {t[3]}, 3, {t[0]}")
    fk = [Reg("v", 80 + i, 1) for i in range(4)]
    fv = [Reg("v", 84 + i, 1) for i in range(4)]
    for rg in range(4):
        A(f"v_xor_b32 {t[4]}, {FR[rg]}, {t[3]}")
        A(f"v_lshl_add_u32 {fk[rg]}, {t[4]}, 4, {t[2]}")
        A(f"v_add_u32 {fk[rg]}, {rg * 2048}, {fk[rg]}")
        A(f"v_xor_b32 {t[4]}, {2 * (rg & 1)}, {t[3]}")
        A(f"v_lshl_add_u32 {fv[rg]}, {t[4]}, 4, {t[2]}")
        A(f"v_add_u32 {fv[rg]}, {rg * 2048}, {fv[rg]}")
    rk, rv0, rv1 = Reg("v", 88, 1), Reg("v", 89, 1), Reg("v", 90, 1)
    so = [Reg("v", 91 + r, 1) for r in range(3)]
    tmp8 = Reg("v", 96, 8)
    A(f"v_add_u32 {rk}, s{sT3}, {vKR[0]}")
    A(f"v_add_u32 {rv0}, s{sT3}, {vVR[0][0]}")
    A(f"v_add_u32 {rv1}, s{sT3}, {vVR[1][0]}")
    A(f"v_and_b32 {t[6]}, 15, {t[0]}")
    A(f"s_mul_i32 s{sT1}, s{sW}, 48")
    A(f"v_add_u32 {t[6]}, s{sT1}, {t[6]}")
    A(f"v_lshlrev_b32 {t[6]}, 9, {t[6]}")
    A(f"v_and_b32 {t[7]}, 1, {t[5]}")
    A(f"v_lshl_add_u32 {t[6]}, {t[7]}, 5, {t[6]}")
    A(f"v_lshrrev_b32 {t[7]}, 1, {t[5]}")
    A(f"v_lshl_add_u32 {so[0]}, {t[7]}, 4, {t[6]}")
    A(f"v_add_u32 {so[1]}, 8192, {so[0]}")
    A(f"v_add_u32 {so[2]}, 16384, {so[0]}")
    A(f"s_mul_i32 s{sT2}, s{sW}, {48 * 512}")
    for r in range(3):
        for rg in range(4):
            A(f"v_add_u32 {t[8]}, s{sT2}, {fk[rg]}")
            A(f"v_add_u32 {t[8]}, {r * 8192}, {t[8]}")
            for half in range(2):
                A(f"s_add_u32 m0, s{sT3}, {half * 4096 + rg * 1024 - half * 256}")
                A("s_nop 0")
                A(f"buffer_load_dwordx4 {t[8]}, s[{sQ}:{sQ + 3}], 0 offen offset:{half * 256} lds")
        A("s_waitcnt vmcnt(0)")
        for c in range(8):
            A(f"ds_read_b128 {Q[r][c]}, {rk} offset:{(c >> 2) * 4096 + (c & 3) * 256}")
        A("s_waitcnt lgkmcnt(0)")
    Pf = [vP[0][r][0] for r in range(3)]

    def load_k():
        for a in range(2):
            A(f"s_add_u32 s{sT1}, s{sT0}, {a * 8192}")
            for half in range(2):
                for rg in range(4):
                    A(f"s_add_u32 m0, s{sT3}, {a * 8192 + half * 4096 + rg * 1024 - half * 256}")
                    A("s_nop 0")
                    A(f"buffer_load_dwordx4 {fk[rg]}, s[{sK}:{sK + 3}], s{sT1} offen offset:{half * 256} lds")

    def load_v():
        for dh in range(2):
            for a in range(2):
                A(f"s_add_u32 s{sT1}, s{sT0}, {a * 8192 + dh * 256}")
                for rg in range(4):
                    A(f"s_add_u32 m0, s{sT3}, {16384 + dh * 8192 + a * 4096 + rg * 1024}")
                    A("s_nop 0")
                    A(f"buffer_load_dwordx4 {fv[rg]}, s[{sV}:{sV + 3}], s{sT1} offen lds")

    def qk(a):
        for c in range(8):
            A(f"ds_read_b128 {KFf[c]}, {rk} offset:{a * 8192 + (c >> 2) * 4096 + (c & 3) * 256}")
        A("s_waitcnt lgkmcnt(0)")
        for r in range(3):
            for c in range(8):
                A(f"v_mfma_f32_16x16x32_bf16 {vS[r]}, {KFf[c]}, {Q[r][c]}, {vS[r] if c else 0}")
        A("s_nop 15")

    def xl(op, x, tmp):
        for o in xlane(op, x, tmp):
            A("s_nop 1")
            A(o.text)

    for r in range(3):
        A(f"v_mov_b32 {vNM[r]}, 0xff800000")
    A(f"s_mov_b32 s{sT0}, 0")
    A("L_fb1:")
    load_k()
    A("s_waitcnt vmcnt(0)")
    for a in range(2):
        qk(a)
        for r in range(3):
            A(f"v_max3_f32 {vNM[r]}, {vNM[r]}, {vS[r][0]}, {vS[r][1]}")
            A(f"v_max3_f32 {vNM[r]}, {vNM[r]}, {vS[r][2]}, {vS[r][3]}")
    A(f"s_add_u32 s{sT0}, s{sT0}, 16384")
    A(f"s_cmp_lt_u32 s{sT0}, 262144")
    A("s_cbranch_scc1 L_fb1")
    for r in range(3):
        xl("v_max_f32", vNM[r], t[4])
        A(f"v_mul_f32 {vNM[r]}, {f2u(-C_SCALE):#x}, {vNM[r]}")
        A(f"v_mov_b32 {vL[r]}, 0")
    for r in range(3):
        for tt in range(16):
            for i in range(4):
                x = O[r][tt][i]
                A(f"v_mov_b32 {x}, 0" if x.f == "v" else f"v_accvgpr_write_b32 {x}, 0")
    A(f"s_mov_b32 s{sT0}, 0")
    A("L_fb2:")
    load_k()
    load_v()
    A("s_waitcnt vmcnt(0)")
    for a in range(2):
        qk(a)
        for r in range(3):
            S = vS[r]
            for i in range(4):
                A(f"v_fma_f32 {S[i]}, {S[i]}, s{sC}, {vNM[r]}")
            for i in range(4):
                A(f"v_exp_f32 {S[i]}, {S[i]}")
            A("s_nop 1")
            for i in range(4):
                A(f"v_add_f32 {vL[r]}, {vL[r]}, {S[i]}")
            for k in range(2):
                A(f"v_cvt_pk_bf16_f32 {Pf[r][2 * a + k]}, {S[2 * k]}, {S[2 * k + 1]}")
    A("s_nop 3")
    for tt in range(16):
        for s in range(2):
            base = rv0 if (tt & 1) == 0 else rv1
            off = 16384 + (tt >> 3) * 8192 + s * 4096 + ((tt & 7) >> 1) * 256
            A(f"ds_read_b64_tr_b16 {VFf[tt & 1][2 * s:2 * s + 2]}, {base} offset:{off}")
        A("s_waitcnt lgkmcnt(0)")
        for r in range(3):
            A(f"v_mfma_f32_16x16x32_bf16 {O[r][tt]}, {VFf[tt & 1]}, {Pf[r]}, {O[r][tt]}")
    A("s_nop 15")
    A(f"s_add_u32 s{sT0}, s{sT0}, 16384")
    A(f"s_cmp_lt_u32 s{sT0}, 262144")
    A("s_cbranch_scc1 L_fb2")
    for r in range(3):
        xl("v_add_f32", vL[r], t[4])
        A(f"v_rcp_f32 {vRL[r]}, {vL[r]}")
    A("s_nop 3")
    for T in range(8):
        for r in range(3):
            X, Y = O[r][2 * T], O[r][2 * T + 1]
            src = [X[i] for i in range(4)] + [Y[i] for i in range(4)]
            if X.f == "a":
                for i in range(8):
                    A(f"v_accvgpr_read_b32 {tmp8[i]}, {src[i]}")
                src = [tmp8[i] for i in range(8)]
            for i in range(8):
                A(f"v_mul_f32 {src[i]}, {src[i]}, {vRL[r]}")
            D = vS[(3 * T + r) % NSB]
            for k in range(4):
                A(f"v_cvt_pk_bf16_f32 {D[k]}, {src[2 * k]}, {src[2 * k + 1]}")
            A("s_nop 1")
            A(f"v_permlane16_swap_b32 {D[0]}, {D[2]}")
            A(f"v_permlane16_swap_b32 {D[1]}, {D[3]}")
            A(f"buffer_store_dwordx4 {D}, {so[r]}, s[{sO}:{sO + 3}], 0 offen offset:{64 * T}")
    A("s_waitcnt vmcnt(0)")
    return L


HEADER = """; GQA attention forward, B=8 Hq=16 Hkv=8 Sq=368 Sk=512 D=256, bf16 (emitted by my own generator script)
; and a wave with a sum above 2^64 recomputes its rows with the true row maximum (L_fallback).
; @launch grid=(256,1,1) block=(256,1,1) lds=163840
.amdgcn_target "amdgcn-amd-amdhsa--gfx950"
.text
.globl {k}
.p2align 8
.type {k},@function
{k}:
"""

FOOTER = """L_end:
    s_endpgm
.section .rodata,"a"
.p2align 6
.amdhsa_kernel {k}
  .amdhsa_next_free_vgpr 512
  .amdhsa_next_free_sgpr 102
  .amdhsa_accum_offset 256
  .amdhsa_group_segment_fixed_size 0
  .amdhsa_kernarg_size 48
  .amdhsa_user_sgpr_count 2
  .amdhsa_user_sgpr_kernarg_segment_ptr 1
  .amdhsa_system_sgpr_workgroup_id_x 1
.end_amdhsa_kernel
"""


def render(cfg, prog):
    s = HEADER.format(k=KNAME)
    if cfg.stamps and cfg.spin == -1:
        s = "; stamps: " + " ".join(n + ("*" if r else "") for n, r in cfg.stamp_names) + "\n" + s
    for o in prog:
        s += (o.text if o.kind == "label" else "    " + o.text) + "\n"
    s += "    s_endpgm\nL_mainend:\n"
    for l in fallback(cfg):
        s += (l if l.endswith(":") else "    " + l) + "\n"
    s += FOOTER.format(k=KNAME)
    return s


def addresses(text, n):
    import subprocess, re, tempfile, os
    d = tempfile.mkdtemp()
    open(d + "/x.s", "w").write(text)
    subprocess.run(["clang", "-x", "assembler", "-target", "amdgcn-amd-amdhsa", "-mcpu=gfx950", "-c",
                    d + "/x.s", "-o", d + "/x.o"], check=True)
    out = subprocess.run(["llvm-objdump", "-d", "--mcpu=gfx950", d + "/x.o"], capture_output=True, text=True).stdout
    return [int(m.group(1), 16) for m in re.finditer(r"// ([0-9A-F]+):", out)][:n]


def add_walk(cfg, prog):
    iw = next(i for i, o in enumerate(prog) if o.text == "WALK")
    head, body = prog[:iw], prog[iw + 1:]
    lab = lambda t: Op(t, "label")
    raw = lambda t: Op(t, "raw")
    stubs = []
    for it in range(20):
        b2 = []
        for i, o in enumerate(body):
            if i in stubs:
                k = stubs.index(i)
                b2.append(lab(f"L_pg{k}:"))
                b2.append(raw(f"s_cbranch_execz L_wr{k}"))
            b2.append(o)
        npg = len(stubs)
        walk = [raw("s_mov_b64 exec, 0")]
        for w in range(4):
            if w < npg:
                walk += [raw(f"s_cmp_eq_u32 s{sW}, {w}"), raw(f"s_cbranch_scc1 L_pg{w}")]
        walk.append(raw("s_branch L_wdone"))
        for k in range(npg):
            walk.append(lab(f"L_wr{k}:"))
            walk.append(raw(f"s_branch L_pg{k + 4}" if k + 4 < npg else "s_branch L_wdone"))
        walk += [lab("L_wdone:"), raw("s_mov_b64 exec, -1")]
        full = head + walk + b2
        ins = [o for o in full if o.kind != "label"]
        addr = addresses(render(cfg, full), len(ins))
        amap = {id(o): a + cfg.base_off for o, a in zip(ins, addr)}
        want = []
        prev = amap[id(body[0])] // 4096
        for i, o in enumerate(body):
            if o.kind == "label":
                continue
            pg = amap[id(o)] // 4096
            if pg != prev:
                j = i
                for jj in range(i, min(i + cfg.walk_win, len(body))):
                    if body[jj - 1].kind == "mfma" and amap[id(body[jj - 1])] // 4096 == pg and body[jj].kind not in ("salu", "wait", "barrier"):
                        j = jj
                        break
                want.append(j)
                prev = pg
        if want == stubs:
            return full
        stubs = want
    return full


def emit(cfg):
    prog, info = build(cfg)
    if cfg.walk:
        prog = add_walk(cfg, prog)
    return render(cfg, prog), info


Cfg.walk = True
Cfg.walk_win = 8
Cfg.base_off = 0x1e00
Cfg.spin_name = ""
Cfg.stamp_every = 1
Cfg.pkfrom = 7
Cfg.defer = 3
Cfg.kdouble = False
Cfg.spf = 1.5
Cfg.xf = 0.62
Cfg.xlead = 48
Cfg.dma_lead = 0
Cfg.head = "K0,Q0,K1,pf,K2,K3,Q1,|,Q2"
Cfg.join_order = "cGcGGGc"
Cfg.p7_order = "cGGGG"
Cfg.stg_bar = 14
Cfg.stg_n = 2
Cfg.sp7 = 1.3333
Cfg.sp2 = 1.3333
Cfg.x15 = 3
Cfg.x15_lead = 16
Cfg.x8 = 6
Cfg.x9 = 2
Cfg.xmem = 2
Cfg.exp_age = 3
Cfg.q2_before = "K5"
Cfg.dma_sp_fast = 3
Cfg.tail_extra = 3
Cfg.p7_extra = 0
Cfg.stag2 = ""
Cfg.stag_sh = 6
Cfg.stagger = ""
Cfg.cls_shift = 6
Cfg.cls_mask = 0

if __name__ == "__main__":
    ap = argparse.ArgumentParser()
    ap.add_argument("-o", default="standalone__gqa_softmax__near_ridge.s")
    ap.add_argument("-v", action="store_true")
    ap.add_argument("opts", nargs="*")
    a = ap.parse_args()
    cfg = Cfg()
    cfg.verbose = a.v
    for kv in a.opts:
        k, v = kv.split("=", 1)
        if k == "spin":
            cfg.spin, cfg.spin_name, cfg.stamps = 1, v, True
            continue
        old = getattr(cfg, k)
        if isinstance(old, bool):
            v = v in ("1", "true", "True")
        elif isinstance(old, int):
            v = int(v)
        elif isinstance(old, float):
            v = float(v)
        setattr(cfg, k, v.replace("+", " ") if isinstance(v, str) else v)
    s, info = emit(cfg)
    open(a.o, "w").write(s)
    print(info, len(s))
```

```python
import sys, math, argparse, struct
sys.path.insert(0, __file__.rsplit("/", 1)[0])
from ir import *

KNAME = "standalone__gqa_softmax__near_ridge_kernel"
C_SCALE = math.log2(math.e) / 16.0


def f2u(x):
    return struct.unpack("<I", struct.pack("<f", x))[0]


class Cfg:
    ldq = "nt"
    ldkv = "nt"
    ldkv0 = ""
    st = "sc1"
    lat = 6
    age = 5
    sready = 4
    stamps = False
    dbg = False
    spin = -1
    spinwg = -1
    codepf = True
    force_fallback = False
    dma_sp = 6
    preflush = True
    y = 2
    pk = True
    verbose = False


sQ, sK, sV, sO = 12, 16, 20, 24
sW1K = 28
sC = 29
sKoff = 30
sVoff = 31
sT0, sT1, sT2, sT3 = 32, 33, 34, 35
sW = 36
sThr = 37
sW8K = 38
sCls = 39
sFlag = 40
sDBG = 44
vKR = [Reg("v", 1, 1), Reg("v", 2, 1), Reg("v", 3, 1)]
vVR = [[Reg("v", 4 + 3 * h + w, 1) for w in range(3)] for h in range(2)]
vDK = [Reg("v", 10, 1), Reg("v", 11, 1)]
vDV = [Reg("v", 12 + a, 1) for a in range(4)]
vST = [[Reg("v", 10 + 2 * r + k, 1) for k in range(2)] for r in range(3)]
vL = [Reg("v", 16 + r, 1) for r in range(3)]
vST0 = Reg("v", 19, 1)
vNM = [Reg("v", 20 + 2 * r, 1) for r in range(3)]
vRL = vNM
vSR = Reg("v", 21, 1)
vSW = [Reg("v", 23, 1), Reg("v", 25, 1), Reg("v", 26, 1), Reg("v", 27, 1)]
vXT = [Reg("v", 28 + r, 1) for r in range(3)]
vQR = Reg("v", 31, 1)
NSB = 6
vS = [Reg("v", 32 + 4 * i, 4) for i in range(NSB)]
vP = [[[Reg("v", 56 + 24 * b + 8 * r + 4 * kc, 4) for kc in range(2)] for r in range(3)] for b in range(3)]
vT = Reg("v", 32, 12)
vX = Reg("v", 44, 2)
O = [[Reg("v", 128 + 4 * t, 4) for t in range(16)],
     [Reg("v", 192 + 4 * t, 4) for t in range(16)],
     [Reg("a", 4 * t, 4) for t in range(16)]]
preK = [[Reg("v", 128 + 32 * a + 4 * c, 4) for c in range(8)] for a in range(4)] + \
       [[Reg("a", base + 4 * c, 4) for c in range(8)] for base in (0, 32, 192, 224)]
Q = [[Reg("a", 64 + 32 * r + 4 * c, 4) for c in range(8)] for r in range(3)]
KF = [[Reg("a", 160 + 4 * c, 4) for c in range(8)], [Reg("a", 224 + 4 * c, 4) for c in range(8)]]
VFB = [192 + 8 * b for b in range(4)]

SLOT = 16384
STG = 528
FR = (0, 2, 3, 1)


def sn(i, n=1):
    return R("s", i, n)


def valu(text, reads=(), writes=(), tag=""):
    return Op(text, "valu", reads, writes, tag)


def salu(text, reads=(), writes=()):
    return Op(text, "salu", reads, writes)


def names(*regs):
    out = []
    for r in regs:
        out += r.names if isinstance(r, Reg) else [r]
    return out


def mfma(D, A, B, C=None):
    c = str(C) if C is not None else "0"
    op = Op(f"v_mfma_f32_16x16x32_bf16 {D}, {A}, {B}, {c}", "mfma",
            names(A, B) + (C.names if C is not None else []), D.names)
    op.meta["srcab"] = frozenset(names(A, B))
    op.meta["srcc"] = frozenset(C.names) if C is not None else frozenset()
    return op


def dma(vaddr, srd, soff, imm, pol):
    so = f"s{soff}" if soff is not None else "0"
    t = f"buffer_load_dwordx4 {vaddr}, s[{srd}:{srd + 3}], {so} offen"
    if imm:
        t += f" offset:{imm}"
    if pol:
        t += " " + pol
    t += " lds"
    return Op(t, "dma", vaddr.names + sn(srd, 4) + (sn(soff) if soff is not None else []) + ["m0"], [])


def set_m0(const, base=sW1K):
    return salu(f"s_add_u32 m0, s{base}, {const}", sn(base), ["m0", "scc"])


class Unit:
    def __init__(self, kind, n, cfg):
        self.kind, self.n, self.cfg = kind, n, cfg
        self.slot = None
        self.nslots = 2 if kind == "Q" else 1
        self.dmas = []
        self.reads = []
        self.vis = None
        self.name = f"{kind}{n}"

    def make_dmas(self, vq=None):
        cfg = self.cfg
        ops = []
        base = self.slot * SLOT
        src = self.n % 16
        pol = cfg.ldkv
        if self.kind == "K":
            so = salu(f"s_mov_b32 s{sKoff}, {src * 16384}", [], sn(sKoff))
            for a in range(2):
                for half in range(2):
                    d = dma(vDK[a], sK, sKoff, half * 256, pol)
                    d.pre = [set_m0(base + a * 8192 + half * 4096 - half * 256)]
                    ops.append(d)
            ops[0].pre.insert(0, so)
        elif self.kind == "V":
            j, h = divmod(src, 2)
            so = salu(f"s_mov_b32 s{sVoff}, {j * 32768 + h * 256}", [], sn(sVoff))
            for a in range(4):
                d = dma(vDV[a], sV, sVoff, 0, pol)
                d.pre = [set_m0(base + a * 4096)]
                ops.append(d)
            ops[0].pre.insert(0, so)
        else:
            for half in range(2):
                for rg in range(4):
                    d = dma(vq[rg], sQ, None, half * 256, cfg.ldq)
                    d.pre = [set_m0(base + half * 4096 + rg * 1024 - half * 256, sW8K)]
                    ops.append(d)
        for d in ops:
            d.meta["unit"] = self
        self.dmas = ops
        return ops


def flat_dmas(ops):
    out = []
    for d in ops:
        out += d.pre
        out.append(salu("s_nop 0"))
        out.append(d)
        d.pre = []
    return out


def xlane(op, x, tmp):
    o = []
    o.append(valu(f"v_mov_b32 {tmp}, {x}", x.names, tmp.names))
    o.append(valu(f"v_permlane32_swap_b32 {x}, {tmp}", names(x, tmp), names(x, tmp)))
    o.append(valu(f"{op} {x}, {x}, {tmp}", names(x, tmp), x.names))
    o.append(valu(f"v_mov_b32 {tmp}, {x}", x.names, tmp.names))
    o.append(valu(f"v_permlane16_swap_b32 {x}, {tmp}", names(x, tmp), names(x, tmp)))
    o.append(valu(f"{op} {x}, {x}, {tmp}", names(x, tmp), x.names))
    return o


class Stamps:
    def __init__(self, cfg):
        self.cfg = cfg
        self.list = []

    def __call__(self, name, real=False):
        cfg = self.cfg
        if not cfg.stamps:
            return []
        if cfg.spin != -1:
            if name != cfg.spin_name:
                return []
            return [Op("s_memrealtime s[48:49]", "salu")]
        k = len(self.list)
        assert 48 + 2 * k + 1 <= 101, "too many stamps"
        self.list.append((name, real))
        return [Op(f"{'s_memrealtime' if real else 's_memtime'} s[{48 + 2 * k}:{49 + 2 * k}]", "salu")]

    def finish(self):
        cfg = self.cfg
        o = []
        raw = lambda t: o.append(Op(t, "raw"))
        if not cfg.stamps:
            return o
        raw("s_waitcnt lgkmcnt(0)")
        if cfg.spin != -1:
            if cfg.spinwg >= 0:
                raw(f"s_cmp_lg_u32 s2, {cfg.spinwg}")
                raw("s_cbranch_scc1 L_end")
            o.append(Op("L_spin:", "label"))
            raw("s_memrealtime s[50:51]")
            raw("s_waitcnt lgkmcnt(0)")
            raw("s_sub_u32 s50, s50, s48")
            raw("s_cmp_lt_u32 s50, 5000")
            raw("s_cbranch_scc1 L_spin")
            return o
        raw("v_mov_b32 v40, 0")
        for k in range(len(self.list)):
            raw(f"v_writelane_b32 v40, s{48 + 2 * k}, {k}")
        raw(f"s_load_dwordx2 s[{sDBG}:{sDBG + 1}], s[0:1], 40")
        raw(f"s_mov_b32 s{sDBG + 2}, 0x1000000")
        raw(f"s_mov_b32 s{sDBG + 3}, 0x00020000")
        raw("s_lshl_b32 s48, s2, 8")
        raw("v_add_u32 v41, s48, v0")
        raw("v_lshlrev_b32 v41, 2, v41")
        raw("s_waitcnt lgkmcnt(0)")
        raw(f"buffer_store_dword v40, v41, s[{sDBG}:{sDBG + 3}], 0 offen")
        return o


def prologue(cfg, U, stamp):
    P = []
    A = P.append
    raw = lambda t: A(Op(t, "raw"))
    raw("s_cmp_ge_u32 s2, 256")
    raw("s_cbranch_scc1 L_end")
    raw("s_load_dwordx4 s[4:7], s[0:1], 0")
    raw("s_load_dwordx4 s[8:11], s[0:1], 16")
    P += stamp("start", True)
    t = vT
    lane, wv, common, cpos, f_w = t[0], t[1], t[2], t[3], t[4]
    if cfg.codepf:
        raw("s_getpc_b64 s[42:43]")
        A(Op("L_pfbase:", "label"))
        A(valu(f"v_lshlrev_b32 {t[10]}, 7, v0", ["v0"], t[10].names))
        A(Op(f"global_load_dword {vX[0]}, {t[10]}, s[42:43]", "vload", t[10].names, vX[0].names))
    A(valu(f"v_lshrrev_b32 {wv}, 6, v0", ["v0"], wv.names))
    A(valu(f"v_and_b32 {lane}, 63, v0", ["v0"], lane.names))
    A(valu(f"v_readfirstlane_b32 s{sW}, {wv}", wv.names, sn(sW)))
    A(salu(f"s_and_b32 s{sT0}, s2, 7", [], sn(sT0)))
    A(salu(f"s_lshr_b32 s{sT1}, s2, 5", [], sn(sT1)))
    A(salu(f"s_lshl3_add_u32 s{sT0}, s{sT1}, s{sT0}", [], sn(sT0)))
    A(salu(f"s_bfe_u32 s{sT1}, s2, 0x20003", [], sn(sT1)))
    A(salu(f"s_lshl2_add_u32 s{sT2}, s{sT0}, s{sT1}", [], sn(sT2)))
    A(salu(f"s_mul_i32 s{sT2}, s{sT2}, {184 * 512}", [], sn(sT2)))
    A(salu(f"s_lshl_b32 s{sT0}, s{sT0}, 18", [], sn(sT0)))
    A(valu(f"v_bfe_u32 {t[6]}, {lane}, 2, 2", lane.names, t[6].names))
    A(valu(f"v_lshrrev_b32 {t[5]}, 4, {lane}", lane.names, t[5].names))
    A(valu(f"v_lshlrev_b32 {common}, 9, {t[6]}", t[6].names, common.names))
    A(valu(f"v_lshl_add_u32 {common}, {t[5]}, 6, {common}", names(t[5], common), common.names))
    A(valu(f"v_and_b32 {cpos}, 3, {lane}", lane.names, cpos.names))
    A(salu(f"s_lshl_b32 s{sT1}, s{sW}, 1", sn(sW), sn(sT1)))
    A(salu(f"s_lshr_b32 s{sT1}, 0x78, s{sT1}", [], sn(sT1)))
    A(salu(f"s_and_b32 s{sT1}, s{sT1}, 3", [], sn(sT1)))
    A(salu(f"s_lshl_b32 s{sW1K}, s{sW}, 10", sn(sW), sn(sW1K)))
    A(salu(f"s_lshl_b32 s{sW8K}, s{sW}, 13", sn(sW), sn(sW8K)))
    A(valu(f"v_xor_b32 {f_w}, s{sT1}, {cpos}", cpos.names, f_w.names))
    A(valu(f"v_lshl_add_u32 {t[7]}, {wv}, 11, {common}", names(wv, common), t[7].names))
    A(valu(f"v_lshl_add_u32 {vDK[0]}, {f_w}, 4, {t[7]}", names(f_w, t[7]), vDK[0].names))
    A(valu(f"v_add_u32 {vDK[1]}, 8192, {vDK[0]}", vDK[0].names, vDK[1].names))
    vq = [[Reg("v", 104 + 4 * r + rg, 1) for rg in range(4)] for r in range(3)]
    qb = Reg("v", 116, 1)
    A(salu(f"s_mov_b32 s{sT3}, {48 * 512}", [], sn(sT3)))
    A(valu(f"v_mad_u32_u24 {qb}, {wv}, s{sT3}, {common}", names(wv, common), qb.names))
    for rg in range(4):
        x = Reg("v", 117, 1)
        A(valu(f"v_xor_b32 {x}, {FR[rg]}, {cpos}", cpos.names, x.names))
        A(valu(f"v_lshl_add_u32 {vq[0][rg]}, {x}, 4, {qb}", names(x, qb), vq[0][rg].names))
        if rg:
            A(valu(f"v_add_u32 {vq[0][rg]}, {rg * 2048}, {vq[0][rg]}", vq[0][rg].names, vq[0][rg].names))
    A(Op("s_waitcnt lgkmcnt(0)", "wait", meta={"fixed": True}))
    P += stamp("karg", True)

    def srd(srd, p, off, nrec):
        A(salu(f"s_add_u32 s{srd}, s{p}, s{off}", [], sn(srd)))
        A(salu(f"s_addc_u32 s{srd + 1}, s{p + 1}, 0", [], sn(srd + 1)))
        A(salu(f"s_mov_b32 s{srd + 2}, {nrec}", [], sn(srd + 2)))
        A(salu(f"s_mov_b32 s{srd + 3}, 0x00020000", [], sn(srd + 3)))

    def vaddr():
        A(valu(f"v_and_b32 {t[9]}, 1, {wv}", wv.names, t[9].names))
        A(valu(f"v_lshlrev_b32 {t[9]}, 1, {t[9]}", t[9].names, t[9].names))
        A(valu(f"v_xor_b32 {t[9]}, {t[9]}, {cpos}", names(t[9], cpos), t[9].names))
        A(valu(f"v_lshl_add_u32 {vDV[0]}, {t[9]}, 4, {t[7]}", names(t[9], t[7]), vDV[0].names))
        for a in range(1, 4):
            A(valu(f"v_add_u32 {vDV[a]}, {8192 * a}, {vDV[0]}", vDV[0].names, vDV[a].names))

    def codepf2():
        if cfg.codepf:
            A(valu(f"v_add_u32 {t[10]}, 32768, {t[10]}", t[10].names, t[10].names))
            A(valu(f"v_min_u32 {t[10]}, L_mainend - L_pfbase, {t[10]}", t[10].names, t[10].names))
            A(Op(f"global_load_dword {vX[1]}, {t[10]}, s[42:43]", "vload", t[10].names, vX[1].names))

    def cwait(k):
        raw(f"s_cmp_lt_u32 s{sCls}, {k}")
        raw(f"s_cbranch_scc1 L_nw{k}")
        raw("s_waitcnt vmcnt(0)")
        A(Op(f"L_nw{k}:", "label"))

    srd(sK, 6, sT0, 262144)
    srd(sQ, 4, sT2, 184 * 512)
    if cfg.stag2:
        raw(f"s_lshr_b32 s{sCls}, s2, 5")
        raw(f"s_lshl_b32 s{sCls}, s{sCls}, 2")
        raw(f"s_lshr_b32 s{sCls}, {cfg.stag2}, s{sCls}")
        raw(f"s_and_b32 s{sCls}, s{sCls}, 15")
        raw(f"s_cbranch_scc0 L_go")
        raw(f"v_lshlrev_b32 {t[9]}, {cfg.stag_sh}, v0")
        raw(f"s_mov_b32 s{sKoff}, 0")
        A(Op("L_warm:", "label"))
        raw(f"buffer_load_dword {t[8]}, {t[9]}, s[{sK}:{sK + 3}], s{sKoff} offen {cfg.ldkv}")
        raw(f"s_add_u32 s{sKoff}, s{sKoff}, {256 << cfg.stag_sh}")
        raw(f"s_sub_u32 s{sCls}, s{sCls}, 1")
        raw("s_waitcnt vmcnt(0)")
        raw(f"s_cmp_lg_u32 s{sCls}, 0")
        raw("s_cbranch_scc1 L_warm")
        A(Op("L_go:", "label"))
    seq = cfg.head.split(",")

    def issue(x):
        if x == "pf":
            codepf2()
        else:
            if x[:2] in ("Q1", "Q2"):
                qaddr12()
            P.extend(head_dmas(U, x, vq))

    done12 = []

    def qaddr12():
        if not done12:
            done12.append(1)
            for r in (1, 2):
                for rg in range(4):
                    A(valu(f"v_add_u32 {vq[r][rg]}, {8192 * r}, {vq[0][rg]}", vq[0][rg].names, vq[r][rg].names))

    cut = seq.index("|")
    for x in seq[:cut]:
        issue(x)
    srd(sV, 8, sT0, 262144)
    srd(sO, 10, sT2, 184 * 512)
    vaddr()
    g = t[5]
    A(valu(f"v_lshlrev_b32 {t[10]}, 1, {t[6]}", t[6].names, t[10].names))
    A(valu(f"v_lshrrev_b32 {t[10]}, {t[10]}, 0x78".replace("0x78", str(t[11])), names(t[10], t[11]), t[10].names))
    P.insert(len(P) - 1, valu(f"v_mov_b32 {t[11]}, 0x78", [], t[11].names))
    A(valu(f"v_and_b32 {t[10]}, 3, {t[10]}", t[10].names, t[10].names))
    A(valu(f"v_xor_b32 {t[10]}, {t[10]}, {g}", names(t[10], g), t[10].names))
    A(valu(f"v_lshlrev_b32 {t[10]}, 4, {t[10]}", t[10].names, t[10].names))
    A(valu(f"v_lshl_add_u32 {t[10]}, {t[6]}, 10, {t[10]}", names(t[6], t[10]), t[10].names))
    A(valu(f"v_lshl_add_u32 {vKR[0]}, {cpos}, 6, {t[10]}", names(cpos, t[10]), vKR[0].names))
    A(valu(f"v_add_u32 {vKR[1]}, 0x10000, {vKR[0]}", vKR[0].names, vKR[1].names))
    A(valu(f"v_add_u32 {vKR[2]}, 0x20000, {vKR[0]}", vKR[0].names, vKR[2].names))
    A(valu(f"v_lshlrev_b32 {t[10]}, 10, {g}", g.names, t[10].names))
    A(valu(f"v_lshl_add_u32 {t[10]}, {t[6]}, 6, {t[10]}", names(t[6], t[10]), t[10].names))
    A(valu(f"v_lshl_add_u32 {t[10]}, {cpos}, 3, {t[10]}", names(cpos, t[10]), t[10].names))
    A(valu(f"v_and_b32 {t[11]}, 1, {g}", g.names, t[11].names))
    A(valu(f"v_lshl_add_u32 {vVR[0][0]}, {t[11]}, 5, {t[10]}", names(t[11], t[10]), vVR[0][0].names))
    A(valu(f"v_xor_b32 {vVR[1][0]}, 32, {vVR[0][0]}", vVR[0][0].names, vVR[1][0].names))
    for h in range(2):
        for w in (1, 2):
            A(valu(f"v_add_u32 {vVR[h][w]}, {w * 65536}, {vVR[h][0]}", vVR[h][0].names, vVR[h][w].names))
    n15 = t[11]
    x0, x1, x2 = Reg("v", 118, 1), Reg("v", 119, 1), Reg("v", 120, 1)
    A(valu(f"v_and_b32 {n15}, 15, {lane}", lane.names, n15.names))
    A(valu(f"v_lshrrev_b32 {x1}, 3, {lane}", lane.names, x1.names))
    A(valu(f"v_and_b32 {x2}, 7, {lane}", lane.names, x2.names))
    A(valu(f"v_mad_u32_u24 {t[10]}, {wv}, 48, {x1}", names(wv, x1), t[10].names))
    A(valu(f"v_lshlrev_b32 {t[10]}, 9, {t[10]}", t[10].names, t[10].names))
    A(valu(f"v_lshl_add_u32 {vST0}, {x2}, 4, {t[10]}", names(x2, t[10]), vST0.names))
    A(salu(f"s_mul_i32 s{sT3}, s{sW}, {cfg.stg_wave}", sn(sW), sn(sT3)))
    A(salu(f"s_add_u32 s{sT3}, s{sT3}, {cfg.stg_base}", [], sn(sT3)))
    A(valu(f"v_xor_b32 {t[10]}, {x2}, {x1}", names(x2, x1), t[10].names))
    A(valu(f"v_lshlrev_b32 {t[10]}, 4, {t[10]}", t[10].names, t[10].names))
    A(valu(f"v_lshl_add_u32 {t[10]}, {x1}, 7, {t[10]}", names(x1, t[10]), t[10].names))
    A(valu(f"v_add_u32 {vSR}, s{sT3}, {t[10]}", t[10].names, vSR.names))
    A(valu(f"v_lshrrev_b32 {x1}, 1, {g}", g.names, x1.names))
    A(valu(f"v_xor_b32 {x0}, {x2}, {x1}", names(x2, x1), x0.names))
    A(valu(f"v_lshlrev_b32 {x0}, 4, {x0}", x0.names, x0.names))
    A(valu(f"v_lshl_add_u32 {x0}, {n15}, 7, {x0}", names(n15, x0), x0.names))
    A(valu(f"v_and_b32 {x1}, 1, {g}", g.names, x1.names))
    A(valu(f"v_lshl_add_u32 {x0}, {x1}, 3, {x0}", names(x1, x0), x0.names))
    A(valu(f"v_add_u32 {x0}, s{sT3}, {x0}", x0.names, x0.names))
    for i in range(4):
        A(valu(f"v_xor_b32 {vSW[i]}, {32 * i}, {x0}", x0.names, vSW[i].names))
    A(valu(f"v_add_u32 {vQR}, s{sW8K}, {vKR[1]}", vKR[1].names + sn(sW8K), vQR.names))
    A(salu(f"s_mov_b32 s{sC}, {f2u(C_SCALE):#x}", [], sn(sC)))
    A(salu(f"s_mov_b32 s{sThr}, {f2u(2.0 ** 64 if not cfg.force_fallback else 1.0):#x}", [], sn(sThr)))
    A(salu(f"s_mov_b64 s[{sFlag}:{sFlag + 1}], 0", [], sn(sFlag, 2)))
    for r in range(3):
        A(valu(f"v_mov_b32 {vL[r]}, 0", [], vL[r].names))
    qaddr12()
    for x in seq[cut + 1:]:
        issue(x)
    P += stamp("issued", True)
    if cfg.walk:
        A(Op("WALK", "label"))
    return P, vq


def head_dmas(U, x, vq):
    name, part = (x[:2], x[2:]) if x[0] == "Q" else (x, "")
    u = U[name]
    if not u.dmas:
        u.make_dmas(vq[u.n]) if u.kind == "Q" else u.make_dmas()
    ops = u.dmas if not part else (u.dmas[:4] if part == "a" else u.dmas[4:])
    return flat_dmas(ops)


def q_reads(u):
    ops = []
    r = u.n
    base = u.slot * SLOT - 65536
    pre = []
    addr = vQR
    if base >= 65536:
        addr = vXT[2]
        pre.append(valu(f"v_add_u32 {addr}, 0x10000, {vQR}", vQR.names, addr.names))
        base -= 65536
    for c in range(8):
        off = base + (c >> 2) * 4096 + (c & 3) * 256
        o = Op(f"ds_read_b128 {Q[r][c]}, {addr} offset:{off}", "ds", addr.names, Q[r][c].names)
        o.meta["qhalf"] = c >> 2
        o.meta["unit"] = u
        u.reads.append(o)
        ops.append(o)
    return pre, ops


def build(cfg):
    act = lambda s: (0, 1, 2)
    stamp = Stamps(cfg)
    U = {}
    for n in range(16):
        U[f"K{n}"] = Unit("K", n, cfg)
        U[f"V{n}"] = Unit("V", n, cfg)
    for r in range(3):
        U[f"Q{r}"] = Unit("Q", r, cfg)
    U["K0"].slot, U["K1"].slot, U["K2"].slot, U["K3"].slot = 0, 1, 2, 3
    U["Q0"].slot, U["Q1"].slot, U["Q2"].slot = 4, 6, 8
    cfg.stg_base, cfg.stg_wave = 0, 4096 * cfg.stg_n

    pro, vqd = prologue(cfg, U, stamp)

    M = []
    fixed = {}
    dsq = []
    vq = []
    sbuf_last = {}
    spool = {"bufs": list(vS) + [Reg("v", vP[2][0][0].lo + 4 * i, 4) for i in range(3, 6)], "ctr": 0}
    U["K4"].slot, U["V0"].slot = 4, 5
    hd = lambda lst: [o for x in lst.split(",") if x for o in head_dmas(U, x, vqd)]
    guards = []
    Pcvt = {}
    negm_ready = {}
    preg_free = {}
    last_add = {}
    bars = []

    def Preg(s, r):
        return vP[s % 3][r]

    def softmax_ops(s, r, a, S, ready_gap):
        dst = Preg(s, r)[a >> 1]
        fm, ex, ad, cv = [], [], [], []
        for i in range(4):
            o = valu(f"v_fma_f32 {S[i]}, {S[i]}, s{sC}, {vNM[r]}", names(S[i], vNM[r]) + sn(sC), S[i].names)
            o.earliest = ready_gap
            o.deps.append((negm_ready[r], 0))
            fm.append(o)
        for i in range(4):
            o = Op(f"v_exp_f32 {S[i]}, {S[i]}", "trans", S[i].names, S[i].names)
            o.deps.append((fm[i], 0))
            ex.append(o)
        for i in range(4):
            o = valu(f"v_add_f32 {vL[r]}, {vL[r]}, {S[i]}", names(vL[r], S[i]), vL[r].names)
            o.deps.append((ex[i], 1))
            prev_add = ad[-1] if ad else last_add.get(r)
            if prev_add is not None:
                o.deps.append((prev_add, 0))
            ad.append(o)
        for k in range(2):
            d = dst[2 * (a & 1) + k]
            o = valu(f"v_cvt_pk_bf16_f32 {d}, {S[2 * k]}, {S[2 * k + 1]}", names(S[2 * k], S[2 * k + 1]), d.names)
            o.deps += [(ex[2 * k], 1), (ex[2 * k + 1], 1)]
            o.earliest = preg_free.get(dst.lo, -1)
            if dst.lo in sbuf_last:
                o.deps += [(x, 0) for x in sbuf_last[dst.lo]]
            cv.append(o)
        Pcvt[(s, r, a)] = cv
        vq.extend([fm[0], fm[1], ex[0], fm[2], ex[1], fm[3], ad[0], ex[2], ad[1], cv[0], ex[3], ad[2], ad[3], cv[1]])
        last_add[r] = ad[3]
        return ad + cv

    held = {}
    noflush = set()

    def chain(s, r, a, frags):
        S = spool["bufs"][spool["ctr"] % len(spool["bufs"])]
        spool["ctr"] += 1
        si = S.lo
        start = len(M)
        assert sbuf_last.get(si) != "held"
        if sbuf_last.get(si):
            guards.append((start - 1, sbuf_last[si]))
        for c in range(8):
            M.append(mfma(S, frags[c], Q[r][c], S if c else None))
        end = len(M) - 1
        if r not in negm_ready:
            held.setdefault(r, []).append((si, S, end, a))
            sbuf_last[si] = "held"
            if len(held[r]) == 2:
                S0, S1 = held[r][0][1], held[r][1][1]
                m, tmp = vNM[r], vXT[r]
                ops = [valu(f"v_max3_f32 {m}, {S0[0]}, {S0[1]}, {S0[2]}", names(S0[0], S0[1], S0[2]), m.names),
                       valu(f"v_max3_f32 {tmp}, {S0[3]}, {S1[0]}, {S1[1]}", names(S0[3], S1[0], S1[1]), tmp.names),
                       valu(f"v_max3_f32 {m}, {m}, {S1[2]}, {S1[3]}", names(m, S1[2], S1[3]), m.names),
                       valu(f"v_max_f32 {m}, {m}, {tmp}", names(m, tmp), m.names)]
                ops += xlane("v_max_f32", m, tmp)
                ops.append(valu(f"v_mul_f32 {m}, {f2u(-C_SCALE):#x}, {m}", m.names, m.names))
                prev = None
                for o in ops:
                    o.earliest = end + cfg.sready
                    if prev is not None:
                        o.deps.append((prev, 1 if "permlane" in o.text else 0))
                    prev = o
                vq.extend(ops)
                negm_ready[r] = ops[-1]
                for (si2, S2, end2, a2) in held[r]:
                    sbuf_last[si2] = softmax_ops(s, r, a2, S2, end2 + cfg.sready)
        else:
            sbuf_last[si] = softmax_ops(s, r, a, S, end + cfg.sready)
        return start

    afree = {}
    touched = set()
    vpool = {"bufs": list(VFB), "ctr": 0}

    def group(steps, t, smajor=False):
        base = vpool["bufs"][vpool["ctr"] % len(vpool["bufs"])]
        vpool["ctr"] += 1
        tt = t & 7
        start = len(M)
        frs = []
        for i, s in enumerate(steps):
            u = U[f"V{2 * s + (t >> 3)}"]
            for kc in range(2):
                F = Reg("a", base + 8 * i + 4 * kc, 4)
                frs.append((s, kc, F))
                for k in range(2):
                    a = 2 * kc + k
                    dsq.append(dict(kind="V", dst=F[2 * k:2 * k + 2], h=tt & 1, u=u, off=a * 4096 + (tt >> 1) * 256,
                                    cons=start + 2 * i + kc, free=afree.get(F.lo, -1)))
        seq = [(r, x) for r in act(steps[0]) for x in frs]
        if smajor:
            seq = [(r, x) for s0 in steps for r in act(s0) for x in frs if x[0] == s0]
            for d in dsq[-4 * len(steps):]:
                i = d["cons"] - start
                d["cons"] = start + 6 * (i >> 1) + (i & 1)
        for (r, (s, kc, F)) in seq:
            if True:
                C = O[r][t] if (r, t) in touched else None
                touched.add((r, t))
                P_ = Preg(s, r)[kc]
                M.append(mfma(O[r][t], F, P_, C))
                guards.append((len(M) - 3, Pcvt[(s, r, 2 * kc)] + Pcvt[(s, r, 2 * kc + 1)]))
                preg_free[P_.lo] = len(M) - 1
                afree[F.lo] = len(M) - 1
        return len(M) - 1

    def barrier(name, gap, hoist):
        o = Op("s_barrier", "barrier")
        o.meta.update(need_vm=[], need_lgkm=[], name=name, hoist_wait=hoist, units=[])
        o.gap = gap
        bars.append(o)
        return o

    def prek_reads(lo, hi):
        ops = []
        for a in range(lo, hi):
            u = U[f"K{a >> 1}"]
            for c in range(8):
                off = u.slot * SLOT + (a & 1) * 8192 + (c >> 2) * 4096 + (c & 3) * 256
                o = Op(f"ds_read_b128 {preK[a][c]}, {vKR[0]} offset:{off}", "ds", vKR[0].names, preK[a][c].names)
                u.reads.append(o)
                ops.append(o)
        return ops

    blk = []
    ba = barrier("a", -1, False)
    ba.meta["units"] = [U["K0"], U["K1"], U["Q0"]]
    U["K0"].vis = U["K1"].vis = U["Q0"].vis = ba
    blk.append(ba)
    blk += stamp("K0Q0", True)
    pre_, q0 = q_reads(U["Q0"])
    prek = prek_reads(0, 4)
    blk += pre_ + q0 + prek[:8] + hd(cfg.head_a) + prek[8:]
    fixed[-1] = blk
    sub_order = (0, 1, 2, 3, 6, 7, 4, 5)
    allreads = q0 + prek
    kprev = {}
    for r in range(3):
        if r:
            u = U[f"Q{r}"]
            pre_, qr = q_reads(u)
            for o in qr:
                o.meta["need_vm_unit"] = (u, o.meta["qhalf"])
            blk = hd(cfg.head_c if r == 1 else cfg.head_0) + pre_ + qr
            if r == 2:
                spool["bufs"] += [Reg("v", vP[2][0][0].lo + 4 * i, 4) for i in range(3)]
            allreads += qr
            bb = barrier("c" if r == 1 else 0, len(M) - 1, False)
            bb.meta["need_lgkm"] = list(allreads)
            blk.append(bb)
            blk += stamp(f"Q{r}", True)
            fixed[len(M) - 1] = blk
        for i, a in enumerate(sub_order):
            if r == 0 and i == 4:
                b2 = barrier("a2", len(M) - 1, False)
                b2.meta["units"] = [U["K2"], U["K3"]]
                b2.meta["need_lgkm"] = list(q0)
                U["K2"].vis = U["K3"].vis = b2
                k2 = prek_reads(6, 8) + prek_reads(4, 6)
                allreads += k2
                fixed[len(M) - 1] = [b2] + k2[:8] + hd(cfg.head_a2) + k2[8:]
                noflush.add(len(M) - 1)
            st = chain(a >> 2, r, a & 3, preK[a])
            for c in range(8):
                if preK[a][c].f == "a":
                    afree[preK[a][c].lo] = st + c
        for o in vq:
            o.meta.setdefault("pre", len(M) - 1)
    b0 = bars[-1]
    b0.meta["units"] = [U["K4"]]
    U["K4"].vis = b0
    spool["bufs"] = list(vS)
    spool["ctr"] = 0

    start_int = {}
    grp_end = {}
    pub = []

    def kchains(s, a, kb):
        u = U[f"K{2 * s + (a >> 1)}"]
        state = {"first": True}

        def emit(r):
            st = len(M)
            if state["first"]:
                for c in range(8):
                    dsq.append(dict(kind="K", dst=KF[kb][c], u=u, off=(a & 1) * 8192 + (c >> 2) * 4096 + (c & 3) * 256,
                                    cons=st + c, free=afree.get(KF[kb][c].lo, b0.gap)))
                state["first"] = False
            chain(s, r, a, KF[kb])
            for c in range(8):
                afree[KF[kb][c].lo] = st + c
        return emit

    NP = 8 - cfg.defer
    for p in range(NP):
        for q in range(4):
            n = 2 * p + (q >> 1)
            if q % 2 == 0:
                start_int[n] = len(M)
                pub.append((n, [U[f"V{n}"], U[f"K{n + 4}"]]) if n else ("v0", [U["V0"]]))
            order = "cccGGGG" if (p == 0 and q == 0) else "cGcGcGG"
            em = kchains(p + 2, q, (q & 1) if cfg.kdouble else 0)
            ci = gi = 0
            for ch in order:
                if ch == "c":
                    em(ci)
                    ci += 1
                else:
                    grp_end[(p, 4 * q + gi)] = group((p,), 4 * q + gi)
                    gi += 1
    n = 2 * NP
    if cfg.defer == 3:
        for q in range(4):
            if q % 2 == 0:
                start_int[n] = len(M)
                pub.append((n, [U[f"K{14 + (q >> 1)}"]]))
                n += 1
            em = kchains(7, q, (q + 1) & 1)
            for r in range(3):
                em(r)
    qk_end = len(M) - 1
    steps = tuple(range(NP, 8))
    sz = 8 * len(steps)
    vpool["bufs"] = [192, 192 + sz, 160, 96] if sz == 24 else [192, 208, 224, 240, 160, 176]
    vpool["ctr"] = 0
    for b in range(64, 160, 4):
        afree[b] = qk_end
    fin0 = n
    for t in range(16):
        if t % 8 == 0:
            start_int[n] = len(M)
            pub.append((n, [U[f"V{2 * s + (t >> 3)}"] for s in steps]))
            n += 1
        grp_end[(7, t)] = group(steps, t, t == 0)
    NM = len(M)

    dsq.sort(key=lambda d: d["cons"])
    def spacing(c):
        if c >= start_int[fin0]:
            return cfg.spf
        return 2.0

    nxt = float(1 << 30)
    for d in reversed(dsq):
        dl = d["cons"] - cfg.lat
        e = max(d["free"], b0.gap + 1)
        f = min(float(dl) + 0.999, nxt - spacing(d["cons"]))
        if f < e:
            f = min(float(dl), nxt - min(1.0, spacing(d["cons"])))
        if f < e:
            f = float(e)
        d["f"], d["e"], d["dl"] = f, e, dl
        nxt = f
    prev = -10
    late = 0
    cnt = 0
    for d in dsq:
        g = max(int(d["f"]), d["e"], prev)
        if g == prev:
            cnt += 1
            if cnt >= 2 or (g + 1 <= d["dl"] and spacing(d["cons"]) >= 1):
                g += 1
                cnt = 0
        else:
            cnt = 0
        g = min(g, d["cons"] - 2)
        assert g >= d["e"] and g >= prev, (d, g, prev)
        late += g > d["dl"]
        d["gap"] = g
        prev = g

    prevg = b0.gap
    for (name, us) in pub:
        first = min(d["gap"] for d in dsq if d["u"] in us)
        g = max(first - 1, prevg + 1)
        assert g < first, (name, g, first)
        b = barrier(name, g, True)
        b.meta["units"] = us
        for u in us:
            u.vis = b
        prevg = g
    lastcons = {}
    for d in dsq:
        lastcons[d["u"].name] = max(lastcons.get(d["u"].name, -1), d["cons"])

    def release(u):
        if u.name in ("K0", "K1", "K2", "K3", "Q1"):
            return [b.meta["name"] for b in bars].index("c")
        if u.name == "Q2":
            return bars.index(b0)
        c = [i for i, b in enumerate(bars) if b.gap >= lastcons[u.name]]
        return min(c) if c else len(bars)

    stg_bi = bars.index(next(b for b in bars if b.meta["name"] == fin0))
    free_at = {s: -1 for s in range(10)}
    for name in ("K0", "K1", "K2", "K3", "K4", "V0", "Q1", "Q2"):
        u = U[name]
        for k in range(u.nslots):
            free_at[u.slot + k] = release(u)
    order = []
    for (name, us) in pub:
        order += [u.name for u in sorted(us, key=lambda u: u.kind) if not u.dmas]
    dmaq = []
    for name in order:
        u = U[name]
        cand = list(free_at)
        if release(u) > stg_bi:
            cand = [s for s in cand if s >= cfg.stg_n]
        slot = min(cand, key=lambda s: (free_at[s], s))
        w = free_at[slot]
        u.slot = slot
        free_at[slot] = release(u)
        e = max(bars[w].gap + 2 if w >= 0 else 1, b0.gap + 2 + cfg.dma_lead)
        ops = u.make_dmas()
        for d in ops:
            d.earliest = e
            dmaq.append(d)
    gap_ds = {}
    for d in dsq:
        gap_ds.setdefault(d["gap"], []).append(d)
    gap_dma = {}
    placed_dma = [b0.gap - 20] * 4
    last = -10
    for d in dmaq:
        u = d.meta["unit"]
        sp = cfg.dma_sp
        if last < start_int[1]:
            sp = cfg.dma_sp_fast
        g = max(d.earliest, last + sp)
        if len(placed_dma) >= cfg.dma_cap:
            g = max(g, placed_dma[-cfg.dma_cap] + cfg.dma_win)
        g0 = g
        while g in fixed or g in gap_ds:
            g += 1
        if u.vis is not None and g >= u.vis.gap - 1:
            raise SystemExit(f"DMA of {u.name} too late: {g} vs {u.vis.gap}")
        gap_dma[g] = d
        d.gap = g
        last = g
        placed_dma.append(g)
    last_dma = dmaq[-1]
    flight = {u.name: u.vis.gap - u.dmas[-1].gap for u in U.values() if u.vis is not None and u.dmas[-1].gap is not None}
    for b in bars:
        b.meta["need_vm"] = [d for u in b.meta["units"] for d in u.dmas]

    reads = []
    for d in dsq:
        u = d["u"]
        if d["kind"] == "Q":
            c = d["c"]
            off = u.slot * SLOT - 65536 + (c >> 2) * 4096 + (c & 3) * 256
            o = Op(f"ds_read_b128 {d['dst']}, {vQR} offset:{off}", "ds", vQR.names, d["dst"].names)
            o.meta["need_vm"] = u.dmas[(c >> 2) * 4:(c >> 2) * 4 + 4]
            o.meta["hoist_wait"] = True
        else:
            w, off = divmod(u.slot * SLOT + d["off"], 65536)
            if d["kind"] == "K":
                o = Op(f"ds_read_b128 {d['dst']}, {vKR[w]} offset:{off}", "ds", vKR[w].names, d["dst"].names)
            else:
                a = vVR[d["h"]][w]
                o = Op(f"ds_read_b64_tr_b16 {d['dst']}, {a} offset:{off}", "ds", a.names, d["dst"].names)
        o.gap = d["gap"]
        u.reads.append(o)
        d["op"] = o
        reads.append(o)
    for blk in fixed.values():
        for o in blk:
            if "need_vm_unit" in o.meta:
                u, h = o.meta["need_vm_unit"]
                o.meta["need_vm"] = u.dmas[4 * h:4 * h + 4]

    vcc_last = [None]

    def finish_rows(rows, last):
        fin = {}
        for r in rows:
            ops = xlane("v_add_f32", vL[r], vXT[r])
            prev = last[r]
            for o in ops:
                o.deps.append((prev, 1 if "permlane" in o.text else 0))
                prev = o
            rc = Op(f"v_rcp_f32 {vRL[r]}, {vL[r]}", "trans", vL[r].names, vRL[r].names)
            rc.deps.append((prev, 0))
            cm = valu(f"v_cmp_lt_f32 vcc, s{sThr}, {vL[r]}", vL[r].names + sn(sThr), ["svcc"])
            cm.deps.append((prev, 0))
            fl = salu(f"s_or_b64 s[{sFlag}:{sFlag + 1}], s[{sFlag}:{sFlag + 1}], vcc", ["svcc"] + sn(sFlag, 2), sn(sFlag, 2) + ["scc"])
            fl.deps.append((cm, 2))
            fin[r] = (ops, rc, cm, fl)
        out = []
        for k in range(6):
            for r in rows:
                out.append(fin[r][0][k])
        for r in rows:
            if vcc_last[0] is not None:
                fin[r][2].deps.append((vcc_last[0], 0))
            out += [fin[r][1], fin[r][2], fin[r][3]]
            vcc_last[0] = fin[r][3]
        return out, {r: fin[r][1] for r in rows}

    rbq = [Reg("a", 64 + 4 * i, 4) for i in range(8)]
    tmps = [Reg("v", vS[2 * i].lo, 8) for i in range(3)]
    tmp_last = {tb.lo: sbuf_last[tb.lo] + sbuf_last[tb.lo + 4] for tb in tmps}
    tmp_min = {tb.lo: -1 for tb in tmps}
    ctr = {"t": 0, "r": 0}
    rb_last = {}
    stg_last_read = {}
    wr = {}
    stg_after = bars[stg_bi].gap + 1
    sta = {}
    for r in range(3):
        for k in range(2):
            d = vST[r][k]
            o = valu(f"v_add_u32 {d}, {r * 8192 + k * 4096}, {vST0}", vST0.names, d.names)
            o.deps.append((last_dma, 1))
            sta[(r, k)] = o

    def piece(r, s, T, rcp, half, packed):
        rdy = grp_end[(s, 2 * T + 1)] + cfg.sready
        X, Y = O[r][2 * T], O[r][2 * T + 1]
        src = [X[i] for i in range(4)] + [Y[i] for i in range(4)]
        D = X
        ops = []
        rd = None
        if X.f == "a":
            tb = tmps[ctr["t"] % len(tmps)]
            ctr["t"] += 1
            rd = []
            for i in range(8):
                o = valu(f"v_accvgpr_read_b32 {tb[i]}, {src[i]}", src[i].names, tb[i].names)
                o.earliest = max(rdy, tmp_min[tb.lo])
                o.deps += [(x, 0) for x in tmp_last[tb.lo]]
                rd.append(o)
            ops += rd
            src = [tb[i] for i in range(8)]
            D = tb[0:4]
        mu = []
        if packed:
            for k in range(4):
                pr = Reg("v", src[2 * k].lo, 2)
                rl2 = Reg("v", vRL[r].lo, 2)
                o = valu(f"v_pk_mul_f32 {pr}, {pr}, {rl2} op_sel_hi:[1,0]", names(pr, vRL[r]), pr.names)
                o.earliest = NM
                o.deps.append((rcp, 1))
                if rd:
                    o.deps += [(rd[2 * k], 0), (rd[2 * k + 1], 0)]
                mu += [o, o]
            ops += mu[::2]
        else:
            for i in range(8):
                o = valu(f"v_mul_f32 {src[i]}, {src[i]}, {vRL[r]}", names(src[i], vRL[r]), src[i].names)
                o.earliest = rdy
                o.deps.append((rcp, 1))
                if rd:
                    o.deps.append((rd[i], 0))
                mu.append(o)
            ops += mu
        cv = []
        for k in range(4):
            o = valu(f"v_cvt_pk_bf16_f32 {D[k]}, {src[2 * k]}, {src[2 * k + 1]}", names(src[2 * k], src[2 * k + 1]), D[k].names)
            o.deps += [(mu[2 * k], 0), (mu[2 * k + 1], 0)]
            if k:
                o.deps.append((cv[k - 1], 0))
            cv.append(o)
        w = []
        for xy in range(2):
            ad = vSW[2 * (T & 1) + xy]
            x = Op(f"ds_write_b64 {ad}, {D[2 * xy:2 * xy + 2]} offset:{2048 * half}", "ds",
                   D[2 * xy:2 * xy + 2].names + ad.names, [])
            x.deps += [(cv[2 * xy], 0), (cv[2 * xy + 1], 0)]
            x.earliest = stg_after
            x.deps += [(z, 0) for z in stg_last_read.get(half, [])]
            w.append(x)
        if rd:
            tmp_last[tb.lo] = w + [cv[3]]
        wr[(r, T)] = w
        ops += cv + w
        if T % 2 == 1:
            H = T >> 1
            rds, sts = [], []
            for k in range(2):
                qd = rbq[ctr["r"] % len(rbq)]
                ctr["r"] += 1
                o = Op(f"ds_read_b128 {qd}, {vSR} offset:{1024 * k + 2048 * half}", "ds", vSR.names, qd.names)
                o.deps += [(x, 0) for tt in (T - 1, T) for x in wr[(r, tt)]]
                o.deps += [(x, 0) for x in rb_last.get(qd.lo, [])]
                o.earliest = qk_end
                stt = f"buffer_store_dwordx4 {qd}, {vST[r][k]}, s[{sO}:{sO + 3}], 0 offen offset:{128 * H}"
                if cfg.st:
                    stt += " " + cfg.st
                so = Op(stt, "vstore", qd.names + vST[r][k].names + sn(sO, 4), [])
                so.meta["data"] = frozenset(qd.names)
                so.meta["hoist_wait"] = True
                so.deps += [(o, cfg.lat), (sta[(r, k)], 0)]
                rb_last[qd.lo] = [so]
                rds.append(o)
                sts.append(so)
            stg_last_read[half] = rds
            ops += rds + sts
        return ops

    fo, rcp = finish_rows((0, 1, 2), last_add)
    vq += fo + list(sta.values())
    ep = []
    nb = 2 * cfg.stg_n
    for T in range(8):
        for r in range(3):
            ep += piece(r, 7, T, rcp[r], (3 * (T >> 1) + r) % nb, cfg.pk and T >= cfg.pkfrom)

    gaps = {g: {"s": [], "v": []} for g in range(-1, NM + 1)}
    for b in bars:
        if b.meta["hoist_wait"]:
            gaps[b.gap]["s"].append(b)
    for g, d in gap_dma.items():
        pre = d.pre
        d.pre = []
        gaps[g - 1]["s"].append(pre[-1])
        if len(pre) > 1:
            gaps[max(g - 2, 0)]["s"].insert(0, pre[0])

    def ready(o, g, strict=False):
        if o.earliest > g:
            return False
        for (d, k) in o.deps:
            if d.gap is None or d.gap + k > g or (strict and d.gap >= g):
                return False
        return True

    queue = list(vq)
    equeue = list(ep)
    guard_at = {}
    for (g, ops) in guards:
        guard_at.setdefault(g, []).extend(ops)
    overflow = 0

    def place(o, g, where="v"):
        o.gap = g
        gaps[g][where].append(o)
        (queue if o in queue else equeue).remove(o)

    def force(o, g):
        nonlocal overflow
        if o.gap is not None:
            return
        for (d, k) in o.deps:
            if d.gap is None:
                force(d, g)
        assert o.earliest <= g, (o, g)
        overflow += 1
        place(o, g)

    W = 120

    def pick(kinds, g, strict=False):
        for qq in (queue, equeue):
            for o in qq[:W]:
                if o.kind in kinds and ready(o, g, strict):
                    return o
        return None

    since = {}
    xacc = 0.0
    for g in range(0, NM):
        cap = 2
        mem = False
        nds = len(gap_ds.get(g, []))
        if nds:
            for d in gap_ds[g]:
                gaps[g]["v"].append(d["op"])
            cap = 1 if nds == 1 else 0
            mem = True
        if g in gap_dma:
            gaps[g]["v"].append(gap_dma[g])
            cap = 0
            mem = True
        extra = 0
        if g >= start_int[fin0] - cfg.xlead:
            xacc += cfg.xf
            extra = int(xacc)
            xacc -= extra
        o = pick(("salu",), g)
        if o is not None:
            place(o, g, "s")
        ex = pick(("trans",), g)
        if ex is not None:
            since.setdefault(id(ex), g)
        nmem = 0
        if not (mem or ex):
            while nmem < 1:
                mo = pick(("vstore", "ds"), g, True)
                if mo is None:
                    break
                place(mo, g)
                nmem += 1
                cap = min(cap, 1) if mo.kind == "ds" else 0
                mem = True
        if ex is not None and (not mem or (g not in gap_dma and g - since[id(ex)] >= cfg.exp_age)):
            place(ex, g)
            cap = 0
        cap += extra
        while cap > 0:
            o = pick(("valu",), g)
            if o is None:
                break
            place(o, g)
            cap -= 1
        for o in guard_at.get(g, []):
            force(o, g)
        if g in fixed and cfg.preflush and g not in noflush:
            for o in list(queue):
                if o.meta.get("pre") is not None and o.meta["pre"] <= g:
                    place(o, g)
    tail = []
    clock = NM
    k = 0
    rest = queue + equeue
    while rest:
        o = next((o for o in rest if o.kind == "vstore" and ready(o, clock, True)), None)
        if o is None:
            o = next((o for o in rest if o.kind == "ds" and ready(o, clock)), None)
        if o is None:
            o = next((o for o in rest if o.kind not in ("ds", "vstore") and ready(o, clock)), None)
        if o is None:
            clock += 1
            continue
        o.gap = clock
        rest.remove(o)
        tail.append(o)
        k += 1
        if k % 3 == 0:
            clock += 1

    prog = list(pro)
    for o in fixed[-1]:
        o.gap = -1
    prog += fixed[-1]
    inv_start = {v: k for k, v in start_int.items()}
    pos_int = {}
    for g in range(NM):
        M[g].gap = g
        prog.append(M[g])
        if g + 1 in inv_start and (inv_start[g + 1] % cfg.stamp_every == 0 or inv_start[g + 1] < 3 or inv_start[g + 1] >= 2 * NP):
            prog += stamp(f"i{inv_start[g + 1]}")
            if inv_start[g + 1] in (0, fin0):
                prog += stamp(f"t{inv_start[g + 1]}", True)
        prog += gaps[g]["s"]
        prog += gaps[g]["v"]
        if g in fixed:
            for o in fixed[g]:
                o.gap = g
            prog += fixed[g]
    prog += stamp("mfmaend")
    prog += stamp("mfmaendR", True)
    prog += tail
    prog += stamp("stissued", True)
    if cfg.stamps:
        prog.append(Op("s_waitcnt vmcnt(0)", "wait", meta={"fixed": True}))
        prog += stamp("drained", True)
    prog += stamp.finish()
    prog.append(Op(f"s_cmp_lg_u64 s[{sFlag}:{sFlag + 1}], 0", "raw"))
    prog.append(Op("s_cbranch_scc1 L_fallback", "raw"))

    for o in prog:
        if o.kind == "mfma":
            o.meta["cover"] = [x for x in reads if x.gap <= o.gap - 1 - cfg.age and x.gap > o.gap - 40]
    prog = insert_waits_cover(prog)
    prog, pads = fix_hazards(prog, verbose=cfg.verbose)
    verify_lds(prog, U, None, cfg)
    idx = {id(o): i for i, o in enumerate(prog)}
    seg = lambda a, b: estimate_cycles(prog[idx[id(M[a])]:idx[id(M[b])] + 1])
    ints = sorted(start_int.items())
    est = {n: seg(g, (ints[i + 1][1] if i + 1 < len(ints) else NM) - 1) for i, (n, g) in enumerate(ints)}
    info = dict(NM=NM, late=late, overflow=overflow, pads=pads, est_main=seg(start_int[0], NM - 1),
                ideal=16 * (NM - start_int[0]), est_tail=estimate_cycles(prog[idx[id(M[-1])] + 1:]), n=len(prog), tail=len(tail),
                waits=sum(1 for o in prog if o.kind == "wait"), est=list(est.values()))
    if cfg.verbose:
        print("flight", flight)
        print("slots", {u.name: u.slot for u in U.values()})
        print("bars", [(b.meta["name"], b.gap) for b in bars])
        print("ints", start_int, "last dma", last_dma.gap, "stores", [o.gap for o in ep if o.kind == "vstore"])
    cfg.stamp_names = stamp.list
    return prog, info


def insert_waits_cover(prog):
    pend = set()
    for o in prog:
        if o.kind == "ds":
            pend |= set(o.writes)
        if o.kind == "mfma" and (o.reads & pend):
            cov = o.meta.get("cover", [])
            o.meta["need_lgkm"] = cov
            for x in cov:
                pend -= set(x.writes)
            pend -= set(o.reads)
    return insert_waits(prog)


def verify_lds(prog, U, stg_bar, cfg):
    pos = {id(o): i for i, o in enumerate(prog)}
    bars = [o for o in prog if o.kind == "barrier"]
    occ = {}
    for u in U.values():
        for k in range(u.nslots):
            occ.setdefault(u.slot + k, []).append(u)
        if u.kind != "Q":
            for rd in u.reads:
                b = u.vis
                assert pos[id(b)] < pos[id(rd)], ("read before barrier", u.name)
                for d in u.dmas:
                    assert d.meta["vm_idx"] < b.meta["vm_done_at"], ("dma not waited", u.name)
    for s, us in occ.items():
        us.sort(key=lambda u: pos[id(u.dmas[0])])
        for a, b in zip(us, us[1:]):
            first = min(pos[id(d)] for d in b.dmas)
            ok = any(pos[id(br)] < first and all(rd.meta["lg_idx"] < br.meta["lg_done_at"] for rd in a.reads) for br in bars)
            assert ok, ("slot WAR", s, a.name, b.name)
    writes = [o for o in prog if o.kind == "ds" and o.text.startswith("ds_write")]
    firstw = min(pos[id(o)] for o in writes)
    lo, hi = cfg.stg_base, cfg.stg_base + 4 * cfg.stg_wave
    for s, us in occ.items():
        if s * SLOT < hi and (s + 1) * SLOT > lo:
            for u in us:
                ok = any(pos[id(br)] < firstw and all(rd.meta["lg_idx"] < br.meta["lg_done_at"] for rd in u.reads) for br in bars)
                assert ok, ("staging WAR", s, u.name)


def fallback(cfg):
    L = []
    A = L.append
    t = Reg("v", 104, 12)
    KFf = KF[0]
    VFf = [Reg("a", 192, 4), Reg("a", 200, 4)]
    A("L_fallback:")
    A("s_waitcnt vmcnt(0) lgkmcnt(0)")
    A("s_barrier")
    A(f"s_mul_i32 s{sT3}, s{sW}, 40960")
    A(f"v_and_b32 {t[0]}, 63, v0")
    A(f"v_bfe_u32 {t[2]}, {t[0]}, 2, 2")
    A(f"v_lshlrev_b32 {t[2]}, 9, {t[2]}")
    A(f"v_lshrrev_b32 {t[5]}, 4, {t[0]}")
    A(f"v_lshl_add_u32 {t[2]}, {t[5]}, 6, {t[2]}")
    A(f"v_and_b32 {t[3]}, 3, {t[0]}")
    fk = [Reg("v", 80 + i, 1) for i in range(4)]
    fv = [Reg("v", 84 + i, 1) for i in range(4)]
    for rg in range(4):
        A(f"v_xor_b32 {t[4]}, {FR[rg]}, {t[3]}")
        A(f"v_lshl_add_u32 {fk[rg]}, {t[4]}, 4, {t[2]}")
        A(f"v_add_u32 {fk[rg]}, {rg * 2048}, {fk[rg]}")
        A(f"v_xor_b32 {t[4]}, {2 * (rg & 1)}, {t[3]}")
        A(f"v_lshl_add_u32 {fv[rg]}, {t[4]}, 4, {t[2]}")
        A(f"v_add_u32 {fv[rg]}, {rg * 2048}, {fv[rg]}")
    rk, rv0, rv1 = Reg("v", 88, 1), Reg("v", 89, 1), Reg("v", 90, 1)
    so = [Reg("v", 91 + r, 1) for r in range(3)]
    tmp8 = Reg("v", 96, 8)
    A(f"v_add_u32 {rk}, s{sT3}, {vKR[0]}")
    A(f"v_add_u32 {rv0}, s{sT3}, {vVR[0][0]}")
    A(f"v_add_u32 {rv1}, s{sT3}, {vVR[1][0]}")
    A(f"v_and_b32 {t[6]}, 15, {t[0]}")
    A(f"s_mul_i32 s{sT1}, s{sW}, 48")
    A(f"v_add_u32 {t[6]}, s{sT1}, {t[6]}")
    A(f"v_lshlrev_b32 {t[6]}, 9, {t[6]}")
    A(f"v_and_b32 {t[7]}, 1, {t[5]}")
    A(f"v_lshl_add_u32 {t[6]}, {t[7]}, 5, {t[6]}")
    A(f"v_lshrrev_b32 {t[7]}, 1, {t[5]}")
    A(f"v_lshl_add_u32 {so[0]}, {t[7]}, 4, {t[6]}")
    A(f"v_add_u32 {so[1]}, 8192, {so[0]}")
    A(f"v_add_u32 {so[2]}, 16384, {so[0]}")
    A(f"s_mul_i32 s{sT2}, s{sW}, {48 * 512}")
    for r in range(3):
        for rg in range(4):
            A(f"v_add_u32 {t[8]}, s{sT2}, {fk[rg]}")
            A(f"v_add_u32 {t[8]}, {r * 8192}, {t[8]}")
            for half in range(2):
                A(f"s_add_u32 m0, s{sT3}, {half * 4096 + rg * 1024 - half * 256}")
                A("s_nop 0")
                A(f"buffer_load_dwordx4 {t[8]}, s[{sQ}:{sQ + 3}], 0 offen offset:{half * 256} lds")
        A("s_waitcnt vmcnt(0)")
        for c in range(8):
            A(f"ds_read_b128 {Q[r][c]}, {rk} offset:{(c >> 2) * 4096 + (c & 3) * 256}")
        A("s_waitcnt lgkmcnt(0)")
    Pf = [vP[0][r][0] for r in range(3)]

    def load_k():
        for a in range(2):
            A(f"s_add_u32 s{sT1}, s{sT0}, {a * 8192}")
            for half in range(2):
                for rg in range(4):
                    A(f"s_add_u32 m0, s{sT3}, {a * 8192 + half * 4096 + rg * 1024 - half * 256}")
                    A("s_nop 0")
                    A(f"buffer_load_dwordx4 {fk[rg]}, s[{sK}:{sK + 3}], s{sT1} offen offset:{half * 256} lds")

    def load_v():
        for dh in range(2):
            for a in range(2):
                A(f"s_add_u32 s{sT1}, s{sT0}, {a * 8192 + dh * 256}")
                for rg in range(4):
                    A(f"s_add_u32 m0, s{sT3}, {16384 + dh * 8192 + a * 4096 + rg * 1024}")
                    A("s_nop 0")
                    A(f"buffer_load_dwordx4 {fv[rg]}, s[{sV}:{sV + 3}], s{sT1} offen lds")

    def qk(a):
        for c in range(8):
            A(f"ds_read_b128 {KFf[c]}, {rk} offset:{a * 8192 + (c >> 2) * 4096 + (c & 3) * 256}")
        A("s_waitcnt lgkmcnt(0)")
        for r in range(3):
            for c in range(8):
                A(f"v_mfma_f32_16x16x32_bf16 {vS[r]}, {KFf[c]}, {Q[r][c]}, {vS[r] if c else 0}")
        A("s_nop 15")

    def xl(op, x, tmp):
        for o in xlane(op, x, tmp):
            A("s_nop 1")
            A(o.text)

    for r in range(3):
        A(f"v_mov_b32 {vNM[r]}, 0xff800000")
    A(f"s_mov_b32 s{sT0}, 0")
    A("L_fb1:")
    load_k()
    A("s_waitcnt vmcnt(0)")
    for a in range(2):
        qk(a)
        for r in range(3):
            A(f"v_max3_f32 {vNM[r]}, {vNM[r]}, {vS[r][0]}, {vS[r][1]}")
            A(f"v_max3_f32 {vNM[r]}, {vNM[r]}, {vS[r][2]}, {vS[r][3]}")
    A(f"s_add_u32 s{sT0}, s{sT0}, 16384")
    A(f"s_cmp_lt_u32 s{sT0}, 262144")
    A("s_cbranch_scc1 L_fb1")
    for r in range(3):
        xl("v_max_f32", vNM[r], t[4])
        A(f"v_mul_f32 {vNM[r]}, {f2u(-C_SCALE):#x}, {vNM[r]}")
        A(f"v_mov_b32 {vL[r]}, 0")
    for r in range(3):
        for tt in range(16):
            for i in range(4):
                x = O[r][tt][i]
                A(f"v_mov_b32 {x}, 0" if x.f == "v" else f"v_accvgpr_write_b32 {x}, 0")
    A(f"s_mov_b32 s{sT0}, 0")
    A("L_fb2:")
    load_k()
    load_v()
    A("s_waitcnt vmcnt(0)")
    for a in range(2):
        qk(a)
        for r in range(3):
            S = vS[r]
            for i in range(4):
                A(f"v_fma_f32 {S[i]}, {S[i]}, s{sC}, {vNM[r]}")
            for i in range(4):
                A(f"v_exp_f32 {S[i]}, {S[i]}")
            A("s_nop 1")
            for i in range(4):
                A(f"v_add_f32 {vL[r]}, {vL[r]}, {S[i]}")
            for k in range(2):
                A(f"v_cvt_pk_bf16_f32 {Pf[r][2 * a + k]}, {S[2 * k]}, {S[2 * k + 1]}")
    A("s_nop 3")
    for tt in range(16):
        for s in range(2):
            base = rv0 if (tt & 1) == 0 else rv1
            off = 16384 + (tt >> 3) * 8192 + s * 4096 + ((tt & 7) >> 1) * 256
            A(f"ds_read_b64_tr_b16 {VFf[tt & 1][2 * s:2 * s + 2]}, {base} offset:{off}")
        A("s_waitcnt lgkmcnt(0)")
        for r in range(3):
            A(f"v_mfma_f32_16x16x32_bf16 {O[r][tt]}, {VFf[tt & 1]}, {Pf[r]}, {O[r][tt]}")
    A("s_nop 15")
    A(f"s_add_u32 s{sT0}, s{sT0}, 16384")
    A(f"s_cmp_lt_u32 s{sT0}, 262144")
    A("s_cbranch_scc1 L_fb2")
    for r in range(3):
        xl("v_add_f32", vL[r], t[4])
        A(f"v_rcp_f32 {vRL[r]}, {vL[r]}")
    A("s_nop 3")
    for T in range(8):
        for r in range(3):
            X, Y = O[r][2 * T], O[r][2 * T + 1]
            src = [X[i] for i in range(4)] + [Y[i] for i in range(4)]
            if X.f == "a":
                for i in range(8):
                    A(f"v_accvgpr_read_b32 {tmp8[i]}, {src[i]}")
                src = [tmp8[i] for i in range(8)]
            for i in range(8):
                A(f"v_mul_f32 {src[i]}, {src[i]}, {vRL[r]}")
            D = vS[(3 * T + r) % NSB]
            for k in range(4):
                A(f"v_cvt_pk_bf16_f32 {D[k]}, {src[2 * k]}, {src[2 * k + 1]}")
            A("s_nop 1")
            A(f"v_permlane16_swap_b32 {D[0]}, {D[2]}")
            A(f"v_permlane16_swap_b32 {D[1]}, {D[3]}")
            A(f"buffer_store_dwordx4 {D}, {so[r]}, s[{sO}:{sO + 3}], 0 offen offset:{64 * T}")
    A("s_waitcnt vmcnt(0)")
    return L


HEADER = """; GQA attention forward, B=8 Hq=16 Hkv=8 Sq=368 Sk=512 D=256, bf16 (emitted by my own generator script)
; and a wave with a sum above 2^64 recomputes its rows with the true row maximum (L_fallback).
; @launch grid=(256,1,1) block=(256,1,1) lds=163840
.amdgcn_target "amdgcn-amd-amdhsa--gfx950"
.text
.globl {k}
.p2align 8
.type {k},@function
{k}:
"""

FOOTER = """L_end:
    s_endpgm
.section .rodata,"a"
.p2align 6
.amdhsa_kernel {k}
  .amdhsa_next_free_vgpr 512
  .amdhsa_next_free_sgpr 102
  .amdhsa_accum_offset 256
  .amdhsa_group_segment_fixed_size 0
  .amdhsa_kernarg_size 48
  .amdhsa_user_sgpr_count 2
  .amdhsa_user_sgpr_kernarg_segment_ptr 1
  .amdhsa_system_sgpr_workgroup_id_x 1
.end_amdhsa_kernel
"""


def render(cfg, prog):
    s = HEADER.format(k=KNAME)
    if cfg.stamps and cfg.spin == -1:
        s = "; stamps: " + " ".join(n + ("*" if r else "") for n, r in cfg.stamp_names) + "\n" + s
    for o in prog:
        s += (o.text if o.kind == "label" else "    " + o.text) + "\n"
    s += "    s_endpgm\nL_mainend:\n"
    for l in fallback(cfg):
        s += (l if l.endswith(":") else "    " + l) + "\n"
    s += FOOTER.format(k=KNAME)
    return s


def addresses(text, n):
    import subprocess, re, tempfile, os
    d = tempfile.mkdtemp()
    open(d + "/x.s", "w").write(text)
    subprocess.run(["clang", "-x", "assembler", "-target", "amdgcn-amd-amdhsa", "-mcpu=gfx950", "-c",
                    d + "/x.s", "-o", d + "/x.o"], check=True)
    out = subprocess.run(["llvm-objdump", "-d", "--mcpu=gfx950", d + "/x.o"], capture_output=True, text=True).stdout
    return [int(m.group(1), 16) for m in re.finditer(r"// ([0-9A-F]+):", out)][:n]


def add_walk(cfg, prog):
    iw = next(i for i, o in enumerate(prog) if o.text == "WALK")
    head, body = prog[:iw], prog[iw + 1:]
    lab = lambda t: Op(t, "label")
    raw = lambda t: Op(t, "raw")
    stubs = []
    for it in range(20):
        b2 = []
        for i, o in enumerate(body):
            if i in stubs:
                k = stubs.index(i)
                b2.append(lab(f"L_pg{k}:"))
                b2.append(raw(f"s_cbranch_execz L_wr{k}"))
            b2.append(o)
        npg = len(stubs)
        walk = [raw("s_mov_b64 exec, 0")]
        for w in range(4):
            if w < npg:
                walk += [raw(f"s_cmp_eq_u32 s{sW}, {w}"), raw(f"s_cbranch_scc1 L_pg{w}")]
        walk.append(raw("s_branch L_wdone"))
        for k in range(npg):
            walk.append(lab(f"L_wr{k}:"))
            walk.append(raw(f"s_branch L_pg{k + 4}" if k + 4 < npg else "s_branch L_wdone"))
        walk += [lab("L_wdone:"), raw("s_mov_b64 exec, -1")]
        full = head + walk + b2
        ins = [o for o in full if o.kind != "label"]
        addr = addresses(render(cfg, full), len(ins))
        amap = {id(o): a + cfg.base_off for o, a in zip(ins, addr)}
        want = []
        prev = amap[id(body[0])] // 4096
        for i, o in enumerate(body):
            if o.kind == "label":
                continue
            pg = amap[id(o)] // 4096
            if pg != prev:
                j = i
                for jj in range(i, min(i + cfg.walk_win, len(body))):
                    if body[jj - 1].kind == "mfma" and amap[id(body[jj - 1])] // 4096 == pg and body[jj].kind not in ("salu", "wait", "barrier"):
                        j = jj
                        break
                want.append(j)
                prev = pg
        if want == stubs:
            return full
        stubs = want
    return full


def emit(cfg):
    prog, info = build(cfg)
    if cfg.walk:
        prog = add_walk(cfg, prog)
    return render(cfg, prog), info


Cfg.walk = True
Cfg.walk_win = 8
Cfg.base_off = 0x1e00
Cfg.spin_name = ""
Cfg.stamp_every = 1
Cfg.pkfrom = 7
Cfg.defer = 3
Cfg.kdouble = False
Cfg.spf = 1.5
Cfg.xf = 0.4
Cfg.xlead = 48
Cfg.dma_lead = 0
Cfg.head = "K0,Q0,K1,pf,K2,|,K3,Q1a"
Cfg.head_a = "Q1b"
Cfg.head_a2 = "Q2a"
Cfg.head_c = "Q2b,K4"
Cfg.head_0 = "V0"
Cfg.dma_cap = 12
Cfg.dma_win = 110
Cfg.join_order = "cGcGGGc"
Cfg.p7_order = "cGGGG"
Cfg.stg_bar = 14
Cfg.stg_n = 2
Cfg.sp7 = 1.3333
Cfg.sp2 = 1.3333
Cfg.x15 = 3
Cfg.x15_lead = 16
Cfg.x8 = 6
Cfg.x9 = 2
Cfg.xmem = 2
Cfg.exp_age = 3
Cfg.q2_before = "K5"
Cfg.dma_sp_fast = 3
Cfg.tail_extra = 3
Cfg.p7_extra = 0
Cfg.stag2 = ""
Cfg.stag_sh = 6
Cfg.stagger = ""
Cfg.cls_shift = 6
Cfg.cls_mask = 0

if __name__ == "__main__":
    ap = argparse.ArgumentParser()
    ap.add_argument("-o", default="standalone__gqa_softmax__near_ridge.s")
    ap.add_argument("-v", action="store_true")
    ap.add_argument("opts", nargs="*")
    a = ap.parse_args()
    cfg = Cfg()
    cfg.verbose = a.v
    for kv in a.opts:
        k, v = kv.split("=", 1)
        if k == "spin":
            cfg.spin, cfg.spin_name, cfg.stamps = 1, v, True
            continue
        old = getattr(cfg, k)
        if isinstance(old, bool):
            v = v in ("1", "true", "True")
        elif isinstance(old, int):
            v = int(v)
        elif isinstance(old, float):
            v = float(v)
        setattr(cfg, k, v.replace("+", " ") if isinstance(v, str) else v)
    s, info = emit(cfg)
    open(a.o, "w").write(s)
    print(info, len(s))
```

```python
class Op:
    __slots__ = ("text", "kind", "reads", "writes", "deps", "earliest", "deadline", "tag",
                 "pos", "gap", "pre", "meta", "nbytes")

    def __init__(self, text, kind, reads=(), writes=(), tag="", meta=None):
        self.text = text
        self.kind = kind
        self.reads = frozenset(reads)
        self.writes = frozenset(writes)
        self.deps = []
        self.earliest = -1
        self.deadline = 1 << 30
        self.tag = tag
        self.pos = None
        self.gap = None
        self.pre = []
        self.meta = meta or {}

    def __repr__(self):
        return f"<{self.kind} {self.text}>"


def R(prefix, lo, n=1):
    return [f"{prefix}{lo + i}" for i in range(n)]


def rng(prefix, lo, n):
    if n == 1:
        return f"{prefix}{lo}"
    return f"{prefix}[{lo}:{lo + n - 1}]"


class Reg:
    def __init__(self, f, lo, n):
        self.f, self.lo, self.n = f, lo, n

    def __getitem__(self, i):
        if isinstance(i, slice):
            a = i.start or 0
            b = i.stop if i.stop is not None else self.n
            assert 0 <= a < b <= self.n
            return Reg(self.f, self.lo + a, b - a)
        assert 0 <= i < self.n
        return Reg(self.f, self.lo + i, 1)

    def __str__(self):
        return rng(self.f, self.lo, self.n)

    @property
    def names(self):
        return R(self.f, self.lo, self.n)


VM_KINDS = ("dma", "vload", "vstore")
VALU_KINDS = ("valu", "trans")


def insert_waits(prog, verbose=False):
    out = []
    lg = []
    vm = []
    lg_done = 0
    vm_done = 0
    pend = {}
    nwaits = 0

    def last_mfma_pos(skip=0):
        for k in range(len(out) - 1, -1, -1):
            if out[k].kind == "mfma":
                if skip == 0:
                    return k
                skip -= 1
            if out[k].kind in ("label", "branch"):
                return None
        return None

    for op in prog:
        need_lg = lg_done
        need_vm = vm_done
        for r in (op.reads | op.writes):
            if r in pend:
                c, idx = pend[r]
                if c == "lg":
                    need_lg = max(need_lg, idx + 1)
                else:
                    need_vm = max(need_vm, idx + 1)
        for d in op.meta.get("need_vm", ()):
            need_vm = max(need_vm, d.meta["vm_idx"] + 1)
        for d in op.meta.get("need_lgkm", ()):
            need_lg = max(need_lg, d.meta["lg_idx"] + 1)
        if need_lg > lg_done or need_vm > vm_done:
            at = len(out)
            nlg, nvm = len(lg), len(vm)
            if op.kind == "mfma" or op.meta.get("hoist_wait"):
                k = last_mfma_pos(1 if op.kind == "barrier" else 0)
                if k is not None:
                    lg_after = sum(1 for x in out[k + 1:] if x.kind == "ds")
                    vm_after = sum(1 for x in out[k + 1:] if x.kind in VM_KINDS)
                    if need_lg <= len(lg) - lg_after and need_vm <= len(vm) - vm_after:
                        at = k + 1
                        nlg -= lg_after
                        nvm -= vm_after
            parts = []
            if need_vm > vm_done:
                cnt = nvm - need_vm
                assert cnt <= 63
                parts.append(f"vmcnt({cnt})")
                vm_done = need_vm
            if need_lg > lg_done:
                cnt = min(nlg - need_lg, 15)
                parts.append(f"lgkmcnt({cnt})")
                lg_done = nlg - cnt
            w = Op("s_waitcnt " + " ".join(parts), "wait")
            if at < len(out) and out[at].kind == "wait" and not out[at].meta.get("fixed"):
                old = out[at].text.split()[1:]
                d = {}
                for p in old + parts:
                    name, val = p[:-1].split("(")
                    d[name] = min(int(val), d.get(name, 99))
                out[at] = Op("s_waitcnt " + " ".join(f"{n}({v})" for n, v in sorted(d.items(), reverse=True)), "wait")
            else:
                out.insert(at, w)
                nwaits += 1
            for r in list(pend):
                c, idx = pend[r]
                if (c == "lg" and idx < lg_done) or (c == "vm" and idx < vm_done):
                    del pend[r]
        if op.kind == "wait" and op.meta.get("all"):
            lg_done = len(lg)
            vm_done = len(vm)
            pend.clear()
        if op.kind == "wait" and op.meta.get("lg_all"):
            lg_done = len(lg)
            for r in list(pend):
                if pend[r][0] == "lg":
                    del pend[r]
        out.append(op)
        if op.kind == "ds":
            op.meta["lg_idx"] = len(lg)
            for r in op.writes:
                pend[r] = ("lg", len(lg))
            lg.append(op)
        elif op.kind in VM_KINDS:
            op.meta["vm_idx"] = len(vm)
            if op.kind == "vload":
                for r in op.writes:
                    pend[r] = ("vm", len(vm))
            vm.append(op)
        if op.kind == "barrier":
            op.meta["lg_done_at"] = lg_done
            op.meta["vm_done_at"] = vm_done
    if verbose:
        print("waits inserted:", nwaits)
    return out


def states_of(op):
    if op.text.startswith("s_nop"):
        return int(op.text.split()[1]) + 1
    if op.kind == "label":
        return 0
    return 1


def fix_hazards(prog, verbose=False):
    out = []
    added = 0

    def dist_back(pred, maxd):
        d = 0
        for k in range(len(out) - 1, -1, -1):
            x = out[k]
            if pred(x):
                return d
            d += states_of(x)
            if d >= maxd:
                return None
        return None

    for op in prog:
        need = 0

        def req(pred, n):
            nonlocal need
            d = dist_back(pred, n)
            if d is not None:
                need = max(need, n - d)

        rw = op.reads | op.writes
        if op.kind in VALU_KINDS or op.kind in ("ds", "dma", "vload", "vstore"):
            req(lambda x: x.kind == "mfma" and (x.writes & rw), 8)
        if op.kind in VALU_KINDS:
            req(lambda x: x.kind == "mfma" and (x.meta.get("srcc", frozenset()) & op.writes), 3)
            if op.kind != "trans":
                req(lambda x: x.kind == "trans" and (x.writes & op.reads), 1)
            req(lambda x: x.kind == "vstore" and (x.meta.get("data", frozenset()) & op.writes), 2)
            req(lambda x: x.kind in VALU_KINDS and any(r[0] == "s" and r in op.reads for r in x.writes), 2)
            if "permlane" in op.text:
                req(lambda x: x.kind in VALU_KINDS and (x.writes & op.reads), 2)
            if "readfirstlane" in op.text or "readlane" in op.text:
                req(lambda x: x.kind in VALU_KINDS and (x.writes & op.reads), 1)
            if "dpp" in op.text:
                req(lambda x: x.kind in VALU_KINDS and (x.writes & op.reads), 2)
        if op.kind in ("ds", "vload"):
            req(lambda x: x.kind == "vstore" and (x.meta.get("data", frozenset()) & op.writes), 1)
        if op.kind == "mfma":
            req(lambda x: x.kind in VALU_KINDS and (x.writes & op.reads), 2)
            ab = op.meta["srcab"]
            c = op.meta.get("srcc", frozenset())
            req(lambda x: x.kind == "mfma" and (x.writes & ab), 8)
            req(lambda x: x.kind == "mfma" and (x.writes & c) and x.writes != c, 6)
            req(lambda x: x.kind == "mfma" and (x.writes & op.writes) and x.writes != c, 8)
        if op.kind in VM_KINDS:
            req(lambda x: x.kind in VALU_KINDS and any(r[0] == "s" and r in op.reads for r in x.writes), 5)
        if op.kind == "dma":
            req(lambda x: x.kind == "salu" and "m0" in x.writes, 1)
        if op.kind in ("salu", "branch"):
            req(lambda x: x.kind in VALU_KINDS and any(r[0] == "s" and r in op.reads for r in x.writes), 4)
        if need:
            n = need
            while n > 0:
                k = min(n, 16)
                out.append(Op(f"s_nop {k - 1}", "salu"))
                n -= k
            added += need
            if verbose:
                print(f"  hazard pad {need} before {op.text}")
        out.append(op)
    return out, added


def estimate_cycles(prog):
    t = 0
    vec_free = 0
    mfma_free = 0
    last_mfma = -100
    last_valu = -100
    mfma_block = 0
    nvec_prev = nvec = 0
    for op in prog:
        k = op.kind
        if k == "label":
            continue
        if k == "mfma":
            t = max(t, mfma_free, vec_free, mfma_block)
            mfma_free = t + 16
            vec_free = t + 8
            last_mfma = t
            t += 4
            nvec_prev, nvec = nvec, 0
        elif k in ("salu", "wait", "barrier", "branch", "raw"):
            t += 4 * states_of(op)
        elif k == "trans":
            t = max(t, vec_free)
            last_valu = t
            t += 8
            nvec += 2
        elif k == "valu":
            t = max(t, vec_free)
            if op.meta.get("pk"):
                t = max(t, last_mfma + 28)
            last_valu = t
            t += 4
            nvec += 1
        else:
            t = max(t, vec_free, last_valu + 8)
            mfma_block = max(mfma_block, t + 8)
            if op.text.startswith("ds_write"):
                t += 8
            elif k == "vstore":
                mfma_block = t + 25
            elif k == "dma" and nvec_prev >= 2:
                mfma_block = t + 12
            t += 4
            nvec += 1
    return t


def spread_scalars(prog):
    idx = [i for i, o in enumerate(prog) if o.kind == "mfma"]
    gaps = [prog[a + 1:b] for a, b in zip(idx, idx[1:])]
    SC = ("salu", "wait", "barrier")
    cost = lambda gp: sum(2 if o.kind == "trans" else 1 for o in gp if o.kind not in SC and o.kind != "label")
    nsc = lambda gp: sum(1 for o in gp if o.kind in SC)
    moved = 0
    for g in range(4, len(gaps)):
        gp = gaps[g]
        if len(gp) > 5 or nsc(gp) < 2 or cost(gp) + nsc(gp) <= 3:
            continue
        cand = [o for o in gp if o.kind == "salu" and (("m0" in o.writes) or o.text.startswith("s_mov_b32 s"))]
        for o in cand:
            for h in range(g - 1, g - 5, -1):
                hp = gaps[h]
                if any(x.kind == "dma" and (x.reads & o.writes) for x in hp) or len(hp) > 4:
                    break
                if nsc(hp) == 0 or cost(hp) + nsc(hp) < 3:
                    gp.remove(o)
                    hp.insert(0, o)
                    moved += 1
                    break
            if nsc(gp) < 2:
                break
    out = list(prog[:idx[0] + 1])
    for gp, b in zip(gaps, idx[1:]):
        out += gp
        out.append(prog[b])
    out += prog[idx[-1] + 1:]
    return out, moved
```

```python
import sys, math, argparse, struct
sys.path.insert(0, __file__.rsplit("/", 1)[0])
from ir import *

KNAME = "standalone__gqa_softmax__near_ridge_kernel"
C_SCALE = math.log2(math.e) / 16.0


def f2u(x):
    return struct.unpack("<I", struct.pack("<f", x))[0]


class Cfg:
    ldq = "nt"
    ldkv = "nt"
    ldkv0 = ""
    st = "sc1"
    lat = 6
    age = 5
    sready = 4
    stamps = False
    dbg = False
    spin = -1
    spinwg = -1
    codepf = True
    force_fallback = False
    dma_sp = 6
    preflush = True
    y = 2
    pk = True
    verbose = False


sQ, sK, sV, sO = 12, 16, 20, 24
sW1K = 28
sC = 29
sKoff = 30
sVoff = 31
sT0, sT1, sT2, sT3 = 32, 33, 34, 35
sW = 36
sThr = 37
sW8K = 38
sCls = 39
sFlag = 40
sDBG = 44
vKR = [Reg("v", 1, 1), Reg("v", 2, 1), Reg("v", 3, 1)]
vVR = [[Reg("v", 4 + 3 * h + w, 1) for w in range(3)] for h in range(2)]
vDK = [Reg("v", 10, 1), Reg("v", 11, 1)]
vDV = [Reg("v", 12 + a, 1) for a in range(4)]
vST = [[Reg("v", 10 + 2 * r + k, 1) for k in range(2)] for r in range(3)]
vL = [Reg("v", 16 + r, 1) for r in range(3)]
vST0 = Reg("v", 19, 1)
vNM = [Reg("v", 20 + 2 * r, 1) for r in range(3)]
vRL = vNM
vSR = Reg("v", 21, 1)
vSW = [Reg("v", 23, 1), Reg("v", 25, 1), Reg("v", 26, 1), Reg("v", 27, 1)]
vXT = [Reg("v", 28 + r, 1) for r in range(3)]
vQR = Reg("v", 31, 1)
NSB = 6
vS = [Reg("v", 32 + 4 * i, 4) for i in range(NSB)]
vP = [[[Reg("v", 56 + 24 * b + 8 * r + 4 * kc, 4) for kc in range(2)] for r in range(3)] for b in range(3)]
vT = Reg("v", 32, 12)
vX = Reg("v", 44, 2)
O = [[Reg("v", 128 + 4 * t, 4) for t in range(16)],
     [Reg("v", 192 + 4 * t, 4) for t in range(16)],
     [Reg("a", 4 * t, 4) for t in range(16)]]
preK = [[Reg("v", 128 + 32 * a + 4 * c, 4) for c in range(8)] for a in range(4)] + \
       [[Reg("a", base + 4 * c, 4) for c in range(8)] for base in (0, 32, 192, 224)]
Q = [[Reg("a", 64 + 32 * r + 4 * c, 4) for c in range(8)] for r in range(3)]
KF = [[Reg("a", 160 + 4 * c, 4) for c in range(8)], [Reg("a", 224 + 4 * c, 4) for c in range(8)]]
VFB = [192 + 8 * b for b in range(4)]

SLOT = 16384
STG = 528
FR = (0, 2, 3, 1)


def sn(i, n=1):
    return R("s", i, n)


def valu(text, reads=(), writes=(), tag=""):
    return Op(text, "valu", reads, writes, tag)


def salu(text, reads=(), writes=()):
    return Op(text, "salu", reads, writes)


def names(*regs):
    out = []
    for r in regs:
        out += r.names if isinstance(r, Reg) else [r]
    return out


def mfma(D, A, B, C=None):
    c = str(C) if C is not None else "0"
    op = Op(f"v_mfma_f32_16x16x32_bf16 {D}, {A}, {B}, {c}", "mfma",
            names(A, B) + (C.names if C is not None else []), D.names)
    op.meta["srcab"] = frozenset(names(A, B))
    op.meta["srcc"] = frozenset(C.names) if C is not None else frozenset()
    return op


def dma(vaddr, srd, soff, imm, pol):
    so = f"s{soff}" if soff is not None else "0"
    t = f"buffer_load_dwordx4 {vaddr}, s[{srd}:{srd + 3}], {so} offen"
    if imm:
        t += f" offset:{imm}"
    if pol:
        t += " " + pol
    t += " lds"
    return Op(t, "dma", vaddr.names + sn(srd, 4) + (sn(soff) if soff is not None else []) + ["m0"], [])


def set_m0(const, base=sW1K):
    return salu(f"s_add_u32 m0, s{base}, {const}", sn(base), ["m0", "scc"])


class Unit:
    def __init__(self, kind, n, cfg):
        self.kind, self.n, self.cfg = kind, n, cfg
        self.slot = None
        self.nslots = 2 if kind == "Q" else 1
        self.dmas = []
        self.reads = []
        self.vis = None
        self.name = f"{kind}{n}"

    def make_dmas(self, vq=None):
        cfg = self.cfg
        ops = []
        base = self.slot * SLOT
        src = self.n % 16
        pol = cfg.ldkv
        if self.kind == "K":
            so = salu(f"s_mov_b32 s{sKoff}, {src * 16384}", [], sn(sKoff))
            for a in range(2):
                for half in range(2):
                    d = dma(vDK[a], sK, sKoff, half * 256, pol)
                    d.pre = [set_m0(base + a * 8192 + half * 4096 - half * 256)]
                    ops.append(d)
            ops[0].pre.insert(0, so)
        elif self.kind == "V":
            j, h = divmod(src, 2)
            so = salu(f"s_mov_b32 s{sVoff}, {j * 32768 + h * 256}", [], sn(sVoff))
            for a in range(4):
                d = dma(vDV[a], sV, sVoff, 0, pol)
                d.pre = [set_m0(base + a * 4096)]
                ops.append(d)
            ops[0].pre.insert(0, so)
        else:
            for half in range(2):
                for rg in range(4):
                    d = dma(vq[rg], sQ, None, half * 256, cfg.ldq)
                    d.pre = [set_m0(base + half * 4096 + rg * 1024 - half * 256, sW8K)]
                    ops.append(d)
        for d in ops:
            d.meta["unit"] = self
        self.dmas = ops
        return ops


def flat_dmas(ops):
    out = []
    for d in ops:
        out += d.pre
        out.append(salu("s_nop 0"))
        out.append(d)
        d.pre = []
    return out


def xlane(op, x, tmp):
    o = []
    o.append(valu(f"v_mov_b32 {tmp}, {x}", x.names, tmp.names))
    o.append(valu(f"v_permlane32_swap_b32 {x}, {tmp}", names(x, tmp), names(x, tmp)))
    o.append(valu(f"{op} {x}, {x}, {tmp}", names(x, tmp), x.names))
    o.append(valu(f"v_mov_b32 {tmp}, {x}", x.names, tmp.names))
    o.append(valu(f"v_permlane16_swap_b32 {x}, {tmp}", names(x, tmp), names(x, tmp)))
    o.append(valu(f"{op} {x}, {x}, {tmp}", names(x, tmp), x.names))
    return o


class Stamps:
    def __init__(self, cfg):
        self.cfg = cfg
        self.list = []

    def __call__(self, name, real=False):
        cfg = self.cfg
        if not cfg.stamps:
            return []
        if cfg.spin != -1:
            if name != cfg.spin_name:
                return []
            return [Op("s_memrealtime s[48:49]", "salu")]
        k = len(self.list)
        assert 48 + 2 * k + 1 <= 101, "too many stamps"
        self.list.append((name, real))
        return [Op(f"{'s_memrealtime' if real else 's_memtime'} s[{48 + 2 * k}:{49 + 2 * k}]", "salu")]

    def finish(self):
        cfg = self.cfg
        o = []
        raw = lambda t: o.append(Op(t, "raw"))
        if not cfg.stamps:
            return o
        raw("s_waitcnt lgkmcnt(0)")
        if cfg.spin != -1:
            if cfg.spinwg >= 0:
                raw(f"s_cmp_lg_u32 s2, {cfg.spinwg}")
                raw("s_cbranch_scc1 L_end")
            o.append(Op("L_spin:", "label"))
            raw("s_memrealtime s[50:51]")
            raw("s_waitcnt lgkmcnt(0)")
            raw("s_sub_u32 s50, s50, s48")
            raw("s_cmp_lt_u32 s50, 5000")
            raw("s_cbranch_scc1 L_spin")
            return o
        raw("v_mov_b32 v40, 0")
        for k in range(len(self.list)):
            raw(f"v_writelane_b32 v40, s{48 + 2 * k}, {k}")
        raw(f"s_load_dwordx2 s[{sDBG}:{sDBG + 1}], s[0:1], 40")
        raw(f"s_mov_b32 s{sDBG + 2}, 0x1000000")
        raw(f"s_mov_b32 s{sDBG + 3}, 0x00020000")
        raw("s_lshl_b32 s48, s2, 8")
        raw("v_add_u32 v41, s48, v0")
        raw("v_lshlrev_b32 v41, 2, v41")
        raw("s_waitcnt lgkmcnt(0)")
        raw(f"buffer_store_dword v40, v41, s[{sDBG}:{sDBG + 3}], 0 offen")
        return o


def prologue(cfg, U, stamp):
    P = []
    A = P.append
    raw = lambda t: A(Op(t, "raw"))
    raw("s_cmp_ge_u32 s2, 256")
    raw("s_cbranch_scc1 L_end")
    raw("s_load_dwordx4 s[4:7], s[0:1], 0")
    raw("s_load_dwordx4 s[8:11], s[0:1], 16")
    P += stamp("start", True)
    t = vT
    lane, wv, common, cpos, f_w = t[0], t[1], t[2], t[3], t[4]
    if cfg.codepf:
        raw("s_getpc_b64 s[42:43]")
        A(Op("L_pfbase:", "label"))
        A(valu(f"v_lshlrev_b32 {t[10]}, 7, v0", ["v0"], t[10].names))
        A(Op(f"global_load_dword {vX[0]}, {t[10]}, s[42:43]", "vload", t[10].names, vX[0].names))
    A(valu(f"v_lshrrev_b32 {wv}, 6, v0", ["v0"], wv.names))
    A(valu(f"v_and_b32 {lane}, 63, v0", ["v0"], lane.names))
    A(valu(f"v_readfirstlane_b32 s{sW}, {wv}", wv.names, sn(sW)))
    A(salu(f"s_and_b32 s{sT0}, s2, 7", [], sn(sT0)))
    A(salu(f"s_lshr_b32 s{sT1}, s2, 5", [], sn(sT1)))
    A(salu(f"s_lshl3_add_u32 s{sT0}, s{sT1}, s{sT0}", [], sn(sT0)))
    A(salu(f"s_bfe_u32 s{sT1}, s2, 0x20003", [], sn(sT1)))
    A(salu(f"s_lshl2_add_u32 s{sT2}, s{sT0}, s{sT1}", [], sn(sT2)))
    A(salu(f"s_mul_i32 s{sT2}, s{sT2}, {184 * 512}", [], sn(sT2)))
    A(salu(f"s_lshl_b32 s{sT0}, s{sT0}, 18", [], sn(sT0)))
    A(valu(f"v_bfe_u32 {t[6]}, {lane}, 2, 2", lane.names, t[6].names))
    A(valu(f"v_lshrrev_b32 {t[5]}, 4, {lane}", lane.names, t[5].names))
    A(valu(f"v_lshlrev_b32 {common}, 9, {t[6]}", t[6].names, common.names))
    A(valu(f"v_lshl_add_u32 {common}, {t[5]}, 6, {common}", names(t[5], common), common.names))
    A(valu(f"v_and_b32 {cpos}, 3, {lane}", lane.names, cpos.names))
    A(salu(f"s_lshl_b32 s{sT1}, s{sW}, 1", sn(sW), sn(sT1)))
    A(salu(f"s_lshr_b32 s{sT1}, 0x78, s{sT1}", [], sn(sT1)))
    A(salu(f"s_and_b32 s{sT1}, s{sT1}, 3", [], sn(sT1)))
    A(salu(f"s_lshl_b32 s{sW1K}, s{sW}, 10", sn(sW), sn(sW1K)))
    A(salu(f"s_lshl_b32 s{sW8K}, s{sW}, 13", sn(sW), sn(sW8K)))
    A(valu(f"v_xor_b32 {f_w}, s{sT1}, {cpos}", cpos.names, f_w.names))
    A(valu(f"v_lshl_add_u32 {t[7]}, {wv}, 11, {common}", names(wv, common), t[7].names))
    A(valu(f"v_lshl_add_u32 {vDK[0]}, {f_w}, 4, {t[7]}", names(f_w, t[7]), vDK[0].names))
    A(valu(f"v_add_u32 {vDK[1]}, 8192, {vDK[0]}", vDK[0].names, vDK[1].names))
    vq = [[Reg("v", 104 + 4 * r + rg, 1) for rg in range(4)] for r in range(3)]
    qb = Reg("v", 116, 1)
    A(salu(f"s_mov_b32 s{sT3}, {48 * 512}", [], sn(sT3)))
    A(valu(f"v_mad_u32_u24 {qb}, {wv}, s{sT3}, {common}", names(wv, common), qb.names))
    for rg in range(4):
        x = Reg("v", 117, 1)
        A(valu(f"v_xor_b32 {x}, {FR[rg]}, {cpos}", cpos.names, x.names))
        A(valu(f"v_lshl_add_u32 {vq[0][rg]}, {x}, 4, {qb}", names(x, qb), vq[0][rg].names))
        if rg:
            A(valu(f"v_add_u32 {vq[0][rg]}, {rg * 2048}, {vq[0][rg]}", vq[0][rg].names, vq[0][rg].names))
    A(Op("s_waitcnt lgkmcnt(0)", "wait", meta={"fixed": True}))
    P += stamp("karg", True)

    def srd(srd, p, off, nrec):
        A(salu(f"s_add_u32 s{srd}, s{p}, s{off}", [], sn(srd)))
        A(salu(f"s_addc_u32 s{srd + 1}, s{p + 1}, 0", [], sn(srd + 1)))
        A(salu(f"s_mov_b32 s{srd + 2}, {nrec}", [], sn(srd + 2)))
        A(salu(f"s_mov_b32 s{srd + 3}, 0x00020000", [], sn(srd + 3)))

    def vaddr():
        A(valu(f"v_and_b32 {t[9]}, 1, {wv}", wv.names, t[9].names))
        A(valu(f"v_lshlrev_b32 {t[9]}, 1, {t[9]}", t[9].names, t[9].names))
        A(valu(f"v_xor_b32 {t[9]}, {t[9]}, {cpos}", names(t[9], cpos), t[9].names))
        A(valu(f"v_lshl_add_u32 {vDV[0]}, {t[9]}, 4, {t[7]}", names(t[9], t[7]), vDV[0].names))
        for a in range(1, 4):
            A(valu(f"v_add_u32 {vDV[a]}, {8192 * a}, {vDV[0]}", vDV[0].names, vDV[a].names))

    def codepf2():
        if cfg.codepf:
            A(valu(f"v_add_u32 {t[10]}, 32768, {t[10]}", t[10].names, t[10].names))
            A(valu(f"v_min_u32 {t[10]}, L_mainend - L_pfbase, {t[10]}", t[10].names, t[10].names))
            A(Op(f"global_load_dword {vX[1]}, {t[10]}, s[42:43]", "vload", t[10].names, vX[1].names))

    def cwait(k):
        raw(f"s_cmp_lt_u32 s{sCls}, {k}")
        raw(f"s_cbranch_scc1 L_nw{k}")
        raw("s_waitcnt vmcnt(0)")
        A(Op(f"L_nw{k}:", "label"))

    srd(sK, 6, sT0, 262144)
    srd(sQ, 4, sT2, 184 * 512)
    if cfg.stag2:
        raw(f"s_lshr_b32 s{sCls}, s2, 5")
        raw(f"s_lshl_b32 s{sCls}, s{sCls}, 2")
        raw(f"s_lshr_b32 s{sCls}, {cfg.stag2}, s{sCls}")
        raw(f"s_and_b32 s{sCls}, s{sCls}, 15")
        raw(f"s_cbranch_scc0 L_go")
        raw(f"v_lshlrev_b32 {t[9]}, {cfg.stag_sh}, v0")
        raw(f"s_mov_b32 s{sKoff}, 0")
        A(Op("L_warm:", "label"))
        raw(f"buffer_load_dword {t[8]}, {t[9]}, s[{sK}:{sK + 3}], s{sKoff} offen {cfg.ldkv}")
        raw(f"s_add_u32 s{sKoff}, s{sKoff}, {256 << cfg.stag_sh}")
        raw(f"s_sub_u32 s{sCls}, s{sCls}, 1")
        raw("s_waitcnt vmcnt(0)")
        raw(f"s_cmp_lg_u32 s{sCls}, 0")
        raw("s_cbranch_scc1 L_warm")
        A(Op("L_go:", "label"))
    seq = cfg.head.split(",")

    def issue(x):
        if x == "pf":
            codepf2()
        else:
            if x[:2] in ("Q1", "Q2"):
                qaddr12()
            P.extend(head_dmas(U, x, vq))

    done12 = []

    def qaddr12():
        if not done12:
            done12.append(1)
            for r in (1, 2):
                for rg in range(4):
                    A(valu(f"v_add_u32 {vq[r][rg]}, {8192 * r}, {vq[0][rg]}", vq[0][rg].names, vq[r][rg].names))

    cut = seq.index("|")
    for x in seq[:cut]:
        issue(x)
    srd(sV, 8, sT0, 262144)
    srd(sO, 10, sT2, 184 * 512)
    vaddr()
    g = t[5]
    A(valu(f"v_lshlrev_b32 {t[10]}, 1, {t[6]}", t[6].names, t[10].names))
    A(valu(f"v_lshrrev_b32 {t[10]}, {t[10]}, 0x78".replace("0x78", str(t[11])), names(t[10], t[11]), t[10].names))
    P.insert(len(P) - 1, valu(f"v_mov_b32 {t[11]}, 0x78", [], t[11].names))
    A(valu(f"v_and_b32 {t[10]}, 3, {t[10]}", t[10].names, t[10].names))
    A(valu(f"v_xor_b32 {t[10]}, {t[10]}, {g}", names(t[10], g), t[10].names))
    A(valu(f"v_lshlrev_b32 {t[10]}, 4, {t[10]}", t[10].names, t[10].names))
    A(valu(f"v_lshl_add_u32 {t[10]}, {t[6]}, 10, {t[10]}", names(t[6], t[10]), t[10].names))
    A(valu(f"v_lshl_add_u32 {vKR[0]}, {cpos}, 6, {t[10]}", names(cpos, t[10]), vKR[0].names))
    A(valu(f"v_add_u32 {vKR[1]}, 0x10000, {vKR[0]}", vKR[0].names, vKR[1].names))
    A(valu(f"v_add_u32 {vKR[2]}, 0x20000, {vKR[0]}", vKR[0].names, vKR[2].names))
    A(valu(f"v_lshlrev_b32 {t[10]}, 10, {g}", g.names, t[10].names))
    A(valu(f"v_lshl_add_u32 {t[10]}, {t[6]}, 6, {t[10]}", names(t[6], t[10]), t[10].names))
    A(valu(f"v_lshl_add_u32 {t[10]}, {cpos}, 3, {t[10]}", names(cpos, t[10]), t[10].names))
    A(valu(f"v_and_b32 {t[11]}, 1, {g}", g.names, t[11].names))
    A(valu(f"v_lshl_add_u32 {vVR[0][0]}, {t[11]}, 5, {t[10]}", names(t[11], t[10]), vVR[0][0].names))
    A(valu(f"v_xor_b32 {vVR[1][0]}, 32, {vVR[0][0]}", vVR[0][0].names, vVR[1][0].names))
    for h in range(2):
        for w in (1, 2):
            A(valu(f"v_add_u32 {vVR[h][w]}, {w * 65536}, {vVR[h][0]}", vVR[h][0].names, vVR[h][w].names))
    n15 = t[11]
    x0, x1, x2 = Reg("v", 118, 1), Reg("v", 119, 1), Reg("v", 120, 1)
    A(valu(f"v_and_b32 {n15}, 15, {lane}", lane.names, n15.names))
    A(valu(f"v_lshrrev_b32 {x1}, 3, {lane}", lane.names, x1.names))
    A(valu(f"v_and_b32 {x2}, 7, {lane}", lane.names, x2.names))
    A(valu(f"v_mad_u32_u24 {t[10]}, {wv}, 48, {x1}", names(wv, x1), t[10].names))
    A(valu(f"v_lshlrev_b32 {t[10]}, 9, {t[10]}", t[10].names, t[10].names))
    A(valu(f"v_lshl_add_u32 {vST0}, {x2}, 4, {t[10]}", names(x2, t[10]), vST0.names))
    A(salu(f"s_mul_i32 s{sT3}, s{sW}, {cfg.stg_wave}", sn(sW), sn(sT3)))
    A(salu(f"s_add_u32 s{sT3}, s{sT3}, {cfg.stg_base}", [], sn(sT3)))
    A(valu(f"v_xor_b32 {t[10]}, {x2}, {x1}", names(x2, x1), t[10].names))
    A(valu(f"v_lshlrev_b32 {t[10]}, 4, {t[10]}", t[10].names, t[10].names))
    A(valu(f"v_lshl_add_u32 {t[10]}, {x1}, 7, {t[10]}", names(x1, t[10]), t[10].names))
    A(valu(f"v_add_u32 {vSR}, s{sT3}, {t[10]}", t[10].names, vSR.names))
    A(valu(f"v_lshrrev_b32 {x1}, 1, {g}", g.names, x1.names))
    A(valu(f"v_xor_b32 {x0}, {x2}, {x1}", names(x2, x1), x0.names))
    A(valu(f"v_lshlrev_b32 {x0}, 4, {x0}", x0.names, x0.names))
    A(valu(f"v_lshl_add_u32 {x0}, {n15}, 7, {x0}", names(n15, x0), x0.names))
    A(valu(f"v_and_b32 {x1}, 1, {g}", g.names, x1.names))
    A(valu(f"v_lshl_add_u32 {x0}, {x1}, 3, {x0}", names(x1, x0), x0.names))
    A(valu(f"v_add_u32 {x0}, s{sT3}, {x0}", x0.names, x0.names))
    for i in range(4):
        A(valu(f"v_xor_b32 {vSW[i]}, {32 * i}, {x0}", x0.names, vSW[i].names))
    A(valu(f"v_add_u32 {vQR}, s{sW8K}, {vKR[1]}", vKR[1].names + sn(sW8K), vQR.names))
    A(salu(f"s_mov_b32 s{sC}, {f2u(C_SCALE):#x}", [], sn(sC)))
    A(salu(f"s_mov_b32 s{sThr}, {f2u(2.0 ** 64 if not cfg.force_fallback else 1.0):#x}", [], sn(sThr)))
    A(salu(f"s_mov_b64 s[{sFlag}:{sFlag + 1}], 0", [], sn(sFlag, 2)))
    for r in range(3):
        A(valu(f"v_mov_b32 {vL[r]}, 0", [], vL[r].names))
    qaddr12()
    for x in seq[cut + 1:]:
        issue(x)
    P += stamp("issued", True)
    if cfg.walk:
        A(Op("WALK", "label"))
    return P, vq


def head_dmas(U, x, vq):
    name, part = (x[:2], x[2:]) if x[0] == "Q" else (x, "")
    u = U[name]
    if not u.dmas:
        u.make_dmas(vq[u.n]) if u.kind == "Q" else u.make_dmas()
    ops = u.dmas if not part else (u.dmas[:4] if part == "a" else u.dmas[4:])
    return flat_dmas(ops)


def q_reads(u):
    ops = []
    r = u.n
    base = u.slot * SLOT - 65536
    pre = []
    addr = vQR
    if base >= 65536:
        addr = vXT[2]
        pre.append(valu(f"v_add_u32 {addr}, 0x10000, {vQR}", vQR.names, addr.names))
        base -= 65536
    for c in range(8):
        off = base + (c >> 2) * 4096 + (c & 3) * 256
        o = Op(f"ds_read_b128 {Q[r][c]}, {addr} offset:{off}", "ds", addr.names, Q[r][c].names)
        o.meta["qhalf"] = c >> 2
        o.meta["unit"] = u
        u.reads.append(o)
        ops.append(o)
    return pre, ops


def build(cfg):
    act = lambda s: (0, 1, 2)
    stamp = Stamps(cfg)
    U = {}
    for n in range(16):
        U[f"K{n}"] = Unit("K", n, cfg)
        U[f"V{n}"] = Unit("V", n, cfg)
    for r in range(3):
        U[f"Q{r}"] = Unit("Q", r, cfg)
    U["K0"].slot, U["K1"].slot, U["K2"].slot, U["K3"].slot = 0, 1, 2, 3
    U["Q0"].slot, U["Q1"].slot, U["Q2"].slot = 4, 6, 8
    cfg.stg_base, cfg.stg_wave = 0, 4096 * cfg.stg_n

    pro, vqd = prologue(cfg, U, stamp)

    M = []
    fixed = {}
    dsq = []
    vq = []
    sbuf_last = {}
    spool = {"bufs": list(vS) + [Reg("v", vP[2][0][0].lo + 4 * i, 4) for i in range(3, 6)], "ctr": 0}
    U["K4"].slot, U["V0"].slot = 4, 5
    hd = lambda lst: [o for x in lst.split(",") if x for o in head_dmas(U, x, vqd)]
    guards = []
    Pcvt = {}
    negm_ready = {}
    preg_free = {}
    last_add = {}
    bars = []

    def Preg(s, r):
        return vP[s % 3][r]

    def softmax_ops(s, r, a, S, ready_gap):
        dst = Preg(s, r)[a >> 1]
        fm, ex, ad, cv = [], [], [], []
        for i in range(4):
            o = valu(f"v_fma_f32 {S[i]}, {S[i]}, s{sC}, {vNM[r]}", names(S[i], vNM[r]) + sn(sC), S[i].names)
            o.earliest = ready_gap
            o.deps.append((negm_ready[r], 0))
            fm.append(o)
        for i in range(4):
            o = Op(f"v_exp_f32 {S[i]}, {S[i]}", "trans", S[i].names, S[i].names)
            o.deps.append((fm[i], 0))
            ex.append(o)
        for i in range(4):
            o = valu(f"v_add_f32 {vL[r]}, {vL[r]}, {S[i]}", names(vL[r], S[i]), vL[r].names)
            o.deps.append((ex[i], 1))
            prev_add = ad[-1] if ad else last_add.get(r)
            if prev_add is not None:
                o.deps.append((prev_add, 0))
            ad.append(o)
        for k in range(2):
            d = dst[2 * (a & 1) + k]
            o = valu(f"v_cvt_pk_bf16_f32 {d}, {S[2 * k]}, {S[2 * k + 1]}", names(S[2 * k], S[2 * k + 1]), d.names)
            o.deps += [(ex[2 * k], 1), (ex[2 * k + 1], 1)]
            o.earliest = preg_free.get(dst.lo, -1)
            if dst.lo in sbuf_last:
                o.deps += [(x, 0) for x in sbuf_last[dst.lo]]
            cv.append(o)
        Pcvt[(s, r, a)] = cv
        vq.extend([fm[0], fm[1], ex[0], fm[2], ex[1], fm[3], ad[0], ex[2], ad[1], cv[0], ex[3], ad[2], ad[3], cv[1]])
        last_add[r] = ad[3]
        return ad + cv

    held = {}
    noflush = set()

    def chain(s, r, a, frags):
        S = spool["bufs"][spool["ctr"] % len(spool["bufs"])]
        spool["ctr"] += 1
        si = S.lo
        start = len(M)
        assert sbuf_last.get(si) != "held"
        if sbuf_last.get(si):
            guards.append((start - 1, sbuf_last[si]))
        for c in range(8):
            M.append(mfma(S, frags[c], Q[r][c], S if c else None))
        end = len(M) - 1
        if r not in negm_ready:
            held.setdefault(r, []).append((si, S, end, a))
            sbuf_last[si] = "held"
            if len(held[r]) == 2:
                S0, S1 = held[r][0][1], held[r][1][1]
                m, tmp = vNM[r], vXT[r]
                ops = [valu(f"v_max3_f32 {m}, {S0[0]}, {S0[1]}, {S0[2]}", names(S0[0], S0[1], S0[2]), m.names),
                       valu(f"v_max3_f32 {tmp}, {S0[3]}, {S1[0]}, {S1[1]}", names(S0[3], S1[0], S1[1]), tmp.names),
                       valu(f"v_max3_f32 {m}, {m}, {S1[2]}, {S1[3]}", names(m, S1[2], S1[3]), m.names),
                       valu(f"v_max_f32 {m}, {m}, {tmp}", names(m, tmp), m.names)]
                ops += xlane("v_max_f32", m, tmp)
                ops.append(valu(f"v_mul_f32 {m}, {f2u(-C_SCALE):#x}, {m}", m.names, m.names))
                prev = None
                for o in ops:
                    o.earliest = end + cfg.sready
                    if prev is not None:
                        o.deps.append((prev, 1 if "permlane" in o.text else 0))
                    prev = o
                vq.extend(ops)
                negm_ready[r] = ops[-1]
                for (si2, S2, end2, a2) in held[r]:
                    sbuf_last[si2] = softmax_ops(s, r, a2, S2, end2 + cfg.sready)
        else:
            sbuf_last[si] = softmax_ops(s, r, a, S, end + cfg.sready)
        return start

    afree = {}
    touched = set()
    vpool = {"bufs": list(VFB), "ctr": 0}

    def group(steps, t, smajor=False):
        base = vpool["bufs"][vpool["ctr"] % len(vpool["bufs"])]
        vpool["ctr"] += 1
        tt = t & 7
        start = len(M)
        frs = []
        for i, s in enumerate(steps):
            u = U[f"V{2 * s + (t >> 3)}"]
            for kc in range(2):
                F = Reg("a", base + 8 * i + 4 * kc, 4)
                frs.append((s, kc, F))
                for k in range(2):
                    a = 2 * kc + k
                    dsq.append(dict(kind="V", dst=F[2 * k:2 * k + 2], h=tt & 1, u=u, off=a * 4096 + (tt >> 1) * 256,
                                    cons=start + 2 * i + kc, free=afree.get(F.lo, -1)))
        seq = [(r, x) for r in act(steps[0]) for x in frs]
        if smajor:
            seq = [(r, x) for s0 in steps for r in act(s0) for x in frs if x[0] == s0]
            for d in dsq[-4 * len(steps):]:
                i = d["cons"] - start
                d["cons"] = start + 6 * (i >> 1) + (i & 1)
        for (r, (s, kc, F)) in seq:
            if True:
                C = O[r][t] if (r, t) in touched else None
                touched.add((r, t))
                P_ = Preg(s, r)[kc]
                M.append(mfma(O[r][t], F, P_, C))
                guards.append((len(M) - 3, Pcvt[(s, r, 2 * kc)] + Pcvt[(s, r, 2 * kc + 1)]))
                preg_free[P_.lo] = len(M) - 1
                afree[F.lo] = len(M) - 1
        return len(M) - 1

    def barrier(name, gap, hoist):
        o = Op("s_barrier", "barrier")
        o.meta.update(need_vm=[], need_lgkm=[], name=name, hoist_wait=hoist, units=[])
        o.gap = gap
        bars.append(o)
        return o

    def prek_reads(lo, hi):
        ops = []
        for a in range(lo, hi):
            u = U[f"K{a >> 1}"]
            for c in range(8):
                off = u.slot * SLOT + (a & 1) * 8192 + (c >> 2) * 4096 + (c & 3) * 256
                o = Op(f"ds_read_b128 {preK[a][c]}, {vKR[0]} offset:{off}", "ds", vKR[0].names, preK[a][c].names)
                u.reads.append(o)
                ops.append(o)
        return ops

    blk = []
    ba = barrier("a", -1, False)
    ba.meta["units"] = [U["K0"], U["K1"], U["Q0"]]
    U["K0"].vis = U["K1"].vis = U["Q0"].vis = ba
    blk.append(ba)
    blk += stamp("K0Q0", True)
    pre_, q0 = q_reads(U["Q0"])
    prek = prek_reads(0, 4)
    blk += pre_ + q0 + prek[:8] + hd(cfg.head_a) + prek[8:]
    fixed[-1] = blk
    sub_order = (0, 1, 2, 3, 6, 7, 4, 5)
    allreads = q0 + prek
    kprev = {}
    for r in range(3):
        if r:
            u = U[f"Q{r}"]
            pre_, qr = q_reads(u)
            for o in qr:
                o.meta["need_vm_unit"] = (u, o.meta["qhalf"])
            blk = hd(cfg.head_c if r == 1 else cfg.head_0) + pre_ + qr
            if r == 2:
                spool["bufs"] += [Reg("v", vP[2][0][0].lo + 4 * i, 4) for i in range(3)]
            allreads += qr
            bb = barrier("c" if r == 1 else 0, len(M) - 1, False)
            bb.meta["need_lgkm"] = list(allreads)
            blk.append(bb)
            blk += stamp(f"Q{r}", True)
            fixed[len(M) - 1] = blk
        for i, a in enumerate(sub_order):
            if r == 0 and i == 4:
                b2 = barrier("a2", len(M) - 1, False)
                b2.meta["units"] = [U["K2"], U["K3"]]
                b2.meta["need_lgkm"] = list(q0)
                U["K2"].vis = U["K3"].vis = b2
                k2 = prek_reads(6, 8) + prek_reads(4, 6)
                allreads += k2
                fixed[len(M) - 1] = [b2] + k2[:8] + hd(cfg.head_a2) + k2[8:]
                noflush.add(len(M) - 1)
            st = chain(a >> 2, r, a & 3, preK[a])
            for c in range(8):
                if preK[a][c].f == "a":
                    afree[preK[a][c].lo] = st + c
        for o in vq:
            o.meta.setdefault("pre", len(M) - 1)
    b0 = bars[-1]
    b0.meta["units"] = [U["K4"]]
    U["K4"].vis = b0
    spool["bufs"] = list(vS)
    spool["ctr"] = 0

    start_int = {}
    grp_end = {}
    pub = []

    def kchains(s, a, kb):
        u = U[f"K{2 * s + (a >> 1)}"]
        state = {"first": True}

        def emit(r):
            st = len(M)
            if state["first"]:
                for c in range(8):
                    dsq.append(dict(kind="K", dst=KF[kb][c], u=u, off=(a & 1) * 8192 + (c >> 2) * 4096 + (c & 3) * 256,
                                    cons=st + c, free=afree.get(KF[kb][c].lo, b0.gap)))
                state["first"] = False
            chain(s, r, a, KF[kb])
            for c in range(8):
                afree[KF[kb][c].lo] = st + c
        return emit

    NP = 8 - cfg.defer
    for p in range(NP):
        for q in range(4):
            n = 2 * p + (q >> 1)
            if q % 2 == 0:
                start_int[n] = len(M)
                pub.append((n, [U[f"V{n}"], U[f"K{n + 4}"]]) if n else ("v0", [U["V0"]]))
            order = "cccGGGG" if (p == 0 and q == 0) else "cGcGcGG"
            em = kchains(p + 2, q, (q & 1) if cfg.kdouble else 0)
            ci = gi = 0
            for ch in order:
                if ch == "c":
                    em(ci)
                    ci += 1
                else:
                    grp_end[(p, 4 * q + gi)] = group((p,), 4 * q + gi)
                    gi += 1
    n = 2 * NP
    if cfg.defer == 3:
        for q in range(4):
            if q % 2 == 0:
                start_int[n] = len(M)
                pub.append((n, [U[f"K{14 + (q >> 1)}"]]))
                n += 1
            em = kchains(7, q, (q + 1) & 1)
            for r in range(3):
                em(r)
    qk_end = len(M) - 1
    steps = tuple(range(NP, 8))
    sz = 8 * len(steps)
    vpool["bufs"] = [192, 192 + sz, 160, 96] if sz == 24 else [192, 208, 224, 240, 160, 176]
    vpool["ctr"] = 0
    for b in range(64, 160, 4):
        afree[b] = qk_end
    fin0 = n
    for t in range(16):
        if t % 8 == 0:
            start_int[n] = len(M)
            pub.append((n, [U[f"V{2 * s + (t >> 3)}"] for s in steps]))
            n += 1
        grp_end[(7, t)] = group(steps, t, t == 0)
    NM = len(M)

    dsq.sort(key=lambda d: d["cons"])
    def spacing(c):
        if c >= start_int[fin0]:
            return cfg.spf
        return 2.0

    nxt = float(1 << 30)
    for d in reversed(dsq):
        dl = d["cons"] - cfg.lat
        e = max(d["free"], b0.gap + 1)
        f = min(float(dl) + 0.999, nxt - spacing(d["cons"]))
        if f < e:
            f = min(float(dl), nxt - min(1.0, spacing(d["cons"])))
        if f < e:
            f = float(e)
        d["f"], d["e"], d["dl"] = f, e, dl
        nxt = f
    prev = -10
    late = 0
    cnt = 0
    for d in dsq:
        g = max(int(d["f"]), d["e"], prev)
        if g == prev:
            cnt += 1
            if cnt >= 2 or (g + 1 <= d["dl"] and spacing(d["cons"]) >= 1):
                g += 1
                cnt = 0
        else:
            cnt = 0
        g = min(g, d["cons"] - 2)
        assert g >= d["e"] and g >= prev, (d, g, prev)
        late += g > d["dl"]
        d["gap"] = g
        prev = g

    prevg = b0.gap
    for (name, us) in pub:
        first = min(d["gap"] for d in dsq if d["u"] in us)
        g = max(first - 1, prevg + 1)
        assert g < first, (name, g, first)
        b = barrier(name, g, True)
        b.meta["units"] = us
        for u in us:
            u.vis = b
        prevg = g
    lastcons = {}
    for d in dsq:
        lastcons[d["u"].name] = max(lastcons.get(d["u"].name, -1), d["cons"])

    def release(u):
        if u.name in ("K0", "K1", "K2", "K3", "Q1"):
            return [b.meta["name"] for b in bars].index("c")
        if u.name == "Q2":
            return bars.index(b0)
        c = [i for i, b in enumerate(bars) if b.gap >= lastcons[u.name]]
        return min(c) if c else len(bars)

    stg_bi = bars.index(next(b for b in bars if b.meta["name"] == fin0))
    free_at = {s: -1 for s in range(10)}
    for name in ("K0", "K1", "K2", "K3", "K4", "V0", "Q1", "Q2"):
        u = U[name]
        for k in range(u.nslots):
            free_at[u.slot + k] = release(u)
    order = []
    for (name, us) in pub:
        order += [u.name for u in sorted(us, key=lambda u: u.kind) if not u.dmas]
    dmaq = []
    for name in order:
        u = U[name]
        cand = list(free_at)
        if release(u) > stg_bi:
            cand = [s for s in cand if s >= cfg.stg_n]
        slot = min(cand, key=lambda s: (free_at[s], s))
        w = free_at[slot]
        u.slot = slot
        free_at[slot] = release(u)
        e = max(bars[w].gap + 2 if w >= 0 else 1, b0.gap + 2 + cfg.dma_lead)
        ops = u.make_dmas()
        for d in ops:
            d.earliest = e
            dmaq.append(d)
    gap_ds = {}
    for d in dsq:
        gap_ds.setdefault(d["gap"], []).append(d)
    gap_dma = {}
    placed_dma = [b0.gap - 20] * 4
    last = -10
    for d in dmaq:
        u = d.meta["unit"]
        sp = cfg.dma_sp
        if last < start_int[1]:
            sp = cfg.dma_sp_fast
        g = max(d.earliest, last + sp)
        if len(placed_dma) >= cfg.dma_cap:
            g = max(g, placed_dma[-cfg.dma_cap] + cfg.dma_win)
        g0 = g
        while g in fixed or g in gap_ds:
            g += 1
        if u.vis is not None and g >= u.vis.gap - 1:
            raise SystemExit(f"DMA of {u.name} too late: {g} vs {u.vis.gap}")
        gap_dma[g] = d
        d.gap = g
        last = g
        placed_dma.append(g)
    last_dma = dmaq[-1]
    flight = {u.name: u.vis.gap - u.dmas[-1].gap for u in U.values() if u.vis is not None and u.dmas[-1].gap is not None}
    for b in bars:
        b.meta["need_vm"] = [d for u in b.meta["units"] for d in u.dmas]

    reads = []
    for d in dsq:
        u = d["u"]
        if d["kind"] == "Q":
            c = d["c"]
            off = u.slot * SLOT - 65536 + (c >> 2) * 4096 + (c & 3) * 256
            o = Op(f"ds_read_b128 {d['dst']}, {vQR} offset:{off}", "ds", vQR.names, d["dst"].names)
            o.meta["need_vm"] = u.dmas[(c >> 2) * 4:(c >> 2) * 4 + 4]
            o.meta["hoist_wait"] = True
        else:
            w, off = divmod(u.slot * SLOT + d["off"], 65536)
            if d["kind"] == "K":
                o = Op(f"ds_read_b128 {d['dst']}, {vKR[w]} offset:{off}", "ds", vKR[w].names, d["dst"].names)
            else:
                a = vVR[d["h"]][w]
                o = Op(f"ds_read_b64_tr_b16 {d['dst']}, {a} offset:{off}", "ds", a.names, d["dst"].names)
        o.gap = d["gap"]
        u.reads.append(o)
        d["op"] = o
        reads.append(o)
    for blk in fixed.values():
        for o in blk:
            if "need_vm_unit" in o.meta:
                u, h = o.meta["need_vm_unit"]
                o.meta["need_vm"] = u.dmas[4 * h:4 * h + 4]

    vcc_last = [None]

    def finish_rows(rows, last):
        fin = {}
        for r in rows:
            ops = xlane("v_add_f32", vL[r], vXT[r])
            prev = last[r]
            for o in ops:
                o.deps.append((prev, 1 if "permlane" in o.text else 0))
                prev = o
            rc = Op(f"v_rcp_f32 {vRL[r]}, {vL[r]}", "trans", vL[r].names, vRL[r].names)
            rc.deps.append((prev, 0))
            cm = valu(f"v_cmp_lt_f32 vcc, s{sThr}, {vL[r]}", vL[r].names + sn(sThr), ["svcc"])
            cm.deps.append((prev, 0))
            fl = salu(f"s_or_b64 s[{sFlag}:{sFlag + 1}], s[{sFlag}:{sFlag + 1}], vcc", ["svcc"] + sn(sFlag, 2), sn(sFlag, 2) + ["scc"])
            fl.deps.append((cm, 2))
            fin[r] = (ops, rc, cm, fl)
        out = []
        for k in range(6):
            for r in rows:
                out.append(fin[r][0][k])
        for r in rows:
            if vcc_last[0] is not None:
                fin[r][2].deps.append((vcc_last[0], 0))
            out += [fin[r][1], fin[r][2], fin[r][3]]
            vcc_last[0] = fin[r][3]
        return out, {r: fin[r][1] for r in rows}

    rbq = [Reg("a", 64 + 4 * i, 4) for i in range(8)]
    tmps = [Reg("v", vS[2 * i].lo, 8) for i in range(3)]
    tmp_last = {tb.lo: sbuf_last[tb.lo] + sbuf_last[tb.lo + 4] for tb in tmps}
    tmp_min = {tb.lo: -1 for tb in tmps}
    ctr = {"t": 0, "r": 0}
    rb_last = {}
    stg_last_read = {}
    wr = {}
    stg_after = bars[stg_bi].gap + 1
    sta = {}
    for r in range(3):
        for k in range(2):
            d = vST[r][k]
            o = valu(f"v_add_u32 {d}, {r * 8192 + k * 4096}, {vST0}", vST0.names, d.names)
            o.deps.append((last_dma, 1))
            sta[(r, k)] = o

    def piece(r, s, T, rcp, half, packed):
        rdy = grp_end[(s, 2 * T + 1)] + cfg.sready
        X, Y = O[r][2 * T], O[r][2 * T + 1]
        src = [X[i] for i in range(4)] + [Y[i] for i in range(4)]
        D = X
        ops = []
        rd = None
        if X.f == "a":
            tb = tmps[ctr["t"] % len(tmps)]
            ctr["t"] += 1
            rd = []
            for i in range(8):
                o = valu(f"v_accvgpr_read_b32 {tb[i]}, {src[i]}", src[i].names, tb[i].names)
                o.earliest = max(rdy, tmp_min[tb.lo])
                o.deps += [(x, 0) for x in tmp_last[tb.lo]]
                rd.append(o)
            ops += rd
            src = [tb[i] for i in range(8)]
            D = tb[0:4]
        mu = []
        if packed:
            for k in range(4):
                pr = Reg("v", src[2 * k].lo, 2)
                rl2 = Reg("v", vRL[r].lo, 2)
                o = valu(f"v_pk_mul_f32 {pr}, {pr}, {rl2} op_sel_hi:[1,0]", names(pr, vRL[r]), pr.names)
                o.earliest = rdy
                o.meta["pk"] = True
                o.deps.append((rcp, 1))
                if rd:
                    o.deps += [(rd[2 * k], 0), (rd[2 * k + 1], 0)]
                mu += [o, o]
            ops += mu[::2]
        else:
            for i in range(8):
                o = valu(f"v_mul_f32 {src[i]}, {src[i]}, {vRL[r]}", names(src[i], vRL[r]), src[i].names)
                o.earliest = rdy
                o.deps.append((rcp, 1))
                if rd:
                    o.deps.append((rd[i], 0))
                mu.append(o)
            ops += mu
        cv = []
        for k in range(4):
            o = valu(f"v_cvt_pk_bf16_f32 {D[k]}, {src[2 * k]}, {src[2 * k + 1]}", names(src[2 * k], src[2 * k + 1]), D[k].names)
            o.deps += [(mu[2 * k], 0), (mu[2 * k + 1], 0)]
            if k:
                o.deps.append((cv[k - 1], 0))
            cv.append(o)
        w = []
        for xy in range(2):
            ad = vSW[2 * (T & 1) + xy]
            x = Op(f"ds_write_b64 {ad}, {D[2 * xy:2 * xy + 2]} offset:{2048 * half}", "ds",
                   D[2 * xy:2 * xy + 2].names + ad.names, [])
            x.deps += [(cv[2 * xy], 0), (cv[2 * xy + 1], 0)]
            x.earliest = stg_after
            x.deps += [(z, 0) for z in stg_last_read.get(half, [])]
            w.append(x)
        if rd:
            tmp_last[tb.lo] = w + [cv[3]]
        wr[(r, T)] = w
        ops += cv + w
        if T % 2 == 1:
            H = T >> 1
            rds, sts = [], []
            for k in range(2):
                qd = rbq[ctr["r"] % len(rbq)]
                ctr["r"] += 1
                o = Op(f"ds_read_b128 {qd}, {vSR} offset:{1024 * k + 2048 * half}", "ds", vSR.names, qd.names)
                o.deps += [(x, 0) for tt in (T - 1, T) for x in wr[(r, tt)]]
                o.deps += [(x, 0) for x in rb_last.get(qd.lo, [])]
                o.earliest = qk_end
                stt = f"buffer_store_dwordx4 {qd}, {vST[r][k]}, s[{sO}:{sO + 3}], 0 offen offset:{128 * H}"
                pol = cfg.st if H < cfg.st_from else cfg.st_last
                if pol:
                    stt += " " + pol
                so = Op(stt, "vstore", qd.names + vST[r][k].names + sn(sO, 4), [])
                so.meta["data"] = frozenset(qd.names)
                so.meta["hoist_wait"] = True
                so.deps += [(o, cfg.lat), (sta[(r, k)], 0)]
                rb_last[qd.lo] = [so]
                rds.append(o)
                sts.append(so)
            stg_last_read[half] = rds
            ops += rds + sts
        return ops

    fo, rcp = finish_rows((0, 1, 2), last_add)
    vq += fo + list(sta.values())
    ep = []
    nb = 2 * cfg.stg_n
    for T in range(8):
        for r in range(3):
            ep += piece(r, 7, T, rcp[r], (3 * (T >> 1) + r) % nb, cfg.pk and T >= cfg.pkfrom)

    gaps = {g: {"s": [], "v": []} for g in range(-1, NM + 1)}
    for b in bars:
        if b.meta["hoist_wait"]:
            gaps[b.gap]["s"].append(b)
    for g, d in gap_dma.items():
        pre = d.pre
        d.pre = []
        gaps[g - 1]["s"].append(pre[-1])
        if len(pre) > 1:
            gaps[max(g - 2, 0)]["s"].insert(0, pre[0])

    def ready(o, g, strict=False):
        if o.earliest > g:
            return False
        for (d, k) in o.deps:
            if d.gap is None or d.gap + k > g or (strict and d.gap >= g):
                return False
        return True

    queue = list(vq)
    equeue = list(ep)
    guard_at = {}
    for (g, ops) in guards:
        guard_at.setdefault(g, []).extend(ops)
    overflow = 0

    def place(o, g, where="v"):
        o.gap = g
        gaps[g][where].append(o)
        (queue if o in queue else equeue).remove(o)

    def force(o, g):
        nonlocal overflow
        if o.gap is not None:
            return
        for (d, k) in o.deps:
            if d.gap is None:
                force(d, g)
        assert o.earliest <= g, (o, g)
        overflow += 1
        place(o, g)

    W = 120

    def pick(kinds, g, strict=False, pk=False, pred=None):
        for qq in (queue, equeue):
            for o in qq[:W]:
                if o.kind in kinds and bool(o.meta.get("pk")) == pk and ready(o, g, strict) and (pred is None or pred(o)):
                    return o
        return None

    def pk_group(g):
        o = pick(("valu",), g, pk=True)
        if o is None:
            return None
        i = equeue.index(o)
        grp = [x for x in equeue[i:i + 4] if x.meta.get("pk")]
        return grp if all(ready(x, g) for x in grp) else None

    since = {}
    xacc = 0.0
    for g in range(0, NM):
        cap = 2
        mem = False
        nds = len(gap_ds.get(g, []))
        if nds:
            for d in gap_ds[g]:
                gaps[g]["v"].append(d["op"])
            cap = 1 if nds == 1 else 0
            mem = True
        if g in gap_dma:
            gaps[g]["v"].append(gap_dma[g])
            cap = 0
            mem = True
        light = cfg.dma_light and (g + 1) in gap_dma
        if light:
            cap = min(cap, 0 if mem else 1)
        extra = 0
        if g >= start_int[fin0] - cfg.xlead and not light and g not in gap_dma:
            xacc += cfg.xf
            extra = int(xacc)
            xacc -= extra
        o = pick(("salu",), g)
        if o is not None:
            place(o, g, "s")
        ex = pick(("trans",), g)
        if ex is not None:
            since.setdefault(id(ex), g)
        heavy = False
        pg = pk_group(g)
        if pg:
            since.setdefault(id(pg[0]), g)
        age = g - since[id(pg[0])] if pg else -1
        so = pick(("vstore",), g, True) if g not in gap_dma and nds <= 1 else None
        if so is not None:
            place(so, g)
            cap = 4 - nds
            extra = 0
            mem = True
            heavy = True
        elif not (mem or ex):
            mo = pick(("ds",), g, True)
            if mo is not None:
                place(mo, g)
                cap = 1
                mem = True
                if mo.text.startswith("ds_write"):
                    extra = 0
                    if pg and age >= cfg.pk_age:
                        cap = 2
                        heavy = True
        if not heavy and pg and age >= cfg.pk_age2 and g not in gap_dma and not light:
            cap = 5 - len(gaps[g]["v"])
            extra = 0
            heavy = True
        if ex is not None and not light and (not mem or heavy or (g not in gap_dma and g - since[id(ex)] >= cfg.exp_age)):
            place(ex, g)
            cap = cap - 2 if heavy else 0
        cap += extra
        while cap > 0:
            o = pick(("valu",), g)
            if o is None:
                break
            place(o, g)
            cap -= 1
        if heavy:
            pg = pk_group(g)
            if pg:
                for x in pg:
                    place(x, g)
        for o in guard_at.get(g, []):
            force(o, g)
        if g in fixed and cfg.preflush and g not in noflush:
            for o in list(queue):
                if o.meta.get("pre") is not None and o.meta["pre"] <= g:
                    place(o, g)
    tail = []
    clock = NM
    k = 0
    rest = queue + equeue
    while rest:
        o = next((o for o in rest if o.kind == "vstore" and ready(o, clock, True)), None)
        if o is None:
            o = next((o for o in rest if o.kind == "ds" and ready(o, clock)), None)
        if o is None:
            o = next((o for o in rest if o.kind not in ("ds", "vstore") and ready(o, clock)), None)
        if o is None:
            clock += 1
            continue
        o.gap = clock
        rest.remove(o)
        tail.append(o)
        k += 1
        if k % 3 == 0:
            clock += 1

    prog = list(pro)
    for o in fixed[-1]:
        o.gap = -1
    prog += fixed[-1]
    inv_start = {v: k for k, v in start_int.items()}
    pos_int = {}
    for g in range(NM):
        M[g].gap = g
        prog.append(M[g])
        if g + 1 in inv_start and (inv_start[g + 1] % cfg.stamp_every == 0 or inv_start[g + 1] < 3 or inv_start[g + 1] >= 2 * NP):
            prog += stamp(f"i{inv_start[g + 1]}")
            if inv_start[g + 1] in (0, fin0):
                prog += stamp(f"t{inv_start[g + 1]}", True)
        prog += gaps[g]["s"]
        prog += gaps[g]["v"]
        if g in fixed:
            for o in fixed[g]:
                o.gap = g
            prog += fixed[g]
    prog += stamp("mfmaend")
    prog += stamp("mfmaendR", True)
    prog += tail
    prog += stamp("stissued", True)
    if cfg.stamps:
        prog.append(Op("s_waitcnt vmcnt(0)", "wait", meta={"fixed": True}))
        prog += stamp("drained", True)
    prog += stamp.finish()
    prog.append(Op(f"s_cmp_lg_u64 s[{sFlag}:{sFlag + 1}], 0", "raw"))
    prog.append(Op("s_cbranch_scc1 L_fallback", "raw"))

    for o in prog:
        if o.kind == "mfma":
            o.meta["cover"] = [x for x in reads if x.gap <= o.gap - 1 - cfg.age and x.gap > o.gap - 40]
    prog = insert_waits_cover(prog)
    prog, moved = spread_scalars(prog)
    prog, pads = fix_hazards(prog, verbose=cfg.verbose)
    verify_lds(prog, U, None, cfg)
    idx = {id(o): i for i, o in enumerate(prog)}
    seg = lambda a, b: estimate_cycles(prog[idx[id(M[a])]:idx[id(M[b])] + 1])
    ints = sorted(start_int.items())
    est = {n: seg(g, (ints[i + 1][1] if i + 1 < len(ints) else NM) - 1) for i, (n, g) in enumerate(ints)}
    info = dict(NM=NM, late=late, overflow=overflow, pads=pads, est_main=seg(start_int[0], NM - 1),
                ideal=16 * (NM - start_int[0]), est_tail=estimate_cycles(prog[idx[id(M[-1])] + 1:]), n=len(prog), tail=len(tail),
                waits=sum(1 for o in prog if o.kind == "wait"), est=list(est.values()))
    if cfg.verbose:
        print("flight", flight)
        print("slots", {u.name: u.slot for u in U.values()})
        print("bars", [(b.meta["name"], b.gap) for b in bars])
        print("ints", start_int, "last dma", last_dma.gap, "stores", [o.gap for o in ep if o.kind == "vstore"])
    cfg.stamp_names = stamp.list
    return prog, info


def insert_waits_cover(prog):
    pend = set()
    for o in prog:
        if o.kind == "ds":
            pend |= set(o.writes)
        if o.kind == "mfma" and (o.reads & pend):
            cov = o.meta.get("cover", [])
            o.meta["need_lgkm"] = cov
            for x in cov:
                pend -= set(x.writes)
            pend -= set(o.reads)
    return insert_waits(prog)


def verify_lds(prog, U, stg_bar, cfg):
    pos = {id(o): i for i, o in enumerate(prog)}
    bars = [o for o in prog if o.kind == "barrier"]
    occ = {}
    for u in U.values():
        for k in range(u.nslots):
            occ.setdefault(u.slot + k, []).append(u)
        if u.kind != "Q":
            for rd in u.reads:
                b = u.vis
                assert pos[id(b)] < pos[id(rd)], ("read before barrier", u.name)
                for d in u.dmas:
                    assert d.meta["vm_idx"] < b.meta["vm_done_at"], ("dma not waited", u.name)
    for s, us in occ.items():
        us.sort(key=lambda u: pos[id(u.dmas[0])])
        for a, b in zip(us, us[1:]):
            first = min(pos[id(d)] for d in b.dmas)
            ok = any(pos[id(br)] < first and all(rd.meta["lg_idx"] < br.meta["lg_done_at"] for rd in a.reads) for br in bars)
            assert ok, ("slot WAR", s, a.name, b.name)
    writes = [o for o in prog if o.kind == "ds" and o.text.startswith("ds_write")]
    firstw = min(pos[id(o)] for o in writes)
    lo, hi = cfg.stg_base, cfg.stg_base + 4 * cfg.stg_wave
    for s, us in occ.items():
        if s * SLOT < hi and (s + 1) * SLOT > lo:
            for u in us:
                ok = any(pos[id(br)] < firstw and all(rd.meta["lg_idx"] < br.meta["lg_done_at"] for rd in u.reads) for br in bars)
                assert ok, ("staging WAR", s, u.name)


def fallback(cfg):
    L = []
    A = L.append
    t = Reg("v", 104, 12)
    KFf = KF[0]
    VFf = [Reg("a", 192, 4), Reg("a", 200, 4)]
    A("L_fallback:")
    A("s_waitcnt vmcnt(0) lgkmcnt(0)")
    A("s_barrier")
    A(f"s_mul_i32 s{sT3}, s{sW}, 40960")
    A(f"v_and_b32 {t[0]}, 63, v0")
    A(f"v_bfe_u32 {t[2]}, {t[0]}, 2, 2")
    A(f"v_lshlrev_b32 {t[2]}, 9, {t[2]}")
    A(f"v_lshrrev_b32 {t[5]}, 4, {t[0]}")
    A(f"v_lshl_add_u32 {t[2]}, {t[5]}, 6, {t[2]}")
    A(f"v_and_b32 {t[3]}, 3, {t[0]}")
    fk = [Reg("v", 80 + i, 1) for i in range(4)]
    fv = [Reg("v", 84 + i, 1) for i in range(4)]
    for rg in range(4):
        A(f"v_xor_b32 {t[4]}, {FR[rg]}, {t[3]}")
        A(f"v_lshl_add_u32 {fk[rg]}, {t[4]}, 4, {t[2]}")
        A(f"v_add_u32 {fk[rg]}, {rg * 2048}, {fk[rg]}")
        A(f"v_xor_b32 {t[4]}, {2 * (rg & 1)}, {t[3]}")
        A(f"v_lshl_add_u32 {fv[rg]}, {t[4]}, 4, {t[2]}")
        A(f"v_add_u32 {fv[rg]}, {rg * 2048}, {fv[rg]}")
    rk, rv0, rv1 = Reg("v", 88, 1), Reg("v", 89, 1), Reg("v", 90, 1)
    so = [Reg("v", 91 + r, 1) for r in range(3)]
    tmp8 = Reg("v", 96, 8)
    A(f"v_add_u32 {rk}, s{sT3}, {vKR[0]}")
    A(f"v_add_u32 {rv0}, s{sT3}, {vVR[0][0]}")
    A(f"v_add_u32 {rv1}, s{sT3}, {vVR[1][0]}")
    A(f"v_and_b32 {t[6]}, 15, {t[0]}")
    A(f"s_mul_i32 s{sT1}, s{sW}, 48")
    A(f"v_add_u32 {t[6]}, s{sT1}, {t[6]}")
    A(f"v_lshlrev_b32 {t[6]}, 9, {t[6]}")
    A(f"v_and_b32 {t[7]}, 1, {t[5]}")
    A(f"v_lshl_add_u32 {t[6]}, {t[7]}, 5, {t[6]}")
    A(f"v_lshrrev_b32 {t[7]}, 1, {t[5]}")
    A(f"v_lshl_add_u32 {so[0]}, {t[7]}, 4, {t[6]}")
    A(f"v_add_u32 {so[1]}, 8192, {so[0]}")
    A(f"v_add_u32 {so[2]}, 16384, {so[0]}")
    A(f"s_mul_i32 s{sT2}, s{sW}, {48 * 512}")
    for r in range(3):
        for rg in range(4):
            A(f"v_add_u32 {t[8]}, s{sT2}, {fk[rg]}")
            A(f"v_add_u32 {t[8]}, {r * 8192}, {t[8]}")
            for half in range(2):
                A(f"s_add_u32 m0, s{sT3}, {half * 4096 + rg * 1024 - half * 256}")
                A("s_nop 0")
                A(f"buffer_load_dwordx4 {t[8]}, s[{sQ}:{sQ + 3}], 0 offen offset:{half * 256} lds")
        A("s_waitcnt vmcnt(0)")
        for c in range(8):
            A(f"ds_read_b128 {Q[r][c]}, {rk} offset:{(c >> 2) * 4096 + (c & 3) * 256}")
        A("s_waitcnt lgkmcnt(0)")
    Pf = [vP[0][r][0] for r in range(3)]

    def load_k():
        for a in range(2):
            A(f"s_add_u32 s{sT1}, s{sT0}, {a * 8192}")
            for half in range(2):
                for rg in range(4):
                    A(f"s_add_u32 m0, s{sT3}, {a * 8192 + half * 4096 + rg * 1024 - half * 256}")
                    A("s_nop 0")
                    A(f"buffer_load_dwordx4 {fk[rg]}, s[{sK}:{sK + 3}], s{sT1} offen offset:{half * 256} lds")

    def load_v():
        for dh in range(2):
            for a in range(2):
                A(f"s_add_u32 s{sT1}, s{sT0}, {a * 8192 + dh * 256}")
                for rg in range(4):
                    A(f"s_add_u32 m0, s{sT3}, {16384 + dh * 8192 + a * 4096 + rg * 1024}")
                    A("s_nop 0")
                    A(f"buffer_load_dwordx4 {fv[rg]}, s[{sV}:{sV + 3}], s{sT1} offen lds")

    def qk(a):
        for c in range(8):
            A(f"ds_read_b128 {KFf[c]}, {rk} offset:{a * 8192 + (c >> 2) * 4096 + (c & 3) * 256}")
        A("s_waitcnt lgkmcnt(0)")
        for r in range(3):
            for c in range(8):
                A(f"v_mfma_f32_16x16x32_bf16 {vS[r]}, {KFf[c]}, {Q[r][c]}, {vS[r] if c else 0}")
        A("s_nop 15")

    def xl(op, x, tmp):
        for o in xlane(op, x, tmp):
            A("s_nop 1")
            A(o.text)

    for r in range(3):
        A(f"v_mov_b32 {vNM[r]}, 0xff800000")
    A(f"s_mov_b32 s{sT0}, 0")
    A("L_fb1:")
    load_k()
    A("s_waitcnt vmcnt(0)")
    for a in range(2):
        qk(a)
        for r in range(3):
            A(f"v_max3_f32 {vNM[r]}, {vNM[r]}, {vS[r][0]}, {vS[r][1]}")
            A(f"v_max3_f32 {vNM[r]}, {vNM[r]}, {vS[r][2]}, {vS[r][3]}")
    A(f"s_add_u32 s{sT0}, s{sT0}, 16384")
    A(f"s_cmp_lt_u32 s{sT0}, 262144")
    A("s_cbranch_scc1 L_fb1")
    for r in range(3):
        xl("v_max_f32", vNM[r], t[4])
        A(f"v_mul_f32 {vNM[r]}, {f2u(-C_SCALE):#x}, {vNM[r]}")
        A(f"v_mov_b32 {vL[r]}, 0")
    for r in range(3):
        for tt in range(16):
            for i in range(4):
                x = O[r][tt][i]
                A(f"v_mov_b32 {x}, 0" if x.f == "v" else f"v_accvgpr_write_b32 {x}, 0")
    A(f"s_mov_b32 s{sT0}, 0")
    A("L_fb2:")
    load_k()
    load_v()
    A("s_waitcnt vmcnt(0)")
    for a in range(2):
        qk(a)
        for r in range(3):
            S = vS[r]
            for i in range(4):
                A(f"v_fma_f32 {S[i]}, {S[i]}, s{sC}, {vNM[r]}")
            for i in range(4):
                A(f"v_exp_f32 {S[i]}, {S[i]}")
            A("s_nop 1")
            for i in range(4):
                A(f"v_add_f32 {vL[r]}, {vL[r]}, {S[i]}")
            for k in range(2):
                A(f"v_cvt_pk_bf16_f32 {Pf[r][2 * a + k]}, {S[2 * k]}, {S[2 * k + 1]}")
    A("s_nop 3")
    for tt in range(16):
        for s in range(2):
            base = rv0 if (tt & 1) == 0 else rv1
            off = 16384 + (tt >> 3) * 8192 + s * 4096 + ((tt & 7) >> 1) * 256
            A(f"ds_read_b64_tr_b16 {VFf[tt & 1][2 * s:2 * s + 2]}, {base} offset:{off}")
        A("s_waitcnt lgkmcnt(0)")
        for r in range(3):
            A(f"v_mfma_f32_16x16x32_bf16 {O[r][tt]}, {VFf[tt & 1]}, {Pf[r]}, {O[r][tt]}")
    A("s_nop 15")
    A(f"s_add_u32 s{sT0}, s{sT0}, 16384")
    A(f"s_cmp_lt_u32 s{sT0}, 262144")
    A("s_cbranch_scc1 L_fb2")
    for r in range(3):
        xl("v_add_f32", vL[r], t[4])
        A(f"v_rcp_f32 {vRL[r]}, {vL[r]}")
    A("s_nop 3")
    for T in range(8):
        for r in range(3):
            X, Y = O[r][2 * T], O[r][2 * T + 1]
            src = [X[i] for i in range(4)] + [Y[i] for i in range(4)]
            if X.f == "a":
                for i in range(8):
                    A(f"v_accvgpr_read_b32 {tmp8[i]}, {src[i]}")
                src = [tmp8[i] for i in range(8)]
            for i in range(8):
                A(f"v_mul_f32 {src[i]}, {src[i]}, {vRL[r]}")
            D = vS[(3 * T + r) % NSB]
            for k in range(4):
                A(f"v_cvt_pk_bf16_f32 {D[k]}, {src[2 * k]}, {src[2 * k + 1]}")
            A("s_nop 1")
            A(f"v_permlane16_swap_b32 {D[0]}, {D[2]}")
            A(f"v_permlane16_swap_b32 {D[1]}, {D[3]}")
            A(f"buffer_store_dwordx4 {D}, {so[r]}, s[{sO}:{sO + 3}], 0 offen offset:{64 * T}")
    A("s_waitcnt vmcnt(0)")
    return L


HEADER = """; GQA attention forward, B=8 Hq=16 Hkv=8 Sq=368 Sk=512 D=256, bf16 (emitted by my own generator script)
; and a wave with a sum above 2^64 recomputes its rows with the true row maximum (L_fallback).
; @launch grid=(256,1,1) block=(256,1,1) lds=163840
.amdgcn_target "amdgcn-amd-amdhsa--gfx950"
.text
.globl {k}
.p2align 8
.type {k},@function
{k}:
"""

FOOTER = """L_end:
    s_endpgm
.section .rodata,"a"
.p2align 6
.amdhsa_kernel {k}
  .amdhsa_next_free_vgpr 512
  .amdhsa_next_free_sgpr 102
  .amdhsa_accum_offset 256
  .amdhsa_group_segment_fixed_size 0
  .amdhsa_kernarg_size 48
  .amdhsa_user_sgpr_count 2
  .amdhsa_user_sgpr_kernarg_segment_ptr 1
  .amdhsa_system_sgpr_workgroup_id_x 1
.end_amdhsa_kernel
"""


def render(cfg, prog):
    s = HEADER.format(k=KNAME)
    if cfg.stamps and cfg.spin == -1:
        s = "; stamps: " + " ".join(n + ("*" if r else "") for n, r in cfg.stamp_names) + "\n" + s
    for o in prog:
        s += (o.text if o.kind == "label" else "    " + o.text) + "\n"
    s += "    s_endpgm\nL_mainend:\n"
    for l in fallback(cfg):
        s += (l if l.endswith(":") else "    " + l) + "\n"
    s += FOOTER.format(k=KNAME)
    return s


def addresses(text, n):
    import subprocess, re, tempfile, os
    d = tempfile.mkdtemp()
    open(d + "/x.s", "w").write(text)
    subprocess.run(["clang", "-x", "assembler", "-target", "amdgcn-amd-amdhsa", "-mcpu=gfx950", "-c",
                    d + "/x.s", "-o", d + "/x.o"], check=True)
    out = subprocess.run(["llvm-objdump", "-d", "--mcpu=gfx950", d + "/x.o"], capture_output=True, text=True).stdout
    return [int(m.group(1), 16) for m in re.finditer(r"// ([0-9A-F]+):", out)][:n]


def add_walk(cfg, prog):
    iw = next(i for i, o in enumerate(prog) if o.text == "WALK")
    head, body = prog[:iw], prog[iw + 1:]
    lab = lambda t: Op(t, "label")
    raw = lambda t: Op(t, "raw")
    stubs = []
    for it in range(20):
        b2 = []
        for i, o in enumerate(body):
            if i in stubs:
                k = stubs.index(i)
                b2.append(lab(f"L_pg{k}:"))
                b2.append(raw(f"s_cbranch_execz L_wr{k}"))
            b2.append(o)
        npg = len(stubs)
        walk = [raw("s_mov_b64 exec, 0")]
        for w in range(4):
            if w < npg:
                walk += [raw(f"s_cmp_eq_u32 s{sW}, {w}"), raw(f"s_cbranch_scc1 L_pg{w}")]
        walk.append(raw("s_branch L_wdone"))
        for k in range(npg):
            walk.append(lab(f"L_wr{k}:"))
            walk.append(raw(f"s_branch L_pg{k + 4}" if k + 4 < npg else "s_branch L_wdone"))
        walk += [lab("L_wdone:"), raw("s_mov_b64 exec, -1")]
        full = head + walk + b2
        ins = [o for o in full if o.kind != "label"]
        addr = addresses(render(cfg, full), len(ins))
        amap = {id(o): a + cfg.base_off for o, a in zip(ins, addr)}
        want = []
        prev = amap[id(body[0])] // 4096
        for i, o in enumerate(body):
            if o.kind == "label":
                continue
            pg = amap[id(o)] // 4096
            if pg != prev:
                j = i
                for jj in range(i, min(i + cfg.walk_win, len(body))):
                    if body[jj - 1].kind == "mfma" and amap[id(body[jj - 1])] // 4096 == pg and body[jj].kind not in ("salu", "wait", "barrier"):
                        j = jj
                        break
                want.append(j)
                prev = pg
        if want == stubs:
            return full
        stubs = want
    return full


def emit(cfg):
    prog, info = build(cfg)
    if cfg.walk:
        prog = add_walk(cfg, prog)
    return render(cfg, prog), info


Cfg.walk = True
Cfg.walk_win = 8
Cfg.base_off = 0x1e00
Cfg.spin_name = ""
Cfg.stamp_every = 1
Cfg.pkfrom = 7
Cfg.pk_age = 2
Cfg.pk_age2 = 4
Cfg.dma_light = True
Cfg.defer = 3
Cfg.st_from = 9
Cfg.st_last = ""
Cfg.kdouble = False
Cfg.spf = 1.5
Cfg.xf = 0.0
Cfg.xlead = 48
Cfg.dma_lead = 0
Cfg.head = "K0,Q0,K1,pf,|,K2,K3"
Cfg.head_a = "Q1a,Q1b"
Cfg.head_a2 = "Q2a"
Cfg.head_c = "Q2b,K4"
Cfg.head_0 = "V0"
Cfg.dma_cap = 12
Cfg.dma_win = 96
Cfg.join_order = "cGcGGGc"
Cfg.p7_order = "cGGGG"
Cfg.stg_bar = 14
Cfg.stg_n = 2
Cfg.sp7 = 1.3333
Cfg.sp2 = 1.3333
Cfg.x15 = 3
Cfg.x15_lead = 16
Cfg.x8 = 6
Cfg.x9 = 2
Cfg.xmem = 2
Cfg.exp_age = 3
Cfg.q2_before = "K5"
Cfg.dma_sp_fast = 3
Cfg.tail_extra = 3
Cfg.p7_extra = 0
Cfg.stag2 = ""
Cfg.stag_sh = 6
Cfg.stagger = ""
Cfg.cls_shift = 6
Cfg.cls_mask = 0

if __name__ == "__main__":
    ap = argparse.ArgumentParser()
    ap.add_argument("-o", default="standalone__gqa_softmax__near_ridge.s")
    ap.add_argument("-v", action="store_true")
    ap.add_argument("opts", nargs="*")
    a = ap.parse_args()
    cfg = Cfg()
    cfg.verbose = a.v
    for kv in a.opts:
        k, v = kv.split("=", 1)
        if k == "spin":
            cfg.spin, cfg.spin_name, cfg.stamps = 1, v, True
            continue
        old = getattr(cfg, k)
        if isinstance(old, bool):
            v = v in ("1", "true", "True")
        elif isinstance(old, int):
            v = int(v)
        elif isinstance(old, float):
            v = float(v)
        setattr(cfg, k, v.replace("+", " ") if isinstance(v, str) else v)
    s, info = emit(cfg)
    open(a.o, "w").write(s)
    print(info, len(s))
```

```python
import sys, math, argparse, struct
sys.path.insert(0, __file__.rsplit("/", 1)[0])
from ir import *

KNAME = "standalone__gqa_softmax__near_ridge_kernel"
C_SCALE = math.log2(math.e) / 16.0


def f2u(x):
    return struct.unpack("<I", struct.pack("<f", x))[0]


class Cfg:
    ldq = "nt"
    ldkv = "nt"
    ldkv0 = ""
    st = "nt"
    lat = 6
    age = 5
    sready = 4
    stamps = False
    dbg = False
    spin = -1
    spinwg = -1
    codepf = True
    force_fallback = False
    dma_sp = 6
    preflush = True
    y = 2
    pk = True
    verbose = False


sQ, sK, sV, sO = 12, 16, 20, 24
sW1K = 28
sC = 29
sKoff = 30
sVoff = 31
sT0, sT1, sT2, sT3 = 32, 33, 34, 35
sW = 36
sThr = 37
sW8K = 38
sCls = 39
sFlag = 40
sDBG = 44
vKR = [Reg("v", 1, 1), Reg("v", 2, 1), Reg("v", 3, 1)]
vVR = [[Reg("v", 4 + 3 * h + w, 1) for w in range(3)] for h in range(2)]
vDK = [Reg("v", 10, 1), Reg("v", 11, 1)]
vDV = [Reg("v", 12 + a, 1) for a in range(4)]
vST = [[Reg("v", 10 + 2 * r + k, 1) for k in range(2)] for r in range(3)]
vL = [Reg("v", 16 + r, 1) for r in range(3)]
vST0 = Reg("v", 19, 1)
vNM = [Reg("v", 20 + 2 * r, 1) for r in range(3)]
vRL = vNM
vSR = Reg("v", 21, 1)
vSW = [Reg("v", 23, 1), Reg("v", 25, 1), Reg("v", 26, 1), Reg("v", 27, 1)]
vXT = [Reg("v", 28 + r, 1) for r in range(3)]
vQR = Reg("v", 31, 1)
NSB = 6
vS = [Reg("v", 32 + 4 * i, 4) for i in range(NSB)]
vP = [[[Reg("v", 56 + 24 * b + 8 * r + 4 * kc, 4) for kc in range(2)] for r in range(3)] for b in range(3)]
vT = Reg("v", 32, 12)
vX = Reg("v", 44, 2)
O = [[Reg("v", 128 + 4 * t, 4) for t in range(16)],
     [Reg("v", 192 + 4 * t, 4) for t in range(16)],
     [Reg("a", 4 * t, 4) for t in range(16)]]
preK = [[Reg("v", 128 + 32 * a + 4 * c, 4) for c in range(8)] for a in range(4)] + \
       [[Reg("a", base + 4 * c, 4) for c in range(8)] for base in (0, 32, 192, 224)]
Q = [[Reg("a", 64 + 32 * r + 4 * c, 4) for c in range(8)] for r in range(3)]
KF = [[Reg("a", 160 + 4 * c, 4) for c in range(8)], [Reg("a", 224 + 4 * c, 4) for c in range(8)]]
VFB = [192 + 8 * b for b in range(4)]

SLOT = 16384
STG = 528
FR = (0, 2, 3, 1)


def sn(i, n=1):
    return R("s", i, n)


def valu(text, reads=(), writes=(), tag=""):
    return Op(text, "valu", reads, writes, tag)


def salu(text, reads=(), writes=()):
    return Op(text, "salu", reads, writes)


def names(*regs):
    out = []
    for r in regs:
        out += r.names if isinstance(r, Reg) else [r]
    return out


def mfma(D, A, B, C=None):
    c = str(C) if C is not None else "0"
    op = Op(f"v_mfma_f32_16x16x32_bf16 {D}, {A}, {B}, {c}", "mfma",
            names(A, B) + (C.names if C is not None else []), D.names)
    op.meta["srcab"] = frozenset(names(A, B))
    op.meta["srcc"] = frozenset(C.names) if C is not None else frozenset()
    return op


def dma(vaddr, srd, soff, imm, pol):
    so = f"s{soff}" if soff is not None else "0"
    t = f"buffer_load_dwordx4 {vaddr}, s[{srd}:{srd + 3}], {so} offen"
    if imm:
        t += f" offset:{imm}"
    if pol:
        t += " " + pol
    t += " lds"
    return Op(t, "dma", vaddr.names + sn(srd, 4) + (sn(soff) if soff is not None else []) + ["m0"], [])


def set_m0(const, base=sW1K):
    return salu(f"s_add_u32 m0, s{base}, {const}", sn(base), ["m0", "scc"])


class Unit:
    def __init__(self, kind, n, cfg):
        self.kind, self.n, self.cfg = kind, n, cfg
        self.slot = None
        self.nslots = 2 if kind == "Q" else 1
        self.dmas = []
        self.reads = []
        self.vis = None
        self.name = f"{kind}{n}"

    def make_dmas(self, vq=None):
        cfg = self.cfg
        ops = []
        base = self.slot * SLOT
        src = self.n % 16
        pol = cfg.ldkv if self.kind == "K" or cfg.ldv == "=" else cfg.ldv
        if self.kind == "K":
            so = salu(f"s_mov_b32 s{sKoff}, {src * 16384}", [], sn(sKoff))
            for a in range(2):
                for half in range(2):
                    d = dma(vDK[a], sK, sKoff, half * 256, pol)
                    d.pre = [set_m0(base + a * 8192 + half * 4096 - half * 256)]
                    ops.append(d)
            ops[0].pre.insert(0, so)
        elif self.kind == "V":
            j, h = divmod(src, 2)
            so = salu(f"s_mov_b32 s{sVoff}, {j * 32768 + h * 256}", [], sn(sVoff))
            for a in range(4):
                d = dma(vDV[a], sV, sVoff, 0, pol)
                d.pre = [set_m0(base + a * 4096)]
                ops.append(d)
            ops[0].pre.insert(0, so)
        else:
            for half in range(2):
                for rg in range(4):
                    d = dma(vq[rg], sQ, None, half * 256, cfg.ldq)
                    d.pre = [set_m0(base + half * 4096 + rg * 1024 - half * 256, sW8K)]
                    ops.append(d)
        for d in ops:
            d.meta["unit"] = self
            d.meta["expect"] = [d.pre[-1]] + ([ops[0].pre[0]] if self.kind != "Q" else [])
        self.dmas = ops
        return ops


def flat_dmas(ops):
    out = []
    for d in ops:
        out += d.pre
        out.append(salu("s_nop 0"))
        out.append(d)
        d.pre = []
    return out


def xlane(op, x, tmp):
    o = []
    o.append(valu(f"v_mov_b32 {tmp}, {x}", x.names, tmp.names))
    o.append(valu(f"v_permlane32_swap_b32 {x}, {tmp}", names(x, tmp), names(x, tmp)))
    o.append(valu(f"{op} {x}, {x}, {tmp}", names(x, tmp), x.names))
    o.append(valu(f"v_mov_b32 {tmp}, {x}", x.names, tmp.names))
    o.append(valu(f"v_permlane16_swap_b32 {x}, {tmp}", names(x, tmp), names(x, tmp)))
    o.append(valu(f"{op} {x}, {x}, {tmp}", names(x, tmp), x.names))
    return o


class Stamps:
    def __init__(self, cfg):
        self.cfg = cfg
        self.list = []

    def __call__(self, name, real=False):
        cfg = self.cfg
        if not cfg.stamps:
            return []
        if cfg.spin != -1:
            if name != cfg.spin_name:
                return []
            return [Op("s_memrealtime s[48:49]", "salu")]
        k = len(self.list)
        assert 48 + 2 * k + 1 <= 101, "too many stamps"
        self.list.append((name, real))
        return [Op(f"{'s_memrealtime' if real else 's_memtime'} s[{48 + 2 * k}:{49 + 2 * k}]", "salu")]

    def finish(self):
        cfg = self.cfg
        o = []
        raw = lambda t: o.append(Op(t, "raw"))
        if not cfg.stamps:
            return o
        raw("s_waitcnt lgkmcnt(0)")
        if cfg.spin != -1:
            if cfg.spinwg >= 0:
                raw(f"s_cmp_lg_u32 s2, {cfg.spinwg}")
                raw("s_cbranch_scc1 L_end")
            o.append(Op("L_spin:", "label"))
            raw("s_memrealtime s[50:51]")
            raw("s_waitcnt lgkmcnt(0)")
            raw("s_sub_u32 s50, s50, s48")
            raw("s_cmp_lt_u32 s50, 5000")
            raw("s_cbranch_scc1 L_spin")
            return o
        raw("v_mov_b32 v40, 0")
        for k in range(len(self.list)):
            raw(f"v_writelane_b32 v40, s{48 + 2 * k}, {k}")
        raw(f"s_load_dwordx2 s[{sDBG}:{sDBG + 1}], s[0:1], 40")
        raw(f"s_mov_b32 s{sDBG + 2}, 0x1000000")
        raw(f"s_mov_b32 s{sDBG + 3}, 0x00020000")
        raw("s_lshl_b32 s48, s2, 8")
        raw("v_add_u32 v41, s48, v0")
        raw("v_lshlrev_b32 v41, 2, v41")
        raw("s_waitcnt lgkmcnt(0)")
        raw(f"buffer_store_dword v40, v41, s[{sDBG}:{sDBG + 3}], 0 offen")
        return o


def prologue(cfg, U, stamp):
    P = []
    A = P.append
    raw = lambda t: A(Op(t, "raw"))
    raw("s_cmp_ge_u32 s2, 256")
    raw("s_cbranch_scc1 L_end")
    raw("s_load_dwordx4 s[4:7], s[0:1], 0")
    raw("s_load_dwordx4 s[8:11], s[0:1], 16")
    P += stamp("start", True)
    t = vT
    lane, wv, common, cpos, f_w = t[0], t[1], t[2], t[3], t[4]
    if cfg.codepf:
        raw("s_getpc_b64 s[42:43]")
        A(Op("L_pfbase:", "label"))
        A(valu(f"v_lshlrev_b32 {t[10]}, 7, v0", ["v0"], t[10].names))
        A(Op(f"global_load_dword {vX[0]}, {t[10]}, s[42:43]", "vload", t[10].names, vX[0].names))
    A(valu(f"v_lshrrev_b32 {wv}, 6, v0", ["v0"], wv.names))
    A(valu(f"v_and_b32 {lane}, 63, v0", ["v0"], lane.names))
    A(valu(f"v_readfirstlane_b32 s{sW}, {wv}", wv.names, sn(sW)))
    A(salu(f"s_and_b32 s{sT0}, s2, 7", [], sn(sT0)))
    A(salu(f"s_lshr_b32 s{sT1}, s2, 5", [], sn(sT1)))
    A(salu(f"s_lshl3_add_u32 s{sT0}, s{sT1}, s{sT0}", [], sn(sT0)))
    A(salu(f"s_bfe_u32 s{sT1}, s2, 0x20003", [], sn(sT1)))
    A(salu(f"s_lshl2_add_u32 s{sT2}, s{sT0}, s{sT1}", [], sn(sT2)))
    A(salu(f"s_mul_i32 s{sT2}, s{sT2}, {184 * 512}", [], sn(sT2)))
    A(salu(f"s_lshl_b32 s{sT0}, s{sT0}, 18", [], sn(sT0)))
    A(valu(f"v_bfe_u32 {t[6]}, {lane}, 2, 2", lane.names, t[6].names))
    A(valu(f"v_lshrrev_b32 {t[5]}, 4, {lane}", lane.names, t[5].names))
    A(valu(f"v_lshlrev_b32 {common}, 9, {t[6]}", t[6].names, common.names))
    A(valu(f"v_lshl_add_u32 {common}, {t[5]}, 6, {common}", names(t[5], common), common.names))
    A(valu(f"v_and_b32 {cpos}, 3, {lane}", lane.names, cpos.names))
    A(salu(f"s_lshl_b32 s{sT1}, s{sW}, 1", sn(sW), sn(sT1)))
    A(salu(f"s_lshr_b32 s{sT1}, 0x78, s{sT1}", [], sn(sT1)))
    A(salu(f"s_and_b32 s{sT1}, s{sT1}, 3", [], sn(sT1)))
    A(salu(f"s_lshl_b32 s{sW1K}, s{sW}, 10", sn(sW), sn(sW1K)))
    A(salu(f"s_lshl_b32 s{sW8K}, s{sW}, 13", sn(sW), sn(sW8K)))
    A(valu(f"v_xor_b32 {f_w}, s{sT1}, {cpos}", cpos.names, f_w.names))
    A(valu(f"v_lshl_add_u32 {t[7]}, {wv}, 11, {common}", names(wv, common), t[7].names))
    A(valu(f"v_lshl_add_u32 {vDK[0]}, {f_w}, 4, {t[7]}", names(f_w, t[7]), vDK[0].names))
    A(valu(f"v_add_u32 {vDK[1]}, 8192, {vDK[0]}", vDK[0].names, vDK[1].names))
    vq = [[Reg("v", 104 + 4 * r + rg, 1) for rg in range(4)] for r in range(3)]
    qb = Reg("v", 116, 1)
    A(salu(f"s_mov_b32 s{sT3}, {48 * 512}", [], sn(sT3)))
    A(valu(f"v_mad_u32_u24 {qb}, {wv}, s{sT3}, {common}", names(wv, common), qb.names))
    for rg in range(4):
        x = Reg("v", 117, 1)
        A(valu(f"v_xor_b32 {x}, {FR[rg]}, {cpos}", cpos.names, x.names))
        A(valu(f"v_lshl_add_u32 {vq[0][rg]}, {x}, 4, {qb}", names(x, qb), vq[0][rg].names))
        if rg:
            A(valu(f"v_add_u32 {vq[0][rg]}, {rg * 2048}, {vq[0][rg]}", vq[0][rg].names, vq[0][rg].names))
    A(Op("s_waitcnt lgkmcnt(0)", "wait", meta={"fixed": True}))
    P += stamp("karg", True)

    def srd(srd, p, off, nrec):
        A(salu(f"s_add_u32 s{srd}, s{p}, s{off}", [], sn(srd)))
        A(salu(f"s_addc_u32 s{srd + 1}, s{p + 1}, 0", [], sn(srd + 1)))
        A(salu(f"s_mov_b32 s{srd + 2}, {nrec}", [], sn(srd + 2)))
        A(salu(f"s_mov_b32 s{srd + 3}, 0x00020000", [], sn(srd + 3)))

    def vaddr():
        A(valu(f"v_and_b32 {t[9]}, 1, {wv}", wv.names, t[9].names))
        A(valu(f"v_lshlrev_b32 {t[9]}, 1, {t[9]}", t[9].names, t[9].names))
        A(valu(f"v_xor_b32 {t[9]}, {t[9]}, {cpos}", names(t[9], cpos), t[9].names))
        A(valu(f"v_lshl_add_u32 {vDV[0]}, {t[9]}, 4, {t[7]}", names(t[9], t[7]), vDV[0].names))
        for a in range(1, 4):
            A(valu(f"v_add_u32 {vDV[a]}, {8192 * a}, {vDV[0]}", vDV[0].names, vDV[a].names))

    def codepf2():
        if cfg.codepf:
            A(valu(f"v_add_u32 {t[10]}, 32768, {t[10]}", t[10].names, t[10].names))
            A(valu(f"v_min_u32 {t[10]}, L_mainend - L_pfbase, {t[10]}", t[10].names, t[10].names))
            A(Op(f"global_load_dword {vX[1]}, {t[10]}, s[42:43]", "vload", t[10].names, vX[1].names))

    def cwait(k):
        raw(f"s_cmp_lt_u32 s{sCls}, {k}")
        raw(f"s_cbranch_scc1 L_nw{k}")
        raw("s_waitcnt vmcnt(0)")
        A(Op(f"L_nw{k}:", "label"))

    srd(sK, 6, sT0, 262144)
    srd(sQ, 4, sT2, 184 * 512)
    if cfg.stag2:
        raw(f"s_lshr_b32 s{sCls}, s2, 5")
        raw(f"s_lshl_b32 s{sCls}, s{sCls}, 2")
        raw(f"s_lshr_b32 s{sCls}, {cfg.stag2}, s{sCls}")
        raw(f"s_and_b32 s{sCls}, s{sCls}, 15")
        raw(f"s_cbranch_scc0 L_go")
        raw(f"v_lshlrev_b32 {t[9]}, {cfg.stag_sh}, v0")
        raw(f"s_mov_b32 s{sKoff}, 0")
        A(Op("L_warm:", "label"))
        raw(f"buffer_load_dword {t[8]}, {t[9]}, s[{sK}:{sK + 3}], s{sKoff} offen {cfg.ldkv}")
        raw(f"s_add_u32 s{sKoff}, s{sKoff}, {256 << cfg.stag_sh}")
        raw(f"s_sub_u32 s{sCls}, s{sCls}, 1")
        raw("s_waitcnt vmcnt(0)")
        raw(f"s_cmp_lg_u32 s{sCls}, 0")
        raw("s_cbranch_scc1 L_warm")
        A(Op("L_go:", "label"))
    seq = cfg.head.split(",")

    def issue(x):
        if x == "pf":
            codepf2()
        else:
            if x[:2] in ("Q1", "Q2"):
                qaddr12()
            P.extend(head_dmas(U, x, vq))

    done12 = []

    def qaddr12():
        if not done12:
            done12.append(1)
            for r in (1, 2):
                for rg in range(4):
                    A(valu(f"v_add_u32 {vq[r][rg]}, {8192 * r}, {vq[0][rg]}", vq[0][rg].names, vq[r][rg].names))

    cut = seq.index("|")
    for x in seq[:cut]:
        issue(x)
    srd(sV, 8, sT0, 262144)
    srd(sO, 10, sT2, 184 * 512)
    vaddr()
    g = t[5]
    A(valu(f"v_lshlrev_b32 {t[10]}, 1, {t[6]}", t[6].names, t[10].names))
    A(valu(f"v_lshrrev_b32 {t[10]}, {t[10]}, 0x78".replace("0x78", str(t[11])), names(t[10], t[11]), t[10].names))
    P.insert(len(P) - 1, valu(f"v_mov_b32 {t[11]}, 0x78", [], t[11].names))
    A(valu(f"v_and_b32 {t[10]}, 3, {t[10]}", t[10].names, t[10].names))
    A(valu(f"v_xor_b32 {t[10]}, {t[10]}, {g}", names(t[10], g), t[10].names))
    A(valu(f"v_lshlrev_b32 {t[10]}, 4, {t[10]}", t[10].names, t[10].names))
    A(valu(f"v_lshl_add_u32 {t[10]}, {t[6]}, 10, {t[10]}", names(t[6], t[10]), t[10].names))
    A(valu(f"v_lshl_add_u32 {vKR[0]}, {cpos}, 6, {t[10]}", names(cpos, t[10]), vKR[0].names))
    A(valu(f"v_add_u32 {vKR[1]}, 0x10000, {vKR[0]}", vKR[0].names, vKR[1].names))
    A(valu(f"v_add_u32 {vKR[2]}, 0x20000, {vKR[0]}", vKR[0].names, vKR[2].names))
    A(valu(f"v_lshlrev_b32 {t[10]}, 10, {g}", g.names, t[10].names))
    A(valu(f"v_lshl_add_u32 {t[10]}, {t[6]}, 6, {t[10]}", names(t[6], t[10]), t[10].names))
    A(valu(f"v_lshl_add_u32 {t[10]}, {cpos}, 3, {t[10]}", names(cpos, t[10]), t[10].names))
    A(valu(f"v_and_b32 {t[11]}, 1, {g}", g.names, t[11].names))
    A(valu(f"v_lshl_add_u32 {vVR[0][0]}, {t[11]}, 5, {t[10]}", names(t[11], t[10]), vVR[0][0].names))
    A(valu(f"v_xor_b32 {vVR[1][0]}, 32, {vVR[0][0]}", vVR[0][0].names, vVR[1][0].names))
    for h in range(2):
        for w in (1, 2):
            A(valu(f"v_add_u32 {vVR[h][w]}, {w * 65536}, {vVR[h][0]}", vVR[h][0].names, vVR[h][w].names))
    if cfg.tgran:
        n15 = t[11]
        x0, x1, x2 = Reg("v", 118, 1), Reg("v", 119, 1), Reg("v", 120, 1)
        A(valu(f"v_and_b32 {n15}, 15, {lane}", lane.names, n15.names))
        A(valu(f"v_lshrrev_b32 {x1}, 2, {lane}", lane.names, x1.names))
        A(valu(f"v_mad_u32_u24 {t[10]}, {wv}, 48, {x1}", names(wv, x1), t[10].names))
        A(valu(f"v_lshlrev_b32 {t[10]}, 9, {t[10]}", t[10].names, t[10].names))
        A(valu(f"v_lshl_add_u32 {vST0}, {cpos}, 4, {t[10]}", names(cpos, t[10]), vST0.names))
        A(salu(f"s_mul_i32 s{sT3}, s{sW}, {cfg.stg_wave}", sn(sW), sn(sT3)))
        A(salu(f"s_add_u32 s{sT3}, s{sT3}, {cfg.stg_base}", [], sn(sT3)))
        A(valu(f"v_bfe_u32 {x2}, {lane}, 3, 2", lane.names, x2.names))
        A(valu(f"v_xor_b32 {x2}, {x2}, {cpos}", names(x2, cpos), x2.names))
        A(valu(f"v_lshlrev_b32 {x2}, 4, {x2}", x2.names, x2.names))
        A(valu(f"v_lshl_add_u32 {x2}, {x1}, 6, {x2}", names(x1, x2), x2.names))
        A(valu(f"v_add_u32 {vSR}, s{sT3}, {x2}", x2.names, vSR.names))
        A(valu(f"v_bfe_u32 {x0}, {lane}, 1, 2", lane.names, x0.names))
        A(valu(f"v_lshrrev_b32 {x1}, 1, {g}", g.names, x1.names))
        A(valu(f"v_xor_b32 {x0}, {x0}, {x1}", names(x0, x1), x0.names))
        A(valu(f"v_lshlrev_b32 {x0}, 4, {x0}", x0.names, x0.names))
        A(valu(f"v_lshl_add_u32 {x0}, {n15}, 6, {x0}", names(n15, x0), x0.names))
        A(valu(f"v_and_b32 {x1}, 1, {g}", g.names, x1.names))
        A(valu(f"v_lshl_add_u32 {x0}, {x1}, 3, {x0}", names(x1, x0), x0.names))
        A(valu(f"v_add_u32 {vSW[0]}, s{sT3}, {x0}", x0.names, vSW[0].names))
        A(valu(f"v_xor_b32 {vSW[1]}, 32, {vSW[0]}", vSW[0].names, vSW[1].names))
    else:
        n15 = t[11]
        x0, x1, x2 = Reg("v", 118, 1), Reg("v", 119, 1), Reg("v", 120, 1)
        A(valu(f"v_and_b32 {n15}, 15, {lane}", lane.names, n15.names))
        A(valu(f"v_lshrrev_b32 {x1}, 3, {lane}", lane.names, x1.names))
        A(valu(f"v_and_b32 {x2}, 7, {lane}", lane.names, x2.names))
        A(valu(f"v_mad_u32_u24 {t[10]}, {wv}, 48, {x1}", names(wv, x1), t[10].names))
        A(valu(f"v_lshlrev_b32 {t[10]}, 9, {t[10]}", t[10].names, t[10].names))
        A(valu(f"v_lshl_add_u32 {vST0}, {x2}, 4, {t[10]}", names(x2, t[10]), vST0.names))
        A(salu(f"s_mul_i32 s{sT3}, s{sW}, {cfg.stg_wave}", sn(sW), sn(sT3)))
        A(salu(f"s_add_u32 s{sT3}, s{sT3}, {cfg.stg_base}", [], sn(sT3)))
        A(valu(f"v_xor_b32 {t[10]}, {x2}, {x1}", names(x2, x1), t[10].names))
        A(valu(f"v_lshlrev_b32 {t[10]}, 4, {t[10]}", t[10].names, t[10].names))
        A(valu(f"v_lshl_add_u32 {t[10]}, {x1}, 7, {t[10]}", names(x1, t[10]), t[10].names))
        A(valu(f"v_add_u32 {vSR}, s{sT3}, {t[10]}", t[10].names, vSR.names))
        A(valu(f"v_lshrrev_b32 {x1}, 1, {g}", g.names, x1.names))
        A(valu(f"v_xor_b32 {x0}, {x2}, {x1}", names(x2, x1), x0.names))
        A(valu(f"v_lshlrev_b32 {x0}, 4, {x0}", x0.names, x0.names))
        A(valu(f"v_lshl_add_u32 {x0}, {n15}, 7, {x0}", names(n15, x0), x0.names))
        A(valu(f"v_and_b32 {x1}, 1, {g}", g.names, x1.names))
        A(valu(f"v_lshl_add_u32 {x0}, {x1}, 3, {x0}", names(x1, x0), x0.names))
        A(valu(f"v_add_u32 {x0}, s{sT3}, {x0}", x0.names, x0.names))
        for i in range(4):
            A(valu(f"v_xor_b32 {vSW[i]}, {32 * i}, {x0}", x0.names, vSW[i].names))
    A(valu(f"v_add_u32 {vQR}, s{sW8K}, {vKR[1]}", vKR[1].names + sn(sW8K), vQR.names))
    A(salu(f"s_mov_b32 s{sC}, {f2u(C_SCALE):#x}", [], sn(sC)))
    A(salu(f"s_mov_b32 s{sThr}, {f2u(2.0 ** 64 if not cfg.force_fallback else 1.0):#x}", [], sn(sThr)))
    A(salu(f"s_mov_b64 s[{sFlag}:{sFlag + 1}], 0", [], sn(sFlag, 2)))
    for r in range(3):
        A(valu(f"v_mov_b32 {vL[r]}, 0", [], vL[r].names))
    if cfg.padzero:
        A(valu(f"v_and_b32 {t[10]}, 0xc8, v0", ["v0"], t[10].names))
        A(valu(f"v_cmp_eq_u32 vcc, 0xc8, {t[10]}", t[10].names, ["svcc"]))
        A(valu(f"v_mov_b32 {t[10]}, {f2u(-1e30):#x}", [], t[10].names))
        A(valu(f"v_cndmask_b32 {vL[2]}, {vL[2]}, {t[10]}, vcc", names(vL[2], t[10]) + ["svcc"], vL[2].names))
    qaddr12()
    for x in seq[cut + 1:]:
        issue(x)
    P += stamp("issued", True)
    if cfg.walk:
        A(Op("WALK", "label"))
    return P, vq


def head_dmas(U, x, vq):
    name, part = (x[:2], x[2:]) if x[0] == "Q" else (x, "")
    u = U[name]
    if not u.dmas:
        u.make_dmas(vq[u.n]) if u.kind == "Q" else u.make_dmas()
    ops = u.dmas if not part else (u.dmas[:4] if part == "a" else u.dmas[4:])
    return flat_dmas(ops)


def q_reads(u):
    ops = []
    r = u.n
    base = u.slot * SLOT - 65536
    pre = []
    addr = vQR
    if base >= 65536:
        addr = vXT[2]
        pre.append(valu(f"v_add_u32 {addr}, 0x10000, {vQR}", vQR.names, addr.names))
        base -= 65536
    for c in range(8):
        off = base + (c >> 2) * 4096 + (c & 3) * 256
        o = Op(f"ds_read_b128 {Q[r][c]}, {addr} offset:{off}", "ds", addr.names, Q[r][c].names)
        o.meta["qhalf"] = c >> 2
        o.meta["unit"] = u
        u.reads.append(o)
        ops.append(o)
    return pre, ops


def build(cfg):
    act = lambda s: (0, 1, 2)
    stamp = Stamps(cfg)
    U = {}
    for n in range(16):
        U[f"K{n}"] = Unit("K", n, cfg)
        U[f"V{n}"] = Unit("V", n, cfg)
    for r in range(3):
        U[f"Q{r}"] = Unit("Q", r, cfg)
    U["K0"].slot, U["K1"].slot, U["K2"].slot, U["K3"].slot = 0, 1, 2, 3
    U["Q0"].slot, U["Q1"].slot, U["Q2"].slot = 4, 6, 8
    cfg.stg_base, cfg.stg_wave = 0, 4096 * cfg.stg_n

    pro, vqd = prologue(cfg, U, stamp)

    M = []
    fixed = {}
    dsq = []
    vq = []
    sbuf_last = {}
    spool = {"bufs": list(vS) + [Reg("v", vP[2][0][0].lo + 4 * i, 4) for i in range(3, 6)], "ctr": 0}
    U["K4"].slot, U["V0"].slot = 4, 5
    hd = lambda lst: [o for x in lst.split(",") if x for o in head_dmas(U, x, vqd)]
    guards = []
    Pcvt = {}
    negm_ready = {}
    preg_free = {}
    last_add = {}
    bars = []

    def Preg(s, r):
        return vP[s % 3][r]

    def softmax_ops(s, r, a, S, ready_gap):
        dst = Preg(s, r)[a >> 1]
        fm, ex, ad, cv = [], [], [], []
        for i in range(4):
            o = valu(f"v_fma_f32 {S[i]}, {S[i]}, s{sC}, {vNM[r]}", names(S[i], vNM[r]) + sn(sC), S[i].names)
            o.earliest = ready_gap
            o.deps.append((negm_ready[r], 0))
            fm.append(o)
        for i in range(4):
            o = Op(f"v_exp_f32 {S[i]}, {S[i]}", "trans", S[i].names, S[i].names)
            o.deps.append((fm[i], 0))
            ex.append(o)
        for i in range(4):
            o = valu(f"v_add_f32 {vL[r]}, {vL[r]}, {S[i]}", names(vL[r], S[i]), vL[r].names)
            o.deps.append((ex[i], 1))
            prev_add = ad[-1] if ad else last_add.get(r)
            if prev_add is not None:
                o.deps.append((prev_add, 0))
            ad.append(o)
        for k in range(2):
            d = dst[2 * (a & 1) + k]
            o = valu(f"v_cvt_pk_bf16_f32 {d}, {S[2 * k]}, {S[2 * k + 1]}", names(S[2 * k], S[2 * k + 1]), d.names)
            o.deps += [(ex[2 * k], 1), (ex[2 * k + 1], 1)]
            o.earliest = preg_free.get(dst.lo, -1)
            if dst.lo in sbuf_last:
                o.deps += [(x, 0) for x in sbuf_last[dst.lo]]
            cv.append(o)
        Pcvt[(s, r, a)] = cv
        vq.extend([fm[0], fm[1], ex[0], fm[2], ex[1], fm[3], ad[0], ex[2], ad[1], cv[0], ex[3], ad[2], ad[3], cv[1]])
        last_add[r] = ad[3]
        return ad + cv

    held = {}
    noflush = set()

    halfS = {}

    def chain(s, r, a, frags, part=None):
        start = len(M)
        if part == 1:
            S = halfS[(s, r, a)]
            si = S.lo
        else:
            S = spool["bufs"][spool["ctr"] % len(spool["bufs"])]
            spool["ctr"] += 1
            si = S.lo
            assert sbuf_last.get(si) != "held"
            if sbuf_last.get(si):
                guards.append((start - 1, sbuf_last[si]))
        for c in range(8) if part is None else range(4 * part, 4 * part + 4):
            M.append(mfma(S, frags[c], Q[r][c], S if c else None))
        if part == 0:
            halfS[(s, r, a)] = S
            sbuf_last[si] = "held"
            return start
        end = len(M) - 1
        if r not in negm_ready:
            held.setdefault(r, []).append((si, S, end, a))
            sbuf_last[si] = "held"
            if len(held[r]) == 2:
                S0, S1 = held[r][0][1], held[r][1][1]
                m, tmp = vNM[r], vXT[r]
                ops = [valu(f"v_max3_f32 {m}, {S0[0]}, {S0[1]}, {S0[2]}", names(S0[0], S0[1], S0[2]), m.names),
                       valu(f"v_max3_f32 {tmp}, {S0[3]}, {S1[0]}, {S1[1]}", names(S0[3], S1[0], S1[1]), tmp.names),
                       valu(f"v_max3_f32 {m}, {m}, {S1[2]}, {S1[3]}", names(m, S1[2], S1[3]), m.names),
                       valu(f"v_max_f32 {m}, {m}, {tmp}", names(m, tmp), m.names)]
                ops += xlane("v_max_f32", m, tmp)
                if r == 2 and cfg.padzero:
                    ops.append(valu(f"v_fma_f32 {m}, -{m}, s{sC}, {vL[2]}", names(m, vL[2]) + sn(sC), m.names))
                else:
                    ops.append(valu(f"v_mul_f32 {m}, {f2u(-C_SCALE):#x}, {m}", m.names, m.names))
                prev = None
                for o in ops:
                    o.earliest = end + cfg.sready
                    if prev is not None:
                        o.deps.append((prev, 1 if "permlane" in o.text else 0))
                    prev = o
                vq.extend(ops)
                negm_ready[r] = ops[-1]
                for (si2, S2, end2, a2) in held[r]:
                    sbuf_last[si2] = softmax_ops(s, r, a2, S2, end2 + cfg.sready)
        else:
            sbuf_last[si] = softmax_ops(s, r, a, S, end + cfg.sready)
        return start

    afree = {}
    touched = set()
    vpool = {"bufs": list(VFB), "ctr": 0}

    def group(steps, t, smajor=False):
        base = vpool["bufs"][vpool["ctr"] % len(vpool["bufs"])]
        vpool["ctr"] += 1
        tt = t & 7
        start = len(M)
        frs = []
        for i, s in enumerate(steps):
            u = U[f"V{2 * s + (t >> 3)}"]
            for kc in range(2):
                F = Reg("a", base + 8 * i + 4 * kc, 4)
                frs.append((s, kc, F))
                for k in range(2):
                    a = 2 * kc + k
                    dsq.append(dict(kind="V", dst=F[2 * k:2 * k + 2], h=tt & 1, u=u, off=a * 4096 + (tt >> 1) * 256,
                                    cons=start + 2 * i + kc, free=afree.get(F.lo, -1)))
        seq = [(r, x) for r in act(steps[0]) for x in frs]
        if smajor:
            seq = [(r, x) for s0 in steps for r in act(s0) for x in frs if x[0] == s0]
            for d in dsq[-4 * len(steps):]:
                i = d["cons"] - start
                d["cons"] = start + 6 * (i >> 1) + (i & 1)
        for (r, (s, kc, F)) in seq:
            if True:
                C = O[r][t] if (r, t) in touched else None
                touched.add((r, t))
                P_ = Preg(s, r)[kc]
                M.append(mfma(O[r][t], F, P_, C))
                guards.append((len(M) - 3, Pcvt[(s, r, 2 * kc)] + Pcvt[(s, r, 2 * kc + 1)]))
                preg_free[P_.lo] = len(M) - 1
                afree[F.lo] = len(M) - 1
        return len(M) - 1

    pair_end = {}

    def group_pair(steps, ta, tb, rorder, smajor=False):
        start = len(M)
        frs = []
        for j, t in enumerate((ta, tb)):
            base = vpool["bufs"][vpool["ctr"] % len(vpool["bufs"])]
            vpool["ctr"] += 1
            for i, s in enumerate(steps):
                for kc in range(2):
                    frs.append((t, s, kc, Reg("a", base + 8 * i + 4 * kc, 4)))
        first = sorted(frs, key=lambda x: (x[1] == steps[-1], x[0], x[1], x[2])) if smajor else frs
        for i, (t, s, kc, F) in enumerate(first):
            u = U[f"V{2 * s + (t >> 3)}"]
            tt = t & 7
            for k in range(2):
                dsq.append(dict(kind="V", dst=F[2 * k:2 * k + 2], h=tt & 1, u=u, off=(2 * kc + k) * 4096 + (tt >> 1) * 256,
                                cons=start + i, free=afree.get(F.lo, -1)))
        for n_, r in enumerate(rorder):
            for (t, s, kc, F) in (first if n_ == 0 else frs):
                P_ = Preg(s, r)[kc]
                M.append(mfma(O[r][t], F, P_, O[r][t]))
                guards.append((len(M) - 3, Pcvt[(s, r, 2 * kc)] + Pcvt[(s, r, 2 * kc + 1)]))
                afree[F.lo] = len(M) - 1
            pair_end[(r, ta >> 1)] = len(M) - 1

    def barrier(name, gap, hoist):
        o = Op("s_barrier", "barrier")
        o.meta.update(need_vm=[], need_lgkm=[], name=name, hoist_wait=hoist, units=[])
        o.gap = gap
        bars.append(o)
        return o

    def prek_reads(lo, hi):
        ops = []
        for a in range(lo, hi):
            u = U[f"K{a >> 1}"]
            for c in range(8):
                off = u.slot * SLOT + (a & 1) * 8192 + (c >> 2) * 4096 + (c & 3) * 256
                o = Op(f"ds_read_b128 {preK[a][c]}, {vKR[0]} offset:{off}", "ds", vKR[0].names, preK[a][c].names)
                u.reads.append(o)
                ops.append(o)
        return ops

    blk = []
    ba = barrier("a", -1, False)
    ba.meta["units"] = [U["K0"], U["K1"], U["Q0"]]
    U["K0"].vis = U["K1"].vis = U["Q0"].vis = ba
    blk.append(ba)
    blk += stamp("K0Q0", True)
    pre_, q0 = q_reads(U["Q0"])
    prek = prek_reads(0, 4)
    blk += pre_ + q0 + prek[:8] + hd(cfg.head_a) + prek[8:]
    fixed[-1] = blk
    sub_order = (0, 1, 2, 3, 6, 7, 4, 5)
    allreads = q0 + prek
    kprev = {}
    for r in range(3):
        split = str(r) in cfg.half_r
        if r:
            u = U[f"Q{r}"]
            pre_, qr = q_reads(u)
            for o in qr:
                o.meta["need_vm_unit"] = (u, o.meta["qhalf"])
            lists = (cfg.head_c if r == 1 else cfg.head_0).split("/")
            if r == 2 or split:
                extra_s = [Reg("v", vP[2][0][0].lo + 4 * i, 4) for i in range(3)]
                if r == 2 and extra_s[0].lo not in [x.lo for x in spool["bufs"]]:
                    spool["bufs"] += extra_s
            allreads += qr
            if split:
                fixed[len(M) - 1] = hd(lists[0]) + pre_ + qr[:4]
                for a in sub_order:
                    chain(a >> 2, r, a & 3, preK[a], 0)
                blk = hd(lists[1] if len(lists) > 1 else "") + qr[4:]
                noflush.add(len(M) - 1)
            else:
                blk = hd(",".join(lists)) + pre_ + qr
            if r == 2 and cfg.softb0:
                bb = Op("", "label")
                bb.gap = len(M) - 1
                b0 = bb
            else:
                bb = barrier("c" if r == 1 else 0, len(M) - 1, False)
                bb.meta["need_lgkm"] = list(allreads)
                blk.append(bb)
            blk += stamp(f"Q{r}", True)
            fixed[len(M) - 1] = blk
        for i, a in enumerate(sub_order):
            if r == 0 and i == 4:
                b2 = barrier("a2", len(M) - 1, False)
                b2.meta["units"] = [U["K2"], U["K3"]]
                b2.meta["need_lgkm"] = list(q0)
                U["K2"].vis = U["K3"].vis = b2
                k2 = prek_reads(6, 8) + prek_reads(4, 6)
                allreads += k2
                fixed[len(M) - 1] = [b2] + k2[:8] + hd(cfg.head_a2) + k2[8:]
                noflush.add(len(M) - 1)
            st = chain(a >> 2, r, a & 3, preK[a], 1 if (r and split) else None)
            for c in range(8):
                if preK[a][c].f == "a":
                    afree[preK[a][c].lo] = len(M) - 1 if split else st + c
        for o in vq:
            o.meta.setdefault("pre", len(M) - 1)
    if not cfg.softb0:
        b0 = bars[-1]
        b0.meta["units"] = [U["K4"]]
        U["K4"].vis = b0
    spool["bufs"] = list(vS)
    spool["ctr"] = 0

    start_int = {}
    grp_end = {}
    pub = []
    if cfg.softb0:
        pub.append((0, [U["K4"]]))

    def kchains(s, a, kb):
        u = U[f"K{2 * s + (a >> 1)}"]
        state = {"first": True}

        def emit(r):
            st = len(M)
            if state["first"]:
                for c in range(8):
                    dsq.append(dict(kind="K", dst=KF[kb][c], u=u, off=(a & 1) * 8192 + (c >> 2) * 4096 + (c & 3) * 256,
                                    cons=st + c, free=afree.get(KF[kb][c].lo, b0.gap)))
                state["first"] = False
            chain(s, r, a, KF[kb])
            for c in range(8):
                afree[KF[kb][c].lo] = st + c
        return emit

    rord = tuple(int(c) for c in cfg.rord) if cfg.pairs else (0, 1, 2)
    NP = 8 - cfg.defer
    for p in range(NP):
        for q in range(4):
            n = 2 * p + (q >> 1)
            if q % 2 == 0:
                start_int[n] = len(M)
                pub.append((n, [U[f"V{n}"], U[f"K{n + 4}"]]) if n else ("v0", [U["V0"]]))
            order = cfg.first_order if (p == 0 and q == 0) else "cGcGcGG"
            em = kchains(p + 2, q, (q & 1) if cfg.kdouble else 0)
            ci = gi = 0
            for ch in order:
                if ch == "c":
                    em(ci)
                    ci += 1
                else:
                    grp_end[(p, 4 * q + gi)] = group((p,), 4 * q + gi)
                    gi += 1
    n = 2 * NP
    if cfg.defer == 3:
        for q in range(4):
            if q % 2 == 0:
                start_int[n] = len(M)
                pub.append((n, [U[f"K{14 + (q >> 1)}"]]))
                n += 1
            em = kchains(7, q, (q + 1) & 1)
            for r in rord:
                em(r)
    qk_end = len(M) - 1
    steps = tuple(range(NP, 8))
    sz = 8 * len(steps)
    vpool["bufs"] = [192, 192 + sz, 160, 96] if sz == 24 else [192, 208, 224, 240, 160, 176]
    vpool["ctr"] = 0
    for b in range(64, 160, 4):
        afree[b] = qk_end
    fin0 = n
    for t in range(16):
        if t % 8 == 0:
            start_int[n] = len(M)
            pub.append((n, [U[f"V{2 * s + (t >> 3)}"] for s in steps]))
            n += 1
        if cfg.pairs:
            if t % 2 == 0:
                group_pair(steps, t, t + 1, rord, t == 0)
            continue
        grp_end[(7, t)] = group(steps, t, t == 0)
    NM = len(M)

    dsq.sort(key=lambda d: d["cons"])
    def spacing(c):
        if c >= start_int[fin0]:
            return cfg.spf
        return 2.0

    nxt = float(1 << 30)
    for d in reversed(dsq):
        dl = d["cons"] - cfg.lat
        e = max(d["free"], b0.gap + (7 if cfg.softb0 else 1))
        f = min(float(dl) + 0.999, nxt - spacing(d["cons"]))
        if f < e:
            f = min(float(dl), nxt - min(1.0, spacing(d["cons"])))
        if f < e:
            f = float(e)
        d["f"], d["e"], d["dl"] = f, e, dl
        nxt = f
    prev = -10
    late = 0
    cnt = 0
    for d in dsq:
        g = max(int(d["f"]), d["e"], prev)
        if g == prev:
            cnt += 1
            if cnt >= 2 or (g + 1 <= d["dl"] and spacing(d["cons"]) >= 1):
                g += 1
                cnt = 0
        else:
            cnt = 0
        g = min(g, d["cons"] - 2)
        assert g >= d["e"] and g >= prev, (d, g, prev)
        late += g > d["dl"]
        d["gap"] = g
        prev = g

    prevg = b0.gap
    for (name, us) in pub:
        first = min(d["gap"] for d in dsq if d["u"] in us)
        g = max(first - 1, prevg + 1)
        assert g < first, (name, g, first)
        b = barrier(name, g, True)
        if name == 0:
            b.meta["need_lgkm"] = list(allreads)
        b.meta["units"] = us
        for u in us:
            u.vis = b
        prevg = g
    lastcons = {}
    for d in dsq:
        lastcons[d["u"].name] = max(lastcons.get(d["u"].name, -1), d["cons"])

    def release(u):
        if u.name in ("K0", "K1", "K2", "K3", "Q1"):
            return [b.meta["name"] for b in bars].index("c")
        if u.name == "Q2":
            return [b.meta["name"] for b in bars].index(0)
        c = [i for i, b in enumerate(bars) if b.gap >= lastcons[u.name]]
        return min(c) if c else len(bars)

    stg_bi = bars.index(next(b for b in bars if b.meta["name"] == fin0))
    free_at = {s: -1 for s in range(10)}
    for name in ("K0", "K1", "K2", "K3", "K4", "V0", "Q1", "Q2"):
        u = U[name]
        for k in range(u.nslots):
            free_at[u.slot + k] = release(u)
    order = []
    for (name, us) in pub:
        order += [u.name for u in sorted(us, key=lambda u: u.kind) if not u.dmas]
    dmaq = []
    for name in order:
        u = U[name]
        cand = list(free_at)
        if release(u) > stg_bi:
            cand = [s for s in cand if s >= cfg.stg_n]
        slot = min(cand, key=lambda s: (free_at[s], s))
        w = free_at[slot]
        u.slot = slot
        free_at[slot] = release(u)
        e = max(bars[w].gap + 2 if w >= 0 else 1, b0.gap + 2 + cfg.dma_lead)
        ops = u.make_dmas()
        for d in ops:
            d.earliest = e
            dmaq.append(d)
    gap_ds = {}
    for d in dsq:
        gap_ds.setdefault(d["gap"], []).append(d)
    gap_dma = {}
    placed_dma = [b0.gap - 20] * 4
    last = -10
    for d in dmaq:
        u = d.meta["unit"]
        sp = cfg.dma_sp
        if last < start_int[1]:
            sp = cfg.dma_sp_fast
        g = max(d.earliest, last + sp)
        if len(placed_dma) >= cfg.dma_cap:
            g = max(g, placed_dma[-cfg.dma_cap] + (cfg.dma_win if g >= start_int[cfg.early_n] else cfg.dma_win_early))
        g0 = g
        while g in fixed or g in gap_ds:
            g += 1
        if u.vis is not None and g >= u.vis.gap - 1:
            raise SystemExit(f"DMA of {u.name} too late: {g} vs {u.vis.gap}")
        gap_dma[g] = d
        d.gap = g
        last = g
        placed_dma.append(g)
    last_dma = dmaq[-1]
    flight = {u.name: u.vis.gap - u.dmas[-1].gap for u in U.values() if u.vis is not None and u.dmas[-1].gap is not None}
    for b in bars:
        b.meta["need_vm"] = [d for u in b.meta["units"] for d in u.dmas]

    reads = []
    for d in dsq:
        u = d["u"]
        if d["kind"] == "Q":
            c = d["c"]
            off = u.slot * SLOT - 65536 + (c >> 2) * 4096 + (c & 3) * 256
            o = Op(f"ds_read_b128 {d['dst']}, {vQR} offset:{off}", "ds", vQR.names, d["dst"].names)
            o.meta["need_vm"] = u.dmas[(c >> 2) * 4:(c >> 2) * 4 + 4]
            o.meta["hoist_wait"] = True
        else:
            w, off = divmod(u.slot * SLOT + d["off"], 65536)
            if d["kind"] == "K":
                o = Op(f"ds_read_b128 {d['dst']}, {vKR[w]} offset:{off}", "ds", vKR[w].names, d["dst"].names)
            else:
                a = vVR[d["h"]][w]
                o = Op(f"ds_read_b64_tr_b16 {d['dst']}, {a} offset:{off}", "ds", a.names, d["dst"].names)
        o.gap = d["gap"]
        u.reads.append(o)
        d["op"] = o
        reads.append(o)
    for blk in fixed.values():
        for o in blk:
            if "need_vm_unit" in o.meta:
                u, h = o.meta["need_vm_unit"]
                o.meta["need_vm"] = u.dmas[4 * h:4 * h + 4]

    vcc_last = [None]

    def finish_rows(rows, last):
        fin = {}
        for r in rows:
            ops = xlane("v_add_f32", vL[r], vXT[r])
            prev = last[r]
            for o in ops:
                o.deps.append((prev, 1 if "permlane" in o.text else 0))
                prev = o
            rc = Op(f"v_rcp_f32 {vRL[r]}, {vL[r]}", "trans", vL[r].names, vRL[r].names)
            rc.deps.append((prev, 0))
            cm = valu(f"v_cmp_lt_f32 vcc, s{sThr}, {vL[r]}", vL[r].names + sn(sThr), ["svcc"])
            cm.deps.append((prev, 0))
            fl = salu(f"s_or_b64 s[{sFlag}:{sFlag + 1}], s[{sFlag}:{sFlag + 1}], vcc", ["svcc"] + sn(sFlag, 2), sn(sFlag, 2) + ["scc"])
            fl.deps.append((cm, 2))
            fin[r] = (ops, rc, cm, fl)
        out = []
        for k in range(6):
            for r in rows:
                out.append(fin[r][0][k])
        for r in rows:
            if vcc_last[0] is not None:
                fin[r][2].deps.append((vcc_last[0], 0))
            out += [fin[r][1], fin[r][2], fin[r][3]]
            vcc_last[0] = fin[r][3]
        return out, {r: fin[r][1] for r in rows}

    rbq = [Reg("a", 64 + 4 * i, 4) for i in range(8)]
    tmps = [Reg("v", vS[2 * i].lo, 8) for i in range(3)]
    tmp_last = {tb.lo: sbuf_last[tb.lo] + sbuf_last[tb.lo + 4] for tb in tmps}
    tmp_min = {tb.lo: -1 for tb in tmps}
    ctr = {"t": 0, "r": 0}
    rb_last = {}
    stg_last_read = {}
    wr = {}
    stg_after = bars[stg_bi].gap + 1
    sta = {}
    for r in range(3):
        for k in range(2):
            d = vST[r][k]
            o = valu(f"v_add_u32 {d}, {r * 8192 + k * 4096}, {vST0}", vST0.names, d.names)
            o.deps.append((last_dma, 1))
            sta[(r, k)] = o

    def piece(r, s, T, rcp, half, packed):
        rdy = (pair_end[(r, T)] if cfg.pairs else grp_end[(s, 2 * T + 1)]) + cfg.sready
        X, Y = O[r][2 * T], O[r][2 * T + 1]
        src = [X[i] for i in range(4)] + [Y[i] for i in range(4)]
        D = X
        ops = []
        rd = None
        if X.f == "a":
            tb = tmps[ctr["t"] % len(tmps)]
            ctr["t"] += 1
            rd = []
            for i in range(8):
                o = valu(f"v_accvgpr_read_b32 {tb[i]}, {src[i]}", src[i].names, tb[i].names)
                o.earliest = max(rdy, tmp_min[tb.lo])
                o.deps += [(x, 0) for x in tmp_last[tb.lo]]
                rd.append(o)
            ops += rd
            src = [tb[i] for i in range(8)]
            D = tb[0:4]
        mu = []
        if packed:
            for k in range(4):
                pr = Reg("v", src[2 * k].lo, 2)
                rl2 = Reg("v", vRL[r].lo, 2)
                o = valu(f"v_pk_mul_f32 {pr}, {pr}, {rl2} op_sel_hi:[1,0]", names(pr, vRL[r]), pr.names)
                o.earliest = rdy
                o.meta["pk"] = True
                o.deps.append((rcp, 1))
                if rd:
                    o.deps += [(rd[2 * k], 0), (rd[2 * k + 1], 0)]
                mu += [o, o]
            ops += mu[::2]
        else:
            for i in range(8):
                o = valu(f"v_mul_f32 {src[i]}, {src[i]}, {vRL[r]}", names(src[i], vRL[r]), src[i].names)
                o.earliest = rdy
                o.deps.append((rcp, 1))
                if rd:
                    o.deps.append((rd[i], 0))
                mu.append(o)
            ops += mu
        cv = []
        for k in range(4):
            o = valu(f"v_cvt_pk_bf16_f32 {D[k]}, {src[2 * k]}, {src[2 * k + 1]}", names(src[2 * k], src[2 * k + 1]), D[k].names)
            o.deps += [(mu[2 * k], 0), (mu[2 * k + 1], 0)]
            if k:
                o.deps.append((cv[k - 1], 0))
            cv.append(o)
        w = []
        for xy in range(2):
            ad = vSW[xy] if cfg.tgran else vSW[2 * (T & 1) + xy]
            x = Op(f"ds_write_b64 {ad}, {D[2 * xy:2 * xy + 2]} offset:{(1024 if cfg.tgran else 2048) * half}", "ds",
                   D[2 * xy:2 * xy + 2].names + ad.names, [])
            x.deps += [(cv[2 * xy], 0), (cv[2 * xy + 1], 0)]
            x.earliest = stg_after
            x.deps += [(z, 0) for z in stg_last_read.get(half, [])]
            w.append(x)
        if rd:
            tmp_last[tb.lo] = w + [cv[3]]
        wr[(r, T)] = w
        ops += cv + w
        if T % 2 == 1 or cfg.tgran:
            H = T >> 1
            rds, sts = [], []
            for k in range(1 if cfg.tgran else 2):
                qd = rbq[ctr["r"] % len(rbq)]
                ctr["r"] += 1
                o = Op(f"ds_read_b128 {qd}, {vSR} offset:{1024 * half if cfg.tgran else 1024 * k + 2048 * half}", "ds", vSR.names, qd.names)
                o.deps += [(x, 0) for tt in ((T,) if cfg.tgran else (T - 1, T)) for x in wr[(r, tt)]]
                o.deps += [(x, 0) for x in rb_last.get(qd.lo, [])]
                o.earliest = qk_end
                stt = f"buffer_store_dwordx4 {qd}, {vST[r][k]}, s[{sO}:{sO + 3}], 0 offen offset:{64 * T if cfg.tgran else 128 * H}"
                pol = cfg.st if H < cfg.st_from else cfg.st_last
                if pol:
                    stt += " " + pol
                so = Op(stt, "vstore", qd.names + vST[r][k].names + sn(sO, 4), [])
                so.meta["data"] = frozenset(qd.names)
                so.meta["hoist_wait"] = True
                so.deps += [(o, cfg.lat), (sta[(r, k)], 0)]
                rb_last[qd.lo] = [so]
                rds.append(o)
                sts.append(so)
            stg_last_read[half] = rds
            ops += rds + sts
        return ops

    fo, rcp = finish_rows((0, 1, 2), last_add)
    vq += fo + list(sta.values())
    ep = []
    nb = 2 * cfg.stg_n
    seqTr = [(T, r) for T in range(8) for r in rord]
    if cfg.hmajor:
        seqTr = [(2 * H + k, r) for H in range(4) for r in rord for k in range(2)]
    for (T, r) in seqTr:
        if True:
            buf = (3 * T + r) % (2 * nb) if cfg.tgran else (3 * (T >> 1) + r) % nb
            ep += piece(r, 7, T, rcp[r], buf, cfg.pk and T >= cfg.pkfrom and (not cfg.pairs or r == rord[-1]))

    gaps = {g: {"s": [], "v": []} for g in range(-1, NM + 1)}
    for b in bars:
        if b.meta["hoist_wait"]:
            gaps[b.gap]["s"].append(b)
    for g, d in gap_dma.items():
        pre = d.pre
        d.pre = []
        gaps[g - 1]["s"].append(pre[-1])
        if len(pre) > 1:
            gaps[max(g - 2, 0)]["s"].insert(0, pre[0])

    def ready(o, g, strict=False):
        if o.earliest > g:
            return False
        for (d, k) in o.deps:
            if d.gap is None or d.gap + k > g or (strict and d.gap >= g):
                return False
        return True

    queue = list(vq)
    equeue = list(ep)
    guard_at = {}
    for (g, ops) in guards:
        guard_at.setdefault(g, []).extend(ops)
    overflow = 0

    def place(o, g, where="v"):
        o.gap = g
        gaps[g][where].append(o)
        (queue if o in queue else equeue).remove(o)

    def force(o, g):
        nonlocal overflow
        if o.gap is not None:
            return
        for (d, k) in o.deps:
            if d.gap is None:
                force(d, g)
        assert o.earliest <= g, (o, g)
        overflow += 1
        place(o, g)

    W = 120

    def pick(kinds, g, strict=False, pk=False, pred=None):
        for qq in (queue, equeue):
            for o in qq[:W]:
                if o.kind in kinds and bool(o.meta.get("pk")) == pk and ready(o, g, strict) and (pred is None or pred(o)):
                    return o
        return None

    def pk_group(g):
        o = pick(("valu",), g, pk=True)
        if o is None:
            return None
        i = equeue.index(o)
        grp = [x for x in equeue[i:i + 4] if x.meta.get("pk")]
        return grp if all(ready(x, g) for x in grp) else None

    since = {}
    xacc = hacc = 0.0
    for g in range(0, NM):
        cap = 2
        mem = False
        nds = len(gap_ds.get(g, []))
        if nds:
            for d in gap_ds[g]:
                gaps[g]["v"].append(d["op"])
            cap = 1 if nds == 1 else 0
            mem = True
        if g in gap_dma:
            gaps[g]["v"].append(gap_dma[g])
            cap = 0
            mem = True
        light = cfg.dma_light and (g + 1) in gap_dma and g >= cfg.light_from
        if light:
            cap = min(cap, 0 if mem else 1)
        extra = 0
        if b0.gap < g < start_int[0] + cfg.xh_len and g not in gap_dma:
            hacc += cfg.xh
            extra = int(hacc)
            hacc -= extra
        if g >= start_int[fin0] - cfg.xlead and not light and g not in gap_dma:
            nst = sum(1 for o in ep if o.kind == "vstore" and o.gap is not None)
            xacc += cfg.xf_first if (nst < cfg.xf_nst and g >= start_int[fin0]) else cfg.xf
            extra = int(xacc)
            xacc -= extra
        o = pick(("salu",), g)
        if o is not None:
            place(o, g, "s")
        ex = pick(("trans",), g)
        if ex is not None:
            since.setdefault(id(ex), g)
        heavy = False
        pg = pk_group(g)
        if pg:
            since.setdefault(id(pg[0]), g)
        age = g - since[id(pg[0])] if pg else -1
        so = pick(("vstore",), g, True) if g not in gap_dma and nds <= 1 else None
        if so is not None:
            place(so, g)
            cap = 4 - nds
            extra = 0
            mem = True
            heavy = True
        elif not (mem or ex):
            mo = pick(("ds",), g, True)
            if mo is not None:
                place(mo, g)
                cap = 1
                mem = True
                if mo.text.startswith("ds_write"):
                    extra = 0
                    if pg and age >= cfg.pk_age:
                        cap = 2
                        heavy = True
        if not heavy and pg and age >= cfg.pk_age2 and g not in gap_dma and not light:
            cap = 5 - len(gaps[g]["v"])
            extra = 0
            heavy = True
        if ex is not None and not light and (not mem or heavy or (g not in gap_dma and g - since[id(ex)] >= cfg.exp_age)):
            place(ex, g)
            cap = cap - 2 if heavy else 0
        cap += extra
        while cap > 0:
            o = pick(("valu",), g)
            if o is None:
                break
            place(o, g)
            cap -= 1
        if heavy:
            pg = pk_group(g)
            if pg:
                for x in pg:
                    place(x, g)
        for o in guard_at.get(g, []):
            force(o, g)
        if g in fixed and cfg.preflush and g not in noflush:
            for o in list(queue):
                if o.meta.get("pre") is not None and o.meta["pre"] <= g:
                    place(o, g)
    tail = []
    clock = NM
    k = 0
    rest = queue + equeue
    while rest:
        o = next((o for o in rest if o.kind == "vstore" and ready(o, clock, True)), None)
        if o is None:
            o = next((o for o in rest if o.kind == "ds" and ready(o, clock)), None)
        if o is None:
            o = next((o for o in rest if o.kind not in ("ds", "vstore") and ready(o, clock)), None)
        if o is None:
            clock += 1
            continue
        o.gap = clock
        rest.remove(o)
        tail.append(o)
        k += 1
        if k % 3 == 0:
            clock += 1

    prog = list(pro)
    for o in fixed[-1]:
        o.gap = -1
    prog += fixed[-1]
    inv_start = {v: k for k, v in start_int.items()}
    pos_int = {}
    for g in range(NM):
        M[g].gap = g
        prog.append(M[g])
        if g + 1 in inv_start and (inv_start[g + 1] % cfg.stamp_every == 0 or inv_start[g + 1] < 3 or inv_start[g + 1] >= 2 * NP):
            prog += stamp(f"i{inv_start[g + 1]}")
            if inv_start[g + 1] in (0, fin0):
                prog += stamp(f"t{inv_start[g + 1]}", True)
        prog += gaps[g]["s"]
        prog += gaps[g]["v"]
        if g in fixed:
            for o in fixed[g]:
                o.gap = g
            prog += fixed[g]
    prog += stamp("mfmaend")
    prog += stamp("mfmaendR", True)
    prog += tail
    prog += stamp("stissued", True)
    if cfg.stamps:
        prog.append(Op("s_waitcnt vmcnt(0)", "wait", meta={"fixed": True}))
        prog += stamp("drained", True)
    prog += stamp.finish()
    prog.append(Op(f"s_cmp_lg_u64 s[{sFlag}:{sFlag + 1}], 0", "raw"))
    prog.append(Op("s_cbranch_scc1 L_fallback", "raw"))

    for o in prog:
        if o.kind == "mfma":
            o.meta["cover"] = [x for x in reads if x.gap <= o.gap - 1 - cfg.age and x.gap > o.gap - 40]
    prog = insert_waits_cover(prog)
    prog, moved = spread_scalars(prog)
    prog, pads = fix_hazards(prog, verbose=cfg.verbose)
    verify_lds(prog, U, None, cfg)
    idx = {id(o): i for i, o in enumerate(prog)}
    seg = lambda a, b: estimate_cycles(prog[idx[id(M[a])]:idx[id(M[b])] + 1])
    ints = sorted(start_int.items())
    est = {n: seg(g, (ints[i + 1][1] if i + 1 < len(ints) else NM) - 1) for i, (n, g) in enumerate(ints)}
    info = dict(NM=NM, late=late, overflow=overflow, pads=pads, est_main=seg(start_int[0], NM - 1),
                ideal=16 * (NM - start_int[0]), est_tail=estimate_cycles(prog[idx[id(M[-1])] + 1:]), n=len(prog), tail=len(tail),
                waits=sum(1 for o in prog if o.kind == "wait"), est=list(est.values()),
                pre2=seg(b0.gap + 1, start_int[0] - 1), total=seg(b0.gap + 1, NM - 1) + estimate_cycles(prog[idx[id(M[-1])] + 1:]))
    if cfg.verbose:
        print("flight", flight)
        print("slots", {u.name: u.slot for u in U.values()})
        print("bars", [(b.meta["name"], b.gap) for b in bars])
        print("ints", start_int, "last dma", last_dma.gap, "stores", [o.gap for o in ep if o.kind == "vstore"])
    cfg.stamp_names = stamp.list
    return prog, info


def insert_waits_cover(prog):
    pend = set()
    for o in prog:
        if o.kind == "ds":
            pend |= set(o.writes)
        if o.kind == "mfma" and (o.reads & pend):
            cov = o.meta.get("cover", [])
            o.meta["need_lgkm"] = cov
            for x in cov:
                pend -= set(x.writes)
            pend -= set(o.reads)
    return insert_waits(prog)


def verify_scalars(prog):
    last = {}
    for o in prog:
        if o.kind == "dma":
            for e in o.meta["expect"]:
                for r in e.writes:
                    if r != "scc":
                        assert last.get(r) is e, ("scalar operand clobbered", o.text, e.text)
        for r in o.writes:
            last[r] = o


def verify_dataflow(prog):
    pos = {id(o): i for i, o in enumerate(prog)}
    for o in prog:
        for (d, k) in o.deps:
            assert pos[id(d)] < pos[id(o)], ("order", d.text, o.text)


def verify_lds(prog, U, stg_bar, cfg):
    verify_scalars(prog)
    verify_dataflow(prog)
    pos = {id(o): i for i, o in enumerate(prog)}
    bars = [o for o in prog if o.kind == "barrier"]
    occ = {}
    for u in U.values():
        for k in range(u.nslots):
            occ.setdefault(u.slot + k, []).append(u)
        if u.kind != "Q":
            for rd in u.reads:
                b = u.vis
                assert pos[id(b)] < pos[id(rd)], ("read before barrier", u.name)
                for d in u.dmas:
                    assert d.meta["vm_idx"] < b.meta["vm_done_at"], ("dma not waited", u.name)
    for s, us in occ.items():
        us.sort(key=lambda u: pos[id(u.dmas[0])])
        for a, b in zip(us, us[1:]):
            first = min(pos[id(d)] for d in b.dmas)
            ok = any(pos[id(br)] < first and all(rd.meta["lg_idx"] < br.meta["lg_done_at"] for rd in a.reads) for br in bars)
            assert ok, ("slot WAR", s, a.name, b.name)
    writes = [o for o in prog if o.kind == "ds" and o.text.startswith("ds_write")]
    firstw = min(pos[id(o)] for o in writes)
    lo, hi = cfg.stg_base, cfg.stg_base + 4 * cfg.stg_wave
    for s, us in occ.items():
        if s * SLOT < hi and (s + 1) * SLOT > lo:
            for u in us:
                ok = any(pos[id(br)] < firstw and all(rd.meta["lg_idx"] < br.meta["lg_done_at"] for rd in u.reads) for br in bars)
                assert ok, ("staging WAR", s, u.name)


def fallback(cfg):
    L = []
    A = L.append
    t = Reg("v", 104, 12)
    KFf = KF[0]
    VFf = [Reg("a", 192, 4), Reg("a", 200, 4)]
    A("L_fallback:")
    A("s_waitcnt vmcnt(0) lgkmcnt(0)")
    A("s_barrier")
    A(f"s_mul_i32 s{sT3}, s{sW}, 40960")
    A(f"v_and_b32 {t[0]}, 63, v0")
    A(f"v_bfe_u32 {t[2]}, {t[0]}, 2, 2")
    A(f"v_lshlrev_b32 {t[2]}, 9, {t[2]}")
    A(f"v_lshrrev_b32 {t[5]}, 4, {t[0]}")
    A(f"v_lshl_add_u32 {t[2]}, {t[5]}, 6, {t[2]}")
    A(f"v_and_b32 {t[3]}, 3, {t[0]}")
    fk = [Reg("v", 80 + i, 1) for i in range(4)]
    fv = [Reg("v", 84 + i, 1) for i in range(4)]
    for rg in range(4):
        A(f"v_xor_b32 {t[4]}, {FR[rg]}, {t[3]}")
        A(f"v_lshl_add_u32 {fk[rg]}, {t[4]}, 4, {t[2]}")
        A(f"v_add_u32 {fk[rg]}, {rg * 2048}, {fk[rg]}")
        A(f"v_xor_b32 {t[4]}, {2 * (rg & 1)}, {t[3]}")
        A(f"v_lshl_add_u32 {fv[rg]}, {t[4]}, 4, {t[2]}")
        A(f"v_add_u32 {fv[rg]}, {rg * 2048}, {fv[rg]}")
    rk, rv0, rv1 = Reg("v", 88, 1), Reg("v", 89, 1), Reg("v", 90, 1)
    so = [Reg("v", 91 + r, 1) for r in range(3)]
    tmp8 = Reg("v", 96, 8)
    A(f"v_add_u32 {rk}, s{sT3}, {vKR[0]}")
    A(f"v_add_u32 {rv0}, s{sT3}, {vVR[0][0]}")
    A(f"v_add_u32 {rv1}, s{sT3}, {vVR[1][0]}")
    A(f"v_and_b32 {t[6]}, 15, {t[0]}")
    A(f"s_mul_i32 s{sT1}, s{sW}, 48")
    A(f"v_add_u32 {t[6]}, s{sT1}, {t[6]}")
    A(f"v_lshlrev_b32 {t[6]}, 9, {t[6]}")
    A(f"v_and_b32 {t[7]}, 1, {t[5]}")
    A(f"v_lshl_add_u32 {t[6]}, {t[7]}, 5, {t[6]}")
    A(f"v_lshrrev_b32 {t[7]}, 1, {t[5]}")
    A(f"v_lshl_add_u32 {so[0]}, {t[7]}, 4, {t[6]}")
    A(f"v_add_u32 {so[1]}, 8192, {so[0]}")
    A(f"v_add_u32 {so[2]}, 16384, {so[0]}")
    A(f"s_mul_i32 s{sT2}, s{sW}, {48 * 512}")
    for r in range(3):
        for rg in range(4):
            A(f"v_add_u32 {t[8]}, s{sT2}, {fk[rg]}")
            A(f"v_add_u32 {t[8]}, {r * 8192}, {t[8]}")
            for half in range(2):
                A(f"s_add_u32 m0, s{sT3}, {half * 4096 + rg * 1024 - half * 256}")
                A("s_nop 0")
                A(f"buffer_load_dwordx4 {t[8]}, s[{sQ}:{sQ + 3}], 0 offen offset:{half * 256} lds")
        A("s_waitcnt vmcnt(0)")
        for c in range(8):
            A(f"ds_read_b128 {Q[r][c]}, {rk} offset:{(c >> 2) * 4096 + (c & 3) * 256}")
        A("s_waitcnt lgkmcnt(0)")
    Pf = [vP[0][r][0] for r in range(3)]

    def load_k():
        for a in range(2):
            A(f"s_add_u32 s{sT1}, s{sT0}, {a * 8192}")
            for half in range(2):
                for rg in range(4):
                    A(f"s_add_u32 m0, s{sT3}, {a * 8192 + half * 4096 + rg * 1024 - half * 256}")
                    A("s_nop 0")
                    A(f"buffer_load_dwordx4 {fk[rg]}, s[{sK}:{sK + 3}], s{sT1} offen offset:{half * 256} lds")

    def load_v():
        for dh in range(2):
            for a in range(2):
                A(f"s_add_u32 s{sT1}, s{sT0}, {a * 8192 + dh * 256}")
                for rg in range(4):
                    A(f"s_add_u32 m0, s{sT3}, {16384 + dh * 8192 + a * 4096 + rg * 1024}")
                    A("s_nop 0")
                    A(f"buffer_load_dwordx4 {fv[rg]}, s[{sV}:{sV + 3}], s{sT1} offen lds")

    def qk(a):
        for c in range(8):
            A(f"ds_read_b128 {KFf[c]}, {rk} offset:{a * 8192 + (c >> 2) * 4096 + (c & 3) * 256}")
        A("s_waitcnt lgkmcnt(0)")
        for r in range(3):
            for c in range(8):
                A(f"v_mfma_f32_16x16x32_bf16 {vS[r]}, {KFf[c]}, {Q[r][c]}, {vS[r] if c else 0}")
        A("s_nop 15")

    def xl(op, x, tmp):
        for o in xlane(op, x, tmp):
            A("s_nop 1")
            A(o.text)

    for r in range(3):
        A(f"v_mov_b32 {vNM[r]}, 0xff800000")
    A(f"s_mov_b32 s{sT0}, 0")
    A("L_fb1:")
    load_k()
    A("s_waitcnt vmcnt(0)")
    for a in range(2):
        qk(a)
        for r in range(3):
            A(f"v_max3_f32 {vNM[r]}, {vNM[r]}, {vS[r][0]}, {vS[r][1]}")
            A(f"v_max3_f32 {vNM[r]}, {vNM[r]}, {vS[r][2]}, {vS[r][3]}")
    A(f"s_add_u32 s{sT0}, s{sT0}, 16384")
    A(f"s_cmp_lt_u32 s{sT0}, 262144")
    A("s_cbranch_scc1 L_fb1")
    for r in range(3):
        xl("v_max_f32", vNM[r], t[4])
        A(f"v_mul_f32 {vNM[r]}, {f2u(-C_SCALE):#x}, {vNM[r]}")
        A(f"v_mov_b32 {vL[r]}, 0")
    for r in range(3):
        for tt in range(16):
            for i in range(4):
                x = O[r][tt][i]
                A(f"v_mov_b32 {x}, 0" if x.f == "v" else f"v_accvgpr_write_b32 {x}, 0")
    A(f"s_mov_b32 s{sT0}, 0")
    A("L_fb2:")
    load_k()
    load_v()
    A("s_waitcnt vmcnt(0)")
    for a in range(2):
        qk(a)
        for r in range(3):
            S = vS[r]
            for i in range(4):
                A(f"v_fma_f32 {S[i]}, {S[i]}, s{sC}, {vNM[r]}")
            for i in range(4):
                A(f"v_exp_f32 {S[i]}, {S[i]}")
            A("s_nop 1")
            for i in range(4):
                A(f"v_add_f32 {vL[r]}, {vL[r]}, {S[i]}")
            for k in range(2):
                A(f"v_cvt_pk_bf16_f32 {Pf[r][2 * a + k]}, {S[2 * k]}, {S[2 * k + 1]}")
    A("s_nop 3")
    for tt in range(16):
        for s in range(2):
            base = rv0 if (tt & 1) == 0 else rv1
            off = 16384 + (tt >> 3) * 8192 + s * 4096 + ((tt & 7) >> 1) * 256
            A(f"ds_read_b64_tr_b16 {VFf[tt & 1][2 * s:2 * s + 2]}, {base} offset:{off}")
        A("s_waitcnt lgkmcnt(0)")
        for r in range(3):
            A(f"v_mfma_f32_16x16x32_bf16 {O[r][tt]}, {VFf[tt & 1]}, {Pf[r]}, {O[r][tt]}")
    A("s_nop 15")
    A(f"s_add_u32 s{sT0}, s{sT0}, 16384")
    A(f"s_cmp_lt_u32 s{sT0}, 262144")
    A("s_cbranch_scc1 L_fb2")
    for r in range(3):
        xl("v_add_f32", vL[r], t[4])
        A(f"v_rcp_f32 {vRL[r]}, {vL[r]}")
    A("s_nop 3")
    for T in range(8):
        for r in range(3):
            X, Y = O[r][2 * T], O[r][2 * T + 1]
            src = [X[i] for i in range(4)] + [Y[i] for i in range(4)]
            if X.f == "a":
                for i in range(8):
                    A(f"v_accvgpr_read_b32 {tmp8[i]}, {src[i]}")
                src = [tmp8[i] for i in range(8)]
            for i in range(8):
                A(f"v_mul_f32 {src[i]}, {src[i]}, {vRL[r]}")
            D = vS[(3 * T + r) % NSB]
            for k in range(4):
                A(f"v_cvt_pk_bf16_f32 {D[k]}, {src[2 * k]}, {src[2 * k + 1]}")
            A("s_nop 1")
            A(f"v_permlane16_swap_b32 {D[0]}, {D[2]}")
            A(f"v_permlane16_swap_b32 {D[1]}, {D[3]}")
            A(f"buffer_store_dwordx4 {D}, {so[r]}, s[{sO}:{sO + 3}], 0 offen offset:{64 * T}")
    A("s_waitcnt vmcnt(0)")
    return L


HEADER = """; GQA attention forward, B=8 Hq=16 Hkv=8 Sq=368 Sk=512 D=256, bf16 (emitted by my own generator script)
; and a wave with a sum above 2^64 recomputes its rows with the true row maximum (L_fallback).
; @launch grid=(256,1,1) block=(256,1,1) lds=163840
.amdgcn_target "amdgcn-amd-amdhsa--gfx950"
.text
.globl {k}
.p2align 8
.type {k},@function
{k}:
"""

FOOTER = """L_end:
    s_endpgm
.section .rodata,"a"
.p2align 6
.amdhsa_kernel {k}
  .amdhsa_next_free_vgpr 512
  .amdhsa_next_free_sgpr 102
  .amdhsa_accum_offset 256
  .amdhsa_group_segment_fixed_size 0
  .amdhsa_kernarg_size 48
  .amdhsa_user_sgpr_count 2
  .amdhsa_user_sgpr_kernarg_segment_ptr 1
  .amdhsa_system_sgpr_workgroup_id_x 1
.end_amdhsa_kernel
"""


def render(cfg, prog):
    s = HEADER.format(k=KNAME)
    if cfg.align12:
        s = s.replace(".p2align 8\n", ".p2align 12\n.p2align 8\n", 1)
    if cfg.stamps and cfg.spin == -1:
        s = "; stamps: " + " ".join(n + ("*" if r else "") for n, r in cfg.stamp_names) + "\n" + s
    for o in prog:
        s += (o.text if o.kind == "label" else "    " + o.text) + "\n"
    s += "    s_endpgm\nL_mainend:\n"
    for l in fallback(cfg):
        s += (l if l.endswith(":") else "    " + l) + "\n"
    s += FOOTER.format(k=KNAME)
    return s


def addresses(text, n):
    import subprocess, re, tempfile, os
    d = tempfile.mkdtemp()
    open(d + "/x.s", "w").write(text)
    subprocess.run(["clang", "-x", "assembler", "-target", "amdgcn-amd-amdhsa", "-mcpu=gfx950", "-c",
                    d + "/x.s", "-o", d + "/x.o"], check=True)
    out = subprocess.run(["llvm-objdump", "-d", "--mcpu=gfx950", d + "/x.o"], capture_output=True, text=True).stdout
    return [int(m.group(1), 16) for m in re.finditer(r"// ([0-9A-F]+):", out)][:n]


def add_walk(cfg, prog):
    iw = next(i for i, o in enumerate(prog) if o.text == "WALK")
    head, body = prog[:iw], prog[iw + 1:]
    lab = lambda t: Op(t, "label")
    raw = lambda t: Op(t, "raw")
    stubs = []
    for it in range(20):
        b2 = []
        for i, o in enumerate(body):
            if i in stubs:
                k = stubs.index(i)
                b2.append(lab(f"L_pg{k}:"))
                b2.append(raw(f"s_cbranch_execz L_wr{k}"))
            b2.append(o)
        npg = len(stubs)
        walk = [raw("s_mov_b64 exec, 0")]
        for w in range(4):
            if w < npg:
                walk += [raw(f"s_cmp_eq_u32 s{sW}, {w}"), raw(f"s_cbranch_scc1 L_pg{w}")]
        walk.append(raw("s_branch L_wdone"))
        for k in range(npg):
            walk.append(lab(f"L_wr{k}:"))
            walk.append(raw(f"s_branch L_pg{k + 4}" if k + 4 < npg else "s_branch L_wdone"))
        walk += [lab("L_wdone:"), raw("s_mov_b64 exec, -1")]
        full = head + walk + b2
        ins = [o for o in full if o.kind != "label"]
        addr = addresses(render(cfg, full), len(ins))
        amap = {id(o): a + cfg.base_off for o, a in zip(ins, addr)}
        want = []
        prev = amap[id(body[0])] // 4096
        for i, o in enumerate(body):
            if o.kind == "label":
                continue
            pg = amap[id(o)] // 4096
            if pg != prev:
                j = i
                for jj in range(i, min(i + cfg.walk_win, len(body))):
                    if body[jj - 1].kind == "mfma" and amap[id(body[jj - 1])] // 4096 == pg and body[jj].kind not in ("salu", "wait", "barrier"):
                        j = jj
                        break
                want.append(j)
                prev = pg
        if want == stubs:
            return full
        stubs = want
    return full


def emit(cfg):
    prog, info = build(cfg)
    if cfg.x_nobar:
        prog = [o for o in prog if not (o.kind == "barrier" and o.meta.get("hoist_wait"))]
    if cfg.x_nodma:
        prog = [o for o in prog if not (o.kind == "dma" and o.gap is not None and o.gap > 130)]
    if cfg.x_nowait:
        prog = [o for o in prog if not (o.kind == "wait" and "lgkm" in o.text and not o.meta.get("fixed"))]
    if cfg.walk:
        prog = add_walk(cfg, prog)
    return render(cfg, prog), info


Cfg.walk = True
Cfg.walk_win = 8
Cfg.base_off = 0x300
Cfg.spin_name = ""
Cfg.stamp_every = 1
Cfg.pkfrom = 7
Cfg.pk_age = 2
Cfg.pk_age2 = 4
Cfg.dma_light = True
Cfg.defer = 3
Cfg.softb0 = True
Cfg.padzero = False
Cfg.dma_win_early = 96
Cfg.early_n = 2
Cfg.light_from = 0
Cfg.xh = 0.0
Cfg.xh_len = 0
Cfg.first_order = "cccGGGG"
Cfg.xf_first = 0.0
Cfg.xf_nst = 6
Cfg.pairs = False
Cfg.hmajor = False
Cfg.rord = "021"
Cfg.tgran = False
Cfg.x_nobar = False
Cfg.x_nodma = False
Cfg.x_nowait = False
Cfg.align12 = True
Cfg.ldv = "="
Cfg.st_from = 9
Cfg.st_last = ""
Cfg.kdouble = False
Cfg.spf = 1.5
Cfg.xf = 0.0
Cfg.xlead = 48
Cfg.dma_lead = 0
Cfg.head = "K0,Q0,K1,pf,|,K2,K3"
Cfg.head_a = "Q1a,Q1b"
Cfg.head_a2 = "Q2a"
Cfg.head_c = "Q2b/K4"
Cfg.head_0 = "V0/"
Cfg.half_r = ""
Cfg.dma_cap = 12
Cfg.dma_win = 96
Cfg.join_order = "cGcGGGc"
Cfg.p7_order = "cGGGG"
Cfg.stg_bar = 14
Cfg.stg_n = 2
Cfg.sp7 = 1.3333
Cfg.sp2 = 1.3333
Cfg.x15 = 3
Cfg.x15_lead = 16
Cfg.x8 = 6
Cfg.x9 = 2
Cfg.xmem = 2
Cfg.exp_age = 3
Cfg.q2_before = "K5"
Cfg.dma_sp_fast = 3
Cfg.tail_extra = 3
Cfg.p7_extra = 0
Cfg.stag2 = ""
Cfg.stag_sh = 6
Cfg.stagger = ""
Cfg.cls_shift = 6
Cfg.cls_mask = 0

if __name__ == "__main__":
    ap = argparse.ArgumentParser()
    ap.add_argument("-o", default="standalone__gqa_softmax__near_ridge.s")
    ap.add_argument("-v", action="store_true")
    ap.add_argument("opts", nargs="*")
    a = ap.parse_args()
    cfg = Cfg()
    cfg.verbose = a.v
    for kv in a.opts:
        k, v = kv.split("=", 1)
        if k == "spin":
            cfg.spin, cfg.spin_name, cfg.stamps = 1, v, True
            continue
        old = getattr(cfg, k)
        if isinstance(old, bool):
            v = v in ("1", "true", "True")
        elif isinstance(old, int):
            v = int(v)
        elif isinstance(old, float):
            v = float(v)
        setattr(cfg, k, v.replace("+", " ") if isinstance(v, str) else v)
    s, info = emit(cfg)
    open(a.o, "w").write(s)
    print(info, len(s))
```

```python
import sys, math, argparse, struct
sys.path.insert(0, __file__.rsplit("/", 1)[0])
from ir import *

KNAME = "standalone__gqa_softmax__near_ridge_kernel"
C_SCALE = math.log2(math.e) / 16.0


def f2u(x):
    return struct.unpack("<I", struct.pack("<f", x))[0]


class Cfg:
    ldq = "nt"
    ldkv = "nt"
    ldkv0 = ""
    st = "nt"
    lat = 6
    age = 5
    sready = 4
    stamps = False
    dbg = False
    spin = -1
    spinwg = -1
    codepf = True
    force_fallback = False
    dma_sp = 6
    preflush = True
    y = 2
    pk = True
    verbose = False


sQ, sK, sV, sO = 12, 16, 20, 24
sW1K = 28
sC = 29
sKoff = 30
sVoff = 31
sT0, sT1, sT2, sT3 = 32, 33, 34, 35
sW = 36
sThr = 37
sW8K = 38
sCls = 39
sFlag = 40
sDBG = 44
vKR = [Reg("v", 1, 1), Reg("v", 2, 1), Reg("v", 3, 1)]
vVR = [[Reg("v", 4 + 3 * h + w, 1) for w in range(3)] for h in range(2)]
vDK = [Reg("v", 10, 1), Reg("v", 11, 1)]
vDV = [Reg("v", 12 + a, 1) for a in range(4)]
vST = [[Reg("v", 10 + 2 * r + k, 1) for k in range(2)] for r in range(3)]
vL = [Reg("v", 16 + r, 1) for r in range(3)]
vST0 = Reg("v", 19, 1)
vNM = [Reg("v", 20 + 2 * r, 1) for r in range(3)]
vRL = vNM
vSR = Reg("v", 21, 1)
vSW = [Reg("v", 23, 1), Reg("v", 25, 1), Reg("v", 26, 1), Reg("v", 27, 1)]
vXT = [Reg("v", 28 + r, 1) for r in range(3)]
vQR = Reg("v", 31, 1)
NSB = 6
vS = [Reg("v", 32 + 4 * i, 4) for i in range(NSB)]
vP = [[[Reg("v", 56 + 24 * b + 8 * r + 4 * kc, 4) for kc in range(2)] for r in range(3)] for b in range(3)]
vT = Reg("v", 32, 12)
vX = Reg("v", 44, 2)
O = [[Reg("v", 128 + 4 * t, 4) for t in range(16)],
     [Reg("v", 192 + 4 * t, 4) for t in range(16)],
     [Reg("a", 4 * t, 4) for t in range(16)]]
preK = [[Reg("v", 128 + 32 * a + 4 * c, 4) for c in range(8)] for a in range(4)] + \
       [[Reg("a", base + 4 * c, 4) for c in range(8)] for base in (0, 32, 192, 224)]
Q = [[Reg("a", 64 + 32 * r + 4 * c, 4) for c in range(8)] for r in range(3)]
KF = [[Reg("a", 160 + 4 * c, 4) for c in range(8)], [Reg("a", 224 + 4 * c, 4) for c in range(8)]]
VFB = [192 + 8 * b for b in range(4)]

SLOT = 16384
STG = 528
FR = (0, 2, 3, 1)


def sn(i, n=1):
    return R("s", i, n)


def valu(text, reads=(), writes=(), tag=""):
    return Op(text, "valu", reads, writes, tag)


def salu(text, reads=(), writes=()):
    return Op(text, "salu", reads, writes)


def names(*regs):
    out = []
    for r in regs:
        out += r.names if isinstance(r, Reg) else [r]
    return out


def mfma(D, A, B, C=None):
    c = str(C) if C is not None else "0"
    op = Op(f"v_mfma_f32_16x16x32_bf16 {D}, {A}, {B}, {c}", "mfma",
            names(A, B) + (C.names if C is not None else []), D.names)
    op.meta["srcab"] = frozenset(names(A, B))
    op.meta["srcc"] = frozenset(C.names) if C is not None else frozenset()
    return op


def dma(vaddr, srd, soff, imm, pol):
    so = f"s{soff}" if soff is not None else "0"
    t = f"buffer_load_dwordx4 {vaddr}, s[{srd}:{srd + 3}], {so} offen"
    if imm:
        t += f" offset:{imm}"
    if pol:
        t += " " + pol
    t += " lds"
    return Op(t, "dma", vaddr.names + sn(srd, 4) + (sn(soff) if soff is not None else []) + ["m0"], [])


def set_m0(const, base=sW1K):
    return salu(f"s_add_u32 m0, s{base}, {const}", sn(base), ["m0", "scc"])


class Unit:
    def __init__(self, kind, n, cfg):
        self.kind, self.n, self.cfg = kind, n, cfg
        self.slot = None
        self.nslots = 2 if kind == "Q" else 1
        self.dmas = []
        self.reads = []
        self.vis = None
        self.name = f"{kind}{n}"

    def make_dmas(self, vq=None):
        cfg = self.cfg
        ops = []
        base = self.slot * SLOT
        src = self.n % 16
        pol = cfg.ldkv if self.kind == "K" or cfg.ldv == "=" else cfg.ldv
        if self.kind == "K":
            so = salu(f"s_mov_b32 s{sKoff}, {src * 16384}", [], sn(sKoff))
            for a in range(2):
                for half in range(2):
                    d = dma(vDK[a], sK, sKoff, half * 256, pol)
                    d.pre = [set_m0(base + a * 8192 + half * 4096 - half * 256)]
                    ops.append(d)
            ops[0].pre.insert(0, so)
        elif self.kind == "V":
            j, h = divmod(src, 2)
            so = salu(f"s_mov_b32 s{sVoff}, {j * 32768 + h * 256}", [], sn(sVoff))
            for a in range(4):
                d = dma(vDV[a], sV, sVoff, 0, pol)
                d.pre = [set_m0(base + a * 4096)]
                ops.append(d)
            ops[0].pre.insert(0, so)
        else:
            for half in range(2):
                for rg in range(4):
                    d = dma(vq[rg], sQ, None, half * 256, cfg.ldq)
                    d.pre = [set_m0(base + half * 4096 + rg * 1024 - half * 256, sW8K)]
                    ops.append(d)
        for d in ops:
            d.meta["unit"] = self
            d.meta["expect"] = [d.pre[-1]] + ([ops[0].pre[0]] if self.kind != "Q" else [])
        self.dmas = ops
        return ops


def flat_dmas(ops):
    out = []
    for d in ops:
        out += d.pre
        out.append(salu("s_nop 0"))
        out.append(d)
        d.pre = []
    return out


def xlane(op, x, tmp):
    o = []
    o.append(valu(f"v_mov_b32 {tmp}, {x}", x.names, tmp.names))
    o.append(valu(f"v_permlane32_swap_b32 {x}, {tmp}", names(x, tmp), names(x, tmp)))
    o.append(valu(f"{op} {x}, {x}, {tmp}", names(x, tmp), x.names))
    o.append(valu(f"v_mov_b32 {tmp}, {x}", x.names, tmp.names))
    o.append(valu(f"v_permlane16_swap_b32 {x}, {tmp}", names(x, tmp), names(x, tmp)))
    o.append(valu(f"{op} {x}, {x}, {tmp}", names(x, tmp), x.names))
    return o


class Stamps:
    def __init__(self, cfg):
        self.cfg = cfg
        self.list = []

    def __call__(self, name, real=False):
        cfg = self.cfg
        if not cfg.stamps:
            return []
        if cfg.spin != -1:
            if name != cfg.spin_name:
                return []
            return [Op("s_memrealtime s[48:49]", "salu")]
        k = len(self.list)
        assert 48 + 2 * k + 1 <= 101, "too many stamps"
        self.list.append((name, real))
        return [Op(f"{'s_memrealtime' if real else 's_memtime'} s[{48 + 2 * k}:{49 + 2 * k}]", "salu")]

    def finish(self):
        cfg = self.cfg
        o = []
        raw = lambda t: o.append(Op(t, "raw"))
        if not cfg.stamps:
            return o
        raw("s_waitcnt lgkmcnt(0)")
        if cfg.spin != -1:
            if cfg.spinwg >= 0:
                raw(f"s_cmp_lg_u32 s2, {cfg.spinwg}")
                raw("s_cbranch_scc1 L_end")
            o.append(Op("L_spin:", "label"))
            raw("s_memrealtime s[50:51]")
            raw("s_waitcnt lgkmcnt(0)")
            raw("s_sub_u32 s50, s50, s48")
            raw("s_cmp_lt_u32 s50, 5000")
            raw("s_cbranch_scc1 L_spin")
            return o
        raw("v_mov_b32 v40, 0")
        for k in range(len(self.list)):
            raw(f"v_writelane_b32 v40, s{48 + 2 * k}, {k}")
        raw(f"s_load_dwordx2 s[{sDBG}:{sDBG + 1}], s[0:1], 40")
        raw(f"s_mov_b32 s{sDBG + 2}, 0x1000000")
        raw(f"s_mov_b32 s{sDBG + 3}, 0x00020000")
        raw("s_lshl_b32 s48, s2, 8")
        raw("v_add_u32 v41, s48, v0")
        raw("v_lshlrev_b32 v41, 2, v41")
        raw("s_waitcnt lgkmcnt(0)")
        raw(f"buffer_store_dword v40, v41, s[{sDBG}:{sDBG + 3}], 0 offen")
        return o


def prologue(cfg, U, stamp):
    P = []
    A = P.append
    raw = lambda t: A(Op(t, "raw"))
    raw("s_cmp_ge_u32 s2, 256")
    raw("s_cbranch_scc1 L_end")
    raw("s_load_dwordx4 s[4:7], s[0:1], 0")
    raw("s_load_dwordx4 s[8:11], s[0:1], 16")
    P += stamp("start", True)
    t = vT
    lane, wv, common, cpos, f_w = t[0], t[1], t[2], t[3], t[4]
    if cfg.codepf:
        raw("s_getpc_b64 s[42:43]")
        A(Op("L_pfbase:", "label"))
        A(valu(f"v_lshlrev_b32 {t[10]}, 7, v0", ["v0"], t[10].names))
        A(Op(f"global_load_dword {vX[0]}, {t[10]}, s[42:43]", "vload", t[10].names, vX[0].names))
    A(valu(f"v_lshrrev_b32 {wv}, 6, v0", ["v0"], wv.names))
    A(valu(f"v_and_b32 {lane}, 63, v0", ["v0"], lane.names))
    A(valu(f"v_readfirstlane_b32 s{sW}, {wv}", wv.names, sn(sW)))
    A(salu(f"s_and_b32 s{sT0}, s2, 7", [], sn(sT0)))
    A(salu(f"s_lshr_b32 s{sT1}, s2, 5", [], sn(sT1)))
    A(salu(f"s_lshl3_add_u32 s{sT0}, s{sT1}, s{sT0}", [], sn(sT0)))
    A(salu(f"s_bfe_u32 s{sT1}, s2, 0x20003", [], sn(sT1)))
    A(salu(f"s_lshl2_add_u32 s{sT2}, s{sT0}, s{sT1}", [], sn(sT2)))
    A(salu(f"s_mul_i32 s{sT2}, s{sT2}, {184 * 512}", [], sn(sT2)))
    A(salu(f"s_lshl_b32 s{sT0}, s{sT0}, 18", [], sn(sT0)))
    A(valu(f"v_bfe_u32 {t[6]}, {lane}, 2, 2", lane.names, t[6].names))
    A(valu(f"v_lshrrev_b32 {t[5]}, 4, {lane}", lane.names, t[5].names))
    A(valu(f"v_lshlrev_b32 {common}, 9, {t[6]}", t[6].names, common.names))
    A(valu(f"v_lshl_add_u32 {common}, {t[5]}, 6, {common}", names(t[5], common), common.names))
    A(valu(f"v_and_b32 {cpos}, 3, {lane}", lane.names, cpos.names))
    A(salu(f"s_lshl_b32 s{sT1}, s{sW}, 1", sn(sW), sn(sT1)))
    A(salu(f"s_lshr_b32 s{sT1}, 0x78, s{sT1}", [], sn(sT1)))
    A(salu(f"s_and_b32 s{sT1}, s{sT1}, 3", [], sn(sT1)))
    A(salu(f"s_lshl_b32 s{sW1K}, s{sW}, 10", sn(sW), sn(sW1K)))
    A(salu(f"s_lshl_b32 s{sW8K}, s{sW}, 13", sn(sW), sn(sW8K)))
    A(valu(f"v_xor_b32 {f_w}, s{sT1}, {cpos}", cpos.names, f_w.names))
    A(valu(f"v_lshl_add_u32 {t[7]}, {wv}, 11, {common}", names(wv, common), t[7].names))
    A(valu(f"v_lshl_add_u32 {vDK[0]}, {f_w}, 4, {t[7]}", names(f_w, t[7]), vDK[0].names))
    A(valu(f"v_add_u32 {vDK[1]}, 8192, {vDK[0]}", vDK[0].names, vDK[1].names))
    vq = [[Reg("v", 104 + 4 * r + rg, 1) for rg in range(4)] for r in range(3)]
    qb = Reg("v", 116, 1)
    A(salu(f"s_mov_b32 s{sT3}, {48 * 512}", [], sn(sT3)))
    A(valu(f"v_mad_u32_u24 {qb}, {wv}, s{sT3}, {common}", names(wv, common), qb.names))
    for rg in range(4):
        x = Reg("v", 117, 1)
        A(valu(f"v_xor_b32 {x}, {FR[rg]}, {cpos}", cpos.names, x.names))
        A(valu(f"v_lshl_add_u32 {vq[0][rg]}, {x}, 4, {qb}", names(x, qb), vq[0][rg].names))
        if rg:
            A(valu(f"v_add_u32 {vq[0][rg]}, {rg * 2048}, {vq[0][rg]}", vq[0][rg].names, vq[0][rg].names))
    A(Op("s_waitcnt lgkmcnt(0)", "wait", meta={"fixed": True}))
    P += stamp("karg", True)

    def srd(srd, p, off, nrec):
        A(salu(f"s_add_u32 s{srd}, s{p}, s{off}", [], sn(srd)))
        A(salu(f"s_addc_u32 s{srd + 1}, s{p + 1}, 0", [], sn(srd + 1)))
        A(salu(f"s_mov_b32 s{srd + 2}, {nrec}", [], sn(srd + 2)))
        A(salu(f"s_mov_b32 s{srd + 3}, 0x00020000", [], sn(srd + 3)))

    def vaddr():
        A(valu(f"v_and_b32 {t[9]}, 1, {wv}", wv.names, t[9].names))
        A(valu(f"v_lshlrev_b32 {t[9]}, 1, {t[9]}", t[9].names, t[9].names))
        A(valu(f"v_xor_b32 {t[9]}, {t[9]}, {cpos}", names(t[9], cpos), t[9].names))
        A(valu(f"v_lshl_add_u32 {vDV[0]}, {t[9]}, 4, {t[7]}", names(t[9], t[7]), vDV[0].names))
        for a in range(1, 4):
            A(valu(f"v_add_u32 {vDV[a]}, {8192 * a}, {vDV[0]}", vDV[0].names, vDV[a].names))

    def codepf2():
        if cfg.codepf:
            A(valu(f"v_add_u32 {t[10]}, 32768, {t[10]}", t[10].names, t[10].names))
            A(valu(f"v_min_u32 {t[10]}, L_mainend - L_pfbase, {t[10]}", t[10].names, t[10].names))
            A(Op(f"global_load_dword {vX[1]}, {t[10]}, s[42:43]", "vload", t[10].names, vX[1].names))

    def cwait(k):
        raw(f"s_cmp_lt_u32 s{sCls}, {k}")
        raw(f"s_cbranch_scc1 L_nw{k}")
        raw("s_waitcnt vmcnt(0)")
        A(Op(f"L_nw{k}:", "label"))

    srd(sK, 6, sT0, 262144)
    srd(sQ, 4, sT2, 184 * 512)
    if cfg.stag2:
        raw(f"s_lshr_b32 s{sCls}, s2, 5")
        raw(f"s_lshl_b32 s{sCls}, s{sCls}, 2")
        raw(f"s_lshr_b32 s{sCls}, {cfg.stag2}, s{sCls}")
        raw(f"s_and_b32 s{sCls}, s{sCls}, 15")
        raw(f"s_cbranch_scc0 L_go")
        raw(f"v_lshlrev_b32 {t[9]}, {cfg.stag_sh}, v0")
        raw(f"s_mov_b32 s{sKoff}, 0")
        A(Op("L_warm:", "label"))
        raw(f"buffer_load_dword {t[8]}, {t[9]}, s[{sK}:{sK + 3}], s{sKoff} offen {cfg.ldkv}")
        raw(f"s_add_u32 s{sKoff}, s{sKoff}, {256 << cfg.stag_sh}")
        raw(f"s_sub_u32 s{sCls}, s{sCls}, 1")
        raw("s_waitcnt vmcnt(0)")
        raw(f"s_cmp_lg_u32 s{sCls}, 0")
        raw("s_cbranch_scc1 L_warm")
        A(Op("L_go:", "label"))
    seq = cfg.head.split(",")

    def issue(x):
        if x == "pf":
            codepf2()
        else:
            if x[:2] in ("Q1", "Q2"):
                qaddr12()
            P.extend(head_dmas(U, x, vq))

    done12 = []

    def qaddr12():
        if not done12:
            done12.append(1)
            for r in (1, 2):
                for rg in range(4):
                    A(valu(f"v_add_u32 {vq[r][rg]}, {8192 * r}, {vq[0][rg]}", vq[0][rg].names, vq[r][rg].names))

    cut = seq.index("|")
    for x in seq[:cut]:
        issue(x)
    srd(sV, 8, sT0, 262144)
    srd(sO, 10, sT2, 184 * 512)
    vaddr()
    g = t[5]
    A(valu(f"v_lshlrev_b32 {t[10]}, 1, {t[6]}", t[6].names, t[10].names))
    A(valu(f"v_lshrrev_b32 {t[10]}, {t[10]}, 0x78".replace("0x78", str(t[11])), names(t[10], t[11]), t[10].names))
    P.insert(len(P) - 1, valu(f"v_mov_b32 {t[11]}, 0x78", [], t[11].names))
    A(valu(f"v_and_b32 {t[10]}, 3, {t[10]}", t[10].names, t[10].names))
    A(valu(f"v_xor_b32 {t[10]}, {t[10]}, {g}", names(t[10], g), t[10].names))
    A(valu(f"v_lshlrev_b32 {t[10]}, 4, {t[10]}", t[10].names, t[10].names))
    A(valu(f"v_lshl_add_u32 {t[10]}, {t[6]}, 10, {t[10]}", names(t[6], t[10]), t[10].names))
    A(valu(f"v_lshl_add_u32 {vKR[0]}, {cpos}, 6, {t[10]}", names(cpos, t[10]), vKR[0].names))
    A(valu(f"v_add_u32 {vKR[1]}, 0x10000, {vKR[0]}", vKR[0].names, vKR[1].names))
    A(valu(f"v_add_u32 {vKR[2]}, 0x20000, {vKR[0]}", vKR[0].names, vKR[2].names))
    A(valu(f"v_lshlrev_b32 {t[10]}, 10, {g}", g.names, t[10].names))
    A(valu(f"v_lshl_add_u32 {t[10]}, {t[6]}, 6, {t[10]}", names(t[6], t[10]), t[10].names))
    A(valu(f"v_lshl_add_u32 {t[10]}, {cpos}, 3, {t[10]}", names(cpos, t[10]), t[10].names))
    A(valu(f"v_and_b32 {t[11]}, 1, {g}", g.names, t[11].names))
    A(valu(f"v_lshl_add_u32 {vVR[0][0]}, {t[11]}, 5, {t[10]}", names(t[11], t[10]), vVR[0][0].names))
    A(valu(f"v_xor_b32 {vVR[1][0]}, 32, {vVR[0][0]}", vVR[0][0].names, vVR[1][0].names))
    for h in range(2):
        for w in (1, 2):
            A(valu(f"v_add_u32 {vVR[h][w]}, {w * 65536}, {vVR[h][0]}", vVR[h][0].names, vVR[h][w].names))
    if cfg.tgran:
        n15 = t[11]
        x0, x1, x2 = Reg("v", 118, 1), Reg("v", 119, 1), Reg("v", 120, 1)
        A(valu(f"v_and_b32 {n15}, 15, {lane}", lane.names, n15.names))
        A(valu(f"v_lshrrev_b32 {x1}, 2, {lane}", lane.names, x1.names))
        A(valu(f"v_mad_u32_u24 {t[10]}, {wv}, 48, {x1}", names(wv, x1), t[10].names))
        A(valu(f"v_lshlrev_b32 {t[10]}, 9, {t[10]}", t[10].names, t[10].names))
        A(valu(f"v_lshl_add_u32 {vST0}, {cpos}, 4, {t[10]}", names(cpos, t[10]), vST0.names))
        A(salu(f"s_mul_i32 s{sT3}, s{sW}, {cfg.stg_wave}", sn(sW), sn(sT3)))
        A(salu(f"s_add_u32 s{sT3}, s{sT3}, {cfg.stg_base}", [], sn(sT3)))
        A(valu(f"v_bfe_u32 {x2}, {lane}, 3, 2", lane.names, x2.names))
        A(valu(f"v_xor_b32 {x2}, {x2}, {cpos}", names(x2, cpos), x2.names))
        A(valu(f"v_lshlrev_b32 {x2}, 4, {x2}", x2.names, x2.names))
        A(valu(f"v_lshl_add_u32 {x2}, {x1}, 6, {x2}", names(x1, x2), x2.names))
        A(valu(f"v_add_u32 {vSR}, s{sT3}, {x2}", x2.names, vSR.names))
        A(valu(f"v_bfe_u32 {x0}, {lane}, 1, 2", lane.names, x0.names))
        A(valu(f"v_lshrrev_b32 {x1}, 1, {g}", g.names, x1.names))
        A(valu(f"v_xor_b32 {x0}, {x0}, {x1}", names(x0, x1), x0.names))
        A(valu(f"v_lshlrev_b32 {x0}, 4, {x0}", x0.names, x0.names))
        A(valu(f"v_lshl_add_u32 {x0}, {n15}, 6, {x0}", names(n15, x0), x0.names))
        A(valu(f"v_and_b32 {x1}, 1, {g}", g.names, x1.names))
        A(valu(f"v_lshl_add_u32 {x0}, {x1}, 3, {x0}", names(x1, x0), x0.names))
        A(valu(f"v_add_u32 {vSW[0]}, s{sT3}, {x0}", x0.names, vSW[0].names))
        A(valu(f"v_xor_b32 {vSW[1]}, 32, {vSW[0]}", vSW[0].names, vSW[1].names))
    else:
        n15 = t[11]
        x0, x1, x2 = Reg("v", 118, 1), Reg("v", 119, 1), Reg("v", 120, 1)
        A(valu(f"v_and_b32 {n15}, 15, {lane}", lane.names, n15.names))
        A(valu(f"v_lshrrev_b32 {x1}, 3, {lane}", lane.names, x1.names))
        A(valu(f"v_and_b32 {x2}, 7, {lane}", lane.names, x2.names))
        A(valu(f"v_mad_u32_u24 {t[10]}, {wv}, 48, {x1}", names(wv, x1), t[10].names))
        A(valu(f"v_lshlrev_b32 {t[10]}, 9, {t[10]}", t[10].names, t[10].names))
        A(valu(f"v_lshl_add_u32 {vST0}, {x2}, 4, {t[10]}", names(x2, t[10]), vST0.names))
        A(salu(f"s_mul_i32 s{sT3}, s{sW}, {cfg.stg_wave}", sn(sW), sn(sT3)))
        A(salu(f"s_add_u32 s{sT3}, s{sT3}, {cfg.stg_base}", [], sn(sT3)))
        A(valu(f"v_xor_b32 {t[10]}, {x2}, {x1}", names(x2, x1), t[10].names))
        A(valu(f"v_lshlrev_b32 {t[10]}, 4, {t[10]}", t[10].names, t[10].names))
        A(valu(f"v_lshl_add_u32 {t[10]}, {x1}, 7, {t[10]}", names(x1, t[10]), t[10].names))
        A(valu(f"v_add_u32 {vSR}, s{sT3}, {t[10]}", t[10].names, vSR.names))
        A(valu(f"v_lshrrev_b32 {x1}, 1, {g}", g.names, x1.names))
        A(valu(f"v_xor_b32 {x0}, {x2}, {x1}", names(x2, x1), x0.names))
        A(valu(f"v_lshlrev_b32 {x0}, 4, {x0}", x0.names, x0.names))
        A(valu(f"v_lshl_add_u32 {x0}, {n15}, 7, {x0}", names(n15, x0), x0.names))
        A(valu(f"v_and_b32 {x1}, 1, {g}", g.names, x1.names))
        A(valu(f"v_lshl_add_u32 {x0}, {x1}, 3, {x0}", names(x1, x0), x0.names))
        A(valu(f"v_add_u32 {x0}, s{sT3}, {x0}", x0.names, x0.names))
        for i in range(4):
            A(valu(f"v_xor_b32 {vSW[i]}, {32 * i}, {x0}", x0.names, vSW[i].names))
    A(valu(f"v_add_u32 {vQR}, s{sW8K}, {vKR[1]}", vKR[1].names + sn(sW8K), vQR.names))
    A(salu(f"s_mov_b32 s{sC}, {f2u(C_SCALE):#x}", [], sn(sC)))
    A(salu(f"s_mov_b32 s{sThr}, {f2u(2.0 ** 64 if not cfg.force_fallback else 1.0):#x}", [], sn(sThr)))
    A(salu(f"s_mov_b64 s[{sFlag}:{sFlag + 1}], 0", [], sn(sFlag, 2)))
    for r in range(3):
        A(valu(f"v_mov_b32 {vL[r]}, 0", [], vL[r].names))
    if cfg.padzero:
        A(valu(f"v_and_b32 {t[10]}, 0xc8, v0", ["v0"], t[10].names))
        A(valu(f"v_cmp_eq_u32 vcc, 0xc8, {t[10]}", t[10].names, ["svcc"]))
        A(valu(f"v_mov_b32 {t[10]}, {f2u(-1e30):#x}", [], t[10].names))
        A(valu(f"v_cndmask_b32 {vL[2]}, {vL[2]}, {t[10]}, vcc", names(vL[2], t[10]) + ["svcc"], vL[2].names))
    qaddr12()
    for x in seq[cut + 1:]:
        issue(x)
    P += stamp("issued", True)
    if cfg.walk:
        A(Op("WALK", "label"))
    return P, vq


def head_dmas(U, x, vq):
    name, part = (x[:2], x[2:]) if x[0] == "Q" else (x, "")
    u = U[name]
    if not u.dmas:
        u.make_dmas(vq[u.n]) if u.kind == "Q" else u.make_dmas()
    ops = u.dmas if not part else (u.dmas[:4] if part == "a" else u.dmas[4:])
    return flat_dmas(ops)


def q_reads(u):
    ops = []
    r = u.n
    base = u.slot * SLOT - 65536
    pre = []
    addr = vQR
    if base >= 65536:
        addr = vXT[2]
        pre.append(valu(f"v_add_u32 {addr}, 0x10000, {vQR}", vQR.names, addr.names))
        base -= 65536
    for c in range(8):
        off = base + (c >> 2) * 4096 + (c & 3) * 256
        o = Op(f"ds_read_b128 {Q[r][c]}, {addr} offset:{off}", "ds", addr.names, Q[r][c].names)
        o.meta["qhalf"] = c >> 2
        o.meta["unit"] = u
        u.reads.append(o)
        ops.append(o)
    return pre, ops


def build(cfg):
    act = lambda s: (0, 1, 2)
    stamp = Stamps(cfg)
    U = {}
    for n in range(16):
        U[f"K{n}"] = Unit("K", n, cfg)
        U[f"V{n}"] = Unit("V", n, cfg)
    for r in range(3):
        U[f"Q{r}"] = Unit("Q", r, cfg)
    U["K0"].slot, U["K1"].slot, U["K2"].slot, U["K3"].slot = 0, 1, 2, 3
    U["Q0"].slot, U["Q1"].slot, U["Q2"].slot = 4, 6, 8
    cfg.stg_base, cfg.stg_wave = 0, 4096 * cfg.stg_n

    pro, vqd = prologue(cfg, U, stamp)

    M = []
    fixed = {}
    dsq = []
    vq = []
    sbuf_last = {}
    spool = {"bufs": list(vS) + [Reg("v", vP[2][0][0].lo + 4 * i, 4) for i in range(3, 6)], "ctr": 0}
    U["K4"].slot, U["V0"].slot = 4, 5
    hd = lambda lst: [o for x in lst.split(",") if x for o in head_dmas(U, x, vqd)]
    guards = []
    Pcvt = {}
    negm_ready = {}
    preg_free = {}
    last_add = {}
    bars = []

    def Preg(s, r):
        return vP[s % 3][r]

    def softmax_ops(s, r, a, S, ready_gap):
        dst = Preg(s, r)[a >> 1]
        fm, ex, ad, cv = [], [], [], []
        for i in range(4):
            o = valu(f"v_fma_f32 {S[i]}, {S[i]}, s{sC}, {vNM[r]}", names(S[i], vNM[r]) + sn(sC), S[i].names)
            o.earliest = ready_gap
            o.deps.append((negm_ready[r], 0))
            fm.append(o)
        for i in range(4):
            o = Op(f"v_exp_f32 {S[i]}, {S[i]}", "trans", S[i].names, S[i].names)
            o.deps.append((fm[i], 0))
            ex.append(o)
        for i in range(4):
            o = valu(f"v_add_f32 {vL[r]}, {vL[r]}, {S[i]}", names(vL[r], S[i]), vL[r].names)
            o.deps.append((ex[i], 1))
            prev_add = ad[-1] if ad else last_add.get(r)
            if prev_add is not None:
                o.deps.append((prev_add, 0))
            ad.append(o)
        for k in range(2):
            d = dst[2 * (a & 1) + k]
            o = valu(f"v_cvt_pk_bf16_f32 {d}, {S[2 * k]}, {S[2 * k + 1]}", names(S[2 * k], S[2 * k + 1]), d.names)
            o.deps += [(ex[2 * k], 1), (ex[2 * k + 1], 1)]
            o.earliest = preg_free.get(dst.lo, -1)
            if dst.lo in sbuf_last:
                o.deps += [(x, 0) for x in sbuf_last[dst.lo]]
            cv.append(o)
        Pcvt[(s, r, a)] = cv
        vq.extend([fm[0], fm[1], ex[0], fm[2], ex[1], fm[3], ad[0], ex[2], ad[1], cv[0], ex[3], ad[2], ad[3], cv[1]])
        last_add[r] = ad[3]
        return ad + cv

    held = {}
    noflush = set()

    halfS = {}

    def chain(s, r, a, frags, part=None):
        start = len(M)
        if part == 1:
            S = halfS[(s, r, a)]
            si = S.lo
        else:
            S = spool["bufs"][spool["ctr"] % len(spool["bufs"])]
            spool["ctr"] += 1
            while sbuf_last.get(S.lo) == "held":
                S = spool["bufs"][spool["ctr"] % len(spool["bufs"])]
                spool["ctr"] += 1
            si = S.lo
            if sbuf_last.get(si):
                guards.append((start - 1, sbuf_last[si]))
        for c in range(8) if part is None else range(4 * part, 4 * part + 4):
            M.append(mfma(S, frags[c], Q[r][c], S if c else None))
        if part == 0:
            halfS[(s, r, a)] = S
            sbuf_last[si] = "held"
            return start
        end = len(M) - 1
        if r not in negm_ready:
            held.setdefault(r, []).append((si, S, end, a))
            sbuf_last[si] = "held"
            if len(held[r]) == 2:
                S0, S1 = held[r][0][1], held[r][1][1]
                m, tmp = vNM[r], vXT[r]
                ops = [valu(f"v_max3_f32 {m}, {S0[0]}, {S0[1]}, {S0[2]}", names(S0[0], S0[1], S0[2]), m.names),
                       valu(f"v_max3_f32 {tmp}, {S0[3]}, {S1[0]}, {S1[1]}", names(S0[3], S1[0], S1[1]), tmp.names),
                       valu(f"v_max3_f32 {m}, {m}, {S1[2]}, {S1[3]}", names(m, S1[2], S1[3]), m.names),
                       valu(f"v_max_f32 {m}, {m}, {tmp}", names(m, tmp), m.names)]
                ops += xlane("v_max_f32", m, tmp)
                if r == 2 and cfg.padzero:
                    ops.append(valu(f"v_fma_f32 {m}, -{m}, s{sC}, {vL[2]}", names(m, vL[2]) + sn(sC), m.names))
                else:
                    ops.append(valu(f"v_mul_f32 {m}, {f2u(-C_SCALE):#x}, {m}", m.names, m.names))
                prev = None
                for o in ops:
                    o.earliest = end + cfg.sready
                    if prev is not None:
                        o.deps.append((prev, 1 if "permlane" in o.text else 0))
                    prev = o
                vq.extend(ops)
                negm_ready[r] = ops[-1]
                for (si2, S2, end2, a2) in held[r]:
                    sbuf_last[si2] = softmax_ops(s, r, a2, S2, end2 + cfg.sready)
        else:
            sbuf_last[si] = softmax_ops(s, r, a, S, end + cfg.sready)
        return start

    afree = {}
    touched = set()
    vpool = {"bufs": list(VFB), "ctr": 0}

    def group(steps, t, smajor=False):
        base = vpool["bufs"][vpool["ctr"] % len(vpool["bufs"])]
        vpool["ctr"] += 1
        tt = t & 7
        start = len(M)
        frs = []
        for i, s in enumerate(steps):
            u = U[f"V{2 * s + (t >> 3)}"]
            for kc in range(2):
                F = Reg("a", base + 8 * i + 4 * kc, 4)
                frs.append((s, kc, F))
                for k in range(2):
                    a = 2 * kc + k
                    dsq.append(dict(kind="V", dst=F[2 * k:2 * k + 2], h=tt & 1, u=u, off=a * 4096 + (tt >> 1) * 256,
                                    cons=start + 2 * i + kc, free=afree.get(F.lo, -1)))
        seq = [(r, x) for r in act(steps[0]) for x in frs]
        if smajor:
            seq = [(r, x) for s0 in steps for r in act(s0) for x in frs if x[0] == s0]
            for d in dsq[-4 * len(steps):]:
                i = d["cons"] - start
                d["cons"] = start + 6 * (i >> 1) + (i & 1)
        for (r, (s, kc, F)) in seq:
            if True:
                C = O[r][t] if (r, t) in touched else None
                touched.add((r, t))
                P_ = Preg(s, r)[kc]
                M.append(mfma(O[r][t], F, P_, C))
                guards.append((len(M) - 3, Pcvt[(s, r, 2 * kc)] + Pcvt[(s, r, 2 * kc + 1)]))
                preg_free[P_.lo] = len(M) - 1
                afree[F.lo] = len(M) - 1
        return len(M) - 1

    pair_end = {}

    def group_pair(steps, ta, tb, rorder, smajor=False):
        start = len(M)
        frs = []
        for j, t in enumerate((ta, tb)):
            base = vpool["bufs"][vpool["ctr"] % len(vpool["bufs"])]
            vpool["ctr"] += 1
            for i, s in enumerate(steps):
                for kc in range(2):
                    frs.append((t, s, kc, Reg("a", base + 8 * i + 4 * kc, 4)))
        first = sorted(frs, key=lambda x: (x[1] == steps[-1], x[0], x[1], x[2])) if smajor else frs
        for i, (t, s, kc, F) in enumerate(first):
            u = U[f"V{2 * s + (t >> 3)}"]
            tt = t & 7
            for k in range(2):
                dsq.append(dict(kind="V", dst=F[2 * k:2 * k + 2], h=tt & 1, u=u, off=(2 * kc + k) * 4096 + (tt >> 1) * 256,
                                cons=start + i, free=afree.get(F.lo, -1)))
        for n_, r in enumerate(rorder):
            for (t, s, kc, F) in (first if n_ == 0 else frs):
                P_ = Preg(s, r)[kc]
                M.append(mfma(O[r][t], F, P_, O[r][t]))
                guards.append((len(M) - 3, Pcvt[(s, r, 2 * kc)] + Pcvt[(s, r, 2 * kc + 1)]))
                afree[F.lo] = len(M) - 1
            pair_end[(r, ta >> 1)] = len(M) - 1

    def barrier(name, gap, hoist):
        o = Op("s_barrier", "barrier")
        o.meta.update(need_vm=[], need_lgkm=[], name=name, hoist_wait=hoist, units=[])
        o.gap = gap
        bars.append(o)
        return o

    def prek_reads(lo, hi):
        ops = []
        for a in range(lo, hi):
            u = U[f"K{a >> 1}"]
            for c in range(8):
                off = u.slot * SLOT + (a & 1) * 8192 + (c >> 2) * 4096 + (c & 3) * 256
                o = Op(f"ds_read_b128 {preK[a][c]}, {vKR[0]} offset:{off}", "ds", vKR[0].names, preK[a][c].names)
                u.reads.append(o)
                ops.append(o)
        return ops

    blk = []
    ba = barrier("a", -1, False)
    ba.meta["units"] = [U["K0"], U["K1"], U["Q0"]]
    U["K0"].vis = U["K1"].vis = U["Q0"].vis = ba
    blk.append(ba)
    blk += stamp("K0Q0", True)
    pre_, q0 = q_reads(U["Q0"])
    prek = prek_reads(0, 4)
    hs = lambda n: stamp(n, True) if cfg.hstamps else []
    pre_ds = {}
    pre_dma = {}

    def gap_dmas(spec, g0):
        for item in spec.split(","):
            if not item:
                continue
            x, pos = item.split("@")
            first, step = (int(v) for v in pos.split(":"))
            name, part = (x[:2], x[2:]) if x[0] == "Q" else (x, "")
            u = U[name]
            if not u.dmas:
                u.make_dmas(vqd[u.n]) if u.kind == "Q" else u.make_dmas()
            ops = u.dmas if not part else (u.dmas[:4] if part == "a" else u.dmas[4:])
            for i, d in enumerate(ops):
                g = g0 + first + i * step
                assert g not in pre_dma
                pre_dma[g] = d
                d.gap = g

    if cfg.inter:
        q_first = [x for pair in zip(q0, prek[:8]) for x in pair]
        blk += pre_ + q_first + hd(cfg.head_a) + hs("hA")
        for i, o in enumerate(prek[8:]):
            pre_ds[i] = o
        gap_dmas(cfg.g_r0a, 0)
    else:
        blk += pre_ + q0 + prek[:8] + hd(cfg.head_a) + hs("hA") + prek[8:]
    fixed[-1] = blk
    sub_order = (0, 1, 2, 3, 6, 7, 4, 5)
    allreads = q0 + prek
    kprev = {}
    if cfg.dfhead:
        def mark():
            for o in vq:
                o.meta.setdefault("pre", len(M) - 1)

        def run(r, subs, part):
            for a in subs:
                chain(a >> 2, r, a & 3, preK[a], part)
                for c in range(8):
                    if preK[a][c].f == "a":
                        afree[preK[a][c].lo] = len(M) - 1
            mark()

        QR = {}
        for r in (1, 2):
            u = U[f"Q{r}"]
            QR[r] = q_reads(u)
            for o in QR[r][1]:
                o.meta["need_vm_unit"] = (u, o.meta["qhalf"])
            allreads += QR[r][1] if r == 1 else []
        if cfg.dfhead == 2:
            def kbar(name, unit, lo, pre_blk, gspec):
                b = barrier(name, len(M) - 1, False)
                b.meta["units"] = [U[unit]]
                b.meta["need_lgkm"] = list(q0)
                U[unit].vis = b
                rd = prek_reads(lo, lo + 2)
                allreads.extend(rd)
                fixed[len(M) - 1] = pre_blk + [b] + hs(name) + rd[:8]
                for j, o in enumerate(rd[8:]):
                    pre_ds[len(M) + j] = o
                gap_dmas(gspec, len(M))
            run(0, (0, 1, 2), None)
            noflush.add(len(M) - 1)
            b = barrier("a2", len(M) - 1, False)
            b.meta["units"] = [U["K2"]]
            b.meta["need_lgkm"] = list(q0)
            U["K2"].vis = b
            rd = prek_reads(4, 6)
            allreads.extend(rd)
            fixed[len(M) - 1] = [b] + hs("a2")
            for j, o in enumerate(rd):
                pre_ds[len(M) + j] = o
            run(0, (3, 4, 5), None)
            fixed[len(M) - 1] = hs("t0c") + hd(cfg.head_a2) + QR[1][0] + QR[1][1][:4] + hs("qa1")
            run(1, (0, 1, 2, 3, 4, 5), 0)
            kbar("a3", "K3", 6, hs("w2") + hd(cfg.head_a3), cfg.g_r0b)
            spool["bufs"] += [Reg("v", vP[2][0][0].lo + 4 * i, 4) for i in range(3)]
            run(0, (6, 7), None)
            run(1, (6, 7), 0)
        else:
            run(0, (0, 1, 2, 3), None)
            fixed[len(M) - 1] = hs("t0c") + QR[1][0] + QR[1][1][:4] + hs("qa1")
            run(1, (0, 1, 2, 3), 0)
            b2 = barrier("a2", len(M) - 1, False)
            b2.meta["units"] = [U["K2"], U["K3"]]
            b2.meta["need_lgkm"] = list(q0)
            U["K2"].vis = U["K3"].vis = b2
            k2 = prek_reads(6, 8) + prek_reads(4, 6)
            allreads += k2
            fixed[len(M) - 1] = hs("w2") + hd(cfg.head_a2) + hs("hA2") + [b2] + hs("a2") + k2[:8]
            for j, o in enumerate(k2[8:]):
                pre_ds[len(M) + j] = o
            gap_dmas(cfg.g_r0b, len(M))
            spool["bufs"] += [Reg("v", vP[2][0][0].lo + 4 * i, 4) for i in range(3)]
            run(0, (6, 7, 4, 5), None)
            run(1, (6, 7, 4, 5), 0)
        bb = barrier("c", len(M) - 1, False)
        bb.meta["need_lgkm"] = list(allreads)
        fixed[len(M) - 1] = hs("w3") + hd(cfg.head_c) + QR[1][1][4:] + [bb] + stamp("Q1", True)
        gap_dmas(cfg.g_r1, len(M))
        run(1, sub_order, 1)
        allreads += QR[2][1]
        fixed[len(M) - 1] = hs("w4") + hd(cfg.head_0) + QR[2][0] + QR[2][1][:4] + hs("qa2")
        run(2, sub_order, 0)
        b0 = Op("", "label")
        b0.gap = len(M) - 1
        fixed[len(M) - 1] = hs("w5") + QR[2][1][4:] + stamp("Q2", True)
        run(2, sub_order, 1)
    for r in range(3 if not cfg.dfhead else 0):
        split = str(r) in cfg.half_r
        if r:
            u = U[f"Q{r}"]
            pre_, qr = q_reads(u)
            for o in qr:
                o.meta["need_vm_unit"] = (u, o.meta["qhalf"])
            lists = (cfg.head_c if r == 1 else cfg.head_0).split("/")
            if r == 2 or split:
                extra_s = [Reg("v", vP[2][0][0].lo + 4 * i, 4) for i in range(3)]
                if r == 2 and extra_s[0].lo not in [x.lo for x in spool["bufs"]]:
                    spool["bufs"] += extra_s
            allreads += qr
            if split:
                fixed[len(M) - 1] = hs(f"fl{r}") + hd(lists[0]) + hs(f"d{r}") + pre_ + qr[:4] + hs(f"qa{r}")
                for a in sub_order:
                    chain(a >> 2, r, a & 3, preK[a], 0)
                blk = hs(f"pa{r}") + hd(lists[1] if len(lists) > 1 else "") + qr[4:]
                noflush.add(len(M) - 1)
            else:
                blk = hs(f"fl{r}") + hd(",".join(lists)) + hs(f"d{r}") + pre_ + qr
            if r == 2 and cfg.softb0:
                bb = Op("", "label")
                bb.gap = len(M) - 1
                b0 = bb
            else:
                bb = barrier("c" if r == 1 else 0, len(M) - 1, False)
                bb.meta["need_lgkm"] = list(allreads)
                blk.append(bb)
            blk += stamp(f"Q{r}", True)
            fixed[len(M) - 1] = blk
            if r == 1:
                gap_dmas(cfg.g_r1, len(M))
        for i, a in enumerate(sub_order):
            if r == 0 and i == 4:
                b2 = barrier("a2", len(M) - 1, False)
                b2.meta["units"] = [U["K2"], U["K3"]]
                b2.meta["need_lgkm"] = list(q0)
                U["K2"].vis = U["K3"].vis = b2
                k2 = prek_reads(6, 8) + prek_reads(4, 6)
                allreads += k2
                if cfg.inter:
                    fixed[len(M) - 1] = hs("t0c") + hd(cfg.head_a2) + hs("hA2") + [b2] + hs("a2") + k2[:8]
                    for j, o in enumerate(k2[8:]):
                        pre_ds[len(M) + j] = o
                    gap_dmas(cfg.g_r0b, len(M))
                    for o in vq:
                        o.meta.setdefault("pre", len(M) - 1)
                else:
                    fixed[len(M) - 1] = hs("t0c") + [b2] + hs("a2") + k2[:8] + hd(cfg.head_a2) + hs("hA2") + k2[8:]
                    noflush.add(len(M) - 1)
            st = chain(a >> 2, r, a & 3, preK[a], 1 if (r and split) else None)
            for c in range(8):
                if preK[a][c].f == "a":
                    afree[preK[a][c].lo] = len(M) - 1 if split else st + c
        for o in vq:
            o.meta.setdefault("pre", len(M) - 1)
    if not cfg.softb0:
        b0 = bars[-1]
        b0.meta["units"] = [U["K4"]]
        U["K4"].vis = b0
    spool["bufs"] = list(vS)
    spool["ctr"] = 0

    start_int = {}
    grp_end = {}
    pub = []
    if cfg.softb0:
        pub.append((0, [U["K4"]]))

    def kchains(s, a, kb):
        u = U[f"K{2 * s + (a >> 1)}"]
        state = {"first": True}

        def emit(r):
            st = len(M)
            if state["first"]:
                for c in range(8):
                    dsq.append(dict(kind="K", dst=KF[kb][c], u=u, off=(a & 1) * 8192 + (c >> 2) * 4096 + (c & 3) * 256,
                                    cons=st + c, free=afree.get(KF[kb][c].lo, b0.gap)))
                state["first"] = False
            chain(s, r, a, KF[kb])
            for c in range(8):
                afree[KF[kb][c].lo] = st + c
        return emit

    rord = tuple(int(c) for c in cfg.rord) if cfg.pairs else (0, 1, 2)
    NP = 8 - cfg.defer
    for p in range(NP):
        for q in range(4):
            n = 2 * p + (q >> 1)
            if q % 2 == 0:
                start_int[n] = len(M)
                pub.append((n, [U[f"V{n}"], U[f"K{n + 4}"]]) if n else ("v0", [U["V0"]]))
            order = cfg.first_order if (p == 0 and q == 0) else "cGcGcGG"
            em = kchains(p + 2, q, (q & 1) if cfg.kdouble else 0)
            ci = gi = 0
            for ch in order:
                if ch == "c":
                    em(ci)
                    ci += 1
                else:
                    grp_end[(p, 4 * q + gi)] = group((p,), 4 * q + gi)
                    gi += 1
    n = 2 * NP
    if cfg.defer == 3:
        for q in range(4):
            if q % 2 == 0:
                start_int[n] = len(M)
                pub.append((n, [U[f"K{14 + (q >> 1)}"]]))
                n += 1
            em = kchains(7, q, (q + 1) & 1)
            for r in rord:
                em(r)
    qk_end = len(M) - 1
    steps = tuple(range(NP, 8))
    sz = 8 * len(steps)
    vpool["bufs"] = [192, 192 + sz, 160, 96] if sz == 24 else [192, 208, 224, 240, 160, 176]
    vpool["ctr"] = 0
    for b in range(64, 160, 4):
        afree[b] = qk_end
    fin0 = n
    for t in range(16):
        if t % 8 == 0:
            start_int[n] = len(M)
            pub.append((n, [U[f"V{2 * s + (t >> 3)}"] for s in steps]))
            n += 1
        if cfg.pairs:
            if t % 2 == 0:
                group_pair(steps, t, t + 1, rord, t == 0)
            continue
        grp_end[(7, t)] = group(steps, t, t == 0)
    NM = len(M)

    dsq.sort(key=lambda d: d["cons"])
    def spacing(c):
        if c >= start_int[fin0]:
            return cfg.spf
        return 2.0

    nxt = float(1 << 30)
    for d in reversed(dsq):
        dl = d["cons"] - cfg.lat
        e = max(d["free"], b0.gap + (7 if cfg.softb0 else 1))
        f = min(float(dl) + 0.999, nxt - spacing(d["cons"]))
        if f < e:
            f = min(float(dl), nxt - min(1.0, spacing(d["cons"])))
        if f < e:
            f = float(e)
        d["f"], d["e"], d["dl"] = f, e, dl
        nxt = f
    prev = -10
    late = 0
    cnt = 0
    for d in dsq:
        g = max(int(d["f"]), d["e"], prev)
        if g == prev:
            cnt += 1
            if cnt >= 2 or (g + 1 <= d["dl"] and spacing(d["cons"]) >= 1):
                g += 1
                cnt = 0
        else:
            cnt = 0
        g = min(g, d["cons"] - 2)
        assert g >= d["e"] and g >= prev, (d, g, prev)
        late += g > d["dl"]
        d["gap"] = g
        prev = g

    prevg = b0.gap
    for (name, us) in pub:
        first = min(d["gap"] for d in dsq if d["u"] in us)
        g = max(first - 1, prevg + 1)
        assert g < first, (name, g, first)
        b = barrier(name, g, True)
        if name == 0:
            b.meta["need_lgkm"] = list(allreads)
        b.meta["units"] = us
        for u in us:
            u.vis = b
        prevg = g
    lastcons = {}
    for d in dsq:
        lastcons[d["u"].name] = max(lastcons.get(d["u"].name, -1), d["cons"])

    def release(u):
        if u.name in ("K0", "K1", "K2", "K3", "Q1"):
            return [b.meta["name"] for b in bars].index("c")
        if u.name == "Q2":
            return [b.meta["name"] for b in bars].index(0)
        c = [i for i, b in enumerate(bars) if b.gap >= lastcons[u.name]]
        return min(c) if c else len(bars)

    stg_bi = bars.index(next(b for b in bars if b.meta["name"] == fin0))
    free_at = {s: -1 for s in range(10)}
    for name in ("K0", "K1", "K2", "K3", "K4", "V0", "Q1", "Q2"):
        u = U[name]
        for k in range(u.nslots):
            free_at[u.slot + k] = release(u)
    order = []
    for (name, us) in pub:
        order += [u.name for u in sorted(us, key=lambda u: u.kind) if not u.dmas]
    dmaq = []
    for name in order:
        u = U[name]
        cand = list(free_at)
        if release(u) > stg_bi:
            cand = [s for s in cand if s >= cfg.stg_n]
        slot = min(cand, key=lambda s: (free_at[s], s))
        w = free_at[slot]
        u.slot = slot
        free_at[slot] = release(u)
        e = max(bars[w].gap + 2 if w >= 0 else 1, b0.gap + 2 + cfg.dma_lead)
        ops = u.make_dmas()
        for d in ops:
            d.earliest = e
            dmaq.append(d)
    gap_ds = {}
    for d in dsq:
        gap_ds.setdefault(d["gap"], []).append(d)
    gap_dma = {}
    placed_dma = [b0.gap - 20] * 4
    last = -10
    for d in dmaq:
        u = d.meta["unit"]
        sp = cfg.dma_sp
        if last < start_int[1]:
            sp = cfg.dma_sp_fast
        g = max(d.earliest, last + sp)
        if len(placed_dma) >= cfg.dma_cap:
            g = max(g, placed_dma[-cfg.dma_cap] + (cfg.dma_win if g >= start_int[cfg.early_n] else cfg.dma_win_early))
        g0 = g
        while g in fixed or g in gap_ds:
            g += 1
        if u.vis is not None and g >= u.vis.gap - 1:
            raise SystemExit(f"DMA of {u.name} too late: {g} vs {u.vis.gap}")
        gap_dma[g] = d
        d.gap = g
        last = g
        placed_dma.append(g)
    last_dma = dmaq[-1]
    gap_dma.update(pre_dma)
    for g, o in pre_ds.items():
        o.gap = g
        gap_ds.setdefault(g, []).append({"op": o})
    flight = {u.name: u.vis.gap - u.dmas[-1].gap for u in U.values() if u.vis is not None and u.dmas[-1].gap is not None}
    for b in bars:
        b.meta["need_vm"] = [d for u in b.meta["units"] for d in u.dmas]

    reads = []
    for d in dsq:
        u = d["u"]
        if d["kind"] == "Q":
            c = d["c"]
            off = u.slot * SLOT - 65536 + (c >> 2) * 4096 + (c & 3) * 256
            o = Op(f"ds_read_b128 {d['dst']}, {vQR} offset:{off}", "ds", vQR.names, d["dst"].names)
            o.meta["need_vm"] = u.dmas[(c >> 2) * 4:(c >> 2) * 4 + 4]
            o.meta["hoist_wait"] = True
        else:
            w, off = divmod(u.slot * SLOT + d["off"], 65536)
            if d["kind"] == "K":
                o = Op(f"ds_read_b128 {d['dst']}, {vKR[w]} offset:{off}", "ds", vKR[w].names, d["dst"].names)
            else:
                a = vVR[d["h"]][w]
                o = Op(f"ds_read_b64_tr_b16 {d['dst']}, {a} offset:{off}", "ds", a.names, d["dst"].names)
        o.gap = d["gap"]
        u.reads.append(o)
        d["op"] = o
        reads.append(o)
    for blk in fixed.values():
        for o in blk:
            if "need_vm_unit" in o.meta:
                u, h = o.meta["need_vm_unit"]
                o.meta["need_vm"] = u.dmas[4 * h:4 * h + 4]

    vcc_last = [None]

    def finish_rows(rows, last):
        fin = {}
        for r in rows:
            ops = xlane("v_add_f32", vL[r], vXT[r])
            prev = last[r]
            for o in ops:
                o.deps.append((prev, 1 if "permlane" in o.text else 0))
                prev = o
            rc = Op(f"v_rcp_f32 {vRL[r]}, {vL[r]}", "trans", vL[r].names, vRL[r].names)
            rc.deps.append((prev, 0))
            cm = valu(f"v_cmp_lt_f32 vcc, s{sThr}, {vL[r]}", vL[r].names + sn(sThr), ["svcc"])
            cm.deps.append((prev, 0))
            fl = salu(f"s_or_b64 s[{sFlag}:{sFlag + 1}], s[{sFlag}:{sFlag + 1}], vcc", ["svcc"] + sn(sFlag, 2), sn(sFlag, 2) + ["scc"])
            fl.deps.append((cm, 2))
            fin[r] = (ops, rc, cm, fl)
        out = []
        for k in range(6):
            for r in rows:
                out.append(fin[r][0][k])
        for r in rows:
            if vcc_last[0] is not None:
                fin[r][2].deps.append((vcc_last[0], 0))
            out += [fin[r][1], fin[r][2], fin[r][3]]
            vcc_last[0] = fin[r][3]
        return out, {r: fin[r][1] for r in rows}

    rbq = [Reg("a", 64 + 4 * i, 4) for i in range(8)]
    tmps = [Reg("v", vS[2 * i].lo, 8) for i in range(3)]
    tmp_last = {tb.lo: sbuf_last[tb.lo] + sbuf_last[tb.lo + 4] for tb in tmps}
    tmp_min = {tb.lo: -1 for tb in tmps}
    ctr = {"t": 0, "r": 0}
    rb_last = {}
    stg_last_read = {}
    wr = {}
    stg_after = bars[stg_bi].gap + 1
    sta = {}
    for r in range(3):
        for k in range(2):
            d = vST[r][k]
            o = valu(f"v_add_u32 {d}, {r * 8192 + k * 4096}, {vST0}", vST0.names, d.names)
            o.deps.append((last_dma, 1))
            sta[(r, k)] = o

    def piece(r, s, T, rcp, half, packed):
        rdy = (pair_end[(r, T)] if cfg.pairs else grp_end[(s, 2 * T + 1)]) + cfg.sready
        X, Y = O[r][2 * T], O[r][2 * T + 1]
        src = [X[i] for i in range(4)] + [Y[i] for i in range(4)]
        D = X
        ops = []
        rd = None
        if X.f == "a":
            tb = tmps[ctr["t"] % len(tmps)]
            ctr["t"] += 1
            rd = []
            for i in range(8):
                o = valu(f"v_accvgpr_read_b32 {tb[i]}, {src[i]}", src[i].names, tb[i].names)
                o.earliest = max(rdy, tmp_min[tb.lo])
                o.deps += [(x, 0) for x in tmp_last[tb.lo]]
                rd.append(o)
            ops += rd
            src = [tb[i] for i in range(8)]
            D = tb[0:4]
        mu = []
        if packed:
            for k in range(4):
                pr = Reg("v", src[2 * k].lo, 2)
                rl2 = Reg("v", vRL[r].lo, 2)
                o = valu(f"v_pk_mul_f32 {pr}, {pr}, {rl2} op_sel_hi:[1,0]", names(pr, vRL[r]), pr.names)
                o.earliest = rdy
                o.meta["pk"] = True
                o.deps.append((rcp, 1))
                if rd:
                    o.deps += [(rd[2 * k], 0), (rd[2 * k + 1], 0)]
                mu += [o, o]
            ops += mu[::2]
        else:
            for i in range(8):
                o = valu(f"v_mul_f32 {src[i]}, {src[i]}, {vRL[r]}", names(src[i], vRL[r]), src[i].names)
                o.earliest = rdy
                o.deps.append((rcp, 1))
                if rd:
                    o.deps.append((rd[i], 0))
                mu.append(o)
            ops += mu
        cv = []
        for k in range(4):
            o = valu(f"v_cvt_pk_bf16_f32 {D[k]}, {src[2 * k]}, {src[2 * k + 1]}", names(src[2 * k], src[2 * k + 1]), D[k].names)
            o.deps += [(mu[2 * k], 0), (mu[2 * k + 1], 0)]
            if k:
                o.deps.append((cv[k - 1], 0))
            cv.append(o)
        w = []
        for xy in range(2):
            ad = vSW[xy] if cfg.tgran else vSW[2 * (T & 1) + xy]
            x = Op(f"ds_write_b64 {ad}, {D[2 * xy:2 * xy + 2]} offset:{(1024 if cfg.tgran else 2048) * half}", "ds",
                   D[2 * xy:2 * xy + 2].names + ad.names, [])
            x.deps += [(cv[2 * xy], 0), (cv[2 * xy + 1], 0)]
            x.earliest = stg_after
            x.deps += [(z, 0) for z in stg_last_read.get(half, [])]
            w.append(x)
        if rd:
            tmp_last[tb.lo] = w + [cv[3]]
        wr[(r, T)] = w
        ops += cv + w
        if T % 2 == 1 or cfg.tgran:
            H = T >> 1
            rds, sts = [], []
            for k in range(1 if cfg.tgran else 2):
                qd = rbq[ctr["r"] % len(rbq)]
                ctr["r"] += 1
                o = Op(f"ds_read_b128 {qd}, {vSR} offset:{1024 * half if cfg.tgran else 1024 * k + 2048 * half}", "ds", vSR.names, qd.names)
                o.deps += [(x, 0) for tt in ((T,) if cfg.tgran else (T - 1, T)) for x in wr[(r, tt)]]
                o.deps += [(x, 0) for x in rb_last.get(qd.lo, [])]
                o.earliest = qk_end
                stt = f"buffer_store_dwordx4 {qd}, {vST[r][k]}, s[{sO}:{sO + 3}], 0 offen offset:{64 * T if cfg.tgran else 128 * H}"
                pol = cfg.st if H < cfg.st_from else cfg.st_last
                if pol:
                    stt += " " + pol
                so = Op(stt, "vstore", qd.names + vST[r][k].names + sn(sO, 4), [])
                so.meta["data"] = frozenset(qd.names)
                so.meta["hoist_wait"] = True
                so.deps += [(o, cfg.lat), (sta[(r, k)], 0)]
                rb_last[qd.lo] = [so]
                rds.append(o)
                sts.append(so)
            stg_last_read[half] = rds
            ops += rds + sts
        return ops

    fo, rcp = finish_rows((0, 1, 2), last_add)
    vq += fo + list(sta.values())
    ep = []
    nb = 2 * cfg.stg_n
    seqTr = [(T, r) for T in range(8) for r in rord]
    if cfg.hmajor:
        seqTr = [(2 * H + k, r) for H in range(4) for r in rord for k in range(2)]
    for (T, r) in seqTr:
        if True:
            buf = (3 * T + r) % (2 * nb) if cfg.tgran else (3 * (T >> 1) + r) % nb
            ep += piece(r, 7, T, rcp[r], buf, cfg.pk and T >= cfg.pkfrom and (not cfg.pairs or r == rord[-1]))

    gaps = {g: {"s": [], "v": []} for g in range(-1, NM + 1)}
    for b in bars:
        if b.meta["hoist_wait"]:
            gaps[b.gap]["s"].append(b)
    for g, d in gap_dma.items():
        pre = d.pre
        d.pre = []
        gaps[g - 1]["s"].append(pre[-1])
        if len(pre) > 1:
            gaps[max(g - 2, 0)]["s"].insert(0, pre[0])

    def ready(o, g, strict=False):
        if o.earliest > g:
            return False
        for (d, k) in o.deps:
            if d.gap is None or d.gap + k > g or (strict and d.gap >= g):
                return False
        return True

    queue = list(vq)
    equeue = list(ep)
    guard_at = {}
    for (g, ops) in guards:
        guard_at.setdefault(g, []).extend(ops)
    overflow = 0

    def place(o, g, where="v"):
        o.gap = g
        gaps[g][where].append(o)
        (queue if o in queue else equeue).remove(o)

    def force(o, g):
        nonlocal overflow
        if o.gap is not None:
            return
        for (d, k) in o.deps:
            if d.gap is None:
                force(d, g)
        assert o.earliest <= g, (o, g)
        overflow += 1
        place(o, g)

    W = 120

    def pick(kinds, g, strict=False, pk=False, pred=None):
        for qq in (queue, equeue):
            for o in qq[:W]:
                if o.kind in kinds and bool(o.meta.get("pk")) == pk and ready(o, g, strict) and (pred is None or pred(o)):
                    return o
        return None

    def pk_group(g):
        o = pick(("valu",), g, pk=True)
        if o is None:
            return None
        i = equeue.index(o)
        grp = [x for x in equeue[i:i + 4] if x.meta.get("pk")]
        return grp if all(ready(x, g) for x in grp) else None

    since = {}
    xacc = hacc = 0.0
    for g in range(0, NM):
        cap = 2
        mem = False
        nds = len(gap_ds.get(g, []))
        if nds:
            for d in gap_ds[g]:
                gaps[g]["v"].append(d["op"])
            cap = 1 if nds == 1 else 0
            mem = True
        if g in gap_dma:
            gaps[g]["v"].append(gap_dma[g])
            cap = 0
            mem = True
        light = cfg.dma_light and (g + 1) in gap_dma and g >= cfg.light_from and g > b0.gap
        if light:
            cap = min(cap, 0 if mem else 1)
        extra = 0
        if g <= b0.gap:
            extra = cfg.xpre
        if b0.gap < g < start_int[0] + cfg.xh_len and g not in gap_dma:
            hacc += cfg.xh
            extra = int(hacc)
            hacc -= extra
        if g >= start_int[fin0] - cfg.xlead and not light and g not in gap_dma:
            nst = sum(1 for o in ep if o.kind == "vstore" and o.gap is not None)
            xacc += cfg.xf_first if (nst < cfg.xf_nst and g >= start_int[fin0]) else cfg.xf
            extra = int(xacc)
            xacc -= extra
        o = pick(("salu",), g)
        if o is not None:
            place(o, g, "s")
        ex = pick(("trans",), g)
        if ex is not None:
            since.setdefault(id(ex), g)
        heavy = False
        pg = pk_group(g)
        if pg:
            since.setdefault(id(pg[0]), g)
        age = g - since[id(pg[0])] if pg else -1
        so = pick(("vstore",), g, True) if g not in gap_dma and nds <= 1 else None
        if so is not None:
            place(so, g)
            cap = 4 - nds
            extra = 0
            mem = True
            heavy = True
        elif not (mem or ex):
            mo = pick(("ds",), g, True)
            if mo is not None:
                place(mo, g)
                cap = 1
                mem = True
                if mo.text.startswith("ds_write"):
                    extra = 0
                    if pg and age >= cfg.pk_age:
                        cap = 2
                        heavy = True
        if not heavy and pg and age >= cfg.pk_age2 and g not in gap_dma and not light:
            cap = 5 - len(gaps[g]["v"])
            extra = 0
            heavy = True
        if ex is not None and not light and (not mem or heavy or (g <= b0.gap and cfg.xpre) or (g not in gap_dma and g - since[id(ex)] >= cfg.exp_age)):
            place(ex, g)
            cap = cap - 2 if heavy else 0
        cap += extra
        while cap > 0:
            o = pick(("valu",), g)
            if o is None:
                break
            place(o, g)
            cap -= 1
        if heavy:
            pg = pk_group(g)
            if pg:
                for x in pg:
                    place(x, g)
        for o in guard_at.get(g, []):
            force(o, g)
        if g in fixed and cfg.preflush and g not in noflush:
            for o in list(queue):
                if o.meta.get("pre") is not None and o.meta["pre"] <= g:
                    place(o, g)
    tail = []
    clock = NM
    k = 0
    rest = queue + equeue
    while rest:
        o = next((o for o in rest if o.kind == "vstore" and ready(o, clock, True)), None)
        if o is None:
            o = next((o for o in rest if o.kind == "ds" and ready(o, clock)), None)
        if o is None:
            o = next((o for o in rest if o.kind not in ("ds", "vstore") and ready(o, clock)), None)
        if o is None:
            clock += 1
            continue
        o.gap = clock
        rest.remove(o)
        tail.append(o)
        k += 1
        if k % 3 == 0:
            clock += 1

    prog = list(pro)
    for o in fixed[-1]:
        o.gap = -1
    prog += fixed[-1]
    inv_start = {v: k for k, v in start_int.items()}
    pos_int = {}
    for g in range(NM):
        M[g].gap = g
        prog.append(M[g])
        if g + 1 in inv_start and (inv_start[g + 1] % cfg.stamp_every == 0 or (not cfg.hstamps and (inv_start[g + 1] < 3 or inv_start[g + 1] >= 2 * NP))):
            prog += stamp(f"i{inv_start[g + 1]}")
            if inv_start[g + 1] in (0, fin0):
                prog += stamp(f"t{inv_start[g + 1]}", True)
        prog += gaps[g]["s"]
        prog += gaps[g]["v"]
        if g in fixed:
            for o in fixed[g]:
                o.gap = g
            prog += fixed[g]
    prog += stamp("mfmaend")
    prog += stamp("mfmaendR", True)
    prog += tail
    prog += stamp("stissued", True)
    if cfg.stamps:
        prog.append(Op("s_waitcnt vmcnt(0)", "wait", meta={"fixed": True}))
        prog += stamp("drained", True)
    prog += stamp.finish()
    prog.append(Op(f"s_cmp_lg_u64 s[{sFlag}:{sFlag + 1}], 0", "raw"))
    prog.append(Op("s_cbranch_scc1 L_fallback", "raw"))

    for o in prog:
        if o.kind == "mfma":
            o.meta["cover"] = [x for x in reads if x.gap <= o.gap - 1 - cfg.age and x.gap > o.gap - 40]
    prog = insert_waits_cover(prog)
    prog, moved = spread_scalars(prog)
    prog, pads = fix_hazards(prog, verbose=cfg.verbose)
    verify_lds(prog, U, None, cfg)
    idx = {id(o): i for i, o in enumerate(prog)}
    seg = lambda a, b: estimate_cycles(prog[idx[id(M[a])]:idx[id(M[b])] + 1])
    ints = sorted(start_int.items())
    est = {n: seg(g, (ints[i + 1][1] if i + 1 < len(ints) else NM) - 1) for i, (n, g) in enumerate(ints)}
    info = dict(NM=NM, late=late, overflow=overflow, pads=pads, est_main=seg(start_int[0], NM - 1),
                ideal=16 * (NM - start_int[0]), est_tail=estimate_cycles(prog[idx[id(M[-1])] + 1:]), n=len(prog), tail=len(tail),
                waits=sum(1 for o in prog if o.kind == "wait"), est=list(est.values()),
                pre2=seg(b0.gap + 1, start_int[0] - 1), total=seg(b0.gap + 1, NM - 1) + estimate_cycles(prog[idx[id(M[-1])] + 1:]))
    if cfg.verbose:
        print("flight", flight)
        print("slots", {u.name: u.slot for u in U.values()})
        print("bars", [(b.meta["name"], b.gap) for b in bars])
        print("ints", start_int, "last dma", last_dma.gap, "stores", [o.gap for o in ep if o.kind == "vstore"])
    cfg.stamp_names = stamp.list
    return prog, info


def insert_waits_cover(prog):
    pend = set()
    for o in prog:
        if o.kind == "ds":
            pend |= set(o.writes)
        if o.kind == "mfma" and (o.reads & pend):
            cov = o.meta.get("cover", [])
            o.meta["need_lgkm"] = cov
            for x in cov:
                pend -= set(x.writes)
            pend -= set(o.reads)
    return insert_waits(prog)


def verify_scalars(prog):
    last = {}
    for o in prog:
        if o.kind == "dma":
            for e in o.meta["expect"]:
                for r in e.writes:
                    if r != "scc":
                        assert last.get(r) is e, ("scalar operand clobbered", o.text, e.text)
            for r in o.reads:
                if r[0] == "v":
                    assert last[r].kind == "valu" and last[r].gap is None, ("DMA address clobbered", o.text, last[r].text)
        for r in o.writes:
            last[r] = o


def verify_dataflow(prog):
    pos = {id(o): i for i, o in enumerate(prog)}
    for o in prog:
        for (d, k) in o.deps:
            assert pos[id(d)] < pos[id(o)], ("order", d.text, o.text)


def verify_lds(prog, U, stg_bar, cfg):
    verify_scalars(prog)
    verify_dataflow(prog)
    pos = {id(o): i for i, o in enumerate(prog)}
    bars = [o for o in prog if o.kind == "barrier"]
    occ = {}
    for u in U.values():
        for k in range(u.nslots):
            occ.setdefault(u.slot + k, []).append(u)
        if u.kind != "Q":
            for rd in u.reads:
                b = u.vis
                assert pos[id(b)] < pos[id(rd)], ("read before barrier", u.name)
                for d in u.dmas:
                    assert d.meta["vm_idx"] < b.meta["vm_done_at"], ("dma not waited", u.name)
    for s, us in occ.items():
        us.sort(key=lambda u: pos[id(u.dmas[0])])
        for a, b in zip(us, us[1:]):
            first = min(pos[id(d)] for d in b.dmas)
            ok = any(pos[id(br)] < first and all(rd.meta["lg_idx"] < br.meta["lg_done_at"] for rd in a.reads) for br in bars)
            assert ok, ("slot WAR", s, a.name, b.name)
    writes = [o for o in prog if o.kind == "ds" and o.text.startswith("ds_write")]
    firstw = min(pos[id(o)] for o in writes)
    lo, hi = cfg.stg_base, cfg.stg_base + 4 * cfg.stg_wave
    for s, us in occ.items():
        if s * SLOT < hi and (s + 1) * SLOT > lo:
            for u in us:
                ok = any(pos[id(br)] < firstw and all(rd.meta["lg_idx"] < br.meta["lg_done_at"] for rd in u.reads) for br in bars)
                assert ok, ("staging WAR", s, u.name)


def fallback(cfg):
    L = []
    A = L.append
    t = Reg("v", 104, 12)
    KFf = KF[0]
    VFf = [Reg("a", 192, 4), Reg("a", 200, 4)]
    A("L_fallback:")
    A("s_waitcnt vmcnt(0) lgkmcnt(0)")
    A("s_barrier")
    A(f"s_mul_i32 s{sT3}, s{sW}, 40960")
    A(f"v_and_b32 {t[0]}, 63, v0")
    A(f"v_bfe_u32 {t[2]}, {t[0]}, 2, 2")
    A(f"v_lshlrev_b32 {t[2]}, 9, {t[2]}")
    A(f"v_lshrrev_b32 {t[5]}, 4, {t[0]}")
    A(f"v_lshl_add_u32 {t[2]}, {t[5]}, 6, {t[2]}")
    A(f"v_and_b32 {t[3]}, 3, {t[0]}")
    fk = [Reg("v", 80 + i, 1) for i in range(4)]
    fv = [Reg("v", 84 + i, 1) for i in range(4)]
    for rg in range(4):
        A(f"v_xor_b32 {t[4]}, {FR[rg]}, {t[3]}")
        A(f"v_lshl_add_u32 {fk[rg]}, {t[4]}, 4, {t[2]}")
        A(f"v_add_u32 {fk[rg]}, {rg * 2048}, {fk[rg]}")
        A(f"v_xor_b32 {t[4]}, {2 * (rg & 1)}, {t[3]}")
        A(f"v_lshl_add_u32 {fv[rg]}, {t[4]}, 4, {t[2]}")
        A(f"v_add_u32 {fv[rg]}, {rg * 2048}, {fv[rg]}")
    rk, rv0, rv1 = Reg("v", 88, 1), Reg("v", 89, 1), Reg("v", 90, 1)
    so = [Reg("v", 91 + r, 1) for r in range(3)]
    tmp8 = Reg("v", 96, 8)
    A(f"v_add_u32 {rk}, s{sT3}, {vKR[0]}")
    A(f"v_add_u32 {rv0}, s{sT3}, {vVR[0][0]}")
    A(f"v_add_u32 {rv1}, s{sT3}, {vVR[1][0]}")
    A(f"v_and_b32 {t[6]}, 15, {t[0]}")
    A(f"s_mul_i32 s{sT1}, s{sW}, 48")
    A(f"v_add_u32 {t[6]}, s{sT1}, {t[6]}")
    A(f"v_lshlrev_b32 {t[6]}, 9, {t[6]}")
    A(f"v_and_b32 {t[7]}, 1, {t[5]}")
    A(f"v_lshl_add_u32 {t[6]}, {t[7]}, 5, {t[6]}")
    A(f"v_lshrrev_b32 {t[7]}, 1, {t[5]}")
    A(f"v_lshl_add_u32 {so[0]}, {t[7]}, 4, {t[6]}")
    A(f"v_add_u32 {so[1]}, 8192, {so[0]}")
    A(f"v_add_u32 {so[2]}, 16384, {so[0]}")
    A(f"s_mul_i32 s{sT2}, s{sW}, {48 * 512}")
    for r in range(3):
        for rg in range(4):
            A(f"v_add_u32 {t[8]}, s{sT2}, {fk[rg]}")
            A(f"v_add_u32 {t[8]}, {r * 8192}, {t[8]}")
            for half in range(2):
                A(f"s_add_u32 m0, s{sT3}, {half * 4096 + rg * 1024 - half * 256}")
                A("s_nop 0")
                A(f"buffer_load_dwordx4 {t[8]}, s[{sQ}:{sQ + 3}], 0 offen offset:{half * 256} lds")
        A("s_waitcnt vmcnt(0)")
        for c in range(8):
            A(f"ds_read_b128 {Q[r][c]}, {rk} offset:{(c >> 2) * 4096 + (c & 3) * 256}")
        A("s_waitcnt lgkmcnt(0)")
    Pf = [vP[0][r][0] for r in range(3)]

    def load_k():
        for a in range(2):
            A(f"s_add_u32 s{sT1}, s{sT0}, {a * 8192}")
            for half in range(2):
                for rg in range(4):
                    A(f"s_add_u32 m0, s{sT3}, {a * 8192 + half * 4096 + rg * 1024 - half * 256}")
                    A("s_nop 0")
                    A(f"buffer_load_dwordx4 {fk[rg]}, s[{sK}:{sK + 3}], s{sT1} offen offset:{half * 256} lds")

    def load_v():
        for dh in range(2):
            for a in range(2):
                A(f"s_add_u32 s{sT1}, s{sT0}, {a * 8192 + dh * 256}")
                for rg in range(4):
                    A(f"s_add_u32 m0, s{sT3}, {16384 + dh * 8192 + a * 4096 + rg * 1024}")
                    A("s_nop 0")
                    A(f"buffer_load_dwordx4 {fv[rg]}, s[{sV}:{sV + 3}], s{sT1} offen lds")

    def qk(a):
        for c in range(8):
            A(f"ds_read_b128 {KFf[c]}, {rk} offset:{a * 8192 + (c >> 2) * 4096 + (c & 3) * 256}")
        A("s_waitcnt lgkmcnt(0)")
        for r in range(3):
            for c in range(8):
                A(f"v_mfma_f32_16x16x32_bf16 {vS[r]}, {KFf[c]}, {Q[r][c]}, {vS[r] if c else 0}")
        A("s_nop 15")

    def xl(op, x, tmp):
        for o in xlane(op, x, tmp):
            A("s_nop 1")
            A(o.text)

    for r in range(3):
        A(f"v_mov_b32 {vNM[r]}, 0xff800000")
    A(f"s_mov_b32 s{sT0}, 0")
    A("L_fb1:")
    load_k()
    A("s_waitcnt vmcnt(0)")
    for a in range(2):
        qk(a)
        for r in range(3):
            A(f"v_max3_f32 {vNM[r]}, {vNM[r]}, {vS[r][0]}, {vS[r][1]}")
            A(f"v_max3_f32 {vNM[r]}, {vNM[r]}, {vS[r][2]}, {vS[r][3]}")
    A(f"s_add_u32 s{sT0}, s{sT0}, 16384")
    A(f"s_cmp_lt_u32 s{sT0}, 262144")
    A("s_cbranch_scc1 L_fb1")
    for r in range(3):
        xl("v_max_f32", vNM[r], t[4])
        A(f"v_mul_f32 {vNM[r]}, {f2u(-C_SCALE):#x}, {vNM[r]}")
        A(f"v_mov_b32 {vL[r]}, 0")
    for r in range(3):
        for tt in range(16):
            for i in range(4):
                x = O[r][tt][i]
                A(f"v_mov_b32 {x}, 0" if x.f == "v" else f"v_accvgpr_write_b32 {x}, 0")
    A(f"s_mov_b32 s{sT0}, 0")
    A("L_fb2:")
    load_k()
    load_v()
    A("s_waitcnt vmcnt(0)")
    for a in range(2):
        qk(a)
        for r in range(3):
            S = vS[r]
            for i in range(4):
                A(f"v_fma_f32 {S[i]}, {S[i]}, s{sC}, {vNM[r]}")
            for i in range(4):
                A(f"v_exp_f32 {S[i]}, {S[i]}")
            A("s_nop 1")
            for i in range(4):
                A(f"v_add_f32 {vL[r]}, {vL[r]}, {S[i]}")
            for k in range(2):
                A(f"v_cvt_pk_bf16_f32 {Pf[r][2 * a + k]}, {S[2 * k]}, {S[2 * k + 1]}")
    A("s_nop 3")
    for tt in range(16):
        for s in range(2):
            base = rv0 if (tt & 1) == 0 else rv1
            off = 16384 + (tt >> 3) * 8192 + s * 4096 + ((tt & 7) >> 1) * 256
            A(f"ds_read_b64_tr_b16 {VFf[tt & 1][2 * s:2 * s + 2]}, {base} offset:{off}")
        A("s_waitcnt lgkmcnt(0)")
        for r in range(3):
            A(f"v_mfma_f32_16x16x32_bf16 {O[r][tt]}, {VFf[tt & 1]}, {Pf[r]}, {O[r][tt]}")
    A("s_nop 15")
    A(f"s_add_u32 s{sT0}, s{sT0}, 16384")
    A(f"s_cmp_lt_u32 s{sT0}, 262144")
    A("s_cbranch_scc1 L_fb2")
    for r in range(3):
        xl("v_add_f32", vL[r], t[4])
        A(f"v_rcp_f32 {vRL[r]}, {vL[r]}")
    A("s_nop 3")
    for T in range(8):
        for r in range(3):
            X, Y = O[r][2 * T], O[r][2 * T + 1]
            src = [X[i] for i in range(4)] + [Y[i] for i in range(4)]
            if X.f == "a":
                for i in range(8):
                    A(f"v_accvgpr_read_b32 {tmp8[i]}, {src[i]}")
                src = [tmp8[i] for i in range(8)]
            for i in range(8):
                A(f"v_mul_f32 {src[i]}, {src[i]}, {vRL[r]}")
            D = vS[(3 * T + r) % NSB]
            for k in range(4):
                A(f"v_cvt_pk_bf16_f32 {D[k]}, {src[2 * k]}, {src[2 * k + 1]}")
            A("s_nop 1")
            A(f"v_permlane16_swap_b32 {D[0]}, {D[2]}")
            A(f"v_permlane16_swap_b32 {D[1]}, {D[3]}")
            A(f"buffer_store_dwordx4 {D}, {so[r]}, s[{sO}:{sO + 3}], 0 offen offset:{64 * T}")
    A("s_waitcnt vmcnt(0)")
    return L


HEADER = """; GQA attention forward, B=8 Hq=16 Hkv=8 Sq=368 Sk=512 D=256, bf16 (emitted by my own generator script)
; and a wave with a sum above 2^64 recomputes its rows with the true row maximum (L_fallback).
; @launch grid=(256,1,1) block=(256,1,1) lds=163840
.amdgcn_target "amdgcn-amd-amdhsa--gfx950"
.text
.globl {k}
.p2align 8
.type {k},@function
{k}:
"""

FOOTER = """L_end:
    s_endpgm
.section .rodata,"a"
.p2align 6
.amdhsa_kernel {k}
  .amdhsa_next_free_vgpr 512
  .amdhsa_next_free_sgpr 102
  .amdhsa_accum_offset 256
  .amdhsa_group_segment_fixed_size 0
  .amdhsa_kernarg_size 48
  .amdhsa_user_sgpr_count 2
  .amdhsa_user_sgpr_kernarg_segment_ptr 1
  .amdhsa_system_sgpr_workgroup_id_x 1
.end_amdhsa_kernel
"""


def render(cfg, prog):
    s = HEADER.format(k=KNAME)
    if cfg.align12:
        s = s.replace(".p2align 8\n", ".p2align 12\n.p2align 8\n", 1)
    if cfg.stamps and cfg.spin == -1:
        s = "; stamps: " + " ".join(n + ("*" if r else "") for n, r in cfg.stamp_names) + "\n" + s
    for o in prog:
        s += (o.text if o.kind == "label" else "    " + o.text) + "\n"
    s += "    s_endpgm\nL_mainend:\n"
    for l in fallback(cfg):
        s += (l if l.endswith(":") else "    " + l) + "\n"
    s += FOOTER.format(k=KNAME)
    return s


def addresses(text, n):
    import subprocess, re, tempfile, os
    d = tempfile.mkdtemp()
    open(d + "/x.s", "w").write(text)
    subprocess.run(["clang", "-x", "assembler", "-target", "amdgcn-amd-amdhsa", "-mcpu=gfx950", "-c",
                    d + "/x.s", "-o", d + "/x.o"], check=True)
    out = subprocess.run(["llvm-objdump", "-d", "--mcpu=gfx950", d + "/x.o"], capture_output=True, text=True).stdout
    return [int(m.group(1), 16) for m in re.finditer(r"// ([0-9A-F]+):", out)][:n]


def add_walk(cfg, prog):
    iw = next(i for i, o in enumerate(prog) if o.text == "WALK")
    head, body = prog[:iw], prog[iw + 1:]
    lab = lambda t: Op(t, "label")
    raw = lambda t: Op(t, "raw")
    stubs = []
    for it in range(20):
        b2 = []
        for i, o in enumerate(body):
            if i in stubs:
                k = stubs.index(i)
                b2.append(lab(f"L_pg{k}:"))
                b2.append(raw(f"s_cbranch_execz L_wr{k}"))
            b2.append(o)
        npg = len(stubs)
        walk = [raw("s_mov_b64 exec, 0")]
        for w in range(4):
            if w < npg:
                walk += [raw(f"s_cmp_eq_u32 s{sW}, {w}"), raw(f"s_cbranch_scc1 L_pg{w}")]
        walk.append(raw("s_branch L_wdone"))
        for k in range(npg):
            walk.append(lab(f"L_wr{k}:"))
            walk.append(raw(f"s_branch L_pg{k + 4}" if k + 4 < npg else "s_branch L_wdone"))
        walk += [lab("L_wdone:"), raw("s_mov_b64 exec, -1")]
        full = head + walk + b2
        ins = [o for o in full if o.kind != "label"]
        addr = addresses(render(cfg, full), len(ins))
        amap = {id(o): a + cfg.base_off for o, a in zip(ins, addr)}
        want = []
        prev = amap[id(body[0])] // 4096
        for i, o in enumerate(body):
            if o.kind == "label":
                continue
            pg = amap[id(o)] // 4096
            if pg != prev:
                j = i
                for jj in range(i, min(i + cfg.walk_win, len(body))):
                    if body[jj - 1].kind == "mfma" and amap[id(body[jj - 1])] // 4096 == pg and body[jj].kind not in ("salu", "wait", "barrier"):
                        j = jj
                        break
                want.append(j)
                prev = pg
        if want == stubs:
            return full
        stubs = want
    return full


def emit(cfg):
    prog, info = build(cfg)
    if cfg.x_nobar:
        prog = [o for o in prog if not (o.kind == "barrier" and o.meta.get("hoist_wait"))]
    if cfg.x_nodma:
        prog = [o for o in prog if not (o.kind == "dma" and o.gap is not None and o.gap > 130)]
    if cfg.x_nowait:
        prog = [o for o in prog if not (o.kind == "wait" and "lgkm" in o.text and not o.meta.get("fixed"))]
    if cfg.walk:
        prog = add_walk(cfg, prog)
    return render(cfg, prog), info


Cfg.walk = True
Cfg.walk_win = 8
Cfg.base_off = 0x300
Cfg.spin_name = ""
Cfg.stamp_every = 1
Cfg.pkfrom = 7
Cfg.pk_age = 2
Cfg.pk_age2 = 4
Cfg.dma_light = True
Cfg.defer = 3
Cfg.softb0 = True
Cfg.padzero = False
Cfg.dma_win_early = 96
Cfg.early_n = 2
Cfg.light_from = 0
Cfg.xh = 1.0
Cfg.xh_len = 24
Cfg.first_order = "cccGGGG"
Cfg.xf_first = 0.5
Cfg.xf_nst = 2
Cfg.pairs = True
Cfg.dfhead = 2
Cfg.head_a3 = "Q2b"
Cfg.inter = True
Cfg.xpre = 1
Cfg.g_r0a = "Q1b@10:10"
Cfg.g_r0b = ""
Cfg.g_r1 = ""
Cfg.hstamps = False
Cfg.hmajor = True
Cfg.rord = "021"
Cfg.tgran = False
Cfg.x_nobar = False
Cfg.x_nodma = False
Cfg.x_nowait = False
Cfg.align12 = True
Cfg.ldv = "="
Cfg.st_from = 9
Cfg.st_last = ""
Cfg.kdouble = False
Cfg.spf = 1.5
Cfg.xf = 0.0
Cfg.xlead = 48
Cfg.dma_lead = 0
Cfg.head = "K0,Q0a,K1,Q0b,pf,K2,|,Q1a,K3"
Cfg.head_a = ""
Cfg.head_a2 = "Q2a"
Cfg.head_c = "K4"
Cfg.head_0 = "V0"
Cfg.half_r = ""
Cfg.dma_cap = 12
Cfg.dma_win = 96
Cfg.join_order = "cGcGGGc"
Cfg.p7_order = "cGGGG"
Cfg.stg_bar = 14
Cfg.stg_n = 2
Cfg.sp7 = 1.3333
Cfg.sp2 = 1.3333
Cfg.x15 = 3
Cfg.x15_lead = 16
Cfg.x8 = 6
Cfg.x9 = 2
Cfg.xmem = 2
Cfg.exp_age = 3
Cfg.q2_before = "K5"
Cfg.dma_sp_fast = 3
Cfg.tail_extra = 3
Cfg.p7_extra = 0
Cfg.stag2 = ""
Cfg.stag_sh = 6
Cfg.stagger = ""
Cfg.cls_shift = 6
Cfg.cls_mask = 0

if __name__ == "__main__":
    ap = argparse.ArgumentParser()
    ap.add_argument("-o", default="standalone__gqa_softmax__near_ridge.s")
    ap.add_argument("-v", action="store_true")
    ap.add_argument("opts", nargs="*")
    a = ap.parse_args()
    cfg = Cfg()
    cfg.verbose = a.v
    for kv in a.opts:
        k, v = kv.split("=", 1)
        if k == "spin":
            cfg.spin, cfg.spin_name, cfg.stamps = 1, v, True
            continue
        old = getattr(cfg, k)
        if isinstance(old, bool):
            v = v in ("1", "true", "True")
        elif isinstance(old, int):
            v = int(v)
        elif isinstance(old, float):
            v = float(v)
        setattr(cfg, k, v.replace("+", " ") if isinstance(v, str) else v)
    s, info = emit(cfg)
    open(a.o, "w").write(s)
    print(info, len(s))
```

```python
import sys, math, argparse, struct
sys.path.insert(0, __file__.rsplit("/", 1)[0])
from ir import *

KNAME = "standalone__gqa_softmax__near_ridge_kernel"
C_SCALE = math.log2(math.e) / 16.0


def f2u(x):
    return struct.unpack("<I", struct.pack("<f", x))[0]


class Cfg:
    ldq = "nt"
    ldkv = "nt"
    ldkv0 = ""
    st = "nt"
    lat = 6
    age = 5
    sready = 4
    stamps = False
    dbg = False
    spin = -1
    spinwg = -1
    codepf = True
    force_fallback = False
    dma_sp = 6
    preflush = True
    y = 2
    pk = True
    verbose = False


sQ, sK, sV, sO = 12, 16, 20, 24
sW1K = 28
sC = 29
sKoff = 30
sVoff = 31
sT0, sT1, sT2, sT3 = 32, 33, 34, 35
sW = 36
sThr = 37
sW8K = 38
sCls = 39
sFlag = 40
sDBG = 44
vKR = [Reg("v", 1, 1), Reg("v", 2, 1), Reg("v", 3, 1)]
vVR = [[Reg("v", 4 + 3 * h + w, 1) for w in range(3)] for h in range(2)]
vDK = [Reg("v", 10, 1), Reg("v", 11, 1)]
vDV = [Reg("v", 12 + a, 1) for a in range(4)]
vST = [[Reg("v", 10 + 2 * r + k, 1) for k in range(2)] for r in range(3)]
vL = [Reg("v", 16 + r, 1) for r in range(3)]
vST0 = Reg("v", 19, 1)
vNM = [Reg("v", 20 + 2 * r, 1) for r in range(3)]
vRL = vNM
vSR = Reg("v", 21, 1)
vSW = [Reg("v", 23, 1), Reg("v", 25, 1), Reg("v", 26, 1), Reg("v", 27, 1)]
vXT = [Reg("v", 28 + r, 1) for r in range(3)]
vQR = Reg("v", 31, 1)
NSB = 6
vS = [Reg("v", 32 + 4 * i, 4) for i in range(NSB)]
vP = [[[Reg("v", 56 + 24 * b + 8 * r + 4 * kc, 4) for kc in range(2)] for r in range(3)] for b in range(3)]
vT = Reg("v", 32, 12)
vX = Reg("v", 44, 2)
O = [[Reg("v", 128 + 4 * t, 4) for t in range(16)],
     [Reg("v", 192 + 4 * t, 4) for t in range(16)],
     [Reg("a", 4 * t, 4) for t in range(16)]]
preK = [[Reg("v", 128 + 32 * a + 4 * c, 4) for c in range(8)] for a in range(4)] + \
       [[Reg("a", base + 4 * c, 4) for c in range(8)] for base in (0, 32, 192, 224)]
Q = [[Reg("a", 64 + 32 * r + 4 * c, 4) for c in range(8)] for r in range(3)]
KF = [[Reg("a", 160 + 4 * c, 4) for c in range(8)], [Reg("a", 224 + 4 * c, 4) for c in range(8)]]
VFB = [192 + 8 * b for b in range(4)]

SLOT = 16384
STG = 528
FR = (0, 2, 3, 1)


def sn(i, n=1):
    return R("s", i, n)


def valu(text, reads=(), writes=(), tag=""):
    return Op(text, "valu", reads, writes, tag)


def salu(text, reads=(), writes=()):
    return Op(text, "salu", reads, writes)


def names(*regs):
    out = []
    for r in regs:
        out += r.names if isinstance(r, Reg) else [r]
    return out


def mfma(D, A, B, C=None):
    c = str(C) if C is not None else "0"
    op = Op(f"v_mfma_f32_16x16x32_bf16 {D}, {A}, {B}, {c}", "mfma",
            names(A, B) + (C.names if C is not None else []), D.names)
    op.meta["srcab"] = frozenset(names(A, B))
    op.meta["srcc"] = frozenset(C.names) if C is not None else frozenset()
    return op


def dma(vaddr, srd, soff, imm, pol):
    so = f"s{soff}" if soff is not None else "0"
    t = f"buffer_load_dwordx4 {vaddr}, s[{srd}:{srd + 3}], {so} offen"
    if imm:
        t += f" offset:{imm}"
    if pol:
        t += " " + pol
    t += " lds"
    return Op(t, "dma", vaddr.names + sn(srd, 4) + (sn(soff) if soff is not None else []) + ["m0"], [])


def set_m0(const, base=sW1K):
    return salu(f"s_add_u32 m0, s{base}, {const}", sn(base), ["m0", "scc"])


class Unit:
    def __init__(self, kind, n, cfg):
        self.kind, self.n, self.cfg = kind, n, cfg
        self.slot = None
        self.nslots = 2 if kind == "Q" else 1
        self.dmas = []
        self.reads = []
        self.vis = None
        self.name = f"{kind}{n}"

    def make_dmas(self, vq=None):
        cfg = self.cfg
        ops = []
        base = self.slot * SLOT
        src = self.n % 16
        pol = cfg.ldkv if self.kind == "K" or cfg.ldv == "=" else cfg.ldv
        if self.kind == "K":
            so = salu(f"s_mov_b32 s{sKoff}, {src * 16384}", [], sn(sKoff))
            for a in range(2):
                for half in range(2):
                    d = dma(vDK[a], sK, sKoff, half * 256, pol)
                    d.pre = [set_m0(base + a * 8192 + half * 4096 - half * 256)]
                    ops.append(d)
            ops[0].pre.insert(0, so)
        elif self.kind == "V":
            j, h = divmod(src, 2)
            so = salu(f"s_mov_b32 s{sVoff}, {j * 32768 + h * 256}", [], sn(sVoff))
            for a in range(4):
                d = dma(vDV[a], sV, sVoff, 0, pol)
                d.pre = [set_m0(base + a * 4096)]
                ops.append(d)
            ops[0].pre.insert(0, so)
        else:
            for half in range(2):
                for rg in range(4):
                    d = dma(vq[rg], sQ, None, half * 256, cfg.ldq)
                    d.pre = [set_m0(base + half * 4096 + rg * 1024 - half * 256, sW8K)]
                    ops.append(d)
        for d in ops:
            d.meta["unit"] = self
            d.meta["expect"] = [d.pre[-1]] + ([ops[0].pre[0]] if self.kind != "Q" else [])
        self.dmas = ops
        return ops


def flat_dmas(ops):
    out = []
    for d in ops:
        out += d.pre
        out.append(salu("s_nop 0"))
        out.append(d)
        d.pre = []
    return out


def xlane(op, x, tmp):
    o = []
    o.append(valu(f"v_mov_b32 {tmp}, {x}", x.names, tmp.names))
    o.append(valu(f"v_permlane32_swap_b32 {x}, {tmp}", names(x, tmp), names(x, tmp)))
    o.append(valu(f"{op} {x}, {x}, {tmp}", names(x, tmp), x.names))
    o.append(valu(f"v_mov_b32 {tmp}, {x}", x.names, tmp.names))
    o.append(valu(f"v_permlane16_swap_b32 {x}, {tmp}", names(x, tmp), names(x, tmp)))
    o.append(valu(f"{op} {x}, {x}, {tmp}", names(x, tmp), x.names))
    return o


class Stamps:
    def __init__(self, cfg):
        self.cfg = cfg
        self.list = []

    def __call__(self, name, real=False):
        cfg = self.cfg
        if not cfg.stamps:
            return []
        if cfg.spin != -1:
            if name != cfg.spin_name:
                return []
            return [Op("s_memrealtime s[48:49]", "salu")]
        k = len(self.list)
        assert 48 + 2 * k + 1 <= 101, "too many stamps"
        self.list.append((name, real))
        return [Op(f"{'s_memrealtime' if real else 's_memtime'} s[{48 + 2 * k}:{49 + 2 * k}]", "salu")]

    def finish(self):
        cfg = self.cfg
        o = []
        raw = lambda t: o.append(Op(t, "raw"))
        if not cfg.stamps:
            return o
        raw("s_waitcnt lgkmcnt(0)")
        if cfg.spin != -1:
            if cfg.spinwg >= 0:
                raw(f"s_cmp_lg_u32 s2, {cfg.spinwg}")
                raw("s_cbranch_scc1 L_end")
            o.append(Op("L_spin:", "label"))
            raw("s_memrealtime s[50:51]")
            raw("s_waitcnt lgkmcnt(0)")
            raw("s_sub_u32 s50, s50, s48")
            raw("s_cmp_lt_u32 s50, 5000")
            raw("s_cbranch_scc1 L_spin")
            return o
        raw("v_mov_b32 v40, 0")
        for k in range(len(self.list)):
            raw(f"v_writelane_b32 v40, s{48 + 2 * k}, {k}")
        raw(f"s_load_dwordx2 s[{sDBG}:{sDBG + 1}], s[0:1], 40")
        raw(f"s_mov_b32 s{sDBG + 2}, 0x1000000")
        raw(f"s_mov_b32 s{sDBG + 3}, 0x00020000")
        raw("s_lshl_b32 s48, s2, 8")
        raw("v_add_u32 v41, s48, v0")
        raw("v_lshlrev_b32 v41, 2, v41")
        raw("s_waitcnt lgkmcnt(0)")
        raw(f"buffer_store_dword v40, v41, s[{sDBG}:{sDBG + 3}], 0 offen")
        return o


def prologue(cfg, U, stamp):
    P = []
    A = P.append
    raw = lambda t: A(Op(t, "raw"))
    raw("s_cmp_ge_u32 s2, 256")
    raw("s_cbranch_scc1 L_end")
    raw("s_load_dwordx4 s[4:7], s[0:1], 0")
    raw("s_load_dwordx4 s[8:11], s[0:1], 16")
    P += stamp("start", True)
    t = vT
    lane, wv, common, cpos, f_w = t[0], t[1], t[2], t[3], t[4]
    if cfg.codepf:
        raw("s_getpc_b64 s[42:43]")
        A(Op("L_pfbase:", "label"))
        A(valu(f"v_lshlrev_b32 {t[10]}, 7, v0", ["v0"], t[10].names))
        A(Op(f"global_load_dword {vX[0]}, {t[10]}, s[42:43]", "vload", t[10].names, vX[0].names))
    A(valu(f"v_lshrrev_b32 {wv}, 6, v0", ["v0"], wv.names))
    A(valu(f"v_and_b32 {lane}, 63, v0", ["v0"], lane.names))
    A(valu(f"v_readfirstlane_b32 s{sW}, {wv}", wv.names, sn(sW)))
    A(salu(f"s_and_b32 s{sT0}, s2, 7", [], sn(sT0)))
    A(salu(f"s_lshr_b32 s{sT1}, s2, 5", [], sn(sT1)))
    A(salu(f"s_lshl3_add_u32 s{sT0}, s{sT1}, s{sT0}", [], sn(sT0)))
    A(salu(f"s_bfe_u32 s{sT1}, s2, 0x20003", [], sn(sT1)))
    A(salu(f"s_lshl2_add_u32 s{sT2}, s{sT0}, s{sT1}", [], sn(sT2)))
    A(salu(f"s_mul_i32 s{sT2}, s{sT2}, {184 * 512}", [], sn(sT2)))
    A(salu(f"s_lshl_b32 s{sT0}, s{sT0}, 18", [], sn(sT0)))
    A(valu(f"v_bfe_u32 {t[6]}, {lane}, 2, 2", lane.names, t[6].names))
    A(valu(f"v_lshrrev_b32 {t[5]}, 4, {lane}", lane.names, t[5].names))
    A(valu(f"v_lshlrev_b32 {common}, 9, {t[6]}", t[6].names, common.names))
    A(valu(f"v_lshl_add_u32 {common}, {t[5]}, 6, {common}", names(t[5], common), common.names))
    A(valu(f"v_and_b32 {cpos}, 3, {lane}", lane.names, cpos.names))
    A(salu(f"s_lshl_b32 s{sT1}, s{sW}, 1", sn(sW), sn(sT1)))
    A(salu(f"s_lshr_b32 s{sT1}, 0x78, s{sT1}", [], sn(sT1)))
    A(salu(f"s_and_b32 s{sT1}, s{sT1}, 3", [], sn(sT1)))
    A(salu(f"s_lshl_b32 s{sW1K}, s{sW}, 10", sn(sW), sn(sW1K)))
    A(salu(f"s_lshl_b32 s{sW8K}, s{sW}, 13", sn(sW), sn(sW8K)))
    A(valu(f"v_xor_b32 {f_w}, s{sT1}, {cpos}", cpos.names, f_w.names))
    A(valu(f"v_lshl_add_u32 {t[7]}, {wv}, 11, {common}", names(wv, common), t[7].names))
    A(valu(f"v_lshl_add_u32 {vDK[0]}, {f_w}, 4, {t[7]}", names(f_w, t[7]), vDK[0].names))
    A(valu(f"v_add_u32 {vDK[1]}, 8192, {vDK[0]}", vDK[0].names, vDK[1].names))
    vq = [[Reg("v", 104 + 4 * r + rg, 1) for rg in range(4)] for r in range(3)]
    qb = Reg("v", 116, 1)
    A(salu(f"s_mov_b32 s{sT3}, {48 * 512}", [], sn(sT3)))
    A(valu(f"v_mad_u32_u24 {qb}, {wv}, s{sT3}, {common}", names(wv, common), qb.names))
    for rg in range(4):
        x = Reg("v", 117, 1)
        A(valu(f"v_xor_b32 {x}, {FR[rg]}, {cpos}", cpos.names, x.names))
        A(valu(f"v_lshl_add_u32 {vq[0][rg]}, {x}, 4, {qb}", names(x, qb), vq[0][rg].names))
        if rg:
            A(valu(f"v_add_u32 {vq[0][rg]}, {rg * 2048}, {vq[0][rg]}", vq[0][rg].names, vq[0][rg].names))
    A(Op("s_waitcnt lgkmcnt(0)", "wait", meta={"fixed": True}))
    P += stamp("karg", True)

    def srd(srd, p, off, nrec):
        A(salu(f"s_add_u32 s{srd}, s{p}, s{off}", [], sn(srd)))
        A(salu(f"s_addc_u32 s{srd + 1}, s{p + 1}, 0", [], sn(srd + 1)))
        A(salu(f"s_mov_b32 s{srd + 2}, {nrec}", [], sn(srd + 2)))
        A(salu(f"s_mov_b32 s{srd + 3}, 0x00020000", [], sn(srd + 3)))

    def vaddr():
        A(valu(f"v_and_b32 {t[9]}, 1, {wv}", wv.names, t[9].names))
        A(valu(f"v_lshlrev_b32 {t[9]}, 1, {t[9]}", t[9].names, t[9].names))
        A(valu(f"v_xor_b32 {t[9]}, {t[9]}, {cpos}", names(t[9], cpos), t[9].names))
        A(valu(f"v_lshl_add_u32 {vDV[0]}, {t[9]}, 4, {t[7]}", names(t[9], t[7]), vDV[0].names))
        for a in range(1, 4):
            A(valu(f"v_add_u32 {vDV[a]}, {8192 * a}, {vDV[0]}", vDV[0].names, vDV[a].names))

    def codepf2():
        if cfg.codepf:
            A(valu(f"v_add_u32 {t[10]}, 32768, {t[10]}", t[10].names, t[10].names))
            A(valu(f"v_min_u32 {t[10]}, L_mainend - L_pfbase, {t[10]}", t[10].names, t[10].names))
            A(Op(f"global_load_dword {vX[1]}, {t[10]}, s[42:43]", "vload", t[10].names, vX[1].names))

    def cwait(k):
        raw(f"s_cmp_lt_u32 s{sCls}, {k}")
        raw(f"s_cbranch_scc1 L_nw{k}")
        raw("s_waitcnt vmcnt(0)")
        A(Op(f"L_nw{k}:", "label"))

    srd(sK, 6, sT0, 262144)
    srd(sQ, 4, sT2, 184 * 512)
    if cfg.stag2:
        raw(f"s_lshr_b32 s{sCls}, s2, 5")
        raw(f"s_lshl_b32 s{sCls}, s{sCls}, 2")
        raw(f"s_lshr_b32 s{sCls}, {cfg.stag2}, s{sCls}")
        raw(f"s_and_b32 s{sCls}, s{sCls}, 15")
        raw(f"s_cbranch_scc0 L_go")
        raw(f"v_lshlrev_b32 {t[9]}, {cfg.stag_sh}, v0")
        raw(f"s_mov_b32 s{sKoff}, 0")
        A(Op("L_warm:", "label"))
        raw(f"buffer_load_dword {t[8]}, {t[9]}, s[{sK}:{sK + 3}], s{sKoff} offen {cfg.ldkv}")
        raw(f"s_add_u32 s{sKoff}, s{sKoff}, {256 << cfg.stag_sh}")
        raw(f"s_sub_u32 s{sCls}, s{sCls}, 1")
        raw("s_waitcnt vmcnt(0)")
        raw(f"s_cmp_lg_u32 s{sCls}, 0")
        raw("s_cbranch_scc1 L_warm")
        A(Op("L_go:", "label"))
    seq = cfg.head.split(",")

    def issue(x):
        if x == "pf":
            codepf2()
        else:
            if x[:2] in ("Q1", "Q2"):
                qaddr12()
            P.extend(head_dmas(U, x, vq))

    done12 = []

    def qaddr12():
        if not done12:
            done12.append(1)
            for r in (1, 2):
                for rg in range(4):
                    A(valu(f"v_add_u32 {vq[r][rg]}, {8192 * r}, {vq[0][rg]}", vq[0][rg].names, vq[r][rg].names))

    cut = seq.index("|")
    for x in seq[:cut]:
        issue(x)
    srd(sV, 8, sT0, 262144)
    srd(sO, 10, sT2, 184 * 512)
    for i, ch in enumerate(cfg.touch):
        d = Reg("v", 46 + i, 1)
        sr = {"V": sV, "O": sO}[ch]
        A(Op(f"buffer_load_dword {d}, off, s[{sr}:{sr + 3}], 0 nt", "vload", sn(sr, 4), d.names))
    vaddr()
    g = t[5]
    A(valu(f"v_lshlrev_b32 {t[10]}, 1, {t[6]}", t[6].names, t[10].names))
    A(valu(f"v_lshrrev_b32 {t[10]}, {t[10]}, 0x78".replace("0x78", str(t[11])), names(t[10], t[11]), t[10].names))
    P.insert(len(P) - 1, valu(f"v_mov_b32 {t[11]}, 0x78", [], t[11].names))
    A(valu(f"v_and_b32 {t[10]}, 3, {t[10]}", t[10].names, t[10].names))
    A(valu(f"v_xor_b32 {t[10]}, {t[10]}, {g}", names(t[10], g), t[10].names))
    A(valu(f"v_lshlrev_b32 {t[10]}, 4, {t[10]}", t[10].names, t[10].names))
    A(valu(f"v_lshl_add_u32 {t[10]}, {t[6]}, 10, {t[10]}", names(t[6], t[10]), t[10].names))
    A(valu(f"v_lshl_add_u32 {vKR[0]}, {cpos}, 6, {t[10]}", names(cpos, t[10]), vKR[0].names))
    A(valu(f"v_add_u32 {vKR[1]}, 0x10000, {vKR[0]}", vKR[0].names, vKR[1].names))
    A(valu(f"v_add_u32 {vKR[2]}, 0x20000, {vKR[0]}", vKR[0].names, vKR[2].names))
    A(valu(f"v_lshlrev_b32 {t[10]}, 10, {g}", g.names, t[10].names))
    A(valu(f"v_lshl_add_u32 {t[10]}, {t[6]}, 6, {t[10]}", names(t[6], t[10]), t[10].names))
    A(valu(f"v_lshl_add_u32 {t[10]}, {cpos}, 3, {t[10]}", names(cpos, t[10]), t[10].names))
    A(valu(f"v_and_b32 {t[11]}, 1, {g}", g.names, t[11].names))
    A(valu(f"v_lshl_add_u32 {vVR[0][0]}, {t[11]}, 5, {t[10]}", names(t[11], t[10]), vVR[0][0].names))
    A(valu(f"v_xor_b32 {vVR[1][0]}, 32, {vVR[0][0]}", vVR[0][0].names, vVR[1][0].names))
    for h in range(2):
        for w in (1, 2):
            A(valu(f"v_add_u32 {vVR[h][w]}, {w * 65536}, {vVR[h][0]}", vVR[h][0].names, vVR[h][w].names))
    if cfg.tgran:
        n15 = t[11]
        x0, x1, x2 = Reg("v", 118, 1), Reg("v", 119, 1), Reg("v", 120, 1)
        A(valu(f"v_and_b32 {n15}, 15, {lane}", lane.names, n15.names))
        A(valu(f"v_lshrrev_b32 {x1}, 2, {lane}", lane.names, x1.names))
        A(valu(f"v_mad_u32_u24 {t[10]}, {wv}, 48, {x1}", names(wv, x1), t[10].names))
        A(valu(f"v_lshlrev_b32 {t[10]}, 9, {t[10]}", t[10].names, t[10].names))
        A(valu(f"v_lshl_add_u32 {vST0}, {cpos}, 4, {t[10]}", names(cpos, t[10]), vST0.names))
        A(salu(f"s_mul_i32 s{sT3}, s{sW}, {cfg.stg_wave}", sn(sW), sn(sT3)))
        A(salu(f"s_add_u32 s{sT3}, s{sT3}, {cfg.stg_base}", [], sn(sT3)))
        A(valu(f"v_bfe_u32 {x2}, {lane}, 3, 2", lane.names, x2.names))
        A(valu(f"v_xor_b32 {x2}, {x2}, {cpos}", names(x2, cpos), x2.names))
        A(valu(f"v_lshlrev_b32 {x2}, 4, {x2}", x2.names, x2.names))
        A(valu(f"v_lshl_add_u32 {x2}, {x1}, 6, {x2}", names(x1, x2), x2.names))
        A(valu(f"v_add_u32 {vSR}, s{sT3}, {x2}", x2.names, vSR.names))
        A(valu(f"v_bfe_u32 {x0}, {lane}, 1, 2", lane.names, x0.names))
        A(valu(f"v_lshrrev_b32 {x1}, 1, {g}", g.names, x1.names))
        A(valu(f"v_xor_b32 {x0}, {x0}, {x1}", names(x0, x1), x0.names))
        A(valu(f"v_lshlrev_b32 {x0}, 4, {x0}", x0.names, x0.names))
        A(valu(f"v_lshl_add_u32 {x0}, {n15}, 6, {x0}", names(n15, x0), x0.names))
        A(valu(f"v_and_b32 {x1}, 1, {g}", g.names, x1.names))
        A(valu(f"v_lshl_add_u32 {x0}, {x1}, 3, {x0}", names(x1, x0), x0.names))
        A(valu(f"v_add_u32 {vSW[0]}, s{sT3}, {x0}", x0.names, vSW[0].names))
        A(valu(f"v_xor_b32 {vSW[1]}, 32, {vSW[0]}", vSW[0].names, vSW[1].names))
    else:
        n15 = t[11]
        x0, x1, x2 = Reg("v", 118, 1), Reg("v", 119, 1), Reg("v", 120, 1)
        A(valu(f"v_and_b32 {n15}, 15, {lane}", lane.names, n15.names))
        A(valu(f"v_lshrrev_b32 {x1}, 3, {lane}", lane.names, x1.names))
        A(valu(f"v_and_b32 {x2}, 7, {lane}", lane.names, x2.names))
        A(valu(f"v_mad_u32_u24 {t[10]}, {wv}, 48, {x1}", names(wv, x1), t[10].names))
        A(valu(f"v_lshlrev_b32 {t[10]}, 9, {t[10]}", t[10].names, t[10].names))
        A(valu(f"v_lshl_add_u32 {vST0}, {x2}, 4, {t[10]}", names(x2, t[10]), vST0.names))
        A(salu(f"s_mul_i32 s{sT3}, s{sW}, {cfg.stg_wave}", sn(sW), sn(sT3)))
        A(salu(f"s_add_u32 s{sT3}, s{sT3}, {cfg.stg_base}", [], sn(sT3)))
        A(valu(f"v_xor_b32 {t[10]}, {x2}, {x1}", names(x2, x1), t[10].names))
        A(valu(f"v_lshlrev_b32 {t[10]}, 4, {t[10]}", t[10].names, t[10].names))
        A(valu(f"v_lshl_add_u32 {t[10]}, {x1}, 7, {t[10]}", names(x1, t[10]), t[10].names))
        A(valu(f"v_add_u32 {vSR}, s{sT3}, {t[10]}", t[10].names, vSR.names))
        A(valu(f"v_lshrrev_b32 {x1}, 1, {g}", g.names, x1.names))
        A(valu(f"v_xor_b32 {x0}, {x2}, {x1}", names(x2, x1), x0.names))
        A(valu(f"v_lshlrev_b32 {x0}, 4, {x0}", x0.names, x0.names))
        A(valu(f"v_lshl_add_u32 {x0}, {n15}, 7, {x0}", names(n15, x0), x0.names))
        A(valu(f"v_and_b32 {x1}, 1, {g}", g.names, x1.names))
        A(valu(f"v_lshl_add_u32 {x0}, {x1}, 3, {x0}", names(x1, x0), x0.names))
        A(valu(f"v_add_u32 {x0}, s{sT3}, {x0}", x0.names, x0.names))
        for i in range(4):
            A(valu(f"v_xor_b32 {vSW[i]}, {32 * i}, {x0}", x0.names, vSW[i].names))
    A(valu(f"v_add_u32 {vQR}, s{sW8K}, {vKR[1]}", vKR[1].names + sn(sW8K), vQR.names))
    A(salu(f"s_mov_b32 s{sC}, {f2u(C_SCALE):#x}", [], sn(sC)))
    A(salu(f"s_mov_b32 s{sThr}, {f2u(2.0 ** 64 if not cfg.force_fallback else 1.0):#x}", [], sn(sThr)))
    A(salu(f"s_mov_b64 s[{sFlag}:{sFlag + 1}], 0", [], sn(sFlag, 2)))
    for r in range(3):
        A(valu(f"v_mov_b32 {vL[r]}, 0", [], vL[r].names))
    if cfg.padzero:
        A(valu(f"v_and_b32 {t[10]}, 0xc8, v0", ["v0"], t[10].names))
        A(valu(f"v_cmp_eq_u32 vcc, 0xc8, {t[10]}", t[10].names, ["svcc"]))
        A(valu(f"v_mov_b32 {t[10]}, {f2u(-1e30):#x}", [], t[10].names))
        A(valu(f"v_cndmask_b32 {vL[2]}, {vL[2]}, {t[10]}, vcc", names(vL[2], t[10]) + ["svcc"], vL[2].names))
    qaddr12()
    for x in seq[cut + 1:]:
        issue(x)
    P += stamp("issued", True)
    if cfg.walk:
        A(Op("WALK", "label"))
    return P, vq


def head_dmas(U, x, vq):
    name, part = (x[:2], x[2:]) if x[0] == "Q" else (x, "")
    u = U[name]
    if not u.dmas:
        u.make_dmas(vq[u.n]) if u.kind == "Q" else u.make_dmas()
    ops = u.dmas if not part else (u.dmas[:4] if part == "a" else u.dmas[4:])
    return flat_dmas(ops)


def q_reads(u):
    ops = []
    r = u.n
    base = u.slot * SLOT - 65536
    pre = []
    addr = vQR
    if base >= 65536:
        addr = vXT[2]
        pre.append(valu(f"v_add_u32 {addr}, 0x10000, {vQR}", vQR.names, addr.names))
        base -= 65536
    for c in range(8):
        off = base + (c >> 2) * 4096 + (c & 3) * 256
        o = Op(f"ds_read_b128 {Q[r][c]}, {addr} offset:{off}", "ds", addr.names, Q[r][c].names)
        o.meta["qhalf"] = c >> 2
        o.meta["unit"] = u
        u.reads.append(o)
        ops.append(o)
    return pre, ops


def build(cfg):
    act = lambda s: (0, 1, 2)
    stamp = Stamps(cfg)
    U = {}
    for n in range(16):
        U[f"K{n}"] = Unit("K", n, cfg)
        U[f"V{n}"] = Unit("V", n, cfg)
    for r in range(3):
        U[f"Q{r}"] = Unit("Q", r, cfg)
    U["K0"].slot, U["K1"].slot, U["K2"].slot, U["K3"].slot = 0, 1, 2, 3
    U["Q0"].slot, U["Q1"].slot, U["Q2"].slot = 4, 6, 8
    cfg.stg_base, cfg.stg_wave = 0, 4096 * cfg.stg_n

    pro, vqd = prologue(cfg, U, stamp)

    M = []
    fixed = {}
    dsq = []
    vq = []
    sbuf_last = {}
    spool = {"bufs": list(vS) + [Reg("v", vP[2][0][0].lo + 4 * i, 4) for i in range(3, 6)], "ctr": 0}
    U["K4"].slot, U["V0"].slot = 4, 5
    hd = lambda lst: [o for x in lst.split(",") if x for o in head_dmas(U, x, vqd)]
    guards = []
    Pcvt = {}
    negm_ready = {}
    preg_free = {}
    last_add = {}
    bars = []

    def Preg(s, r):
        return vP[s % 3][r]

    def softmax_ops(s, r, a, S, ready_gap):
        dst = Preg(s, r)[a >> 1]
        fm, ex, ad, cv = [], [], [], []
        for i in range(4):
            o = valu(f"v_fma_f32 {S[i]}, {S[i]}, s{sC}, {vNM[r]}", names(S[i], vNM[r]) + sn(sC), S[i].names)
            o.earliest = ready_gap
            o.deps.append((negm_ready[r], 0))
            fm.append(o)
        for i in range(4):
            o = Op(f"v_exp_f32 {S[i]}, {S[i]}", "trans", S[i].names, S[i].names)
            o.deps.append((fm[i], 0))
            ex.append(o)
        for i in range(4):
            o = valu(f"v_add_f32 {vL[r]}, {vL[r]}, {S[i]}", names(vL[r], S[i]), vL[r].names)
            o.deps.append((ex[i], 1))
            prev_add = ad[-1] if ad else last_add.get(r)
            if prev_add is not None:
                o.deps.append((prev_add, 0))
            ad.append(o)
        for k in range(2):
            d = dst[2 * (a & 1) + k]
            o = valu(f"v_cvt_pk_bf16_f32 {d}, {S[2 * k]}, {S[2 * k + 1]}", names(S[2 * k], S[2 * k + 1]), d.names)
            o.deps += [(ex[2 * k], 1), (ex[2 * k + 1], 1)]
            o.earliest = preg_free.get(dst.lo, -1)
            if dst.lo in sbuf_last:
                o.deps += [(x, 0) for x in sbuf_last[dst.lo]]
            cv.append(o)
        Pcvt[(s, r, a)] = cv
        vq.extend([fm[0], fm[1], ex[0], fm[2], ex[1], fm[3], ad[0], ex[2], ad[1], cv[0], ex[3], ad[2], ad[3], cv[1]])
        last_add[r] = ad[3]
        return ad + cv

    held = {}
    noflush = set()

    halfS = {}

    def chain(s, r, a, frags, part=None):
        start = len(M)
        if part == 1:
            S = halfS[(s, r, a)]
            si = S.lo
        else:
            S = spool["bufs"][spool["ctr"] % len(spool["bufs"])]
            spool["ctr"] += 1
            while sbuf_last.get(S.lo) == "held":
                S = spool["bufs"][spool["ctr"] % len(spool["bufs"])]
                spool["ctr"] += 1
            si = S.lo
            if sbuf_last.get(si):
                guards.append((start - 1, sbuf_last[si]))
        for c in range(8) if part is None else range(4 * part, 4 * part + 4):
            M.append(mfma(S, frags[c], Q[r][c], S if c else None))
        if part == 0:
            halfS[(s, r, a)] = S
            sbuf_last[si] = "held"
            return start
        end = len(M) - 1
        if r not in negm_ready:
            held.setdefault(r, []).append((si, S, end, a))
            sbuf_last[si] = "held"
            if len(held[r]) == 2:
                S0, S1 = held[r][0][1], held[r][1][1]
                m, tmp = vNM[r], vXT[r]
                ops = [valu(f"v_max3_f32 {m}, {S0[0]}, {S0[1]}, {S0[2]}", names(S0[0], S0[1], S0[2]), m.names),
                       valu(f"v_max3_f32 {tmp}, {S0[3]}, {S1[0]}, {S1[1]}", names(S0[3], S1[0], S1[1]), tmp.names),
                       valu(f"v_max3_f32 {m}, {m}, {S1[2]}, {S1[3]}", names(m, S1[2], S1[3]), m.names),
                       valu(f"v_max_f32 {m}, {m}, {tmp}", names(m, tmp), m.names)]
                ops += xlane("v_max_f32", m, tmp)
                if r == 2 and cfg.padzero:
                    ops.append(valu(f"v_fma_f32 {m}, -{m}, s{sC}, {vL[2]}", names(m, vL[2]) + sn(sC), m.names))
                else:
                    ops.append(valu(f"v_mul_f32 {m}, {f2u(-C_SCALE):#x}, {m}", m.names, m.names))
                prev = None
                for o in ops:
                    o.earliest = end + cfg.sready
                    if prev is not None:
                        o.deps.append((prev, 1 if "permlane" in o.text else 0))
                    prev = o
                vq.extend(ops)
                negm_ready[r] = ops[-1]
                for (si2, S2, end2, a2) in held[r]:
                    sbuf_last[si2] = softmax_ops(s, r, a2, S2, end2 + cfg.sready)
        else:
            sbuf_last[si] = softmax_ops(s, r, a, S, end + cfg.sready)
        return start

    afree = {}
    touched = set()
    vpool = {"bufs": list(VFB), "ctr": 0}

    def group(steps, t, smajor=False):
        base = vpool["bufs"][vpool["ctr"] % len(vpool["bufs"])]
        vpool["ctr"] += 1
        tt = t & 7
        start = len(M)
        frs = []
        for i, s in enumerate(steps):
            u = U[f"V{2 * s + (t >> 3)}"]
            for kc in range(2):
                F = Reg("a", base + 8 * i + 4 * kc, 4)
                frs.append((s, kc, F))
                for k in range(2):
                    a = 2 * kc + k
                    dsq.append(dict(kind="V", dst=F[2 * k:2 * k + 2], h=tt & 1, u=u, off=a * 4096 + (tt >> 1) * 256,
                                    cons=start + 2 * i + kc, free=afree.get(F.lo, -1)))
        seq = [(r, x) for r in act(steps[0]) for x in frs]
        if smajor:
            seq = [(r, x) for s0 in steps for r in act(s0) for x in frs if x[0] == s0]
            for d in dsq[-4 * len(steps):]:
                i = d["cons"] - start
                d["cons"] = start + 6 * (i >> 1) + (i & 1)
        for (r, (s, kc, F)) in seq:
            if True:
                C = O[r][t] if (r, t) in touched else None
                touched.add((r, t))
                P_ = Preg(s, r)[kc]
                M.append(mfma(O[r][t], F, P_, C))
                guards.append((len(M) - 3, Pcvt[(s, r, 2 * kc)] + Pcvt[(s, r, 2 * kc + 1)]))
                preg_free[P_.lo] = len(M) - 1
                afree[F.lo] = len(M) - 1
        return len(M) - 1

    pair_end = {}

    def group_pair(steps, ta, tb, rorder, smajor=False):
        start = len(M)
        frs = []
        for j, t in enumerate((ta, tb)):
            base = vpool["bufs"][vpool["ctr"] % len(vpool["bufs"])]
            vpool["ctr"] += 1
            for i, s in enumerate(steps):
                for kc in range(2):
                    frs.append((t, s, kc, Reg("a", base + 8 * i + 4 * kc, 4)))
        first = sorted(frs, key=lambda x: (x[1] == steps[-1], x[0], x[1], x[2])) if smajor else frs
        for i, (t, s, kc, F) in enumerate(first):
            u = U[f"V{2 * s + (t >> 3)}"]
            tt = t & 7
            for k in range(2):
                dsq.append(dict(kind="V", dst=F[2 * k:2 * k + 2], h=tt & 1, u=u, off=(2 * kc + k) * 4096 + (tt >> 1) * 256,
                                cons=start + i, free=afree.get(F.lo, -1)))
        for n_, r in enumerate(rorder):
            for (t, s, kc, F) in (first if n_ == 0 else frs):
                P_ = Preg(s, r)[kc]
                M.append(mfma(O[r][t], F, P_, O[r][t]))
                guards.append((len(M) - 3, Pcvt[(s, r, 2 * kc)] + Pcvt[(s, r, 2 * kc + 1)]))
                afree[F.lo] = len(M) - 1
            pair_end[(r, ta >> 1)] = len(M) - 1

    def barrier(name, gap, hoist):
        o = Op("s_barrier", "barrier")
        o.meta.update(need_vm=[], need_lgkm=[], name=name, hoist_wait=hoist, units=[])
        o.gap = gap
        bars.append(o)
        return o

    def prek_reads(lo, hi):
        ops = []
        for a in range(lo, hi):
            u = U[f"K{a >> 1}"]
            for c in range(8):
                off = u.slot * SLOT + (a & 1) * 8192 + (c >> 2) * 4096 + (c & 3) * 256
                o = Op(f"ds_read_b128 {preK[a][c]}, {vKR[0]} offset:{off}", "ds", vKR[0].names, preK[a][c].names)
                u.reads.append(o)
                ops.append(o)
        return ops

    blk = []
    ba = barrier("a", -1, False)
    ba.meta["units"] = [U["K0"], U["K1"], U["Q0"]]
    U["K0"].vis = U["K1"].vis = U["Q0"].vis = ba
    blk.append(ba)
    blk += stamp("K0Q0", True)
    pre_, q0 = q_reads(U["Q0"])
    prek = prek_reads(0, 4)
    hs = lambda n: stamp(n, True) if cfg.hstamps else []
    pre_ds = {}
    pre_dma = {}

    def gap_dmas(spec, g0):
        for item in spec.split(","):
            if not item:
                continue
            x, pos = item.split("@")
            first, step = (int(v) for v in pos.split(":"))
            name, part = (x[:2], x[2:]) if x[0] == "Q" else (x, "")
            u = U[name]
            if not u.dmas:
                u.make_dmas(vqd[u.n]) if u.kind == "Q" else u.make_dmas()
            ops = u.dmas if not part else (u.dmas[:4] if part == "a" else u.dmas[4:])
            for i, d in enumerate(ops):
                g = g0 + first + i * step
                assert g not in pre_dma
                pre_dma[g] = d
                d.gap = g

    if cfg.inter:
        q_first = [x for pair in zip(q0, prek[:8]) for x in pair]
        blk += pre_ + q_first + hd(cfg.head_a) + hs("hA")
        for i, o in enumerate(prek[8:]):
            pre_ds[i] = o
        gap_dmas(cfg.g_r0a, 0)
    else:
        blk += pre_ + q0 + prek[:8] + hd(cfg.head_a) + hs("hA") + prek[8:]
    fixed[-1] = blk
    sub_order = (0, 1, 2, 3, 6, 7, 4, 5)
    allreads = q0 + prek
    kprev = {}
    if cfg.dfhead:
        def mark():
            for o in vq:
                o.meta.setdefault("pre", len(M) - 1)

        def run(r, subs, part):
            for a in subs:
                chain(a >> 2, r, a & 3, preK[a], part)
                for c in range(8):
                    if preK[a][c].f == "a":
                        afree[preK[a][c].lo] = len(M) - 1
            mark()

        QR = {}
        for r in (1, 2):
            u = U[f"Q{r}"]
            QR[r] = q_reads(u)
            for o in QR[r][1]:
                o.meta["need_vm_unit"] = (u, o.meta["qhalf"])
            allreads += QR[r][1] if r == 1 else []
        if cfg.dfhead == 2:
            def kbar(name, unit, lo, pre_blk, gspec):
                b = barrier(name, len(M) - 1, False)
                b.meta["units"] = [U[unit]]
                b.meta["need_lgkm"] = list(q0)
                U[unit].vis = b
                rd = prek_reads(lo, lo + 2)
                allreads.extend(rd)
                fixed[len(M) - 1] = pre_blk + [b] + hs(name) + rd[:8]
                for j, o in enumerate(rd[8:]):
                    pre_ds[len(M) + j] = o
                gap_dmas(gspec, len(M))
            run(0, (0, 1, 2), None)
            noflush.add(len(M) - 1)
            b = barrier("a2", len(M) - 1, False)
            b.meta["units"] = [U["K2"]]
            b.meta["need_lgkm"] = list(q0)
            U["K2"].vis = b
            rd = prek_reads(4, 6)
            allreads.extend(rd)
            fixed[len(M) - 1] = [b] + hs("a2")
            for j, o in enumerate(rd):
                pre_ds[len(M) + j] = o
            run(0, (3, 4, 5), None)
            fixed[len(M) - 1] = hs("t0c") + hd(cfg.head_a2) + QR[1][0] + QR[1][1][:4] + hs("qa1")
            run(1, (0, 1, 2, 3, 4, 5), 0)
            kbar("a3", "K3", 6, hs("w2") + hd(cfg.head_a3), cfg.g_r0b)
            spool["bufs"] += [Reg("v", vP[2][0][0].lo + 4 * i, 4) for i in range(3)]
            run(0, (6, 7), None)
            run(1, (6, 7), 0)
        else:
            run(0, (0, 1, 2, 3), None)
            fixed[len(M) - 1] = hs("t0c") + QR[1][0] + QR[1][1][:4] + hs("qa1")
            run(1, (0, 1, 2, 3), 0)
            b2 = barrier("a2", len(M) - 1, False)
            b2.meta["units"] = [U["K2"], U["K3"]]
            b2.meta["need_lgkm"] = list(q0)
            U["K2"].vis = U["K3"].vis = b2
            k2 = prek_reads(6, 8) + prek_reads(4, 6)
            allreads += k2
            fixed[len(M) - 1] = hs("w2") + hd(cfg.head_a2) + hs("hA2") + [b2] + hs("a2") + k2[:8]
            for j, o in enumerate(k2[8:]):
                pre_ds[len(M) + j] = o
            gap_dmas(cfg.g_r0b, len(M))
            spool["bufs"] += [Reg("v", vP[2][0][0].lo + 4 * i, 4) for i in range(3)]
            run(0, (6, 7, 4, 5), None)
            run(1, (6, 7, 4, 5), 0)
        bb = barrier("c", len(M) - 1, False)
        bb.meta["need_lgkm"] = list(allreads)
        fixed[len(M) - 1] = hs("w3") + hd(cfg.head_c) + QR[1][1][4:] + [bb] + stamp("Q1", True)
        gap_dmas(cfg.g_r1, len(M))
        run(1, sub_order, 1)
        allreads += QR[2][1]
        fixed[len(M) - 1] = hs("w4") + hd(cfg.head_0) + QR[2][0] + QR[2][1][:4] + hs("qa2")
        run(2, sub_order, 0)
        b0 = Op("", "label")
        b0.gap = len(M) - 1
        fixed[len(M) - 1] = hs("w5") + QR[2][1][4:] + stamp("Q2", True)
        run(2, sub_order, 1)
    for r in range(3 if not cfg.dfhead else 0):
        split = str(r) in cfg.half_r
        if r:
            u = U[f"Q{r}"]
            pre_, qr = q_reads(u)
            for o in qr:
                o.meta["need_vm_unit"] = (u, o.meta["qhalf"])
            lists = (cfg.head_c if r == 1 else cfg.head_0).split("/")
            if r == 2 or split:
                extra_s = [Reg("v", vP[2][0][0].lo + 4 * i, 4) for i in range(3)]
                if r == 2 and extra_s[0].lo not in [x.lo for x in spool["bufs"]]:
                    spool["bufs"] += extra_s
            allreads += qr
            if split:
                fixed[len(M) - 1] = hs(f"fl{r}") + hd(lists[0]) + hs(f"d{r}") + pre_ + qr[:4] + hs(f"qa{r}")
                for a in sub_order:
                    chain(a >> 2, r, a & 3, preK[a], 0)
                blk = hs(f"pa{r}") + hd(lists[1] if len(lists) > 1 else "") + qr[4:]
                noflush.add(len(M) - 1)
            else:
                blk = hs(f"fl{r}") + hd(",".join(lists)) + hs(f"d{r}") + pre_ + qr
            if r == 2 and cfg.softb0:
                bb = Op("", "label")
                bb.gap = len(M) - 1
                b0 = bb
            else:
                bb = barrier("c" if r == 1 else 0, len(M) - 1, False)
                bb.meta["need_lgkm"] = list(allreads)
                blk.append(bb)
            blk += stamp(f"Q{r}", True)
            fixed[len(M) - 1] = blk
            if r == 1:
                gap_dmas(cfg.g_r1, len(M))
        for i, a in enumerate(sub_order):
            if r == 0 and i == 4:
                b2 = barrier("a2", len(M) - 1, False)
                b2.meta["units"] = [U["K2"], U["K3"]]
                b2.meta["need_lgkm"] = list(q0)
                U["K2"].vis = U["K3"].vis = b2
                k2 = prek_reads(6, 8) + prek_reads(4, 6)
                allreads += k2
                if cfg.inter:
                    fixed[len(M) - 1] = hs("t0c") + hd(cfg.head_a2) + hs("hA2") + [b2] + hs("a2") + k2[:8]
                    for j, o in enumerate(k2[8:]):
                        pre_ds[len(M) + j] = o
                    gap_dmas(cfg.g_r0b, len(M))
                    for o in vq:
                        o.meta.setdefault("pre", len(M) - 1)
                else:
                    fixed[len(M) - 1] = hs("t0c") + [b2] + hs("a2") + k2[:8] + hd(cfg.head_a2) + hs("hA2") + k2[8:]
                    noflush.add(len(M) - 1)
            st = chain(a >> 2, r, a & 3, preK[a], 1 if (r and split) else None)
            for c in range(8):
                if preK[a][c].f == "a":
                    afree[preK[a][c].lo] = len(M) - 1 if split else st + c
        for o in vq:
            o.meta.setdefault("pre", len(M) - 1)
    if not cfg.softb0:
        b0 = bars[-1]
        b0.meta["units"] = [U["K4"]]
        U["K4"].vis = b0
    spool["bufs"] = list(vS)
    spool["ctr"] = 0

    start_int = {}
    grp_end = {}
    pub = []
    if cfg.softb0:
        pub.append((0, [U["K4"]]))

    def kchains(s, a, kb):
        u = U[f"K{2 * s + (a >> 1)}"]
        state = {"first": True}

        def emit(r):
            st = len(M)
            if state["first"]:
                for c in range(8):
                    dsq.append(dict(kind="K", dst=KF[kb][c], u=u, off=(a & 1) * 8192 + (c >> 2) * 4096 + (c & 3) * 256,
                                    cons=st + c, free=afree.get(KF[kb][c].lo, b0.gap)))
                state["first"] = False
            chain(s, r, a, KF[kb])
            for c in range(8):
                afree[KF[kb][c].lo] = st + c
        return emit

    rord = tuple(int(c) for c in cfg.rord) if cfg.pairs else (0, 1, 2)
    NP = 8 - cfg.defer
    for p in range(NP):
        for q in range(4):
            n = 2 * p + (q >> 1)
            if q % 2 == 0:
                start_int[n] = len(M)
                pub.append((n, [U[f"V{n}"], U[f"K{n + 4}"]]) if n else ("v0", [U["V0"]]))
            order = cfg.first_order if (p == 0 and q == 0) else "cGcGcGG"
            em = kchains(p + 2, q, (q & 1) if cfg.kdouble else 0)
            ci = gi = 0
            for ch in order:
                if ch == "c":
                    em(ci)
                    ci += 1
                else:
                    grp_end[(p, 4 * q + gi)] = group((p,), 4 * q + gi)
                    gi += 1
    n = 2 * NP
    if cfg.defer == 3:
        for q in range(4):
            if q % 2 == 0:
                start_int[n] = len(M)
                pub.append((n, [U[f"K{14 + (q >> 1)}"]]))
                n += 1
            em = kchains(7, q, (q + 1) & 1)
            for r in rord:
                em(r)
    qk_end = len(M) - 1
    steps = tuple(range(NP, 8))
    sz = 8 * len(steps)
    vpool["bufs"] = [192, 192 + sz, 160, 96] if sz == 24 else [192, 208, 224, 240, 160, 176]
    vpool["ctr"] = 0
    for b in range(64, 160, 4):
        afree[b] = qk_end
    fin0 = n
    for t in range(16):
        if t % 8 == 0:
            start_int[n] = len(M)
            pub.append((n, [U[f"V{2 * s + (t >> 3)}"] for s in steps]))
            n += 1
        if cfg.pairs:
            if t % 2 == 0:
                group_pair(steps, t, t + 1, rord, t == 0)
            continue
        grp_end[(7, t)] = group(steps, t, t == 0)
    NM = len(M)

    dsq.sort(key=lambda d: d["cons"])
    def spacing(c):
        if c >= start_int[fin0]:
            return cfg.spf
        return 2.0

    nxt = float(1 << 30)
    for d in reversed(dsq):
        dl = d["cons"] - cfg.lat
        e = max(d["free"], b0.gap + (7 if cfg.softb0 else 1))
        f = min(float(dl) + 0.999, nxt - spacing(d["cons"]))
        if f < e:
            f = min(float(dl), nxt - min(1.0, spacing(d["cons"])))
        if f < e:
            f = float(e)
        d["f"], d["e"], d["dl"] = f, e, dl
        nxt = f
    prev = -10
    late = 0
    cnt = 0
    for d in dsq:
        g = max(int(d["f"]), d["e"], prev)
        if g == prev:
            cnt += 1
            if cnt >= 2 or (g + 1 <= d["dl"] and spacing(d["cons"]) >= 1):
                g += 1
                cnt = 0
        else:
            cnt = 0
        g = min(g, d["cons"] - 2)
        assert g >= d["e"] and g >= prev, (d, g, prev)
        late += g > d["dl"]
        d["gap"] = g
        prev = g

    prevg = b0.gap
    for (name, us) in pub:
        first = min(d["gap"] for d in dsq if d["u"] in us)
        g = max(first - 1, prevg + 1)
        assert g < first, (name, g, first)
        b = barrier(name, g, True)
        if name == 0:
            b.meta["need_lgkm"] = list(allreads)
        b.meta["units"] = us
        for u in us:
            u.vis = b
        prevg = g
    lastcons = {}
    for d in dsq:
        lastcons[d["u"].name] = max(lastcons.get(d["u"].name, -1), d["cons"])

    def release(u):
        if u.name in ("K0", "K1", "K2", "K3", "Q1"):
            return [b.meta["name"] for b in bars].index("c")
        if u.name == "Q2":
            return [b.meta["name"] for b in bars].index(0)
        c = [i for i, b in enumerate(bars) if b.gap >= lastcons[u.name]]
        return min(c) if c else len(bars)

    stg_bi = bars.index(next(b for b in bars if b.meta["name"] == fin0))
    free_at = {s: -1 for s in range(10)}
    for name in ("K0", "K1", "K2", "K3", "K4", "V0", "Q1", "Q2"):
        u = U[name]
        for k in range(u.nslots):
            free_at[u.slot + k] = release(u)
    order = []
    for (name, us) in pub:
        order += [u.name for u in sorted(us, key=lambda u: u.kind) if not u.dmas]
    dmaq = []
    for name in order:
        u = U[name]
        cand = list(free_at)
        if release(u) > stg_bi:
            cand = [s for s in cand if s >= cfg.stg_n]
        slot = min(cand, key=lambda s: (free_at[s], s))
        w = free_at[slot]
        u.slot = slot
        free_at[slot] = release(u)
        e = max(bars[w].gap + 2 if w >= 0 else 1, b0.gap + 2 + cfg.dma_lead)
        ops = u.make_dmas()
        for d in ops:
            d.earliest = e
            dmaq.append(d)
    gap_ds = {}
    for d in dsq:
        gap_ds.setdefault(d["gap"], []).append(d)
    gap_dma = {}
    placed_dma = [b0.gap - 20] * 4
    last = -10
    for d in dmaq:
        u = d.meta["unit"]
        sp = cfg.dma_sp
        if last < start_int[1]:
            sp = cfg.dma_sp_fast
        g = max(d.earliest, last + sp)
        if len(placed_dma) >= cfg.dma_cap:
            g = max(g, placed_dma[-cfg.dma_cap] + (cfg.dma_win if g >= start_int[cfg.early_n] else cfg.dma_win_early))
        g0 = g
        while g in fixed or g in gap_ds:
            g += 1
        if u.vis is not None and g >= u.vis.gap - 1:
            raise SystemExit(f"DMA of {u.name} too late: {g} vs {u.vis.gap}")
        gap_dma[g] = d
        d.gap = g
        last = g
        placed_dma.append(g)
    last_dma = dmaq[-1]
    gap_dma.update(pre_dma)
    for g, o in pre_ds.items():
        o.gap = g
        gap_ds.setdefault(g, []).append({"op": o})
    flight = {u.name: u.vis.gap - u.dmas[-1].gap for u in U.values() if u.vis is not None and u.dmas[-1].gap is not None}
    for b in bars:
        b.meta["need_vm"] = [d for u in b.meta["units"] for d in u.dmas]

    reads = []
    for d in dsq:
        u = d["u"]
        if d["kind"] == "Q":
            c = d["c"]
            off = u.slot * SLOT - 65536 + (c >> 2) * 4096 + (c & 3) * 256
            o = Op(f"ds_read_b128 {d['dst']}, {vQR} offset:{off}", "ds", vQR.names, d["dst"].names)
            o.meta["need_vm"] = u.dmas[(c >> 2) * 4:(c >> 2) * 4 + 4]
            o.meta["hoist_wait"] = True
        else:
            w, off = divmod(u.slot * SLOT + d["off"], 65536)
            if d["kind"] == "K":
                o = Op(f"ds_read_b128 {d['dst']}, {vKR[w]} offset:{off}", "ds", vKR[w].names, d["dst"].names)
            else:
                a = vVR[d["h"]][w]
                o = Op(f"ds_read_b64_tr_b16 {d['dst']}, {a} offset:{off}", "ds", a.names, d["dst"].names)
        o.gap = d["gap"]
        u.reads.append(o)
        d["op"] = o
        reads.append(o)
    for blk in fixed.values():
        for o in blk:
            if "need_vm_unit" in o.meta:
                u, h = o.meta["need_vm_unit"]
                o.meta["need_vm"] = u.dmas[4 * h:4 * h + 4]

    vcc_last = [None]

    def finish_rows(rows, last):
        fin = {}
        for r in rows:
            ops = xlane("v_add_f32", vL[r], vXT[r])
            prev = last[r]
            for o in ops:
                o.deps.append((prev, 1 if "permlane" in o.text else 0))
                prev = o
            rc = Op(f"v_rcp_f32 {vRL[r]}, {vL[r]}", "trans", vL[r].names, vRL[r].names)
            rc.deps.append((prev, 0))
            cm = valu(f"v_cmp_lt_f32 vcc, s{sThr}, {vL[r]}", vL[r].names + sn(sThr), ["svcc"])
            cm.deps.append((prev, 0))
            fl = salu(f"s_or_b64 s[{sFlag}:{sFlag + 1}], s[{sFlag}:{sFlag + 1}], vcc", ["svcc"] + sn(sFlag, 2), sn(sFlag, 2) + ["scc"])
            fl.deps.append((cm, 2))
            fin[r] = (ops, rc, cm, fl)
        out = []
        for k in range(6):
            for r in rows:
                out.append(fin[r][0][k])
        for r in rows:
            if vcc_last[0] is not None:
                fin[r][2].deps.append((vcc_last[0], 0))
            out += [fin[r][1], fin[r][2], fin[r][3]]
            vcc_last[0] = fin[r][3]
        return out, {r: fin[r][1] for r in rows}

    rbq = [Reg("a", 64 + 4 * i, 4) for i in range(8)]
    tmps = [Reg("v", vS[2 * i].lo, 8) for i in range(3)]
    tmp_last = {tb.lo: sbuf_last[tb.lo] + sbuf_last[tb.lo + 4] for tb in tmps}
    tmp_min = {tb.lo: -1 for tb in tmps}
    ctr = {"t": 0, "r": 0}
    rb_last = {}
    stg_last_read = {}
    wr = {}
    stg_after = bars[stg_bi].gap + 1
    sta = {}
    for r in range(3):
        for k in range(2):
            d = vST[r][k]
            o = valu(f"v_add_u32 {d}, {r * 8192 + k * 4096}, {vST0}", vST0.names, d.names)
            o.deps.append((last_dma, 1))
            sta[(r, k)] = o

    def piece(r, s, T, rcp, half, packed):
        rdy = (pair_end[(r, T)] if cfg.pairs else grp_end[(s, 2 * T + 1)]) + cfg.sready
        X, Y = O[r][2 * T], O[r][2 * T + 1]
        src = [X[i] for i in range(4)] + [Y[i] for i in range(4)]
        D = X
        ops = []
        rd = None
        if X.f == "a":
            tb = tmps[ctr["t"] % len(tmps)]
            ctr["t"] += 1
            rd = []
            for i in range(8):
                o = valu(f"v_accvgpr_read_b32 {tb[i]}, {src[i]}", src[i].names, tb[i].names)
                o.earliest = max(rdy, tmp_min[tb.lo])
                o.deps += [(x, 0) for x in tmp_last[tb.lo]]
                rd.append(o)
            ops += rd
            src = [tb[i] for i in range(8)]
            D = tb[0:4]
        mu = []
        if packed:
            for k in range(4):
                pr = Reg("v", src[2 * k].lo, 2)
                rl2 = Reg("v", vRL[r].lo, 2)
                o = valu(f"v_pk_mul_f32 {pr}, {pr}, {rl2} op_sel_hi:[1,0]", names(pr, vRL[r]), pr.names)
                o.earliest = rdy
                o.meta["pk"] = True
                o.deps.append((rcp, 1))
                if rd:
                    o.deps += [(rd[2 * k], 0), (rd[2 * k + 1], 0)]
                mu += [o, o]
            ops += mu[::2]
        else:
            for i in range(8):
                o = valu(f"v_mul_f32 {src[i]}, {src[i]}, {vRL[r]}", names(src[i], vRL[r]), src[i].names)
                o.earliest = rdy
                o.deps.append((rcp, 1))
                if rd:
                    o.deps.append((rd[i], 0))
                mu.append(o)
            ops += mu
        cv = []
        for k in range(4):
            o = valu(f"v_cvt_pk_bf16_f32 {D[k]}, {src[2 * k]}, {src[2 * k + 1]}", names(src[2 * k], src[2 * k + 1]), D[k].names)
            o.deps += [(mu[2 * k], 0), (mu[2 * k + 1], 0)]
            if k:
                o.deps.append((cv[k - 1], 0))
            cv.append(o)
        w = []
        for xy in range(2):
            ad = vSW[xy] if cfg.tgran else vSW[2 * (T & 1) + xy]
            x = Op(f"ds_write_b64 {ad}, {D[2 * xy:2 * xy + 2]} offset:{(1024 if cfg.tgran else 2048) * half}", "ds",
                   D[2 * xy:2 * xy + 2].names + ad.names, [])
            x.deps += [(cv[2 * xy], 0), (cv[2 * xy + 1], 0)]
            x.earliest = stg_after
            x.deps += [(z, 0) for z in stg_last_read.get(half, [])]
            w.append(x)
        if rd:
            tmp_last[tb.lo] = w + [cv[3]]
        wr[(r, T)] = w
        ops += cv + w
        if T % 2 == 1 or cfg.tgran:
            H = T >> 1
            rds, sts = [], []
            for k in range(1 if cfg.tgran else 2):
                qd = rbq[ctr["r"] % len(rbq)]
                ctr["r"] += 1
                o = Op(f"ds_read_b128 {qd}, {vSR} offset:{1024 * half if cfg.tgran else 1024 * k + 2048 * half}", "ds", vSR.names, qd.names)
                o.deps += [(x, 0) for tt in ((T,) if cfg.tgran else (T - 1, T)) for x in wr[(r, tt)]]
                o.deps += [(x, 0) for x in rb_last.get(qd.lo, [])]
                o.earliest = qk_end
                stt = f"buffer_store_dwordx4 {qd}, {vST[r][k]}, s[{sO}:{sO + 3}], 0 offen offset:{64 * T if cfg.tgran else 128 * H}"
                pol = cfg.st if H < cfg.st_from else cfg.st_last
                if pol:
                    stt += " " + pol
                so = Op(stt, "vstore", qd.names + vST[r][k].names + sn(sO, 4), [])
                so.meta["data"] = frozenset(qd.names)
                so.meta["hoist_wait"] = True
                so.deps += [(o, cfg.lat), (sta[(r, k)], 0)]
                rb_last[qd.lo] = [so]
                rds.append(o)
                sts.append(so)
            stg_last_read[half] = rds
            ops += rds + sts
        return ops

    fo, rcp = finish_rows((0, 1, 2), last_add)
    vq += fo + list(sta.values())
    ep = []
    nb = 2 * cfg.stg_n
    seqTr = [(T, r) for T in range(8) for r in rord]
    if cfg.hmajor:
        seqTr = [(2 * H + k, r) for H in range(4) for r in rord for k in range(2)]
    for (T, r) in seqTr:
        if True:
            buf = (3 * T + r) % (2 * nb) if cfg.tgran else (3 * (T >> 1) + r) % nb
            ep += piece(r, 7, T, rcp[r], buf, cfg.pk and T >= cfg.pkfrom and (not cfg.pairs or r == rord[-1]))

    gaps = {g: {"s": [], "v": []} for g in range(-1, NM + 1)}
    for b in bars:
        if b.meta["hoist_wait"]:
            gaps[b.gap]["s"].append(b)
    for g, d in gap_dma.items():
        pre = d.pre
        d.pre = []
        gaps[g - 1]["s"].append(pre[-1])
        if len(pre) > 1:
            gaps[max(g - 2, 0)]["s"].insert(0, pre[0])

    def ready(o, g, strict=False):
        if o.earliest > g:
            return False
        for (d, k) in o.deps:
            if d.gap is None or d.gap + k > g or (strict and d.gap >= g):
                return False
        return True

    queue = list(vq)
    equeue = list(ep)
    guard_at = {}
    for (g, ops) in guards:
        guard_at.setdefault(g, []).extend(ops)
    overflow = 0

    def place(o, g, where="v"):
        o.gap = g
        gaps[g][where].append(o)
        (queue if o in queue else equeue).remove(o)

    def force(o, g):
        nonlocal overflow
        if o.gap is not None:
            return
        for (d, k) in o.deps:
            if d.gap is None:
                force(d, g)
        assert o.earliest <= g, (o, g)
        overflow += 1
        place(o, g)

    W = 120

    def pick(kinds, g, strict=False, pk=False, pred=None):
        for qq in (queue, equeue):
            for o in qq[:W]:
                if o.kind in kinds and bool(o.meta.get("pk")) == pk and ready(o, g, strict) and (pred is None or pred(o)):
                    return o
        return None

    def pk_group(g):
        o = pick(("valu",), g, pk=True)
        if o is None:
            return None
        i = equeue.index(o)
        grp = [x for x in equeue[i:i + 4] if x.meta.get("pk")]
        return grp if all(ready(x, g) for x in grp) else None

    since = {}
    xacc = hacc = 0.0
    for g in range(0, NM):
        cap = 2
        mem = False
        nds = len(gap_ds.get(g, []))
        if nds:
            for d in gap_ds[g]:
                gaps[g]["v"].append(d["op"])
            cap = 1 if nds == 1 else 0
            mem = True
        if g in gap_dma:
            gaps[g]["v"].append(gap_dma[g])
            cap = 0
            mem = True
        light = cfg.dma_light and (g + 1) in gap_dma and g >= cfg.light_from and g > b0.gap
        if light:
            cap = min(cap, 0 if mem else 1)
        extra = 0
        if g <= b0.gap:
            extra = cfg.xpre
        if b0.gap < g < start_int[0] + cfg.xh_len and g not in gap_dma:
            hacc += cfg.xh
            extra = int(hacc)
            hacc -= extra
        if g >= start_int[fin0] - cfg.xlead and not light and g not in gap_dma:
            nst = sum(1 for o in ep if o.kind == "vstore" and o.gap is not None)
            xacc += cfg.xf_first if (nst < cfg.xf_nst and g >= start_int[fin0]) else cfg.xf
            extra = int(xacc)
            xacc -= extra
        o = pick(("salu",), g)
        if o is not None:
            place(o, g, "s")
        ex = pick(("trans",), g)
        if ex is not None:
            since.setdefault(id(ex), g)
        heavy = False
        pg = pk_group(g)
        if pg:
            since.setdefault(id(pg[0]), g)
        age = g - since[id(pg[0])] if pg else -1
        so = pick(("vstore",), g, True) if g not in gap_dma and nds <= 1 else None
        if so is not None:
            place(so, g)
            cap = 4 - nds
            extra = 0
            mem = True
            heavy = True
        elif not (mem or ex):
            mo = pick(("ds",), g, True)
            if mo is not None:
                place(mo, g)
                cap = 1
                mem = True
                if mo.text.startswith("ds_write"):
                    extra = 0
                    if pg and age >= cfg.pk_age:
                        cap = 2
                        heavy = True
        if not heavy and pg and age >= cfg.pk_age2 and g not in gap_dma and not light:
            cap = 5 - len(gaps[g]["v"])
            extra = 0
            heavy = True
        if ex is not None and not light and (not mem or heavy or (g <= b0.gap and cfg.xpre) or (g not in gap_dma and g - since[id(ex)] >= cfg.exp_age)):
            place(ex, g)
            cap = cap - 2 if heavy else 0
        cap += extra
        while cap > 0:
            o = pick(("valu",), g)
            if o is None:
                break
            place(o, g)
            cap -= 1
        if heavy:
            pg = pk_group(g)
            if pg:
                for x in pg:
                    place(x, g)
        for o in guard_at.get(g, []):
            force(o, g)
        if g in fixed and cfg.preflush and g not in noflush:
            for o in list(queue):
                if o.meta.get("pre") is not None and o.meta["pre"] <= g:
                    place(o, g)
    tail = []
    clock = NM
    k = 0
    rest = queue + equeue
    while rest:
        o = next((o for o in rest if o.kind == "vstore" and ready(o, clock, True)), None)
        if o is None:
            o = next((o for o in rest if o.kind == "ds" and ready(o, clock)), None)
        if o is None:
            o = next((o for o in rest if o.kind not in ("ds", "vstore") and ready(o, clock)), None)
        if o is None:
            clock += 1
            continue
        o.gap = clock
        rest.remove(o)
        tail.append(o)
        k += 1
        if k % 3 == 0:
            clock += 1

    prog = list(pro)
    for o in fixed[-1]:
        o.gap = -1
    prog += fixed[-1]
    inv_start = {v: k for k, v in start_int.items()}
    pos_int = {}
    for g in range(NM):
        M[g].gap = g
        prog.append(M[g])
        if g + 1 in inv_start and (inv_start[g + 1] % cfg.stamp_every == 0 or (not cfg.hstamps and (inv_start[g + 1] < 3 or inv_start[g + 1] >= 2 * NP))):
            prog += stamp(f"i{inv_start[g + 1]}")
            if inv_start[g + 1] in (0, fin0):
                prog += stamp(f"t{inv_start[g + 1]}", True)
        prog += gaps[g]["s"]
        prog += gaps[g]["v"]
        if g in fixed:
            for o in fixed[g]:
                o.gap = g
            prog += fixed[g]
    prog += stamp("mfmaend")
    prog += stamp("mfmaendR", True)
    prog += tail
    prog += stamp("stissued", True)
    if cfg.stamps:
        prog.append(Op("s_waitcnt vmcnt(0)", "wait", meta={"fixed": True}))
        prog += stamp("drained", True)
    prog += stamp.finish()
    prog.append(Op(f"s_cmp_lg_u64 s[{sFlag}:{sFlag + 1}], 0", "raw"))
    prog.append(Op("s_cbranch_scc1 L_fallback", "raw"))

    for o in prog:
        if o.kind == "mfma":
            o.meta["cover"] = [x for x in reads if x.gap <= o.gap - 1 - cfg.age and x.gap > o.gap - 40]
    prog = insert_waits_cover(prog)
    prog, moved = spread_scalars(prog)
    prog, pads = fix_hazards(prog, verbose=cfg.verbose)
    verify_lds(prog, U, None, cfg)
    idx = {id(o): i for i, o in enumerate(prog)}
    seg = lambda a, b: estimate_cycles(prog[idx[id(M[a])]:idx[id(M[b])] + 1])
    ints = sorted(start_int.items())
    est = {n: seg(g, (ints[i + 1][1] if i + 1 < len(ints) else NM) - 1) for i, (n, g) in enumerate(ints)}
    info = dict(NM=NM, late=late, overflow=overflow, pads=pads, est_main=seg(start_int[0], NM - 1),
                ideal=16 * (NM - start_int[0]), est_tail=estimate_cycles(prog[idx[id(M[-1])] + 1:]), n=len(prog), tail=len(tail),
                waits=sum(1 for o in prog if o.kind == "wait"), est=list(est.values()),
                pre2=seg(b0.gap + 1, start_int[0] - 1), total=seg(b0.gap + 1, NM - 1) + estimate_cycles(prog[idx[id(M[-1])] + 1:]))
    if cfg.verbose:
        print("flight", flight)
        print("slots", {u.name: u.slot for u in U.values()})
        print("bars", [(b.meta["name"], b.gap) for b in bars])
        print("ints", start_int, "last dma", last_dma.gap, "stores", [o.gap for o in ep if o.kind == "vstore"])
    cfg.stamp_names = stamp.list
    return prog, info


def insert_waits_cover(prog):
    pend = set()
    for o in prog:
        if o.kind == "ds":
            pend |= set(o.writes)
        if o.kind == "mfma" and (o.reads & pend):
            cov = o.meta.get("cover", [])
            o.meta["need_lgkm"] = cov
            for x in cov:
                pend -= set(x.writes)
            pend -= set(o.reads)
    return insert_waits(prog)


def verify_scalars(prog):
    last = {}
    for o in prog:
        if o.kind == "dma":
            for e in o.meta["expect"]:
                for r in e.writes:
                    if r != "scc":
                        assert last.get(r) is e, ("scalar operand clobbered", o.text, e.text)
            for r in o.reads:
                if r[0] == "v":
                    assert last[r].kind == "valu" and last[r].gap is None, ("DMA address clobbered", o.text, last[r].text)
        for r in o.writes:
            last[r] = o


def verify_dataflow(prog):
    pos = {id(o): i for i, o in enumerate(prog)}
    for o in prog:
        for (d, k) in o.deps:
            assert pos[id(d)] < pos[id(o)], ("order", d.text, o.text)


def verify_lds(prog, U, stg_bar, cfg):
    verify_scalars(prog)
    verify_dataflow(prog)
    pos = {id(o): i for i, o in enumerate(prog)}
    bars = [o for o in prog if o.kind == "barrier"]
    occ = {}
    for u in U.values():
        for k in range(u.nslots):
            occ.setdefault(u.slot + k, []).append(u)
        if u.kind != "Q":
            for rd in u.reads:
                b = u.vis
                assert pos[id(b)] < pos[id(rd)], ("read before barrier", u.name)
                for d in u.dmas:
                    assert d.meta["vm_idx"] < b.meta["vm_done_at"], ("dma not waited", u.name)
    for s, us in occ.items():
        us.sort(key=lambda u: pos[id(u.dmas[0])])
        for a, b in zip(us, us[1:]):
            first = min(pos[id(d)] for d in b.dmas)
            ok = any(pos[id(br)] < first and all(rd.meta["lg_idx"] < br.meta["lg_done_at"] for rd in a.reads) for br in bars)
            assert ok, ("slot WAR", s, a.name, b.name)
    writes = [o for o in prog if o.kind == "ds" and o.text.startswith("ds_write")]
    firstw = min(pos[id(o)] for o in writes)
    lo, hi = cfg.stg_base, cfg.stg_base + 4 * cfg.stg_wave
    for s, us in occ.items():
        if s * SLOT < hi and (s + 1) * SLOT > lo:
            for u in us:
                ok = any(pos[id(br)] < firstw and all(rd.meta["lg_idx"] < br.meta["lg_done_at"] for rd in u.reads) for br in bars)
                assert ok, ("staging WAR", s, u.name)


def fallback(cfg):
    L = []
    A = L.append
    t = Reg("v", 104, 12)
    KFf = KF[0]
    VFf = [Reg("a", 192, 4), Reg("a", 200, 4)]
    A("L_fallback:")
    A("s_waitcnt vmcnt(0) lgkmcnt(0)")
    A("s_barrier")
    A(f"s_mul_i32 s{sT3}, s{sW}, 40960")
    A(f"v_and_b32 {t[0]}, 63, v0")
    A(f"v_bfe_u32 {t[2]}, {t[0]}, 2, 2")
    A(f"v_lshlrev_b32 {t[2]}, 9, {t[2]}")
    A(f"v_lshrrev_b32 {t[5]}, 4, {t[0]}")
    A(f"v_lshl_add_u32 {t[2]}, {t[5]}, 6, {t[2]}")
    A(f"v_and_b32 {t[3]}, 3, {t[0]}")
    fk = [Reg("v", 80 + i, 1) for i in range(4)]
    fv = [Reg("v", 84 + i, 1) for i in range(4)]
    for rg in range(4):
        A(f"v_xor_b32 {t[4]}, {FR[rg]}, {t[3]}")
        A(f"v_lshl_add_u32 {fk[rg]}, {t[4]}, 4, {t[2]}")
        A(f"v_add_u32 {fk[rg]}, {rg * 2048}, {fk[rg]}")
        A(f"v_xor_b32 {t[4]}, {2 * (rg & 1)}, {t[3]}")
        A(f"v_lshl_add_u32 {fv[rg]}, {t[4]}, 4, {t[2]}")
        A(f"v_add_u32 {fv[rg]}, {rg * 2048}, {fv[rg]}")
    rk, rv0, rv1 = Reg("v", 88, 1), Reg("v", 89, 1), Reg("v", 90, 1)
    so = [Reg("v", 91 + r, 1) for r in range(3)]
    tmp8 = Reg("v", 96, 8)
    A(f"v_add_u32 {rk}, s{sT3}, {vKR[0]}")
    A(f"v_add_u32 {rv0}, s{sT3}, {vVR[0][0]}")
    A(f"v_add_u32 {rv1}, s{sT3}, {vVR[1][0]}")
    A(f"v_and_b32 {t[6]}, 15, {t[0]}")
    A(f"s_mul_i32 s{sT1}, s{sW}, 48")
    A(f"v_add_u32 {t[6]}, s{sT1}, {t[6]}")
    A(f"v_lshlrev_b32 {t[6]}, 9, {t[6]}")
    A(f"v_and_b32 {t[7]}, 1, {t[5]}")
    A(f"v_lshl_add_u32 {t[6]}, {t[7]}, 5, {t[6]}")
    A(f"v_lshrrev_b32 {t[7]}, 1, {t[5]}")
    A(f"v_lshl_add_u32 {so[0]}, {t[7]}, 4, {t[6]}")
    A(f"v_add_u32 {so[1]}, 8192, {so[0]}")
    A(f"v_add_u32 {so[2]}, 16384, {so[0]}")
    A(f"s_mul_i32 s{sT2}, s{sW}, {48 * 512}")
    for r in range(3):
        for rg in range(4):
            A(f"v_add_u32 {t[8]}, s{sT2}, {fk[rg]}")
            A(f"v_add_u32 {t[8]}, {r * 8192}, {t[8]}")
            for half in range(2):
                A(f"s_add_u32 m0, s{sT3}, {half * 4096 + rg * 1024 - half * 256}")
                A("s_nop 0")
                A(f"buffer_load_dwordx4 {t[8]}, s[{sQ}:{sQ + 3}], 0 offen offset:{half * 256} lds")
        A("s_waitcnt vmcnt(0)")
        for c in range(8):
            A(f"ds_read_b128 {Q[r][c]}, {rk} offset:{(c >> 2) * 4096 + (c & 3) * 256}")
        A("s_waitcnt lgkmcnt(0)")
    Pf = [vP[0][r][0] for r in range(3)]

    def load_k():
        for a in range(2):
            A(f"s_add_u32 s{sT1}, s{sT0}, {a * 8192}")
            for half in range(2):
                for rg in range(4):
                    A(f"s_add_u32 m0, s{sT3}, {a * 8192 + half * 4096 + rg * 1024 - half * 256}")
                    A("s_nop 0")
                    A(f"buffer_load_dwordx4 {fk[rg]}, s[{sK}:{sK + 3}], s{sT1} offen offset:{half * 256} lds")

    def load_v():
        for dh in range(2):
            for a in range(2):
                A(f"s_add_u32 s{sT1}, s{sT0}, {a * 8192 + dh * 256}")
                for rg in range(4):
                    A(f"s_add_u32 m0, s{sT3}, {16384 + dh * 8192 + a * 4096 + rg * 1024}")
                    A("s_nop 0")
                    A(f"buffer_load_dwordx4 {fv[rg]}, s[{sV}:{sV + 3}], s{sT1} offen lds")

    def qk(a):
        for c in range(8):
            A(f"ds_read_b128 {KFf[c]}, {rk} offset:{a * 8192 + (c >> 2) * 4096 + (c & 3) * 256}")
        A("s_waitcnt lgkmcnt(0)")
        for r in range(3):
            for c in range(8):
                A(f"v_mfma_f32_16x16x32_bf16 {vS[r]}, {KFf[c]}, {Q[r][c]}, {vS[r] if c else 0}")
        A("s_nop 15")

    def xl(op, x, tmp):
        for o in xlane(op, x, tmp):
            A("s_nop 1")
            A(o.text)

    for r in range(3):
        A(f"v_mov_b32 {vNM[r]}, 0xff800000")
    A(f"s_mov_b32 s{sT0}, 0")
    A("L_fb1:")
    load_k()
    A("s_waitcnt vmcnt(0)")
    for a in range(2):
        qk(a)
        for r in range(3):
            A(f"v_max3_f32 {vNM[r]}, {vNM[r]}, {vS[r][0]}, {vS[r][1]}")
            A(f"v_max3_f32 {vNM[r]}, {vNM[r]}, {vS[r][2]}, {vS[r][3]}")
    A(f"s_add_u32 s{sT0}, s{sT0}, 16384")
    A(f"s_cmp_lt_u32 s{sT0}, 262144")
    A("s_cbranch_scc1 L_fb1")
    for r in range(3):
        xl("v_max_f32", vNM[r], t[4])
        A(f"v_mul_f32 {vNM[r]}, {f2u(-C_SCALE):#x}, {vNM[r]}")
        A(f"v_mov_b32 {vL[r]}, 0")
    for r in range(3):
        for tt in range(16):
            for i in range(4):
                x = O[r][tt][i]
                A(f"v_mov_b32 {x}, 0" if x.f == "v" else f"v_accvgpr_write_b32 {x}, 0")
    A(f"s_mov_b32 s{sT0}, 0")
    A("L_fb2:")
    load_k()
    load_v()
    A("s_waitcnt vmcnt(0)")
    for a in range(2):
        qk(a)
        for r in range(3):
            S = vS[r]
            for i in range(4):
                A(f"v_fma_f32 {S[i]}, {S[i]}, s{sC}, {vNM[r]}")
            for i in range(4):
                A(f"v_exp_f32 {S[i]}, {S[i]}")
            A("s_nop 1")
            for i in range(4):
                A(f"v_add_f32 {vL[r]}, {vL[r]}, {S[i]}")
            for k in range(2):
                A(f"v_cvt_pk_bf16_f32 {Pf[r][2 * a + k]}, {S[2 * k]}, {S[2 * k + 1]}")
    A("s_nop 3")
    for tt in range(16):
        for s in range(2):
            base = rv0 if (tt & 1) == 0 else rv1
            off = 16384 + (tt >> 3) * 8192 + s * 4096 + ((tt & 7) >> 1) * 256
            A(f"ds_read_b64_tr_b16 {VFf[tt & 1][2 * s:2 * s + 2]}, {base} offset:{off}")
        A("s_waitcnt lgkmcnt(0)")
        for r in range(3):
            A(f"v_mfma_f32_16x16x32_bf16 {O[r][tt]}, {VFf[tt & 1]}, {Pf[r]}, {O[r][tt]}")
    A("s_nop 15")
    A(f"s_add_u32 s{sT0}, s{sT0}, 16384")
    A(f"s_cmp_lt_u32 s{sT0}, 262144")
    A("s_cbranch_scc1 L_fb2")
    for r in range(3):
        xl("v_add_f32", vL[r], t[4])
        A(f"v_rcp_f32 {vRL[r]}, {vL[r]}")
    A("s_nop 3")
    for T in range(8):
        for r in range(3):
            X, Y = O[r][2 * T], O[r][2 * T + 1]
            src = [X[i] for i in range(4)] + [Y[i] for i in range(4)]
            if X.f == "a":
                for i in range(8):
                    A(f"v_accvgpr_read_b32 {tmp8[i]}, {src[i]}")
                src = [tmp8[i] for i in range(8)]
            for i in range(8):
                A(f"v_mul_f32 {src[i]}, {src[i]}, {vRL[r]}")
            D = vS[(3 * T + r) % NSB]
            for k in range(4):
                A(f"v_cvt_pk_bf16_f32 {D[k]}, {src[2 * k]}, {src[2 * k + 1]}")
            A("s_nop 1")
            A(f"v_permlane16_swap_b32 {D[0]}, {D[2]}")
            A(f"v_permlane16_swap_b32 {D[1]}, {D[3]}")
            A(f"buffer_store_dwordx4 {D}, {so[r]}, s[{sO}:{sO + 3}], 0 offen offset:{64 * T}")
    A("s_waitcnt vmcnt(0)")
    return L


HEADER = """; GQA attention forward, B=8 Hq=16 Hkv=8 Sq=368 Sk=512 D=256, bf16 (emitted by my own generator script)
; and a wave with a sum above 2^64 recomputes its rows with the true row maximum (L_fallback).
; @launch grid=(256,1,1) block=(256,1,1) lds=163840
.amdgcn_target "amdgcn-amd-amdhsa--gfx950"
.text
.globl {k}
.p2align 8
.type {k},@function
{k}:
"""

FOOTER = """L_end:
    s_endpgm
.section .rodata,"a"
.p2align 6
.amdhsa_kernel {k}
  .amdhsa_next_free_vgpr 512
  .amdhsa_next_free_sgpr 102
  .amdhsa_accum_offset 256
  .amdhsa_group_segment_fixed_size 0
  .amdhsa_kernarg_size 48
  .amdhsa_user_sgpr_count 2
  .amdhsa_user_sgpr_kernarg_segment_ptr 1
  .amdhsa_system_sgpr_workgroup_id_x 1
.end_amdhsa_kernel
"""


def render(cfg, prog):
    s = HEADER.format(k=KNAME)
    if cfg.align12:
        s = s.replace(".p2align 8\n", ".p2align 12\n.p2align 8\n", 1)
    if cfg.stamps and cfg.spin == -1:
        s = "; stamps: " + " ".join(n + ("*" if r else "") for n, r in cfg.stamp_names) + "\n" + s
    for o in prog:
        s += (o.text if o.kind == "label" else "    " + o.text) + "\n"
    s += "    s_endpgm\nL_mainend:\n"
    for l in fallback(cfg):
        s += (l if l.endswith(":") else "    " + l) + "\n"
    s += FOOTER.format(k=KNAME)
    return s


def addresses(text, n):
    import subprocess, re, tempfile, os
    d = tempfile.mkdtemp()
    open(d + "/x.s", "w").write(text)
    subprocess.run(["clang", "-x", "assembler", "-target", "amdgcn-amd-amdhsa", "-mcpu=gfx950", "-c",
                    d + "/x.s", "-o", d + "/x.o"], check=True)
    out = subprocess.run(["llvm-objdump", "-d", "--mcpu=gfx950", d + "/x.o"], capture_output=True, text=True).stdout
    return [int(m.group(1), 16) for m in re.finditer(r"// ([0-9A-F]+):", out)][:n]


def add_walk(cfg, prog):
    iw = next(i for i, o in enumerate(prog) if o.text == "WALK")
    head, body = prog[:iw], prog[iw + 1:]
    lab = lambda t: Op(t, "label")
    raw = lambda t: Op(t, "raw")
    stubs = []
    for it in range(20):
        b2 = []
        for i, o in enumerate(body):
            if i in stubs:
                k = stubs.index(i)
                b2.append(lab(f"L_pg{k}:"))
                b2.append(raw(f"s_cbranch_execz L_wr{k}"))
            b2.append(o)
        npg = len(stubs)
        walk = [raw("s_mov_b64 exec, 0")]
        for w in range(4):
            if w < npg:
                walk += [raw(f"s_cmp_eq_u32 s{sW}, {w}"), raw(f"s_cbranch_scc1 L_pg{w}")]
        walk.append(raw("s_branch L_wdone"))
        for k in range(npg):
            walk.append(lab(f"L_wr{k}:"))
            walk.append(raw(f"s_branch L_pg{k + 4}" if k + 4 < npg else "s_branch L_wdone"))
        walk += [lab("L_wdone:"), raw("s_mov_b64 exec, -1")]
        full = head + walk + b2
        ins = [o for o in full if o.kind != "label"]
        addr = addresses(render(cfg, full), len(ins))
        amap = {id(o): a + cfg.base_off for o, a in zip(ins, addr)}
        want = []
        prev = amap[id(body[0])] // 4096
        for i, o in enumerate(body):
            if o.kind == "label":
                continue
            pg = amap[id(o)] // 4096
            if pg != prev:
                j = i
                for jj in range(i, min(i + cfg.walk_win, len(body))):
                    if body[jj - 1].kind == "mfma" and amap[id(body[jj - 1])] // 4096 == pg and body[jj].kind not in ("salu", "wait", "barrier"):
                        j = jj
                        break
                want.append(j)
                prev = pg
        if want == stubs:
            return full
        stubs = want
    return full


def emit(cfg):
    prog, info = build(cfg)
    if cfg.x_nobar:
        prog = [o for o in prog if not (o.kind == "barrier" and o.meta.get("hoist_wait"))]
    if cfg.x_nodma:
        prog = [o for o in prog if not (o.kind == "dma" and o.gap is not None and o.gap > 130)]
    if cfg.x_nowait:
        prog = [o for o in prog if not (o.kind == "wait" and "lgkm" in o.text and not o.meta.get("fixed"))]
    if cfg.walk:
        prog = add_walk(cfg, prog)
    return render(cfg, prog), info


Cfg.walk = True
Cfg.walk_win = 8
Cfg.base_off = 0x300
Cfg.spin_name = ""
Cfg.stamp_every = 1
Cfg.pkfrom = 7
Cfg.pk_age = 2
Cfg.pk_age2 = 4
Cfg.dma_light = True
Cfg.defer = 3
Cfg.softb0 = True
Cfg.padzero = False
Cfg.dma_win_early = 96
Cfg.early_n = 2
Cfg.light_from = 0
Cfg.xh = 1.0
Cfg.xh_len = 24
Cfg.first_order = "cccGGGG"
Cfg.xf_first = 0.5
Cfg.xf_nst = 2
Cfg.pairs = True
Cfg.touch = ""
Cfg.dfhead = 2
Cfg.head_a3 = "Q2b"
Cfg.inter = True
Cfg.xpre = 1
Cfg.g_r0a = "Q1b@10:10"
Cfg.g_r0b = ""
Cfg.g_r1 = ""
Cfg.hstamps = False
Cfg.hmajor = True
Cfg.rord = "021"
Cfg.tgran = False
Cfg.x_nobar = False
Cfg.x_nodma = False
Cfg.x_nowait = False
Cfg.align12 = True
Cfg.ldv = "="
Cfg.st_from = 9
Cfg.st_last = ""
Cfg.kdouble = False
Cfg.spf = 1.5
Cfg.xf = 0.0
Cfg.xlead = 48
Cfg.dma_lead = 0
Cfg.head = "Q0a,K0,Q0b,K1,pf,K2,|,Q1a,K3"
Cfg.head_a = ""
Cfg.head_a2 = "Q2a"
Cfg.head_c = "K4"
Cfg.head_0 = "V0"
Cfg.half_r = ""
Cfg.dma_cap = 12
Cfg.dma_win = 96
Cfg.join_order = "cGcGGGc"
Cfg.p7_order = "cGGGG"
Cfg.stg_bar = 14
Cfg.stg_n = 2
Cfg.sp7 = 1.3333
Cfg.sp2 = 1.3333
Cfg.x15 = 3
Cfg.x15_lead = 16
Cfg.x8 = 6
Cfg.x9 = 2
Cfg.xmem = 2
Cfg.exp_age = 3
Cfg.q2_before = "K5"
Cfg.dma_sp_fast = 3
Cfg.tail_extra = 3
Cfg.p7_extra = 0
Cfg.stag2 = ""
Cfg.stag_sh = 6
Cfg.stagger = ""
Cfg.cls_shift = 6
Cfg.cls_mask = 0

if __name__ == "__main__":
    ap = argparse.ArgumentParser()
    ap.add_argument("-o", default="standalone__gqa_softmax__near_ridge.s")
    ap.add_argument("-v", action="store_true")
    ap.add_argument("opts", nargs="*")
    a = ap.parse_args()
    cfg = Cfg()
    cfg.verbose = a.v
    for kv in a.opts:
        k, v = kv.split("=", 1)
        if k == "spin":
            cfg.spin, cfg.spin_name, cfg.stamps = 1, v, True
            continue
        old = getattr(cfg, k)
        if isinstance(old, bool):
            v = v in ("1", "true", "True")
        elif isinstance(old, int):
            v = int(v)
        elif isinstance(old, float):
            v = float(v)
        setattr(cfg, k, v.replace("+", " ") if isinstance(v, str) else v)
    s, info = emit(cfg)
    open(a.o, "w").write(s)
    print(info, len(s))
```

```python
import sys, math, argparse, struct
sys.path.insert(0, __file__.rsplit("/", 1)[0])
from ir import *

KNAME = "standalone__gqa_softmax__near_ridge_kernel"
C_SCALE = math.log2(math.e) / 16.0


def f2u(x):
    return struct.unpack("<I", struct.pack("<f", x))[0]


class Cfg:
    ldq = "nt"
    ldkv = "nt"
    ldkv0 = ""
    st = "nt"
    lat = 6
    age = 5
    sready = 4
    stamps = False
    dbg = False
    spin = -1
    spinwg = -1
    codepf = True
    force_fallback = False
    dma_sp = 6
    preflush = True
    y = 2
    pk = True
    verbose = False


sQ, sK, sV, sO = 12, 16, 20, 24
sW1K = 28
sC = 29
sKoff = 30
sVoff = 31
sT0, sT1, sT2, sT3 = 32, 33, 34, 35
sW = 36
sThr = 37
sW8K = 38
sCls = 39
sFlag = 40
sDBG = 44
vKR = [Reg("v", 1, 1), Reg("v", 2, 1), Reg("v", 3, 1)]
vVR = [[Reg("v", 4 + 3 * h + w, 1) for w in range(3)] for h in range(2)]
vDK = [Reg("v", 10, 1), Reg("v", 11, 1)]
vDV = [Reg("v", 12 + a, 1) for a in range(4)]
vST = [[Reg("v", 10 + 2 * r + k, 1) for k in range(2)] for r in range(3)]
vL = [Reg("v", 16 + r, 1) for r in range(3)]
vST0 = Reg("v", 19, 1)
vNM = [Reg("v", 20 + 2 * r, 1) for r in range(3)]
vRL = vNM
vSR = Reg("v", 21, 1)
vSW = [Reg("v", 23, 1), Reg("v", 25, 1), Reg("v", 26, 1), Reg("v", 27, 1)]
vXT = [Reg("v", 28 + r, 1) for r in range(3)]
vQR = Reg("v", 31, 1)
NSB = 6
vS = [Reg("v", 32 + 4 * i, 4) for i in range(NSB)]
vP = [[[Reg("v", 56 + 24 * b + 8 * r + 4 * kc, 4) for kc in range(2)] for r in range(3)] for b in range(3)]
vT = Reg("v", 32, 12)
vX = Reg("v", 44, 2)
O = [[Reg("v", 128 + 4 * t, 4) for t in range(16)],
     [Reg("v", 192 + 4 * t, 4) for t in range(16)],
     [Reg("a", 4 * t, 4) for t in range(16)]]
preK = [[Reg("v", 128 + 32 * a + 4 * c, 4) for c in range(8)] for a in range(4)] + \
       [[Reg("a", base + 4 * c, 4) for c in range(8)] for base in (0, 32, 192, 224)]
Q = [[Reg("a", 64 + 32 * r + 4 * c, 4) for c in range(8)] for r in range(3)]
KF = [[Reg("a", 160 + 4 * c, 4) for c in range(8)], [Reg("a", 224 + 4 * c, 4) for c in range(8)]]
VFB = [192 + 8 * b for b in range(4)]

SLOT = 16384
STG = 528
FR = (0, 2, 3, 1)


def sn(i, n=1):
    return R("s", i, n)


def valu(text, reads=(), writes=(), tag=""):
    return Op(text, "valu", reads, writes, tag)


def salu(text, reads=(), writes=()):
    return Op(text, "salu", reads, writes)


def names(*regs):
    out = []
    for r in regs:
        out += r.names if isinstance(r, Reg) else [r]
    return out


def mfma(D, A, B, C=None):
    c = str(C) if C is not None else "0"
    op = Op(f"v_mfma_f32_16x16x32_bf16 {D}, {A}, {B}, {c}", "mfma",
            names(A, B) + (C.names if C is not None else []), D.names)
    op.meta["srcab"] = frozenset(names(A, B))
    op.meta["srcc"] = frozenset(C.names) if C is not None else frozenset()
    return op


def dma(vaddr, srd, soff, imm, pol):
    so = f"s{soff}" if soff is not None else "0"
    t = f"buffer_load_dwordx4 {vaddr}, s[{srd}:{srd + 3}], {so} offen"
    if imm:
        t += f" offset:{imm}"
    if pol:
        t += " " + pol
    t += " lds"
    return Op(t, "dma", vaddr.names + sn(srd, 4) + (sn(soff) if soff is not None else []) + ["m0"], [])


def set_m0(const, base=sW1K):
    return salu(f"s_add_u32 m0, s{base}, {const}", sn(base), ["m0", "scc"])


class Unit:
    def __init__(self, kind, n, cfg):
        self.kind, self.n, self.cfg = kind, n, cfg
        self.slot = None
        self.nslots = 2 if kind == "Q" else 1
        self.dmas = []
        self.reads = []
        self.vis = None
        self.name = f"{kind}{n}"

    def make_dmas(self, vq=None):
        cfg = self.cfg
        ops = []
        base = self.slot * SLOT
        src = self.n % 16
        pol = cfg.ldkv if self.kind == "K" or cfg.ldv == "=" else cfg.ldv
        if self.kind == "K":
            so = salu(f"s_mov_b32 s{sKoff}, {src * 16384}", [], sn(sKoff))
            for a in range(2):
                for half in range(2):
                    d = dma(vDK[a], sK, sKoff, half * 256, pol)
                    d.pre = [set_m0(base + a * 8192 + half * 4096 - half * 256)]
                    ops.append(d)
            ops[0].pre.insert(0, so)
        elif self.kind == "V":
            j, h = divmod(src, 2)
            so = salu(f"s_mov_b32 s{sVoff}, {j * 32768 + h * 256}", [], sn(sVoff))
            for a in range(4):
                d = dma(vDV[a], sV, sVoff, 0, pol)
                d.pre = [set_m0(base + a * 4096)]
                ops.append(d)
            ops[0].pre.insert(0, so)
        else:
            for half in range(2):
                for rg in range(4):
                    d = dma(vq[rg], sQ, None, half * 256, cfg.ldq)
                    d.pre = [set_m0(base + half * 4096 + rg * 1024 - half * 256, sW8K)]
                    ops.append(d)
        for d in ops:
            d.meta["unit"] = self
            d.meta["expect"] = [d.pre[-1]] + ([ops[0].pre[0]] if self.kind != "Q" else [])
        self.dmas = ops
        return ops


def flat_dmas(ops):
    out = []
    for d in ops:
        out += d.pre
        out.append(salu("s_nop 0"))
        out.append(d)
        d.pre = []
    return out


def xlane(op, x, tmp):
    o = []
    o.append(valu(f"v_mov_b32 {tmp}, {x}", x.names, tmp.names))
    o.append(valu(f"v_permlane32_swap_b32 {x}, {tmp}", names(x, tmp), names(x, tmp)))
    o.append(valu(f"{op} {x}, {x}, {tmp}", names(x, tmp), x.names))
    o.append(valu(f"v_mov_b32 {tmp}, {x}", x.names, tmp.names))
    o.append(valu(f"v_permlane16_swap_b32 {x}, {tmp}", names(x, tmp), names(x, tmp)))
    o.append(valu(f"{op} {x}, {x}, {tmp}", names(x, tmp), x.names))
    return o


class Stamps:
    def __init__(self, cfg):
        self.cfg = cfg
        self.list = []

    def __call__(self, name, real=False):
        cfg = self.cfg
        if not cfg.stamps:
            return []
        if cfg.spin != -1:
            if name != cfg.spin_name:
                return []
            return [Op("s_memrealtime s[48:49]", "salu")]
        k = len(self.list)
        assert 48 + 2 * k + 1 <= 101, "too many stamps"
        self.list.append((name, real))
        return [Op(f"{'s_memrealtime' if real else 's_memtime'} s[{48 + 2 * k}:{49 + 2 * k}]", "salu")]

    def finish(self):
        cfg = self.cfg
        o = []
        raw = lambda t: o.append(Op(t, "raw"))
        if not cfg.stamps:
            return o
        raw("s_waitcnt lgkmcnt(0)")
        if cfg.spin != -1:
            if cfg.spinwg >= 0:
                raw(f"s_cmp_lg_u32 s2, {cfg.spinwg}")
                raw("s_cbranch_scc1 L_end")
            o.append(Op("L_spin:", "label"))
            raw("s_memrealtime s[50:51]")
            raw("s_waitcnt lgkmcnt(0)")
            raw("s_sub_u32 s50, s50, s48")
            raw("s_cmp_lt_u32 s50, 5000")
            raw("s_cbranch_scc1 L_spin")
            return o
        raw("v_mov_b32 v40, 0")
        for k in range(len(self.list)):
            raw(f"v_writelane_b32 v40, s{48 + 2 * k}, {k}")
        raw(f"s_load_dwordx2 s[{sDBG}:{sDBG + 1}], s[0:1], 40")
        raw(f"s_mov_b32 s{sDBG + 2}, 0x1000000")
        raw(f"s_mov_b32 s{sDBG + 3}, 0x00020000")
        raw("s_lshl_b32 s48, s2, 8")
        raw("v_add_u32 v41, s48, v0")
        raw("v_lshlrev_b32 v41, 2, v41")
        raw("s_waitcnt lgkmcnt(0)")
        raw(f"buffer_store_dword v40, v41, s[{sDBG}:{sDBG + 3}], 0 offen")
        return o


def prologue(cfg, U, stamp):
    P = []
    A = P.append
    raw = lambda t: A(Op(t, "raw"))
    raw("s_cmp_ge_u32 s2, 256")
    raw("s_cbranch_scc1 L_end")
    raw("s_load_dwordx4 s[4:7], s[0:1], 0")
    raw("s_load_dwordx4 s[8:11], s[0:1], 16")
    P += stamp("start", True)
    t = vT
    lane, wv, common, cpos, f_w = t[0], t[1], t[2], t[3], t[4]
    if cfg.codepf:
        raw("s_getpc_b64 s[42:43]")
        A(Op("L_pfbase:", "label"))
        A(valu(f"v_lshlrev_b32 {t[10]}, 7, v0", ["v0"], t[10].names))
        A(Op(f"global_load_dword {vX[0]}, {t[10]}, s[42:43]", "vload", t[10].names, vX[0].names))
    A(valu(f"v_lshrrev_b32 {wv}, 6, v0", ["v0"], wv.names))
    A(valu(f"v_and_b32 {lane}, 63, v0", ["v0"], lane.names))
    A(valu(f"v_readfirstlane_b32 s{sW}, {wv}", wv.names, sn(sW)))
    A(salu(f"s_and_b32 s{sT0}, s2, 7", [], sn(sT0)))
    A(salu(f"s_lshr_b32 s{sT1}, s2, 5", [], sn(sT1)))
    A(salu(f"s_lshl3_add_u32 s{sT0}, s{sT1}, s{sT0}", [], sn(sT0)))
    A(salu(f"s_bfe_u32 s{sT1}, s2, 0x20003", [], sn(sT1)))
    A(salu(f"s_lshl2_add_u32 s{sT2}, s{sT0}, s{sT1}", [], sn(sT2)))
    A(salu(f"s_mul_i32 s{sT2}, s{sT2}, {184 * 512}", [], sn(sT2)))
    A(salu(f"s_lshl_b32 s{sT0}, s{sT0}, 18", [], sn(sT0)))
    A(valu(f"v_bfe_u32 {t[6]}, {lane}, 2, 2", lane.names, t[6].names))
    A(valu(f"v_lshrrev_b32 {t[5]}, 4, {lane}", lane.names, t[5].names))
    A(valu(f"v_lshlrev_b32 {common}, 9, {t[6]}", t[6].names, common.names))
    A(valu(f"v_lshl_add_u32 {common}, {t[5]}, 6, {common}", names(t[5], common), common.names))
    A(valu(f"v_and_b32 {cpos}, 3, {lane}", lane.names, cpos.names))
    A(salu(f"s_lshl_b32 s{sT1}, s{sW}, 1", sn(sW), sn(sT1)))
    A(salu(f"s_lshr_b32 s{sT1}, 0x78, s{sT1}", [], sn(sT1)))
    A(salu(f"s_and_b32 s{sT1}, s{sT1}, 3", [], sn(sT1)))
    A(salu(f"s_lshl_b32 s{sW1K}, s{sW}, 10", sn(sW), sn(sW1K)))
    A(salu(f"s_lshl_b32 s{sW8K}, s{sW}, 13", sn(sW), sn(sW8K)))
    A(valu(f"v_xor_b32 {f_w}, s{sT1}, {cpos}", cpos.names, f_w.names))
    A(valu(f"v_lshl_add_u32 {t[7]}, {wv}, 11, {common}", names(wv, common), t[7].names))
    A(valu(f"v_lshl_add_u32 {vDK[0]}, {f_w}, 4, {t[7]}", names(f_w, t[7]), vDK[0].names))
    A(valu(f"v_add_u32 {vDK[1]}, 8192, {vDK[0]}", vDK[0].names, vDK[1].names))
    vq = [[Reg("v", 104 + 4 * r + rg, 1) for rg in range(4)] for r in range(3)]
    qb = Reg("v", 116, 1)
    A(salu(f"s_mov_b32 s{sT3}, {48 * 512}", [], sn(sT3)))
    A(valu(f"v_mad_u32_u24 {qb}, {wv}, s{sT3}, {common}", names(wv, common), qb.names))
    for rg in range(4):
        x = Reg("v", 117, 1)
        A(valu(f"v_xor_b32 {x}, {FR[rg]}, {cpos}", cpos.names, x.names))
        A(valu(f"v_lshl_add_u32 {vq[0][rg]}, {x}, 4, {qb}", names(x, qb), vq[0][rg].names))
        if rg:
            A(valu(f"v_add_u32 {vq[0][rg]}, {rg * 2048}, {vq[0][rg]}", vq[0][rg].names, vq[0][rg].names))
    A(Op("s_waitcnt lgkmcnt(0)", "wait", meta={"fixed": True}))
    P += stamp("karg", True)

    def srd(srd, p, off, nrec):
        A(salu(f"s_add_u32 s{srd}, s{p}, s{off}", [], sn(srd)))
        A(salu(f"s_addc_u32 s{srd + 1}, s{p + 1}, 0", [], sn(srd + 1)))
        A(salu(f"s_mov_b32 s{srd + 2}, {nrec}", [], sn(srd + 2)))
        A(salu(f"s_mov_b32 s{srd + 3}, 0x00020000", [], sn(srd + 3)))

    def vaddr():
        A(valu(f"v_and_b32 {t[9]}, 1, {wv}", wv.names, t[9].names))
        A(valu(f"v_lshlrev_b32 {t[9]}, 1, {t[9]}", t[9].names, t[9].names))
        A(valu(f"v_xor_b32 {t[9]}, {t[9]}, {cpos}", names(t[9], cpos), t[9].names))
        A(valu(f"v_lshl_add_u32 {vDV[0]}, {t[9]}, 4, {t[7]}", names(t[9], t[7]), vDV[0].names))
        for a in range(1, 4):
            A(valu(f"v_add_u32 {vDV[a]}, {8192 * a}, {vDV[0]}", vDV[0].names, vDV[a].names))

    def codepf2():
        if cfg.codepf:
            A(valu(f"v_add_u32 {t[10]}, 32768, {t[10]}", t[10].names, t[10].names))
            A(valu(f"v_min_u32 {t[10]}, L_mainend - L_pfbase, {t[10]}", t[10].names, t[10].names))
            A(Op(f"global_load_dword {vX[1]}, {t[10]}, s[42:43]", "vload", t[10].names, vX[1].names))

    def cwait(k):
        raw(f"s_cmp_lt_u32 s{sCls}, {k}")
        raw(f"s_cbranch_scc1 L_nw{k}")
        raw("s_waitcnt vmcnt(0)")
        A(Op(f"L_nw{k}:", "label"))

    srd(sK, 6, sT0, 262144)
    srd(sQ, 4, sT2, 184 * 512)
    if cfg.stag2:
        raw(f"s_lshr_b32 s{sCls}, s2, 5")
        raw(f"s_lshl_b32 s{sCls}, s{sCls}, 2")
        raw(f"s_lshr_b32 s{sCls}, {cfg.stag2}, s{sCls}")
        raw(f"s_and_b32 s{sCls}, s{sCls}, 15")
        raw(f"s_cbranch_scc0 L_go")
        raw(f"v_lshlrev_b32 {t[9]}, {cfg.stag_sh}, v0")
        raw(f"s_mov_b32 s{sKoff}, 0")
        A(Op("L_warm:", "label"))
        raw(f"buffer_load_dword {t[8]}, {t[9]}, s[{sK}:{sK + 3}], s{sKoff} offen {cfg.ldkv}")
        raw(f"s_add_u32 s{sKoff}, s{sKoff}, {256 << cfg.stag_sh}")
        raw(f"s_sub_u32 s{sCls}, s{sCls}, 1")
        raw("s_waitcnt vmcnt(0)")
        raw(f"s_cmp_lg_u32 s{sCls}, 0")
        raw("s_cbranch_scc1 L_warm")
        A(Op("L_go:", "label"))
    seq = cfg.head.split(",")

    def issue(x):
        if x == "pf":
            codepf2()
        elif x == "walk":
            if cfg.walk:
                A(Op("WALK", "label"))
        else:
            if x[:2] in ("Q1", "Q2"):
                qaddr12()
            P.extend(head_dmas(U, x, vq))

    done12 = []

    def qaddr12():
        if not done12:
            done12.append(1)
            for r in (1, 2):
                for rg in range(4):
                    A(valu(f"v_add_u32 {vq[r][rg]}, {8192 * r}, {vq[0][rg]}", vq[0][rg].names, vq[r][rg].names))

    cut = seq.index("|")
    for x in seq[:cut]:
        issue(x)
    srd(sV, 8, sT0, 262144)
    srd(sO, 10, sT2, 184 * 512)
    for i, ch in enumerate(cfg.touch):
        d = Reg("v", 46 + i, 1)
        sr = {"V": sV, "O": sO}[ch]
        A(Op(f"buffer_load_dword {d}, off, s[{sr}:{sr + 3}], 0 nt", "vload", sn(sr, 4), d.names))
    vaddr()
    g = t[5]
    A(valu(f"v_lshlrev_b32 {t[10]}, 1, {t[6]}", t[6].names, t[10].names))
    A(valu(f"v_lshrrev_b32 {t[10]}, {t[10]}, 0x78".replace("0x78", str(t[11])), names(t[10], t[11]), t[10].names))
    P.insert(len(P) - 1, valu(f"v_mov_b32 {t[11]}, 0x78", [], t[11].names))
    A(valu(f"v_and_b32 {t[10]}, 3, {t[10]}", t[10].names, t[10].names))
    A(valu(f"v_xor_b32 {t[10]}, {t[10]}, {g}", names(t[10], g), t[10].names))
    A(valu(f"v_lshlrev_b32 {t[10]}, 4, {t[10]}", t[10].names, t[10].names))
    A(valu(f"v_lshl_add_u32 {t[10]}, {t[6]}, 10, {t[10]}", names(t[6], t[10]), t[10].names))
    A(valu(f"v_lshl_add_u32 {vKR[0]}, {cpos}, 6, {t[10]}", names(cpos, t[10]), vKR[0].names))
    A(valu(f"v_add_u32 {vKR[1]}, 0x10000, {vKR[0]}", vKR[0].names, vKR[1].names))
    A(valu(f"v_add_u32 {vKR[2]}, 0x20000, {vKR[0]}", vKR[0].names, vKR[2].names))
    A(valu(f"v_lshlrev_b32 {t[10]}, 10, {g}", g.names, t[10].names))
    A(valu(f"v_lshl_add_u32 {t[10]}, {t[6]}, 6, {t[10]}", names(t[6], t[10]), t[10].names))
    A(valu(f"v_lshl_add_u32 {t[10]}, {cpos}, 3, {t[10]}", names(cpos, t[10]), t[10].names))
    A(valu(f"v_and_b32 {t[11]}, 1, {g}", g.names, t[11].names))
    A(valu(f"v_lshl_add_u32 {vVR[0][0]}, {t[11]}, 5, {t[10]}", names(t[11], t[10]), vVR[0][0].names))
    A(valu(f"v_xor_b32 {vVR[1][0]}, 32, {vVR[0][0]}", vVR[0][0].names, vVR[1][0].names))
    for h in range(2):
        for w in (1, 2):
            A(valu(f"v_add_u32 {vVR[h][w]}, {w * 65536}, {vVR[h][0]}", vVR[h][0].names, vVR[h][w].names))
    if cfg.tgran:
        n15 = t[11]
        x0, x1, x2 = Reg("v", 118, 1), Reg("v", 119, 1), Reg("v", 120, 1)
        A(valu(f"v_and_b32 {n15}, 15, {lane}", lane.names, n15.names))
        A(valu(f"v_lshrrev_b32 {x1}, 2, {lane}", lane.names, x1.names))
        A(valu(f"v_mad_u32_u24 {t[10]}, {wv}, 48, {x1}", names(wv, x1), t[10].names))
        A(valu(f"v_lshlrev_b32 {t[10]}, 9, {t[10]}", t[10].names, t[10].names))
        A(valu(f"v_lshl_add_u32 {vST0}, {cpos}, 4, {t[10]}", names(cpos, t[10]), vST0.names))
        A(salu(f"s_mul_i32 s{sT3}, s{sW}, {cfg.stg_wave}", sn(sW), sn(sT3)))
        A(salu(f"s_add_u32 s{sT3}, s{sT3}, {cfg.stg_base}", [], sn(sT3)))
        A(valu(f"v_bfe_u32 {x2}, {lane}, 3, 2", lane.names, x2.names))
        A(valu(f"v_xor_b32 {x2}, {x2}, {cpos}", names(x2, cpos), x2.names))
        A(valu(f"v_lshlrev_b32 {x2}, 4, {x2}", x2.names, x2.names))
        A(valu(f"v_lshl_add_u32 {x2}, {x1}, 6, {x2}", names(x1, x2), x2.names))
        A(valu(f"v_add_u32 {vSR}, s{sT3}, {x2}", x2.names, vSR.names))
        A(valu(f"v_bfe_u32 {x0}, {lane}, 1, 2", lane.names, x0.names))
        A(valu(f"v_lshrrev_b32 {x1}, 1, {g}", g.names, x1.names))
        A(valu(f"v_xor_b32 {x0}, {x0}, {x1}", names(x0, x1), x0.names))
        A(valu(f"v_lshlrev_b32 {x0}, 4, {x0}", x0.names, x0.names))
        A(valu(f"v_lshl_add_u32 {x0}, {n15}, 6, {x0}", names(n15, x0), x0.names))
        A(valu(f"v_and_b32 {x1}, 1, {g}", g.names, x1.names))
        A(valu(f"v_lshl_add_u32 {x0}, {x1}, 3, {x0}", names(x1, x0), x0.names))
        A(valu(f"v_add_u32 {vSW[0]}, s{sT3}, {x0}", x0.names, vSW[0].names))
        A(valu(f"v_xor_b32 {vSW[1]}, 32, {vSW[0]}", vSW[0].names, vSW[1].names))
    else:
        n15 = t[11]
        x0, x1, x2 = Reg("v", 118, 1), Reg("v", 119, 1), Reg("v", 120, 1)
        A(valu(f"v_and_b32 {n15}, 15, {lane}", lane.names, n15.names))
        A(valu(f"v_lshrrev_b32 {x1}, 3, {lane}", lane.names, x1.names))
        A(valu(f"v_and_b32 {x2}, 7, {lane}", lane.names, x2.names))
        A(valu(f"v_mad_u32_u24 {t[10]}, {wv}, 48, {x1}", names(wv, x1), t[10].names))
        A(valu(f"v_lshlrev_b32 {t[10]}, 9, {t[10]}", t[10].names, t[10].names))
        A(valu(f"v_lshl_add_u32 {vST0}, {x2}, 4, {t[10]}", names(x2, t[10]), vST0.names))
        A(salu(f"s_mul_i32 s{sT3}, s{sW}, {cfg.stg_wave}", sn(sW), sn(sT3)))
        A(salu(f"s_add_u32 s{sT3}, s{sT3}, {cfg.stg_base}", [], sn(sT3)))
        A(valu(f"v_xor_b32 {t[10]}, {x2}, {x1}", names(x2, x1), t[10].names))
        A(valu(f"v_lshlrev_b32 {t[10]}, 4, {t[10]}", t[10].names, t[10].names))
        A(valu(f"v_lshl_add_u32 {t[10]}, {x1}, 7, {t[10]}", names(x1, t[10]), t[10].names))
        A(valu(f"v_add_u32 {vSR}, s{sT3}, {t[10]}", t[10].names, vSR.names))
        A(valu(f"v_lshrrev_b32 {x1}, 1, {g}", g.names, x1.names))
        A(valu(f"v_xor_b32 {x0}, {x2}, {x1}", names(x2, x1), x0.names))
        A(valu(f"v_lshlrev_b32 {x0}, 4, {x0}", x0.names, x0.names))
        A(valu(f"v_lshl_add_u32 {x0}, {n15}, 7, {x0}", names(n15, x0), x0.names))
        A(valu(f"v_and_b32 {x1}, 1, {g}", g.names, x1.names))
        A(valu(f"v_lshl_add_u32 {x0}, {x1}, 3, {x0}", names(x1, x0), x0.names))
        A(valu(f"v_add_u32 {x0}, s{sT3}, {x0}", x0.names, x0.names))
        for i in range(4):
            A(valu(f"v_xor_b32 {vSW[i]}, {32 * i}, {x0}", x0.names, vSW[i].names))
    A(valu(f"v_add_u32 {vQR}, s{sW8K}, {vKR[1]}", vKR[1].names + sn(sW8K), vQR.names))
    A(salu(f"s_mov_b32 s{sC}, {f2u(C_SCALE):#x}", [], sn(sC)))
    A(salu(f"s_mov_b32 s{sThr}, {f2u(2.0 ** 64 if not cfg.force_fallback else 1.0):#x}", [], sn(sThr)))
    A(salu(f"s_mov_b64 s[{sFlag}:{sFlag + 1}], 0", [], sn(sFlag, 2)))
    for r in range(3):
        A(valu(f"v_mov_b32 {vL[r]}, 0", [], vL[r].names))
    if cfg.padzero:
        A(valu(f"v_and_b32 {t[10]}, 0xc8, v0", ["v0"], t[10].names))
        A(valu(f"v_cmp_eq_u32 vcc, 0xc8, {t[10]}", t[10].names, ["svcc"]))
        A(valu(f"v_mov_b32 {t[10]}, {f2u(-1e30):#x}", [], t[10].names))
        A(valu(f"v_cndmask_b32 {vL[2]}, {vL[2]}, {t[10]}, vcc", names(vL[2], t[10]) + ["svcc"], vL[2].names))
    qaddr12()
    for x in seq[cut + 1:]:
        issue(x)
    P += stamp("issued", True)
    if cfg.walk and "walk" not in seq:
        A(Op("WALK", "label"))
    return P, vq


def head_dmas(U, x, vq):
    name, part = (x[:2], x[2:]) if x[0] == "Q" else (x, "")
    u = U[name]
    if not u.dmas:
        u.make_dmas(vq[u.n]) if u.kind == "Q" else u.make_dmas()
    ops = u.dmas if not part else (u.dmas[:4] if part == "a" else u.dmas[4:])
    return flat_dmas(ops)


def q_reads(u):
    ops = []
    r = u.n
    base = u.slot * SLOT - 65536
    pre = []
    addr = vQR
    if base >= 65536:
        addr = vXT[2]
        pre.append(valu(f"v_add_u32 {addr}, 0x10000, {vQR}", vQR.names, addr.names))
        base -= 65536
    for c in range(8):
        off = base + (c >> 2) * 4096 + (c & 3) * 256
        o = Op(f"ds_read_b128 {Q[r][c]}, {addr} offset:{off}", "ds", addr.names, Q[r][c].names)
        o.meta["qhalf"] = c >> 2
        o.meta["unit"] = u
        u.reads.append(o)
        ops.append(o)
    return pre, ops


def build(cfg):
    act = lambda s: (0, 1, 2)
    stamp = Stamps(cfg)
    U = {}
    for n in range(16):
        U[f"K{n}"] = Unit("K", n, cfg)
        U[f"V{n}"] = Unit("V", n, cfg)
    for r in range(3):
        U[f"Q{r}"] = Unit("Q", r, cfg)
    U["K0"].slot, U["K1"].slot, U["K2"].slot, U["K3"].slot = 0, 1, 2, 3
    U["Q0"].slot, U["Q1"].slot, U["Q2"].slot = 4, 6, 8
    cfg.stg_base, cfg.stg_wave = 0, 4096 * cfg.stg_n

    pro, vqd = prologue(cfg, U, stamp)

    M = []
    fixed = {}
    dsq = []
    vq = []
    sbuf_last = {}
    spool = {"bufs": list(vS) + [Reg("v", vP[2][0][0].lo + 4 * i, 4) for i in range(3, 6)], "ctr": 0}
    U["K4"].slot, U["V0"].slot = 4, 5
    hd = lambda lst: [o for x in lst.split(",") if x for o in head_dmas(U, x, vqd)]
    guards = []
    Pcvt = {}
    negm_ready = {}
    preg_free = {}
    last_add = {}
    bars = []

    def Preg(s, r):
        return vP[s % 3][r]

    def softmax_ops(s, r, a, S, ready_gap):
        dst = Preg(s, r)[a >> 1]
        fm, ex, ad, cv = [], [], [], []
        for i in range(4):
            o = valu(f"v_fma_f32 {S[i]}, {S[i]}, s{sC}, {vNM[r]}", names(S[i], vNM[r]) + sn(sC), S[i].names)
            o.earliest = ready_gap
            o.deps.append((negm_ready[r], 0))
            fm.append(o)
        for i in range(4):
            o = Op(f"v_exp_f32 {S[i]}, {S[i]}", "trans", S[i].names, S[i].names)
            o.deps.append((fm[i], 0))
            ex.append(o)
        for i in range(4):
            o = valu(f"v_add_f32 {vL[r]}, {vL[r]}, {S[i]}", names(vL[r], S[i]), vL[r].names)
            o.deps.append((ex[i], 1))
            prev_add = ad[-1] if ad else last_add.get(r)
            if prev_add is not None:
                o.deps.append((prev_add, 0))
            ad.append(o)
        for k in range(2):
            d = dst[2 * (a & 1) + k]
            o = valu(f"v_cvt_pk_bf16_f32 {d}, {S[2 * k]}, {S[2 * k + 1]}", names(S[2 * k], S[2 * k + 1]), d.names)
            o.deps += [(ex[2 * k], 1), (ex[2 * k + 1], 1)]
            o.earliest = preg_free.get(dst.lo, -1)
            if dst.lo in sbuf_last:
                o.deps += [(x, 0) for x in sbuf_last[dst.lo]]
            cv.append(o)
        Pcvt[(s, r, a)] = cv
        vq.extend([fm[0], fm[1], ex[0], fm[2], ex[1], fm[3], ad[0], ex[2], ad[1], cv[0], ex[3], ad[2], ad[3], cv[1]])
        last_add[r] = ad[3]
        return ad + cv

    held = {}
    noflush = set()

    halfS = {}

    def chain(s, r, a, frags, part=None):
        start = len(M)
        if part == 1:
            S = halfS[(s, r, a)]
            si = S.lo
        else:
            S = spool["bufs"][spool["ctr"] % len(spool["bufs"])]
            spool["ctr"] += 1
            while sbuf_last.get(S.lo) == "held":
                S = spool["bufs"][spool["ctr"] % len(spool["bufs"])]
                spool["ctr"] += 1
            si = S.lo
            if sbuf_last.get(si):
                guards.append((start - 1, sbuf_last[si]))
        for c in range(8) if part is None else range(4 * part, 4 * part + 4):
            M.append(mfma(S, frags[c], Q[r][c], S if c else None))
        if part == 0:
            halfS[(s, r, a)] = S
            sbuf_last[si] = "held"
            return start
        end = len(M) - 1
        if r not in negm_ready:
            held.setdefault(r, []).append((si, S, end, a))
            sbuf_last[si] = "held"
            if len(held[r]) == 2:
                S0, S1 = held[r][0][1], held[r][1][1]
                m, tmp = vNM[r], vXT[r]
                ops = [valu(f"v_max3_f32 {m}, {S0[0]}, {S0[1]}, {S0[2]}", names(S0[0], S0[1], S0[2]), m.names),
                       valu(f"v_max3_f32 {tmp}, {S0[3]}, {S1[0]}, {S1[1]}", names(S0[3], S1[0], S1[1]), tmp.names),
                       valu(f"v_max3_f32 {m}, {m}, {S1[2]}, {S1[3]}", names(m, S1[2], S1[3]), m.names),
                       valu(f"v_max_f32 {m}, {m}, {tmp}", names(m, tmp), m.names)]
                ops += xlane("v_max_f32", m, tmp)
                if r == 2 and cfg.padzero:
                    ops.append(valu(f"v_fma_f32 {m}, -{m}, s{sC}, {vL[2]}", names(m, vL[2]) + sn(sC), m.names))
                else:
                    ops.append(valu(f"v_mul_f32 {m}, {f2u(-C_SCALE):#x}, {m}", m.names, m.names))
                prev = None
                for o in ops:
                    o.earliest = end + cfg.sready
                    if prev is not None:
                        o.deps.append((prev, 1 if "permlane" in o.text else 0))
                    prev = o
                vq.extend(ops)
                negm_ready[r] = ops[-1]
                for (si2, S2, end2, a2) in held[r]:
                    sbuf_last[si2] = softmax_ops(s, r, a2, S2, end2 + cfg.sready)
        else:
            sbuf_last[si] = softmax_ops(s, r, a, S, end + cfg.sready)
        return start

    afree = {}
    touched = set()
    vpool = {"bufs": list(VFB), "ctr": 0}

    def group(steps, t, smajor=False):
        base = vpool["bufs"][vpool["ctr"] % len(vpool["bufs"])]
        vpool["ctr"] += 1
        tt = t & 7
        start = len(M)
        frs = []
        for i, s in enumerate(steps):
            u = U[f"V{2 * s + (t >> 3)}"]
            for kc in range(2):
                F = Reg("a", base + 8 * i + 4 * kc, 4)
                frs.append((s, kc, F))
                for k in range(2):
                    a = 2 * kc + k
                    dsq.append(dict(kind="V", dst=F[2 * k:2 * k + 2], h=tt & 1, u=u, off=a * 4096 + (tt >> 1) * 256,
                                    cons=start + 2 * i + kc, free=afree.get(F.lo, -1)))
        seq = [(r, x) for r in act(steps[0]) for x in frs]
        if smajor:
            seq = [(r, x) for s0 in steps for r in act(s0) for x in frs if x[0] == s0]
            for d in dsq[-4 * len(steps):]:
                i = d["cons"] - start
                d["cons"] = start + 6 * (i >> 1) + (i & 1)
        for (r, (s, kc, F)) in seq:
            if True:
                C = O[r][t] if (r, t) in touched else None
                touched.add((r, t))
                P_ = Preg(s, r)[kc]
                M.append(mfma(O[r][t], F, P_, C))
                guards.append((len(M) - 3, Pcvt[(s, r, 2 * kc)] + Pcvt[(s, r, 2 * kc + 1)]))
                preg_free[P_.lo] = len(M) - 1
                afree[F.lo] = len(M) - 1
        return len(M) - 1

    pair_end = {}

    def group_pair(steps, ta, tb, rorder, smajor=False):
        start = len(M)
        frs = []
        for j, t in enumerate((ta, tb)):
            base = vpool["bufs"][vpool["ctr"] % len(vpool["bufs"])]
            vpool["ctr"] += 1
            for i, s in enumerate(steps):
                for kc in range(2):
                    frs.append((t, s, kc, Reg("a", base + 8 * i + 4 * kc, 4)))
        first = sorted(frs, key=lambda x: (x[1] == steps[-1], x[0], x[1], x[2])) if smajor else frs
        for i, (t, s, kc, F) in enumerate(first):
            u = U[f"V{2 * s + (t >> 3)}"]
            tt = t & 7
            for k in range(2):
                dsq.append(dict(kind="V", dst=F[2 * k:2 * k + 2], h=tt & 1, u=u, off=(2 * kc + k) * 4096 + (tt >> 1) * 256,
                                cons=start + i, free=afree.get(F.lo, -1)))
        for n_, r in enumerate(rorder):
            for (t, s, kc, F) in (first if n_ == 0 else frs):
                P_ = Preg(s, r)[kc]
                M.append(mfma(O[r][t], F, P_, O[r][t]))
                guards.append((len(M) - 3, Pcvt[(s, r, 2 * kc)] + Pcvt[(s, r, 2 * kc + 1)]))
                afree[F.lo] = len(M) - 1
            pair_end[(r, ta >> 1)] = len(M) - 1

    def barrier(name, gap, hoist):
        o = Op("s_barrier", "barrier")
        o.meta.update(need_vm=[], need_lgkm=[], name=name, hoist_wait=hoist, units=[])
        o.gap = gap
        bars.append(o)
        return o

    def prek_reads(lo, hi):
        ops = []
        for a in range(lo, hi):
            u = U[f"K{a >> 1}"]
            for c in range(8):
                off = u.slot * SLOT + (a & 1) * 8192 + (c >> 2) * 4096 + (c & 3) * 256
                o = Op(f"ds_read_b128 {preK[a][c]}, {vKR[0]} offset:{off}", "ds", vKR[0].names, preK[a][c].names)
                u.reads.append(o)
                ops.append(o)
        return ops

    blk = []
    ba = barrier("a", -1, False)
    ba.meta["units"] = [U["K0"], U["K1"], U["Q0"]]
    U["K0"].vis = U["K1"].vis = U["Q0"].vis = ba
    blk.append(ba)
    blk += stamp("K0Q0", True)
    pre_, q0 = q_reads(U["Q0"])
    prek = prek_reads(0, 4)
    hs = lambda n: stamp(n, True) if cfg.hstamps else []
    pre_ds = {}
    pre_dma = {}

    def gap_dmas(spec, g0):
        for item in spec.split(","):
            if not item:
                continue
            x, pos = item.split("@")
            first, step = (int(v) for v in pos.split(":"))
            name, part = (x[:2], x[2:]) if x[0] == "Q" else (x, "")
            u = U[name]
            if not u.dmas:
                u.make_dmas(vqd[u.n]) if u.kind == "Q" else u.make_dmas()
            ops = u.dmas if not part else (u.dmas[:4] if part == "a" else u.dmas[4:])
            for i, d in enumerate(ops):
                g = g0 + first + i * step
                assert g not in pre_dma
                pre_dma[g] = d
                d.gap = g

    if cfg.inter:
        q_first = [x for pair in zip(q0, prek[:8]) for x in pair]
        blk += pre_ + q_first + hd(cfg.head_a) + hs("hA")
        for i, o in enumerate(prek[8:]):
            pre_ds[i] = o
        gap_dmas(cfg.g_r0a, 0)
    else:
        blk += pre_ + q0 + prek[:8] + hd(cfg.head_a) + hs("hA") + prek[8:]
    fixed[-1] = blk
    sub_order = (0, 1, 2, 3, 6, 7, 4, 5)
    allreads = q0 + prek
    kprev = {}
    if cfg.dfhead:
        def mark():
            for o in vq:
                o.meta.setdefault("pre", len(M) - 1)

        def run(r, subs, part):
            for a in subs:
                chain(a >> 2, r, a & 3, preK[a], part)
                for c in range(8):
                    if preK[a][c].f == "a":
                        afree[preK[a][c].lo] = len(M) - 1
            mark()

        QR = {}
        for r in (1, 2):
            u = U[f"Q{r}"]
            QR[r] = q_reads(u)
            for o in QR[r][1]:
                o.meta["need_vm_unit"] = (u, o.meta["qhalf"])
            allreads += QR[r][1] if r == 1 else []
        if cfg.dfhead == 2:
            def kbar(name, unit, lo, pre_blk, gspec):
                b = barrier(name, len(M) - 1, False)
                b.meta["units"] = [U[unit]]
                b.meta["need_lgkm"] = list(q0)
                U[unit].vis = b
                rd = prek_reads(lo, lo + 2)
                allreads.extend(rd)
                fixed[len(M) - 1] = pre_blk + [b] + hs(name) + rd[:8]
                for j, o in enumerate(rd[8:]):
                    pre_ds[len(M) + j] = o
                gap_dmas(gspec, len(M))
            run(0, (0, 1, 2), None)
            noflush.add(len(M) - 1)
            b = barrier("a2", len(M) - 1, False)
            b.meta["units"] = [U["K2"]]
            b.meta["need_lgkm"] = list(q0)
            U["K2"].vis = b
            rd = prek_reads(4, 6)
            allreads.extend(rd)
            fixed[len(M) - 1] = [b] + hs("a2")
            for j, o in enumerate(rd):
                pre_ds[len(M) + j] = o
            run(0, (3, 4, 5), None)
            fixed[len(M) - 1] = hs("t0c") + hd(cfg.head_a2) + QR[1][0] + QR[1][1][:4] + hs("qa1")
            run(1, (0, 1, 2, 3, 4, 5), 0)
            kbar("a3", "K3", 6, hs("w2") + hd(cfg.head_a3), cfg.g_r0b)
            spool["bufs"] += [Reg("v", vP[2][0][0].lo + 4 * i, 4) for i in range(3)]
            run(0, (6, 7), None)
            run(1, (6, 7), 0)
        else:
            run(0, (0, 1, 2, 3), None)
            fixed[len(M) - 1] = hs("t0c") + QR[1][0] + QR[1][1][:4] + hs("qa1")
            run(1, (0, 1, 2, 3), 0)
            b2 = barrier("a2", len(M) - 1, False)
            b2.meta["units"] = [U["K2"], U["K3"]]
            b2.meta["need_lgkm"] = list(q0)
            U["K2"].vis = U["K3"].vis = b2
            k2 = prek_reads(6, 8) + prek_reads(4, 6)
            allreads += k2
            fixed[len(M) - 1] = hs("w2") + hd(cfg.head_a2) + hs("hA2") + [b2] + hs("a2") + k2[:8]
            for j, o in enumerate(k2[8:]):
                pre_ds[len(M) + j] = o
            gap_dmas(cfg.g_r0b, len(M))
            spool["bufs"] += [Reg("v", vP[2][0][0].lo + 4 * i, 4) for i in range(3)]
            run(0, (6, 7, 4, 5), None)
            run(1, (6, 7, 4, 5), 0)
        bb = barrier("c", len(M) - 1, False)
        bb.meta["need_lgkm"] = list(allreads)
        fixed[len(M) - 1] = hs("w3") + hd(cfg.head_c) + QR[1][1][4:] + [bb] + stamp("Q1", True)
        gap_dmas(cfg.g_r1, len(M))
        run(1, sub_order, 1)
        allreads += QR[2][1]
        fixed[len(M) - 1] = hs("w4") + hd(cfg.head_0) + QR[2][0] + QR[2][1][:4] + hs("qa2")
        run(2, sub_order, 0)
        b0 = Op("", "label")
        b0.gap = len(M) - 1
        fixed[len(M) - 1] = hs("w5") + QR[2][1][4:] + stamp("Q2", True)
        run(2, sub_order, 1)
    for r in range(3 if not cfg.dfhead else 0):
        split = str(r) in cfg.half_r
        if r:
            u = U[f"Q{r}"]
            pre_, qr = q_reads(u)
            for o in qr:
                o.meta["need_vm_unit"] = (u, o.meta["qhalf"])
            lists = (cfg.head_c if r == 1 else cfg.head_0).split("/")
            if r == 2 or split:
                extra_s = [Reg("v", vP[2][0][0].lo + 4 * i, 4) for i in range(3)]
                if r == 2 and extra_s[0].lo not in [x.lo for x in spool["bufs"]]:
                    spool["bufs"] += extra_s
            allreads += qr
            if split:
                fixed[len(M) - 1] = hs(f"fl{r}") + hd(lists[0]) + hs(f"d{r}") + pre_ + qr[:4] + hs(f"qa{r}")
                for a in sub_order:
                    chain(a >> 2, r, a & 3, preK[a], 0)
                blk = hs(f"pa{r}") + hd(lists[1] if len(lists) > 1 else "") + qr[4:]
                noflush.add(len(M) - 1)
            else:
                blk = hs(f"fl{r}") + hd(",".join(lists)) + hs(f"d{r}") + pre_ + qr
            if r == 2 and cfg.softb0:
                bb = Op("", "label")
                bb.gap = len(M) - 1
                b0 = bb
            else:
                bb = barrier("c" if r == 1 else 0, len(M) - 1, False)
                bb.meta["need_lgkm"] = list(allreads)
                blk.append(bb)
            blk += stamp(f"Q{r}", True)
            fixed[len(M) - 1] = blk
            if r == 1:
                gap_dmas(cfg.g_r1, len(M))
        for i, a in enumerate(sub_order):
            if r == 0 and i == 4:
                b2 = barrier("a2", len(M) - 1, False)
                b2.meta["units"] = [U["K2"], U["K3"]]
                b2.meta["need_lgkm"] = list(q0)
                U["K2"].vis = U["K3"].vis = b2
                k2 = prek_reads(6, 8) + prek_reads(4, 6)
                allreads += k2
                if cfg.inter:
                    fixed[len(M) - 1] = hs("t0c") + hd(cfg.head_a2) + hs("hA2") + [b2] + hs("a2") + k2[:8]
                    for j, o in enumerate(k2[8:]):
                        pre_ds[len(M) + j] = o
                    gap_dmas(cfg.g_r0b, len(M))
                    for o in vq:
                        o.meta.setdefault("pre", len(M) - 1)
                else:
                    fixed[len(M) - 1] = hs("t0c") + [b2] + hs("a2") + k2[:8] + hd(cfg.head_a2) + hs("hA2") + k2[8:]
                    noflush.add(len(M) - 1)
            st = chain(a >> 2, r, a & 3, preK[a], 1 if (r and split) else None)
            for c in range(8):
                if preK[a][c].f == "a":
                    afree[preK[a][c].lo] = len(M) - 1 if split else st + c
        for o in vq:
            o.meta.setdefault("pre", len(M) - 1)
    if not cfg.softb0:
        b0 = bars[-1]
        b0.meta["units"] = [U["K4"]]
        U["K4"].vis = b0
    spool["bufs"] = list(vS)
    spool["ctr"] = 0

    start_int = {}
    grp_end = {}
    pub = []
    if cfg.softb0:
        pub.append((0, [U["K4"]]))

    def kchains(s, a, kb):
        u = U[f"K{2 * s + (a >> 1)}"]
        state = {"first": True}

        def emit(r):
            st = len(M)
            if state["first"]:
                for c in range(8):
                    dsq.append(dict(kind="K", dst=KF[kb][c], u=u, off=(a & 1) * 8192 + (c >> 2) * 4096 + (c & 3) * 256,
                                    cons=st + c, free=afree.get(KF[kb][c].lo, b0.gap)))
                state["first"] = False
            chain(s, r, a, KF[kb])
            for c in range(8):
                afree[KF[kb][c].lo] = st + c
        return emit

    rord = tuple(int(c) for c in cfg.rord) if cfg.pairs else (0, 1, 2)
    NP = 8 - cfg.defer
    for p in range(NP):
        for q in range(4):
            n = 2 * p + (q >> 1)
            if q % 2 == 0:
                start_int[n] = len(M)
                pub.append((n, [U[f"V{n}"], U[f"K{n + 4}"]]) if n else ("v0", [U["V0"]]))
            order = cfg.first_order if (p == 0 and q == 0) else "cGcGcGG"
            em = kchains(p + 2, q, (q & 1) if cfg.kdouble else 0)
            ci = gi = 0
            for ch in order:
                if ch == "c":
                    em(ci)
                    ci += 1
                else:
                    grp_end[(p, 4 * q + gi)] = group((p,), 4 * q + gi)
                    gi += 1
    n = 2 * NP
    if cfg.defer == 3:
        for q in range(4):
            if q % 2 == 0:
                start_int[n] = len(M)
                pub.append((n, [U[f"K{14 + (q >> 1)}"]]))
                n += 1
            em = kchains(7, q, (q + 1) & 1)
            for r in rord:
                em(r)
    qk_end = len(M) - 1
    steps = tuple(range(NP, 8))
    sz = 8 * len(steps)
    vpool["bufs"] = [192, 192 + sz, 160, 96] if sz == 24 else [192, 208, 224, 240, 160, 176]
    vpool["ctr"] = 0
    for b in range(64, 160, 4):
        afree[b] = qk_end
    fin0 = n
    for t in range(16):
        if t % 8 == 0:
            start_int[n] = len(M)
            pub.append((n, [U[f"V{2 * s + (t >> 3)}"] for s in steps]))
            n += 1
        if cfg.pairs:
            if t % 2 == 0:
                group_pair(steps, t, t + 1, rord, t == 0)
            continue
        grp_end[(7, t)] = group(steps, t, t == 0)
    NM = len(M)

    dsq.sort(key=lambda d: d["cons"])
    def spacing(c):
        if c >= start_int[fin0]:
            return cfg.spf
        return 2.0

    nxt = float(1 << 30)
    for d in reversed(dsq):
        dl = d["cons"] - cfg.lat
        e = max(d["free"], b0.gap + (7 if cfg.softb0 else 1))
        f = min(float(dl) + 0.999, nxt - spacing(d["cons"]))
        if f < e:
            f = min(float(dl), nxt - min(1.0, spacing(d["cons"])))
        if f < e:
            f = float(e)
        d["f"], d["e"], d["dl"] = f, e, dl
        nxt = f
    prev = -10
    late = 0
    cnt = 0
    for d in dsq:
        g = max(int(d["f"]), d["e"], prev)
        if g == prev:
            cnt += 1
            if cnt >= 2 or (g + 1 <= d["dl"] and spacing(d["cons"]) >= 1):
                g += 1
                cnt = 0
        else:
            cnt = 0
        g = min(g, d["cons"] - 2)
        assert g >= d["e"] and g >= prev, (d, g, prev)
        late += g > d["dl"]
        d["gap"] = g
        prev = g

    prevg = b0.gap
    for (name, us) in pub:
        first = min(d["gap"] for d in dsq if d["u"] in us)
        g = max(first - 1, prevg + 1)
        assert g < first, (name, g, first)
        b = barrier(name, g, True)
        if name == 0:
            b.meta["need_lgkm"] = list(allreads)
        b.meta["units"] = us
        for u in us:
            u.vis = b
        prevg = g
    lastcons = {}
    for d in dsq:
        lastcons[d["u"].name] = max(lastcons.get(d["u"].name, -1), d["cons"])

    def release(u):
        if u.name in ("K0", "K1", "K2", "K3", "Q1"):
            return [b.meta["name"] for b in bars].index("c")
        if u.name == "Q2":
            return [b.meta["name"] for b in bars].index(0)
        c = [i for i, b in enumerate(bars) if b.gap >= lastcons[u.name]]
        return min(c) if c else len(bars)

    stg_bi = bars.index(next(b for b in bars if b.meta["name"] == fin0))
    free_at = {s: -1 for s in range(10)}
    for name in ("K0", "K1", "K2", "K3", "K4", "V0", "Q1", "Q2"):
        u = U[name]
        for k in range(u.nslots):
            free_at[u.slot + k] = release(u)
    order = []
    for (name, us) in pub:
        order += [u.name for u in sorted(us, key=lambda u: u.kind) if not u.dmas]
    dmaq = []
    for name in order:
        u = U[name]
        cand = list(free_at)
        if release(u) > stg_bi:
            cand = [s for s in cand if s >= cfg.stg_n]
        slot = min(cand, key=lambda s: (free_at[s], s))
        w = free_at[slot]
        u.slot = slot
        free_at[slot] = release(u)
        e = max(bars[w].gap + 2 if w >= 0 else 1, b0.gap + 2 + cfg.dma_lead)
        ops = u.make_dmas()
        for d in ops:
            d.earliest = e
            dmaq.append(d)
    gap_ds = {}
    for d in dsq:
        gap_ds.setdefault(d["gap"], []).append(d)
    gap_dma = {}
    placed_dma = [b0.gap - 20] * 4
    last = -10
    for d in dmaq:
        u = d.meta["unit"]
        sp = cfg.dma_sp
        if last < start_int[1]:
            sp = cfg.dma_sp_fast
        g = max(d.earliest, last + sp)
        if len(placed_dma) >= cfg.dma_cap:
            g = max(g, placed_dma[-cfg.dma_cap] + (cfg.dma_win if g >= start_int[cfg.early_n] else cfg.dma_win_early))
        g0 = g
        while g in fixed or g in gap_ds:
            g += 1
        if u.vis is not None and g >= u.vis.gap - 1:
            raise SystemExit(f"DMA of {u.name} too late: {g} vs {u.vis.gap}")
        gap_dma[g] = d
        d.gap = g
        last = g
        placed_dma.append(g)
    last_dma = dmaq[-1]
    gap_dma.update(pre_dma)
    for g, o in pre_ds.items():
        o.gap = g
        gap_ds.setdefault(g, []).append({"op": o})
    flight = {u.name: u.vis.gap - u.dmas[-1].gap for u in U.values() if u.vis is not None and u.dmas[-1].gap is not None}
    for b in bars:
        b.meta["need_vm"] = [d for u in b.meta["units"] for d in u.dmas]

    reads = []
    for d in dsq:
        u = d["u"]
        if d["kind"] == "Q":
            c = d["c"]
            off = u.slot * SLOT - 65536 + (c >> 2) * 4096 + (c & 3) * 256
            o = Op(f"ds_read_b128 {d['dst']}, {vQR} offset:{off}", "ds", vQR.names, d["dst"].names)
            o.meta["need_vm"] = u.dmas[(c >> 2) * 4:(c >> 2) * 4 + 4]
            o.meta["hoist_wait"] = True
        else:
            w, off = divmod(u.slot * SLOT + d["off"], 65536)
            if d["kind"] == "K":
                o = Op(f"ds_read_b128 {d['dst']}, {vKR[w]} offset:{off}", "ds", vKR[w].names, d["dst"].names)
            else:
                a = vVR[d["h"]][w]
                o = Op(f"ds_read_b64_tr_b16 {d['dst']}, {a} offset:{off}", "ds", a.names, d["dst"].names)
        o.gap = d["gap"]
        u.reads.append(o)
        d["op"] = o
        reads.append(o)
    for blk in fixed.values():
        for o in blk:
            if "need_vm_unit" in o.meta:
                u, h = o.meta["need_vm_unit"]
                o.meta["need_vm"] = u.dmas[4 * h:4 * h + 4]

    vcc_last = [None]

    def finish_rows(rows, last):
        fin = {}
        for r in rows:
            ops = xlane("v_add_f32", vL[r], vXT[r])
            prev = last[r]
            for o in ops:
                o.deps.append((prev, 1 if "permlane" in o.text else 0))
                prev = o
            rc = Op(f"v_rcp_f32 {vRL[r]}, {vL[r]}", "trans", vL[r].names, vRL[r].names)
            rc.deps.append((prev, 0))
            cm = valu(f"v_cmp_lt_f32 vcc, s{sThr}, {vL[r]}", vL[r].names + sn(sThr), ["svcc"])
            cm.deps.append((prev, 0))
            fl = salu(f"s_or_b64 s[{sFlag}:{sFlag + 1}], s[{sFlag}:{sFlag + 1}], vcc", ["svcc"] + sn(sFlag, 2), sn(sFlag, 2) + ["scc"])
            fl.deps.append((cm, 2))
            fin[r] = (ops, rc, cm, fl)
        out = []
        for k in range(6):
            for r in rows:
                out.append(fin[r][0][k])
        for r in rows:
            if vcc_last[0] is not None:
                fin[r][2].deps.append((vcc_last[0], 0))
            out += [fin[r][1], fin[r][2], fin[r][3]]
            vcc_last[0] = fin[r][3]
        return out, {r: fin[r][1] for r in rows}

    rbq = [Reg("a", 64 + 4 * i, 4) for i in range(8)]
    tmps = [Reg("v", vS[2 * i].lo, 8) for i in range(3)]
    tmp_last = {tb.lo: sbuf_last[tb.lo] + sbuf_last[tb.lo + 4] for tb in tmps}
    tmp_min = {tb.lo: -1 for tb in tmps}
    ctr = {"t": 0, "r": 0}
    rb_last = {}
    stg_last_read = {}
    wr = {}
    stg_after = bars[stg_bi].gap + 1
    sta = {}
    for r in range(3):
        for k in range(2):
            d = vST[r][k]
            o = valu(f"v_add_u32 {d}, {r * 8192 + k * 4096}, {vST0}", vST0.names, d.names)
            o.deps.append((last_dma, 1))
            sta[(r, k)] = o

    def piece(r, s, T, rcp, half, packed):
        rdy = (pair_end[(r, T)] if cfg.pairs else grp_end[(s, 2 * T + 1)]) + cfg.sready
        X, Y = O[r][2 * T], O[r][2 * T + 1]
        src = [X[i] for i in range(4)] + [Y[i] for i in range(4)]
        D = X
        ops = []
        rd = None
        if X.f == "a":
            tb = tmps[ctr["t"] % len(tmps)]
            ctr["t"] += 1
            rd = []
            for i in range(8):
                o = valu(f"v_accvgpr_read_b32 {tb[i]}, {src[i]}", src[i].names, tb[i].names)
                o.earliest = max(rdy, tmp_min[tb.lo])
                o.deps += [(x, 0) for x in tmp_last[tb.lo]]
                rd.append(o)
            ops += rd
            src = [tb[i] for i in range(8)]
            D = tb[0:4]
        mu = []
        if packed:
            for k in range(4):
                pr = Reg("v", src[2 * k].lo, 2)
                rl2 = Reg("v", vRL[r].lo, 2)
                o = valu(f"v_pk_mul_f32 {pr}, {pr}, {rl2} op_sel_hi:[1,0]", names(pr, vRL[r]), pr.names)
                o.earliest = rdy
                o.meta["pk"] = True
                o.deps.append((rcp, 1))
                if rd:
                    o.deps += [(rd[2 * k], 0), (rd[2 * k + 1], 0)]
                mu += [o, o]
            ops += mu[::2]
        else:
            for i in range(8):
                o = valu(f"v_mul_f32 {src[i]}, {src[i]}, {vRL[r]}", names(src[i], vRL[r]), src[i].names)
                o.earliest = rdy
                o.deps.append((rcp, 1))
                if rd:
                    o.deps.append((rd[i], 0))
                mu.append(o)
            ops += mu
        cv = []
        for k in range(4):
            o = valu(f"v_cvt_pk_bf16_f32 {D[k]}, {src[2 * k]}, {src[2 * k + 1]}", names(src[2 * k], src[2 * k + 1]), D[k].names)
            o.deps += [(mu[2 * k], 0), (mu[2 * k + 1], 0)]
            if k:
                o.deps.append((cv[k - 1], 0))
            cv.append(o)
        w = []
        for xy in range(2):
            ad = vSW[xy] if cfg.tgran else vSW[2 * (T & 1) + xy]
            x = Op(f"ds_write_b64 {ad}, {D[2 * xy:2 * xy + 2]} offset:{(1024 if cfg.tgran else 2048) * half}", "ds",
                   D[2 * xy:2 * xy + 2].names + ad.names, [])
            x.deps += [(cv[2 * xy], 0), (cv[2 * xy + 1], 0)]
            x.earliest = stg_after
            x.deps += [(z, 0) for z in stg_last_read.get(half, [])]
            w.append(x)
        if rd:
            tmp_last[tb.lo] = w + [cv[3]]
        wr[(r, T)] = w
        ops += cv + w
        if T % 2 == 1 or cfg.tgran:
            H = T >> 1
            rds, sts = [], []
            for k in range(1 if cfg.tgran else 2):
                qd = rbq[ctr["r"] % len(rbq)]
                ctr["r"] += 1
                o = Op(f"ds_read_b128 {qd}, {vSR} offset:{1024 * half if cfg.tgran else 1024 * k + 2048 * half}", "ds", vSR.names, qd.names)
                o.deps += [(x, 0) for tt in ((T,) if cfg.tgran else (T - 1, T)) for x in wr[(r, tt)]]
                o.deps += [(x, 0) for x in rb_last.get(qd.lo, [])]
                o.earliest = qk_end
                stt = f"buffer_store_dwordx4 {qd}, {vST[r][k]}, s[{sO}:{sO + 3}], 0 offen offset:{64 * T if cfg.tgran else 128 * H}"
                pol = cfg.st if H < cfg.st_from else cfg.st_last
                if pol:
                    stt += " " + pol
                so = Op(stt, "vstore", qd.names + vST[r][k].names + sn(sO, 4), [])
                so.meta["data"] = frozenset(qd.names)
                so.meta["hoist_wait"] = True
                so.deps += [(o, cfg.lat), (sta[(r, k)], 0)]
                rb_last[qd.lo] = [so]
                rds.append(o)
                sts.append(so)
            stg_last_read[half] = rds
            ops += rds + sts
        return ops

    fo, rcp = finish_rows((0, 1, 2), last_add)
    vq += fo + list(sta.values())
    ep = []
    nb = 2 * cfg.stg_n
    seqTr = [(T, r) for T in range(8) for r in rord]
    if cfg.hmajor:
        seqTr = [(2 * H + k, r) for H in range(4) for r in rord for k in range(2)]
    for (T, r) in seqTr:
        if True:
            buf = (3 * T + r) % (2 * nb) if cfg.tgran else (3 * (T >> 1) + r) % nb
            ep += piece(r, 7, T, rcp[r], buf, cfg.pk and T >= cfg.pkfrom and (not cfg.pairs or r == rord[-1]))

    gaps = {g: {"s": [], "v": []} for g in range(-1, NM + 1)}
    for b in bars:
        if b.meta["hoist_wait"]:
            gaps[b.gap]["s"].append(b)
    for g, d in gap_dma.items():
        pre = d.pre
        d.pre = []
        gaps[g - 1]["s"].append(pre[-1])
        if len(pre) > 1:
            gaps[max(g - 2, 0)]["s"].insert(0, pre[0])

    def ready(o, g, strict=False):
        if o.earliest > g:
            return False
        for (d, k) in o.deps:
            if d.gap is None or d.gap + k > g or (strict and d.gap >= g):
                return False
        return True

    queue = list(vq)
    equeue = list(ep)
    guard_at = {}
    for (g, ops) in guards:
        guard_at.setdefault(g, []).extend(ops)
    overflow = 0

    def place(o, g, where="v"):
        o.gap = g
        gaps[g][where].append(o)
        (queue if o in queue else equeue).remove(o)

    def force(o, g):
        nonlocal overflow
        if o.gap is not None:
            return
        for (d, k) in o.deps:
            if d.gap is None:
                force(d, g)
        assert o.earliest <= g, (o, g)
        overflow += 1
        place(o, g)

    W = 120

    def pick(kinds, g, strict=False, pk=False, pred=None):
        for qq in (queue, equeue):
            for o in qq[:W]:
                if o.kind in kinds and bool(o.meta.get("pk")) == pk and ready(o, g, strict) and (pred is None or pred(o)):
                    return o
        return None

    def pk_group(g):
        o = pick(("valu",), g, pk=True)
        if o is None:
            return None
        i = equeue.index(o)
        grp = [x for x in equeue[i:i + 4] if x.meta.get("pk")]
        return grp if all(ready(x, g) for x in grp) else None

    since = {}
    xacc = hacc = 0.0
    for g in range(0, NM):
        cap = 2
        mem = False
        nds = len(gap_ds.get(g, []))
        if nds:
            for d in gap_ds[g]:
                gaps[g]["v"].append(d["op"])
            cap = 1 if nds == 1 else 0
            mem = True
        if g in gap_dma:
            gaps[g]["v"].append(gap_dma[g])
            cap = 0
            mem = True
        light = cfg.dma_light and (g + 1) in gap_dma and g >= cfg.light_from and g > b0.gap
        if light:
            cap = min(cap, 0 if mem else 1)
        extra = 0
        if g <= b0.gap:
            extra = cfg.xpre
        if b0.gap < g < start_int[0] + cfg.xh_len and g not in gap_dma:
            hacc += cfg.xh
            extra = int(hacc)
            hacc -= extra
        if g >= start_int[fin0] - cfg.xlead and not light and g not in gap_dma:
            nst = sum(1 for o in ep if o.kind == "vstore" and o.gap is not None)
            xacc += cfg.xf_first if (nst < cfg.xf_nst and g >= start_int[fin0]) else cfg.xf
            extra = int(xacc)
            xacc -= extra
        o = pick(("salu",), g)
        if o is not None:
            place(o, g, "s")
        ex = pick(("trans",), g)
        if ex is not None:
            since.setdefault(id(ex), g)
        heavy = False
        pg = pk_group(g)
        if pg:
            since.setdefault(id(pg[0]), g)
        age = g - since[id(pg[0])] if pg else -1
        so = pick(("vstore",), g, True) if g not in gap_dma and nds <= 1 else None
        if so is not None:
            place(so, g)
            cap = 4 - nds
            extra = 0
            mem = True
            heavy = True
        elif not (mem or ex):
            mo = pick(("ds",), g, True)
            if mo is not None:
                place(mo, g)
                cap = 1
                mem = True
                if mo.text.startswith("ds_write"):
                    extra = 0
                    if pg and age >= cfg.pk_age:
                        cap = 2
                        heavy = True
        if not heavy and pg and age >= cfg.pk_age2 and g not in gap_dma and not light:
            cap = 5 - len(gaps[g]["v"])
            extra = 0
            heavy = True
        if ex is not None and not light and (not mem or heavy or (g <= b0.gap and cfg.xpre) or (g not in gap_dma and g - since[id(ex)] >= cfg.exp_age)):
            place(ex, g)
            cap = cap - 2 if heavy else 0
        cap += extra
        while cap > 0:
            o = pick(("valu",), g)
            if o is None:
                break
            place(o, g)
            cap -= 1
        if heavy:
            pg = pk_group(g)
            if pg:
                for x in pg:
                    place(x, g)
        for o in guard_at.get(g, []):
            force(o, g)
        if g in fixed and cfg.preflush and g not in noflush:
            for o in list(queue):
                if o.meta.get("pre") is not None and o.meta["pre"] <= g:
                    place(o, g)
    tail = []
    clock = NM
    k = 0
    rest = queue + equeue
    while rest:
        o = next((o for o in rest if o.kind == "vstore" and ready(o, clock, True)), None)
        if o is None:
            o = next((o for o in rest if o.kind == "ds" and ready(o, clock)), None)
        if o is None:
            o = next((o for o in rest if o.kind not in ("ds", "vstore") and ready(o, clock)), None)
        if o is None:
            clock += 1
            continue
        o.gap = clock
        rest.remove(o)
        tail.append(o)
        k += 1
        if k % 3 == 0:
            clock += 1

    prog = list(pro)
    for o in fixed[-1]:
        o.gap = -1
    prog += fixed[-1]
    inv_start = {v: k for k, v in start_int.items()}
    pos_int = {}
    for g in range(NM):
        M[g].gap = g
        prog.append(M[g])
        if g + 1 in inv_start and (inv_start[g + 1] % cfg.stamp_every == 0 or (not cfg.hstamps and (inv_start[g + 1] < 3 or inv_start[g + 1] >= 2 * NP))):
            prog += stamp(f"i{inv_start[g + 1]}")
            if inv_start[g + 1] in (0, fin0):
                prog += stamp(f"t{inv_start[g + 1]}", True)
        prog += gaps[g]["s"]
        prog += gaps[g]["v"]
        if g in fixed:
            for o in fixed[g]:
                o.gap = g
            prog += fixed[g]
    prog += stamp("mfmaend")
    prog += stamp("mfmaendR", True)
    prog += tail
    prog += stamp("stissued", True)
    if cfg.stamps:
        prog.append(Op("s_waitcnt vmcnt(0)", "wait", meta={"fixed": True}))
        prog += stamp("drained", True)
    prog += stamp.finish()
    prog.append(Op(f"s_cmp_lg_u64 s[{sFlag}:{sFlag + 1}], 0", "raw"))
    prog.append(Op("s_cbranch_scc1 L_fallback", "raw"))

    for o in prog:
        if o.kind == "mfma":
            o.meta["cover"] = [x for x in reads if x.gap <= o.gap - 1 - cfg.age and x.gap > o.gap - 40]
    prog = insert_waits_cover(prog)
    prog, moved = spread_scalars(prog)
    prog, pads = fix_hazards(prog, verbose=cfg.verbose)
    verify_lds(prog, U, None, cfg)
    idx = {id(o): i for i, o in enumerate(prog)}
    seg = lambda a, b: estimate_cycles(prog[idx[id(M[a])]:idx[id(M[b])] + 1])
    ints = sorted(start_int.items())
    est = {n: seg(g, (ints[i + 1][1] if i + 1 < len(ints) else NM) - 1) for i, (n, g) in enumerate(ints)}
    info = dict(NM=NM, late=late, overflow=overflow, pads=pads, est_main=seg(start_int[0], NM - 1),
                ideal=16 * (NM - start_int[0]), est_tail=estimate_cycles(prog[idx[id(M[-1])] + 1:]), n=len(prog), tail=len(tail),
                waits=sum(1 for o in prog if o.kind == "wait"), est=list(est.values()),
                pre2=seg(b0.gap + 1, start_int[0] - 1), total=seg(b0.gap + 1, NM - 1) + estimate_cycles(prog[idx[id(M[-1])] + 1:]))
    if cfg.verbose:
        print("flight", flight)
        print("slots", {u.name: u.slot for u in U.values()})
        print("bars", [(b.meta["name"], b.gap) for b in bars])
        print("ints", start_int, "last dma", last_dma.gap, "stores", [o.gap for o in ep if o.kind == "vstore"])
    cfg.stamp_names = stamp.list
    return prog, info


def insert_waits_cover(prog):
    pend = set()
    for o in prog:
        if o.kind == "ds":
            pend |= set(o.writes)
        if o.kind == "mfma" and (o.reads & pend):
            cov = o.meta.get("cover", [])
            o.meta["need_lgkm"] = cov
            for x in cov:
                pend -= set(x.writes)
            pend -= set(o.reads)
    return insert_waits(prog)


def verify_scalars(prog):
    last = {}
    for o in prog:
        if o.kind == "dma":
            for e in o.meta["expect"]:
                for r in e.writes:
                    if r != "scc":
                        assert last.get(r) is e, ("scalar operand clobbered", o.text, e.text)
            for r in o.reads:
                if r[0] == "v":
                    assert last[r].kind == "valu" and last[r].gap is None, ("DMA address clobbered", o.text, last[r].text)
        for r in o.writes:
            last[r] = o


def verify_dataflow(prog):
    pos = {id(o): i for i, o in enumerate(prog)}
    for o in prog:
        for (d, k) in o.deps:
            assert pos[id(d)] < pos[id(o)], ("order", d.text, o.text)


def verify_lds(prog, U, stg_bar, cfg):
    verify_scalars(prog)
    verify_dataflow(prog)
    pos = {id(o): i for i, o in enumerate(prog)}
    bars = [o for o in prog if o.kind == "barrier"]
    occ = {}
    for u in U.values():
        for k in range(u.nslots):
            occ.setdefault(u.slot + k, []).append(u)
        if u.kind != "Q":
            for rd in u.reads:
                b = u.vis
                assert pos[id(b)] < pos[id(rd)], ("read before barrier", u.name)
                for d in u.dmas:
                    assert d.meta["vm_idx"] < b.meta["vm_done_at"], ("dma not waited", u.name)
    for s, us in occ.items():
        us.sort(key=lambda u: pos[id(u.dmas[0])])
        for a, b in zip(us, us[1:]):
            first = min(pos[id(d)] for d in b.dmas)
            ok = any(pos[id(br)] < first and all(rd.meta["lg_idx"] < br.meta["lg_done_at"] for rd in a.reads) for br in bars)
            assert ok, ("slot WAR", s, a.name, b.name)
    writes = [o for o in prog if o.kind == "ds" and o.text.startswith("ds_write")]
    firstw = min(pos[id(o)] for o in writes)
    lo, hi = cfg.stg_base, cfg.stg_base + 4 * cfg.stg_wave
    for s, us in occ.items():
        if s * SLOT < hi and (s + 1) * SLOT > lo:
            for u in us:
                ok = any(pos[id(br)] < firstw and all(rd.meta["lg_idx"] < br.meta["lg_done_at"] for rd in u.reads) for br in bars)
                assert ok, ("staging WAR", s, u.name)


def fallback(cfg):
    L = []
    A = L.append
    t = Reg("v", 104, 12)
    KFf = KF[0]
    VFf = [Reg("a", 192, 4), Reg("a", 200, 4)]
    A("L_fallback:")
    A("s_waitcnt vmcnt(0) lgkmcnt(0)")
    A("s_barrier")
    A(f"s_mul_i32 s{sT3}, s{sW}, 40960")
    A(f"v_and_b32 {t[0]}, 63, v0")
    A(f"v_bfe_u32 {t[2]}, {t[0]}, 2, 2")
    A(f"v_lshlrev_b32 {t[2]}, 9, {t[2]}")
    A(f"v_lshrrev_b32 {t[5]}, 4, {t[0]}")
    A(f"v_lshl_add_u32 {t[2]}, {t[5]}, 6, {t[2]}")
    A(f"v_and_b32 {t[3]}, 3, {t[0]}")
    fk = [Reg("v", 80 + i, 1) for i in range(4)]
    fv = [Reg("v", 84 + i, 1) for i in range(4)]
    for rg in range(4):
        A(f"v_xor_b32 {t[4]}, {FR[rg]}, {t[3]}")
        A(f"v_lshl_add_u32 {fk[rg]}, {t[4]}, 4, {t[2]}")
        A(f"v_add_u32 {fk[rg]}, {rg * 2048}, {fk[rg]}")
        A(f"v_xor_b32 {t[4]}, {2 * (rg & 1)}, {t[3]}")
        A(f"v_lshl_add_u32 {fv[rg]}, {t[4]}, 4, {t[2]}")
        A(f"v_add_u32 {fv[rg]}, {rg * 2048}, {fv[rg]}")
    rk, rv0, rv1 = Reg("v", 88, 1), Reg("v", 89, 1), Reg("v", 90, 1)
    so = [Reg("v", 91 + r, 1) for r in range(3)]
    tmp8 = Reg("v", 96, 8)
    A(f"v_add_u32 {rk}, s{sT3}, {vKR[0]}")
    A(f"v_add_u32 {rv0}, s{sT3}, {vVR[0][0]}")
    A(f"v_add_u32 {rv1}, s{sT3}, {vVR[1][0]}")
    A(f"v_and_b32 {t[6]}, 15, {t[0]}")
    A(f"s_mul_i32 s{sT1}, s{sW}, 48")
    A(f"v_add_u32 {t[6]}, s{sT1}, {t[6]}")
    A(f"v_lshlrev_b32 {t[6]}, 9, {t[6]}")
    A(f"v_and_b32 {t[7]}, 1, {t[5]}")
    A(f"v_lshl_add_u32 {t[6]}, {t[7]}, 5, {t[6]}")
    A(f"v_lshrrev_b32 {t[7]}, 1, {t[5]}")
    A(f"v_lshl_add_u32 {so[0]}, {t[7]}, 4, {t[6]}")
    A(f"v_add_u32 {so[1]}, 8192, {so[0]}")
    A(f"v_add_u32 {so[2]}, 16384, {so[0]}")
    A(f"s_mul_i32 s{sT2}, s{sW}, {48 * 512}")
    for r in range(3):
        for rg in range(4):
            A(f"v_add_u32 {t[8]}, s{sT2}, {fk[rg]}")
            A(f"v_add_u32 {t[8]}, {r * 8192}, {t[8]}")
            for half in range(2):
                A(f"s_add_u32 m0, s{sT3}, {half * 4096 + rg * 1024 - half * 256}")
                A("s_nop 0")
                A(f"buffer_load_dwordx4 {t[8]}, s[{sQ}:{sQ + 3}], 0 offen offset:{half * 256} lds")
        A("s_waitcnt vmcnt(0)")
        for c in range(8):
            A(f"ds_read_b128 {Q[r][c]}, {rk} offset:{(c >> 2) * 4096 + (c & 3) * 256}")
        A("s_waitcnt lgkmcnt(0)")
    Pf = [vP[0][r][0] for r in range(3)]

    def load_k():
        for a in range(2):
            A(f"s_add_u32 s{sT1}, s{sT0}, {a * 8192}")
            for half in range(2):
                for rg in range(4):
                    A(f"s_add_u32 m0, s{sT3}, {a * 8192 + half * 4096 + rg * 1024 - half * 256}")
                    A("s_nop 0")
                    A(f"buffer_load_dwordx4 {fk[rg]}, s[{sK}:{sK + 3}], s{sT1} offen offset:{half * 256} lds")

    def load_v():
        for dh in range(2):
            for a in range(2):
                A(f"s_add_u32 s{sT1}, s{sT0}, {a * 8192 + dh * 256}")
                for rg in range(4):
                    A(f"s_add_u32 m0, s{sT3}, {16384 + dh * 8192 + a * 4096 + rg * 1024}")
                    A("s_nop 0")
                    A(f"buffer_load_dwordx4 {fv[rg]}, s[{sV}:{sV + 3}], s{sT1} offen lds")

    def qk(a):
        for c in range(8):
            A(f"ds_read_b128 {KFf[c]}, {rk} offset:{a * 8192 + (c >> 2) * 4096 + (c & 3) * 256}")
        A("s_waitcnt lgkmcnt(0)")
        for r in range(3):
            for c in range(8):
                A(f"v_mfma_f32_16x16x32_bf16 {vS[r]}, {KFf[c]}, {Q[r][c]}, {vS[r] if c else 0}")
        A("s_nop 15")

    def xl(op, x, tmp):
        for o in xlane(op, x, tmp):
            A("s_nop 1")
            A(o.text)

    for r in range(3):
        A(f"v_mov_b32 {vNM[r]}, 0xff800000")
    A(f"s_mov_b32 s{sT0}, 0")
    A("L_fb1:")
    load_k()
    A("s_waitcnt vmcnt(0)")
    for a in range(2):
        qk(a)
        for r in range(3):
            A(f"v_max3_f32 {vNM[r]}, {vNM[r]}, {vS[r][0]}, {vS[r][1]}")
            A(f"v_max3_f32 {vNM[r]}, {vNM[r]}, {vS[r][2]}, {vS[r][3]}")
    A(f"s_add_u32 s{sT0}, s{sT0}, 16384")
    A(f"s_cmp_lt_u32 s{sT0}, 262144")
    A("s_cbranch_scc1 L_fb1")
    for r in range(3):
        xl("v_max_f32", vNM[r], t[4])
        A(f"v_mul_f32 {vNM[r]}, {f2u(-C_SCALE):#x}, {vNM[r]}")
        A(f"v_mov_b32 {vL[r]}, 0")
    for r in range(3):
        for tt in range(16):
            for i in range(4):
                x = O[r][tt][i]
                A(f"v_mov_b32 {x}, 0" if x.f == "v" else f"v_accvgpr_write_b32 {x}, 0")
    A(f"s_mov_b32 s{sT0}, 0")
    A("L_fb2:")
    load_k()
    load_v()
    A("s_waitcnt vmcnt(0)")
    for a in range(2):
        qk(a)
        for r in range(3):
            S = vS[r]
            for i in range(4):
                A(f"v_fma_f32 {S[i]}, {S[i]}, s{sC}, {vNM[r]}")
            for i in range(4):
                A(f"v_exp_f32 {S[i]}, {S[i]}")
            A("s_nop 1")
            for i in range(4):
                A(f"v_add_f32 {vL[r]}, {vL[r]}, {S[i]}")
            for k in range(2):
                A(f"v_cvt_pk_bf16_f32 {Pf[r][2 * a + k]}, {S[2 * k]}, {S[2 * k + 1]}")
    A("s_nop 3")
    for tt in range(16):
        for s in range(2):
            base = rv0 if (tt & 1) == 0 else rv1
            off = 16384 + (tt >> 3) * 8192 + s * 4096 + ((tt & 7) >> 1) * 256
            A(f"ds_read_b64_tr_b16 {VFf[tt & 1][2 * s:2 * s + 2]}, {base} offset:{off}")
        A("s_waitcnt lgkmcnt(0)")
        for r in range(3):
            A(f"v_mfma_f32_16x16x32_bf16 {O[r][tt]}, {VFf[tt & 1]}, {Pf[r]}, {O[r][tt]}")
    A("s_nop 15")
    A(f"s_add_u32 s{sT0}, s{sT0}, 16384")
    A(f"s_cmp_lt_u32 s{sT0}, 262144")
    A("s_cbranch_scc1 L_fb2")
    for r in range(3):
        xl("v_add_f32", vL[r], t[4])
        A(f"v_rcp_f32 {vRL[r]}, {vL[r]}")
    A("s_nop 3")
    for T in range(8):
        for r in range(3):
            X, Y = O[r][2 * T], O[r][2 * T + 1]
            src = [X[i] for i in range(4)] + [Y[i] for i in range(4)]
            if X.f == "a":
                for i in range(8):
                    A(f"v_accvgpr_read_b32 {tmp8[i]}, {src[i]}")
                src = [tmp8[i] for i in range(8)]
            for i in range(8):
                A(f"v_mul_f32 {src[i]}, {src[i]}, {vRL[r]}")
            D = vS[(3 * T + r) % NSB]
            for k in range(4):
                A(f"v_cvt_pk_bf16_f32 {D[k]}, {src[2 * k]}, {src[2 * k + 1]}")
            A("s_nop 1")
            A(f"v_permlane16_swap_b32 {D[0]}, {D[2]}")
            A(f"v_permlane16_swap_b32 {D[1]}, {D[3]}")
            A(f"buffer_store_dwordx4 {D}, {so[r]}, s[{sO}:{sO + 3}], 0 offen offset:{64 * T}")
    A("s_waitcnt vmcnt(0)")
    return L


HEADER = """; GQA attention forward, B=8 Hq=16 Hkv=8 Sq=368 Sk=512 D=256, bf16 (emitted by my own generator script)
; and a wave with a sum above 2^64 recomputes its rows with the true row maximum (L_fallback).
; @launch grid=(256,1,1) block=(256,1,1) lds=163840
.amdgcn_target "amdgcn-amd-amdhsa--gfx950"
.text
.globl {k}
.p2align 8
.type {k},@function
{k}:
"""

FOOTER = """L_end:
    s_endpgm
.section .rodata,"a"
.p2align 6
.amdhsa_kernel {k}
  .amdhsa_next_free_vgpr 512
  .amdhsa_next_free_sgpr 102
  .amdhsa_accum_offset 256
  .amdhsa_group_segment_fixed_size 0
  .amdhsa_kernarg_size 48
  .amdhsa_user_sgpr_count 2
  .amdhsa_user_sgpr_kernarg_segment_ptr 1
  .amdhsa_system_sgpr_workgroup_id_x 1
.end_amdhsa_kernel
"""


def render(cfg, prog):
    s = HEADER.format(k=KNAME)
    if cfg.align12:
        s = s.replace(".p2align 8\n", ".p2align 12\n.p2align 8\n", 1)
    if cfg.stamps and cfg.spin == -1:
        s = "; stamps: " + " ".join(n + ("*" if r else "") for n, r in cfg.stamp_names) + "\n" + s
    for o in prog:
        s += (o.text if o.kind == "label" else "    " + o.text) + "\n"
    s += "    s_endpgm\nL_mainend:\n"
    for l in fallback(cfg):
        s += (l if l.endswith(":") else "    " + l) + "\n"
    s += FOOTER.format(k=KNAME)
    return s


def addresses(text, n):
    import subprocess, re, tempfile, os
    d = tempfile.mkdtemp()
    open(d + "/x.s", "w").write(text)
    subprocess.run(["clang", "-x", "assembler", "-target", "amdgcn-amd-amdhsa", "-mcpu=gfx950", "-c",
                    d + "/x.s", "-o", d + "/x.o"], check=True)
    out = subprocess.run(["llvm-objdump", "-d", "--mcpu=gfx950", d + "/x.o"], capture_output=True, text=True).stdout
    return [int(m.group(1), 16) for m in re.finditer(r"// ([0-9A-F]+):", out)][:n]


def add_walk(cfg, prog):
    iw = next(i for i, o in enumerate(prog) if o.text == "WALK")
    head, body = prog[:iw], prog[iw + 1:]
    lab = lambda t: Op(t, "label")
    raw = lambda t: Op(t, "raw")
    stubs = []
    for it in range(20):
        b2 = []
        for i, o in enumerate(body):
            if i in stubs:
                k = stubs.index(i)
                b2.append(lab(f"L_pg{k}:"))
                b2.append(raw(f"s_cbranch_execz L_wr{k}"))
            b2.append(o)
        npg = len(stubs)
        walk = [raw("s_mov_b64 exec, 0")]
        for w in range(4):
            if w < npg:
                walk += [raw(f"s_cmp_eq_u32 s{sW}, {w}"), raw(f"s_cbranch_scc1 L_pg{w}")]
        walk.append(raw("s_branch L_wdone"))
        for k in range(npg):
            walk.append(lab(f"L_wr{k}:"))
            walk.append(raw(f"s_branch L_pg{k + 4}" if k + 4 < npg else "s_branch L_wdone"))
        walk += [lab("L_wdone:"), raw("s_mov_b64 exec, -1")]
        full = head + walk + b2
        ins = [o for o in full if o.kind != "label"]
        addr = addresses(render(cfg, full), len(ins))
        amap = {id(o): a + cfg.base_off for o, a in zip(ins, addr)}
        want = []
        prev = amap[id(next(o for o in body if o.kind != "label"))] // 4096
        for i, o in enumerate(body):
            if o.kind == "label":
                continue
            pg = amap[id(o)] // 4096
            if pg != prev:
                j = i
                for jj in range(i, min(i + cfg.walk_win, len(body))):
                    if body[jj - 1].kind == "mfma" and amap[id(body[jj - 1])] // 4096 == pg and body[jj].kind not in ("salu", "wait", "barrier"):
                        j = jj
                        break
                want.append(j)
                prev = pg
        if want == stubs:
            return full
        stubs = want
    return full


def emit(cfg):
    prog, info = build(cfg)
    if cfg.x_nobar:
        prog = [o for o in prog if not (o.kind == "barrier" and o.meta.get("hoist_wait"))]
    if cfg.x_nodma:
        prog = [o for o in prog if not (o.kind == "dma" and o.gap is not None and o.gap > 130)]
    if cfg.x_nowait:
        prog = [o for o in prog if not (o.kind == "wait" and "lgkm" in o.text and not o.meta.get("fixed"))]
    if cfg.walk:
        prog = add_walk(cfg, prog)
    return render(cfg, prog), info


Cfg.walk = True
Cfg.walk_win = 8
Cfg.base_off = 0x300
Cfg.spin_name = ""
Cfg.stamp_every = 1
Cfg.pkfrom = 7
Cfg.pk_age = 2
Cfg.pk_age2 = 4
Cfg.dma_light = True
Cfg.defer = 3
Cfg.softb0 = True
Cfg.padzero = False
Cfg.dma_win_early = 96
Cfg.early_n = 2
Cfg.light_from = 0
Cfg.xh = 1.0
Cfg.xh_len = 24
Cfg.first_order = "cccGGGG"
Cfg.xf_first = 0.5
Cfg.xf_nst = 2
Cfg.pairs = True
Cfg.touch = "V"
Cfg.dfhead = 2
Cfg.head_a3 = "Q2b"
Cfg.inter = True
Cfg.xpre = 1
Cfg.g_r0a = "Q1b@10:10"
Cfg.g_r0b = ""
Cfg.g_r1 = ""
Cfg.hstamps = False
Cfg.hmajor = True
Cfg.rord = "021"
Cfg.tgran = False
Cfg.x_nobar = False
Cfg.x_nodma = False
Cfg.x_nowait = False
Cfg.align12 = True
Cfg.ldv = "="
Cfg.st_from = 9
Cfg.st_last = ""
Cfg.kdouble = False
Cfg.spf = 1.5
Cfg.xf = 0.0
Cfg.xlead = 48
Cfg.dma_lead = 0
Cfg.head = "Q0a,K0,Q0b,K1,pf,K2,|,Q1a,K3"
Cfg.head_a = ""
Cfg.head_a2 = "Q2a"
Cfg.head_c = "K4"
Cfg.head_0 = "V0"
Cfg.half_r = ""
Cfg.dma_cap = 12
Cfg.dma_win = 96
Cfg.join_order = "cGcGGGc"
Cfg.p7_order = "cGGGG"
Cfg.stg_bar = 14
Cfg.stg_n = 2
Cfg.sp7 = 1.3333
Cfg.sp2 = 1.3333
Cfg.x15 = 3
Cfg.x15_lead = 16
Cfg.x8 = 6
Cfg.x9 = 2
Cfg.xmem = 2
Cfg.exp_age = 3
Cfg.q2_before = "K5"
Cfg.dma_sp_fast = 3
Cfg.tail_extra = 3
Cfg.p7_extra = 0
Cfg.stag2 = ""
Cfg.stag_sh = 6
Cfg.stagger = ""
Cfg.cls_shift = 6
Cfg.cls_mask = 0

if __name__ == "__main__":
    ap = argparse.ArgumentParser()
    ap.add_argument("-o", default="standalone__gqa_softmax__near_ridge.s")
    ap.add_argument("-v", action="store_true")
    ap.add_argument("opts", nargs="*")
    a = ap.parse_args()
    cfg = Cfg()
    cfg.verbose = a.v
    for kv in a.opts:
        k, v = kv.split("=", 1)
        if k == "spin":
            cfg.spin, cfg.spin_name, cfg.stamps = 1, v, True
            continue
        old = getattr(cfg, k)
        if isinstance(old, bool):
            v = v in ("1", "true", "True")
        elif isinstance(old, int):
            v = int(v)
        elif isinstance(old, float):
            v = float(v)
        setattr(cfg, k, v.replace("+", " ") if isinstance(v, str) else v)
    s, info = emit(cfg)
    open(a.o, "w").write(s)
    print(info, len(s))
```

```python
import sys, math, argparse, struct
sys.path.insert(0, __file__.rsplit("/", 1)[0])
from ir import *

KNAME = "standalone__gqa_softmax__near_ridge_kernel"
C_SCALE = math.log2(math.e) / 16.0


def f2u(x):
    return struct.unpack("<I", struct.pack("<f", x))[0]


class Cfg:
    ldq = "nt"
    ldkv = "nt"
    ldkv0 = ""
    st = "nt"
    lat = 6
    age = 5
    sready = 4
    stamps = False
    dbg = False
    spin = -1
    spinwg = -1
    codepf = True
    force_fallback = False
    dma_sp = 6
    preflush = True
    y = 2
    pk = True
    verbose = False


sQ, sK, sV, sO = 12, 16, 20, 24
sW1K = 28
sC = 29
sKoff = 30
sVoff = 31
sT0, sT1, sT2, sT3 = 32, 33, 34, 35
sW = 36
sThr = 37
sW8K = 38
sCls = 39
sFlag = 40
sDBG = 44
vKR = [Reg("v", 1, 1), Reg("v", 2, 1), Reg("v", 3, 1)]
vVR = [[Reg("v", 4 + 3 * h + w, 1) for w in range(3)] for h in range(2)]
vDK = [Reg("v", 10, 1), Reg("v", 11, 1)]
vDV = [Reg("v", 12 + a, 1) for a in range(4)]
vST = [[Reg("v", 10 + 2 * r + k, 1) for k in range(2)] for r in range(3)]
vL = [Reg("v", 16 + r, 1) for r in range(3)]
vST0 = Reg("v", 19, 1)
vNM = [Reg("v", 20 + 2 * r, 1) for r in range(3)]
vRL = vNM
vSR = Reg("v", 21, 1)
vSW = [Reg("v", 23, 1), Reg("v", 25, 1), Reg("v", 26, 1), Reg("v", 27, 1)]
vXT = [Reg("v", 28 + r, 1) for r in range(3)]
vQR = Reg("v", 31, 1)
NSB = 6
vS = [Reg("v", 32 + 4 * i, 4) for i in range(NSB)]
vP = [[[Reg("v", 56 + 24 * b + 8 * r + 4 * kc, 4) for kc in range(2)] for r in range(3)] for b in range(3)]
vT = Reg("v", 32, 12)
vX = Reg("v", 44, 2)
O = [[Reg("v", 128 + 4 * t, 4) for t in range(16)],
     [Reg("v", 192 + 4 * t, 4) for t in range(16)],
     [Reg("a", 4 * t, 4) for t in range(16)]]
preK = [[Reg("v", 128 + 32 * a + 4 * c, 4) for c in range(8)] for a in range(4)] + \
       [[Reg("a", base + 4 * c, 4) for c in range(8)] for base in (0, 32, 192, 224)]
Q = [[Reg("a", 64 + 32 * r + 4 * c, 4) for c in range(8)] for r in range(3)]
KF = [[Reg("a", 160 + 4 * c, 4) for c in range(8)], [Reg("a", 224 + 4 * c, 4) for c in range(8)]]
VFB = [192 + 8 * b for b in range(4)]

SLOT = 16384
STG = 528
FR = (0, 2, 3, 1)


def sn(i, n=1):
    return R("s", i, n)


def valu(text, reads=(), writes=(), tag=""):
    return Op(text, "valu", reads, writes, tag)


def salu(text, reads=(), writes=()):
    return Op(text, "salu", reads, writes)


def names(*regs):
    out = []
    for r in regs:
        out += r.names if isinstance(r, Reg) else [r]
    return out


def mfma(D, A, B, C=None):
    c = str(C) if C is not None else "0"
    op = Op(f"v_mfma_f32_16x16x32_bf16 {D}, {A}, {B}, {c}", "mfma",
            names(A, B) + (C.names if C is not None else []), D.names)
    op.meta["srcab"] = frozenset(names(A, B))
    op.meta["srcc"] = frozenset(C.names) if C is not None else frozenset()
    return op


def dma(vaddr, srd, soff, imm, pol):
    so = f"s{soff}" if soff is not None else "0"
    t = f"buffer_load_dwordx4 {vaddr}, s[{srd}:{srd + 3}], {so} offen"
    if imm:
        t += f" offset:{imm}"
    if pol:
        t += " " + pol
    t += " lds"
    return Op(t, "dma", vaddr.names + sn(srd, 4) + (sn(soff) if soff is not None else []) + ["m0"], [])


def set_m0(const, base=sW1K):
    return salu(f"s_add_u32 m0, s{base}, {const}", sn(base), ["m0", "scc"])


class Unit:
    def __init__(self, kind, n, cfg):
        self.kind, self.n, self.cfg = kind, n, cfg
        self.slot = None
        self.nslots = 2 if kind == "Q" else 1
        self.dmas = []
        self.reads = []
        self.vis = None
        self.name = f"{kind}{n}"

    def make_dmas(self, vq=None):
        cfg = self.cfg
        ops = []
        base = self.slot * SLOT
        src = self.n % 16
        pol = cfg.ldkv if self.kind == "K" or cfg.ldv == "=" else cfg.ldv
        if self.kind == "K":
            so = salu(f"s_mov_b32 s{sKoff}, {src * 16384}", [], sn(sKoff))
            for a in range(2):
                for half in range(2):
                    d = dma(vDK[a], sK, sKoff, half * 256, pol)
                    d.pre = [set_m0(base + a * 8192 + half * 4096 - half * 256)]
                    ops.append(d)
            ops[0].pre.insert(0, so)
        elif self.kind == "V":
            j, h = divmod(src, 2)
            so = salu(f"s_mov_b32 s{sVoff}, {j * 32768 + h * 256}", [], sn(sVoff))
            for a in range(4):
                d = dma(vDV[a], sV, sVoff, 0, pol)
                d.pre = [set_m0(base + a * 4096)]
                ops.append(d)
            ops[0].pre.insert(0, so)
        else:
            for half in range(2):
                for rg in range(4):
                    d = dma(vq[rg], sQ, None, half * 256, cfg.ldq)
                    d.pre = [set_m0(base + half * 4096 + rg * 1024 - half * 256, sW8K)]
                    ops.append(d)
        for d in ops:
            d.meta["unit"] = self
            d.meta["expect"] = [d.pre[-1]] + ([ops[0].pre[0]] if self.kind != "Q" else [])
        self.dmas = ops
        return ops


def flat_dmas(ops):
    out = []
    for d in ops:
        out += d.pre
        out.append(salu("s_nop 0"))
        out.append(d)
        d.pre = []
    return out


def xlane(op, x, tmp):
    o = []
    o.append(valu(f"v_mov_b32 {tmp}, {x}", x.names, tmp.names))
    o.append(valu(f"v_permlane32_swap_b32 {x}, {tmp}", names(x, tmp), names(x, tmp)))
    o.append(valu(f"{op} {x}, {x}, {tmp}", names(x, tmp), x.names))
    o.append(valu(f"v_mov_b32 {tmp}, {x}", x.names, tmp.names))
    o.append(valu(f"v_permlane16_swap_b32 {x}, {tmp}", names(x, tmp), names(x, tmp)))
    o.append(valu(f"{op} {x}, {x}, {tmp}", names(x, tmp), x.names))
    return o


class Stamps:
    def __init__(self, cfg):
        self.cfg = cfg
        self.list = []

    def __call__(self, name, real=False):
        cfg = self.cfg
        if not cfg.stamps:
            return []
        if cfg.spin != -1:
            if name != cfg.spin_name:
                return []
            return [Op("s_memrealtime s[48:49]", "salu")]
        k = len(self.list)
        assert 48 + 2 * k + 1 <= 101, "too many stamps"
        self.list.append((name, real))
        return [Op(f"{'s_memrealtime' if real else 's_memtime'} s[{48 + 2 * k}:{49 + 2 * k}]", "salu")]

    def finish(self):
        cfg = self.cfg
        o = []
        raw = lambda t: o.append(Op(t, "raw"))
        if not cfg.stamps:
            return o
        raw("s_waitcnt lgkmcnt(0)")
        if cfg.spin != -1:
            if cfg.spinwg >= 0:
                raw(f"s_cmp_lg_u32 s2, {cfg.spinwg}")
                raw("s_cbranch_scc1 L_end")
            o.append(Op("L_spin:", "label"))
            raw("s_memrealtime s[50:51]")
            raw("s_waitcnt lgkmcnt(0)")
            raw("s_sub_u32 s50, s50, s48")
            raw("s_cmp_lt_u32 s50, 5000")
            raw("s_cbranch_scc1 L_spin")
            return o
        raw("v_mov_b32 v40, 0")
        for k in range(len(self.list)):
            raw(f"v_writelane_b32 v40, s{48 + 2 * k}, {k}")
        raw(f"s_load_dwordx2 s[{sDBG}:{sDBG + 1}], s[0:1], 40")
        raw(f"s_mov_b32 s{sDBG + 2}, 0x1000000")
        raw(f"s_mov_b32 s{sDBG + 3}, 0x00020000")
        raw("s_lshl_b32 s48, s2, 8")
        raw("v_add_u32 v41, s48, v0")
        raw("v_lshlrev_b32 v41, 2, v41")
        raw("s_waitcnt lgkmcnt(0)")
        raw(f"buffer_store_dword v40, v41, s[{sDBG}:{sDBG + 3}], 0 offen")
        return o


def prologue(cfg, U, stamp):
    P = []
    A = P.append
    raw = lambda t: A(Op(t, "raw"))
    raw("s_cmp_ge_u32 s2, 256")
    raw("s_cbranch_scc1 L_end")
    raw("s_load_dwordx4 s[4:7], s[0:1], 0")
    raw("s_load_dwordx4 s[8:11], s[0:1], 16")
    P += stamp("start", True)
    t = vT
    lane, wv, common, cpos, f_w = t[0], t[1], t[2], t[3], t[4]
    if cfg.codepf:
        raw("s_getpc_b64 s[42:43]")
        A(Op("L_pfbase:", "label"))
        A(valu(f"v_lshlrev_b32 {t[10]}, 7, v0", ["v0"], t[10].names))
        A(Op(f"global_load_dword {vX[0]}, {t[10]}, s[42:43]", "vload", t[10].names, vX[0].names))
    A(valu(f"v_lshrrev_b32 {wv}, 6, v0", ["v0"], wv.names))
    A(valu(f"v_and_b32 {lane}, 63, v0", ["v0"], lane.names))
    A(valu(f"v_readfirstlane_b32 s{sW}, {wv}", wv.names, sn(sW)))
    A(salu(f"s_and_b32 s{sT0}, s2, 7", [], sn(sT0)))
    A(salu(f"s_lshr_b32 s{sT1}, s2, 5", [], sn(sT1)))
    A(salu(f"s_lshl3_add_u32 s{sT0}, s{sT1}, s{sT0}", [], sn(sT0)))
    A(salu(f"s_bfe_u32 s{sT1}, s2, 0x20003", [], sn(sT1)))
    A(salu(f"s_lshl2_add_u32 s{sT2}, s{sT0}, s{sT1}", [], sn(sT2)))
    A(salu(f"s_mul_i32 s{sT2}, s{sT2}, {184 * 512}", [], sn(sT2)))
    A(salu(f"s_lshl_b32 s{sT0}, s{sT0}, 18", [], sn(sT0)))
    A(valu(f"v_bfe_u32 {t[6]}, {lane}, 2, 2", lane.names, t[6].names))
    A(valu(f"v_lshrrev_b32 {t[5]}, 4, {lane}", lane.names, t[5].names))
    A(valu(f"v_lshlrev_b32 {common}, 9, {t[6]}", t[6].names, common.names))
    A(valu(f"v_lshl_add_u32 {common}, {t[5]}, 6, {common}", names(t[5], common), common.names))
    A(valu(f"v_and_b32 {cpos}, 3, {lane}", lane.names, cpos.names))
    A(salu(f"s_lshl_b32 s{sT1}, s{sW}, 1", sn(sW), sn(sT1)))
    A(salu(f"s_lshr_b32 s{sT1}, 0x78, s{sT1}", [], sn(sT1)))
    A(salu(f"s_and_b32 s{sT1}, s{sT1}, 3", [], sn(sT1)))
    A(salu(f"s_lshl_b32 s{sW1K}, s{sW}, 10", sn(sW), sn(sW1K)))
    A(salu(f"s_lshl_b32 s{sW8K}, s{sW}, 13", sn(sW), sn(sW8K)))
    A(valu(f"v_xor_b32 {f_w}, s{sT1}, {cpos}", cpos.names, f_w.names))
    A(valu(f"v_lshl_add_u32 {t[7]}, {wv}, 11, {common}", names(wv, common), t[7].names))
    A(valu(f"v_lshl_add_u32 {vDK[0]}, {f_w}, 4, {t[7]}", names(f_w, t[7]), vDK[0].names))
    A(valu(f"v_add_u32 {vDK[1]}, 8192, {vDK[0]}", vDK[0].names, vDK[1].names))
    vq = [[Reg("v", 104 + 4 * r + rg, 1) for rg in range(4)] for r in range(3)]
    qb = Reg("v", 116, 1)
    A(salu(f"s_mov_b32 s{sT3}, {48 * 512}", [], sn(sT3)))
    A(valu(f"v_mad_u32_u24 {qb}, {wv}, s{sT3}, {common}", names(wv, common), qb.names))
    for rg in range(4):
        x = Reg("v", 117, 1)
        A(valu(f"v_xor_b32 {x}, {FR[rg]}, {cpos}", cpos.names, x.names))
        A(valu(f"v_lshl_add_u32 {vq[0][rg]}, {x}, 4, {qb}", names(x, qb), vq[0][rg].names))
        if rg:
            A(valu(f"v_add_u32 {vq[0][rg]}, {rg * 2048}, {vq[0][rg]}", vq[0][rg].names, vq[0][rg].names))
    A(Op("s_waitcnt lgkmcnt(0)", "wait", meta={"fixed": True}))
    P += stamp("karg", True)

    def srd(srd, p, off, nrec):
        A(salu(f"s_add_u32 s{srd}, s{p}, s{off}", [], sn(srd)))
        A(salu(f"s_addc_u32 s{srd + 1}, s{p + 1}, 0", [], sn(srd + 1)))
        A(salu(f"s_mov_b32 s{srd + 2}, {nrec}", [], sn(srd + 2)))
        A(salu(f"s_mov_b32 s{srd + 3}, 0x00020000", [], sn(srd + 3)))

    def vaddr():
        A(valu(f"v_and_b32 {t[9]}, 1, {wv}", wv.names, t[9].names))
        A(valu(f"v_lshlrev_b32 {t[9]}, 1, {t[9]}", t[9].names, t[9].names))
        A(valu(f"v_xor_b32 {t[9]}, {t[9]}, {cpos}", names(t[9], cpos), t[9].names))
        A(valu(f"v_lshl_add_u32 {vDV[0]}, {t[9]}, 4, {t[7]}", names(t[9], t[7]), vDV[0].names))
        for a in range(1, 4):
            A(valu(f"v_add_u32 {vDV[a]}, {8192 * a}, {vDV[0]}", vDV[0].names, vDV[a].names))

    def codepf2():
        if cfg.codepf:
            A(valu(f"v_add_u32 {t[10]}, 32768, {t[10]}", t[10].names, t[10].names))
            A(valu(f"v_min_u32 {t[10]}, L_mainend - L_pfbase, {t[10]}", t[10].names, t[10].names))
            A(Op(f"global_load_dword {vX[1]}, {t[10]}, s[42:43]", "vload", t[10].names, vX[1].names))

    def cwait(k):
        raw(f"s_cmp_lt_u32 s{sCls}, {k}")
        raw(f"s_cbranch_scc1 L_nw{k}")
        raw("s_waitcnt vmcnt(0)")
        A(Op(f"L_nw{k}:", "label"))

    srd(sK, 6, sT0, 262144)
    srd(sQ, 4, sT2, 184 * 512)
    if cfg.stag2:
        raw(f"s_lshr_b32 s{sCls}, s2, 5")
        raw(f"s_lshl_b32 s{sCls}, s{sCls}, 2")
        raw(f"s_lshr_b32 s{sCls}, {cfg.stag2}, s{sCls}")
        raw(f"s_and_b32 s{sCls}, s{sCls}, 15")
        raw(f"s_cbranch_scc0 L_go")
        raw(f"v_lshlrev_b32 {t[9]}, {cfg.stag_sh}, v0")
        raw(f"s_mov_b32 s{sKoff}, 0")
        A(Op("L_warm:", "label"))
        raw(f"buffer_load_dword {t[8]}, {t[9]}, s[{sK}:{sK + 3}], s{sKoff} offen {cfg.ldkv}")
        raw(f"s_add_u32 s{sKoff}, s{sKoff}, {256 << cfg.stag_sh}")
        raw(f"s_sub_u32 s{sCls}, s{sCls}, 1")
        raw("s_waitcnt vmcnt(0)")
        raw(f"s_cmp_lg_u32 s{sCls}, 0")
        raw("s_cbranch_scc1 L_warm")
        A(Op("L_go:", "label"))
    seq = cfg.head.split(",")

    def issue(x):
        if x == "pf":
            codepf2()
        elif x == "walk":
            if cfg.walk:
                A(Op("WALK", "label"))
        else:
            if x[:2] in ("Q1", "Q2"):
                qaddr12()
            P.extend(head_dmas(U, x, vq))

    done12 = []

    def qaddr12():
        if not done12:
            done12.append(1)
            for r in (1, 2):
                for rg in range(4):
                    A(valu(f"v_add_u32 {vq[r][rg]}, {8192 * r}, {vq[0][rg]}", vq[0][rg].names, vq[r][rg].names))

    cut = seq.index("|")
    for x in seq[:cut]:
        issue(x)
    srd(sV, 8, sT0, 262144)
    srd(sO, 10, sT2, 184 * 512)
    for i, ch in enumerate(cfg.touch):
        d = Reg("v", 46 + i, 1)
        sr = {"V": sV, "O": sO}[ch]
        A(Op(f"buffer_load_dword {d}, off, s[{sr}:{sr + 3}], 0 nt", "vload", sn(sr, 4), d.names))
    vaddr()
    g = t[5]
    A(valu(f"v_lshlrev_b32 {t[10]}, 1, {t[6]}", t[6].names, t[10].names))
    A(valu(f"v_lshrrev_b32 {t[10]}, {t[10]}, 0x78".replace("0x78", str(t[11])), names(t[10], t[11]), t[10].names))
    P.insert(len(P) - 1, valu(f"v_mov_b32 {t[11]}, 0x78", [], t[11].names))
    A(valu(f"v_and_b32 {t[10]}, 3, {t[10]}", t[10].names, t[10].names))
    A(valu(f"v_xor_b32 {t[10]}, {t[10]}, {g}", names(t[10], g), t[10].names))
    A(valu(f"v_lshlrev_b32 {t[10]}, 4, {t[10]}", t[10].names, t[10].names))
    A(valu(f"v_lshl_add_u32 {t[10]}, {t[6]}, 10, {t[10]}", names(t[6], t[10]), t[10].names))
    A(valu(f"v_lshl_add_u32 {vKR[0]}, {cpos}, 6, {t[10]}", names(cpos, t[10]), vKR[0].names))
    A(valu(f"v_add_u32 {vKR[1]}, 0x10000, {vKR[0]}", vKR[0].names, vKR[1].names))
    A(valu(f"v_add_u32 {vKR[2]}, 0x20000, {vKR[0]}", vKR[0].names, vKR[2].names))
    A(valu(f"v_lshlrev_b32 {t[10]}, 10, {g}", g.names, t[10].names))
    A(valu(f"v_lshl_add_u32 {t[10]}, {t[6]}, 6, {t[10]}", names(t[6], t[10]), t[10].names))
    A(valu(f"v_lshl_add_u32 {t[10]}, {cpos}, 3, {t[10]}", names(cpos, t[10]), t[10].names))
    A(valu(f"v_and_b32 {t[11]}, 1, {g}", g.names, t[11].names))
    A(valu(f"v_lshl_add_u32 {vVR[0][0]}, {t[11]}, 5, {t[10]}", names(t[11], t[10]), vVR[0][0].names))
    A(valu(f"v_xor_b32 {vVR[1][0]}, 32, {vVR[0][0]}", vVR[0][0].names, vVR[1][0].names))
    for h in range(2):
        for w in (1, 2):
            A(valu(f"v_add_u32 {vVR[h][w]}, {w * 65536}, {vVR[h][0]}", vVR[h][0].names, vVR[h][w].names))
    if cfg.tgran:
        n15 = t[11]
        x0, x1, x2 = Reg("v", 118, 1), Reg("v", 119, 1), Reg("v", 120, 1)
        A(valu(f"v_and_b32 {n15}, 15, {lane}", lane.names, n15.names))
        A(valu(f"v_lshrrev_b32 {x1}, 2, {lane}", lane.names, x1.names))
        A(valu(f"v_mad_u32_u24 {t[10]}, {wv}, 48, {x1}", names(wv, x1), t[10].names))
        A(valu(f"v_lshlrev_b32 {t[10]}, 9, {t[10]}", t[10].names, t[10].names))
        A(valu(f"v_lshl_add_u32 {vST0}, {cpos}, 4, {t[10]}", names(cpos, t[10]), vST0.names))
        A(salu(f"s_mul_i32 s{sT3}, s{sW}, {cfg.stg_wave}", sn(sW), sn(sT3)))
        A(salu(f"s_add_u32 s{sT3}, s{sT3}, {cfg.stg_base}", [], sn(sT3)))
        A(valu(f"v_bfe_u32 {x2}, {lane}, 3, 2", lane.names, x2.names))
        A(valu(f"v_xor_b32 {x2}, {x2}, {cpos}", names(x2, cpos), x2.names))
        A(valu(f"v_lshlrev_b32 {x2}, 4, {x2}", x2.names, x2.names))
        A(valu(f"v_lshl_add_u32 {x2}, {x1}, 6, {x2}", names(x1, x2), x2.names))
        A(valu(f"v_add_u32 {vSR}, s{sT3}, {x2}", x2.names, vSR.names))
        A(valu(f"v_bfe_u32 {x0}, {lane}, 1, 2", lane.names, x0.names))
        A(valu(f"v_lshrrev_b32 {x1}, 1, {g}", g.names, x1.names))
        A(valu(f"v_xor_b32 {x0}, {x0}, {x1}", names(x0, x1), x0.names))
        A(valu(f"v_lshlrev_b32 {x0}, 4, {x0}", x0.names, x0.names))
        A(valu(f"v_lshl_add_u32 {x0}, {n15}, 6, {x0}", names(n15, x0), x0.names))
        A(valu(f"v_and_b32 {x1}, 1, {g}", g.names, x1.names))
        A(valu(f"v_lshl_add_u32 {x0}, {x1}, 3, {x0}", names(x1, x0), x0.names))
        A(valu(f"v_add_u32 {vSW[0]}, s{sT3}, {x0}", x0.names, vSW[0].names))
        A(valu(f"v_xor_b32 {vSW[1]}, 32, {vSW[0]}", vSW[0].names, vSW[1].names))
    else:
        n15 = t[11]
        x0, x1, x2 = Reg("v", 118, 1), Reg("v", 119, 1), Reg("v", 120, 1)
        A(valu(f"v_and_b32 {n15}, 15, {lane}", lane.names, n15.names))
        A(valu(f"v_lshrrev_b32 {x1}, 3, {lane}", lane.names, x1.names))
        A(valu(f"v_and_b32 {x2}, 7, {lane}", lane.names, x2.names))
        A(valu(f"v_mad_u32_u24 {t[10]}, {wv}, 48, {x1}", names(wv, x1), t[10].names))
        A(valu(f"v_lshlrev_b32 {t[10]}, 9, {t[10]}", t[10].names, t[10].names))
        A(valu(f"v_lshl_add_u32 {vST0}, {x2}, 4, {t[10]}", names(x2, t[10]), vST0.names))
        A(salu(f"s_mul_i32 s{sT3}, s{sW}, {cfg.stg_wave}", sn(sW), sn(sT3)))
        A(salu(f"s_add_u32 s{sT3}, s{sT3}, {cfg.stg_base}", [], sn(sT3)))
        A(valu(f"v_xor_b32 {t[10]}, {x2}, {x1}", names(x2, x1), t[10].names))
        A(valu(f"v_lshlrev_b32 {t[10]}, 4, {t[10]}", t[10].names, t[10].names))
        A(valu(f"v_lshl_add_u32 {t[10]}, {x1}, 7, {t[10]}", names(x1, t[10]), t[10].names))
        A(valu(f"v_add_u32 {vSR}, s{sT3}, {t[10]}", t[10].names, vSR.names))
        A(valu(f"v_lshrrev_b32 {x1}, 1, {g}", g.names, x1.names))
        A(valu(f"v_xor_b32 {x0}, {x2}, {x1}", names(x2, x1), x0.names))
        A(valu(f"v_lshlrev_b32 {x0}, 4, {x0}", x0.names, x0.names))
        A(valu(f"v_lshl_add_u32 {x0}, {n15}, 7, {x0}", names(n15, x0), x0.names))
        A(valu(f"v_and_b32 {x1}, 1, {g}", g.names, x1.names))
        A(valu(f"v_lshl_add_u32 {x0}, {x1}, 3, {x0}", names(x1, x0), x0.names))
        A(valu(f"v_add_u32 {x0}, s{sT3}, {x0}", x0.names, x0.names))
        for i in range(4):
            A(valu(f"v_xor_b32 {vSW[i]}, {32 * i}, {x0}", x0.names, vSW[i].names))
    A(valu(f"v_add_u32 {vQR}, s{sW8K}, {vKR[1]}", vKR[1].names + sn(sW8K), vQR.names))
    A(salu(f"s_mov_b32 s{sC}, {f2u(C_SCALE):#x}", [], sn(sC)))
    A(salu(f"s_mov_b32 s{sThr}, {f2u(2.0 ** 64 if not cfg.force_fallback else 1.0):#x}", [], sn(sThr)))
    A(salu(f"s_mov_b64 s[{sFlag}:{sFlag + 1}], 0", [], sn(sFlag, 2)))
    for r in range(3):
        A(valu(f"v_mov_b32 {vL[r]}, 0", [], vL[r].names))
    if cfg.padzero:
        A(valu(f"v_and_b32 {t[10]}, 0xc8, v0", ["v0"], t[10].names))
        A(valu(f"v_cmp_eq_u32 vcc, 0xc8, {t[10]}", t[10].names, ["svcc"]))
        A(valu(f"v_mov_b32 {t[10]}, {f2u(-1e30):#x}", [], t[10].names))
        A(valu(f"v_cndmask_b32 {vL[2]}, {vL[2]}, {t[10]}, vcc", names(vL[2], t[10]) + ["svcc"], vL[2].names))
    qaddr12()
    for x in seq[cut + 1:]:
        issue(x)
    P += stamp("issued", True)
    if cfg.walk and "walk" not in seq:
        A(Op("WALK", "label"))
    return P, vq


def head_dmas(U, x, vq):
    name, part = (x[:2], x[2:]) if x[0] == "Q" else (x, "")
    u = U[name]
    if not u.dmas:
        u.make_dmas(vq[u.n]) if u.kind == "Q" else u.make_dmas()
    ops = u.dmas if not part else (u.dmas[:4] if part == "a" else u.dmas[4:])
    return flat_dmas(ops)


def q_reads(u):
    ops = []
    r = u.n
    base = u.slot * SLOT - 65536
    pre = []
    addr = vQR
    if base >= 65536:
        addr = vXT[2]
        pre.append(valu(f"v_add_u32 {addr}, 0x10000, {vQR}", vQR.names, addr.names))
        base -= 65536
    for c in range(8):
        off = base + (c >> 2) * 4096 + (c & 3) * 256
        o = Op(f"ds_read_b128 {Q[r][c]}, {addr} offset:{off}", "ds", addr.names, Q[r][c].names)
        o.meta["qhalf"] = c >> 2
        o.meta["unit"] = u
        u.reads.append(o)
        ops.append(o)
    return pre, ops


def build(cfg):
    act = lambda s: (0, 1, 2)
    stamp = Stamps(cfg)
    U = {}
    for n in range(16):
        U[f"K{n}"] = Unit("K", n, cfg)
        U[f"V{n}"] = Unit("V", n, cfg)
    for r in range(3):
        U[f"Q{r}"] = Unit("Q", r, cfg)
    U["K0"].slot, U["K1"].slot, U["K2"].slot, U["K3"].slot = 0, 1, 2, 3
    U["Q0"].slot, U["Q1"].slot, U["Q2"].slot = 4, 6, 8
    cfg.stg_base, cfg.stg_wave = 0, 4096 * cfg.stg_n

    pro, vqd = prologue(cfg, U, stamp)

    M = []
    fixed = {}
    dsq = []
    vq = []
    sbuf_last = {}
    spool = {"bufs": list(vS) + [Reg("v", vP[2][0][0].lo + 4 * i, 4) for i in range(3, 6)], "ctr": 0}
    U["K4"].slot, U["V0"].slot = 4, 5
    hd = lambda lst: [o for x in lst.split(",") if x for o in head_dmas(U, x, vqd)]
    guards = []
    Pcvt = {}
    negm_ready = {}
    preg_free = {}
    last_add = {}
    bars = []

    def Preg(s, r):
        return vP[s % 3][r]

    def softmax_ops(s, r, a, S, ready_gap):
        dst = Preg(s, r)[a >> 1]
        fm, ex, ad, cv = [], [], [], []
        for i in range(4):
            o = valu(f"v_fma_f32 {S[i]}, {S[i]}, s{sC}, {vNM[r]}", names(S[i], vNM[r]) + sn(sC), S[i].names)
            o.earliest = ready_gap
            o.deps.append((negm_ready[r], 0))
            fm.append(o)
        for i in range(4):
            o = Op(f"v_exp_f32 {S[i]}, {S[i]}", "trans", S[i].names, S[i].names)
            o.deps.append((fm[i], 0))
            ex.append(o)
        for i in range(4):
            o = valu(f"v_add_f32 {vL[r]}, {vL[r]}, {S[i]}", names(vL[r], S[i]), vL[r].names)
            o.deps.append((ex[i], 1))
            prev_add = ad[-1] if ad else last_add.get(r)
            if prev_add is not None:
                o.deps.append((prev_add, 0))
            ad.append(o)
        for k in range(2):
            d = dst[2 * (a & 1) + k]
            o = valu(f"v_cvt_pk_bf16_f32 {d}, {S[2 * k]}, {S[2 * k + 1]}", names(S[2 * k], S[2 * k + 1]), d.names)
            o.deps += [(ex[2 * k], 1), (ex[2 * k + 1], 1)]
            o.earliest = preg_free.get(dst.lo, -1)
            if dst.lo in sbuf_last:
                o.deps += [(x, 0) for x in sbuf_last[dst.lo]]
            cv.append(o)
        Pcvt[(s, r, a)] = cv
        vq.extend([fm[0], fm[1], ex[0], fm[2], ex[1], fm[3], ad[0], ex[2], ad[1], cv[0], ex[3], ad[2], ad[3], cv[1]])
        last_add[r] = ad[3]
        return ad + cv

    held = {}
    noflush = set()

    halfS = {}

    def chain(s, r, a, frags, part=None):
        start = len(M)
        if part == 1:
            S = halfS[(s, r, a)]
            si = S.lo
        else:
            S = spool["bufs"][spool["ctr"] % len(spool["bufs"])]
            spool["ctr"] += 1
            while sbuf_last.get(S.lo) == "held":
                S = spool["bufs"][spool["ctr"] % len(spool["bufs"])]
                spool["ctr"] += 1
            si = S.lo
            if sbuf_last.get(si):
                guards.append((start - 1, sbuf_last[si]))
        for c in range(8) if part is None else range(4 * part, 4 * part + 4):
            M.append(mfma(S, frags[c], Q[r][c], S if c else None))
        if part == 0:
            halfS[(s, r, a)] = S
            sbuf_last[si] = "held"
            return start
        end = len(M) - 1
        if r not in negm_ready:
            held.setdefault(r, []).append((si, S, end, a))
            sbuf_last[si] = "held"
            if len(held[r]) == 2:
                S0, S1 = held[r][0][1], held[r][1][1]
                m, tmp = vNM[r], vXT[r]
                ops = [valu(f"v_max3_f32 {m}, {S0[0]}, {S0[1]}, {S0[2]}", names(S0[0], S0[1], S0[2]), m.names),
                       valu(f"v_max3_f32 {tmp}, {S0[3]}, {S1[0]}, {S1[1]}", names(S0[3], S1[0], S1[1]), tmp.names),
                       valu(f"v_max3_f32 {m}, {m}, {S1[2]}, {S1[3]}", names(m, S1[2], S1[3]), m.names),
                       valu(f"v_max_f32 {m}, {m}, {tmp}", names(m, tmp), m.names)]
                ops += xlane("v_max_f32", m, tmp)
                if r == 2 and cfg.padzero:
                    ops.append(valu(f"v_fma_f32 {m}, -{m}, s{sC}, {vL[2]}", names(m, vL[2]) + sn(sC), m.names))
                else:
                    ops.append(valu(f"v_mul_f32 {m}, {f2u(-C_SCALE):#x}, {m}", m.names, m.names))
                prev = None
                for o in ops:
                    o.earliest = end + cfg.sready
                    if prev is not None:
                        o.deps.append((prev, 1 if "permlane" in o.text else 0))
                    prev = o
                vq.extend(ops)
                negm_ready[r] = ops[-1]
                for (si2, S2, end2, a2) in held[r]:
                    sbuf_last[si2] = softmax_ops(s, r, a2, S2, end2 + cfg.sready)
        else:
            sbuf_last[si] = softmax_ops(s, r, a, S, end + cfg.sready)
        return start

    afree = {}
    touched = set()
    vpool = {"bufs": list(VFB), "ctr": 0}

    def group(steps, t, smajor=False):
        base = vpool["bufs"][vpool["ctr"] % len(vpool["bufs"])]
        vpool["ctr"] += 1
        tt = t & 7
        start = len(M)
        frs = []
        for i, s in enumerate(steps):
            u = U[f"V{2 * s + (t >> 3)}"]
            for kc in range(2):
                F = Reg("a", base + 8 * i + 4 * kc, 4)
                frs.append((s, kc, F))
                for k in range(2):
                    a = 2 * kc + k
                    dsq.append(dict(kind="V", dst=F[2 * k:2 * k + 2], h=tt & 1, u=u, off=a * 4096 + (tt >> 1) * 256,
                                    cons=start + 2 * i + kc, free=afree.get(F.lo, -1)))
        seq = [(r, x) for r in act(steps[0]) for x in frs]
        if smajor:
            seq = [(r, x) for s0 in steps for r in act(s0) for x in frs if x[0] == s0]
            for d in dsq[-4 * len(steps):]:
                i = d["cons"] - start
                d["cons"] = start + 6 * (i >> 1) + (i & 1)
        for (r, (s, kc, F)) in seq:
            if True:
                C = O[r][t] if (r, t) in touched else None
                touched.add((r, t))
                P_ = Preg(s, r)[kc]
                M.append(mfma(O[r][t], F, P_, C))
                guards.append((len(M) - 3, Pcvt[(s, r, 2 * kc)] + Pcvt[(s, r, 2 * kc + 1)]))
                preg_free[P_.lo] = len(M) - 1
                afree[F.lo] = len(M) - 1
        return len(M) - 1

    pair_end = {}

    def group_pair(steps, ta, tb, rorder, smajor=False):
        start = len(M)
        frs = []
        for j, t in enumerate((ta, tb)):
            base = vpool["bufs"][vpool["ctr"] % len(vpool["bufs"])]
            vpool["ctr"] += 1
            for i, s in enumerate(steps):
                for kc in range(2):
                    frs.append((t, s, kc, Reg("a", base + 8 * i + 4 * kc, 4)))
        first = sorted(frs, key=lambda x: (x[1] == steps[-1], x[0], x[1], x[2])) if smajor else frs
        for i, (t, s, kc, F) in enumerate(first):
            u = U[f"V{2 * s + (t >> 3)}"]
            tt = t & 7
            for k in range(2):
                dsq.append(dict(kind="V", dst=F[2 * k:2 * k + 2], h=tt & 1, u=u, off=(2 * kc + k) * 4096 + (tt >> 1) * 256,
                                cons=start + i, free=afree.get(F.lo, -1)))
        for n_, r in enumerate(rorder):
            for (t, s, kc, F) in (first if n_ == 0 else frs):
                P_ = Preg(s, r)[kc]
                M.append(mfma(O[r][t], F, P_, O[r][t]))
                guards.append((len(M) - 3, Pcvt[(s, r, 2 * kc)] + Pcvt[(s, r, 2 * kc + 1)]))
                afree[F.lo] = len(M) - 1
            pair_end[(r, ta >> 1)] = len(M) - 1

    def barrier(name, gap, hoist):
        o = Op("s_barrier", "barrier")
        o.meta.update(need_vm=[], need_lgkm=[], name=name, hoist_wait=hoist, units=[])
        o.gap = gap
        bars.append(o)
        return o

    def prek_reads(lo, hi):
        ops = []
        for a in range(lo, hi):
            u = U[f"K{a >> 1}"]
            for c in range(8):
                off = u.slot * SLOT + (a & 1) * 8192 + (c >> 2) * 4096 + (c & 3) * 256
                o = Op(f"ds_read_b128 {preK[a][c]}, {vKR[0]} offset:{off}", "ds", vKR[0].names, preK[a][c].names)
                u.reads.append(o)
                ops.append(o)
        return ops

    blk = []
    ba = barrier("a", -1, False)
    ba.meta["units"] = [U["K0"], U["K1"], U["Q0"]]
    U["K0"].vis = U["K1"].vis = U["Q0"].vis = ba
    blk.append(ba)
    blk += stamp("K0Q0", True)
    pre_, q0 = q_reads(U["Q0"])
    prek = prek_reads(0, 4)
    hs = lambda n: stamp(n, True) if cfg.hstamps else []
    pre_ds = {}
    pre_dma = {}

    def gap_dmas(spec, g0):
        for item in spec.split(","):
            if not item:
                continue
            x, pos = item.split("@")
            first, step = (int(v) for v in pos.split(":"))
            name, part = (x[:2], x[2:]) if x[0] == "Q" else (x, "")
            u = U[name]
            if not u.dmas:
                u.make_dmas(vqd[u.n]) if u.kind == "Q" else u.make_dmas()
            ops = u.dmas if not part else (u.dmas[:4] if part == "a" else u.dmas[4:])
            for i, d in enumerate(ops):
                g = g0 + first + i * step
                assert g not in pre_dma
                pre_dma[g] = d
                d.gap = g

    if cfg.inter:
        q_first = [x for pair in zip(q0, prek[:8]) for x in pair]
        blk += pre_ + q_first + hd(cfg.head_a) + hs("hA")
        for i, o in enumerate(prek[8:]):
            pre_ds[i] = o
        gap_dmas(cfg.g_r0a, 0)
    else:
        blk += pre_ + q0 + prek[:8] + hd(cfg.head_a) + hs("hA") + prek[8:]
    fixed[-1] = blk
    sub_order = (0, 1, 2, 3, 6, 7, 4, 5)
    allreads = q0 + prek
    kprev = {}
    if cfg.dfhead:
        def mark():
            for o in vq:
                o.meta.setdefault("pre", len(M) - 1)

        def run(r, subs, part):
            for a in subs:
                chain(a >> 2, r, a & 3, preK[a], part)
                for c in range(8):
                    if preK[a][c].f == "a":
                        afree[preK[a][c].lo] = len(M) - 1
            mark()

        QR = {}
        for r in (1, 2):
            u = U[f"Q{r}"]
            QR[r] = q_reads(u)
            for o in QR[r][1]:
                o.meta["need_vm_unit"] = (u, o.meta["qhalf"])
            allreads += QR[r][1] if r == 1 else []
        if cfg.dfhead == 2:
            def kbar(name, unit, lo, pre_blk, gspec):
                b = barrier(name, len(M) - 1, False)
                b.meta["units"] = [U[unit]]
                b.meta["need_lgkm"] = list(q0)
                U[unit].vis = b
                rd = prek_reads(lo, lo + 2)
                allreads.extend(rd)
                fixed[len(M) - 1] = pre_blk + [b] + hs(name) + rd[:8]
                for j, o in enumerate(rd[8:]):
                    pre_ds[len(M) + j] = o
                gap_dmas(gspec, len(M))
            run(0, (0, 1, 2), None)
            noflush.add(len(M) - 1)
            b = barrier("a2", len(M) - 1, False)
            b.meta["units"] = [U["K2"]]
            b.meta["need_lgkm"] = list(q0)
            U["K2"].vis = b
            rd = prek_reads(4, 6)
            allreads.extend(rd)
            fixed[len(M) - 1] = [b] + hs("a2")
            for j, o in enumerate(rd):
                pre_ds[len(M) + j] = o
            run(0, (3, 4, 5), None)
            fixed[len(M) - 1] = hs("t0c") + hd(cfg.head_a2) + QR[1][0] + QR[1][1][:4] + hs("qa1")
            if "1" in cfg.nofl:
                noflush.add(len(M) - 1)
            lent = [vP[0][2][0], vP[0][2][1], vP[1][2][0], vP[1][2][1]] if cfg.nofl else []
            keep = spool["bufs"]
            spool["bufs"] = lent
            c0 = spool["ctr"]
            spool["ctr"] = 0
            run(1, (0, 1, 2, 3)[:len(lent)], 0)
            spool["bufs"] = keep
            spool["ctr"] = c0
            run(1, (0, 1, 2, 3, 4, 5)[len(lent):], 0)
            kbar("a3", "K3", 6, hs("w2") + hd(cfg.head_a3), cfg.g_r0b)
            spool["bufs"] += [Reg("v", vP[2][0][0].lo + 4 * i, 4) for i in range(3)]
            run(0, (6, 7), None)
            run(1, (6, 7), 0)
        else:
            run(0, (0, 1, 2, 3), None)
            fixed[len(M) - 1] = hs("t0c") + QR[1][0] + QR[1][1][:4] + hs("qa1")
            run(1, (0, 1, 2, 3), 0)
            b2 = barrier("a2", len(M) - 1, False)
            b2.meta["units"] = [U["K2"], U["K3"]]
            b2.meta["need_lgkm"] = list(q0)
            U["K2"].vis = U["K3"].vis = b2
            k2 = prek_reads(6, 8) + prek_reads(4, 6)
            allreads += k2
            fixed[len(M) - 1] = hs("w2") + hd(cfg.head_a2) + hs("hA2") + [b2] + hs("a2") + k2[:8]
            for j, o in enumerate(k2[8:]):
                pre_ds[len(M) + j] = o
            gap_dmas(cfg.g_r0b, len(M))
            spool["bufs"] += [Reg("v", vP[2][0][0].lo + 4 * i, 4) for i in range(3)]
            run(0, (6, 7, 4, 5), None)
            run(1, (6, 7, 4, 5), 0)
        bb = barrier("c", len(M) - 1, False)
        bb.meta["need_lgkm"] = list(allreads)
        fixed[len(M) - 1] = hs("w3") + hd(cfg.head_c) + QR[1][1][4:] + [bb] + stamp("Q1", True)
        if "3" in cfg.nofl:
            noflush.add(len(M) - 1)
        gap_dmas(cfg.g_r1, len(M))
        run(1, sub_order, 1)
        allreads += QR[2][1]
        fixed[len(M) - 1] = hs("w4") + hd(cfg.head_0) + QR[2][0] + QR[2][1][:4] + hs("qa2")
        if "2" in cfg.nofl:
            noflush.add(len(M) - 1)
        run(2, sub_order, 0)
        b0 = Op("", "label")
        b0.gap = len(M) - 1
        fixed[len(M) - 1] = hs("w5") + QR[2][1][4:] + stamp("Q2", True)
        run(2, sub_order, 1)
    for r in range(3 if not cfg.dfhead else 0):
        split = str(r) in cfg.half_r
        if r:
            u = U[f"Q{r}"]
            pre_, qr = q_reads(u)
            for o in qr:
                o.meta["need_vm_unit"] = (u, o.meta["qhalf"])
            lists = (cfg.head_c if r == 1 else cfg.head_0).split("/")
            if r == 2 or split:
                extra_s = [Reg("v", vP[2][0][0].lo + 4 * i, 4) for i in range(3)]
                if r == 2 and extra_s[0].lo not in [x.lo for x in spool["bufs"]]:
                    spool["bufs"] += extra_s
            allreads += qr
            if split:
                fixed[len(M) - 1] = hs(f"fl{r}") + hd(lists[0]) + hs(f"d{r}") + pre_ + qr[:4] + hs(f"qa{r}")
                for a in sub_order:
                    chain(a >> 2, r, a & 3, preK[a], 0)
                blk = hs(f"pa{r}") + hd(lists[1] if len(lists) > 1 else "") + qr[4:]
                noflush.add(len(M) - 1)
            else:
                blk = hs(f"fl{r}") + hd(",".join(lists)) + hs(f"d{r}") + pre_ + qr
            if r == 2 and cfg.softb0:
                bb = Op("", "label")
                bb.gap = len(M) - 1
                b0 = bb
            else:
                bb = barrier("c" if r == 1 else 0, len(M) - 1, False)
                bb.meta["need_lgkm"] = list(allreads)
                blk.append(bb)
            blk += stamp(f"Q{r}", True)
            fixed[len(M) - 1] = blk
            if r == 1:
                gap_dmas(cfg.g_r1, len(M))
        for i, a in enumerate(sub_order):
            if r == 0 and i == 4:
                b2 = barrier("a2", len(M) - 1, False)
                b2.meta["units"] = [U["K2"], U["K3"]]
                b2.meta["need_lgkm"] = list(q0)
                U["K2"].vis = U["K3"].vis = b2
                k2 = prek_reads(6, 8) + prek_reads(4, 6)
                allreads += k2
                if cfg.inter:
                    fixed[len(M) - 1] = hs("t0c") + hd(cfg.head_a2) + hs("hA2") + [b2] + hs("a2") + k2[:8]
                    for j, o in enumerate(k2[8:]):
                        pre_ds[len(M) + j] = o
                    gap_dmas(cfg.g_r0b, len(M))
                    for o in vq:
                        o.meta.setdefault("pre", len(M) - 1)
                else:
                    fixed[len(M) - 1] = hs("t0c") + [b2] + hs("a2") + k2[:8] + hd(cfg.head_a2) + hs("hA2") + k2[8:]
                    noflush.add(len(M) - 1)
            st = chain(a >> 2, r, a & 3, preK[a], 1 if (r and split) else None)
            for c in range(8):
                if preK[a][c].f == "a":
                    afree[preK[a][c].lo] = len(M) - 1 if split else st + c
        for o in vq:
            o.meta.setdefault("pre", len(M) - 1)
    if not cfg.softb0:
        b0 = bars[-1]
        b0.meta["units"] = [U["K4"]]
        U["K4"].vis = b0
    spool["bufs"] = list(vS)
    spool["ctr"] = 0

    start_int = {}
    grp_end = {}
    pub = []
    if cfg.softb0:
        pub.append((0, [U["K4"]]))

    def kchains(s, a, kb):
        u = U[f"K{2 * s + (a >> 1)}"]
        state = {"first": True}

        def emit(r):
            st = len(M)
            if state["first"]:
                for c in range(8):
                    dsq.append(dict(kind="K", dst=KF[kb][c], u=u, off=(a & 1) * 8192 + (c >> 2) * 4096 + (c & 3) * 256,
                                    cons=st + c, free=afree.get(KF[kb][c].lo, b0.gap)))
                state["first"] = False
            chain(s, r, a, KF[kb])
            for c in range(8):
                afree[KF[kb][c].lo] = st + c
        return emit

    rord = tuple(int(c) for c in cfg.rord) if cfg.pairs else (0, 1, 2)
    NP = 8 - cfg.defer
    for p in range(NP):
        for q in range(4):
            n = 2 * p + (q >> 1)
            if q % 2 == 0:
                start_int[n] = len(M)
                pub.append((n, [U[f"V{n}"], U[f"K{n + 4}"]]) if n else ("v0", [U["V0"]]))
            order = cfg.first_order if (p == 0 and q == 0) else "cGcGcGG"
            em = kchains(p + 2, q, (q & 1) if cfg.kdouble else 0)
            ci = gi = 0
            for ch in order:
                if ch == "c":
                    em(ci)
                    ci += 1
                else:
                    grp_end[(p, 4 * q + gi)] = group((p,), 4 * q + gi)
                    gi += 1
    n = 2 * NP
    if cfg.defer == 3:
        for q in range(4):
            if q % 2 == 0:
                start_int[n] = len(M)
                pub.append((n, [U[f"K{14 + (q >> 1)}"]]))
                n += 1
            em = kchains(7, q, (q + 1) & 1)
            for r in rord:
                em(r)
    qk_end = len(M) - 1
    steps = tuple(range(NP, 8))
    sz = 8 * len(steps)
    vpool["bufs"] = [192, 192 + sz, 160, 96] if sz == 24 else [192, 208, 224, 240, 160, 176]
    vpool["ctr"] = 0
    for b in range(64, 160, 4):
        afree[b] = qk_end
    fin0 = n
    for t in range(16):
        if t % 8 == 0:
            start_int[n] = len(M)
            pub.append((n, [U[f"V{2 * s + (t >> 3)}"] for s in steps]))
            n += 1
        if cfg.pairs:
            if t % 2 == 0:
                group_pair(steps, t, t + 1, rord, t == 0)
            continue
        grp_end[(7, t)] = group(steps, t, t == 0)
    NM = len(M)

    dsq.sort(key=lambda d: d["cons"])
    def spacing(c):
        if c >= start_int[fin0]:
            return cfg.spf
        return 2.0

    nxt = float(1 << 30)
    for d in reversed(dsq):
        dl = d["cons"] - cfg.lat
        e = max(d["free"], b0.gap + (7 if cfg.softb0 else 1))
        f = min(float(dl) + 0.999, nxt - spacing(d["cons"]))
        if f < e:
            f = min(float(dl), nxt - min(1.0, spacing(d["cons"])))
        if f < e:
            f = float(e)
        d["f"], d["e"], d["dl"] = f, e, dl
        nxt = f
    prev = -10
    late = 0
    cnt = 0
    for d in dsq:
        g = max(int(d["f"]), d["e"], prev)
        if g == prev:
            cnt += 1
            if cnt >= 2 or (g + 1 <= d["dl"] and spacing(d["cons"]) >= 1):
                g += 1
                cnt = 0
        else:
            cnt = 0
        g = min(g, d["cons"] - 2)
        assert g >= d["e"] and g >= prev, (d, g, prev)
        late += g > d["dl"]
        d["gap"] = g
        prev = g

    prevg = b0.gap
    for (name, us) in pub:
        first = min(d["gap"] for d in dsq if d["u"] in us)
        g = max(first - 1, prevg + 1)
        assert g < first, (name, g, first)
        b = barrier(name, g, True)
        if name == 0:
            b.meta["need_lgkm"] = list(allreads)
        b.meta["units"] = us
        for u in us:
            u.vis = b
        prevg = g
    lastcons = {}
    for d in dsq:
        lastcons[d["u"].name] = max(lastcons.get(d["u"].name, -1), d["cons"])

    def release(u):
        if u.name in ("K0", "K1", "K2", "K3", "Q1"):
            return [b.meta["name"] for b in bars].index("c")
        if u.name == "Q2":
            return [b.meta["name"] for b in bars].index(0)
        c = [i for i, b in enumerate(bars) if b.gap >= lastcons[u.name]]
        return min(c) if c else len(bars)

    stg_bi = bars.index(next(b for b in bars if b.meta["name"] == fin0))
    free_at = {s: -1 for s in range(10)}
    for name in ("K0", "K1", "K2", "K3", "K4", "V0", "Q1", "Q2"):
        u = U[name]
        for k in range(u.nslots):
            free_at[u.slot + k] = release(u)
    order = []
    for (name, us) in pub:
        order += [u.name for u in sorted(us, key=lambda u: u.kind) if not u.dmas]
    dmaq = []
    for name in order:
        u = U[name]
        cand = list(free_at)
        if release(u) > stg_bi:
            cand = [s for s in cand if s >= cfg.stg_n]
        slot = min(cand, key=lambda s: (free_at[s], s))
        w = free_at[slot]
        u.slot = slot
        free_at[slot] = release(u)
        e = max(bars[w].gap + 2 if w >= 0 else 1, b0.gap + 2 + cfg.dma_lead)
        ops = u.make_dmas()
        for d in ops:
            d.earliest = e
            dmaq.append(d)
    gap_ds = {}
    for d in dsq:
        gap_ds.setdefault(d["gap"], []).append(d)
    gap_dma = {}
    placed_dma = [b0.gap - 20] * 4
    last = -10
    for d in dmaq:
        u = d.meta["unit"]
        sp = cfg.dma_sp
        if last < start_int[1]:
            sp = cfg.dma_sp_fast
        g = max(d.earliest, last + sp)
        if len(placed_dma) >= cfg.dma_cap:
            g = max(g, placed_dma[-cfg.dma_cap] + (cfg.dma_win if g >= start_int[cfg.early_n] else cfg.dma_win_early))
        g0 = g
        while g in fixed or g in gap_ds:
            g += 1
        if u.vis is not None and g >= u.vis.gap - 1:
            raise SystemExit(f"DMA of {u.name} too late: {g} vs {u.vis.gap}")
        gap_dma[g] = d
        d.gap = g
        last = g
        placed_dma.append(g)
    last_dma = dmaq[-1]
    gap_dma.update(pre_dma)
    for g, o in pre_ds.items():
        o.gap = g
        gap_ds.setdefault(g, []).append({"op": o})
    flight = {u.name: u.vis.gap - u.dmas[-1].gap for u in U.values() if u.vis is not None and u.dmas[-1].gap is not None}
    for b in bars:
        b.meta["need_vm"] = [d for u in b.meta["units"] for d in u.dmas]

    reads = []
    for d in dsq:
        u = d["u"]
        if d["kind"] == "Q":
            c = d["c"]
            off = u.slot * SLOT - 65536 + (c >> 2) * 4096 + (c & 3) * 256
            o = Op(f"ds_read_b128 {d['dst']}, {vQR} offset:{off}", "ds", vQR.names, d["dst"].names)
            o.meta["need_vm"] = u.dmas[(c >> 2) * 4:(c >> 2) * 4 + 4]
            o.meta["hoist_wait"] = True
        else:
            w, off = divmod(u.slot * SLOT + d["off"], 65536)
            if d["kind"] == "K":
                o = Op(f"ds_read_b128 {d['dst']}, {vKR[w]} offset:{off}", "ds", vKR[w].names, d["dst"].names)
            else:
                a = vVR[d["h"]][w]
                o = Op(f"ds_read_b64_tr_b16 {d['dst']}, {a} offset:{off}", "ds", a.names, d["dst"].names)
        o.gap = d["gap"]
        u.reads.append(o)
        d["op"] = o
        reads.append(o)
    for blk in fixed.values():
        for o in blk:
            if "need_vm_unit" in o.meta:
                u, h = o.meta["need_vm_unit"]
                o.meta["need_vm"] = u.dmas[4 * h:4 * h + 4]

    vcc_last = [None]

    def finish_rows(rows, last):
        fin = {}
        for r in rows:
            ops = xlane("v_add_f32", vL[r], vXT[r])
            prev = last[r]
            for o in ops:
                o.deps.append((prev, 1 if "permlane" in o.text else 0))
                prev = o
            rc = Op(f"v_rcp_f32 {vRL[r]}, {vL[r]}", "trans", vL[r].names, vRL[r].names)
            rc.deps.append((prev, 0))
            cm = valu(f"v_cmp_lt_f32 vcc, s{sThr}, {vL[r]}", vL[r].names + sn(sThr), ["svcc"])
            cm.deps.append((prev, 0))
            fl = salu(f"s_or_b64 s[{sFlag}:{sFlag + 1}], s[{sFlag}:{sFlag + 1}], vcc", ["svcc"] + sn(sFlag, 2), sn(sFlag, 2) + ["scc"])
            fl.deps.append((cm, 2))
            fin[r] = (ops, rc, cm, fl)
        out = []
        for k in range(6):
            for r in rows:
                out.append(fin[r][0][k])
        for r in rows:
            if vcc_last[0] is not None:
                fin[r][2].deps.append((vcc_last[0], 0))
            out += [fin[r][1], fin[r][2], fin[r][3]]
            vcc_last[0] = fin[r][3]
        return out, {r: fin[r][1] for r in rows}

    rbq = [Reg("a", 64 + 4 * i, 4) for i in range(8)]
    tmps = [Reg("v", vS[2 * i].lo, 8) for i in range(3)]
    tmp_last = {tb.lo: sbuf_last[tb.lo] + sbuf_last[tb.lo + 4] for tb in tmps}
    tmp_min = {tb.lo: -1 for tb in tmps}
    ctr = {"t": 0, "r": 0}
    rb_last = {}
    stg_last_read = {}
    wr = {}
    stg_after = bars[stg_bi].gap + 1
    sta = {}
    for r in range(3):
        for k in range(2):
            d = vST[r][k]
            o = valu(f"v_add_u32 {d}, {r * 8192 + k * 4096}, {vST0}", vST0.names, d.names)
            o.deps.append((last_dma, 1))
            sta[(r, k)] = o

    def piece(r, s, T, rcp, half, packed):
        rdy = (pair_end[(r, T)] if cfg.pairs else grp_end[(s, 2 * T + 1)]) + cfg.sready
        X, Y = O[r][2 * T], O[r][2 * T + 1]
        src = [X[i] for i in range(4)] + [Y[i] for i in range(4)]
        D = X
        ops = []
        rd = None
        if X.f == "a":
            tb = tmps[ctr["t"] % len(tmps)]
            ctr["t"] += 1
            rd = []
            for i in range(8):
                o = valu(f"v_accvgpr_read_b32 {tb[i]}, {src[i]}", src[i].names, tb[i].names)
                o.earliest = max(rdy, tmp_min[tb.lo])
                o.deps += [(x, 0) for x in tmp_last[tb.lo]]
                rd.append(o)
            ops += rd
            src = [tb[i] for i in range(8)]
            D = tb[0:4]
        mu = []
        if packed:
            for k in range(4):
                pr = Reg("v", src[2 * k].lo, 2)
                rl2 = Reg("v", vRL[r].lo, 2)
                o = valu(f"v_pk_mul_f32 {pr}, {pr}, {rl2} op_sel_hi:[1,0]", names(pr, vRL[r]), pr.names)
                o.earliest = rdy
                o.meta["pk"] = True
                o.deps.append((rcp, 1))
                if rd:
                    o.deps += [(rd[2 * k], 0), (rd[2 * k + 1], 0)]
                mu += [o, o]
            ops += mu[::2]
        else:
            for i in range(8):
                o = valu(f"v_mul_f32 {src[i]}, {src[i]}, {vRL[r]}", names(src[i], vRL[r]), src[i].names)
                o.earliest = rdy
                o.deps.append((rcp, 1))
                if rd:
                    o.deps.append((rd[i], 0))
                mu.append(o)
            ops += mu
        cv = []
        for k in range(4):
            o = valu(f"v_cvt_pk_bf16_f32 {D[k]}, {src[2 * k]}, {src[2 * k + 1]}", names(src[2 * k], src[2 * k + 1]), D[k].names)
            o.deps += [(mu[2 * k], 0), (mu[2 * k + 1], 0)]
            if k:
                o.deps.append((cv[k - 1], 0))
            cv.append(o)
        w = []
        for xy in range(2):
            ad = vSW[xy] if cfg.tgran else vSW[2 * (T & 1) + xy]
            x = Op(f"ds_write_b64 {ad}, {D[2 * xy:2 * xy + 2]} offset:{(1024 if cfg.tgran else 2048) * half}", "ds",
                   D[2 * xy:2 * xy + 2].names + ad.names, [])
            x.deps += [(cv[2 * xy], 0), (cv[2 * xy + 1], 0)]
            x.earliest = stg_after
            x.deps += [(z, 0) for z in stg_last_read.get(half, [])]
            w.append(x)
        if rd:
            tmp_last[tb.lo] = w + [cv[3]]
        wr[(r, T)] = w
        ops += cv + w
        if T % 2 == 1 or cfg.tgran:
            H = T >> 1
            rds, sts = [], []
            for k in range(1 if cfg.tgran else 2):
                qd = rbq[ctr["r"] % len(rbq)]
                ctr["r"] += 1
                o = Op(f"ds_read_b128 {qd}, {vSR} offset:{1024 * half if cfg.tgran else 1024 * k + 2048 * half}", "ds", vSR.names, qd.names)
                o.deps += [(x, 0) for tt in ((T,) if cfg.tgran else (T - 1, T)) for x in wr[(r, tt)]]
                o.deps += [(x, 0) for x in rb_last.get(qd.lo, [])]
                o.earliest = qk_end
                stt = f"buffer_store_dwordx4 {qd}, {vST[r][k]}, s[{sO}:{sO + 3}], 0 offen offset:{64 * T if cfg.tgran else 128 * H}"
                pol = cfg.st if H < cfg.st_from else cfg.st_last
                if pol:
                    stt += " " + pol
                so = Op(stt, "vstore", qd.names + vST[r][k].names + sn(sO, 4), [])
                so.meta["data"] = frozenset(qd.names)
                so.meta["hoist_wait"] = True
                so.deps += [(o, cfg.lat), (sta[(r, k)], 0)]
                rb_last[qd.lo] = [so]
                rds.append(o)
                sts.append(so)
            stg_last_read[half] = rds
            ops += rds + sts
        return ops

    fo, rcp = finish_rows((0, 1, 2), last_add)
    vq += fo + list(sta.values())
    ep = []
    nb = 2 * cfg.stg_n
    seqTr = [(T, r) for T in range(8) for r in rord]
    if cfg.hmajor:
        seqTr = [(2 * H + k, r) for H in range(4) for r in rord for k in range(2)]
    for (T, r) in seqTr:
        if True:
            buf = (3 * T + r) % (2 * nb) if cfg.tgran else (3 * (T >> 1) + r) % nb
            ep += piece(r, 7, T, rcp[r], buf, cfg.pk and T >= cfg.pkfrom and (not cfg.pairs or r == rord[-1]))

    gaps = {g: {"s": [], "v": []} for g in range(-1, NM + 1)}
    for b in bars:
        if b.meta["hoist_wait"]:
            gaps[b.gap]["s"].append(b)
    for g, d in gap_dma.items():
        pre = d.pre
        d.pre = []
        gaps[g - 1]["s"].append(pre[-1])
        if len(pre) > 1:
            gaps[max(g - 2, 0)]["s"].insert(0, pre[0])

    def ready(o, g, strict=False):
        if o.earliest > g:
            return False
        for (d, k) in o.deps:
            if d.gap is None or d.gap + k > g or (strict and d.gap >= g):
                return False
        return True

    queue = list(vq)
    equeue = list(ep)
    guard_at = {}
    for (g, ops) in guards:
        guard_at.setdefault(g, []).extend(ops)
    overflow = 0

    def place(o, g, where="v"):
        o.gap = g
        gaps[g][where].append(o)
        (queue if o in queue else equeue).remove(o)

    def force(o, g):
        nonlocal overflow
        if o.gap is not None:
            return
        for (d, k) in o.deps:
            if d.gap is None:
                force(d, g)
        assert o.earliest <= g, (o, g)
        overflow += 1
        place(o, g)

    W = 120

    def pick(kinds, g, strict=False, pk=False, pred=None):
        for qq in (queue, equeue):
            for o in qq[:W]:
                if o.kind in kinds and bool(o.meta.get("pk")) == pk and ready(o, g, strict) and (pred is None or pred(o)):
                    return o
        return None

    def pk_group(g):
        o = pick(("valu",), g, pk=True)
        if o is None:
            return None
        i = equeue.index(o)
        grp = [x for x in equeue[i:i + 4] if x.meta.get("pk")]
        return grp if all(ready(x, g) for x in grp) else None

    since = {}
    xacc = hacc = 0.0
    for g in range(0, NM):
        cap = 2
        mem = False
        nds = len(gap_ds.get(g, []))
        if nds:
            for d in gap_ds[g]:
                gaps[g]["v"].append(d["op"])
            cap = 1 if nds == 1 else 0
            mem = True
        if g in gap_dma:
            gaps[g]["v"].append(gap_dma[g])
            cap = 0
            mem = True
        light = cfg.dma_light and (g + 1) in gap_dma and g >= cfg.light_from and g > b0.gap
        if light:
            cap = min(cap, 0 if mem else 1)
        extra = 0
        if g <= b0.gap:
            extra = cfg.xpre
        if b0.gap < g < start_int[0] + cfg.xh_len and g not in gap_dma:
            hacc += cfg.xh
            extra = int(hacc)
            hacc -= extra
        if g >= start_int[fin0] - cfg.xlead and not light and g not in gap_dma:
            nst = sum(1 for o in ep if o.kind == "vstore" and o.gap is not None)
            xacc += cfg.xf_first if (nst < cfg.xf_nst and g >= start_int[fin0]) else cfg.xf
            extra = int(xacc)
            xacc -= extra
        o = pick(("salu",), g)
        if o is not None:
            place(o, g, "s")
        ex = pick(("trans",), g)
        if ex is not None:
            since.setdefault(id(ex), g)
        heavy = False
        pg = pk_group(g)
        if pg:
            since.setdefault(id(pg[0]), g)
        age = g - since[id(pg[0])] if pg else -1
        so = pick(("vstore",), g, True) if g not in gap_dma and nds <= 1 else None
        if so is not None:
            place(so, g)
            cap = 4 - nds
            extra = 0
            mem = True
            heavy = True
        elif not (mem or ex):
            mo = pick(("ds",), g, True)
            if mo is not None:
                place(mo, g)
                cap = 1
                mem = True
                if mo.text.startswith("ds_write"):
                    extra = 0
                    if pg and age >= cfg.pk_age:
                        cap = 2
                        heavy = True
        if not heavy and pg and age >= cfg.pk_age2 and g not in gap_dma and not light:
            cap = 5 - len(gaps[g]["v"])
            extra = 0
            heavy = True
        if ex is not None and not light and (not mem or heavy or (g <= b0.gap and cfg.xpre) or (g not in gap_dma and g - since[id(ex)] >= cfg.exp_age)):
            place(ex, g)
            cap = cap - 2 if heavy else 0
        cap += extra
        while cap > 0:
            o = pick(("valu",), g)
            if o is None:
                break
            place(o, g)
            cap -= 1
        if heavy:
            pg = pk_group(g)
            if pg:
                for x in pg:
                    place(x, g)
        for o in guard_at.get(g, []):
            force(o, g)
        if g in fixed and cfg.preflush and g not in noflush:
            for o in list(queue):
                if o.meta.get("pre") is not None and o.meta["pre"] <= g:
                    place(o, g)
    tail = []
    clock = NM
    k = 0
    rest = queue + equeue
    while rest:
        o = next((o for o in rest if o.kind == "vstore" and ready(o, clock, True)), None)
        if o is None:
            o = next((o for o in rest if o.kind == "ds" and ready(o, clock)), None)
        if o is None:
            o = next((o for o in rest if o.kind not in ("ds", "vstore") and ready(o, clock)), None)
        if o is None:
            clock += 1
            continue
        o.gap = clock
        rest.remove(o)
        tail.append(o)
        k += 1
        if k % 3 == 0:
            clock += 1

    prog = list(pro)
    for o in fixed[-1]:
        o.gap = -1
    prog += fixed[-1]
    inv_start = {v: k for k, v in start_int.items()}
    pos_int = {}
    for g in range(NM):
        M[g].gap = g
        prog.append(M[g])
        if g + 1 in inv_start and (inv_start[g + 1] % cfg.stamp_every == 0 or (not cfg.hstamps and (inv_start[g + 1] < 3 or inv_start[g + 1] >= 2 * NP))):
            prog += stamp(f"i{inv_start[g + 1]}")
            if inv_start[g + 1] in (0, fin0):
                prog += stamp(f"t{inv_start[g + 1]}", True)
        prog += gaps[g]["s"]
        prog += gaps[g]["v"]
        if g in fixed:
            for o in fixed[g]:
                o.gap = g
            prog += fixed[g]
    prog += stamp("mfmaend")
    prog += stamp("mfmaendR", True)
    prog += tail
    prog += stamp("stissued", True)
    if cfg.stamps:
        prog.append(Op("s_waitcnt vmcnt(0)", "wait", meta={"fixed": True}))
        prog += stamp("drained", True)
    prog += stamp.finish()
    prog.append(Op(f"s_cmp_lg_u64 s[{sFlag}:{sFlag + 1}], 0", "raw"))
    prog.append(Op("s_cbranch_scc1 L_fallback", "raw"))

    for o in prog:
        if o.kind == "mfma":
            o.meta["cover"] = [x for x in reads if x.gap <= o.gap - 1 - cfg.age and x.gap > o.gap - 40]
    prog = insert_waits_cover(prog)
    prog, moved = spread_scalars(prog)
    prog, pads = fix_hazards(prog, verbose=cfg.verbose)
    verify_lds(prog, U, None, cfg)
    idx = {id(o): i for i, o in enumerate(prog)}
    seg = lambda a, b: estimate_cycles(prog[idx[id(M[a])]:idx[id(M[b])] + 1])
    ints = sorted(start_int.items())
    est = {n: seg(g, (ints[i + 1][1] if i + 1 < len(ints) else NM) - 1) for i, (n, g) in enumerate(ints)}
    info = dict(NM=NM, late=late, overflow=overflow, pads=pads, est_main=seg(start_int[0], NM - 1),
                ideal=16 * (NM - start_int[0]), est_tail=estimate_cycles(prog[idx[id(M[-1])] + 1:]), n=len(prog), tail=len(tail),
                waits=sum(1 for o in prog if o.kind == "wait"), est=list(est.values()),
                pre2=seg(b0.gap + 1, start_int[0] - 1), total=seg(b0.gap + 1, NM - 1) + estimate_cycles(prog[idx[id(M[-1])] + 1:]))
    if cfg.verbose:
        print("flight", flight)
        print("slots", {u.name: u.slot for u in U.values()})
        print("bars", [(b.meta["name"], b.gap) for b in bars])
        print("ints", start_int, "last dma", last_dma.gap, "stores", [o.gap for o in ep if o.kind == "vstore"])
    cfg.stamp_names = stamp.list
    return prog, info


def insert_waits_cover(prog):
    pend = set()
    for o in prog:
        if o.kind == "ds":
            pend |= set(o.writes)
        if o.kind == "mfma" and (o.reads & pend):
            cov = o.meta.get("cover", [])
            o.meta["need_lgkm"] = cov
            for x in cov:
                pend -= set(x.writes)
            pend -= set(o.reads)
    return insert_waits(prog)


def verify_scalars(prog):
    last = {}
    for o in prog:
        if o.kind == "dma":
            for e in o.meta["expect"]:
                for r in e.writes:
                    if r != "scc":
                        assert last.get(r) is e, ("scalar operand clobbered", o.text, e.text)
            for r in o.reads:
                if r[0] == "v":
                    assert last[r].kind == "valu" and last[r].gap is None, ("DMA address clobbered", o.text, last[r].text)
        for r in o.writes:
            last[r] = o


def verify_dataflow(prog):
    pos = {id(o): i for i, o in enumerate(prog)}
    for o in prog:
        for (d, k) in o.deps:
            assert pos[id(d)] < pos[id(o)], ("order", d.text, o.text)


def verify_lds(prog, U, stg_bar, cfg):
    verify_scalars(prog)
    verify_dataflow(prog)
    pos = {id(o): i for i, o in enumerate(prog)}
    bars = [o for o in prog if o.kind == "barrier"]
    occ = {}
    for u in U.values():
        for k in range(u.nslots):
            occ.setdefault(u.slot + k, []).append(u)
        if u.kind != "Q":
            for rd in u.reads:
                b = u.vis
                assert pos[id(b)] < pos[id(rd)], ("read before barrier", u.name)
                for d in u.dmas:
                    assert d.meta["vm_idx"] < b.meta["vm_done_at"], ("dma not waited", u.name)
    for s, us in occ.items():
        us.sort(key=lambda u: pos[id(u.dmas[0])])
        for a, b in zip(us, us[1:]):
            first = min(pos[id(d)] for d in b.dmas)
            ok = any(pos[id(br)] < first and all(rd.meta["lg_idx"] < br.meta["lg_done_at"] for rd in a.reads) for br in bars)
            assert ok, ("slot WAR", s, a.name, b.name)
    writes = [o for o in prog if o.kind == "ds" and o.text.startswith("ds_write")]
    firstw = min(pos[id(o)] for o in writes)
    lo, hi = cfg.stg_base, cfg.stg_base + 4 * cfg.stg_wave
    for s, us in occ.items():
        if s * SLOT < hi and (s + 1) * SLOT > lo:
            for u in us:
                ok = any(pos[id(br)] < firstw and all(rd.meta["lg_idx"] < br.meta["lg_done_at"] for rd in u.reads) for br in bars)
                assert ok, ("staging WAR", s, u.name)


def fallback(cfg):
    L = []
    A = L.append
    t = Reg("v", 104, 12)
    KFf = KF[0]
    VFf = [Reg("a", 192, 4), Reg("a", 200, 4)]
    A("L_fallback:")
    A("s_waitcnt vmcnt(0) lgkmcnt(0)")
    A("s_barrier")
    A(f"s_mul_i32 s{sT3}, s{sW}, 40960")
    A(f"v_and_b32 {t[0]}, 63, v0")
    A(f"v_bfe_u32 {t[2]}, {t[0]}, 2, 2")
    A(f"v_lshlrev_b32 {t[2]}, 9, {t[2]}")
    A(f"v_lshrrev_b32 {t[5]}, 4, {t[0]}")
    A(f"v_lshl_add_u32 {t[2]}, {t[5]}, 6, {t[2]}")
    A(f"v_and_b32 {t[3]}, 3, {t[0]}")
    fk = [Reg("v", 80 + i, 1) for i in range(4)]
    fv = [Reg("v", 84 + i, 1) for i in range(4)]
    for rg in range(4):
        A(f"v_xor_b32 {t[4]}, {FR[rg]}, {t[3]}")
        A(f"v_lshl_add_u32 {fk[rg]}, {t[4]}, 4, {t[2]}")
        A(f"v_add_u32 {fk[rg]}, {rg * 2048}, {fk[rg]}")
        A(f"v_xor_b32 {t[4]}, {2 * (rg & 1)}, {t[3]}")
        A(f"v_lshl_add_u32 {fv[rg]}, {t[4]}, 4, {t[2]}")
        A(f"v_add_u32 {fv[rg]}, {rg * 2048}, {fv[rg]}")
    rk, rv0, rv1 = Reg("v", 88, 1), Reg("v", 89, 1), Reg("v", 90, 1)
    so = [Reg("v", 91 + r, 1) for r in range(3)]
    tmp8 = Reg("v", 96, 8)
    A(f"v_add_u32 {rk}, s{sT3}, {vKR[0]}")
    A(f"v_add_u32 {rv0}, s{sT3}, {vVR[0][0]}")
    A(f"v_add_u32 {rv1}, s{sT3}, {vVR[1][0]}")
    A(f"v_and_b32 {t[6]}, 15, {t[0]}")
    A(f"s_mul_i32 s{sT1}, s{sW}, 48")
    A(f"v_add_u32 {t[6]}, s{sT1}, {t[6]}")
    A(f"v_lshlrev_b32 {t[6]}, 9, {t[6]}")
    A(f"v_and_b32 {t[7]}, 1, {t[5]}")
    A(f"v_lshl_add_u32 {t[6]}, {t[7]}, 5, {t[6]}")
    A(f"v_lshrrev_b32 {t[7]}, 1, {t[5]}")
    A(f"v_lshl_add_u32 {so[0]}, {t[7]}, 4, {t[6]}")
    A(f"v_add_u32 {so[1]}, 8192, {so[0]}")
    A(f"v_add_u32 {so[2]}, 16384, {so[0]}")
    A(f"s_mul_i32 s{sT2}, s{sW}, {48 * 512}")
    for r in range(3):
        for rg in range(4):
            A(f"v_add_u32 {t[8]}, s{sT2}, {fk[rg]}")
            A(f"v_add_u32 {t[8]}, {r * 8192}, {t[8]}")
            for half in range(2):
                A(f"s_add_u32 m0, s{sT3}, {half * 4096 + rg * 1024 - half * 256}")
                A("s_nop 0")
                A(f"buffer_load_dwordx4 {t[8]}, s[{sQ}:{sQ + 3}], 0 offen offset:{half * 256} lds")
        A("s_waitcnt vmcnt(0)")
        for c in range(8):
            A(f"ds_read_b128 {Q[r][c]}, {rk} offset:{(c >> 2) * 4096 + (c & 3) * 256}")
        A("s_waitcnt lgkmcnt(0)")
    Pf = [vP[0][r][0] for r in range(3)]

    def load_k():
        for a in range(2):
            A(f"s_add_u32 s{sT1}, s{sT0}, {a * 8192}")
            for half in range(2):
                for rg in range(4):
                    A(f"s_add_u32 m0, s{sT3}, {a * 8192 + half * 4096 + rg * 1024 - half * 256}")
                    A("s_nop 0")
                    A(f"buffer_load_dwordx4 {fk[rg]}, s[{sK}:{sK + 3}], s{sT1} offen offset:{half * 256} lds")

    def load_v():
        for dh in range(2):
            for a in range(2):
                A(f"s_add_u32 s{sT1}, s{sT0}, {a * 8192 + dh * 256}")
                for rg in range(4):
                    A(f"s_add_u32 m0, s{sT3}, {16384 + dh * 8192 + a * 4096 + rg * 1024}")
                    A("s_nop 0")
                    A(f"buffer_load_dwordx4 {fv[rg]}, s[{sV}:{sV + 3}], s{sT1} offen lds")

    def qk(a):
        for c in range(8):
            A(f"ds_read_b128 {KFf[c]}, {rk} offset:{a * 8192 + (c >> 2) * 4096 + (c & 3) * 256}")
        A("s_waitcnt lgkmcnt(0)")
        for r in range(3):
            for c in range(8):
                A(f"v_mfma_f32_16x16x32_bf16 {vS[r]}, {KFf[c]}, {Q[r][c]}, {vS[r] if c else 0}")
        A("s_nop 15")

    def xl(op, x, tmp):
        for o in xlane(op, x, tmp):
            A("s_nop 1")
            A(o.text)

    for r in range(3):
        A(f"v_mov_b32 {vNM[r]}, 0xff800000")
    A(f"s_mov_b32 s{sT0}, 0")
    A("L_fb1:")
    load_k()
    A("s_waitcnt vmcnt(0)")
    for a in range(2):
        qk(a)
        for r in range(3):
            A(f"v_max3_f32 {vNM[r]}, {vNM[r]}, {vS[r][0]}, {vS[r][1]}")
            A(f"v_max3_f32 {vNM[r]}, {vNM[r]}, {vS[r][2]}, {vS[r][3]}")
    A(f"s_add_u32 s{sT0}, s{sT0}, 16384")
    A(f"s_cmp_lt_u32 s{sT0}, 262144")
    A("s_cbranch_scc1 L_fb1")
    for r in range(3):
        xl("v_max_f32", vNM[r], t[4])
        A(f"v_mul_f32 {vNM[r]}, {f2u(-C_SCALE):#x}, {vNM[r]}")
        A(f"v_mov_b32 {vL[r]}, 0")
    for r in range(3):
        for tt in range(16):
            for i in range(4):
                x = O[r][tt][i]
                A(f"v_mov_b32 {x}, 0" if x.f == "v" else f"v_accvgpr_write_b32 {x}, 0")
    A(f"s_mov_b32 s{sT0}, 0")
    A("L_fb2:")
    load_k()
    load_v()
    A("s_waitcnt vmcnt(0)")
    for a in range(2):
        qk(a)
        for r in range(3):
            S = vS[r]
            for i in range(4):
                A(f"v_fma_f32 {S[i]}, {S[i]}, s{sC}, {vNM[r]}")
            for i in range(4):
                A(f"v_exp_f32 {S[i]}, {S[i]}")
            A("s_nop 1")
            for i in range(4):
                A(f"v_add_f32 {vL[r]}, {vL[r]}, {S[i]}")
            for k in range(2):
                A(f"v_cvt_pk_bf16_f32 {Pf[r][2 * a + k]}, {S[2 * k]}, {S[2 * k + 1]}")
    A("s_nop 3")
    for tt in range(16):
        for s in range(2):
            base = rv0 if (tt & 1) == 0 else rv1
            off = 16384 + (tt >> 3) * 8192 + s * 4096 + ((tt & 7) >> 1) * 256
            A(f"ds_read_b64_tr_b16 {VFf[tt & 1][2 * s:2 * s + 2]}, {base} offset:{off}")
        A("s_waitcnt lgkmcnt(0)")
        for r in range(3):
            A(f"v_mfma_f32_16x16x32_bf16 {O[r][tt]}, {VFf[tt & 1]}, {Pf[r]}, {O[r][tt]}")
    A("s_nop 15")
    A(f"s_add_u32 s{sT0}, s{sT0}, 16384")
    A(f"s_cmp_lt_u32 s{sT0}, 262144")
    A("s_cbranch_scc1 L_fb2")
    for r in range(3):
        xl("v_add_f32", vL[r], t[4])
        A(f"v_rcp_f32 {vRL[r]}, {vL[r]}")
    A("s_nop 3")
    for T in range(8):
        for r in range(3):
            X, Y = O[r][2 * T], O[r][2 * T + 1]
            src = [X[i] for i in range(4)] + [Y[i] for i in range(4)]
            if X.f == "a":
                for i in range(8):
                    A(f"v_accvgpr_read_b32 {tmp8[i]}, {src[i]}")
                src = [tmp8[i] for i in range(8)]
            for i in range(8):
                A(f"v_mul_f32 {src[i]}, {src[i]}, {vRL[r]}")
            D = vS[(3 * T + r) % NSB]
            for k in range(4):
                A(f"v_cvt_pk_bf16_f32 {D[k]}, {src[2 * k]}, {src[2 * k + 1]}")
            A("s_nop 1")
            A(f"v_permlane16_swap_b32 {D[0]}, {D[2]}")
            A(f"v_permlane16_swap_b32 {D[1]}, {D[3]}")
            A(f"buffer_store_dwordx4 {D}, {so[r]}, s[{sO}:{sO + 3}], 0 offen offset:{64 * T}")
    A("s_waitcnt vmcnt(0)")
    return L


HEADER = """; GQA attention forward, B=8 Hq=16 Hkv=8 Sq=368 Sk=512 D=256, bf16 (emitted by my own generator script)
; and a wave with a sum above 2^64 recomputes its rows with the true row maximum (L_fallback).
; @launch grid=(256,1,1) block=(256,1,1) lds=163840
.amdgcn_target "amdgcn-amd-amdhsa--gfx950"
.text
.globl {k}
.p2align 8
.type {k},@function
{k}:
"""

FOOTER = """L_end:
    s_endpgm
.section .rodata,"a"
.p2align 6
.amdhsa_kernel {k}
  .amdhsa_next_free_vgpr 512
  .amdhsa_next_free_sgpr 102
  .amdhsa_accum_offset 256
  .amdhsa_group_segment_fixed_size 0
  .amdhsa_kernarg_size 48
  .amdhsa_user_sgpr_count 2
  .amdhsa_user_sgpr_kernarg_segment_ptr 1
  .amdhsa_system_sgpr_workgroup_id_x 1
.end_amdhsa_kernel
"""


def render(cfg, prog):
    s = HEADER.format(k=KNAME)
    if cfg.align12:
        s = s.replace(".p2align 8\n", ".p2align 12\n.p2align 8\n", 1)
    if cfg.stamps and cfg.spin == -1:
        s = "; stamps: " + " ".join(n + ("*" if r else "") for n, r in cfg.stamp_names) + "\n" + s
    for o in prog:
        s += (o.text if o.kind == "label" else "    " + o.text) + "\n"
    s += "    s_endpgm\nL_mainend:\n"
    for l in fallback(cfg):
        s += (l if l.endswith(":") else "    " + l) + "\n"
    s += FOOTER.format(k=KNAME)
    return s


def addresses(text, n):
    import subprocess, re, tempfile, os
    d = tempfile.mkdtemp()
    open(d + "/x.s", "w").write(text)
    subprocess.run(["clang", "-x", "assembler", "-target", "amdgcn-amd-amdhsa", "-mcpu=gfx950", "-c",
                    d + "/x.s", "-o", d + "/x.o"], check=True)
    out = subprocess.run(["llvm-objdump", "-d", "--mcpu=gfx950", d + "/x.o"], capture_output=True, text=True).stdout
    return [int(m.group(1), 16) for m in re.finditer(r"// ([0-9A-F]+):", out)][:n]


def add_walk(cfg, prog):
    iw = next(i for i, o in enumerate(prog) if o.text == "WALK")
    head, body = prog[:iw], prog[iw + 1:]
    lab = lambda t: Op(t, "label")
    raw = lambda t: Op(t, "raw")
    stubs = []
    for it in range(20):
        b2 = []
        for i, o in enumerate(body):
            if i in stubs:
                k = stubs.index(i)
                b2.append(lab(f"L_pg{k}:"))
                b2.append(raw(f"s_cbranch_execz L_wr{k}"))
            b2.append(o)
        npg = len(stubs)
        walk = [raw("s_mov_b64 exec, 0")]
        for w in range(4):
            if w < npg:
                walk += [raw(f"s_cmp_eq_u32 s{sW}, {w}"), raw(f"s_cbranch_scc1 L_pg{w}")]
        walk.append(raw("s_branch L_wdone"))
        for k in range(npg):
            walk.append(lab(f"L_wr{k}:"))
            walk.append(raw(f"s_branch L_pg{k + 4}" if k + 4 < npg else "s_branch L_wdone"))
        walk += [lab("L_wdone:"), raw("s_mov_b64 exec, -1")]
        full = head + walk + b2
        ins = [o for o in full if o.kind != "label"]
        addr = addresses(render(cfg, full), len(ins))
        amap = {id(o): a + cfg.base_off for o, a in zip(ins, addr)}
        want = []
        prev = amap[id(next(o for o in body if o.kind != "label"))] // 4096
        for i, o in enumerate(body):
            if o.kind == "label":
                continue
            pg = amap[id(o)] // 4096
            if pg != prev:
                j = i
                for jj in range(i, min(i + cfg.walk_win, len(body))):
                    if body[jj - 1].kind == "mfma" and amap[id(body[jj - 1])] // 4096 == pg and body[jj].kind not in ("salu", "wait", "barrier"):
                        j = jj
                        break
                want.append(j)
                prev = pg
        if want == stubs:
            return full
        stubs = want
    return full


def emit(cfg):
    prog, info = build(cfg)
    if cfg.x_nobar:
        prog = [o for o in prog if not (o.kind == "barrier" and o.meta.get("hoist_wait"))]
    if cfg.x_nodma:
        prog = [o for o in prog if not (o.kind == "dma" and o.gap is not None and o.gap > 130)]
    if cfg.x_nowait:
        prog = [o for o in prog if not (o.kind == "wait" and "lgkm" in o.text and not o.meta.get("fixed"))]
    if cfg.walk:
        prog = add_walk(cfg, prog)
    return render(cfg, prog), info


Cfg.walk = True
Cfg.walk_win = 8
Cfg.base_off = 0x300
Cfg.spin_name = ""
Cfg.stamp_every = 1
Cfg.pkfrom = 7
Cfg.pk_age = 2
Cfg.pk_age2 = 4
Cfg.dma_light = True
Cfg.defer = 3
Cfg.softb0 = True
Cfg.padzero = False
Cfg.dma_win_early = 96
Cfg.early_n = 2
Cfg.light_from = 0
Cfg.xh = 1.0
Cfg.xh_len = 24
Cfg.first_order = "cccGGGG"
Cfg.xf_first = 0.5
Cfg.xf_nst = 2
Cfg.pairs = True
Cfg.nofl = "12"
Cfg.touch = "V"
Cfg.dfhead = 2
Cfg.head_a3 = "Q2b"
Cfg.inter = True
Cfg.xpre = 1
Cfg.g_r0a = "Q1b@10:10"
Cfg.g_r0b = ""
Cfg.g_r1 = ""
Cfg.hstamps = False
Cfg.hmajor = True
Cfg.rord = "021"
Cfg.tgran = False
Cfg.x_nobar = False
Cfg.x_nodma = False
Cfg.x_nowait = False
Cfg.align12 = True
Cfg.ldv = "="
Cfg.st_from = 9
Cfg.st_last = ""
Cfg.kdouble = False
Cfg.spf = 1.5
Cfg.xf = 0.0
Cfg.xlead = 48
Cfg.dma_lead = 0
Cfg.head = "Q0a,K0,pf,Q0b,K1,K2,|,walk,Q1a,K3"
Cfg.head_a = ""
Cfg.head_a2 = "Q2a"
Cfg.head_c = "K4"
Cfg.head_0 = "V0"
Cfg.half_r = ""
Cfg.dma_cap = 12
Cfg.dma_win = 96
Cfg.join_order = "cGcGGGc"
Cfg.p7_order = "cGGGG"
Cfg.stg_bar = 14
Cfg.stg_n = 2
Cfg.sp7 = 1.3333
Cfg.sp2 = 1.3333
Cfg.x15 = 3
Cfg.x15_lead = 16
Cfg.x8 = 6
Cfg.x9 = 2
Cfg.xmem = 2
Cfg.exp_age = 3
Cfg.q2_before = "K5"
Cfg.dma_sp_fast = 3
Cfg.tail_extra = 3
Cfg.p7_extra = 0
Cfg.stag2 = ""
Cfg.stag_sh = 6
Cfg.stagger = ""
Cfg.cls_shift = 6
Cfg.cls_mask = 0

if __name__ == "__main__":
    ap = argparse.ArgumentParser()
    ap.add_argument("-o", default="standalone__gqa_softmax__near_ridge.s")
    ap.add_argument("-v", action="store_true")
    ap.add_argument("opts", nargs="*")
    a = ap.parse_args()
    cfg = Cfg()
    cfg.verbose = a.v
    for kv in a.opts:
        k, v = kv.split("=", 1)
        if k == "spin":
            cfg.spin, cfg.spin_name, cfg.stamps = 1, v, True
            continue
        old = getattr(cfg, k)
        if isinstance(old, bool):
            v = v in ("1", "true", "True")
        elif isinstance(old, int):
            v = int(v)
        elif isinstance(old, float):
            v = float(v)
        setattr(cfg, k, v.replace("+", " ") if isinstance(v, str) else v)
    s, info = emit(cfg)
    open(a.o, "w").write(s)
    print(info, len(s))
```

```python
import sys, math, argparse, struct
sys.path.insert(0, __file__.rsplit("/", 1)[0])
from ir import *

KNAME = "standalone__gqa_softmax__near_ridge_kernel"
C_SCALE = math.log2(math.e) / 16.0


def f2u(x):
    return struct.unpack("<I", struct.pack("<f", x))[0]


class Cfg:
    ldq = "nt"
    ldkv = "nt"
    ldkv0 = ""
    st = "nt"
    lat = 6
    age = 5
    sready = 4
    stamps = False
    dbg = False
    spin = -1
    spinwg = -1
    codepf = True
    force_fallback = False
    dma_sp = 6
    preflush = True
    y = 2
    pk = True
    verbose = False


sQ, sK, sV, sO = 12, 16, 20, 24
sW1K = 28
sC = 29
sKoff = 30
sVoff = 31
sT0, sT1, sT2, sT3 = 32, 33, 34, 35
sW = 36
sThr = 37
sW8K = 38
sCls = 39
sFlag = 40
sDBG = 44
vKR = [Reg("v", 1, 1), Reg("v", 2, 1), Reg("v", 3, 1)]
vVR = [[Reg("v", 4 + 3 * h + w, 1) for w in range(3)] for h in range(2)]
vDK = [Reg("v", 10, 1), Reg("v", 11, 1)]
vDV = [Reg("v", 12 + a, 1) for a in range(4)]
vST = [[Reg("v", 10 + 2 * r + k, 1) for k in range(2)] for r in range(3)]
vL = [Reg("v", 16 + r, 1) for r in range(3)]
vST0 = Reg("v", 19, 1)
vNM = [Reg("v", 20 + 2 * r, 1) for r in range(3)]
vRL = vNM
vSR = Reg("v", 21, 1)
vSW = [Reg("v", 23, 1), Reg("v", 25, 1), Reg("v", 26, 1), Reg("v", 27, 1)]
vXT = [Reg("v", 28 + r, 1) for r in range(3)]
vQR = Reg("v", 31, 1)
NSB = 6
vS = [Reg("v", 32 + 4 * i, 4) for i in range(NSB)]
vP = [[[Reg("v", 56 + 24 * b + 8 * r + 4 * kc, 4) for kc in range(2)] for r in range(3)] for b in range(3)]
vT = Reg("v", 32, 12)
vX = Reg("v", 44, 2)
O = [[Reg("v", 128 + 4 * t, 4) for t in range(16)],
     [Reg("v", 192 + 4 * t, 4) for t in range(16)],
     [Reg("a", 4 * t, 4) for t in range(16)]]
preK = [[Reg("v", 128 + 32 * a + 4 * c, 4) for c in range(8)] for a in range(4)] + \
       [[Reg("a", base + 4 * c, 4) for c in range(8)] for base in (0, 32, 192, 224)]
Q = [[Reg("a", 64 + 32 * r + 4 * c, 4) for c in range(8)] for r in range(3)]
KF = [[Reg("a", 160 + 4 * c, 4) for c in range(8)], [Reg("a", 224 + 4 * c, 4) for c in range(8)],
      [Reg("a", 192 + 4 * c, 4) for c in range(8)]]
VFB = [192 + 8 * b for b in range(4)]

SLOT = 16384
STG = 528
FR = (0, 2, 3, 1)


def sn(i, n=1):
    return R("s", i, n)


def valu(text, reads=(), writes=(), tag=""):
    return Op(text, "valu", reads, writes, tag)


def salu(text, reads=(), writes=()):
    return Op(text, "salu", reads, writes)


def names(*regs):
    out = []
    for r in regs:
        out += r.names if isinstance(r, Reg) else [r]
    return out


def mfma(D, A, B, C=None):
    c = str(C) if C is not None else "0"
    op = Op(f"v_mfma_f32_16x16x32_bf16 {D}, {A}, {B}, {c}", "mfma",
            names(A, B) + (C.names if C is not None else []), D.names)
    op.meta["srcab"] = frozenset(names(A, B))
    op.meta["srcc"] = frozenset(C.names) if C is not None else frozenset()
    return op


def dma(vaddr, srd, soff, imm, pol):
    so = f"s{soff}" if soff is not None else "0"
    t = f"buffer_load_dwordx4 {vaddr}, s[{srd}:{srd + 3}], {so} offen"
    if imm:
        t += f" offset:{imm}"
    if pol:
        t += " " + pol
    t += " lds"
    return Op(t, "dma", vaddr.names + sn(srd, 4) + (sn(soff) if soff is not None else []) + ["m0"], [])


def set_m0(const, base=sW1K):
    return salu(f"s_add_u32 m0, s{base}, {const}", sn(base), ["m0", "scc"])


class Unit:
    def __init__(self, kind, n, cfg):
        self.kind, self.n, self.cfg = kind, n, cfg
        self.slot = None
        self.nslots = 2 if kind == "Q" else 1
        self.dmas = []
        self.reads = []
        self.vis = None
        self.name = f"{kind}{n}"

    def make_dmas(self, vq=None):
        cfg = self.cfg
        ops = []
        base = self.slot * SLOT
        src = self.n % 16
        pol = cfg.ldkv if self.kind == "K" or cfg.ldv == "=" else cfg.ldv
        if self.kind == "K":
            so = salu(f"s_mov_b32 s{sKoff}, {src * 16384}", [], sn(sKoff))
            for a in range(2):
                for half in range(2):
                    d = dma(vDK[a], sK, sKoff, half * 256, pol)
                    d.pre = [set_m0(base + a * 8192 + half * 4096 - half * 256)]
                    ops.append(d)
            ops[0].pre.insert(0, so)
        elif self.kind == "V":
            j, h = divmod(src, 2)
            so = salu(f"s_mov_b32 s{sVoff}, {j * 32768 + h * 256}", [], sn(sVoff))
            for a in range(4):
                d = dma(vDV[a], sV, sVoff, 0, pol)
                d.pre = [set_m0(base + a * 4096)]
                ops.append(d)
            ops[0].pre.insert(0, so)
        else:
            for half in range(2):
                for rg in range(4):
                    d = dma(vq[rg], sQ, None, half * 256, cfg.ldq)
                    d.pre = [set_m0(base + half * 4096 + rg * 1024 - half * 256, sW8K)]
                    ops.append(d)
        for d in ops:
            d.meta["unit"] = self
            d.meta["expect"] = [d.pre[-1]] + ([ops[0].pre[0]] if self.kind != "Q" else [])
        self.dmas = ops
        return ops


def flat_dmas(ops):
    out = []
    for d in ops:
        out += d.pre
        out.append(salu("s_nop 0"))
        out.append(d)
        d.pre = []
    return out


def xlane(op, x, tmp):
    o = []
    o.append(valu(f"v_mov_b32 {tmp}, {x}", x.names, tmp.names))
    o.append(valu(f"v_permlane32_swap_b32 {x}, {tmp}", names(x, tmp), names(x, tmp)))
    o.append(valu(f"{op} {x}, {x}, {tmp}", names(x, tmp), x.names))
    o.append(valu(f"v_mov_b32 {tmp}, {x}", x.names, tmp.names))
    o.append(valu(f"v_permlane16_swap_b32 {x}, {tmp}", names(x, tmp), names(x, tmp)))
    o.append(valu(f"{op} {x}, {x}, {tmp}", names(x, tmp), x.names))
    return o


class Stamps:
    def __init__(self, cfg):
        self.cfg = cfg
        self.list = []

    def __call__(self, name, real=False):
        cfg = self.cfg
        if not cfg.stamps:
            return []
        if cfg.spin != -1:
            if name != cfg.spin_name:
                return []
            return [Op("s_memrealtime s[48:49]", "salu")]
        k = len(self.list)
        assert 48 + 2 * k + 1 <= 101, "too many stamps"
        self.list.append((name, real))
        return [Op(f"{'s_memrealtime' if real else 's_memtime'} s[{48 + 2 * k}:{49 + 2 * k}]", "salu")]

    def finish(self):
        cfg = self.cfg
        o = []
        raw = lambda t: o.append(Op(t, "raw"))
        if not cfg.stamps:
            return o
        raw("s_waitcnt lgkmcnt(0)")
        if cfg.spin != -1:
            if cfg.spinwg >= 0:
                raw(f"s_cmp_lg_u32 s2, {cfg.spinwg}")
                raw("s_cbranch_scc1 L_end")
            o.append(Op("L_spin:", "label"))
            raw("s_memrealtime s[50:51]")
            raw("s_waitcnt lgkmcnt(0)")
            raw("s_sub_u32 s50, s50, s48")
            raw("s_cmp_lt_u32 s50, 5000")
            raw("s_cbranch_scc1 L_spin")
            return o
        raw("v_mov_b32 v40, 0")
        for k in range(len(self.list)):
            raw(f"v_writelane_b32 v40, s{48 + 2 * k}, {k}")
        raw(f"s_load_dwordx2 s[{sDBG}:{sDBG + 1}], s[0:1], 40")
        raw(f"s_mov_b32 s{sDBG + 2}, 0x1000000")
        raw(f"s_mov_b32 s{sDBG + 3}, 0x00020000")
        raw("s_lshl_b32 s48, s2, 8")
        raw("v_add_u32 v41, s48, v0")
        raw("v_lshlrev_b32 v41, 2, v41")
        raw("s_waitcnt lgkmcnt(0)")
        raw(f"buffer_store_dword v40, v41, s[{sDBG}:{sDBG + 3}], 0 offen")
        return o


def prologue(cfg, U, stamp):
    P = []
    A = P.append
    raw = lambda t: A(Op(t, "raw"))
    raw("s_cmp_ge_u32 s2, 256")
    raw("s_cbranch_scc1 L_end")
    raw("s_load_dwordx4 s[4:7], s[0:1], 0")
    raw("s_load_dwordx4 s[8:11], s[0:1], 16")
    P += stamp("start", True)
    t = vT
    lane, wv, common, cpos, f_w = t[0], t[1], t[2], t[3], t[4]
    if cfg.codepf:
        raw("s_getpc_b64 s[42:43]")
        A(Op("L_pfbase:", "label"))
        A(valu(f"v_lshlrev_b32 {t[10]}, 7, v0", ["v0"], t[10].names))
        A(Op(f"global_load_dword {vX[0]}, {t[10]}, s[42:43]", "vload", t[10].names, vX[0].names))
    A(valu(f"v_lshrrev_b32 {wv}, 6, v0", ["v0"], wv.names))
    A(valu(f"v_and_b32 {lane}, 63, v0", ["v0"], lane.names))
    A(valu(f"v_readfirstlane_b32 s{sW}, {wv}", wv.names, sn(sW)))
    A(salu(f"s_and_b32 s{sT0}, s2, 7", [], sn(sT0)))
    A(salu(f"s_lshr_b32 s{sT1}, s2, 5", [], sn(sT1)))
    A(salu(f"s_lshl3_add_u32 s{sT0}, s{sT1}, s{sT0}", [], sn(sT0)))
    A(salu(f"s_bfe_u32 s{sT1}, s2, 0x20003", [], sn(sT1)))
    A(salu(f"s_lshl2_add_u32 s{sT2}, s{sT0}, s{sT1}", [], sn(sT2)))
    A(salu(f"s_mul_i32 s{sT2}, s{sT2}, {184 * 512}", [], sn(sT2)))
    A(salu(f"s_lshl_b32 s{sT0}, s{sT0}, 18", [], sn(sT0)))
    A(valu(f"v_bfe_u32 {t[6]}, {lane}, 2, 2", lane.names, t[6].names))
    A(valu(f"v_lshrrev_b32 {t[5]}, 4, {lane}", lane.names, t[5].names))
    A(valu(f"v_lshlrev_b32 {common}, 9, {t[6]}", t[6].names, common.names))
    A(valu(f"v_lshl_add_u32 {common}, {t[5]}, 6, {common}", names(t[5], common), common.names))
    A(valu(f"v_and_b32 {cpos}, 3, {lane}", lane.names, cpos.names))
    A(salu(f"s_lshl_b32 s{sT1}, s{sW}, 1", sn(sW), sn(sT1)))
    A(salu(f"s_lshr_b32 s{sT1}, 0x78, s{sT1}", [], sn(sT1)))
    A(salu(f"s_and_b32 s{sT1}, s{sT1}, 3", [], sn(sT1)))
    A(salu(f"s_lshl_b32 s{sW1K}, s{sW}, 10", sn(sW), sn(sW1K)))
    A(salu(f"s_lshl_b32 s{sW8K}, s{sW}, 13", sn(sW), sn(sW8K)))
    A(valu(f"v_xor_b32 {f_w}, s{sT1}, {cpos}", cpos.names, f_w.names))
    A(valu(f"v_lshl_add_u32 {t[7]}, {wv}, 11, {common}", names(wv, common), t[7].names))
    A(valu(f"v_lshl_add_u32 {vDK[0]}, {f_w}, 4, {t[7]}", names(f_w, t[7]), vDK[0].names))
    A(valu(f"v_add_u32 {vDK[1]}, 8192, {vDK[0]}", vDK[0].names, vDK[1].names))
    vq = [[Reg("v", 104 + 4 * r + rg, 1) for rg in range(4)] for r in range(3)]
    qb = Reg("v", 116, 1)
    A(salu(f"s_mov_b32 s{sT3}, {48 * 512}", [], sn(sT3)))
    A(valu(f"v_mad_u32_u24 {qb}, {wv}, s{sT3}, {common}", names(wv, common), qb.names))
    for rg in range(4):
        x = Reg("v", 117, 1)
        A(valu(f"v_xor_b32 {x}, {FR[rg]}, {cpos}", cpos.names, x.names))
        A(valu(f"v_lshl_add_u32 {vq[0][rg]}, {x}, 4, {qb}", names(x, qb), vq[0][rg].names))
        if rg:
            A(valu(f"v_add_u32 {vq[0][rg]}, {rg * 2048}, {vq[0][rg]}", vq[0][rg].names, vq[0][rg].names))
    A(Op("s_waitcnt lgkmcnt(0)", "wait", meta={"fixed": True}))
    P += stamp("karg", True)

    def srd(srd, p, off, nrec):
        A(salu(f"s_add_u32 s{srd}, s{p}, s{off}", [], sn(srd)))
        A(salu(f"s_addc_u32 s{srd + 1}, s{p + 1}, 0", [], sn(srd + 1)))
        A(salu(f"s_mov_b32 s{srd + 2}, {nrec}", [], sn(srd + 2)))
        A(salu(f"s_mov_b32 s{srd + 3}, 0x00020000", [], sn(srd + 3)))

    def vaddr():
        A(valu(f"v_and_b32 {t[9]}, 1, {wv}", wv.names, t[9].names))
        A(valu(f"v_lshlrev_b32 {t[9]}, 1, {t[9]}", t[9].names, t[9].names))
        A(valu(f"v_xor_b32 {t[9]}, {t[9]}, {cpos}", names(t[9], cpos), t[9].names))
        A(valu(f"v_lshl_add_u32 {vDV[0]}, {t[9]}, 4, {t[7]}", names(t[9], t[7]), vDV[0].names))
        for a in range(1, 4):
            A(valu(f"v_add_u32 {vDV[a]}, {8192 * a}, {vDV[0]}", vDV[0].names, vDV[a].names))

    def codepf2():
        if cfg.codepf:
            A(valu(f"v_add_u32 {t[10]}, 32768, {t[10]}", t[10].names, t[10].names))
            A(valu(f"v_min_u32 {t[10]}, L_mainend - L_pfbase, {t[10]}", t[10].names, t[10].names))
            A(Op(f"global_load_dword {vX[1]}, {t[10]}, s[42:43]", "vload", t[10].names, vX[1].names))

    def cwait(k):
        raw(f"s_cmp_lt_u32 s{sCls}, {k}")
        raw(f"s_cbranch_scc1 L_nw{k}")
        raw("s_waitcnt vmcnt(0)")
        A(Op(f"L_nw{k}:", "label"))

    srd(sK, 6, sT0, 262144)
    srd(sQ, 4, sT2, 184 * 512)
    if cfg.stag2:
        raw(f"s_lshr_b32 s{sCls}, s2, 5")
        raw(f"s_lshl_b32 s{sCls}, s{sCls}, 2")
        raw(f"s_lshr_b32 s{sCls}, {cfg.stag2}, s{sCls}")
        raw(f"s_and_b32 s{sCls}, s{sCls}, 15")
        raw(f"s_cbranch_scc0 L_go")
        raw(f"v_lshlrev_b32 {t[9]}, {cfg.stag_sh}, v0")
        raw(f"s_mov_b32 s{sKoff}, 0")
        A(Op("L_warm:", "label"))
        raw(f"buffer_load_dword {t[8]}, {t[9]}, s[{sK}:{sK + 3}], s{sKoff} offen {cfg.ldkv}")
        raw(f"s_add_u32 s{sKoff}, s{sKoff}, {256 << cfg.stag_sh}")
        raw(f"s_sub_u32 s{sCls}, s{sCls}, 1")
        raw("s_waitcnt vmcnt(0)")
        raw(f"s_cmp_lg_u32 s{sCls}, 0")
        raw("s_cbranch_scc1 L_warm")
        A(Op("L_go:", "label"))
    seq = cfg.head.split(",")

    def issue(x):
        if x == "pf":
            codepf2()
        elif x == "walk":
            if cfg.walk:
                A(Op("WALK", "label"))
        else:
            if x[:2] in ("Q1", "Q2"):
                qaddr12()
            P.extend(head_dmas(U, x, vq))

    done12 = []

    def qaddr12():
        if not done12:
            done12.append(1)
            for r in (1, 2):
                for rg in range(4):
                    A(valu(f"v_add_u32 {vq[r][rg]}, {8192 * r}, {vq[0][rg]}", vq[0][rg].names, vq[r][rg].names))

    cut = seq.index("|")
    for x in seq[:cut]:
        issue(x)
    srd(sV, 8, sT0, 262144)
    srd(sO, 10, sT2, 184 * 512)
    for i, ch in enumerate(cfg.touch):
        d = Reg("v", 46 + i, 1)
        sr = {"V": sV, "O": sO}[ch]
        A(Op(f"buffer_load_dword {d}, off, s[{sr}:{sr + 3}], 0 nt", "vload", sn(sr, 4), d.names))
    vaddr()
    g = t[5]
    A(valu(f"v_lshlrev_b32 {t[10]}, 1, {t[6]}", t[6].names, t[10].names))
    A(valu(f"v_lshrrev_b32 {t[10]}, {t[10]}, 0x78".replace("0x78", str(t[11])), names(t[10], t[11]), t[10].names))
    P.insert(len(P) - 1, valu(f"v_mov_b32 {t[11]}, 0x78", [], t[11].names))
    A(valu(f"v_and_b32 {t[10]}, 3, {t[10]}", t[10].names, t[10].names))
    A(valu(f"v_xor_b32 {t[10]}, {t[10]}, {g}", names(t[10], g), t[10].names))
    A(valu(f"v_lshlrev_b32 {t[10]}, 4, {t[10]}", t[10].names, t[10].names))
    A(valu(f"v_lshl_add_u32 {t[10]}, {t[6]}, 10, {t[10]}", names(t[6], t[10]), t[10].names))
    A(valu(f"v_lshl_add_u32 {vKR[0]}, {cpos}, 6, {t[10]}", names(cpos, t[10]), vKR[0].names))
    A(valu(f"v_add_u32 {vKR[1]}, 0x10000, {vKR[0]}", vKR[0].names, vKR[1].names))
    A(valu(f"v_add_u32 {vKR[2]}, 0x20000, {vKR[0]}", vKR[0].names, vKR[2].names))
    A(valu(f"v_lshlrev_b32 {t[10]}, 10, {g}", g.names, t[10].names))
    A(valu(f"v_lshl_add_u32 {t[10]}, {t[6]}, 6, {t[10]}", names(t[6], t[10]), t[10].names))
    A(valu(f"v_lshl_add_u32 {t[10]}, {cpos}, 3, {t[10]}", names(cpos, t[10]), t[10].names))
    A(valu(f"v_and_b32 {t[11]}, 1, {g}", g.names, t[11].names))
    A(valu(f"v_lshl_add_u32 {vVR[0][0]}, {t[11]}, 5, {t[10]}", names(t[11], t[10]), vVR[0][0].names))
    A(valu(f"v_xor_b32 {vVR[1][0]}, 32, {vVR[0][0]}", vVR[0][0].names, vVR[1][0].names))
    for h in range(2):
        for w in (1, 2):
            A(valu(f"v_add_u32 {vVR[h][w]}, {w * 65536}, {vVR[h][0]}", vVR[h][0].names, vVR[h][w].names))
    if cfg.tgran:
        n15 = t[11]
        x0, x1, x2 = Reg("v", 118, 1), Reg("v", 119, 1), Reg("v", 120, 1)
        A(valu(f"v_and_b32 {n15}, 15, {lane}", lane.names, n15.names))
        A(valu(f"v_lshrrev_b32 {x1}, 2, {lane}", lane.names, x1.names))
        A(valu(f"v_mad_u32_u24 {t[10]}, {wv}, 48, {x1}", names(wv, x1), t[10].names))
        A(valu(f"v_lshlrev_b32 {t[10]}, 9, {t[10]}", t[10].names, t[10].names))
        A(valu(f"v_lshl_add_u32 {vST0}, {cpos}, 4, {t[10]}", names(cpos, t[10]), vST0.names))
        A(salu(f"s_mul_i32 s{sT3}, s{sW}, {cfg.stg_wave}", sn(sW), sn(sT3)))
        A(salu(f"s_add_u32 s{sT3}, s{sT3}, {cfg.stg_base}", [], sn(sT3)))
        A(valu(f"v_bfe_u32 {x2}, {lane}, 3, 2", lane.names, x2.names))
        A(valu(f"v_xor_b32 {x2}, {x2}, {cpos}", names(x2, cpos), x2.names))
        A(valu(f"v_lshlrev_b32 {x2}, 4, {x2}", x2.names, x2.names))
        A(valu(f"v_lshl_add_u32 {x2}, {x1}, 6, {x2}", names(x1, x2), x2.names))
        A(valu(f"v_add_u32 {vSR}, s{sT3}, {x2}", x2.names, vSR.names))
        A(valu(f"v_bfe_u32 {x0}, {lane}, 1, 2", lane.names, x0.names))
        A(valu(f"v_lshrrev_b32 {x1}, 1, {g}", g.names, x1.names))
        A(valu(f"v_xor_b32 {x0}, {x0}, {x1}", names(x0, x1), x0.names))
        A(valu(f"v_lshlrev_b32 {x0}, 4, {x0}", x0.names, x0.names))
        A(valu(f"v_lshl_add_u32 {x0}, {n15}, 6, {x0}", names(n15, x0), x0.names))
        A(valu(f"v_and_b32 {x1}, 1, {g}", g.names, x1.names))
        A(valu(f"v_lshl_add_u32 {x0}, {x1}, 3, {x0}", names(x1, x0), x0.names))
        A(valu(f"v_add_u32 {vSW[0]}, s{sT3}, {x0}", x0.names, vSW[0].names))
        A(valu(f"v_xor_b32 {vSW[1]}, 32, {vSW[0]}", vSW[0].names, vSW[1].names))
    else:
        n15 = t[11]
        x0, x1, x2 = Reg("v", 118, 1), Reg("v", 119, 1), Reg("v", 120, 1)
        A(valu(f"v_and_b32 {n15}, 15, {lane}", lane.names, n15.names))
        A(valu(f"v_lshrrev_b32 {x1}, 3, {lane}", lane.names, x1.names))
        A(valu(f"v_and_b32 {x2}, 7, {lane}", lane.names, x2.names))
        A(valu(f"v_mad_u32_u24 {t[10]}, {wv}, 48, {x1}", names(wv, x1), t[10].names))
        A(valu(f"v_lshlrev_b32 {t[10]}, 9, {t[10]}", t[10].names, t[10].names))
        A(valu(f"v_lshl_add_u32 {vST0}, {x2}, 4, {t[10]}", names(x2, t[10]), vST0.names))
        A(salu(f"s_mul_i32 s{sT3}, s{sW}, {cfg.stg_wave}", sn(sW), sn(sT3)))
        A(salu(f"s_add_u32 s{sT3}, s{sT3}, {cfg.stg_base}", [], sn(sT3)))
        A(valu(f"v_xor_b32 {t[10]}, {x2}, {x1}", names(x2, x1), t[10].names))
        A(valu(f"v_lshlrev_b32 {t[10]}, 4, {t[10]}", t[10].names, t[10].names))
        A(valu(f"v_lshl_add_u32 {t[10]}, {x1}, 7, {t[10]}", names(x1, t[10]), t[10].names))
        A(valu(f"v_add_u32 {vSR}, s{sT3}, {t[10]}", t[10].names, vSR.names))
        A(valu(f"v_lshrrev_b32 {x1}, 1, {g}", g.names, x1.names))
        A(valu(f"v_xor_b32 {x0}, {x2}, {x1}", names(x2, x1), x0.names))
        A(valu(f"v_lshlrev_b32 {x0}, 4, {x0}", x0.names, x0.names))
        A(valu(f"v_lshl_add_u32 {x0}, {n15}, 7, {x0}", names(n15, x0), x0.names))
        A(valu(f"v_and_b32 {x1}, 1, {g}", g.names, x1.names))
        A(valu(f"v_lshl_add_u32 {x0}, {x1}, 3, {x0}", names(x1, x0), x0.names))
        A(valu(f"v_add_u32 {x0}, s{sT3}, {x0}", x0.names, x0.names))
        for i in range(4):
            A(valu(f"v_xor_b32 {vSW[i]}, {32 * i}, {x0}", x0.names, vSW[i].names))
    A(valu(f"v_add_u32 {vQR}, s{sW8K}, {vKR[1]}", vKR[1].names + sn(sW8K), vQR.names))
    A(salu(f"s_mov_b32 s{sC}, {f2u(C_SCALE):#x}", [], sn(sC)))
    A(salu(f"s_mov_b32 s{sThr}, {f2u(2.0 ** 64 if not cfg.force_fallback else 1.0):#x}", [], sn(sThr)))
    A(salu(f"s_mov_b64 s[{sFlag}:{sFlag + 1}], 0", [], sn(sFlag, 2)))
    for r in range(3):
        A(valu(f"v_mov_b32 {vL[r]}, 0", [], vL[r].names))
    if cfg.padzero:
        A(valu(f"v_and_b32 {t[10]}, 0xc8, v0", ["v0"], t[10].names))
        A(valu(f"v_cmp_eq_u32 vcc, 0xc8, {t[10]}", t[10].names, ["svcc"]))
        A(valu(f"v_mov_b32 {t[10]}, {f2u(-1e30):#x}", [], t[10].names))
        A(valu(f"v_cndmask_b32 {vL[2]}, {vL[2]}, {t[10]}, vcc", names(vL[2], t[10]) + ["svcc"], vL[2].names))
    qaddr12()
    for x in seq[cut + 1:]:
        issue(x)
    P += stamp("issued", True)
    if cfg.walk and "walk" not in seq:
        A(Op("WALK", "label"))
    return P, vq


def head_dmas(U, x, vq):
    name, part = (x[:2], x[2:]) if x[0] == "Q" else (x, "")
    u = U[name]
    if not u.dmas:
        u.make_dmas(vq[u.n]) if u.kind == "Q" else u.make_dmas()
    ops = u.dmas if not part else (u.dmas[:4] if part == "a" else u.dmas[4:])
    return flat_dmas(ops)


def q_reads(u):
    ops = []
    r = u.n
    base = u.slot * SLOT - 65536
    pre = []
    addr = vQR
    if base >= 65536:
        addr = vXT[2]
        pre.append(valu(f"v_add_u32 {addr}, 0x10000, {vQR}", vQR.names, addr.names))
        base -= 65536
    for c in range(8):
        off = base + (c >> 2) * 4096 + (c & 3) * 256
        o = Op(f"ds_read_b128 {Q[r][c]}, {addr} offset:{off}", "ds", addr.names, Q[r][c].names)
        o.meta["qhalf"] = c >> 2
        o.meta["unit"] = u
        u.reads.append(o)
        ops.append(o)
    return pre, ops


def build(cfg):
    act = lambda s: (0, 1, 2)
    stamp = Stamps(cfg)
    U = {}
    for n in range(16):
        U[f"K{n}"] = Unit("K", n, cfg)
        U[f"V{n}"] = Unit("V", n, cfg)
    for r in range(3):
        U[f"Q{r}"] = Unit("Q", r, cfg)
    U["K0"].slot, U["K1"].slot, U["K2"].slot, U["K3"].slot = 0, 1, 2, 3
    U["Q0"].slot, U["Q1"].slot, U["Q2"].slot = 4, 6, 8
    cfg.stg_base, cfg.stg_wave = 0, 4096 * cfg.stg_n

    pro, vqd = prologue(cfg, U, stamp)

    M = []
    fixed = {}
    dsq = []
    vq = []
    sbuf_last = {}
    spool = {"bufs": list(vS) + [Reg("v", vP[2][0][0].lo + 4 * i, 4) for i in range(3, 6)], "ctr": 0}
    U["K4"].slot, U["V0"].slot = 4, 5
    hd = lambda lst: [o for x in lst.split(",") if x for o in head_dmas(U, x, vqd)]
    guards = []
    Pcvt = {}
    negm_ready = {}
    preg_free = {}
    last_add = {}
    bars = []

    parked = {}

    def Preg(s, r, for_mfma=False):
        if for_mfma and s in parked:
            return parked[s][r]
        return vP[s % 3][r]

    def softmax_ops(s, r, a, S, ready_gap):
        dst = Preg(s, r)[a >> 1]
        fm, ex, ad, cv = [], [], [], []
        for i in range(4):
            o = valu(f"v_fma_f32 {S[i]}, {S[i]}, s{sC}, {vNM[r]}", names(S[i], vNM[r]) + sn(sC), S[i].names)
            o.earliest = ready_gap
            o.deps.append((negm_ready[r], 0))
            fm.append(o)
        for i in range(4):
            o = Op(f"v_exp_f32 {S[i]}, {S[i]}", "trans", S[i].names, S[i].names)
            o.deps.append((fm[i], 0))
            ex.append(o)
        for i in range(4):
            o = valu(f"v_add_f32 {vL[r]}, {vL[r]}, {S[i]}", names(vL[r], S[i]), vL[r].names)
            o.deps.append((ex[i], 1))
            prev_add = ad[-1] if ad else last_add.get(r)
            if prev_add is not None:
                o.deps.append((prev_add, 0))
            ad.append(o)
        for k in range(2):
            d = dst[2 * (a & 1) + k]
            o = valu(f"v_cvt_pk_bf16_f32 {d}, {S[2 * k]}, {S[2 * k + 1]}", names(S[2 * k], S[2 * k + 1]), d.names)
            o.deps += [(ex[2 * k], 1), (ex[2 * k + 1], 1)]
            o.earliest = preg_free.get(dst.lo, -1)
            if dst.lo in sbuf_last:
                o.deps += [(x, 0) for x in sbuf_last[dst.lo]]
            cv.append(o)
        Pcvt[(s, r, a)] = cv
        vq.extend([fm[0], fm[1], ex[0], fm[2], ex[1], fm[3], ad[0], ex[2], ad[1], cv[0], ex[3], ad[2], ad[3], cv[1]])
        last_add[r] = ad[3]
        return ad + cv

    held = {}
    lowq = []
    noflush = set()

    halfS = {}

    def chain(s, r, a, frags, part=None):
        start = len(M)
        if part == 1:
            S = halfS[(s, r, a)]
            si = S.lo
        else:
            S = spool["bufs"][spool["ctr"] % len(spool["bufs"])]
            spool["ctr"] += 1
            while sbuf_last.get(S.lo) == "held":
                S = spool["bufs"][spool["ctr"] % len(spool["bufs"])]
                spool["ctr"] += 1
            si = S.lo
            if sbuf_last.get(si):
                guards.append((start - 1, sbuf_last[si]))
        for c in range(8) if part is None else range(4 * part, 4 * part + 4):
            M.append(mfma(S, frags[c], Q[r][c], S if c else None))
        if part == 0:
            halfS[(s, r, a)] = S
            sbuf_last[si] = "held"
            return start
        end = len(M) - 1
        if r not in negm_ready:
            held.setdefault(r, []).append((si, S, end, a))
            sbuf_last[si] = "held"
            if len(held[r]) == 2:
                S0, S1 = held[r][0][1], held[r][1][1]
                m, tmp = vNM[r], vXT[r]
                ops = [valu(f"v_max3_f32 {m}, {S0[0]}, {S0[1]}, {S0[2]}", names(S0[0], S0[1], S0[2]), m.names),
                       valu(f"v_max3_f32 {tmp}, {S0[3]}, {S1[0]}, {S1[1]}", names(S0[3], S1[0], S1[1]), tmp.names),
                       valu(f"v_max3_f32 {m}, {m}, {S1[2]}, {S1[3]}", names(m, S1[2], S1[3]), m.names),
                       valu(f"v_max_f32 {m}, {m}, {tmp}", names(m, tmp), m.names)]
                ops += xlane("v_max_f32", m, tmp)
                if r == 2 and cfg.padzero:
                    ops.append(valu(f"v_fma_f32 {m}, -{m}, s{sC}, {vL[2]}", names(m, vL[2]) + sn(sC), m.names))
                else:
                    ops.append(valu(f"v_mul_f32 {m}, {f2u(-C_SCALE):#x}, {m}", m.names, m.names))
                prev = None
                for o in ops:
                    o.earliest = end + cfg.sready
                    if prev is not None:
                        o.deps.append((prev, 1 if "permlane" in o.text else 0))
                    prev = o
                vq.extend(ops)
                negm_ready[r] = ops[-1]
                for (si2, S2, end2, a2) in held[r]:
                    sbuf_last[si2] = softmax_ops(s, r, a2, S2, end2 + cfg.sready)
        else:
            sbuf_last[si] = softmax_ops(s, r, a, S, end + cfg.sready)
        return start

    afree = {}
    touched = set()
    last_of = {}
    vpool = {"bufs": list(VFB), "ctr": 0}

    def group(steps, t, smajor=False, rorder=(0, 1, 2)):
        base = vpool["bufs"][vpool["ctr"] % len(vpool["bufs"])]
        vpool["ctr"] += 1
        tt = t & 7
        start = len(M)
        frs = []
        for i, s in enumerate(steps):
            u = U[f"V{2 * s + (t >> 3)}"]
            for kc in range(2):
                F = Reg("a", base + 8 * i + 4 * kc, 4)
                frs.append((s, kc, F))
                for k in range(2):
                    a = 2 * kc + k
                    dsq.append(dict(kind="V", dst=F[2 * k:2 * k + 2], h=tt & 1, u=u, off=a * 4096 + (tt >> 1) * 256,
                                    cons=start + 2 * i + kc, free=afree.get(F.lo, -1)))
        seq = [(r, x) for r in rorder for x in frs]
        if smajor:
            seq = [(r, x) for s0 in steps for r in rorder for x in frs if x[0] == s0]
            for d in dsq[-4 * len(steps):]:
                i = d["cons"] - start
                d["cons"] = start + 6 * (i >> 1) + (i & 1)
        for (r, (s, kc, F)) in seq:
            if True:
                C = O[r][t] if (r, t) in touched else None
                touched.add((r, t))
                P_ = Preg(s, r, True)[kc]
                M.append(mfma(O[r][t], F, P_, C))
                guards.append((len(M) - 3, Pcvt[(s, r, 2 * kc)] + Pcvt[(s, r, 2 * kc + 1)]))
                last_of[(r, t)] = len(M) - 1
                preg_free[P_.lo] = len(M) - 1
                afree[F.lo] = len(M) - 1
        return len(M) - 1

    pair_end = {}

    def group_pair(steps, ta, tb, rorder, smajor=False):
        start = len(M)
        frs = []
        for j, t in enumerate((ta, tb)):
            base = vpool["bufs"][vpool["ctr"] % len(vpool["bufs"])]
            vpool["ctr"] += 1
            for i, s in enumerate(steps):
                for kc in range(2):
                    frs.append((t, s, kc, Reg("a", base + 8 * i + 4 * kc, 4)))
        first = sorted(frs, key=lambda x: (x[1] == steps[-1], x[0], x[1], x[2])) if smajor else frs
        for i, (t, s, kc, F) in enumerate(first):
            u = U[f"V{2 * s + (t >> 3)}"]
            tt = t & 7
            for k in range(2):
                dsq.append(dict(kind="V", dst=F[2 * k:2 * k + 2], h=tt & 1, u=u, off=(2 * kc + k) * 4096 + (tt >> 1) * 256,
                                cons=start + i, free=afree.get(F.lo, -1)))
        for n_, r in enumerate(rorder):
            for (t, s, kc, F) in (first if n_ == 0 else frs):
                P_ = Preg(s, r, True)[kc]
                M.append(mfma(O[r][t], F, P_, O[r][t]))
                guards.append((len(M) - 3, Pcvt[(s, r, 2 * kc)] + Pcvt[(s, r, 2 * kc + 1)]))
                afree[F.lo] = len(M) - 1
            pair_end[(r, ta >> 1)] = len(M) - 1

    def barrier(name, gap, hoist):
        o = Op("s_barrier", "barrier")
        o.meta.update(need_vm=[], need_lgkm=[], name=name, hoist_wait=hoist, units=[])
        o.gap = gap
        bars.append(o)
        return o

    def prek_reads(lo, hi):
        ops = []
        for a in range(lo, hi):
            u = U[f"K{a >> 1}"]
            for c in range(8):
                off = u.slot * SLOT + (a & 1) * 8192 + (c >> 2) * 4096 + (c & 3) * 256
                o = Op(f"ds_read_b128 {preK[a][c]}, {vKR[0]} offset:{off}", "ds", vKR[0].names, preK[a][c].names)
                u.reads.append(o)
                ops.append(o)
        return ops

    blk = []
    ba = barrier("a", -1, False)
    ba.meta["units"] = [U["K0"], U["K1"], U["Q0"]]
    U["K0"].vis = U["K1"].vis = U["Q0"].vis = ba
    blk.append(ba)
    blk += stamp("K0Q0", True)
    pre_, q0 = q_reads(U["Q0"])
    prek = prek_reads(0, 4)
    hs = lambda n: stamp(n, True) if cfg.hstamps else []
    pre_ds = {}
    pre_dma = {}

    def gap_dmas(spec, g0):
        for item in spec.split(","):
            if not item:
                continue
            x, pos = item.split("@")
            first, step = (int(v) for v in pos.split(":"))
            name, part = (x[:2], x[2:]) if x[0] == "Q" else (x, "")
            u = U[name]
            if not u.dmas:
                u.make_dmas(vqd[u.n]) if u.kind == "Q" else u.make_dmas()
            ops = u.dmas if not part else (u.dmas[:4] if part == "a" else u.dmas[4:])
            for i, d in enumerate(ops):
                g = g0 + first + i * step
                assert g not in pre_dma
                pre_dma[g] = d
                d.gap = g

    if cfg.inter:
        q_first = [x for pair in zip(q0, prek[:8]) for x in pair]
        blk += pre_ + q_first + hd(cfg.head_a) + hs("hA")
        for i, o in enumerate(prek[8:]):
            pre_ds[i] = o
        gap_dmas(cfg.g_r0a, 0)
    else:
        blk += pre_ + q0 + prek[:8] + hd(cfg.head_a) + hs("hA") + prek[8:]
    fixed[-1] = blk
    sub_order = (0, 1, 2, 3, 6, 7, 4, 5)
    allreads = q0 + prek
    kprev = {}
    if cfg.dfhead:
        def mark():
            for o in vq:
                o.meta.setdefault("pre", len(M) - 1)

        def run(r, subs, part):
            for a in subs:
                chain(a >> 2, r, a & 3, preK[a], part)
                for c in range(8):
                    if preK[a][c].f == "a":
                        afree[preK[a][c].lo] = len(M) - 1
            mark()

        QR = {}
        for r in (1, 2):
            u = U[f"Q{r}"]
            QR[r] = q_reads(u)
            for o in QR[r][1]:
                o.meta["need_vm_unit"] = (u, o.meta["qhalf"])
            allreads += QR[r][1] if r == 1 else []
        if cfg.dfhead == 2:
            def kbar(name, unit, lo, pre_blk, gspec):
                b = barrier(name, len(M) - 1, False)
                b.meta["units"] = [U[unit]]
                b.meta["need_lgkm"] = list(q0)
                U[unit].vis = b
                rd = prek_reads(lo, lo + 2)
                allreads.extend(rd)
                fixed[len(M) - 1] = pre_blk + [b] + hs(name) + rd[:8]
                for j, o in enumerate(rd[8:]):
                    pre_ds[len(M) + j] = o
                gap_dmas(gspec, len(M))
            run(0, (0, 1, 2), None)
            noflush.add(len(M) - 1)
            b = barrier("a2", len(M) - 1, False)
            b.meta["units"] = [U["K2"]]
            b.meta["need_lgkm"] = list(q0)
            U["K2"].vis = b
            rd = prek_reads(4, 6)
            allreads.extend(rd)
            fixed[len(M) - 1] = [b] + hs("a2")
            for j, o in enumerate(rd):
                pre_ds[len(M) + j] = o
            run(0, (3, 4, 5), None)
            fixed[len(M) - 1] = hs("t0c") + hd(cfg.head_a2) + QR[1][0] + QR[1][1][:4] + hs("qa1")
            if "1" in cfg.nofl:
                noflush.add(len(M) - 1)
            lent = [vP[0][2][0], vP[0][2][1], vP[1][2][0], vP[1][2][1]] if cfg.nofl else []
            keep = spool["bufs"]
            spool["bufs"] = lent
            c0 = spool["ctr"]
            spool["ctr"] = 0
            run(1, (0, 1, 2, 3)[:len(lent)], 0)
            spool["bufs"] = keep
            spool["ctr"] = c0
            run(1, (0, 1, 2, 3, 4, 5)[len(lent):], 0)
            kbar("a3", "K3", 6, hs("w2") + hd(cfg.head_a3), cfg.g_r0b)
            spool["bufs"] += [Reg("v", vP[2][0][0].lo + 4 * i, 4) for i in range(3)]
            run(0, (6, 7), None)
            run(1, (6, 7), 0)
        else:
            run(0, (0, 1, 2, 3), None)
            fixed[len(M) - 1] = hs("t0c") + QR[1][0] + QR[1][1][:4] + hs("qa1")
            run(1, (0, 1, 2, 3), 0)
            b2 = barrier("a2", len(M) - 1, False)
            b2.meta["units"] = [U["K2"], U["K3"]]
            b2.meta["need_lgkm"] = list(q0)
            U["K2"].vis = U["K3"].vis = b2
            k2 = prek_reads(6, 8) + prek_reads(4, 6)
            allreads += k2
            fixed[len(M) - 1] = hs("w2") + hd(cfg.head_a2) + hs("hA2") + [b2] + hs("a2") + k2[:8]
            for j, o in enumerate(k2[8:]):
                pre_ds[len(M) + j] = o
            gap_dmas(cfg.g_r0b, len(M))
            spool["bufs"] += [Reg("v", vP[2][0][0].lo + 4 * i, 4) for i in range(3)]
            run(0, (6, 7, 4, 5), None)
            run(1, (6, 7, 4, 5), 0)
        bb = barrier("c", len(M) - 1, False)
        bb.meta["need_lgkm"] = list(allreads)
        fixed[len(M) - 1] = hs("w3") + hd(cfg.head_c) + QR[1][1][4:] + [bb] + stamp("Q1", True)
        if "3" in cfg.nofl:
            noflush.add(len(M) - 1)
        gap_dmas(cfg.g_r1, len(M))
        run(1, sub_order, 1)
        allreads += QR[2][1]
        fixed[len(M) - 1] = hs("w4") + hd(cfg.head_0) + QR[2][0] + QR[2][1][:4] + hs("qa2")
        if "2" in cfg.nofl:
            noflush.add(len(M) - 1)
        run(2, sub_order, 0)
        b0 = Op("", "label")
        b0.gap = len(M) - 1
        fixed[len(M) - 1] = hs("w5") + QR[2][1][4:] + stamp("Q2", True)
        run(2, sub_order, 1)
    for r in range(3 if not cfg.dfhead else 0):
        split = str(r) in cfg.half_r
        if r:
            u = U[f"Q{r}"]
            pre_, qr = q_reads(u)
            for o in qr:
                o.meta["need_vm_unit"] = (u, o.meta["qhalf"])
            lists = (cfg.head_c if r == 1 else cfg.head_0).split("/")
            if r == 2 or split:
                extra_s = [Reg("v", vP[2][0][0].lo + 4 * i, 4) for i in range(3)]
                if r == 2 and extra_s[0].lo not in [x.lo for x in spool["bufs"]]:
                    spool["bufs"] += extra_s
            allreads += qr
            if split:
                fixed[len(M) - 1] = hs(f"fl{r}") + hd(lists[0]) + hs(f"d{r}") + pre_ + qr[:4] + hs(f"qa{r}")
                for a in sub_order:
                    chain(a >> 2, r, a & 3, preK[a], 0)
                blk = hs(f"pa{r}") + hd(lists[1] if len(lists) > 1 else "") + qr[4:]
                noflush.add(len(M) - 1)
            else:
                blk = hs(f"fl{r}") + hd(",".join(lists)) + hs(f"d{r}") + pre_ + qr
            if r == 2 and cfg.softb0:
                bb = Op("", "label")
                bb.gap = len(M) - 1
                b0 = bb
            else:
                bb = barrier("c" if r == 1 else 0, len(M) - 1, False)
                bb.meta["need_lgkm"] = list(allreads)
                blk.append(bb)
            blk += stamp(f"Q{r}", True)
            fixed[len(M) - 1] = blk
            if r == 1:
                gap_dmas(cfg.g_r1, len(M))
        for i, a in enumerate(sub_order):
            if r == 0 and i == 4:
                b2 = barrier("a2", len(M) - 1, False)
                b2.meta["units"] = [U["K2"], U["K3"]]
                b2.meta["need_lgkm"] = list(q0)
                U["K2"].vis = U["K3"].vis = b2
                k2 = prek_reads(6, 8) + prek_reads(4, 6)
                allreads += k2
                if cfg.inter:
                    fixed[len(M) - 1] = hs("t0c") + hd(cfg.head_a2) + hs("hA2") + [b2] + hs("a2") + k2[:8]
                    for j, o in enumerate(k2[8:]):
                        pre_ds[len(M) + j] = o
                    gap_dmas(cfg.g_r0b, len(M))
                    for o in vq:
                        o.meta.setdefault("pre", len(M) - 1)
                else:
                    fixed[len(M) - 1] = hs("t0c") + [b2] + hs("a2") + k2[:8] + hd(cfg.head_a2) + hs("hA2") + k2[8:]
                    noflush.add(len(M) - 1)
            st = chain(a >> 2, r, a & 3, preK[a], 1 if (r and split) else None)
            for c in range(8):
                if preK[a][c].f == "a":
                    afree[preK[a][c].lo] = len(M) - 1 if split else st + c
        for o in vq:
            o.meta.setdefault("pre", len(M) - 1)
    if not cfg.softb0:
        b0 = bars[-1]
        b0.meta["units"] = [U["K4"]]
        U["K4"].vis = b0
    spool["bufs"] = list(vS)
    spool["ctr"] = 0

    start_int = {}
    grp_end = {}
    pub = []
    if cfg.softb0:
        pub.append((0, [U["K4"]]))

    def kchains(s, a, kb):
        u = U[f"K{2 * s + (a >> 1)}"]
        state = {"first": True}

        def emit(r):
            st = len(M)
            if state["first"]:
                for c in range(8):
                    dsq.append(dict(kind="K", dst=KF[kb][c], u=u, off=(a & 1) * 8192 + (c >> 2) * 4096 + (c & 3) * 256,
                                    cons=st + c, free=afree.get(KF[kb][c].lo, b0.gap)))
                state["first"] = False
            chain(s, r, a, KF[kb])
            for c in range(8):
                afree[KF[kb][c].lo] = st + c
        return emit

    rord = tuple(int(c) for c in cfg.rord) if cfg.pairs else (0, 1, 2)
    NP = 8 - cfg.defer
    for p in range(NP):
        for q in range(4):
            n = 2 * p + (q >> 1)
            if q % 2 == 0:
                start_int[n] = len(M)
                pub.append((n, [U[f"V{n}"], U[f"K{n + 4}"]]) if n else ("v0", [U["V0"]]))
            order = cfg.first_order if (p == 0 and q == 0) else "cGcGcGG"
            em = kchains(p + 2, q, (q & 1) if cfg.kdouble else 0)
            ci = gi = 0
            for ch in order:
                if ch == "c":
                    em(ci)
                    ci += 1
                else:
                    grp_end[(p, 4 * q + gi)] = group((p,), 4 * q + gi)
                    gi += 1
    n = 2 * NP
    for s_ in range(NP + 2, 8):
        if cfg.defer == 4 and s_ == 7:
            parked[4] = [[Reg("a", 224 + 8 * r + 4 * kc, 4) for kc in range(2)] for r in range(3)]
            mv = []
            for r in range(3):
                for kc in range(2):
                    src, dst = vP[1][r][kc], parked[4][r][kc]
                    ops = []
                    for i in range(4):
                        o = valu(f"v_accvgpr_write_b32 {dst[i]}, {src[i]}", src[i].names, dst[i].names)
                        o.deps += [(x, 0) for x in Pcvt[(4, r, 2 * kc + (i >> 1))]]
                        o.earliest = start_int[2 * (NP - 1)]
                        ops.append(o)
                    sbuf_last[src.lo] = ops
                    Pcvt[(4, r, 2 * kc)] = ops[:2]
                    Pcvt[(4, r, 2 * kc + 1)] = ops[2:]
                    mv += ops
            lowq.extend(mv)
        for q in range(4):
            if q % 2 == 0:
                start_int[n] = len(M)
                pub.append((n, [U[f"K{2 * s_ + (q >> 1)}"]]))
                n += 1
            if cfg.defer == 3:
                kb = (q + 1) & 1
            else:
                kb = 2 if (q & 1) and not (s_ == 7 and q == 3) else 0
            em = kchains(s_, q, kb)
            for r in rord:
                em(r)
                for c in range(8):
                    afree[Q[r][c].lo] = len(M) - 1
    qk_end = len(M) - 1
    steps = tuple(range(NP, 8))
    sz = 8 * len(steps)
    vpool["bufs"] = {16: [192, 208, 224, 240, 160, 176], 24: [192, 216, 160, 96], 32: [192, 128, 160, 96]}[sz]
    vpool["ctr"] = 0
    if cfg.defer < 4:
        for b in range(64, 160, 4):
            afree[b] = qk_end
    fin0 = n
    for t in range(16):
        if t % 8 == 0:
            start_int[n] = len(M)
            pub.append((n, [U[f"V{2 * s + (t >> 3)}"] for s in steps]))
            n += 1
        if cfg.pairs and cfg.defer == 4 and t < 2:
            group(steps, t, t == 0, rord)
            for r in rord:
                pair_end[(r, 0)] = last_of[(r, t)]
            continue
        if cfg.pairs:
            if t % 2 == 0:
                group_pair(steps, t, t + 1, rord, t == 0)
            continue
        grp_end[(7, t)] = group(steps, t, t == 0)
    NM = len(M)

    dsq.sort(key=lambda d: d["cons"])
    def spacing(c):
        if c >= start_int[fin0]:
            return cfg.spf
        return 2.0

    nxt = float(1 << 30)
    for d in reversed(dsq):
        dl = d["cons"] - cfg.lat
        e = max(d["free"], b0.gap + (7 if cfg.softb0 else 1))
        f = min(float(dl) + 0.999, nxt - spacing(d["cons"]))
        if f < e:
            f = min(float(dl), nxt - min(1.0, spacing(d["cons"])))
        if f < e:
            f = float(e)
        d["f"], d["e"], d["dl"] = f, e, dl
        nxt = f
    prev = -10
    late = 0
    cnt = 0
    for d in dsq:
        g = max(int(d["f"]), d["e"], prev)
        if g == prev:
            cnt += 1
            if cnt >= 2 or (g + 1 <= d["dl"] and spacing(d["cons"]) >= 1):
                g += 1
                cnt = 0
        else:
            cnt = 0
        g = min(g, d["cons"] - 2)
        assert g >= d["e"] and g >= prev, (d, g, prev)
        late += g > d["dl"]
        d["gap"] = g
        prev = g

    prevg = b0.gap
    for (name, us) in pub:
        first = min(d["gap"] for d in dsq if d["u"] in us)
        g = max(first - 1, prevg + 1)
        assert g < first, (name, g, first)
        b = barrier(name, g, True)
        if name == 0:
            b.meta["need_lgkm"] = list(allreads)
        b.meta["units"] = us
        for u in us:
            u.vis = b
        prevg = g
    if cfg.defer == 4:
        barrier("stg", start_int[fin0] + 2, True)
        bars.sort(key=lambda b: b.gap)
    lastcons = {}
    for d in dsq:
        lastcons[d["u"].name] = max(lastcons.get(d["u"].name, -1), d["cons"])

    def release(u):
        if u.name in ("K0", "K1", "K2", "K3", "Q1"):
            return [b.meta["name"] for b in bars].index("c")
        if u.name == "Q2":
            return [b.meta["name"] for b in bars].index(0)
        c = [i for i, b in enumerate(bars) if b.gap >= lastcons[u.name]]
        return min(c) if c else len(bars)

    stg_bi = bars.index(next(b for b in bars if b.meta["name"] == ("stg" if cfg.defer == 4 else fin0)))
    free_at = {s: -1 for s in range(10)}
    for name in ("K0", "K1", "K2", "K3", "K4", "V0", "Q1", "Q2"):
        u = U[name]
        for k in range(u.nslots):
            free_at[u.slot + k] = release(u)
    order = []
    for (name, us) in pub:
        order += [u.name for u in sorted(us, key=lambda u: u.kind) if not u.dmas]
    dmaq = []
    for name in order:
        u = U[name]
        cand = list(free_at)
        if release(u) > stg_bi:
            cand = [s for s in cand if s >= cfg.stg_n]
        if cfg.defer == 4 and name in ("K14", "K15"):
            cand = [0, 1]
        elif cfg.defer == 4 and name in ("K12", "K13", "V7"):
            cand = [s for s in cand if s >= 2]
        slot = min(cand, key=lambda s: (free_at[s], s))
        w = free_at[slot]
        u.slot = slot
        free_at[slot] = release(u)
        e = max(bars[w].gap + 2 if w >= 0 else 1, b0.gap + 2 + cfg.dma_lead)
        ops = u.make_dmas()
        for d in ops:
            d.earliest = e
            dmaq.append(d)
    gap_ds = {}
    for d in dsq:
        gap_ds.setdefault(d["gap"], []).append(d)
    gap_dma = {}
    placed_dma = [b0.gap - 20] * 4
    last = -10
    for d in dmaq:
        u = d.meta["unit"]
        sp = cfg.dma_sp
        if last < start_int[1]:
            sp = cfg.dma_sp_fast
        g = max(d.earliest, last + sp)
        if len(placed_dma) >= cfg.dma_cap:
            g = max(g, placed_dma[-cfg.dma_cap] + (cfg.dma_win if g >= start_int[cfg.early_n] else cfg.dma_win_early))
        g0 = g
        while g in fixed or g in gap_ds:
            g += 1
        if u.vis is not None and g >= u.vis.gap - 1:
            raise SystemExit(f"DMA of {u.name} too late: {g} vs {u.vis.gap}")
        gap_dma[g] = d
        d.gap = g
        last = g
        placed_dma.append(g)
    last_dma = dmaq[-1]
    gap_dma.update(pre_dma)
    for g, o in pre_ds.items():
        o.gap = g
        gap_ds.setdefault(g, []).append({"op": o})
    flight = {u.name: u.vis.gap - u.dmas[-1].gap for u in U.values() if u.vis is not None and u.dmas[-1].gap is not None}
    for b in bars:
        b.meta["need_vm"] = [d for u in b.meta["units"] for d in u.dmas]

    reads = []
    for d in dsq:
        u = d["u"]
        if d["kind"] == "Q":
            c = d["c"]
            off = u.slot * SLOT - 65536 + (c >> 2) * 4096 + (c & 3) * 256
            o = Op(f"ds_read_b128 {d['dst']}, {vQR} offset:{off}", "ds", vQR.names, d["dst"].names)
            o.meta["need_vm"] = u.dmas[(c >> 2) * 4:(c >> 2) * 4 + 4]
            o.meta["hoist_wait"] = True
        else:
            w, off = divmod(u.slot * SLOT + d["off"], 65536)
            if d["kind"] == "K":
                o = Op(f"ds_read_b128 {d['dst']}, {vKR[w]} offset:{off}", "ds", vKR[w].names, d["dst"].names)
            else:
                a = vVR[d["h"]][w]
                o = Op(f"ds_read_b64_tr_b16 {d['dst']}, {a} offset:{off}", "ds", a.names, d["dst"].names)
        o.gap = d["gap"]
        u.reads.append(o)
        d["op"] = o
        reads.append(o)
    for blk in fixed.values():
        for o in blk:
            if "need_vm_unit" in o.meta:
                u, h = o.meta["need_vm_unit"]
                o.meta["need_vm"] = u.dmas[4 * h:4 * h + 4]

    vcc_last = [None]

    def finish_rows(rows, last):
        fin = {}
        for r in rows:
            ops = xlane("v_add_f32", vL[r], vXT[r])
            prev = last[r]
            for o in ops:
                o.deps.append((prev, 1 if "permlane" in o.text else 0))
                prev = o
            rc = Op(f"v_rcp_f32 {vRL[r]}, {vL[r]}", "trans", vL[r].names, vRL[r].names)
            rc.deps.append((prev, 0))
            cm = valu(f"v_cmp_lt_f32 vcc, s{sThr}, {vL[r]}", vL[r].names + sn(sThr), ["svcc"])
            cm.deps.append((prev, 0))
            fl = salu(f"s_or_b64 s[{sFlag}:{sFlag + 1}], s[{sFlag}:{sFlag + 1}], vcc", ["svcc"] + sn(sFlag, 2), sn(sFlag, 2) + ["scc"])
            fl.deps.append((cm, 2))
            fin[r] = (ops, rc, cm, fl)
        out = []
        for k in range(6):
            for r in rows:
                out.append(fin[r][0][k])
        for r in rows:
            if vcc_last[0] is not None:
                fin[r][2].deps.append((vcc_last[0], 0))
            out += [fin[r][1], fin[r][2], fin[r][3]]
            vcc_last[0] = fin[r][3]
        return out, {r: fin[r][1] for r in rows}

    rbq = [Reg("a", 64 + 4 * i, 4) for i in range(8)]
    tmps = [Reg("v", vS[2 * i].lo, 8) for i in range(3)]
    tmp_last = {tb.lo: sbuf_last[tb.lo] + sbuf_last[tb.lo + 4] for tb in tmps}
    tmp_min = {tb.lo: -1 for tb in tmps}
    ctr = {"t": 0, "r": 0}
    rb_last = {}
    stg_last_read = {}
    wr = {}
    stg_after = bars[stg_bi].gap + 1
    sta = {}
    for r in range(3):
        for k in range(2):
            d = vST[r][k]
            o = valu(f"v_add_u32 {d}, {r * 8192 + k * 4096}, {vST0}", vST0.names, d.names)
            o.deps.append((last_dma, 1))
            sta[(r, k)] = o

    def piece(r, s, T, rcp, half, packed):
        rdy = (pair_end[(r, T)] if cfg.pairs else grp_end[(s, 2 * T + 1)]) + cfg.sready
        X, Y = O[r][2 * T], O[r][2 * T + 1]
        src = [X[i] for i in range(4)] + [Y[i] for i in range(4)]
        D = X
        ops = []
        rd = None
        if X.f == "a":
            tb = tmps[ctr["t"] % len(tmps)]
            ctr["t"] += 1
            rd = []
            for i in range(8):
                o = valu(f"v_accvgpr_read_b32 {tb[i]}, {src[i]}", src[i].names, tb[i].names)
                o.earliest = max(rdy, tmp_min[tb.lo])
                o.deps += [(x, 0) for x in tmp_last[tb.lo]]
                rd.append(o)
            ops += rd
            src = [tb[i] for i in range(8)]
            D = tb[0:4]
        mu = []
        if packed:
            for k in range(4):
                pr = Reg("v", src[2 * k].lo, 2)
                rl2 = Reg("v", vRL[r].lo, 2)
                o = valu(f"v_pk_mul_f32 {pr}, {pr}, {rl2} op_sel_hi:[1,0]", names(pr, vRL[r]), pr.names)
                o.earliest = rdy
                o.meta["pk"] = True
                o.deps.append((rcp, 1))
                if rd:
                    o.deps += [(rd[2 * k], 0), (rd[2 * k + 1], 0)]
                mu += [o, o]
            ops += mu[::2]
        else:
            for i in range(8):
                o = valu(f"v_mul_f32 {src[i]}, {src[i]}, {vRL[r]}", names(src[i], vRL[r]), src[i].names)
                o.earliest = rdy
                o.deps.append((rcp, 1))
                if rd:
                    o.deps.append((rd[i], 0))
                mu.append(o)
            ops += mu
        cv = []
        for k in range(4):
            o = valu(f"v_cvt_pk_bf16_f32 {D[k]}, {src[2 * k]}, {src[2 * k + 1]}", names(src[2 * k], src[2 * k + 1]), D[k].names)
            o.deps += [(mu[2 * k], 0), (mu[2 * k + 1], 0)]
            if k:
                o.deps.append((cv[k - 1], 0))
            cv.append(o)
        w = []
        for xy in range(2):
            ad = vSW[xy] if cfg.tgran else vSW[2 * (T & 1) + xy]
            x = Op(f"ds_write_b64 {ad}, {D[2 * xy:2 * xy + 2]} offset:{(1024 if cfg.tgran else 2048) * half}", "ds",
                   D[2 * xy:2 * xy + 2].names + ad.names, [])
            x.deps += [(cv[2 * xy], 0), (cv[2 * xy + 1], 0)]
            x.earliest = stg_after
            x.deps += [(z, 0) for z in stg_last_read.get(half, [])]
            w.append(x)
        if rd:
            tmp_last[tb.lo] = w + [cv[3]]
        wr[(r, T)] = w
        ops += cv + w
        if T % 2 == 1 or cfg.tgran:
            H = T >> 1
            rds, sts = [], []
            for k in range(1 if cfg.tgran else 2):
                qd = rbq[ctr["r"] % len(rbq)]
                ctr["r"] += 1
                o = Op(f"ds_read_b128 {qd}, {vSR} offset:{1024 * half if cfg.tgran else 1024 * k + 2048 * half}", "ds", vSR.names, qd.names)
                o.deps += [(x, 0) for tt in ((T,) if cfg.tgran else (T - 1, T)) for x in wr[(r, tt)]]
                o.deps += [(x, 0) for x in rb_last.get(qd.lo, [])]
                o.earliest = qk_end
                stt = f"buffer_store_dwordx4 {qd}, {vST[r][k]}, s[{sO}:{sO + 3}], 0 offen offset:{64 * T if cfg.tgran else 128 * H}"
                pol = cfg.st if H < cfg.st_from else cfg.st_last
                if pol:
                    stt += " " + pol
                so = Op(stt, "vstore", qd.names + vST[r][k].names + sn(sO, 4), [])
                so.meta["data"] = frozenset(qd.names)
                so.meta["hoist_wait"] = True
                so.deps += [(o, cfg.lat), (sta[(r, k)], 0)]
                rb_last[qd.lo] = [so]
                rds.append(o)
                sts.append(so)
            stg_last_read[half] = rds
            ops += rds + sts
        return ops

    fo, rcp = finish_rows((0, 1, 2), last_add)
    vq += fo + list(sta.values())
    ep = []
    nb = 2 * cfg.stg_n
    seqTr = [(T, r) for T in range(8) for r in rord]
    if cfg.hmajor:
        seqTr = [(2 * H + k, r) for H in range(4) for r in rord for k in range(2)]
    for (T, r) in seqTr:
        if True:
            buf = (3 * T + r) % (2 * nb) if cfg.tgran else (3 * (T >> 1) + r) % nb
            ep += piece(r, 7, T, rcp[r], buf, cfg.pk and T >= cfg.pkfrom and (not cfg.pairs or r == rord[-1]))

    gaps = {g: {"s": [], "v": []} for g in range(-1, NM + 1)}
    for b in bars:
        if b.meta["hoist_wait"]:
            gaps[b.gap]["s"].append(b)
    for g, d in gap_dma.items():
        pre = d.pre
        d.pre = []
        gaps[g - 1]["s"].append(pre[-1])
        if len(pre) > 1:
            gaps[max(g - 2, 0)]["s"].insert(0, pre[0])

    def ready(o, g, strict=False):
        if o.earliest > g:
            return False
        for (d, k) in o.deps:
            if d.gap is None or d.gap + k > g or (strict and d.gap >= g):
                return False
        return True

    queue = list(vq)
    equeue = list(lowq) + list(ep)
    guard_at = {}
    for (g, ops) in guards:
        guard_at.setdefault(g, []).extend(ops)
    overflow = 0

    def place(o, g, where="v"):
        o.gap = g
        gaps[g][where].append(o)
        (queue if o in queue else equeue).remove(o)

    def force(o, g):
        nonlocal overflow
        if o.gap is not None:
            return
        for (d, k) in o.deps:
            if d.gap is None:
                force(d, g)
        assert o.earliest <= g, (o, g)
        overflow += 1
        place(o, g)

    W = 120

    def pick(kinds, g, strict=False, pk=False, pred=None):
        for qq in (queue, equeue):
            for o in qq[:W]:
                if o.kind in kinds and bool(o.meta.get("pk")) == pk and ready(o, g, strict) and (pred is None or pred(o)):
                    return o
        return None

    def pk_group(g):
        o = pick(("valu",), g, pk=True)
        if o is None:
            return None
        i = equeue.index(o)
        grp = [x for x in equeue[i:i + 4] if x.meta.get("pk")]
        return grp if all(ready(x, g) for x in grp) else None

    since = {}
    xacc = hacc = 0.0
    for g in range(0, NM):
        cap = 2
        mem = False
        nds = len(gap_ds.get(g, []))
        if nds:
            for d in gap_ds[g]:
                gaps[g]["v"].append(d["op"])
            cap = 1 if nds == 1 else 0
            mem = True
        if g in gap_dma:
            gaps[g]["v"].append(gap_dma[g])
            cap = 0
            mem = True
        light = cfg.dma_light and (g + 1) in gap_dma and g >= cfg.light_from and g > b0.gap
        if light:
            cap = min(cap, 0 if mem else 1)
        extra = 0
        if g <= b0.gap:
            extra = cfg.xpre
        if b0.gap < g < start_int[0] + cfg.xh_len and g not in gap_dma:
            hacc += cfg.xh
            extra = int(hacc)
            hacc -= extra
        if g >= start_int[fin0] - cfg.xlead and not light and g not in gap_dma:
            nst = sum(1 for o in ep if o.kind == "vstore" and o.gap is not None)
            xacc += cfg.xf_first if (nst < cfg.xf_nst and g >= start_int[fin0]) else cfg.xf
            extra = int(xacc)
            xacc -= extra
        o = pick(("salu",), g)
        if o is not None:
            place(o, g, "s")
        ex = pick(("trans",), g)
        if ex is not None:
            since.setdefault(id(ex), g)
        heavy = False
        pg = pk_group(g)
        if pg:
            since.setdefault(id(pg[0]), g)
        age = g - since[id(pg[0])] if pg else -1
        so = pick(("vstore",), g, True) if g not in gap_dma and nds <= 1 else None
        if so is not None:
            place(so, g)
            cap = 4 - nds
            extra = 0
            mem = True
            heavy = True
        elif not (mem or ex):
            mo = pick(("ds",), g, True)
            if mo is not None:
                place(mo, g)
                cap = 1
                mem = True
                if mo.text.startswith("ds_write"):
                    extra = 0
                    if pg and age >= cfg.pk_age:
                        cap = 2
                        heavy = True
        if not heavy and pg and age >= cfg.pk_age2 and g not in gap_dma and not light:
            cap = 5 - len(gaps[g]["v"])
            extra = 0
            heavy = True
        if ex is not None and not light and (not mem or heavy or (g <= b0.gap and cfg.xpre) or (g not in gap_dma and g - since[id(ex)] >= cfg.exp_age)):
            place(ex, g)
            cap = cap - 2 if heavy else 0
        cap += extra
        while cap > 0:
            o = pick(("valu",), g)
            if o is None:
                break
            place(o, g)
            cap -= 1
        if heavy:
            pg = pk_group(g)
            if pg:
                for x in pg:
                    place(x, g)
        for o in guard_at.get(g, []):
            force(o, g)
        if g in fixed and cfg.preflush and g not in noflush:
            for o in list(queue):
                if o.meta.get("pre") is not None and o.meta["pre"] <= g:
                    place(o, g)
    tail = []
    clock = NM
    k = 0
    rest = queue + equeue
    while rest:
        o = next((o for o in rest if o.kind == "vstore" and ready(o, clock, True)), None)
        if o is None:
            o = next((o for o in rest if o.kind == "ds" and ready(o, clock)), None)
        if o is None:
            o = next((o for o in rest if o.kind not in ("ds", "vstore") and ready(o, clock)), None)
        if o is None:
            clock += 1
            continue
        o.gap = clock
        rest.remove(o)
        tail.append(o)
        k += 1
        if k % 3 == 0:
            clock += 1

    prog = list(pro)
    for o in fixed[-1]:
        o.gap = -1
    prog += fixed[-1]
    inv_start = {v: k for k, v in start_int.items()}
    pos_int = {}
    for g in range(NM):
        M[g].gap = g
        prog.append(M[g])
        if g + 1 in inv_start and (inv_start[g + 1] % cfg.stamp_every == 0 or (not cfg.hstamps and (inv_start[g + 1] < 3 or inv_start[g + 1] >= 2 * NP))):
            prog += stamp(f"i{inv_start[g + 1]}")
            if inv_start[g + 1] in (0, fin0):
                prog += stamp(f"t{inv_start[g + 1]}", True)
        prog += gaps[g]["s"]
        prog += gaps[g]["v"]
        if g in fixed:
            for o in fixed[g]:
                o.gap = g
            prog += fixed[g]
    prog += stamp("mfmaend")
    prog += stamp("mfmaendR", True)
    prog += tail
    prog += stamp("stissued", True)
    if cfg.stamps:
        prog.append(Op("s_waitcnt vmcnt(0)", "wait", meta={"fixed": True}))
        prog += stamp("drained", True)
    prog += stamp.finish()
    prog.append(Op(f"s_cmp_lg_u64 s[{sFlag}:{sFlag + 1}], 0", "raw"))
    prog.append(Op("s_cbranch_scc1 L_fallback", "raw"))

    for o in prog:
        if o.kind == "mfma":
            o.meta["cover"] = [x for x in reads if x.gap <= o.gap - 1 - cfg.age and x.gap > o.gap - 40]
    prog = insert_waits_cover(prog)
    prog, moved = spread_scalars(prog)
    prog, pads = fix_hazards(prog, verbose=cfg.verbose)
    verify_lds(prog, U, None, cfg)
    idx = {id(o): i for i, o in enumerate(prog)}
    seg = lambda a, b: estimate_cycles(prog[idx[id(M[a])]:idx[id(M[b])] + 1])
    ints = sorted(start_int.items())
    est = {n: seg(g, (ints[i + 1][1] if i + 1 < len(ints) else NM) - 1) for i, (n, g) in enumerate(ints)}
    info = dict(NM=NM, late=late, overflow=overflow, pads=pads, est_main=seg(start_int[0], NM - 1),
                ideal=16 * (NM - start_int[0]), est_tail=estimate_cycles(prog[idx[id(M[-1])] + 1:]), n=len(prog), tail=len(tail),
                waits=sum(1 for o in prog if o.kind == "wait"), est=list(est.values()),
                pre2=seg(b0.gap + 1, start_int[0] - 1), total=seg(b0.gap + 1, NM - 1) + estimate_cycles(prog[idx[id(M[-1])] + 1:]))
    if cfg.verbose:
        print("flight", flight)
        print("slots", {u.name: u.slot for u in U.values()})
        print("bars", [(b.meta["name"], b.gap) for b in bars])
        print("ints", start_int, "last dma", last_dma.gap, "stores", [o.gap for o in ep if o.kind == "vstore"])
    cfg.stamp_names = stamp.list
    return prog, info


def insert_waits_cover(prog):
    pend = set()
    for o in prog:
        if o.kind == "ds":
            pend |= set(o.writes)
        if o.kind == "mfma" and (o.reads & pend):
            cov = o.meta.get("cover", [])
            o.meta["need_lgkm"] = cov
            for x in cov:
                pend -= set(x.writes)
            pend -= set(o.reads)
    return insert_waits(prog)


def verify_scalars(prog):
    last = {}
    for o in prog:
        if o.kind == "dma":
            for e in o.meta["expect"]:
                for r in e.writes:
                    if r != "scc":
                        assert last.get(r) is e, ("scalar operand clobbered", o.text, e.text)
            for r in o.reads:
                if r[0] == "v":
                    assert last[r].kind == "valu" and last[r].gap is None, ("DMA address clobbered", o.text, last[r].text)
        for r in o.writes:
            last[r] = o


def verify_dataflow(prog):
    pos = {id(o): i for i, o in enumerate(prog)}
    for o in prog:
        for (d, k) in o.deps:
            assert pos[id(d)] < pos[id(o)], ("order", d.text, o.text)


def verify_lds(prog, U, stg_bar, cfg):
    verify_scalars(prog)
    verify_dataflow(prog)
    pos = {id(o): i for i, o in enumerate(prog)}
    bars = [o for o in prog if o.kind == "barrier"]
    occ = {}
    for u in U.values():
        for k in range(u.nslots):
            occ.setdefault(u.slot + k, []).append(u)
        if u.kind != "Q":
            for rd in u.reads:
                b = u.vis
                assert pos[id(b)] < pos[id(rd)], ("read before barrier", u.name)
                for d in u.dmas:
                    assert d.meta["vm_idx"] < b.meta["vm_done_at"], ("dma not waited", u.name)
    for s, us in occ.items():
        us.sort(key=lambda u: pos[id(u.dmas[0])])
        for a, b in zip(us, us[1:]):
            first = min(pos[id(d)] for d in b.dmas)
            ok = any(pos[id(br)] < first and all(rd.meta["lg_idx"] < br.meta["lg_done_at"] for rd in a.reads) for br in bars)
            assert ok, ("slot WAR", s, a.name, b.name)
    writes = [o for o in prog if o.kind == "ds" and o.text.startswith("ds_write")]
    firstw = min(pos[id(o)] for o in writes)
    lo, hi = cfg.stg_base, cfg.stg_base + 4 * cfg.stg_wave
    for s, us in occ.items():
        if s * SLOT < hi and (s + 1) * SLOT > lo:
            for u in us:
                ok = any(pos[id(br)] < firstw and all(rd.meta["lg_idx"] < br.meta["lg_done_at"] for rd in u.reads) for br in bars)
                assert ok, ("staging WAR", s, u.name)


def fallback(cfg):
    L = []
    A = L.append
    t = Reg("v", 104, 12)
    KFf = KF[0]
    VFf = [Reg("a", 192, 4), Reg("a", 200, 4)]
    A("L_fallback:")
    A("s_waitcnt vmcnt(0) lgkmcnt(0)")
    A("s_barrier")
    A(f"s_mul_i32 s{sT3}, s{sW}, 40960")
    A(f"v_and_b32 {t[0]}, 63, v0")
    A(f"v_bfe_u32 {t[2]}, {t[0]}, 2, 2")
    A(f"v_lshlrev_b32 {t[2]}, 9, {t[2]}")
    A(f"v_lshrrev_b32 {t[5]}, 4, {t[0]}")
    A(f"v_lshl_add_u32 {t[2]}, {t[5]}, 6, {t[2]}")
    A(f"v_and_b32 {t[3]}, 3, {t[0]}")
    fk = [Reg("v", 80 + i, 1) for i in range(4)]
    fv = [Reg("v", 84 + i, 1) for i in range(4)]
    for rg in range(4):
        A(f"v_xor_b32 {t[4]}, {FR[rg]}, {t[3]}")
        A(f"v_lshl_add_u32 {fk[rg]}, {t[4]}, 4, {t[2]}")
        A(f"v_add_u32 {fk[rg]}, {rg * 2048}, {fk[rg]}")
        A(f"v_xor_b32 {t[4]}, {2 * (rg & 1)}, {t[3]}")
        A(f"v_lshl_add_u32 {fv[rg]}, {t[4]}, 4, {t[2]}")
        A(f"v_add_u32 {fv[rg]}, {rg * 2048}, {fv[rg]}")
    rk, rv0, rv1 = Reg("v", 88, 1), Reg("v", 89, 1), Reg("v", 90, 1)
    so = [Reg("v", 91 + r, 1) for r in range(3)]
    tmp8 = Reg("v", 96, 8)
    A(f"v_add_u32 {rk}, s{sT3}, {vKR[0]}")
    A(f"v_add_u32 {rv0}, s{sT3}, {vVR[0][0]}")
    A(f"v_add_u32 {rv1}, s{sT3}, {vVR[1][0]}")
    A(f"v_and_b32 {t[6]}, 15, {t[0]}")
    A(f"s_mul_i32 s{sT1}, s{sW}, 48")
    A(f"v_add_u32 {t[6]}, s{sT1}, {t[6]}")
    A(f"v_lshlrev_b32 {t[6]}, 9, {t[6]}")
    A(f"v_and_b32 {t[7]}, 1, {t[5]}")
    A(f"v_lshl_add_u32 {t[6]}, {t[7]}, 5, {t[6]}")
    A(f"v_lshrrev_b32 {t[7]}, 1, {t[5]}")
    A(f"v_lshl_add_u32 {so[0]}, {t[7]}, 4, {t[6]}")
    A(f"v_add_u32 {so[1]}, 8192, {so[0]}")
    A(f"v_add_u32 {so[2]}, 16384, {so[0]}")
    A(f"s_mul_i32 s{sT2}, s{sW}, {48 * 512}")
    for r in range(3):
        for rg in range(4):
            A(f"v_add_u32 {t[8]}, s{sT2}, {fk[rg]}")
            A(f"v_add_u32 {t[8]}, {r * 8192}, {t[8]}")
            for half in range(2):
                A(f"s_add_u32 m0, s{sT3}, {half * 4096 + rg * 1024 - half * 256}")
                A("s_nop 0")
                A(f"buffer_load_dwordx4 {t[8]}, s[{sQ}:{sQ + 3}], 0 offen offset:{half * 256} lds")
        A("s_waitcnt vmcnt(0)")
        for c in range(8):
            A(f"ds_read_b128 {Q[r][c]}, {rk} offset:{(c >> 2) * 4096 + (c & 3) * 256}")
        A("s_waitcnt lgkmcnt(0)")
    Pf = [vP[0][r][0] for r in range(3)]

    def load_k():
        for a in range(2):
            A(f"s_add_u32 s{sT1}, s{sT0}, {a * 8192}")
            for half in range(2):
                for rg in range(4):
                    A(f"s_add_u32 m0, s{sT3}, {a * 8192 + half * 4096 + rg * 1024 - half * 256}")
                    A("s_nop 0")
                    A(f"buffer_load_dwordx4 {fk[rg]}, s[{sK}:{sK + 3}], s{sT1} offen offset:{half * 256} lds")

    def load_v():
        for dh in range(2):
            for a in range(2):
                A(f"s_add_u32 s{sT1}, s{sT0}, {a * 8192 + dh * 256}")
                for rg in range(4):
                    A(f"s_add_u32 m0, s{sT3}, {16384 + dh * 8192 + a * 4096 + rg * 1024}")
                    A("s_nop 0")
                    A(f"buffer_load_dwordx4 {fv[rg]}, s[{sV}:{sV + 3}], s{sT1} offen lds")

    def qk(a):
        for c in range(8):
            A(f"ds_read_b128 {KFf[c]}, {rk} offset:{a * 8192 + (c >> 2) * 4096 + (c & 3) * 256}")
        A("s_waitcnt lgkmcnt(0)")
        for r in range(3):
            for c in range(8):
                A(f"v_mfma_f32_16x16x32_bf16 {vS[r]}, {KFf[c]}, {Q[r][c]}, {vS[r] if c else 0}")
        A("s_nop 15")

    def xl(op, x, tmp):
        for o in xlane(op, x, tmp):
            A("s_nop 1")
            A(o.text)

    for r in range(3):
        A(f"v_mov_b32 {vNM[r]}, 0xff800000")
    A(f"s_mov_b32 s{sT0}, 0")
    A("L_fb1:")
    load_k()
    A("s_waitcnt vmcnt(0)")
    for a in range(2):
        qk(a)
        for r in range(3):
            A(f"v_max3_f32 {vNM[r]}, {vNM[r]}, {vS[r][0]}, {vS[r][1]}")
            A(f"v_max3_f32 {vNM[r]}, {vNM[r]}, {vS[r][2]}, {vS[r][3]}")
    A(f"s_add_u32 s{sT0}, s{sT0}, 16384")
    A(f"s_cmp_lt_u32 s{sT0}, 262144")
    A("s_cbranch_scc1 L_fb1")
    for r in range(3):
        xl("v_max_f32", vNM[r], t[4])
        A(f"v_mul_f32 {vNM[r]}, {f2u(-C_SCALE):#x}, {vNM[r]}")
        A(f"v_mov_b32 {vL[r]}, 0")
    for r in range(3):
        for tt in range(16):
            for i in range(4):
                x = O[r][tt][i]
                A(f"v_mov_b32 {x}, 0" if x.f == "v" else f"v_accvgpr_write_b32 {x}, 0")
    A(f"s_mov_b32 s{sT0}, 0")
    A("L_fb2:")
    load_k()
    load_v()
    A("s_waitcnt vmcnt(0)")
    for a in range(2):
        qk(a)
        for r in range(3):
            S = vS[r]
            for i in range(4):
                A(f"v_fma_f32 {S[i]}, {S[i]}, s{sC}, {vNM[r]}")
            for i in range(4):
                A(f"v_exp_f32 {S[i]}, {S[i]}")
            A("s_nop 1")
            for i in range(4):
                A(f"v_add_f32 {vL[r]}, {vL[r]}, {S[i]}")
            for k in range(2):
                A(f"v_cvt_pk_bf16_f32 {Pf[r][2 * a + k]}, {S[2 * k]}, {S[2 * k + 1]}")
    A("s_nop 3")
    for tt in range(16):
        for s in range(2):
            base = rv0 if (tt & 1) == 0 else rv1
            off = 16384 + (tt >> 3) * 8192 + s * 4096 + ((tt & 7) >> 1) * 256
            A(f"ds_read_b64_tr_b16 {VFf[tt & 1][2 * s:2 * s + 2]}, {base} offset:{off}")
        A("s_waitcnt lgkmcnt(0)")
        for r in range(3):
            A(f"v_mfma_f32_16x16x32_bf16 {O[r][tt]}, {VFf[tt & 1]}, {Pf[r]}, {O[r][tt]}")
    A("s_nop 15")
    A(f"s_add_u32 s{sT0}, s{sT0}, 16384")
    A(f"s_cmp_lt_u32 s{sT0}, 262144")
    A("s_cbranch_scc1 L_fb2")
    for r in range(3):
        xl("v_add_f32", vL[r], t[4])
        A(f"v_rcp_f32 {vRL[r]}, {vL[r]}")
    A("s_nop 3")
    for T in range(8):
        for r in range(3):
            X, Y = O[r][2 * T], O[r][2 * T + 1]
            src = [X[i] for i in range(4)] + [Y[i] for i in range(4)]
            if X.f == "a":
                for i in range(8):
                    A(f"v_accvgpr_read_b32 {tmp8[i]}, {src[i]}")
                src = [tmp8[i] for i in range(8)]
            for i in range(8):
                A(f"v_mul_f32 {src[i]}, {src[i]}, {vRL[r]}")
            D = vS[(3 * T + r) % NSB]
            for k in range(4):
                A(f"v_cvt_pk_bf16_f32 {D[k]}, {src[2 * k]}, {src[2 * k + 1]}")
            A("s_nop 1")
            A(f"v_permlane16_swap_b32 {D[0]}, {D[2]}")
            A(f"v_permlane16_swap_b32 {D[1]}, {D[3]}")
            A(f"buffer_store_dwordx4 {D}, {so[r]}, s[{sO}:{sO + 3}], 0 offen offset:{64 * T}")
    A("s_waitcnt vmcnt(0)")
    return L


HEADER = """; GQA attention forward, B=8 Hq=16 Hkv=8 Sq=368 Sk=512 D=256, bf16.  Hand-designed schedule, emitted by my own
; generator script (fixed MFMA order, slot scheduler for the other instructions, counted waits, hazard padding).
;   O^T = V^T P^T (V fragments by transposing LDS reads).  K/V stream through ten 16 KiB LDS slots by LDS-DMA.
;   sum above 2^64 recomputes its rows in two passes with the true row maximum (L_fallback) and overwrites them.
; @launch grid=(256,1,1) block=(256,1,1) lds=163840
.amdgcn_target "amdgcn-amd-amdhsa--gfx950"
.text
.globl {k}
.p2align 8
.type {k},@function
{k}:
"""

FOOTER = """L_end:
    s_endpgm
.section .rodata,"a"
.p2align 6
.amdhsa_kernel {k}
  .amdhsa_next_free_vgpr 512
  .amdhsa_next_free_sgpr 102
  .amdhsa_accum_offset 256
  .amdhsa_group_segment_fixed_size 0
  .amdhsa_kernarg_size 48
  .amdhsa_user_sgpr_count 2
  .amdhsa_user_sgpr_kernarg_segment_ptr 1
  .amdhsa_system_sgpr_workgroup_id_x 1
.end_amdhsa_kernel
"""


def render(cfg, prog):
    s = HEADER.format(k=KNAME)
    if cfg.align12:
        s = s.replace(".p2align 8\n", ".p2align 12\n.p2align 8\n", 1)
    if cfg.stamps and cfg.spin == -1:
        s = "; stamps: " + " ".join(n + ("*" if r else "") for n, r in cfg.stamp_names) + "\n" + s
    for o in prog:
        s += (o.text if o.kind == "label" else "    " + o.text) + "\n"
    s += "    s_endpgm\nL_mainend:\n"
    for l in fallback(cfg):
        s += (l if l.endswith(":") else "    " + l) + "\n"
    s += FOOTER.format(k=KNAME)
    return s


def addresses(text, n):
    import subprocess, re, tempfile, os
    d = tempfile.mkdtemp()
    open(d + "/x.s", "w").write(text)
    subprocess.run(["clang", "-x", "assembler", "-target", "amdgcn-amd-amdhsa", "-mcpu=gfx950", "-c",
                    d + "/x.s", "-o", d + "/x.o"], check=True)
    out = subprocess.run(["llvm-objdump", "-d", "--mcpu=gfx950", d + "/x.o"], capture_output=True, text=True).stdout
    return [int(m.group(1), 16) for m in re.finditer(r"// ([0-9A-F]+):", out)][:n]


def add_walk(cfg, prog):
    iw = next(i for i, o in enumerate(prog) if o.text == "WALK")
    head, body = prog[:iw], prog[iw + 1:]
    lab = lambda t: Op(t, "label")
    raw = lambda t: Op(t, "raw")
    stubs = []
    for it in range(20):
        b2 = []
        for i, o in enumerate(body):
            if i in stubs:
                k = stubs.index(i)
                b2.append(lab(f"L_pg{k}:"))
                b2.append(raw(f"s_cbranch_execz L_wr{k}"))
            b2.append(o)
        npg = len(stubs)
        walk = [raw("s_mov_b64 exec, 0")]
        for w in range(4):
            if w < npg:
                walk += [raw(f"s_cmp_eq_u32 s{sW}, {w}"), raw(f"s_cbranch_scc1 L_pg{w}")]
        walk.append(raw("s_branch L_wdone"))
        for k in range(npg):
            walk.append(lab(f"L_wr{k}:"))
            walk.append(raw(f"s_branch L_pg{k + 4}" if k + 4 < npg else "s_branch L_wdone"))
        walk += [lab("L_wdone:"), raw("s_mov_b64 exec, -1")]
        full = head + walk + b2
        ins = [o for o in full if o.kind != "label"]
        addr = addresses(render(cfg, full), len(ins))
        amap = {id(o): a + cfg.base_off for o, a in zip(ins, addr)}
        want = []
        prev = amap[id(next(o for o in body if o.kind != "label"))] // 4096
        for i, o in enumerate(body):
            if o.kind == "label":
                continue
            pg = amap[id(o)] // 4096
            if pg != prev:
                j = i
                for jj in range(i, min(i + cfg.walk_win, len(body))):
                    if body[jj - 1].kind == "mfma" and amap[id(body[jj - 1])] // 4096 == pg and body[jj].kind not in ("salu", "wait", "barrier"):
                        j = jj
                        break
                want.append(j)
                prev = pg
        if want == stubs:
            return full
        stubs = want
    return full


def emit(cfg):
    prog, info = build(cfg)
    if cfg.x_nobar:
        prog = [o for o in prog if not (o.kind == "barrier" and o.meta.get("hoist_wait"))]
    if cfg.x_nodma:
        prog = [o for o in prog if not (o.kind == "dma" and o.gap is not None and o.gap > 130)]
    if cfg.x_nowait:
        prog = [o for o in prog if not (o.kind == "wait" and "lgkm" in o.text and not o.meta.get("fixed"))]
    if cfg.walk:
        prog = add_walk(cfg, prog)
    return render(cfg, prog), info


Cfg.walk = True
Cfg.walk_win = 8
Cfg.base_off = 0x300
Cfg.spin_name = ""
Cfg.stamp_every = 1
Cfg.pkfrom = 7
Cfg.pk_age = 2
Cfg.pk_age2 = 4
Cfg.dma_light = True
Cfg.defer = 3
Cfg.softb0 = True
Cfg.padzero = False
Cfg.dma_win_early = 96
Cfg.early_n = 2
Cfg.light_from = 0
Cfg.xh = 1.0
Cfg.xh_len = 24
Cfg.first_order = "cccGGGG"
Cfg.xf_first = 0.5
Cfg.xf_nst = 2
Cfg.pairs = True
Cfg.nofl = "12"
Cfg.touch = "V"
Cfg.dfhead = 2
Cfg.head_a3 = "Q2b"
Cfg.inter = True
Cfg.xpre = 1
Cfg.g_r0a = "Q1b@10:10"
Cfg.g_r0b = ""
Cfg.g_r1 = ""
Cfg.hstamps = False
Cfg.hmajor = True
Cfg.rord = "021"
Cfg.tgran = False
Cfg.x_nobar = False
Cfg.x_nodma = False
Cfg.x_nowait = False
Cfg.align12 = True
Cfg.ldv = "="
Cfg.st_from = 9
Cfg.st_last = ""
Cfg.kdouble = False
Cfg.spf = 1.5
Cfg.xf = 0.0
Cfg.xlead = 48
Cfg.dma_lead = 0
Cfg.head = "Q0a,K0,pf,Q0b,K1,K2,|,walk,Q1a,K3"
Cfg.head_a = ""
Cfg.head_a2 = "Q2a"
Cfg.head_c = "K4"
Cfg.head_0 = "V0"
Cfg.half_r = ""
Cfg.dma_cap = 12
Cfg.dma_win = 96
Cfg.join_order = "cGcGGGc"
Cfg.p7_order = "cGGGG"
Cfg.stg_bar = 14
Cfg.stg_n = 1
Cfg.sp7 = 1.3333
Cfg.sp2 = 1.3333
Cfg.x15 = 3
Cfg.x15_lead = 16
Cfg.x8 = 6
Cfg.x9 = 2
Cfg.xmem = 2
Cfg.exp_age = 3
Cfg.q2_before = "K5"
Cfg.dma_sp_fast = 3
Cfg.tail_extra = 3
Cfg.p7_extra = 0
Cfg.stag2 = ""
Cfg.stag_sh = 6
Cfg.stagger = ""
Cfg.cls_shift = 6
Cfg.cls_mask = 0

if __name__ == "__main__":
    ap = argparse.ArgumentParser()
    ap.add_argument("-o", default="standalone__gqa_softmax__near_ridge.s")
    ap.add_argument("-v", action="store_true")
    ap.add_argument("opts", nargs="*")
    a = ap.parse_args()
    cfg = Cfg()
    cfg.verbose = a.v
    for kv in a.opts:
        k, v = kv.split("=", 1)
        if k == "spin":
            cfg.spin, cfg.spin_name, cfg.stamps = 1, v, True
            continue
        old = getattr(cfg, k)
        if isinstance(old, bool):
            v = v in ("1", "true", "True")
        elif isinstance(old, int):
            v = int(v)
        elif isinstance(old, float):
            v = float(v)
        setattr(cfg, k, v.replace("+", " ") if isinstance(v, str) else v)
    s, info = emit(cfg)
    open(a.o, "w").write(s)
    print(info, len(s))
```

```python
import sys, math, argparse, struct
sys.path.insert(0, __file__.rsplit("/", 1)[0])
from ir import *

KNAME = "standalone__gqa_softmax__near_ridge_kernel"
C_SCALE = math.log2(math.e) / 16.0


def f2u(x):
    return struct.unpack("<I", struct.pack("<f", x))[0]


class Cfg:
    ldq = "nt"
    ldkv = "nt"
    ldkv0 = ""
    st = "nt"
    lat = 6
    age = 5
    sready = 4
    stamps = False
    dbg = False
    spin = -1
    spinwg = -1
    codepf = True
    force_fallback = False
    dma_sp = 6
    preflush = True
    y = 2
    pk = True
    verbose = False


sQ, sK, sV, sO = 12, 16, 20, 24
sW1K = 28
sC = 29
sKoff = 30
sVoff = 31
sT0, sT1, sT2, sT3 = 32, 33, 34, 35
sW = 36
sThr = 37
sW8K = 38
sCls = 39
sFlag = 40
sDBG = 44
vKR = [Reg("v", 1, 1), Reg("v", 2, 1), Reg("v", 3, 1)]
vVR = [[Reg("v", 4 + 3 * h + w, 1) for w in range(3)] for h in range(2)]
vDK = [Reg("v", 10, 1), Reg("v", 11, 1)]
vDV = [Reg("v", 12 + a, 1) for a in range(4)]
vST = [[Reg("v", 10 + 2 * r + k, 1) for k in range(2)] for r in range(3)]
vL = [Reg("v", 16 + r, 1) for r in range(3)]
vST0 = Reg("v", 19, 1)
vNM = [Reg("v", 20 + 2 * r, 1) for r in range(3)]
vRL = vNM
vSR = Reg("v", 21, 1)
vSW = [Reg("v", 23, 1), Reg("v", 25, 1), Reg("v", 26, 1), Reg("v", 27, 1)]
vXT = [Reg("v", 28 + r, 1) for r in range(3)]
vQR = Reg("v", 31, 1)
NSB = 6
vS = [Reg("v", 32 + 4 * i, 4) for i in range(NSB)]
vP = [[[Reg("v", 56 + 24 * b + 8 * r + 4 * kc, 4) for kc in range(2)] for r in range(3)] for b in range(3)]
vT = Reg("v", 32, 12)
vX = Reg("v", 44, 2)
O = [[Reg("v", 128 + 4 * t, 4) for t in range(16)],
     [Reg("v", 192 + 4 * t, 4) for t in range(16)],
     [Reg("a", 4 * t, 4) for t in range(16)]]
preK = [[Reg("v", 128 + 32 * a + 4 * c, 4) for c in range(8)] for a in range(4)] + \
       [[Reg("a", base + 4 * c, 4) for c in range(8)] for base in (0, 32, 192, 224)]
Q = [[Reg("a", 64 + 32 * r + 4 * c, 4) for c in range(8)] for r in range(3)]
KF = [[Reg("a", 160 + 4 * c, 4) for c in range(8)], [Reg("a", 224 + 4 * c, 4) for c in range(8)],
      [Reg("a", 192 + 4 * c, 4) for c in range(8)]]
VFB = [192 + 8 * b for b in range(4)]

SLOT = 16384
STG = 528
FR = (0, 2, 3, 1)


def sn(i, n=1):
    return R("s", i, n)


def valu(text, reads=(), writes=(), tag=""):
    return Op(text, "valu", reads, writes, tag)


def salu(text, reads=(), writes=()):
    return Op(text, "salu", reads, writes)


def names(*regs):
    out = []
    for r in regs:
        out += r.names if isinstance(r, Reg) else [r]
    return out


def mfma(D, A, B, C=None):
    c = str(C) if C is not None else "0"
    op = Op(f"v_mfma_f32_16x16x32_bf16 {D}, {A}, {B}, {c}", "mfma",
            names(A, B) + (C.names if C is not None else []), D.names)
    op.meta["srcab"] = frozenset(names(A, B))
    op.meta["srcc"] = frozenset(C.names) if C is not None else frozenset()
    return op


def dma(vaddr, srd, soff, imm, pol):
    so = f"s{soff}" if soff is not None else "0"
    t = f"buffer_load_dwordx4 {vaddr}, s[{srd}:{srd + 3}], {so} offen"
    if imm:
        t += f" offset:{imm}"
    if pol:
        t += " " + pol
    t += " lds"
    return Op(t, "dma", vaddr.names + sn(srd, 4) + (sn(soff) if soff is not None else []) + ["m0"], [])


def set_m0(const, base=sW1K):
    return salu(f"s_add_u32 m0, s{base}, {const}", sn(base), ["m0", "scc"])


class Unit:
    def __init__(self, kind, n, cfg):
        self.kind, self.n, self.cfg = kind, n, cfg
        self.slot = None
        self.nslots = 2 if kind == "Q" else 1
        self.dmas = []
        self.reads = []
        self.vis = None
        self.name = f"{kind}{n}"

    def make_dmas(self, vq=None):
        cfg = self.cfg
        ops = []
        base = self.slot * SLOT
        src = self.n % 16
        pol = cfg.ldkv if self.kind == "K" or cfg.ldv == "=" else cfg.ldv
        if self.kind == "K":
            so = salu(f"s_mov_b32 s{sKoff}, {src * 16384}", [], sn(sKoff))
            for a in range(2):
                for half in range(2):
                    d = dma(vDK[a], sK, sKoff, half * 256, pol)
                    d.pre = [set_m0(base + a * 8192 + half * 4096 - half * 256)]
                    ops.append(d)
            ops[0].pre.insert(0, so)
        elif self.kind == "V":
            j, h = divmod(src, 2)
            so = salu(f"s_mov_b32 s{sVoff}, {j * 32768 + h * 256}", [], sn(sVoff))
            for a in range(4):
                d = dma(vDV[a], sV, sVoff, 0, pol)
                d.pre = [set_m0(base + a * 4096)]
                ops.append(d)
            ops[0].pre.insert(0, so)
        else:
            for half in range(2):
                for rg in range(4):
                    d = dma(vq[rg], sQ, None, half * 256, cfg.ldq)
                    d.pre = [set_m0(base + half * 4096 + rg * 1024 - half * 256, sW8K)]
                    ops.append(d)
        for d in ops:
            d.meta["unit"] = self
            d.meta["expect"] = [d.pre[-1]] + ([ops[0].pre[0]] if self.kind != "Q" else [])
        self.dmas = ops
        return ops


def flat_dmas(ops):
    out = []
    for d in ops:
        out += d.pre
        out.append(salu("s_nop 0"))
        out.append(d)
        d.pre = []
    return out


def xlane(op, x, tmp):
    o = []
    o.append(valu(f"v_mov_b32 {tmp}, {x}", x.names, tmp.names))
    o.append(valu(f"v_permlane32_swap_b32 {x}, {tmp}", names(x, tmp), names(x, tmp)))
    o.append(valu(f"{op} {x}, {x}, {tmp}", names(x, tmp), x.names))
    o.append(valu(f"v_mov_b32 {tmp}, {x}", x.names, tmp.names))
    o.append(valu(f"v_permlane16_swap_b32 {x}, {tmp}", names(x, tmp), names(x, tmp)))
    o.append(valu(f"{op} {x}, {x}, {tmp}", names(x, tmp), x.names))
    return o


class Stamps:
    def __init__(self, cfg):
        self.cfg = cfg
        self.list = []

    def __call__(self, name, real=False):
        cfg = self.cfg
        if not cfg.stamps:
            return []
        if cfg.spin != -1:
            if name != cfg.spin_name:
                return []
            return [Op("s_memrealtime s[48:49]", "salu")]
        k = len(self.list)
        assert 48 + 2 * k + 1 <= 101, "too many stamps"
        self.list.append((name, real))
        return [Op(f"{'s_memrealtime' if real else 's_memtime'} s[{48 + 2 * k}:{49 + 2 * k}]", "salu")]

    def finish(self):
        cfg = self.cfg
        o = []
        raw = lambda t: o.append(Op(t, "raw"))
        if not cfg.stamps:
            return o
        raw("s_waitcnt lgkmcnt(0)")
        if cfg.spin != -1:
            if cfg.spinwg >= 0:
                raw(f"s_cmp_lg_u32 s2, {cfg.spinwg}")
                raw("s_cbranch_scc1 L_end")
            o.append(Op("L_spin:", "label"))
            raw("s_memrealtime s[50:51]")
            raw("s_waitcnt lgkmcnt(0)")
            raw("s_sub_u32 s50, s50, s48")
            raw("s_cmp_lt_u32 s50, 5000")
            raw("s_cbranch_scc1 L_spin")
            return o
        raw("v_mov_b32 v40, 0")
        for k in range(len(self.list)):
            raw(f"v_writelane_b32 v40, s{48 + 2 * k}, {k}")
        raw(f"s_load_dwordx2 s[{sDBG}:{sDBG + 1}], s[0:1], 40")
        raw(f"s_mov_b32 s{sDBG + 2}, 0x1000000")
        raw(f"s_mov_b32 s{sDBG + 3}, 0x00020000")
        raw("s_lshl_b32 s48, s2, 8")
        raw("v_add_u32 v41, s48, v0")
        raw("v_lshlrev_b32 v41, 2, v41")
        raw("s_waitcnt lgkmcnt(0)")
        raw(f"buffer_store_dword v40, v41, s[{sDBG}:{sDBG + 3}], 0 offen")
        return o


def prologue(cfg, U, stamp):
    P = []
    A = P.append
    raw = lambda t: A(Op(t, "raw"))
    raw("s_cmp_ge_u32 s2, 256")
    raw("s_cbranch_scc1 L_end")
    raw("s_load_dwordx4 s[4:7], s[0:1], 0")
    raw("s_load_dwordx4 s[8:11], s[0:1], 16")
    P += stamp("start", True)
    t = vT
    lane, wv, common, cpos, f_w = t[0], t[1], t[2], t[3], t[4]
    if cfg.codepf:
        raw("s_getpc_b64 s[42:43]")
        A(Op("L_pfbase:", "label"))
        A(valu(f"v_lshlrev_b32 {t[10]}, 7, v0", ["v0"], t[10].names))
        A(Op(f"global_load_dword {vX[0]}, {t[10]}, s[42:43]", "vload", t[10].names, vX[0].names))
    A(valu(f"v_lshrrev_b32 {wv}, 6, v0", ["v0"], wv.names))
    A(valu(f"v_and_b32 {lane}, 63, v0", ["v0"], lane.names))
    A(valu(f"v_readfirstlane_b32 s{sW}, {wv}", wv.names, sn(sW)))
    A(salu(f"s_and_b32 s{sT0}, s2, 7", [], sn(sT0)))
    A(salu(f"s_lshr_b32 s{sT1}, s2, 5", [], sn(sT1)))
    A(salu(f"s_lshl3_add_u32 s{sT0}, s{sT1}, s{sT0}", [], sn(sT0)))
    A(salu(f"s_bfe_u32 s{sT1}, s2, 0x20003", [], sn(sT1)))
    A(salu(f"s_lshl2_add_u32 s{sT2}, s{sT0}, s{sT1}", [], sn(sT2)))
    A(salu(f"s_mul_i32 s{sT2}, s{sT2}, {184 * 512}", [], sn(sT2)))
    A(salu(f"s_lshl_b32 s{sT0}, s{sT0}, 18", [], sn(sT0)))
    A(valu(f"v_bfe_u32 {t[6]}, {lane}, 2, 2", lane.names, t[6].names))
    A(valu(f"v_lshrrev_b32 {t[5]}, 4, {lane}", lane.names, t[5].names))
    A(valu(f"v_lshlrev_b32 {common}, 9, {t[6]}", t[6].names, common.names))
    A(valu(f"v_lshl_add_u32 {common}, {t[5]}, 6, {common}", names(t[5], common), common.names))
    A(valu(f"v_and_b32 {cpos}, 3, {lane}", lane.names, cpos.names))
    A(salu(f"s_lshl_b32 s{sT1}, s{sW}, 1", sn(sW), sn(sT1)))
    A(salu(f"s_lshr_b32 s{sT1}, 0x78, s{sT1}", [], sn(sT1)))
    A(salu(f"s_and_b32 s{sT1}, s{sT1}, 3", [], sn(sT1)))
    A(salu(f"s_lshl_b32 s{sW1K}, s{sW}, 10", sn(sW), sn(sW1K)))
    A(salu(f"s_lshl_b32 s{sW8K}, s{sW}, 13", sn(sW), sn(sW8K)))
    A(valu(f"v_xor_b32 {f_w}, s{sT1}, {cpos}", cpos.names, f_w.names))
    A(valu(f"v_lshl_add_u32 {t[7]}, {wv}, 11, {common}", names(wv, common), t[7].names))
    A(valu(f"v_lshl_add_u32 {vDK[0]}, {f_w}, 4, {t[7]}", names(f_w, t[7]), vDK[0].names))
    A(valu(f"v_add_u32 {vDK[1]}, 8192, {vDK[0]}", vDK[0].names, vDK[1].names))
    vq = [[Reg("v", 104 + 4 * r + rg, 1) for rg in range(4)] for r in range(3)]
    qb = Reg("v", 116, 1)
    A(salu(f"s_mov_b32 s{sT3}, {48 * 512}", [], sn(sT3)))
    A(valu(f"v_mad_u32_u24 {qb}, {wv}, s{sT3}, {common}", names(wv, common), qb.names))
    for rg in range(4):
        x = Reg("v", 117, 1)
        A(valu(f"v_xor_b32 {x}, {FR[rg]}, {cpos}", cpos.names, x.names))
        A(valu(f"v_lshl_add_u32 {vq[0][rg]}, {x}, 4, {qb}", names(x, qb), vq[0][rg].names))
        if rg:
            A(valu(f"v_add_u32 {vq[0][rg]}, {rg * 2048}, {vq[0][rg]}", vq[0][rg].names, vq[0][rg].names))
    A(Op("s_waitcnt lgkmcnt(0)", "wait", meta={"fixed": True}))
    P += stamp("karg", True)

    def srd(srd, p, off, nrec):
        A(salu(f"s_add_u32 s{srd}, s{p}, s{off}", [], sn(srd)))
        A(salu(f"s_addc_u32 s{srd + 1}, s{p + 1}, 0", [], sn(srd + 1)))
        A(salu(f"s_mov_b32 s{srd + 2}, {nrec}", [], sn(srd + 2)))
        A(salu(f"s_mov_b32 s{srd + 3}, 0x00020000", [], sn(srd + 3)))

    def vaddr():
        A(valu(f"v_and_b32 {t[9]}, 1, {wv}", wv.names, t[9].names))
        A(valu(f"v_lshlrev_b32 {t[9]}, 1, {t[9]}", t[9].names, t[9].names))
        A(valu(f"v_xor_b32 {t[9]}, {t[9]}, {cpos}", names(t[9], cpos), t[9].names))
        A(valu(f"v_lshl_add_u32 {vDV[0]}, {t[9]}, 4, {t[7]}", names(t[9], t[7]), vDV[0].names))
        for a in range(1, 4):
            A(valu(f"v_add_u32 {vDV[a]}, {8192 * a}, {vDV[0]}", vDV[0].names, vDV[a].names))

    def codepf2():
        if cfg.codepf:
            A(valu(f"v_add_u32 {t[10]}, 32768, {t[10]}", t[10].names, t[10].names))
            A(valu(f"v_min_u32 {t[10]}, L_mainend - L_pfbase, {t[10]}", t[10].names, t[10].names))
            A(Op(f"global_load_dword {vX[1]}, {t[10]}, s[42:43]", "vload", t[10].names, vX[1].names))

    def cwait(k):
        raw(f"s_cmp_lt_u32 s{sCls}, {k}")
        raw(f"s_cbranch_scc1 L_nw{k}")
        raw("s_waitcnt vmcnt(0)")
        A(Op(f"L_nw{k}:", "label"))

    srd(sK, 6, sT0, 262144)
    srd(sQ, 4, sT2, 184 * 512)
    if cfg.stag2:
        raw(f"s_lshr_b32 s{sCls}, s2, 5")
        raw(f"s_lshl_b32 s{sCls}, s{sCls}, 2")
        raw(f"s_lshr_b32 s{sCls}, {cfg.stag2}, s{sCls}")
        raw(f"s_and_b32 s{sCls}, s{sCls}, 15")
        raw(f"s_cbranch_scc0 L_go")
        raw(f"v_lshlrev_b32 {t[9]}, {cfg.stag_sh}, v0")
        raw(f"s_mov_b32 s{sKoff}, 0")
        A(Op("L_warm:", "label"))
        raw(f"buffer_load_dword {t[8]}, {t[9]}, s[{sK}:{sK + 3}], s{sKoff} offen {cfg.ldkv}")
        raw(f"s_add_u32 s{sKoff}, s{sKoff}, {256 << cfg.stag_sh}")
        raw(f"s_sub_u32 s{sCls}, s{sCls}, 1")
        raw("s_waitcnt vmcnt(0)")
        raw(f"s_cmp_lg_u32 s{sCls}, 0")
        raw("s_cbranch_scc1 L_warm")
        A(Op("L_go:", "label"))
    seq = cfg.head.split(",")

    def issue(x):
        if x == "pf":
            codepf2()
        elif x == "walk":
            if cfg.walk:
                A(Op("WALK", "label"))
        else:
            if x[:2] in ("Q1", "Q2"):
                qaddr12()
            P.extend(head_dmas(U, x, vq))

    done12 = []

    def qaddr12():
        if not done12:
            done12.append(1)
            for r in (1, 2):
                for rg in range(4):
                    A(valu(f"v_add_u32 {vq[r][rg]}, {8192 * r}, {vq[0][rg]}", vq[0][rg].names, vq[r][rg].names))

    cut = seq.index("|")
    for x in seq[:cut]:
        issue(x)
    srd(sV, 8, sT0, 262144)
    srd(sO, 10, sT2, 184 * 512)
    for i, ch in enumerate(cfg.touch):
        d = Reg("v", 46 + i, 1)
        sr = {"V": sV, "O": sO}[ch]
        A(Op(f"buffer_load_dword {d}, off, s[{sr}:{sr + 3}], 0 nt", "vload", sn(sr, 4), d.names))
    vaddr()
    g = t[5]
    A(valu(f"v_lshlrev_b32 {t[10]}, 1, {t[6]}", t[6].names, t[10].names))
    A(valu(f"v_lshrrev_b32 {t[10]}, {t[10]}, 0x78".replace("0x78", str(t[11])), names(t[10], t[11]), t[10].names))
    P.insert(len(P) - 1, valu(f"v_mov_b32 {t[11]}, 0x78", [], t[11].names))
    A(valu(f"v_and_b32 {t[10]}, 3, {t[10]}", t[10].names, t[10].names))
    A(valu(f"v_xor_b32 {t[10]}, {t[10]}, {g}", names(t[10], g), t[10].names))
    A(valu(f"v_lshlrev_b32 {t[10]}, 4, {t[10]}", t[10].names, t[10].names))
    A(valu(f"v_lshl_add_u32 {t[10]}, {t[6]}, 10, {t[10]}", names(t[6], t[10]), t[10].names))
    A(valu(f"v_lshl_add_u32 {vKR[0]}, {cpos}, 6, {t[10]}", names(cpos, t[10]), vKR[0].names))
    A(valu(f"v_add_u32 {vKR[1]}, 0x10000, {vKR[0]}", vKR[0].names, vKR[1].names))
    A(valu(f"v_add_u32 {vKR[2]}, 0x20000, {vKR[0]}", vKR[0].names, vKR[2].names))
    A(valu(f"v_lshlrev_b32 {t[10]}, 10, {g}", g.names, t[10].names))
    A(valu(f"v_lshl_add_u32 {t[10]}, {t[6]}, 6, {t[10]}", names(t[6], t[10]), t[10].names))
    A(valu(f"v_lshl_add_u32 {t[10]}, {cpos}, 3, {t[10]}", names(cpos, t[10]), t[10].names))
    A(valu(f"v_and_b32 {t[11]}, 1, {g}", g.names, t[11].names))
    A(valu(f"v_lshl_add_u32 {vVR[0][0]}, {t[11]}, 5, {t[10]}", names(t[11], t[10]), vVR[0][0].names))
    A(valu(f"v_xor_b32 {vVR[1][0]}, 32, {vVR[0][0]}", vVR[0][0].names, vVR[1][0].names))
    for h in range(2):
        for w in (1, 2):
            A(valu(f"v_add_u32 {vVR[h][w]}, {w * 65536}, {vVR[h][0]}", vVR[h][0].names, vVR[h][w].names))
    if cfg.tgran:
        n15 = t[11]
        x0, x1, x2 = Reg("v", 118, 1), Reg("v", 119, 1), Reg("v", 120, 1)
        A(valu(f"v_and_b32 {n15}, 15, {lane}", lane.names, n15.names))
        A(valu(f"v_lshrrev_b32 {x1}, 2, {lane}", lane.names, x1.names))
        A(valu(f"v_mad_u32_u24 {t[10]}, {wv}, 48, {x1}", names(wv, x1), t[10].names))
        A(valu(f"v_lshlrev_b32 {t[10]}, 9, {t[10]}", t[10].names, t[10].names))
        A(valu(f"v_lshl_add_u32 {vST0}, {cpos}, 4, {t[10]}", names(cpos, t[10]), vST0.names))
        A(salu(f"s_mul_i32 s{sT3}, s{sW}, {cfg.stg_wave}", sn(sW), sn(sT3)))
        A(salu(f"s_add_u32 s{sT3}, s{sT3}, {cfg.stg_base}", [], sn(sT3)))
        A(valu(f"v_bfe_u32 {x2}, {lane}, 3, 2", lane.names, x2.names))
        A(valu(f"v_xor_b32 {x2}, {x2}, {cpos}", names(x2, cpos), x2.names))
        A(valu(f"v_lshlrev_b32 {x2}, 4, {x2}", x2.names, x2.names))
        A(valu(f"v_lshl_add_u32 {x2}, {x1}, 6, {x2}", names(x1, x2), x2.names))
        A(valu(f"v_add_u32 {vSR}, s{sT3}, {x2}", x2.names, vSR.names))
        A(valu(f"v_bfe_u32 {x0}, {lane}, 1, 2", lane.names, x0.names))
        A(valu(f"v_lshrrev_b32 {x1}, 1, {g}", g.names, x1.names))
        A(valu(f"v_xor_b32 {x0}, {x0}, {x1}", names(x0, x1), x0.names))
        A(valu(f"v_lshlrev_b32 {x0}, 4, {x0}", x0.names, x0.names))
        A(valu(f"v_lshl_add_u32 {x0}, {n15}, 6, {x0}", names(n15, x0), x0.names))
        A(valu(f"v_and_b32 {x1}, 1, {g}", g.names, x1.names))
        A(valu(f"v_lshl_add_u32 {x0}, {x1}, 3, {x0}", names(x1, x0), x0.names))
        A(valu(f"v_add_u32 {vSW[0]}, s{sT3}, {x0}", x0.names, vSW[0].names))
        A(valu(f"v_xor_b32 {vSW[1]}, 32, {vSW[0]}", vSW[0].names, vSW[1].names))
    else:
        n15 = t[11]
        x0, x1, x2 = Reg("v", 118, 1), Reg("v", 119, 1), Reg("v", 120, 1)
        A(valu(f"v_and_b32 {n15}, 15, {lane}", lane.names, n15.names))
        A(valu(f"v_lshrrev_b32 {x1}, 3, {lane}", lane.names, x1.names))
        A(valu(f"v_and_b32 {x2}, 7, {lane}", lane.names, x2.names))
        A(valu(f"v_mad_u32_u24 {t[10]}, {wv}, 48, {x1}", names(wv, x1), t[10].names))
        A(valu(f"v_lshlrev_b32 {t[10]}, 9, {t[10]}", t[10].names, t[10].names))
        A(valu(f"v_lshl_add_u32 {vST0}, {x2}, 4, {t[10]}", names(x2, t[10]), vST0.names))
        A(salu(f"s_mul_i32 s{sT3}, s{sW}, {cfg.stg_wave}", sn(sW), sn(sT3)))
        A(salu(f"s_add_u32 s{sT3}, s{sT3}, {cfg.stg_base}", [], sn(sT3)))
        A(valu(f"v_xor_b32 {t[10]}, {x2}, {x1}", names(x2, x1), t[10].names))
        A(valu(f"v_lshlrev_b32 {t[10]}, 4, {t[10]}", t[10].names, t[10].names))
        A(valu(f"v_lshl_add_u32 {t[10]}, {x1}, 7, {t[10]}", names(x1, t[10]), t[10].names))
        A(valu(f"v_add_u32 {vSR}, s{sT3}, {t[10]}", t[10].names, vSR.names))
        A(valu(f"v_lshrrev_b32 {x1}, 1, {g}", g.names, x1.names))
        A(valu(f"v_xor_b32 {x0}, {x2}, {x1}", names(x2, x1), x0.names))
        A(valu(f"v_lshlrev_b32 {x0}, 4, {x0}", x0.names, x0.names))
        A(valu(f"v_lshl_add_u32 {x0}, {n15}, 7, {x0}", names(n15, x0), x0.names))
        A(valu(f"v_and_b32 {x1}, 1, {g}", g.names, x1.names))
        A(valu(f"v_lshl_add_u32 {x0}, {x1}, 3, {x0}", names(x1, x0), x0.names))
        A(valu(f"v_add_u32 {x0}, s{sT3}, {x0}", x0.names, x0.names))
        for i in range(4):
            A(valu(f"v_xor_b32 {vSW[i]}, {32 * i}, {x0}", x0.names, vSW[i].names))
    A(valu(f"v_add_u32 {vQR}, s{sW8K}, {vKR[1]}", vKR[1].names + sn(sW8K), vQR.names))
    A(salu(f"s_mov_b32 s{sC}, {f2u(C_SCALE):#x}", [], sn(sC)))
    A(salu(f"s_mov_b32 s{sThr}, {f2u(2.0 ** 64 if not cfg.force_fallback else 1.0):#x}", [], sn(sThr)))
    A(salu(f"s_mov_b64 s[{sFlag}:{sFlag + 1}], 0", [], sn(sFlag, 2)))
    for r in range(3):
        A(valu(f"v_mov_b32 {vL[r]}, 0", [], vL[r].names))
    if cfg.padzero:
        A(valu(f"v_and_b32 {t[10]}, 0xc8, v0", ["v0"], t[10].names))
        A(valu(f"v_cmp_eq_u32 vcc, 0xc8, {t[10]}", t[10].names, ["svcc"]))
        A(valu(f"v_mov_b32 {t[10]}, {f2u(-1e30):#x}", [], t[10].names))
        A(valu(f"v_cndmask_b32 {vL[2]}, {vL[2]}, {t[10]}, vcc", names(vL[2], t[10]) + ["svcc"], vL[2].names))
    qaddr12()
    for x in seq[cut + 1:]:
        issue(x)
    P += stamp("issued", True)
    if cfg.walk and "walk" not in seq:
        A(Op("WALK", "label"))
    return P, vq


def head_dmas(U, x, vq):
    name, part = (x[:2], x[2:]) if x[0] == "Q" else (x, "")
    u = U[name]
    if not u.dmas:
        u.make_dmas(vq[u.n]) if u.kind == "Q" else u.make_dmas()
    ops = u.dmas if not part else (u.dmas[:4] if part == "a" else u.dmas[4:])
    return flat_dmas(ops)


def q_reads(u):
    ops = []
    r = u.n
    base = u.slot * SLOT - 65536
    pre = []
    addr = vQR
    if base >= 65536:
        addr = vXT[2]
        pre.append(valu(f"v_add_u32 {addr}, 0x10000, {vQR}", vQR.names, addr.names))
        base -= 65536
    for c in range(8):
        off = base + (c >> 2) * 4096 + (c & 3) * 256
        o = Op(f"ds_read_b128 {Q[r][c]}, {addr} offset:{off}", "ds", addr.names, Q[r][c].names)
        o.meta["qhalf"] = c >> 2
        o.meta["unit"] = u
        u.reads.append(o)
        ops.append(o)
    return pre, ops


def build(cfg):
    act = lambda s: (0, 1, 2)
    stamp = Stamps(cfg)
    U = {}
    for n in range(16):
        U[f"K{n}"] = Unit("K", n, cfg)
        U[f"V{n}"] = Unit("V", n, cfg)
    for r in range(3):
        U[f"Q{r}"] = Unit("Q", r, cfg)
    U["K0"].slot, U["K1"].slot, U["K2"].slot, U["K3"].slot = 0, 1, 2, 3
    U["Q0"].slot, U["Q1"].slot, U["Q2"].slot = 4, 6, 8
    cfg.stg_base, cfg.stg_wave = 0, 4096 * cfg.stg_n

    pro, vqd = prologue(cfg, U, stamp)

    M = []
    fixed = {}
    dsq = []
    vq = []
    sbuf_last = {}
    spool = {"bufs": list(vS) + [Reg("v", vP[2][0][0].lo + 4 * i, 4) for i in range(3, 6)], "ctr": 0}
    U["K4"].slot, U["V0"].slot = 4, 5
    hd = lambda lst: [o for x in lst.split(",") if x for o in head_dmas(U, x, vqd)]
    guards = []
    Pcvt = {}
    negm_ready = {}
    preg_free = {}
    last_add = {}
    bars = []

    parked = {}

    def Preg(s, r, for_mfma=False):
        if for_mfma and s in parked:
            return parked[s][r]
        return vP[s % 3][r]

    def softmax_ops(s, r, a, S, ready_gap):
        dst = Preg(s, r)[a >> 1]
        fm, ex, ad, cv = [], [], [], []
        for i in range(4):
            o = valu(f"v_fma_f32 {S[i]}, {S[i]}, s{sC}, {vNM[r]}", names(S[i], vNM[r]) + sn(sC), S[i].names)
            o.earliest = ready_gap
            o.deps.append((negm_ready[r], 0))
            fm.append(o)
        for i in range(4):
            o = Op(f"v_exp_f32 {S[i]}, {S[i]}", "trans", S[i].names, S[i].names)
            o.deps.append((fm[i], 0))
            ex.append(o)
        for i in range(4):
            o = valu(f"v_add_f32 {vL[r]}, {vL[r]}, {S[i]}", names(vL[r], S[i]), vL[r].names)
            o.deps.append((ex[i], 1))
            prev_add = ad[-1] if ad else last_add.get(r)
            if prev_add is not None:
                o.deps.append((prev_add, 0))
            ad.append(o)
        for k in range(2):
            d = dst[2 * (a & 1) + k]
            o = valu(f"v_cvt_pk_bf16_f32 {d}, {S[2 * k]}, {S[2 * k + 1]}", names(S[2 * k], S[2 * k + 1]), d.names)
            o.deps += [(ex[2 * k], 1), (ex[2 * k + 1], 1)]
            o.earliest = preg_free.get(dst.lo, -1)
            if dst.lo in sbuf_last:
                o.deps += [(x, 0) for x in sbuf_last[dst.lo]]
            cv.append(o)
        Pcvt[(s, r, a)] = cv
        vq.extend([fm[0], fm[1], ex[0], fm[2], ex[1], fm[3], ad[0], ex[2], ad[1], cv[0], ex[3], ad[2], ad[3], cv[1]])
        last_add[r] = ad[3]
        return ad + cv

    held = {}
    lowq = []
    noflush = set()

    halfS = {}

    def chain(s, r, a, frags, part=None):
        start = len(M)
        if part == 1:
            S = halfS[(s, r, a)]
            si = S.lo
        else:
            S = spool["bufs"][spool["ctr"] % len(spool["bufs"])]
            spool["ctr"] += 1
            while sbuf_last.get(S.lo) == "held":
                S = spool["bufs"][spool["ctr"] % len(spool["bufs"])]
                spool["ctr"] += 1
            si = S.lo
            if sbuf_last.get(si):
                guards.append((start - 1, sbuf_last[si]))
        for c in range(8) if part is None else range(4 * part, 4 * part + 4):
            M.append(mfma(S, frags[c], Q[r][c], S if c else None))
        if part == 0:
            halfS[(s, r, a)] = S
            sbuf_last[si] = "held"
            return start
        end = len(M) - 1
        if r not in negm_ready:
            held.setdefault(r, []).append((si, S, end, a))
            sbuf_last[si] = "held"
            if len(held[r]) == 2:
                S0, S1 = held[r][0][1], held[r][1][1]
                m, tmp = vNM[r], vXT[r]
                ops = [valu(f"v_max3_f32 {m}, {S0[0]}, {S0[1]}, {S0[2]}", names(S0[0], S0[1], S0[2]), m.names),
                       valu(f"v_max3_f32 {tmp}, {S0[3]}, {S1[0]}, {S1[1]}", names(S0[3], S1[0], S1[1]), tmp.names),
                       valu(f"v_max3_f32 {m}, {m}, {S1[2]}, {S1[3]}", names(m, S1[2], S1[3]), m.names),
                       valu(f"v_max_f32 {m}, {m}, {tmp}", names(m, tmp), m.names)]
                ops += xlane("v_max_f32", m, tmp)
                if r == 2 and cfg.padzero:
                    ops.append(valu(f"v_fma_f32 {m}, -{m}, s{sC}, {vL[2]}", names(m, vL[2]) + sn(sC), m.names))
                else:
                    ops.append(valu(f"v_mul_f32 {m}, {f2u(-C_SCALE):#x}, {m}", m.names, m.names))
                prev = None
                for o in ops:
                    o.earliest = end + cfg.sready
                    if prev is not None:
                        o.deps.append((prev, 1 if "permlane" in o.text else 0))
                    prev = o
                vq.extend(ops)
                negm_ready[r] = ops[-1]
                for (si2, S2, end2, a2) in held[r]:
                    sbuf_last[si2] = softmax_ops(s, r, a2, S2, end2 + cfg.sready)
        else:
            sbuf_last[si] = softmax_ops(s, r, a, S, end + cfg.sready)
        return start

    afree = {}
    touched = set()
    last_of = {}
    vpool = {"bufs": list(VFB), "ctr": 0}

    def group(steps, t, smajor=False, rorder=(0, 1, 2)):
        base = vpool["bufs"][vpool["ctr"] % len(vpool["bufs"])]
        vpool["ctr"] += 1
        tt = t & 7
        start = len(M)
        frs = []
        for i, s in enumerate(steps):
            u = U[f"V{2 * s + (t >> 3)}"]
            for kc in range(2):
                F = Reg("a", base + 8 * i + 4 * kc, 4)
                frs.append((s, kc, F))
                for k in range(2):
                    a = 2 * kc + k
                    dsq.append(dict(kind="V", dst=F[2 * k:2 * k + 2], h=tt & 1, u=u, off=a * 4096 + (tt >> 1) * 256,
                                    cons=start + 2 * i + kc, free=afree.get(F.lo, -1)))
        seq = [(r, x) for r in rorder for x in frs]
        if smajor:
            seq = [(r, x) for s0 in steps for r in rorder for x in frs if x[0] == s0]
            for d in dsq[-4 * len(steps):]:
                i = d["cons"] - start
                d["cons"] = start + 6 * (i >> 1) + (i & 1)
        for (r, (s, kc, F)) in seq:
            if True:
                C = O[r][t] if (r, t) in touched else None
                touched.add((r, t))
                P_ = Preg(s, r, True)[kc]
                M.append(mfma(O[r][t], F, P_, C))
                guards.append((len(M) - 3, Pcvt[(s, r, 2 * kc)] + Pcvt[(s, r, 2 * kc + 1)]))
                last_of[(r, t)] = len(M) - 1
                preg_free[P_.lo] = len(M) - 1
                afree[F.lo] = len(M) - 1
        return len(M) - 1

    pair_end = {}

    def group_pair(steps, ta, tb, rorder, smajor=False):
        start = len(M)
        frs = []
        for j, t in enumerate((ta, tb)):
            base = vpool["bufs"][vpool["ctr"] % len(vpool["bufs"])]
            vpool["ctr"] += 1
            for i, s in enumerate(steps):
                for kc in range(2):
                    frs.append((t, s, kc, Reg("a", base + 8 * i + 4 * kc, 4)))
        first = sorted(frs, key=lambda x: (x[1] == steps[-1], x[0], x[1], x[2])) if smajor else frs
        for i, (t, s, kc, F) in enumerate(first):
            u = U[f"V{2 * s + (t >> 3)}"]
            tt = t & 7
            for k in range(2):
                dsq.append(dict(kind="V", dst=F[2 * k:2 * k + 2], h=tt & 1, u=u, off=(2 * kc + k) * 4096 + (tt >> 1) * 256,
                                cons=start + i, free=afree.get(F.lo, -1)))
        for n_, r in enumerate(rorder):
            for (t, s, kc, F) in (first if n_ == 0 else frs):
                P_ = Preg(s, r, True)[kc]
                M.append(mfma(O[r][t], F, P_, O[r][t]))
                guards.append((len(M) - 3, Pcvt[(s, r, 2 * kc)] + Pcvt[(s, r, 2 * kc + 1)]))
                afree[F.lo] = len(M) - 1
            pair_end[(r, ta >> 1)] = len(M) - 1

    def barrier(name, gap, hoist):
        o = Op("s_barrier", "barrier")
        o.meta.update(need_vm=[], need_lgkm=[], name=name, hoist_wait=hoist, units=[])
        o.gap = gap
        bars.append(o)
        return o

    def prek_reads(lo, hi):
        ops = []
        for a in range(lo, hi):
            u = U[f"K{a >> 1}"]
            for c in range(8):
                off = u.slot * SLOT + (a & 1) * 8192 + (c >> 2) * 4096 + (c & 3) * 256
                o = Op(f"ds_read_b128 {preK[a][c]}, {vKR[0]} offset:{off}", "ds", vKR[0].names, preK[a][c].names)
                u.reads.append(o)
                ops.append(o)
        return ops

    blk = []
    ba = barrier("a", -1, False)
    ba.meta["units"] = [U["K0"], U["K1"], U["Q0"]] if cfg.dfhead < 3 else [U["K0"]]
    U["K0"].vis = U["K1"].vis = U["Q0"].vis = ba
    blk.append(ba)
    blk += stamp("K0Q0", True)
    pre_, q0 = q_reads(U["Q0"])
    prek = prek_reads(0, 4)
    hs = lambda n: stamp(n, True) if cfg.hstamps else []
    pre_ds = {}
    pre_dma = {}

    def gap_dmas(spec, g0):
        for item in spec.split(","):
            if not item:
                continue
            x, pos = item.split("@")
            first, step = (int(v) for v in pos.split(":"))
            name, part = (x[:2], x[2:]) if x[0] == "Q" else (x, "")
            u = U[name]
            if not u.dmas:
                u.make_dmas(vqd[u.n]) if u.kind == "Q" else u.make_dmas()
            ops = u.dmas if not part else (u.dmas[:4] if part == "a" else u.dmas[4:])
            for i, d in enumerate(ops):
                g = g0 + first + i * step
                assert g not in pre_dma
                pre_dma[g] = d
                d.gap = g

    if cfg.dfhead == 3:
        for o in q0:
            o.meta["need_vm_unit"] = (U["Q0"], o.meta["qhalf"])
        blk += pre_ + [x for pair in zip(q0[:4], prek[0:4]) for x in pair] + prek[8:12] + hs("hA")
        for i, o in enumerate(prek[4:8] + prek[12:16]):
            pre_ds[i] = o
    elif cfg.inter:
        q_first = [x for pair in zip(q0, prek[:8]) for x in pair]
        blk += pre_ + q_first + hd(cfg.head_a) + hs("hA")
        for i, o in enumerate(prek[8:]):
            pre_ds[i] = o
        gap_dmas(cfg.g_r0a, 0)
    else:
        blk += pre_ + q0 + prek[:8] + hd(cfg.head_a) + hs("hA") + prek[8:]
    fixed[-1] = blk
    sub_order = (0, 1, 2, 3, 6, 7, 4, 5)
    allreads = q0 + prek
    kprev = {}
    if cfg.dfhead:
        def mark():
            for o in vq:
                o.meta.setdefault("pre", len(M) - 1)

        def run(r, subs, part):
            for a in subs:
                chain(a >> 2, r, a & 3, preK[a], part)
                for c in range(8):
                    if preK[a][c].f == "a":
                        afree[preK[a][c].lo] = len(M) - 1
            mark()

        QR = {}
        for r in (1, 2):
            u = U[f"Q{r}"]
            QR[r] = q_reads(u)
            for o in QR[r][1]:
                o.meta["need_vm_unit"] = (u, o.meta["qhalf"])
            allreads += QR[r][1] if r == 1 else []
        if cfg.dfhead >= 2:
            def kbar(name, unit, lo, pre_blk, gspec):
                b = barrier(name, len(M) - 1, False)
                b.meta["units"] = [U[unit]]
                b.meta["need_lgkm"] = list(q0)
                U[unit].vis = b
                rd = prek_reads(lo, lo + 2)
                allreads.extend(rd)
                fixed[len(M) - 1] = pre_blk + [b] + hs(name) + rd[:8]
                for j, o in enumerate(rd[8:]):
                    pre_ds[len(M) + j] = o
                gap_dmas(gspec, len(M))
            if cfg.dfhead == 3:
                run(0, (0, 1), 0)
                fixed[len(M) - 1] = hs("s1") + hd(cfg.head_s1) + q0[4:] + hs("q0b")
                run(0, (0, 1), 1)
                b1 = barrier("a1", len(M) - 1, False)
                b1.meta["units"] = [U["K1"]]
                U["K1"].vis = b1
                fixed[len(M) - 1] = hs("s2") + hd(cfg.head_s2) + [b1] + hs("a1") + prek[16:24]
                if "0" in cfg.nofl:
                    noflush.add(len(M) - 1)
                for j, o in enumerate(prek[24:32]):
                    pre_ds[len(M) + j] = o
                gap_dmas(cfg.g_r0a, len(M))
                run(0, (2,), None)
            else:
                run(0, (0, 1, 2), None)
            noflush.add(len(M) - 1)
            b = barrier("a2", len(M) - 1, False)
            b.meta["units"] = [U["K2"]]
            b.meta["need_lgkm"] = list(q0)
            U["K2"].vis = b
            rd = prek_reads(4, 6)
            allreads.extend(rd)
            fixed[len(M) - 1] = [b] + hs("a2")
            for j, o in enumerate(rd):
                pre_ds[len(M) + j] = o
            run(0, (3, 4, 5), None)
            fixed[len(M) - 1] = hs("t0c") + hd(cfg.head_a2) + QR[1][0] + QR[1][1][:4] + hs("qa1")
            if "1" in cfg.nofl:
                noflush.add(len(M) - 1)
            lent = [vP[0][2][0], vP[0][2][1], vP[1][2][0], vP[1][2][1]] if cfg.nofl else []
            keep = spool["bufs"]
            spool["bufs"] = lent
            c0 = spool["ctr"]
            spool["ctr"] = 0
            run(1, (0, 1, 2, 3)[:len(lent)], 0)
            spool["bufs"] = keep
            spool["ctr"] = c0
            run(1, (0, 1, 2, 3, 4, 5)[len(lent):], 0)
            kbar("a3", "K3", 6, hs("w2") + hd(cfg.head_a3), cfg.g_r0b)
            spool["bufs"] += [Reg("v", vP[2][0][0].lo + 4 * i, 4) for i in range(3)]
            run(0, (6, 7), None)
            run(1, (6, 7), 0)
        else:
            run(0, (0, 1, 2, 3), None)
            fixed[len(M) - 1] = hs("t0c") + QR[1][0] + QR[1][1][:4] + hs("qa1")
            run(1, (0, 1, 2, 3), 0)
            b2 = barrier("a2", len(M) - 1, False)
            b2.meta["units"] = [U["K2"], U["K3"]]
            b2.meta["need_lgkm"] = list(q0)
            U["K2"].vis = U["K3"].vis = b2
            k2 = prek_reads(6, 8) + prek_reads(4, 6)
            allreads += k2
            fixed[len(M) - 1] = hs("w2") + hd(cfg.head_a2) + hs("hA2") + [b2] + hs("a2") + k2[:8]
            for j, o in enumerate(k2[8:]):
                pre_ds[len(M) + j] = o
            gap_dmas(cfg.g_r0b, len(M))
            spool["bufs"] += [Reg("v", vP[2][0][0].lo + 4 * i, 4) for i in range(3)]
            run(0, (6, 7, 4, 5), None)
            run(1, (6, 7, 4, 5), 0)
        bb = barrier("c", len(M) - 1, False)
        bb.meta["need_lgkm"] = list(allreads)
        fixed[len(M) - 1] = hs("w3") + hd(cfg.head_c) + QR[1][1][4:] + [bb] + stamp("Q1", True)
        if "3" in cfg.nofl:
            noflush.add(len(M) - 1)
        gap_dmas(cfg.g_r1, len(M))
        run(1, sub_order, 1)
        allreads += QR[2][1]
        fixed[len(M) - 1] = hs("w4") + hd(cfg.head_0) + QR[2][0] + QR[2][1][:4] + hs("qa2")
        if "2" in cfg.nofl:
            noflush.add(len(M) - 1)
        run(2, sub_order, 0)
        b0 = Op("", "label")
        b0.gap = len(M) - 1
        fixed[len(M) - 1] = hs("w5") + QR[2][1][4:] + stamp("Q2", True)
        run(2, sub_order, 1)
    for r in range(3 if not cfg.dfhead else 0):
        split = str(r) in cfg.half_r
        if r:
            u = U[f"Q{r}"]
            pre_, qr = q_reads(u)
            for o in qr:
                o.meta["need_vm_unit"] = (u, o.meta["qhalf"])
            lists = (cfg.head_c if r == 1 else cfg.head_0).split("/")
            if r == 2 or split:
                extra_s = [Reg("v", vP[2][0][0].lo + 4 * i, 4) for i in range(3)]
                if r == 2 and extra_s[0].lo not in [x.lo for x in spool["bufs"]]:
                    spool["bufs"] += extra_s
            allreads += qr
            if split:
                fixed[len(M) - 1] = hs(f"fl{r}") + hd(lists[0]) + hs(f"d{r}") + pre_ + qr[:4] + hs(f"qa{r}")
                for a in sub_order:
                    chain(a >> 2, r, a & 3, preK[a], 0)
                blk = hs(f"pa{r}") + hd(lists[1] if len(lists) > 1 else "") + qr[4:]
                noflush.add(len(M) - 1)
            else:
                blk = hs(f"fl{r}") + hd(",".join(lists)) + hs(f"d{r}") + pre_ + qr
            if r == 2 and cfg.softb0:
                bb = Op("", "label")
                bb.gap = len(M) - 1
                b0 = bb
            else:
                bb = barrier("c" if r == 1 else 0, len(M) - 1, False)
                bb.meta["need_lgkm"] = list(allreads)
                blk.append(bb)
            blk += stamp(f"Q{r}", True)
            fixed[len(M) - 1] = blk
            if r == 1:
                gap_dmas(cfg.g_r1, len(M))
        for i, a in enumerate(sub_order):
            if r == 0 and i == 4:
                b2 = barrier("a2", len(M) - 1, False)
                b2.meta["units"] = [U["K2"], U["K3"]]
                b2.meta["need_lgkm"] = list(q0)
                U["K2"].vis = U["K3"].vis = b2
                k2 = prek_reads(6, 8) + prek_reads(4, 6)
                allreads += k2
                if cfg.inter:
                    fixed[len(M) - 1] = hs("t0c") + hd(cfg.head_a2) + hs("hA2") + [b2] + hs("a2") + k2[:8]
                    for j, o in enumerate(k2[8:]):
                        pre_ds[len(M) + j] = o
                    gap_dmas(cfg.g_r0b, len(M))
                    for o in vq:
                        o.meta.setdefault("pre", len(M) - 1)
                else:
                    fixed[len(M) - 1] = hs("t0c") + [b2] + hs("a2") + k2[:8] + hd(cfg.head_a2) + hs("hA2") + k2[8:]
                    noflush.add(len(M) - 1)
            st = chain(a >> 2, r, a & 3, preK[a], 1 if (r and split) else None)
            for c in range(8):
                if preK[a][c].f == "a":
                    afree[preK[a][c].lo] = len(M) - 1 if split else st + c
        for o in vq:
            o.meta.setdefault("pre", len(M) - 1)
    if not cfg.softb0:
        b0 = bars[-1]
        b0.meta["units"] = [U["K4"]]
        U["K4"].vis = b0
    spool["bufs"] = list(vS)
    spool["ctr"] = 0

    start_int = {}
    grp_end = {}
    pub = []
    if cfg.softb0:
        pub.append((0, [U["K4"]]))

    def kchains(s, a, kb):
        u = U[f"K{2 * s + (a >> 1)}"]
        state = {"first": True}

        def emit(r):
            st = len(M)
            if state["first"]:
                for c in range(8):
                    dsq.append(dict(kind="K", dst=KF[kb][c], u=u, off=(a & 1) * 8192 + (c >> 2) * 4096 + (c & 3) * 256,
                                    cons=st + c, free=afree.get(KF[kb][c].lo, b0.gap)))
                state["first"] = False
            chain(s, r, a, KF[kb])
            for c in range(8):
                afree[KF[kb][c].lo] = st + c
        return emit

    rord = tuple(int(c) for c in cfg.rord) if cfg.pairs else (0, 1, 2)
    NP = 8 - cfg.defer
    for p in range(NP):
        for q in range(4):
            n = 2 * p + (q >> 1)
            if q % 2 == 0:
                start_int[n] = len(M)
                pub.append((n, [U[f"V{n}"], U[f"K{n + 4}"]]) if n else ("v0", [U["V0"]]))
            order = cfg.first_order if (p == 0 and q == 0) else "cGcGcGG"
            em = kchains(p + 2, q, (q & 1) if cfg.kdouble else 0)
            ci = gi = 0
            for ch in order:
                if ch == "c":
                    em(ci)
                    ci += 1
                else:
                    grp_end[(p, 4 * q + gi)] = group((p,), 4 * q + gi)
                    gi += 1
    n = 2 * NP
    for s_ in range(NP + 2, 8):
        if cfg.defer == 4 and s_ == 7:
            parked[4] = [[Reg("a", 224 + 8 * r + 4 * kc, 4) for kc in range(2)] for r in range(3)]
            mv = []
            for r in range(3):
                for kc in range(2):
                    src, dst = vP[1][r][kc], parked[4][r][kc]
                    ops = []
                    for i in range(4):
                        o = valu(f"v_accvgpr_write_b32 {dst[i]}, {src[i]}", src[i].names, dst[i].names)
                        o.deps += [(x, 0) for x in Pcvt[(4, r, 2 * kc + (i >> 1))]]
                        o.earliest = start_int[2 * (NP - 1)]
                        ops.append(o)
                    sbuf_last[src.lo] = ops
                    Pcvt[(4, r, 2 * kc)] = ops[:2]
                    Pcvt[(4, r, 2 * kc + 1)] = ops[2:]
                    mv += ops
            lowq.extend(mv)
        for q in range(4):
            if q % 2 == 0:
                start_int[n] = len(M)
                pub.append((n, [U[f"K{2 * s_ + (q >> 1)}"]]))
                n += 1
            if cfg.defer == 3:
                kb = (q + 1) & 1
            else:
                kb = 2 if (q & 1) and not (s_ == 7 and q == 3) else 0
            em = kchains(s_, q, kb)
            for r in rord:
                em(r)
                for c in range(8):
                    afree[Q[r][c].lo] = len(M) - 1
    qk_end = len(M) - 1
    steps = tuple(range(NP, 8))
    sz = 8 * len(steps)
    vpool["bufs"] = {16: [192, 208, 224, 240, 160, 176], 24: [192, 216, 160, 96], 32: [192, 128, 160, 96]}[sz]
    vpool["ctr"] = 0
    if cfg.defer < 4:
        for b in range(64, 160, 4):
            afree[b] = qk_end
    fin0 = n
    for t in range(16):
        if t % 8 == 0:
            start_int[n] = len(M)
            pub.append((n, [U[f"V{2 * s + (t >> 3)}"] for s in steps]))
            n += 1
        if cfg.pairs and cfg.defer == 4 and t < 2:
            group(steps, t, t == 0, rord)
            for r in rord:
                pair_end[(r, 0)] = last_of[(r, t)]
            continue
        if cfg.pairs:
            if t % 2 == 0:
                group_pair(steps, t, t + 1, rord, t == 0)
            continue
        grp_end[(7, t)] = group(steps, t, t == 0)
    NM = len(M)

    dsq.sort(key=lambda d: d["cons"])
    def spacing(c):
        if c >= start_int[fin0]:
            return cfg.spf
        return 2.0

    nxt = float(1 << 30)
    for d in reversed(dsq):
        dl = d["cons"] - cfg.lat
        e = max(d["free"], b0.gap + (7 if cfg.softb0 else 1))
        f = min(float(dl) + 0.999, nxt - spacing(d["cons"]))
        if f < e:
            f = min(float(dl), nxt - min(1.0, spacing(d["cons"])))
        if f < e:
            f = float(e)
        d["f"], d["e"], d["dl"] = f, e, dl
        nxt = f
    prev = -10
    late = 0
    cnt = 0
    for d in dsq:
        g = max(int(d["f"]), d["e"], prev)
        if g == prev:
            cnt += 1
            if cnt >= 2 or (g + 1 <= d["dl"] and spacing(d["cons"]) >= 1):
                g += 1
                cnt = 0
        else:
            cnt = 0
        g = min(g, d["cons"] - 2)
        assert g >= d["e"] and g >= prev, (d, g, prev)
        late += g > d["dl"]
        d["gap"] = g
        prev = g

    prevg = b0.gap
    for (name, us) in pub:
        first = min(d["gap"] for d in dsq if d["u"] in us)
        g = max(first - 1, prevg + 1)
        assert g < first, (name, g, first)
        b = barrier(name, g, True)
        if name == 0:
            b.meta["need_lgkm"] = list(allreads)
        b.meta["units"] = us
        for u in us:
            u.vis = b
        prevg = g
    if cfg.defer == 4:
        barrier("stg", start_int[fin0] + 2, True)
        bars.sort(key=lambda b: b.gap)
    lastcons = {}
    for d in dsq:
        lastcons[d["u"].name] = max(lastcons.get(d["u"].name, -1), d["cons"])

    def release(u):
        if u.name in ("K0", "K1", "K2", "K3", "Q1"):
            return [b.meta["name"] for b in bars].index("c")
        if u.name == "Q2":
            return [b.meta["name"] for b in bars].index(0)
        c = [i for i, b in enumerate(bars) if b.gap >= lastcons[u.name]]
        return min(c) if c else len(bars)

    stg_bi = bars.index(next(b for b in bars if b.meta["name"] == ("stg" if cfg.defer == 4 else fin0)))
    free_at = {s: -1 for s in range(10)}
    for name in ("K0", "K1", "K2", "K3", "K4", "V0", "Q1", "Q2"):
        u = U[name]
        for k in range(u.nslots):
            free_at[u.slot + k] = release(u)
    order = []
    for (name, us) in pub:
        order += [u.name for u in sorted(us, key=lambda u: u.kind) if not u.dmas]
    dmaq = []
    for name in order:
        u = U[name]
        cand = list(free_at)
        if release(u) > stg_bi:
            cand = [s for s in cand if s >= cfg.stg_n]
        if cfg.defer == 4 and name in ("K14", "K15"):
            cand = [0, 1]
        elif cfg.defer == 4 and name in ("K12", "K13", "V7"):
            cand = [s for s in cand if s >= 2]
        slot = min(cand, key=lambda s: (free_at[s], s))
        w = free_at[slot]
        u.slot = slot
        free_at[slot] = release(u)
        e = max(bars[w].gap + 2 if w >= 0 else 1, b0.gap + 2 + cfg.dma_lead)
        ops = u.make_dmas()
        for d in ops:
            d.earliest = e
            dmaq.append(d)
    gap_ds = {}
    for d in dsq:
        gap_ds.setdefault(d["gap"], []).append(d)
    gap_dma = {}
    placed_dma = [b0.gap - 20] * 4
    last = -10
    for d in dmaq:
        u = d.meta["unit"]
        sp = cfg.dma_sp
        if last < start_int[1]:
            sp = cfg.dma_sp_fast
        g = max(d.earliest, last + sp)
        if len(placed_dma) >= cfg.dma_cap:
            g = max(g, placed_dma[-cfg.dma_cap] + (cfg.dma_win if g >= start_int[cfg.early_n] else cfg.dma_win_early))
        g0 = g
        while g in fixed or g in gap_ds:
            g += 1
        if u.vis is not None and g >= u.vis.gap - 1:
            raise SystemExit(f"DMA of {u.name} too late: {g} vs {u.vis.gap}")
        gap_dma[g] = d
        d.gap = g
        last = g
        placed_dma.append(g)
    last_dma = dmaq[-1]
    gap_dma.update(pre_dma)
    for g, o in pre_ds.items():
        o.gap = g
        gap_ds.setdefault(g, []).append({"op": o})
    flight = {u.name: u.vis.gap - u.dmas[-1].gap for u in U.values() if u.vis is not None and u.dmas[-1].gap is not None}
    for b in bars:
        b.meta["need_vm"] = [d for u in b.meta["units"] for d in u.dmas]

    reads = []
    for d in dsq:
        u = d["u"]
        if d["kind"] == "Q":
            c = d["c"]
            off = u.slot * SLOT - 65536 + (c >> 2) * 4096 + (c & 3) * 256
            o = Op(f"ds_read_b128 {d['dst']}, {vQR} offset:{off}", "ds", vQR.names, d["dst"].names)
            o.meta["need_vm"] = u.dmas[(c >> 2) * 4:(c >> 2) * 4 + 4]
            o.meta["hoist_wait"] = True
        else:
            w, off = divmod(u.slot * SLOT + d["off"], 65536)
            if d["kind"] == "K":
                o = Op(f"ds_read_b128 {d['dst']}, {vKR[w]} offset:{off}", "ds", vKR[w].names, d["dst"].names)
            else:
                a = vVR[d["h"]][w]
                o = Op(f"ds_read_b64_tr_b16 {d['dst']}, {a} offset:{off}", "ds", a.names, d["dst"].names)
        o.gap = d["gap"]
        u.reads.append(o)
        d["op"] = o
        reads.append(o)
    for blk in fixed.values():
        for o in blk:
            if "need_vm_unit" in o.meta:
                u, h = o.meta["need_vm_unit"]
                o.meta["need_vm"] = u.dmas[4 * h:4 * h + 4]

    vcc_last = [None]

    def finish_rows(rows, last):
        fin = {}
        for r in rows:
            ops = xlane("v_add_f32", vL[r], vXT[r])
            prev = last[r]
            for o in ops:
                o.deps.append((prev, 1 if "permlane" in o.text else 0))
                prev = o
            rc = Op(f"v_rcp_f32 {vRL[r]}, {vL[r]}", "trans", vL[r].names, vRL[r].names)
            rc.deps.append((prev, 0))
            cm = valu(f"v_cmp_lt_f32 vcc, s{sThr}, {vL[r]}", vL[r].names + sn(sThr), ["svcc"])
            cm.deps.append((prev, 0))
            fl = salu(f"s_or_b64 s[{sFlag}:{sFlag + 1}], s[{sFlag}:{sFlag + 1}], vcc", ["svcc"] + sn(sFlag, 2), sn(sFlag, 2) + ["scc"])
            fl.deps.append((cm, 2))
            fin[r] = (ops, rc, cm, fl)
        out = []
        for k in range(6):
            for r in rows:
                out.append(fin[r][0][k])
        for r in rows:
            if vcc_last[0] is not None:
                fin[r][2].deps.append((vcc_last[0], 0))
            out += [fin[r][1], fin[r][2], fin[r][3]]
            vcc_last[0] = fin[r][3]
        return out, {r: fin[r][1] for r in rows}

    rbq = [Reg("a", 64 + 4 * i, 4) for i in range(8)]
    tmps = [Reg("v", vS[2 * i].lo, 8) for i in range(3)]
    tmp_last = {tb.lo: sbuf_last[tb.lo] + sbuf_last[tb.lo + 4] for tb in tmps}
    tmp_min = {tb.lo: -1 for tb in tmps}
    ctr = {"t": 0, "r": 0}
    rb_last = {}
    stg_last_read = {}
    wr = {}
    stg_after = bars[stg_bi].gap + 1
    sta = {}
    for r in range(3):
        for k in range(2):
            d = vST[r][k]
            o = valu(f"v_add_u32 {d}, {r * 8192 + k * 4096}, {vST0}", vST0.names, d.names)
            o.deps.append((last_dma, 1))
            sta[(r, k)] = o

    def piece(r, s, T, rcp, half, packed):
        rdy = (pair_end[(r, T)] if cfg.pairs else grp_end[(s, 2 * T + 1)]) + cfg.sready
        X, Y = O[r][2 * T], O[r][2 * T + 1]
        src = [X[i] for i in range(4)] + [Y[i] for i in range(4)]
        D = X
        ops = []
        rd = None
        if X.f == "a":
            tb = tmps[ctr["t"] % len(tmps)]
            ctr["t"] += 1
            rd = []
            for i in range(8):
                o = valu(f"v_accvgpr_read_b32 {tb[i]}, {src[i]}", src[i].names, tb[i].names)
                o.earliest = max(rdy, tmp_min[tb.lo])
                o.deps += [(x, 0) for x in tmp_last[tb.lo]]
                rd.append(o)
            ops += rd
            src = [tb[i] for i in range(8)]
            D = tb[0:4]
        mu = []
        if packed:
            for k in range(4):
                pr = Reg("v", src[2 * k].lo, 2)
                rl2 = Reg("v", vRL[r].lo, 2)
                o = valu(f"v_pk_mul_f32 {pr}, {pr}, {rl2} op_sel_hi:[1,0]", names(pr, vRL[r]), pr.names)
                o.earliest = rdy
                o.meta["pk"] = True
                o.deps.append((rcp, 1))
                if rd:
                    o.deps += [(rd[2 * k], 0), (rd[2 * k + 1], 0)]
                mu += [o, o]
            ops += mu[::2]
        else:
            for i in range(8):
                o = valu(f"v_mul_f32 {src[i]}, {src[i]}, {vRL[r]}", names(src[i], vRL[r]), src[i].names)
                o.earliest = rdy
                o.deps.append((rcp, 1))
                if rd:
                    o.deps.append((rd[i], 0))
                mu.append(o)
            ops += mu
        cv = []
        for k in range(4):
            o = valu(f"v_cvt_pk_bf16_f32 {D[k]}, {src[2 * k]}, {src[2 * k + 1]}", names(src[2 * k], src[2 * k + 1]), D[k].names)
            o.deps += [(mu[2 * k], 0), (mu[2 * k + 1], 0)]
            if k:
                o.deps.append((cv[k - 1], 0))
            cv.append(o)
        w = []
        for xy in range(2):
            ad = vSW[xy] if cfg.tgran else vSW[2 * (T & 1) + xy]
            x = Op(f"ds_write_b64 {ad}, {D[2 * xy:2 * xy + 2]} offset:{(1024 if cfg.tgran else 2048) * half}", "ds",
                   D[2 * xy:2 * xy + 2].names + ad.names, [])
            x.deps += [(cv[2 * xy], 0), (cv[2 * xy + 1], 0)]
            x.earliest = stg_after
            x.deps += [(z, 0) for z in stg_last_read.get(half, [])]
            w.append(x)
        if rd:
            tmp_last[tb.lo] = w + [cv[3]]
        wr[(r, T)] = w
        ops += cv + w
        if T % 2 == 1 or cfg.tgran:
            H = T >> 1
            rds, sts = [], []
            for k in range(1 if cfg.tgran else 2):
                qd = rbq[ctr["r"] % len(rbq)]
                ctr["r"] += 1
                o = Op(f"ds_read_b128 {qd}, {vSR} offset:{1024 * half if cfg.tgran else 1024 * k + 2048 * half}", "ds", vSR.names, qd.names)
                o.deps += [(x, 0) for tt in ((T,) if cfg.tgran else (T - 1, T)) for x in wr[(r, tt)]]
                o.deps += [(x, 0) for x in rb_last.get(qd.lo, [])]
                o.earliest = qk_end
                stt = f"buffer_store_dwordx4 {qd}, {vST[r][k]}, s[{sO}:{sO + 3}], 0 offen offset:{64 * T if cfg.tgran else 128 * H}"
                pol = cfg.st if H < cfg.st_from else cfg.st_last
                if pol:
                    stt += " " + pol
                so = Op(stt, "vstore", qd.names + vST[r][k].names + sn(sO, 4), [])
                so.meta["data"] = frozenset(qd.names)
                so.meta["hoist_wait"] = True
                so.deps += [(o, cfg.lat), (sta[(r, k)], 0)]
                rb_last[qd.lo] = [so]
                rds.append(o)
                sts.append(so)
            stg_last_read[half] = rds
            ops += rds + sts
        return ops

    fo, rcp = finish_rows((0, 1, 2), last_add)
    vq += fo + list(sta.values())
    ep = []
    nb = 2 * cfg.stg_n
    seqTr = [(T, r) for T in range(8) for r in rord]
    if cfg.hmajor:
        seqTr = [(2 * H + k, r) for H in range(4) for r in rord for k in range(2)]
    for (T, r) in seqTr:
        if True:
            buf = (3 * T + r) % (2 * nb) if cfg.tgran else (3 * (T >> 1) + r) % nb
            ep += piece(r, 7, T, rcp[r], buf, cfg.pk and T >= cfg.pkfrom and (not cfg.pairs or r == rord[-1]))

    gaps = {g: {"s": [], "v": []} for g in range(-1, NM + 1)}
    for b in bars:
        if b.meta["hoist_wait"]:
            gaps[b.gap]["s"].append(b)
    for g, d in gap_dma.items():
        pre = d.pre
        d.pre = []
        gaps[g - 1]["s"].append(pre[-1])
        if len(pre) > 1:
            gaps[max(g - 2, 0)]["s"].insert(0, pre[0])

    def ready(o, g, strict=False):
        if o.earliest > g:
            return False
        for (d, k) in o.deps:
            if d.gap is None or d.gap + k > g or (strict and d.gap >= g):
                return False
        return True

    queue = list(vq)
    equeue = list(lowq) + list(ep)
    guard_at = {}
    for (g, ops) in guards:
        guard_at.setdefault(g, []).extend(ops)
    overflow = 0

    def place(o, g, where="v"):
        o.gap = g
        gaps[g][where].append(o)
        (queue if o in queue else equeue).remove(o)

    def force(o, g):
        nonlocal overflow
        if o.gap is not None:
            return
        for (d, k) in o.deps:
            if d.gap is None:
                force(d, g)
        assert o.earliest <= g, (o, g)
        overflow += 1
        place(o, g)

    W = 120

    def pick(kinds, g, strict=False, pk=False, pred=None):
        for qq in (queue, equeue):
            for o in qq[:W]:
                if o.kind in kinds and bool(o.meta.get("pk")) == pk and ready(o, g, strict) and (pred is None or pred(o)):
                    return o
        return None

    def pk_group(g):
        o = pick(("valu",), g, pk=True)
        if o is None:
            return None
        i = equeue.index(o)
        grp = [x for x in equeue[i:i + 4] if x.meta.get("pk")]
        return grp if all(ready(x, g) for x in grp) else None

    since = {}
    xacc = hacc = 0.0
    for g in range(0, NM):
        cap = 2
        mem = False
        nds = len(gap_ds.get(g, []))
        if nds:
            for d in gap_ds[g]:
                gaps[g]["v"].append(d["op"])
            cap = 1 if nds == 1 else 0
            mem = True
        if g in gap_dma:
            gaps[g]["v"].append(gap_dma[g])
            cap = 0
            mem = True
        light = cfg.dma_light and (g + 1) in gap_dma and g >= cfg.light_from and g > b0.gap
        if light:
            cap = min(cap, 0 if mem else 1)
        extra = 0
        if g <= b0.gap:
            extra = cfg.xpre
        if b0.gap < g < start_int[0] + cfg.xh_len and g not in gap_dma:
            hacc += cfg.xh
            extra = int(hacc)
            hacc -= extra
        if g >= start_int[fin0] - cfg.xlead and not light and g not in gap_dma:
            nst = sum(1 for o in ep if o.kind == "vstore" and o.gap is not None)
            xacc += cfg.xf_first if (nst < cfg.xf_nst and g >= start_int[fin0]) else cfg.xf
            extra = int(xacc)
            xacc -= extra
        o = pick(("salu",), g)
        if o is not None:
            place(o, g, "s")
        ex = pick(("trans",), g)
        if ex is not None:
            since.setdefault(id(ex), g)
        heavy = False
        pg = pk_group(g)
        if pg:
            since.setdefault(id(pg[0]), g)
        age = g - since[id(pg[0])] if pg else -1
        so = pick(("vstore",), g, True) if g not in gap_dma and nds <= 1 else None
        if so is not None:
            place(so, g)
            cap = 4 - nds
            extra = 0
            mem = True
            heavy = True
        elif not (mem or ex):
            mo = pick(("ds",), g, True)
            if mo is not None:
                place(mo, g)
                cap = 1
                mem = True
                if mo.text.startswith("ds_write"):
                    extra = 0
                    if pg and age >= cfg.pk_age:
                        cap = 2
                        heavy = True
        if not heavy and pg and age >= cfg.pk_age2 and g not in gap_dma and not light:
            cap = 5 - len(gaps[g]["v"])
            extra = 0
            heavy = True
        if ex is not None and not light and (not mem or heavy or (g <= b0.gap and cfg.xpre) or (g not in gap_dma and g - since[id(ex)] >= cfg.exp_age)):
            place(ex, g)
            cap = cap - 2 if heavy else 0
        cap += extra
        while cap > 0:
            o = pick(("valu",), g)
            if o is None:
                break
            place(o, g)
            cap -= 1
        if heavy:
            pg = pk_group(g)
            if pg:
                for x in pg:
                    place(x, g)
        for o in guard_at.get(g, []):
            force(o, g)
        if g in fixed and cfg.preflush and g not in noflush:
            for o in list(queue):
                if o.meta.get("pre") is not None and o.meta["pre"] <= g:
                    place(o, g)
    tail = []
    clock = NM
    k = 0
    rest = queue + equeue
    while rest:
        o = next((o for o in rest if o.kind == "vstore" and ready(o, clock, True)), None)
        if o is None:
            o = next((o for o in rest if o.kind == "ds" and ready(o, clock)), None)
        if o is None:
            o = next((o for o in rest if o.kind not in ("ds", "vstore") and ready(o, clock)), None)
        if o is None:
            clock += 1
            continue
        o.gap = clock
        rest.remove(o)
        tail.append(o)
        k += 1
        if k % 3 == 0:
            clock += 1

    prog = list(pro)
    for o in fixed[-1]:
        o.gap = -1
    prog += fixed[-1]
    inv_start = {v: k for k, v in start_int.items()}
    pos_int = {}
    for g in range(NM):
        M[g].gap = g
        prog.append(M[g])
        if g + 1 in inv_start and (inv_start[g + 1] % cfg.stamp_every == 0 or (not cfg.hstamps and (inv_start[g + 1] < 3 or inv_start[g + 1] >= 2 * NP))):
            prog += stamp(f"i{inv_start[g + 1]}")
            if inv_start[g + 1] in (0, fin0):
                prog += stamp(f"t{inv_start[g + 1]}", True)
        prog += gaps[g]["s"]
        prog += gaps[g]["v"]
        if g in fixed:
            for o in fixed[g]:
                o.gap = g
            prog += fixed[g]
    prog += stamp("mfmaend")
    prog += stamp("mfmaendR", True)
    prog += tail
    prog += stamp("stissued", True)
    if cfg.stamps:
        prog.append(Op("s_waitcnt vmcnt(0)", "wait", meta={"fixed": True}))
        prog += stamp("drained", True)
    prog += stamp.finish()
    prog.append(Op(f"s_cmp_lg_u64 s[{sFlag}:{sFlag + 1}], 0", "raw"))
    prog.append(Op("s_cbranch_scc1 L_fallback", "raw"))

    for o in prog:
        if o.kind == "mfma":
            o.meta["cover"] = [x for x in reads if x.gap <= o.gap - 1 - cfg.age and x.gap > o.gap - 40]
    prog = insert_waits_cover(prog)
    prog, moved = spread_scalars(prog)
    prog, pads = fix_hazards(prog, verbose=cfg.verbose)
    verify_lds(prog, U, None, cfg)
    idx = {id(o): i for i, o in enumerate(prog)}
    seg = lambda a, b: estimate_cycles(prog[idx[id(M[a])]:idx[id(M[b])] + 1])
    ints = sorted(start_int.items())
    est = {n: seg(g, (ints[i + 1][1] if i + 1 < len(ints) else NM) - 1) for i, (n, g) in enumerate(ints)}
    info = dict(NM=NM, late=late, overflow=overflow, pads=pads, est_main=seg(start_int[0], NM - 1),
                ideal=16 * (NM - start_int[0]), est_tail=estimate_cycles(prog[idx[id(M[-1])] + 1:]), n=len(prog), tail=len(tail),
                waits=sum(1 for o in prog if o.kind == "wait"), est=list(est.values()),
                pre2=seg(b0.gap + 1, start_int[0] - 1), total=seg(b0.gap + 1, NM - 1) + estimate_cycles(prog[idx[id(M[-1])] + 1:]))
    if cfg.verbose:
        print("flight", flight)
        print("slots", {u.name: u.slot for u in U.values()})
        print("bars", [(b.meta["name"], b.gap) for b in bars])
        print("ints", start_int, "last dma", last_dma.gap, "stores", [o.gap for o in ep if o.kind == "vstore"])
    cfg.stamp_names = stamp.list
    return prog, info


def insert_waits_cover(prog):
    pend = set()
    for o in prog:
        if o.kind == "ds":
            pend |= set(o.writes)
        if o.kind == "mfma" and (o.reads & pend):
            cov = o.meta.get("cover", [])
            o.meta["need_lgkm"] = cov
            for x in cov:
                pend -= set(x.writes)
            pend -= set(o.reads)
    return insert_waits(prog)


def verify_scalars(prog):
    last = {}
    for o in prog:
        if o.kind == "dma":
            for e in o.meta["expect"]:
                for r in e.writes:
                    if r != "scc":
                        assert last.get(r) is e, ("scalar operand clobbered", o.text, e.text)
            for r in o.reads:
                if r[0] == "v":
                    assert last[r].kind == "valu" and last[r].gap is None, ("DMA address clobbered", o.text, last[r].text)
        for r in o.writes:
            last[r] = o


def verify_dataflow(prog):
    pos = {id(o): i for i, o in enumerate(prog)}
    for o in prog:
        for (d, k) in o.deps:
            assert pos[id(d)] < pos[id(o)], ("order", d.text, o.text)


def verify_lds(prog, U, stg_bar, cfg):
    verify_scalars(prog)
    verify_dataflow(prog)
    pos = {id(o): i for i, o in enumerate(prog)}
    bars = [o for o in prog if o.kind == "barrier"]
    occ = {}
    for u in U.values():
        for k in range(u.nslots):
            occ.setdefault(u.slot + k, []).append(u)
        if u.kind != "Q":
            for rd in u.reads:
                b = u.vis
                assert pos[id(b)] < pos[id(rd)], ("read before barrier", u.name)
                for d in u.dmas:
                    assert d.meta["vm_idx"] < b.meta["vm_done_at"], ("dma not waited", u.name)
    for s, us in occ.items():
        us.sort(key=lambda u: pos[id(u.dmas[0])])
        for a, b in zip(us, us[1:]):
            first = min(pos[id(d)] for d in b.dmas)
            ok = any(pos[id(br)] < first and all(rd.meta["lg_idx"] < br.meta["lg_done_at"] for rd in a.reads) for br in bars)
            assert ok, ("slot WAR", s, a.name, b.name)
    writes = [o for o in prog if o.kind == "ds" and o.text.startswith("ds_write")]
    firstw = min(pos[id(o)] for o in writes)
    lo, hi = cfg.stg_base, cfg.stg_base + 4 * cfg.stg_wave
    for s, us in occ.items():
        if s * SLOT < hi and (s + 1) * SLOT > lo:
            for u in us:
                ok = any(pos[id(br)] < firstw and all(rd.meta["lg_idx"] < br.meta["lg_done_at"] for rd in u.reads) for br in bars)
                assert ok, ("staging WAR", s, u.name)


def fallback(cfg):
    L = []
    A = L.append
    t = Reg("v", 104, 12)
    KFf = KF[0]
    VFf = [Reg("a", 192, 4), Reg("a", 200, 4)]
    A("L_fallback:")
    A("s_waitcnt vmcnt(0) lgkmcnt(0)")
    A("s_barrier")
    A(f"s_mul_i32 s{sT3}, s{sW}, 40960")
    A(f"v_and_b32 {t[0]}, 63, v0")
    A(f"v_bfe_u32 {t[2]}, {t[0]}, 2, 2")
    A(f"v_lshlrev_b32 {t[2]}, 9, {t[2]}")
    A(f"v_lshrrev_b32 {t[5]}, 4, {t[0]}")
    A(f"v_lshl_add_u32 {t[2]}, {t[5]}, 6, {t[2]}")
    A(f"v_and_b32 {t[3]}, 3, {t[0]}")
    fk = [Reg("v", 80 + i, 1) for i in range(4)]
    fv = [Reg("v", 84 + i, 1) for i in range(4)]
    for rg in range(4):
        A(f"v_xor_b32 {t[4]}, {FR[rg]}, {t[3]}")
        A(f"v_lshl_add_u32 {fk[rg]}, {t[4]}, 4, {t[2]}")
        A(f"v_add_u32 {fk[rg]}, {rg * 2048}, {fk[rg]}")
        A(f"v_xor_b32 {t[4]}, {2 * (rg & 1)}, {t[3]}")
        A(f"v_lshl_add_u32 {fv[rg]}, {t[4]}, 4, {t[2]}")
        A(f"v_add_u32 {fv[rg]}, {rg * 2048}, {fv[rg]}")
    rk, rv0, rv1 = Reg("v", 88, 1), Reg("v", 89, 1), Reg("v", 90, 1)
    so = [Reg("v", 91 + r, 1) for r in range(3)]
    tmp8 = Reg("v", 96, 8)
    A(f"v_add_u32 {rk}, s{sT3}, {vKR[0]}")
    A(f"v_add_u32 {rv0}, s{sT3}, {vVR[0][0]}")
    A(f"v_add_u32 {rv1}, s{sT3}, {vVR[1][0]}")
    A(f"v_and_b32 {t[6]}, 15, {t[0]}")
    A(f"s_mul_i32 s{sT1}, s{sW}, 48")
    A(f"v_add_u32 {t[6]}, s{sT1}, {t[6]}")
    A(f"v_lshlrev_b32 {t[6]}, 9, {t[6]}")
    A(f"v_and_b32 {t[7]}, 1, {t[5]}")
    A(f"v_lshl_add_u32 {t[6]}, {t[7]}, 5, {t[6]}")
    A(f"v_lshrrev_b32 {t[7]}, 1, {t[5]}")
    A(f"v_lshl_add_u32 {so[0]}, {t[7]}, 4, {t[6]}")
    A(f"v_add_u32 {so[1]}, 8192, {so[0]}")
    A(f"v_add_u32 {so[2]}, 16384, {so[0]}")
    A(f"s_mul_i32 s{sT2}, s{sW}, {48 * 512}")
    for r in range(3):
        for rg in range(4):
            A(f"v_add_u32 {t[8]}, s{sT2}, {fk[rg]}")
            A(f"v_add_u32 {t[8]}, {r * 8192}, {t[8]}")
            for half in range(2):
                A(f"s_add_u32 m0, s{sT3}, {half * 4096 + rg * 1024 - half * 256}")
                A("s_nop 0")
                A(f"buffer_load_dwordx4 {t[8]}, s[{sQ}:{sQ + 3}], 0 offen offset:{half * 256} lds")
        A("s_waitcnt vmcnt(0)")
        for c in range(8):
            A(f"ds_read_b128 {Q[r][c]}, {rk} offset:{(c >> 2) * 4096 + (c & 3) * 256}")
        A("s_waitcnt lgkmcnt(0)")
    Pf = [vP[0][r][0] for r in range(3)]

    def load_k():
        for a in range(2):
            A(f"s_add_u32 s{sT1}, s{sT0}, {a * 8192}")
            for half in range(2):
                for rg in range(4):
                    A(f"s_add_u32 m0, s{sT3}, {a * 8192 + half * 4096 + rg * 1024 - half * 256}")
                    A("s_nop 0")
                    A(f"buffer_load_dwordx4 {fk[rg]}, s[{sK}:{sK + 3}], s{sT1} offen offset:{half * 256} lds")

    def load_v():
        for dh in range(2):
            for a in range(2):
                A(f"s_add_u32 s{sT1}, s{sT0}, {a * 8192 + dh * 256}")
                for rg in range(4):
                    A(f"s_add_u32 m0, s{sT3}, {16384 + dh * 8192 + a * 4096 + rg * 1024}")
                    A("s_nop 0")
                    A(f"buffer_load_dwordx4 {fv[rg]}, s[{sV}:{sV + 3}], s{sT1} offen lds")

    def qk(a):
        for c in range(8):
            A(f"ds_read_b128 {KFf[c]}, {rk} offset:{a * 8192 + (c >> 2) * 4096 + (c & 3) * 256}")
        A("s_waitcnt lgkmcnt(0)")
        for r in range(3):
            for c in range(8):
                A(f"v_mfma_f32_16x16x32_bf16 {vS[r]}, {KFf[c]}, {Q[r][c]}, {vS[r] if c else 0}")
        A("s_nop 15")

    def xl(op, x, tmp):
        for o in xlane(op, x, tmp):
            A("s_nop 1")
            A(o.text)

    for r in range(3):
        A(f"v_mov_b32 {vNM[r]}, 0xff800000")
    A(f"s_mov_b32 s{sT0}, 0")
    A("L_fb1:")
    load_k()
    A("s_waitcnt vmcnt(0)")
    for a in range(2):
        qk(a)
        for r in range(3):
            A(f"v_max3_f32 {vNM[r]}, {vNM[r]}, {vS[r][0]}, {vS[r][1]}")
            A(f"v_max3_f32 {vNM[r]}, {vNM[r]}, {vS[r][2]}, {vS[r][3]}")
    A(f"s_add_u32 s{sT0}, s{sT0}, 16384")
    A(f"s_cmp_lt_u32 s{sT0}, 262144")
    A("s_cbranch_scc1 L_fb1")
    for r in range(3):
        xl("v_max_f32", vNM[r], t[4])
        A(f"v_mul_f32 {vNM[r]}, {f2u(-C_SCALE):#x}, {vNM[r]}")
        A(f"v_mov_b32 {vL[r]}, 0")
    for r in range(3):
        for tt in range(16):
            for i in range(4):
                x = O[r][tt][i]
                A(f"v_mov_b32 {x}, 0" if x.f == "v" else f"v_accvgpr_write_b32 {x}, 0")
    A(f"s_mov_b32 s{sT0}, 0")
    A("L_fb2:")
    load_k()
    load_v()
    A("s_waitcnt vmcnt(0)")
    for a in range(2):
        qk(a)
        for r in range(3):
            S = vS[r]
            for i in range(4):
                A(f"v_fma_f32 {S[i]}, {S[i]}, s{sC}, {vNM[r]}")
            for i in range(4):
                A(f"v_exp_f32 {S[i]}, {S[i]}")
            A("s_nop 1")
            for i in range(4):
                A(f"v_add_f32 {vL[r]}, {vL[r]}, {S[i]}")
            for k in range(2):
                A(f"v_cvt_pk_bf16_f32 {Pf[r][2 * a + k]}, {S[2 * k]}, {S[2 * k + 1]}")
    A("s_nop 3")
    for tt in range(16):
        for s in range(2):
            base = rv0 if (tt & 1) == 0 else rv1
            off = 16384 + (tt >> 3) * 8192 + s * 4096 + ((tt & 7) >> 1) * 256
            A(f"ds_read_b64_tr_b16 {VFf[tt & 1][2 * s:2 * s + 2]}, {base} offset:{off}")
        A("s_waitcnt lgkmcnt(0)")
        for r in range(3):
            A(f"v_mfma_f32_16x16x32_bf16 {O[r][tt]}, {VFf[tt & 1]}, {Pf[r]}, {O[r][tt]}")
    A("s_nop 15")
    A(f"s_add_u32 s{sT0}, s{sT0}, 16384")
    A(f"s_cmp_lt_u32 s{sT0}, 262144")
    A("s_cbranch_scc1 L_fb2")
    for r in range(3):
        xl("v_add_f32", vL[r], t[4])
        A(f"v_rcp_f32 {vRL[r]}, {vL[r]}")
    A("s_nop 3")
    for T in range(8):
        for r in range(3):
            X, Y = O[r][2 * T], O[r][2 * T + 1]
            src = [X[i] for i in range(4)] + [Y[i] for i in range(4)]
            if X.f == "a":
                for i in range(8):
                    A(f"v_accvgpr_read_b32 {tmp8[i]}, {src[i]}")
                src = [tmp8[i] for i in range(8)]
            for i in range(8):
                A(f"v_mul_f32 {src[i]}, {src[i]}, {vRL[r]}")
            D = vS[(3 * T + r) % NSB]
            for k in range(4):
                A(f"v_cvt_pk_bf16_f32 {D[k]}, {src[2 * k]}, {src[2 * k + 1]}")
            A("s_nop 1")
            A(f"v_permlane16_swap_b32 {D[0]}, {D[2]}")
            A(f"v_permlane16_swap_b32 {D[1]}, {D[3]}")
            A(f"buffer_store_dwordx4 {D}, {so[r]}, s[{sO}:{sO + 3}], 0 offen offset:{64 * T}")
    A("s_waitcnt vmcnt(0)")
    return L


HEADER = """; GQA attention forward, B=8 Hq=16 Hkv=8 Sq=368 Sk=512 D=256, bf16.  Hand-designed schedule, emitted by my own
; generator script (fixed MFMA order, slot scheduler for the other instructions, counted waits, hazard padding).
;   O^T = V^T P^T (V fragments by transposing LDS reads).  K/V stream through ten 16 KiB LDS slots by LDS-DMA.
;   sum above 2^64 recomputes its rows in two passes with the true row maximum (L_fallback) and overwrites them.
; @launch grid=(256,1,1) block=(256,1,1) lds=163840
.amdgcn_target "amdgcn-amd-amdhsa--gfx950"
.text
.globl {k}
.p2align 8
.type {k},@function
{k}:
"""

FOOTER = """L_end:
    s_endpgm
.section .rodata,"a"
.p2align 6
.amdhsa_kernel {k}
  .amdhsa_next_free_vgpr 512
  .amdhsa_next_free_sgpr 102
  .amdhsa_accum_offset 256
  .amdhsa_group_segment_fixed_size 0
  .amdhsa_kernarg_size 48
  .amdhsa_user_sgpr_count 2
  .amdhsa_user_sgpr_kernarg_segment_ptr 1
  .amdhsa_system_sgpr_workgroup_id_x 1
.end_amdhsa_kernel
"""


def render(cfg, prog):
    s = HEADER.format(k=KNAME)
    if cfg.align12:
        s = s.replace(".p2align 8\n", ".p2align 12\n.p2align 8\n", 1)
    if cfg.stamps and cfg.spin == -1:
        s = "; stamps: " + " ".join(n + ("*" if r else "") for n, r in cfg.stamp_names) + "\n" + s
    for o in prog:
        s += (o.text if o.kind == "label" else "    " + o.text) + "\n"
    s += "    s_endpgm\nL_mainend:\n"
    for l in fallback(cfg):
        s += (l if l.endswith(":") else "    " + l) + "\n"
    s += FOOTER.format(k=KNAME)
    return s


def addresses(text, n):
    import subprocess, re, tempfile, os
    d = tempfile.mkdtemp()
    open(d + "/x.s", "w").write(text)
    subprocess.run(["clang", "-x", "assembler", "-target", "amdgcn-amd-amdhsa", "-mcpu=gfx950", "-c",
                    d + "/x.s", "-o", d + "/x.o"], check=True)
    out = subprocess.run(["llvm-objdump", "-d", "--mcpu=gfx950", d + "/x.o"], capture_output=True, text=True).stdout
    return [int(m.group(1), 16) for m in re.finditer(r"// ([0-9A-F]+):", out)][:n]


def add_walk(cfg, prog):
    iw = next(i for i, o in enumerate(prog) if o.text == "WALK")
    head, body = prog[:iw], prog[iw + 1:]
    lab = lambda t: Op(t, "label")
    raw = lambda t: Op(t, "raw")
    stubs = []
    for it in range(20):
        b2 = []
        for i, o in enumerate(body):
            if i in stubs:
                k = stubs.index(i)
                b2.append(lab(f"L_pg{k}:"))
                b2.append(raw(f"s_cbranch_execz L_wr{k}"))
            b2.append(o)
        npg = len(stubs)
        walk = [raw("s_mov_b64 exec, 0")]
        for w in range(4):
            if w < npg:
                walk += [raw(f"s_cmp_eq_u32 s{sW}, {w}"), raw(f"s_cbranch_scc1 L_pg{w}")]
        walk.append(raw("s_branch L_wdone"))
        for k in range(npg):
            walk.append(lab(f"L_wr{k}:"))
            walk.append(raw(f"s_branch L_pg{k + 4}" if k + 4 < npg else "s_branch L_wdone"))
        walk += [lab("L_wdone:"), raw("s_mov_b64 exec, -1")]
        full = head + walk + b2
        ins = [o for o in full if o.kind != "label"]
        addr = addresses(render(cfg, full), len(ins))
        amap = {id(o): a + cfg.base_off for o, a in zip(ins, addr)}
        want = []
        prev = amap[id(next(o for o in body if o.kind != "label"))] // 4096
        for i, o in enumerate(body):
            if o.kind == "label":
                continue
            pg = amap[id(o)] // 4096
            if pg != prev:
                j = i
                for jj in range(i, min(i + cfg.walk_win, len(body))):
                    if body[jj - 1].kind == "mfma" and amap[id(body[jj - 1])] // 4096 == pg and body[jj].kind not in ("salu", "wait", "barrier"):
                        j = jj
                        break
                want.append(j)
                prev = pg
        if want == stubs:
            return full
        stubs = want
    return full


def emit(cfg):
    prog, info = build(cfg)
    if cfg.x_nobar:
        prog = [o for o in prog if not (o.kind == "barrier" and o.meta.get("hoist_wait"))]
    if cfg.x_nodma:
        prog = [o for o in prog if not (o.kind == "dma" and o.gap is not None and o.gap > 130)]
    if cfg.x_nowait:
        prog = [o for o in prog if not (o.kind == "wait" and "lgkm" in o.text and not o.meta.get("fixed"))]
    if cfg.walk:
        prog = add_walk(cfg, prog)
    return render(cfg, prog), info


Cfg.walk = True
Cfg.walk_win = 8
Cfg.base_off = 0x300
Cfg.spin_name = ""
Cfg.stamp_every = 1
Cfg.pkfrom = 7
Cfg.pk_age = 2
Cfg.pk_age2 = 4
Cfg.dma_light = True
Cfg.defer = 3
Cfg.softb0 = True
Cfg.padzero = False
Cfg.dma_win_early = 96
Cfg.early_n = 2
Cfg.light_from = 0
Cfg.xh = 1.0
Cfg.xh_len = 24
Cfg.first_order = "cccGGGG"
Cfg.xf_first = 0.5
Cfg.xf_nst = 2
Cfg.pairs = True
Cfg.head_s1 = "Q1a"
Cfg.head_s2 = "K3"
Cfg.nofl = "12"
Cfg.touch = "V"
Cfg.dfhead = 3
Cfg.head_a3 = "Q2b"
Cfg.inter = True
Cfg.xpre = 1
Cfg.g_r0a = "Q1b@3:6"
Cfg.g_r0b = ""
Cfg.g_r1 = ""
Cfg.hstamps = False
Cfg.hmajor = True
Cfg.rord = "021"
Cfg.tgran = False
Cfg.x_nobar = False
Cfg.x_nodma = False
Cfg.x_nowait = False
Cfg.align12 = True
Cfg.ldv = "="
Cfg.st_from = 9
Cfg.st_last = ""
Cfg.kdouble = False
Cfg.spf = 1.5
Cfg.xf = 0.0
Cfg.xlead = 48
Cfg.dma_lead = 0
Cfg.head = "Q0a,K0,pf,Q0b,|,walk,K1,K2"
Cfg.head_a = ""
Cfg.head_a2 = "Q2a"
Cfg.head_c = "K4"
Cfg.head_0 = "V0"
Cfg.half_r = ""
Cfg.dma_cap = 12
Cfg.dma_win = 96
Cfg.join_order = "cGcGGGc"
Cfg.p7_order = "cGGGG"
Cfg.stg_bar = 14
Cfg.stg_n = 1
Cfg.sp7 = 1.3333
Cfg.sp2 = 1.3333
Cfg.x15 = 3
Cfg.x15_lead = 16
Cfg.x8 = 6
Cfg.x9 = 2
Cfg.xmem = 2
Cfg.exp_age = 3
Cfg.q2_before = "K5"
Cfg.dma_sp_fast = 3
Cfg.tail_extra = 3
Cfg.p7_extra = 0
Cfg.stag2 = ""
Cfg.stag_sh = 6
Cfg.stagger = ""
Cfg.cls_shift = 6
Cfg.cls_mask = 0

if __name__ == "__main__":
    ap = argparse.ArgumentParser()
    ap.add_argument("-o", default="standalone__gqa_softmax__near_ridge.s")
    ap.add_argument("-v", action="store_true")
    ap.add_argument("opts", nargs="*")
    a = ap.parse_args()
    cfg = Cfg()
    cfg.verbose = a.v
    for kv in a.opts:
        k, v = kv.split("=", 1)
        if k == "spin":
            cfg.spin, cfg.spin_name, cfg.stamps = 1, v, True
            continue
        old = getattr(cfg, k)
        if isinstance(old, bool):
            v = v in ("1", "true", "True")
        elif isinstance(old, int):
            v = int(v)
        elif isinstance(old, float):
            v = float(v)
        setattr(cfg, k, v.replace("+", " ") if isinstance(v, str) else v)
    s, info = emit(cfg)
    open(a.o, "w").write(s)
    print(info, len(s))
```
